```python
import torch

def _softmax(x, axis=-1):
    return torch.softmax(x, dim=axis)
def _gelu(x):
    return torch.nn.functional.gelu(x, approximate="tanh")
def _silu(x):
    return torch.nn.functional.silu(x)
def _sigmoid(x):
    return torch.sigmoid(x)
def _layernorm(x, axis=-1, eps=1e-5):
    m = x.mean(dim=axis, keepdim=True)
    v = x.var(dim=axis, keepdim=True, unbiased=False)
    return (x - m) / torch.sqrt(v + eps)
def _scatter_add(tgt, idx, src, axis=0):
    return tgt.clone().index_add_(axis, idx, src)
def _segment_sum(src, seg, n):
    out = torch.zeros((n,) + src.shape[1:], dtype=src.dtype)
    return out.index_add_(0, seg, src)
def _pad(x, pw):
    flat = tuple(v for pair in reversed(pw) for v in pair)
    return torch.nn.functional.pad(x, flat)

kernel_name = 'standalone__sequential_behavior_din__recsys'

def setup_inputs():

    _w = (lambda a: (lambda t: t.to(torch.bfloat16) if t.is_floating_point() else t)(torch.as_tensor(a)))
    B, L, D = 16384, 200, 64
    H = D
    return {
        "target": _w((lambda *s: torch.randn(*s, dtype=torch.bfloat16) * 1.6)(B, D)),
        "hist": _w((lambda *s: torch.randn(*s, dtype=torch.bfloat16) * 1.6)(B, L, D)),
        "mask": _w((lambda lo, hi, *s: torch.randint(lo, hi, s))(0, 2, B, L).to(float)),
        "w1": _w((lambda *s: torch.randn(*s, dtype=torch.bfloat16) * 1.6)(4 * D, H) * (4 * D) ** -0.5),
        "b1": _w((lambda *s: torch.randn(*s, dtype=torch.bfloat16) * 1.6)(H) * 0.1),
        "w2": _w((lambda *s: torch.randn(*s, dtype=torch.bfloat16) * 0.05)(H, 1) * H ** -0.5),
        "b2": _w((lambda *s: torch.randn(*s, dtype=torch.bfloat16) * 0.05)(1) * 0.1),
    }

def reference(target, hist, mask, w1, b1, w2, b2):
    L = hist.shape[1]
    tgt = (lambda x, n, axis: torch.repeat_interleave(x, n, dim=axis))(target[:, None, :], L, axis=1)
    feat = torch.concatenate([hist, tgt, hist - tgt, hist * tgt], axis=-1)
    h = _sigmoid(feat @ w1 + b1)
    scores = (h @ w2 + b2)[..., 0] * mask
    return torch.einsum('bl,bld->bd', scores, hist)
```

```python
import re

TRANS = ("v_exp_f32", "v_rcp_f32", "v_log_f32", "v_rsq_f32", "v_sqrt_f32", "v_sin_f32", "v_cos_f32",
         "v_exp_f16", "v_rcp_f16")


def regs_of(tok):
    tok = tok.strip()
    neg = tok.lstrip("-|").rstrip("|")
    m = re.fullmatch(r"([vsa])(\d+)", neg)
    if m:
        return [(m.group(1), int(m.group(2)))]
    m = re.fullmatch(r"([vsa])\[(\d+):(\d+)\]", neg)
    if m:
        return [(m.group(1), i) for i in range(int(m.group(2)), int(m.group(3)) + 1)]
    if neg == "vcc":
        return [("s", 106), ("s", 107)]
    if neg == "exec":
        return [("s", 126), ("s", 127)]
    if neg == "m0":
        return [("s", 124)]
    return []


def mfma_passes(mn):
    if "4x4x4" in mn:
        return 2
    if "16x16x32" in mn or "16x16x16" in mn:
        return 4
    if "32x32x16" in mn or "32x32x8" in mn or "16x16x4_4b" in mn:
        return 8
    raise ValueError(mn)


class Ins:
    def __init__(self, text):
        self.text = text.strip()
        self.label = None
        self.cls = None
        self.w = set()
        self.r = set()
        self.srcA = self.srcB = self.srcC = self.dst = ()
        self.target = None
        self.states = 1
        t = self.text.split(";")[0].strip()
        if t.endswith(":"):
            self.label = t[:-1]
            self.cls = "label"
            self.states = 0
            return
        if t == "" or t.startswith("."):
            self.cls = "dir"
            self.states = 0
            return
        parts = t.split(None, 1)
        mn = self.mn = parts[0]
        rest = parts[1] if len(parts) > 1 else ""
        ops, depth, cur = [], 0, ""
        for ch in rest:
            if ch == "[":
                depth += 1
            if ch == "]":
                depth -= 1
            if ch == "," and depth == 0:
                ops.append(cur.strip())
                cur = ""
            else:
                cur += ch
        if cur.strip():
            ops.append(cur.strip())
        mods = ""
        if ops:
            sp = ops[-1].split(None, 1)
            if len(sp) > 1:
                ops[-1], mods = sp[0], sp[1]
        self.ops, self.mods = ops, mods
        R = lambda k: regs_of(ops[k]) if k < len(ops) else []
        if mn.startswith("v_mfma"):
            self.cls = "mfma"
            self.passes = mfma_passes(mn)
            self.dst, self.srcA, self.srcB, self.srcC = map(tuple, (R(0), R(1), R(2), R(3)))
            self.w = set(self.dst)
            self.r = set(self.srcA) | set(self.srcB) | set(self.srcC)
        elif mn.startswith("v_"):
            self.cls = "valu"
            self.trans = any(mn.startswith(x) for x in TRANS)
            if mn.startswith("v_cmp"):
                self.w = set(R(0))
                self.r = set(x for k in range(1, len(ops)) for x in R(k))
            elif mn.startswith(("v_add_co", "v_addc_co", "v_sub_co", "v_subb_co")):
                self.w = set(R(0)) | set(R(1))
                self.r = set(x for k in range(2, len(ops)) for x in R(k))
            else:
                self.w = set(R(0))
                self.r = set(x for k in range(1, len(ops)) for x in R(k))
                if mn.startswith(("v_fmac", "v_permlane", "v_writelane")):
                    self.r |= set(R(0))
                if mn.startswith("v_permlane"):
                    self.w |= set(R(1))
            self.lane_read = mn.startswith(("v_readfirstlane", "v_readlane"))
            self.dpp = "_dpp" in mn
        elif mn.startswith("ds_"):
            self.cls = "ds"
            if mn.startswith("ds_read"):
                self.w = set(R(0))
                self.r = set(R(1))
                if "d16" in mn:
                    self.r |= set(R(0))
            else:
                self.r = set(x for k in range(len(ops)) for x in R(k))
        elif mn.startswith("buffer_"):
            self.cls = "vmem"
            self.lds = bool(re.search(r"\blds\b", mods))
            if self.lds:
                self.r = set(x for k in range(len(ops)) for x in R(k))
            elif mn.startswith("buffer_load"):
                self.w = set(R(0))
                self.r = set(x for k in range(1, len(ops)) for x in R(k))
            else:
                self.r = set(x for k in range(len(ops)) for x in R(k))
                self.store_data = set(R(0)) if ("x4" in mn or "x3" in mn) else set()
        elif mn.startswith("s_"):
            self.cls = "salu"
            if mn == "s_nop":
                self.states = int(ops[0], 0) + 1
            elif mn.startswith(("s_cbranch", "s_branch")):
                self.cls = "branch"
                self.target = ops[0]
            elif mn == "s_endpgm":
                self.cls = "end"
            elif mn.startswith(("s_cmp", "s_bitcmp", "s_waitcnt", "s_barrier", "s_setprio", "s_sleep")):
                self.r = set(x for k in range(len(ops)) for x in R(k))
            else:
                self.w = set(R(0))
                self.r = set(x for k in range(1, len(ops)) for x in R(k))
                if "saveexec" in mn:
                    self.w |= {("s", 126), ("s", 127)}
        else:
            raise ValueError("unknown instruction: " + text)


def need(p, c):
    n = 0
    vw = {x for x in p.w if x[0] in "va"}
    sw = {x for x in p.w if x[0] == "s"}
    if p.cls == "valu":
        if c.cls == "valu" and sw & c.r:
            n = max(n, 4 if getattr(c, "lane_read", False) and c.mn.startswith("v_readlane") else 2)
        if c.cls == "vmem" and sw & c.r:
            n = max(n, 5)
        if c.cls == "valu" and c.lane_read and vw & c.r:
            n = max(n, 1)
        if c.cls == "valu" and (c.dpp or c.mn.startswith("v_permlane")) and vw & c.r:
            n = max(n, 2)
        if p.trans and c.cls == "valu" and not c.trans and vw & c.r:
            n = max(n, 1)
        if "sdwa" in p.mn and not p.mn.startswith("v_cmp") and c.cls == "valu" and vw & (c.r | c.w):
            n = max(n, 1)
        if c.cls == "mfma" and vw & c.r:
            n = max(n, 2)
        if c.cls in ("salu",) and sw & c.r:
            n = max(n, 1)
    if p.cls == "mfma":
        k = {2: 0, 4: 1, 8: 2, 16: 3}[p.passes]
        if c.cls == "mfma":
            if set(c.srcC) & vw:
                if c.srcC == p.dst and c.passes == p.passes:
                    n = max(n, [2, 0, 0, 0][k])
                else:
                    n = max(n, [4, 6, 10, 18][k])
            if (set(c.srcA) | set(c.srcB)) & vw:
                n = max(n, [5, 8, 12, 20][k])
            if set(c.dst) & vw and not (c.srcC == p.dst and c.passes == p.passes):
                n = max(n, [4, 6, 10, 18][k])
        elif c.cls in ("valu", "ds", "vmem"):
            if vw & (c.r | c.w):
                n = max(n, [5, 8, 12, 20][k])
            if c.cls == "valu" and set(p.srcC) & c.w:
                n = max(n, [1, 3, 7, 15][k])
    if p.cls == "salu" and ("s", 124) in sw and c.cls == "vmem" and c.lds:
        n = max(n, 1)
    if p.cls == "vmem" and getattr(p, "store_data", None) and p.store_data & c.w:
        n = max(n, 2)
    return n


class Prog:
    def __init__(self):
        self.ins = []

    def __call__(self, text):
        for line in text.split("\n"):
            if line.strip():
                self.ins.append(Ins(line))

    def preds(self):
        lab = {i.label: k for k, i in enumerate(self.ins) if i.label}
        pr = [[] for _ in self.ins]
        for k, i in enumerate(self.ins):
            if i.cls == "branch":
                pr[lab[i.target]].append(k)
                if i.mn == "s_branch":
                    continue
            if i.cls == "end":
                continue
            if k + 1 < len(self.ins):
                pr[k + 1].append(k)
        return pr

    def shortfall(self, k, pr):
        c = self.ins[k]
        if c.cls in ("label", "dir"):
            return 0, None
        worst, who = 0, None
        stack = [(p, 0) for p in pr[k]]
        seen = {}
        while stack:
            j, dist = stack.pop()
            if dist >= 21 or seen.get(j, 99) <= dist:
                continue
            seen[j] = dist
            p = self.ins[j]
            if p.cls not in ("label", "dir"):
                n = need(p, c)
                if n - dist > worst:
                    worst, who = n - dist, p
            for q in pr[j]:
                stack.append((q, dist + p.states))
        return worst, who

    def fix_hazards(self, verbose=False):
        total = 0
        k = 0
        pr = self.preds()
        while k < len(self.ins):
            s, who = self.shortfall(k, pr)
            if s > 0:
                if verbose:
                    print(f"; hazard: +{s} before [{self.ins[k].text}] after [{who.text}]")
                while s > 0:
                    n = min(s, 16)
                    self.ins.insert(k, Ins(f"s_nop {n-1}"))
                    k += 1
                    s -= n
                    total += 1
                pr = self.preds()
                k = max(0, k - 1)
            k += 1
        pr = self.preds()
        for k in range(len(self.ins)):
            s, who = self.shortfall(k, pr)
            assert s == 0, (self.ins[k].text, who.text)
        return total

    def text(self):
        out = []
        for i in self.ins:
            out.append(i.text if i.cls in ("label", "dir") else "    " + i.text)
        return "\n".join(out) + "\n"
```

```python
import sys
from asmlib import Prog

opt = dict(D=7, nt="nt", ntm="nt", nto="", verbose=0)
for a in sys.argv[1:]:
    k, v = a.split("=", 1)
    opt[k] = int(v) if v.lstrip("-").isdigit() else v.replace("+", " ")
D = opt["D"]
NT, NTM, NTO = opt["nt"], opt["ntm"], opt["nto"]

NAME = "standalone__sequential_behavior_din__recsys_kernel"
NWG, WPB = 256, 8
NWAVE = NWG * WPB
KB = 16384 // NWAVE
REG = 20480
SLOT = 2080
TB = D * SLOT
BI = TB + 1024
LI = BI + 2048
assert LI + 2048 <= REG
STG = (D - 2) * SLOT
CNEG = 0xBFB8AA3B

CA, CD, W, ZA, ZB, BIAS, XB, XT, W2, B2, S, ACC, DG, TR, ONE, VA, VB = \
    4, 68, 100, 132, 148, 164, 180, 188, 196, 204, 208, 212, 216, 224, 228, 230, 232
RDB0, RDB1, RDT, RDL, TADR, BADR, OADR, SEL0, SEL1, VOUT, RDM = range(234, 245)
TX = 246
RA, RB, RC, RD = W, BIAS, ZA, CD
MSK = W
SH, SM, ST, SW1, SB1, SW2, SB2, SO = 20, 24, 28, 32, 36, 40, 44, 48
sLB, sW, sw = 52, 53, 54
F, G = 56, 60
sTAU, sK, sT0, sT1 = 64, 65, 66, 67
A0, E0 = 68, 76
NB, P0, P1, P2 = 84, 86, 88, 90
sC, sOFF, sEARLY = 92, 93, 94


def v(a, n=1):
    return f"v{a}" if n == 1 else f"v[{a}:{a+n-1}]"


def s(a, n=1):
    return f"s{a}" if n == 1 else f"s[{a}:{a+n-1}]"


p = Prog()


def srd(dst, ptr, nrec, stride=0):
    p(f"s_mov_b32 {s(dst)}, {s(ptr)}")
    p(f"s_and_b32 {s(dst+1)}, {s(ptr+1)}, 0xffff")
    if stride:
        p(f"s_or_b32 {s(dst+1)}, {s(dst+1)}, {stride << 16:#x}")
    p(f"s_mov_b32 {s(dst+2)}, {nrec}")
    p(f"s_mov_b32 {s(dst+3)}, 0x20000")


def dma_tile(slot, fill=()):
    fill = list(fill) + [None, None]
    p(f"s_add_u32 m0, {s(sLB)}, {slot*SLOT}")
    if fill[0]:
        p(fill[0])
    p(f"buffer_load_dwordx4 {v(VA,2)}, {s(SH,4)}, 0 idxen offen {NT} lds")
    p(f"s_add_u32 m0, {s(sLB)}, {slot*SLOT+1056}")
    if fill[1]:
        p(fill[1])
    p(f"buffer_load_dwordx4 {v(VB,2)}, {s(SH,4)}, 0 idxen offen {NT} lds")


def adv_hist():
    p(f"s_add_u32 {s(SH)}, {s(SH)}, {NWAVE*25600}")
    p(f"s_addc_u32 {s(SH+1)}, {s(SH+1)}, 0")


def compact(k):
    m0, m1 = MSK + 2 * k, MSK + 2 * k + 1
    R = ZA
    for e in range(4):
        p(f"v_cmp_neq_f16_sdwa {s(A0+2*e,2)}, {v((m0,m1)[e>>1])}, 0 src0_sel:WORD_{e&1} src1_sel:WORD_0")
    p(f"s_lshl_b32 {s(sT0)}, {s(sTAU)}, 4")
    p(f"s_add_u32 {s(sT0)}, {s(sT0)}, {s(sLB)}")
    p(f"s_add_u32 {s(sT0)}, {s(sT0)}, {LI+16}")
    p(f"v_mov_b32 {v(R)}, {s(sT0)}")
    for e in range(4):
        p(f"v_mbcnt_lo_u32_b32 {v(R)}, {s(A0+2*e)}, {v(R)}")
        p(f"v_mbcnt_hi_u32_b32 {v(R)}, {s(A0+2*e+1)}, {v(R)}")
    for e in range(3):
        p(f"v_addc_co_u32 {v(R+e+1)}, vcc, 0, {v(R+e)}, {s(A0+2*e,2)}")
    for e in range(4):
        p(f"s_mov_b64 exec, {s(A0+2*e,2)}")
        p(f"ds_write_b8{'_d16_hi' if e&1 else ''} {v(R+e)}, {v(ZA+4+(e>>1))}")
    p("s_mov_b64 exec, -1")
    for e in range(4):
        p(f"v_cmp_eq_u16_sdwa {s(E0+2*e,2)}, {v((m0,m1)[e>>1])}, {v(ZA+6)} src0_sel:WORD_{e&1} src1_sel:WORD_0")
    p(f"s_bcnt1_i32_b64 {s(sT0)}, {s(A0,2)}")
    for e in range(1, 4):
        p(f"s_bcnt1_i32_b64 {s(sT1)}, {s(A0+2*e,2)}")
        p(f"s_add_u32 {s(sT0)}, {s(sT0)}, {s(sT1)}")
    p(f"s_add_u32 {s(sT0)}, {s(sT0)}, 15")
    p(f"s_lshr_b32 {s(sT0)}, {s(sT0)}, 4")
    p(f"s_max_u32 {s(sT0)}, {s(sT0)}, 1")
    p(f"s_add_u32 {s(sTAU)}, {s(sTAU)}, {s(sT0)}")
    if k == KB - 1:
        p(f"s_mov_b64 {s(G,2)}, {s(F,2)}")
        p(f"s_mov_b64 {s(G+2,2)}, {s(F+2,2)}")
    p(f"s_lshl_b64 {s(P0,2)}, 1, {s(sTAU)}")
    p(f"s_cmp_lt_u32 {s(sTAU)}, 64")
    p(f"s_cselect_b64 {s(P1,2)}, {s(P0,2)}, 0")
    p(f"s_cselect_b64 {s(P2,2)}, 0, {s(P0,2)}")
    p(f"s_or_b64 {s(F,2)}, {s(F,2)}, {s(P1,2)}")
    p(f"s_or_b64 {s(F+2,2)}, {s(F+2,2)}, {s(P2,2)}")
    for e in range(4):
        p(f"s_andn2_b64 {s(P0,2)}, {s(A0+2*e,2)}, {s(E0+2*e,2)}")
        p(f"s_or_b64 {s(NB,2)}, {s(NB,2)}, {s(P0,2)}")


def wbuild():
    for x in range(4):
        p(f"v_mul_u32_u24 {v(DG+2*x)}, {v(TR+x)}, {v(SEL0)}")
        p(f"v_mul_u32_u24 {v(DG+2*x+1)}, {v(TR+x)}, {v(SEL1)}")
    T = [ZB, ZB + 8, TX]
    pairs = [(hb, ks) for hb in range(4) for ks in range(2)]

    def mm(j):
        hb, ks = pairs[j]
        for u in range(2):
            blk = (hb * 2 + ks) * 2 + u
            p(f"v_mfma_f32_16x16x16_bf16 {v(T[j%3]+4*u,4)}, {v(DG+2*(2*ks+u),2)}, {v(CD+2*blk,2)}, {v(CA+4*blk,4)}")

    def cv(j):
        hb, ks = pairs[j]
        for r in range(4):
            p(f"v_cvt_pk_bf16_f32 {v(W+(hb*2+ks)*4+r)}, {v(T[j%3]+2*r)}, {v(T[j%3]+2*r+1)}")
    p(f"v_add_u32 {v(TADR)}, 128, {v(TADR)}")
    p(f"ds_read_b128 {v(BIAS,4)}, {v(BADR)}")
    mm(0)
    for hb in range(1, 4):
        p(f"ds_read_b128 {v(BIAS+4*hb,4)}, {v(BADR)} offset:{hb*64}")
    mm(1)
    for x in range(4):
        p(f"ds_read_u16 {v(TR+x)}, {v(TADR)} offset:{(x>>1)*64+(x&1)*8}")
    mm(2)
    p(f"v_add_u32 {v(BADR)}, 256, {v(BADR)}")
    for j in range(8):
        cv(j)
        if j + 3 < 8:
            mm(j + 3)
    p("s_waitcnt lgkmcnt(0)")


def g1(j):
    hb, ks = j >> 1, j & 1
    c = v(BIAS + 4 * hb, 4) if ks == 0 else v(ZB + 4 * hb, 4)
    return f"v_mfma_f32_16x16x32_bf16 {v(ZB+4*hb,4)}, {v(W+(hb*2+ks)*4,4)}, {v(XB+4*ks,4)}, {c}"


def read_xb(slot):
    p(f"ds_read_b128 {v(XB,4)}, {v(RDB0)} offset:{slot*SLOT}")
    p(f"ds_read_b128 {v(XB+4,4)}, {v(RDB1)} offset:{slot*SLOT}")


def mainloop(tag, slow):
    ool = []
    p(f"L{tag}_loop:")
    for u in range(D):
        ex = lambda j: p(f"v_exp_f32 {v(ZA+j)}, {v(ZB+j)}")
        rc = lambda j: p(f"v_rcp_f32 {v(ZA+j)}, {v(ZA+j)}")
        cv = lambda j: p(f"v_cvt_pk_bf16_f32 {v(ZA+j)}, {v(ZA+2*j)}, {v(ZA+2*j+1)}")
        g2 = lambda q: p(f"v_mfma_f32_4x4x4_16b_bf16 {v(ACC,4)}, {v(S,2)}, {v(XT+2*q,2)}, {v(ACC,4)} cbsz:4 abid:{4*q}")
        sc = lambda q: p(f"v_mfma_f32_16x16x32_bf16 {v(S,4)}, {v(ZA+4*q,4)}, {v(W2+4*q,4)}, {v(B2,4) if q == 0 else v(S,4)}")
        if slow:
            p(f"ds_read_b32 {v(TX)}, {v(RDM)} offset:{u*16}")
            p("s_waitcnt lgkmcnt(0)")
            for r in range(4):
                p(f"v_bfe_u32 {v(TX+1+r)}, {v(TX)}, {8*r}, 8")
                p(f"v_lshlrev_b32 {v(TX+1+r)}, 1, {v(TX+1+r)}")
            for r in range(4):
                p(f"buffer_load_ushort {v(TX+1+r)}, {v(TX+1+r)}, {s(SM,4)}, 0 offen")
            p("s_waitcnt vmcnt(0)")
            for r in range(4):
                p(f"v_lshlrev_b32 {v(TX+1+r)}, 16, {v(TX+1+r)}")
                p(f"v_mul_f32 {v(S+r)}, {v(S+r)}, {v(TX+1+r)}")
        p(f"s_waitcnt vmcnt({2*(D-2)})")
        read_xb((u + 1) % D)
        p(f"ds_read_u8 {v(VA)}, {v(RDL)} offset:{(u+D)*16}")
        p(f"ds_read_u8 {v(VB)}, {v(RDL)} offset:{(u+D)*16+8}")
        for j in range(4):
            ex(j)
        p(f"v_cvt_pk_bf16_f32 {v(S)}, {v(S)}, {v(S+1)}")
        p(f"v_cvt_pk_bf16_f32 {v(S+1)}, {v(S+2)}, {v(S+3)}")
        for q in range(4):
            ex(4 + 2 * q)
            ex(5 + 2 * q)
            g2(q)
        for q in range(4):
            p(f"ds_read_b64_tr_b16 {v(XT+2*q,2)}, {v(RDT)} offset:{u*SLOT+q*512+(q>>1)*32}")
        for j in range(12, 16):
            ex(j)
        p(f"s_bitcmp1_b64 {s(F,2)}, {u}")
        p(f"s_cbranch_scc1 L{tag}_flush{u}")
        p(f"L{tag}_flushed{u}:")
        p(f"v_mfma_f32_32x32x8_bf16 {v(ZA,16)}, {v(ONE,2)}, {v(ONE,2)}, {v(ZA,16)}")
        p(f"s_bitcmp1_b64 {s(G,2)}, {u+1}")
        p(f"s_cbranch_scc1 L{tag}_wb{u}")
        p(f"L{tag}_wbd{u}:")
        p(f"s_bitcmp1_b64 {s(G,2)}, {u+D}")
        p(f"s_cbranch_scc1 L{tag}_adv{u}")
        p(f"L{tag}_advd{u}:")
        p("s_waitcnt lgkmcnt(4)")
        p(g1(0))
        p(g1(1))
        p("s_waitcnt lgkmcnt(0)")
        dma_tile(u, fill=(g1(2), g1(3)))
        rc(0); rc(1); rc(2); cv(0); p(g1(4))
        rc(3); rc(4); cv(1); p(g1(5))
        rc(5); rc(6); cv(2); p(g1(6))
        rc(7); rc(8); cv(3); p(g1(7))
        rc(9); rc(10); cv(4); sc(0)
        rc(11); rc(12); cv(5)
        rc(13); rc(14); cv(6)
        rc(15)
        if u == D - 1:
            p(f"s_lshr_b64 {s(F,2)}, {s(F,2)}, {D}")
            cv(7)
            p(f"s_lshl_b64 {s(P0,2)}, {s(F+2,2)}, {64-D}")
            p(f"s_or_b64 {s(F,2)}, {s(F,2)}, {s(P0,2)}")
            sc(1)
            p(f"s_lshr_b64 {s(F+2,2)}, {s(F+2,2)}, {D}")
            p(f"s_lshr_b64 {s(G,2)}, {s(G,2)}, {D}")
            p(f"s_lshl_b64 {s(P0,2)}, {s(G+2,2)}, {64-D}")
            p(f"s_or_b64 {s(G,2)}, {s(G,2)}, {s(P0,2)}")
            p(f"s_lshr_b64 {s(G+2,2)}, {s(G+2,2)}, {D}")
            p(f"v_add_u32 {v(RDL)}, {16*D}, {v(RDL)}")
            if slow:
                p(f"v_add_u32 {v(RDM)}, {16*D}, {v(RDM)}")
            p(f"s_branch L{tag}_loop")
        else:
            cv(7)
            sc(1)
    for u in range(D):
        p(f"L{tag}_flush{u}:")
        p(f"v_cvt_pk_bf16_f32 {v(TX)}, {v(ACC)}, {v(ACC)}")
        p(f"v_mov_b32 {v(ACC)}, 0")
        p(f"s_sub_u32 {s(sK)}, {s(sK)}, 1")
        p(f"ds_write_b16 {v(OADR)}, {v(TX)}")
        p(f"s_cbranch_scc1 L_store")
        p(f"v_add_u32 {v(OADR)}, 128, {v(OADR)}")
        if slow:
            p(f"s_add_u32 {s(SM)}, {s(SM)}, {NWAVE*400}")
            p(f"s_addc_u32 {s(SM+1)}, {s(SM+1)}, 0")
        p(f"s_branch L{tag}_flushed{u}")
        p(f"L{tag}_wb{u}:")
        wbuild()
        p(f"s_branch L{tag}_wbd{u}")
        p(f"L{tag}_adv{u}:")
        adv_hist()
        p(f"s_branch L{tag}_advd{u}")


p(f"{NAME}:")
p("s_load_dwordx16 s[4:19], s[0:1], 0")
p(f"s_cmp_ge_u32 s2, {NWG}")
p("s_cbranch_scc1 L_end")
p("v_lshrrev_b32 v1, 6, v0")
p("v_and_b32 v0, 63, v0")
p(f"v_readfirstlane_b32 {s(sw)}, v1")
p("v_lshlrev_b32 v1, 3, v0")
p("v_mov_b32 v2, 0x80000000")
p("v_cmp_gt_u32 vcc, 50, v0")
p(f"s_lshl_b32 {s(sW)}, s2, 3")
p(f"s_add_u32 {s(sW)}, {s(sW)}, {s(sw)}")
p(f"s_mul_i32 {s(sLB)}, {s(sw)}, {REG}")
p("v_cndmask_b32 v1, v2, v1, vcc")
p(f"s_mul_i32 {s(sOFF)}, {s(sW)}, 400")
p("v_lshrrev_b32 v2, 3, v0")
p(f"v_lshlrev_b32 {v(VOUT)}, 18, v2")
p("v_and_b32 v3, 7, v0")
p(f"v_lshl_add_u32 {v(VOUT)}, v3, 4, {v(VOUT)}")
p(f"s_lshl_b32 {s(sT0)}, {s(sW)}, 7")
p(f"v_add_u32 {v(VOUT)}, {s(sT0)}, {v(VOUT)}")
p("s_waitcnt lgkmcnt(0)")
srd(SM, 8, 16384 * 400)
for k in range(KB):
    p(f"buffer_load_dwordx2 {v(MSK+2*k,2)}, v1, {s(SM,4)}, {s(sOFF)} offen {NTM}")
    if k < KB - 1:
        p(f"s_add_u32 {s(sOFF)}, {s(sOFF)}, {NWAVE*400}")
srd(ST, 4, 16384 * 128)
p(f"s_add_u32 m0, {s(sLB)}, {TB}")
srd(SW1, 10, 32768)
p(f"buffer_load_dwordx4 {v(VOUT)}, {s(ST,4)}, 0 offen {NTM} lds")
p("v_bfe_u32 v1, v0, 4, 1")
p(f"v_lshlrev_b32 {v(TX)}, 1, v1")
p(f"v_xor_b32 {v(TX)}, {v(TX)}, v3")
p(f"v_lshlrev_b32 {v(TX)}, 4, {v(TX)}")
p(f"v_lshl_add_u32 {v(TX)}, v2, 7, {v(TX)}")
p(f"s_lshl_b32 {s(sT0)}, {s(sw)}, 12")
p(f"v_add_u32 {v(TX)}, {s(sT0)}, {v(TX)}")
p(f"v_xor_b32 {v(TX+1)}, 64, {v(TX)}")
p(f"s_add_u32 m0, {s(sLB)}, {STG}")
srd(SB1, 12, 128)
for j in range(4):
    p(f"buffer_load_dwordx4 {v(TX+(j&1))}, {s(SW1,4)}, 0 offen offset:{j*1024} lds")
p(f"v_lshlrev_b32 {v(VA+1)}, 2, v1")
p(f"v_xor_b32 {v(VA+1)}, {v(VA+1)}, v3")
p(f"v_lshlrev_b32 {v(VA+1)}, 4, {v(VA+1)}")
p(f"v_mov_b32 {v(VB+1)}, {v(VA+1)}")
p(f"v_lshrrev_b32 v1, 4, v0")
p(f"v_lshlrev_b32 {v(TX+2)}, 3, v1")
srd(SW2, 14, 128)
srd(SB2, 16, 2)
B1R = CA + 16
for hb in range(4):
    p(f"buffer_load_dwordx2 {v(B1R+2*hb,2)}, {v(TX+2)}, {s(SB1,4)}, 0 offen offset:{hb*32}")
for hb in range(4):
    p(f"buffer_load_dwordx2 {v(W2+2*hb,2)}, {v(TX+2)}, {s(SW2,4)}, 0 offen offset:{hb*32}")
p(f"buffer_load_ushort {v(B2)}, off, {s(SB2,4)}, 0")
NAFTER_MASK = 1 + 4 + 4 + 4 + 1
p(f"s_mul_i32 {s(sT0)}, {s(sW)}, 25600")
p(f"s_add_u32 s6, s6, {s(sT0)}")
p("s_addc_u32 s7, s7, 0")
srd(SH, 6, 200, stride=128)
srd(SO, 18, 16384 * 128)
p(f"v_mov_b32 {v(ZB)}, -1")
p(f"v_mov_b32 {v(ZB+1)}, -1")
p(f"v_mov_b32 {v(ZB+2)}, -1")
p(f"v_mov_b32 {v(ZB+3)}, -1")
p(f"s_add_u32 {s(sT0)}, {s(sLB)}, {LI}")
p(f"v_lshl_add_u32 {v(ZB+4)}, v0, 4, {s(sT0)}")
p(f"ds_write_b128 {v(ZB+4)}, {v(ZB,4)}")
p(f"ds_write_b128 {v(ZB+4)}, {v(ZB,4)} offset:1024")
p(f"v_add_u32 {v(RDL)}, {s(sT0)}, v2")
p(f"v_add_u32 {v(RDL)}, 16, {v(RDL)}")
p(f"v_lshl_add_u32 {v(RDM)}, v1, 2, {s(sT0)}")
p(f"v_mul_u32_u24 {v(ZA+4)}, 0x40004, v0")
p(f"v_add_u32 {v(ZA+5)}, 0x30002, {v(ZA+4)}")
p(f"v_add_u32 {v(ZA+4)}, 0x10000, {v(ZA+4)}")
p(f"v_mov_b32 {v(ZA+6)}, 0x3f80")
p(f"s_mov_b32 {s(sTAU)}, 0")
p(f"s_mov_b64 {s(F,2)}, 0")
p(f"s_mov_b64 {s(F+2,2)}, 0")
p(f"s_mov_b64 {s(NB,2)}, 0")
p(f"s_mov_b32 {s(sK)}, {KB-1}")
p(f"s_mov_b32 {s(sC)}, {CNEG:#x}")
n_ = TX + 3
p(f"v_and_b32 {v(n_)}, 15, v0")
p(f"v_lshrrev_b32 {v(TX+4)}, 3, {v(n_)}")
p(f"v_lshlrev_b32 {v(TX+4)}, 5, {v(TX+4)}")
p(f"v_lshl_add_u32 {v(TX+4)}, {v(n_)}, 7, {v(TX+4)}")
p(f"v_add_u32 {v(TX+4)}, {s(sLB)}, {v(TX+4)}")
p(f"v_bfe_u32 {v(TX+5)}, v0, 1, 1")
p(f"v_lshlrev_b32 {v(TX+5)}, 2, {v(TX+5)}")
p(f"v_xor_b32 {v(TX+5)}, {v(TX+5)}, v1")
p(f"v_lshl_add_u32 {v(RDB0)}, {v(TX+5)}, 4, {v(TX+4)}")
p(f"v_xor_b32 {v(TX+5)}, 4, {v(TX+5)}")
p(f"v_lshl_add_u32 {v(RDB1)}, {v(TX+5)}, 4, {v(TX+4)}")
p(f"v_bfe_u32 {v(TX+4)}, v0, 2, 2")
p(f"v_bfe_u32 {v(TX+5)}, v0, 1, 1")
p(f"v_lshl_add_u32 {v(TX+5)}, v1, 1, {v(TX+5)}")
p(f"v_bfe_u32 {v(TX+6)}, v0, 3, 1")
p(f"v_lshlrev_b32 {v(TX+7)}, 2, {v(TX+6)}")
p(f"v_xor_b32 {v(TX+5)}, {v(TX+5)}, {v(TX+7)}")
p(f"v_lshlrev_b32 {v(TX+5)}, 4, {v(TX+5)}")
p(f"v_lshl_add_u32 {v(TX+5)}, {v(TX+4)}, 7, {v(TX+5)}")
p(f"v_and_b32 {v(TX+7)}, 1, v0")
p(f"v_lshl_add_u32 {v(TX+5)}, {v(TX+7)}, 3, {v(TX+5)}")
p(f"v_add_u32 {v(RDT)}, {s(sLB)}, {v(TX+5)}")
p(f"v_and_b32 {v(TX+5)}, 3, v0")
p(f"v_lshl_add_u32 {v(TX+7)}, {v(TX+4)}, 3, {v(TX+5)}")
p(f"s_add_u32 {s(sT0)}, {s(sLB)}, {TB}")
p(f"v_lshl_add_u32 {v(TADR)}, {v(TX+7)}, 1, {s(sT0)}")
p(f"v_lshl_add_u32 {v(OADR)}, v0, 1, {s(sT0)}")
p(f"s_add_u32 {s(sT0)}, {s(sLB)}, {BI}")
p(f"v_lshl_add_u32 {v(BADR)}, v1, 4, {s(sT0)}")
p(f"v_and_b32 {v(TX+7)}, 1, v0")
p(f"v_lshlrev_b32 {v(TX+7)}, 4, {v(TX+7)}")
p(f"v_lshlrev_b32 {v(TX+7)}, {v(TX+7)}, 1")
p(f"v_cmp_eq_u32 vcc, {v(TX+4)}, v1")
p(f"v_cndmask_b32 {v(TX+7)}, 0, {v(TX+7)}, vcc")
p(f"v_cmp_gt_u32 vcc, 2, {v(TX+5)}")
p(f"v_cndmask_b32 {v(SEL0)}, 0, {v(TX+7)}, vcc")
p(f"v_sub_u32 {v(SEL1)}, {v(TX+7)}, {v(SEL0)}")
p("v_cmp_gt_u32 vcc, 32, v0")
p(f"v_cndmask_b32 {v(ONE)}, 0, {v(ZA+6)}, vcc")
p(f"v_mov_b32 {v(ONE+1)}, 0")
p(f"v_lshl_add_u32 {v(TX+5)}, v1, 3, {v(TX+4)}")
p(f"v_lshlrev_b32 {v(TX+5)}, 7, {v(TX+5)}")
p(f"v_and_b32 {v(TX+7)}, 1, v0")
p(f"v_lshl_add_u32 {v(TX+5)}, {v(TX+7)}, 3, {v(TX+5)}")
p(f"v_add_u32 {v(TX+5)}, {STG}, {v(TX+5)}")
p(f"v_and_b32 {v(TX+7)}, 1, v1")
p(f"v_lshlrev_b32 {v(TX+7)}, 1, {v(TX+7)}")
p(f"v_add_u32 {v(TX+7)}, {v(TX+7)}, {v(TX+6)}")
p(f"v_lshlrev_b32 {v(TX+7)}, 1, {v(TX+7)}")
p(f"v_bfe_u32 {v(TX+6)}, v0, 1, 1")
p(f"v_xor_b32 {v(TX+7)}, {v(TX+7)}, {v(TX+6)}")
for hb in range(4):
    p(f"v_xor_b32 {v(TX+6)}, {2*hb}, {v(TX+7)}")
    p(f"v_lshl_add_u32 {v(DG+hb)}, {v(TX+6)}, 4, {v(TX+5)}")
    p(f"v_add_u32 {v(DG+4+hb)}, {4*REG}, {v(DG+hb)}")

p(f"s_waitcnt vmcnt({NAFTER_MASK})")
compact(0)
NE = D - 2


def first_tiles(t0, t1, check):
    for t in range(t0, t1):
        p(f"ds_read_u8 {v(ZB+2*(t-t0))}, {v(RDL)} offset:{t*16}")
        p(f"ds_read_u8 {v(ZB+2*(t-t0)+1)}, {v(RDL)} offset:{t*16+8}")
    for t in range(t0, t1):
        if check and t > 0:
            p(f"s_bitcmp0_b64 {s(G,2)}, {t}")
            p(f"s_cbranch_scc1 L_noadv{t}")
            adv_hist()
            p(f"L_noadv{t}:")
        p(f"s_waitcnt lgkmcnt({2*(t1-t-1)})")
        p(f"v_mov_b32 {v(VA)}, {v(ZB+2*(t-t0))}")
        p(f"v_mov_b32 {v(VB)}, {v(ZB+2*(t-t0)+1)}")
        dma_tile(t)


p(f"s_mov_b32 {s(sEARLY)}, {s(sTAU)}")
p(f"s_cmp_lt_u32 {s(sTAU)}, {NE}")
p("s_cbranch_scc1 L_noearly")
first_tiles(0, NE, False)
p("L_noearly:")
for k in range(1, KB):
    compact(k)
p(f"s_cmp_ge_u32 {s(sEARLY)}, {NE}")
p("s_cbranch_scc1 L_nolate")
first_tiles(0, NE, True)
p("L_nolate:")
p(f"s_waitcnt vmcnt({2*NE})")
p("s_barrier")
for mat, dst in ((1, RB), (2, RC), (0, RA), (3, RD)):
    for hb in range(4):
        for ks in range(2):
            for u in range(2):
                reg = 2 * mat + ks
                blk = (hb * 2 + ks) * 2 + u
                p(f"ds_read_b64_tr_b16 {v(dst+2*blk,2)}, {v(DG+hb+(4 if reg >= 4 else 0))} offset:{(reg&3)*REG+u*512}")
TP, TN = CA + 24, CA + 32
p(f"v_and_b32 {v(TX)}, 7, v0")
p(f"v_lshlrev_b32 {v(TX)}, 7, {v(TX)}")
p(f"v_lshl_add_u32 {v(TX)}, v1, 4, {v(TX)}")
p(f"s_add_u32 {s(sT0)}, {s(sLB)}, {TB}")
p(f"v_add_u32 {v(TX)}, {s(sT0)}, {v(TX)}")
p(f"ds_read_b128 {v(TP,4)}, {v(TX)}")
p(f"ds_read_b128 {v(TP+4,4)}, {v(TX)} offset:64")
for x in range(4):
    p(f"ds_read_u16 {v(TR+x)}, {v(TADR)} offset:{(x>>1)*64+(x&1)*8}")
for hb in range(4):
    for j in range(2):
        p(f"v_lshlrev_b32 {v(CA+4*hb+2*j)}, 16, {v(B1R+2*hb+j)}")
        p(f"v_and_b32 {v(CA+4*hb+2*j+1)}, 0xffff0000, {v(B1R+2*hb+j)}")
p(f"v_lshlrev_b32 {v(B2)}, 16, {v(B2)}")
for r in range(1, 4):
    p(f"v_mov_b32 {v(B2+r)}, {v(B2)}")
p("s_waitcnt lgkmcnt(0)")
p("s_barrier")
for t in range(NE, D):
    p(f"ds_read_u8 {v(TX+2*(t-NE))}, {v(RDL)} offset:{t*16}")
    p(f"ds_read_u8 {v(TX+2*(t-NE)+1)}, {v(RDL)} offset:{t*16+8}")
for j in range(8):
    p(f"v_xor_b32 {v(TN+j)}, 0x80008000, {v(TP+j)}")
for t in range(NE, D):
    p(f"s_bitcmp0_b64 {s(G,2)}, {t}")
    p(f"s_cbranch_scc1 L_noadvb{t}")
    adv_hist()
    p(f"L_noadvb{t}:")
    p(f"s_waitcnt lgkmcnt({2*(D-t-1)})")
    p(f"v_mov_b32 {v(VA)}, {v(TX+2*(t-NE))}")
    p(f"v_mov_b32 {v(VB)}, {v(TX+2*(t-NE)+1)}")
    dma_tile(t)
for ks in range(2):
    for (src, tt) in ((RB, TP), (RC, TN)):
        for hb in range(4):
            p(f"v_mfma_f32_16x16x32_bf16 {v(CA+4*hb,4)}, {v(src+(hb*2+ks)*4,4)}, {v(tt+4*ks,4)}, {v(CA+4*hb,4)}")
p(f"v_mul_u32_u24 {v(DG)}, 0x3f80, {v(SEL0)}")
p(f"v_mul_u32_u24 {v(DG+1)}, 0x3f80, {v(SEL1)}")
p(f"v_and_b32 {v(TX)}, 15, v0")
p(f"v_cmp_gt_u32 vcc, 8, {v(TX)}")
p(f"v_lshl_add_u32 {v(TX)}, {v(TX)}, 8, {v(BADR)}")
for j in range(16):
    p(f"v_mul_f32 {v(CA+j)}, {s(sC)}, {v(CA+j)}")
p("s_mov_b64 exec, vcc")
for hb in range(4):
    p(f"ds_write_b128 {v(TX)}, {v(CA+4*hb,4)} offset:{hb*64}")
p("s_mov_b64 exec, -1")
p("s_waitcnt lgkmcnt(0)")
for blk in range(16):
    p(f"v_mfma_f32_16x16x16_bf16 {v(CA+4*blk,4)}, {v(DG,2)}, {v(RA+2*blk,2)}, 0")
    p(f"v_mfma_f32_16x16x16_bf16 {v(CA+4*blk,4)}, {v(DG,2)}, {v(RC+2*blk,2)}, {v(CA+4*blk,4)}")
for half in range(2):
    for b8 in range(8):
        blk = half * 8 + b8
        p(f"v_mfma_f32_16x16x16_bf16 {v(RB+4*b8,4)}, {v(DG,2)}, {v(RD+2*blk,2)}, 0")
    for j in range(32):
        p(f"v_mul_f32 {v(CA+32*half+j)}, {s(sC)}, {v(CA+32*half+j)}")
    for j in range(32):
        p(f"v_mul_f32 {v(RB+j)}, {s(sC)}, {v(RB+j)}")
    for j in range(16):
        p(f"v_cvt_pk_bf16_f32 {v(CD+16*half+j)}, {v(RB+2*j)}, {v(RB+2*j+1)}")
wbuild()
for j in range(8):
    p(f"v_mov_b32 {v(XT+j)}, 0")
for j in range(4):
    p(f"v_mov_b32 {v(S+j)}, 0")
    p(f"v_mov_b32 {v(ACC+j)}, 0")
p(f"s_waitcnt vmcnt({2*(D-1)})")
read_xb(0)
p("s_waitcnt lgkmcnt(0)")
for j in range(8):
    p(g1(j))
p(f"s_cmp_lg_u64 {s(NB,2)}, 0")
p("s_cbranch_scc1 L_slow")
mainloop("f", False)
p("L_slow:")
p(f"s_mul_i32 {s(sT0)}, {s(sW)}, 400")
p(f"s_add_u32 s8, s8, {s(sT0)}")
p("s_addc_u32 s9, s9, 0")
srd(SM, 8, 400)
mainloop("s", True)
p("L_store:")
p(f"s_add_u32 {s(sT0)}, {s(sLB)}, {TB}")
p(f"v_lshl_add_u32 v1, v0, 4, {s(sT0)}")
p("s_waitcnt lgkmcnt(0)")
p(f"ds_read_b128 {v(ZB,4)}, v1")
p("s_waitcnt lgkmcnt(0)")
p(f"buffer_store_dwordx4 {v(ZB,4)}, {v(VOUT)}, {s(SO,4)}, 0 offen {NTO}")
p("L_end:")
p("s_endpgm")

nn = p.fix_hazards(verbose=opt["verbose"])
hdr = open(__file__.rsplit("/", 1)[0] + "/../standalone__sequential_behavior_din__recsys.s.ref").read().split("\n")
head = [l for l in hdr if l.startswith(";") and "@launch" not in l and "Override" not in l and "grid=ceil" not in l]
out = "\n".join(head) + f"""
; @launch grid=({NWG},1,1) block=({WPB*64},1,1) lds={WPB*REG}
; generated by gen/gen.py {' '.join(sys.argv[1:])}
.amdgcn_target "amdgcn-amd-amdhsa--gfx950"
.text
.globl {NAME}
.p2align 8
.type {NAME},@function
""" + p.text() + f""".section .rodata,"a"
.p2align 6
.amdhsa_kernel {NAME}
  .amdhsa_next_free_vgpr 256
  .amdhsa_next_free_sgpr 102
  .amdhsa_accum_offset 256
  .amdhsa_group_segment_fixed_size 0
  .amdhsa_kernarg_size 80
  .amdhsa_user_sgpr_count 2
  .amdhsa_user_sgpr_kernarg_segment_ptr 1
  .amdhsa_system_sgpr_workgroup_id_x 1
.end_amdhsa_kernel
"""
sys.stdout.write(out)
```

```python
import sys
from asmlib import Prog

opt = dict(D=7, nt="nt", ntm="nt", nto="", verbose=0)
for a in sys.argv[1:]:
    k, v = a.split("=", 1)
    opt[k] = int(v) if v.lstrip("-").isdigit() else v.replace("+", " ")
D = opt["D"]
NT, NTM, NTO = opt["nt"], opt["ntm"], opt["nto"]

NAME = "standalone__sequential_behavior_din__recsys_kernel"
NWG, WPB = 256, 8
NWAVE = NWG * WPB
KB = 16384 // NWAVE
REG = 20480
SLOT = 2080
TB = D * SLOT
BI = TB + 1024
LI = BI + 2048
assert LI + 2048 <= REG
STG = (D - 2) * SLOT
CNEG = 0xBFB8AA3B

CA, CD, W, ZA, ZB, BIAS, XB, XT, W2, B2, S, ACC, DG, TR, ONE, VA, VB = \
    4, 68, 100, 132, 148, 164, 180, 188, 196, 204, 208, 212, 216, 224, 228, 230, 232
RDB0, RDB1, RDT, RDL, TADR, BADR, OADR, SEL0, SEL1, VOUT, RDM = range(234, 245)
TX = 246
RA, RB, RC, RD = W, BIAS, ZA, CD
MSK = W
SH, SM, ST, SW1, SB1, SW2, SB2, SO = 20, 24, 28, 32, 36, 40, 44, 48
sLB, sW, sw = 52, 53, 54
F, G = 56, 60
sTAU, sK, sT0, sT1 = 64, 65, 66, 67
A0, E0 = 68, 76
NB, P0, P1, P2 = 84, 86, 88, 90
sC, sOFF, sEARLY = 92, 93, 94


def v(a, n=1):
    return f"v{a}" if n == 1 else f"v[{a}:{a+n-1}]"


def s(a, n=1):
    return f"s{a}" if n == 1 else f"s[{a}:{a+n-1}]"


p = Prog()


def srd(dst, ptr, nrec, stride=0):
    p(f"s_mov_b32 {s(dst)}, {s(ptr)}")
    p(f"s_and_b32 {s(dst+1)}, {s(ptr+1)}, 0xffff")
    if stride:
        p(f"s_or_b32 {s(dst+1)}, {s(dst+1)}, {stride << 16:#x}")
    p(f"s_mov_b32 {s(dst+2)}, {nrec}")
    p(f"s_mov_b32 {s(dst+3)}, 0x20000")


def dma_tile(slot, fill=()):
    fill = list(fill) + [None, None]
    p(f"s_add_u32 m0, {s(sLB)}, {slot*SLOT}")
    if fill[0]:
        p(fill[0])
    p(f"buffer_load_dwordx4 {v(VA,2)}, {s(SH,4)}, 0 idxen offen {NT} lds")
    p(f"s_add_u32 m0, {s(sLB)}, {slot*SLOT+1056}")
    if fill[1]:
        p(fill[1])
    p(f"buffer_load_dwordx4 {v(VB,2)}, {s(SH,4)}, 0 idxen offen {NT} lds")


def adv_hist():
    p(f"s_add_u32 {s(SH)}, {s(SH)}, {NWAVE*25600}")
    p(f"s_addc_u32 {s(SH+1)}, {s(SH+1)}, 0")


def compact(k):
    m0, m1 = MSK + 2 * k, MSK + 2 * k + 1
    R = ZA
    for e in range(4):
        p(f"v_cmp_neq_f16_sdwa {s(A0+2*e,2)}, {v((m0,m1)[e>>1])}, 0 src0_sel:WORD_{e&1} src1_sel:WORD_0")
    p(f"s_lshl_b32 {s(sT0)}, {s(sTAU)}, 4")
    p(f"s_add_u32 {s(sT0)}, {s(sT0)}, {s(sLB)}")
    p(f"s_add_u32 {s(sT0)}, {s(sT0)}, {LI+16}")
    p(f"v_mov_b32 {v(R)}, {s(sT0)}")
    for e in range(4):
        p(f"v_mbcnt_lo_u32_b32 {v(R)}, {s(A0+2*e)}, {v(R)}")
        p(f"v_mbcnt_hi_u32_b32 {v(R)}, {s(A0+2*e+1)}, {v(R)}")
    for e in range(3):
        p(f"v_addc_co_u32 {v(R+e+1)}, vcc, 0, {v(R+e)}, {s(A0+2*e,2)}")
    for e in range(4):
        p(f"s_mov_b64 exec, {s(A0+2*e,2)}")
        p(f"ds_write_b8{'_d16_hi' if e&1 else ''} {v(R+e)}, {v(ZA+4+(e>>1))}")
    p("s_mov_b64 exec, -1")
    for e in range(4):
        p(f"v_cmp_eq_u16_sdwa {s(E0+2*e,2)}, {v((m0,m1)[e>>1])}, {v(ZA+6)} src0_sel:WORD_{e&1} src1_sel:WORD_0")
    p(f"s_bcnt1_i32_b64 {s(sT0)}, {s(A0,2)}")
    for e in range(1, 4):
        p(f"s_bcnt1_i32_b64 {s(sT1)}, {s(A0+2*e,2)}")
        p(f"s_add_u32 {s(sT0)}, {s(sT0)}, {s(sT1)}")
    p(f"s_add_u32 {s(sT0)}, {s(sT0)}, 15")
    p(f"s_lshr_b32 {s(sT0)}, {s(sT0)}, 4")
    p(f"s_max_u32 {s(sT0)}, {s(sT0)}, 1")
    p(f"s_add_u32 {s(sTAU)}, {s(sTAU)}, {s(sT0)}")
    if k == KB - 1:
        p(f"s_mov_b64 {s(G,2)}, {s(F,2)}")
        p(f"s_mov_b64 {s(G+2,2)}, {s(F+2,2)}")
    p(f"s_lshl_b64 {s(P0,2)}, 1, {s(sTAU)}")
    p(f"s_cmp_lt_u32 {s(sTAU)}, 64")
    p(f"s_cselect_b64 {s(P1,2)}, {s(P0,2)}, 0")
    p(f"s_cselect_b64 {s(P2,2)}, 0, {s(P0,2)}")
    p(f"s_or_b64 {s(F,2)}, {s(F,2)}, {s(P1,2)}")
    p(f"s_or_b64 {s(F+2,2)}, {s(F+2,2)}, {s(P2,2)}")
    for e in range(4):
        p(f"s_andn2_b64 {s(P0,2)}, {s(A0+2*e,2)}, {s(E0+2*e,2)}")
        p(f"s_or_b64 {s(NB,2)}, {s(NB,2)}, {s(P0,2)}")


def wbuild():
    for x in range(4):
        p(f"v_mul_u32_u24 {v(DG+2*x)}, {v(TR+x)}, {v(SEL0)}")
        p(f"v_mul_u32_u24 {v(DG+2*x+1)}, {v(TR+x)}, {v(SEL1)}")
    T = [ZB, ZB + 8, TX]
    pairs = [(hb, ks) for hb in range(4) for ks in range(2)]

    def mm(j):
        hb, ks = pairs[j]
        for u in range(2):
            blk = (hb * 2 + ks) * 2 + u
            p(f"v_mfma_f32_16x16x16_bf16 {v(T[j%3]+4*u,4)}, {v(DG+2*(2*ks+u),2)}, {v(CD+2*blk,2)}, {v(CA+4*blk,4)}")

    def cv(j):
        hb, ks = pairs[j]
        for r in range(4):
            p(f"v_cvt_pk_bf16_f32 {v(W+(hb*2+ks)*4+r)}, {v(T[j%3]+2*r)}, {v(T[j%3]+2*r+1)}")
    p(f"v_add_u32 {v(TADR)}, 128, {v(TADR)}")
    p(f"ds_read_b128 {v(BIAS,4)}, {v(BADR)}")
    mm(0)
    for hb in range(1, 4):
        p(f"ds_read_b128 {v(BIAS+4*hb,4)}, {v(BADR)} offset:{hb*64}")
    mm(1)
    for x in range(4):
        p(f"ds_read_u16 {v(TR+x)}, {v(TADR)} offset:{(x>>1)*64+(x&1)*8}")
    mm(2)
    p(f"v_add_u32 {v(BADR)}, 256, {v(BADR)}")
    for j in range(8):
        cv(j)
        if j + 3 < 8:
            mm(j + 3)
    p("s_waitcnt lgkmcnt(0)")


def g1(j):
    hb, ks = j >> 1, j & 1
    c = v(BIAS + 4 * hb, 4) if ks == 0 else v(ZB + 4 * hb, 4)
    return f"v_mfma_f32_16x16x32_bf16 {v(ZB+4*hb,4)}, {v(W+(hb*2+ks)*4,4)}, {v(XB+4*ks,4)}, {c}"


def read_xb(slot):
    p(f"ds_read_b128 {v(XB,4)}, {v(RDB0)} offset:{slot*SLOT}")
    p(f"ds_read_b128 {v(XB+4,4)}, {v(RDB1)} offset:{slot*SLOT}")


def mainloop(tag, slow):
    ool = []
    p(f"L{tag}_loop:")
    for u in range(D):
        ex = lambda j: p(f"v_exp_f32 {v(ZA+j)}, {v(ZB+j)}")
        rc = lambda j: p(f"v_rcp_f32 {v(ZA+j)}, {v(ZA+j)}")
        cv = lambda j: p(f"v_cvt_pk_bf16_f32 {v(ZA+j)}, {v(ZA+2*j)}, {v(ZA+2*j+1)}")
        g2 = lambda q: p(f"v_mfma_f32_4x4x4_16b_bf16 {v(ACC,4)}, {v(S,2)}, {v(XT+2*q,2)}, {v(ACC,4)} cbsz:4 abid:{4*q}")
        sc = lambda q: p(f"v_mfma_f32_16x16x32_bf16 {v(S,4)}, {v(ZA+4*q,4)}, {v(W2+4*q,4)}, {v(B2,4) if q == 0 else v(S,4)}")
        if slow:
            p(f"ds_read_b32 {v(TX)}, {v(RDM)} offset:{u*16}")
            p("s_waitcnt lgkmcnt(0)")
            for r in range(4):
                p(f"v_bfe_u32 {v(TX+1+r)}, {v(TX)}, {8*r}, 8")
                p(f"v_lshlrev_b32 {v(TX+1+r)}, 1, {v(TX+1+r)}")
            for r in range(4):
                p(f"buffer_load_ushort {v(TX+1+r)}, {v(TX+1+r)}, {s(SM,4)}, 0 offen")
            p("s_waitcnt vmcnt(0)")
            for r in range(4):
                p(f"v_lshlrev_b32 {v(TX+1+r)}, 16, {v(TX+1+r)}")
                p(f"v_mul_f32 {v(S+r)}, {v(S+r)}, {v(TX+1+r)}")
        p(f"s_waitcnt vmcnt({2*(D-2)})")
        read_xb((u + 1) % D)
        p(f"ds_read_u8 {v(VA)}, {v(RDL)} offset:{(u+D)*16}")
        p(f"ds_read_u8 {v(VB)}, {v(RDL)} offset:{(u+D)*16+8}")
        for j in range(4):
            ex(j)
        p(f"v_cvt_pk_bf16_f32 {v(S)}, {v(S)}, {v(S+1)}")
        p(f"v_cvt_pk_bf16_f32 {v(S+1)}, {v(S+2)}, {v(S+3)}")
        for q in range(4):
            ex(4 + 2 * q)
            ex(5 + 2 * q)
            g2(q)
        for q in range(4):
            p(f"ds_read_b64_tr_b16 {v(XT+2*q,2)}, {v(RDT)} offset:{u*SLOT+q*512+(q>>1)*32}")
        for j in range(12, 16):
            ex(j)
        p(f"s_bitcmp1_b64 {s(F,2)}, {u}")
        p(f"s_cbranch_scc1 L{tag}_flush{u}")
        p(f"L{tag}_flushed{u}:")
        p(f"v_mfma_f32_32x32x8_bf16 {v(ZA,16)}, {v(ONE,2)}, {v(ONE,2)}, {v(ZA,16)}")
        p(f"s_bitcmp1_b64 {s(G,2)}, {u+1}")
        p(f"s_cbranch_scc1 L{tag}_wb{u}")
        p(f"L{tag}_wbd{u}:")
        p(f"s_bitcmp1_b64 {s(G,2)}, {u+D}")
        p(f"s_cbranch_scc1 L{tag}_adv{u}")
        p(f"L{tag}_advd{u}:")
        p("s_waitcnt lgkmcnt(4)")
        p(g1(0))
        p(g1(1))
        p("s_waitcnt lgkmcnt(0)")
        dma_tile(u, fill=(g1(2), g1(3)))
        rc(0); rc(1); rc(2); cv(0); p(g1(4))
        rc(3); rc(4); cv(1); p(g1(5))
        rc(5); rc(6); cv(2); p(g1(6))
        rc(7); rc(8); cv(3); p(g1(7))
        rc(9); rc(10); cv(4); sc(0)
        rc(11); rc(12); cv(5)
        rc(13); rc(14); cv(6)
        rc(15)
        if u == D - 1:
            p(f"s_lshr_b64 {s(F,2)}, {s(F,2)}, {D}")
            cv(7)
            p(f"s_lshl_b64 {s(P0,2)}, {s(F+2,2)}, {64-D}")
            p(f"s_or_b64 {s(F,2)}, {s(F,2)}, {s(P0,2)}")
            sc(1)
            p(f"s_lshr_b64 {s(F+2,2)}, {s(F+2,2)}, {D}")
            p(f"s_lshr_b64 {s(G,2)}, {s(G,2)}, {D}")
            p(f"s_lshl_b64 {s(P0,2)}, {s(G+2,2)}, {64-D}")
            p(f"s_or_b64 {s(G,2)}, {s(G,2)}, {s(P0,2)}")
            p(f"s_lshr_b64 {s(G+2,2)}, {s(G+2,2)}, {D}")
            p(f"v_add_u32 {v(RDL)}, {16*D}, {v(RDL)}")
            if slow:
                p(f"v_add_u32 {v(RDM)}, {16*D}, {v(RDM)}")
            p(f"s_branch L{tag}_loop")
        else:
            cv(7)
            sc(1)
    for u in range(D):
        p(f"L{tag}_flush{u}:")
        p(f"v_cvt_pk_bf16_f32 {v(TX)}, {v(ACC)}, {v(ACC)}")
        p(f"v_mov_b32 {v(ACC)}, 0")
        p(f"s_sub_u32 {s(sK)}, {s(sK)}, 1")
        p(f"ds_write_b16 {v(OADR)}, {v(TX)}")
        p(f"s_cbranch_scc1 L_store")
        p(f"v_add_u32 {v(OADR)}, 128, {v(OADR)}")
        if slow:
            p(f"s_add_u32 {s(SM)}, {s(SM)}, {NWAVE*400}")
            p(f"s_addc_u32 {s(SM+1)}, {s(SM+1)}, 0")
        p(f"s_branch L{tag}_flushed{u}")
        p(f"L{tag}_wb{u}:")
        wbuild()
        p(f"s_branch L{tag}_wbd{u}")
        p(f"L{tag}_adv{u}:")
        adv_hist()
        p(f"s_branch L{tag}_advd{u}")


p(f"{NAME}:")
p("s_load_dwordx16 s[4:19], s[0:1], 0")
p(f"s_cmp_ge_u32 s2, {NWG}")
p("s_cbranch_scc1 L_end")
p("v_lshrrev_b32 v1, 6, v0")
p("v_and_b32 v0, 63, v0")
p(f"v_readfirstlane_b32 {s(sw)}, v1")
p("v_lshlrev_b32 v1, 3, v0")
p("v_mov_b32 v2, 0x80000000")
p("v_cmp_gt_u32 vcc, 50, v0")
p(f"s_lshl_b32 {s(sW)}, s2, 3")
p(f"s_add_u32 {s(sW)}, {s(sW)}, {s(sw)}")
p(f"s_mul_i32 {s(sLB)}, {s(sw)}, {REG}")
p("v_cndmask_b32 v1, v2, v1, vcc")
p(f"s_mul_i32 {s(sOFF)}, {s(sW)}, 400")
p("v_lshrrev_b32 v2, 3, v0")
p(f"v_lshlrev_b32 {v(VOUT)}, 18, v2")
p("v_and_b32 v3, 7, v0")
p(f"v_lshl_add_u32 {v(VOUT)}, v3, 4, {v(VOUT)}")
p(f"s_lshl_b32 {s(sT0)}, {s(sW)}, 7")
p(f"v_add_u32 {v(VOUT)}, {s(sT0)}, {v(VOUT)}")
p("s_waitcnt lgkmcnt(0)")
srd(SM, 8, 16384 * 400)
for k in range(KB):
    p(f"buffer_load_dwordx2 {v(MSK+2*k,2)}, v1, {s(SM,4)}, {s(sOFF)} offen {NTM}")
    if k < KB - 1:
        p(f"s_add_u32 {s(sOFF)}, {s(sOFF)}, {NWAVE*400}")
srd(ST, 4, 16384 * 128)
p(f"s_add_u32 m0, {s(sLB)}, {TB}")
srd(SW1, 10, 32768)
p(f"buffer_load_dwordx4 {v(VOUT)}, {s(ST,4)}, 0 offen {NTM} lds")
p("v_bfe_u32 v1, v0, 4, 1")
p(f"v_lshlrev_b32 {v(TX)}, 1, v1")
p(f"v_xor_b32 {v(TX)}, {v(TX)}, v3")
p(f"v_lshlrev_b32 {v(TX)}, 4, {v(TX)}")
p(f"v_lshl_add_u32 {v(TX)}, v2, 7, {v(TX)}")
p(f"s_lshl_b32 {s(sT0)}, {s(sw)}, 12")
p(f"v_add_u32 {v(TX)}, {s(sT0)}, {v(TX)}")
p(f"v_xor_b32 {v(TX+1)}, 64, {v(TX)}")
p(f"s_add_u32 m0, {s(sLB)}, {STG}")
srd(SB1, 12, 128)
for j in range(4):
    p(f"buffer_load_dwordx4 {v(TX+(j&1))}, {s(SW1,4)}, 0 offen offset:{j*1024} lds")
p(f"v_lshlrev_b32 {v(VA+1)}, 2, v1")
p(f"v_xor_b32 {v(VA+1)}, {v(VA+1)}, v3")
p(f"v_lshlrev_b32 {v(VA+1)}, 4, {v(VA+1)}")
p(f"v_mov_b32 {v(VB+1)}, {v(VA+1)}")
p(f"v_lshrrev_b32 v1, 4, v0")
p(f"v_lshlrev_b32 {v(TX+2)}, 3, v1")
srd(SW2, 14, 128)
srd(SB2, 16, 2)
B1R = CA + 16
for hb in range(4):
    p(f"buffer_load_dwordx2 {v(B1R+2*hb,2)}, {v(TX+2)}, {s(SB1,4)}, 0 offen offset:{hb*32}")
for hb in range(4):
    p(f"buffer_load_dwordx2 {v(W2+2*hb,2)}, {v(TX+2)}, {s(SW2,4)}, 0 offen offset:{hb*32}")
p(f"buffer_load_ushort {v(B2)}, off, {s(SB2,4)}, 0")
NAFTER_MASK = 1 + 4 + 4 + 4 + 1
p(f"s_mul_i32 {s(sT0)}, {s(sW)}, 25600")
p(f"s_add_u32 s6, s6, {s(sT0)}")
p("s_addc_u32 s7, s7, 0")
srd(SH, 6, 200, stride=128)
srd(SO, 18, 16384 * 128)
p(f"v_mov_b32 {v(ZB)}, -1")
p(f"v_mov_b32 {v(ZB+1)}, -1")
p(f"v_mov_b32 {v(ZB+2)}, -1")
p(f"v_mov_b32 {v(ZB+3)}, -1")
p(f"s_add_u32 {s(sT0)}, {s(sLB)}, {LI}")
p(f"v_lshl_add_u32 {v(ZB+4)}, v0, 4, {s(sT0)}")
p(f"ds_write_b128 {v(ZB+4)}, {v(ZB,4)}")
p(f"ds_write_b128 {v(ZB+4)}, {v(ZB,4)} offset:1024")
p(f"v_add_u32 {v(RDL)}, {s(sT0)}, v2")
p(f"v_add_u32 {v(RDL)}, 16, {v(RDL)}")
p(f"v_lshl_add_u32 {v(RDM)}, v1, 2, {s(sT0)}")
p(f"v_mul_u32_u24 {v(ZA+4)}, 0x40004, v0")
p(f"v_add_u32 {v(ZA+5)}, 0x30002, {v(ZA+4)}")
p(f"v_add_u32 {v(ZA+4)}, 0x10000, {v(ZA+4)}")
p(f"v_mov_b32 {v(ZA+6)}, 0x3f80")
p(f"s_mov_b32 {s(sTAU)}, 0")
p(f"s_mov_b64 {s(F,2)}, 0")
p(f"s_mov_b64 {s(F+2,2)}, 0")
p(f"s_mov_b64 {s(NB,2)}, 0")
p(f"s_mov_b32 {s(sK)}, {KB-1}")
p(f"s_mov_b32 {s(sC)}, {CNEG:#x}")
n_ = TX + 3
p(f"v_and_b32 {v(n_)}, 15, v0")
p(f"v_lshrrev_b32 {v(TX+4)}, 3, {v(n_)}")
p(f"v_lshlrev_b32 {v(TX+4)}, 5, {v(TX+4)}")
p(f"v_lshl_add_u32 {v(TX+4)}, {v(n_)}, 7, {v(TX+4)}")
p(f"v_add_u32 {v(TX+4)}, {s(sLB)}, {v(TX+4)}")
p(f"v_bfe_u32 {v(TX+5)}, v0, 1, 1")
p(f"v_lshlrev_b32 {v(TX+5)}, 2, {v(TX+5)}")
p(f"v_xor_b32 {v(TX+5)}, {v(TX+5)}, v1")
p(f"v_lshl_add_u32 {v(RDB0)}, {v(TX+5)}, 4, {v(TX+4)}")
p(f"v_xor_b32 {v(TX+5)}, 4, {v(TX+5)}")
p(f"v_lshl_add_u32 {v(RDB1)}, {v(TX+5)}, 4, {v(TX+4)}")
p(f"v_bfe_u32 {v(TX+4)}, v0, 2, 2")
p(f"v_bfe_u32 {v(TX+5)}, v0, 1, 1")
p(f"v_lshl_add_u32 {v(TX+5)}, v1, 1, {v(TX+5)}")
p(f"v_bfe_u32 {v(TX+6)}, v0, 3, 1")
p(f"v_lshlrev_b32 {v(TX+7)}, 2, {v(TX+6)}")
p(f"v_xor_b32 {v(TX+5)}, {v(TX+5)}, {v(TX+7)}")
p(f"v_lshlrev_b32 {v(TX+5)}, 4, {v(TX+5)}")
p(f"v_lshl_add_u32 {v(TX+5)}, {v(TX+4)}, 7, {v(TX+5)}")
p(f"v_and_b32 {v(TX+7)}, 1, v0")
p(f"v_lshl_add_u32 {v(TX+5)}, {v(TX+7)}, 3, {v(TX+5)}")
p(f"v_add_u32 {v(RDT)}, {s(sLB)}, {v(TX+5)}")
p(f"v_and_b32 {v(TX+5)}, 3, v0")
p(f"v_lshl_add_u32 {v(TX+7)}, {v(TX+4)}, 3, {v(TX+5)}")
p(f"s_add_u32 {s(sT0)}, {s(sLB)}, {TB}")
p(f"v_lshl_add_u32 {v(TADR)}, {v(TX+7)}, 1, {s(sT0)}")
p(f"v_lshl_add_u32 {v(OADR)}, v0, 1, {s(sT0)}")
p(f"s_add_u32 {s(sT0)}, {s(sLB)}, {BI}")
p(f"v_lshl_add_u32 {v(BADR)}, v1, 4, {s(sT0)}")
p(f"v_and_b32 {v(TX+7)}, 1, v0")
p(f"v_lshlrev_b32 {v(TX+7)}, 4, {v(TX+7)}")
p(f"v_lshlrev_b32 {v(TX+7)}, {v(TX+7)}, 1")
p(f"v_cmp_eq_u32 vcc, {v(TX+4)}, v1")
p(f"v_cndmask_b32 {v(TX+7)}, 0, {v(TX+7)}, vcc")
p(f"v_cmp_gt_u32 vcc, 2, {v(TX+5)}")
p(f"v_cndmask_b32 {v(SEL0)}, 0, {v(TX+7)}, vcc")
p(f"v_sub_u32 {v(SEL1)}, {v(TX+7)}, {v(SEL0)}")
p("v_cmp_gt_u32 vcc, 32, v0")
p(f"v_cndmask_b32 {v(ONE)}, 0, {v(ZA+6)}, vcc")
p(f"v_mov_b32 {v(ONE+1)}, 0")
p(f"v_lshl_add_u32 {v(TX+5)}, v1, 3, {v(TX+4)}")
p(f"v_lshlrev_b32 {v(TX+5)}, 7, {v(TX+5)}")
p(f"v_and_b32 {v(TX+7)}, 1, v0")
p(f"v_lshl_add_u32 {v(TX+5)}, {v(TX+7)}, 3, {v(TX+5)}")
p(f"v_add_u32 {v(TX+5)}, {STG}, {v(TX+5)}")
p(f"v_and_b32 {v(TX+7)}, 1, v1")
p(f"v_lshlrev_b32 {v(TX+7)}, 1, {v(TX+7)}")
p(f"v_add_u32 {v(TX+7)}, {v(TX+7)}, {v(TX+6)}")
p(f"v_lshlrev_b32 {v(TX+7)}, 1, {v(TX+7)}")
p(f"v_bfe_u32 {v(TX+6)}, v0, 1, 1")
p(f"v_xor_b32 {v(TX+7)}, {v(TX+7)}, {v(TX+6)}")
for hb in range(4):
    p(f"v_xor_b32 {v(TX+6)}, {2*hb}, {v(TX+7)}")
    p(f"v_lshl_add_u32 {v(DG+hb)}, {v(TX+6)}, 4, {v(TX+5)}")
    p(f"v_add_u32 {v(DG+4+hb)}, {4*REG}, {v(DG+hb)}")

p(f"s_waitcnt vmcnt({NAFTER_MASK})")
compact(0)
NE = D - 2


def first_tiles(t0, t1, check):
    for t in range(t0, t1):
        p(f"ds_read_u8 {v(ZB+2*(t-t0))}, {v(RDL)} offset:{t*16}")
        p(f"ds_read_u8 {v(ZB+2*(t-t0)+1)}, {v(RDL)} offset:{t*16+8}")
    for t in range(t0, t1):
        if check and t > 0:
            p(f"s_bitcmp0_b64 {s(G,2)}, {t}")
            p(f"s_cbranch_scc1 L_noadv{t}")
            adv_hist()
            p(f"L_noadv{t}:")
        p(f"s_waitcnt lgkmcnt({2*(t1-t-1)})")
        p(f"v_mov_b32 {v(VA)}, {v(ZB+2*(t-t0))}")
        p(f"v_mov_b32 {v(VB)}, {v(ZB+2*(t-t0)+1)}")
        dma_tile(t)


p(f"s_mov_b32 {s(sEARLY)}, {s(sTAU)}")
p(f"s_cmp_lt_u32 {s(sTAU)}, {NE}")
p("s_cbranch_scc1 L_noearly")
first_tiles(0, NE, False)
p("L_noearly:")
for k in range(1, KB):
    compact(k)
p(f"s_cmp_ge_u32 {s(sEARLY)}, {NE}")
p("s_cbranch_scc1 L_nolate")
first_tiles(0, NE, True)
p("L_nolate:")
p(f"s_waitcnt vmcnt({2*NE})")
p("s_barrier")
for mat, dst in ((1, RB), (2, RC), (0, RA), (3, RD)):
    for hb in range(4):
        for ks in range(2):
            for u in range(2):
                reg = 2 * mat + ks
                blk = (hb * 2 + ks) * 2 + u
                p(f"ds_read_b64_tr_b16 {v(dst+2*blk,2)}, {v(DG+hb+(4 if reg >= 4 else 0))} offset:{(reg&3)*REG+u*512}")
TP, TN = CA + 24, CA + 32
p(f"v_and_b32 {v(TX)}, 7, v0")
p(f"v_lshlrev_b32 {v(TX)}, 7, {v(TX)}")
p(f"v_lshl_add_u32 {v(TX)}, v1, 4, {v(TX)}")
p(f"s_add_u32 {s(sT0)}, {s(sLB)}, {TB}")
p(f"v_add_u32 {v(TX)}, {s(sT0)}, {v(TX)}")
p(f"ds_read_b128 {v(TP,4)}, {v(TX)}")
p(f"ds_read_b128 {v(TP+4,4)}, {v(TX)} offset:64")
for x in range(4):
    p(f"ds_read_u16 {v(TR+x)}, {v(TADR)} offset:{(x>>1)*64+(x&1)*8}")
for hb in range(4):
    for j in range(2):
        p(f"v_lshlrev_b32 {v(CA+4*hb+2*j)}, 16, {v(B1R+2*hb+j)}")
        p(f"v_and_b32 {v(CA+4*hb+2*j+1)}, 0xffff0000, {v(B1R+2*hb+j)}")
p(f"v_lshlrev_b32 {v(B2)}, 16, {v(B2)}")
for r in range(1, 4):
    p(f"v_mov_b32 {v(B2+r)}, {v(B2)}")
p("s_waitcnt lgkmcnt(0)")
p("s_barrier")
for t in range(NE, D):
    p(f"ds_read_u8 {v(TX+2*(t-NE))}, {v(RDL)} offset:{t*16}")
    p(f"ds_read_u8 {v(TX+2*(t-NE)+1)}, {v(RDL)} offset:{t*16+8}")
for j in range(8):
    p(f"v_xor_b32 {v(TN+j)}, 0x80008000, {v(TP+j)}")
for t in range(NE, D):
    p(f"s_bitcmp0_b64 {s(G,2)}, {t}")
    p(f"s_cbranch_scc1 L_noadvb{t}")
    adv_hist()
    p(f"L_noadvb{t}:")
    p(f"s_waitcnt lgkmcnt({2*(D-t-1)})")
    p(f"v_mov_b32 {v(VA)}, {v(TX+2*(t-NE))}")
    p(f"v_mov_b32 {v(VB)}, {v(TX+2*(t-NE)+1)}")
    dma_tile(t)
for ks in range(2):
    for (src, tt) in ((RB, TP), (RC, TN)):
        for hb in range(4):
            p(f"v_mfma_f32_16x16x32_bf16 {v(CA+4*hb,4)}, {v(src+(hb*2+ks)*4,4)}, {v(tt+4*ks,4)}, {v(CA+4*hb,4)}")
p(f"v_mul_u32_u24 {v(DG)}, 0x3f80, {v(SEL0)}")
p(f"v_mul_u32_u24 {v(DG+1)}, 0x3f80, {v(SEL1)}")
p(f"v_and_b32 {v(TX)}, 15, v0")
p(f"v_cmp_gt_u32 vcc, 8, {v(TX)}")
p(f"v_lshl_add_u32 {v(TX)}, {v(TX)}, 8, {v(BADR)}")
for j in range(16):
    p(f"v_mul_f32 {v(CA+j)}, {s(sC)}, {v(CA+j)}")
p("s_mov_b64 exec, vcc")
for hb in range(4):
    p(f"ds_write_b128 {v(TX)}, {v(CA+4*hb,4)} offset:{hb*64}")
p("s_mov_b64 exec, -1")
p("s_waitcnt lgkmcnt(0)")
for blk in range(16):
    p(f"v_mfma_f32_16x16x16_bf16 {v(CA+4*blk,4)}, {v(DG,2)}, {v(RA+2*blk,2)}, 0")
    p(f"v_mfma_f32_16x16x16_bf16 {v(CA+4*blk,4)}, {v(DG,2)}, {v(RC+2*blk,2)}, {v(CA+4*blk,4)}")
for half in range(2):
    for b8 in range(8):
        blk = half * 8 + b8
        p(f"v_mfma_f32_16x16x16_bf16 {v(RB+4*b8,4)}, {v(DG,2)}, {v(RD+2*blk,2)}, 0")
    for j in range(32):
        p(f"v_mul_f32 {v(CA+32*half+j)}, {s(sC)}, {v(CA+32*half+j)}")
    for j in range(32):
        p(f"v_mul_f32 {v(RB+j)}, {s(sC)}, {v(RB+j)}")
    for j in range(16):
        p(f"v_cvt_pk_bf16_f32 {v(CD+16*half+j)}, {v(RB+2*j)}, {v(RB+2*j+1)}")
wbuild()
for j in range(8):
    p(f"v_mov_b32 {v(XT+j)}, 0")
for j in range(4):
    p(f"v_mov_b32 {v(S+j)}, 0")
    p(f"v_mov_b32 {v(ACC+j)}, 0")
p(f"s_waitcnt vmcnt({2*(D-1)})")
read_xb(0)
p("s_waitcnt lgkmcnt(0)")
for j in range(8):
    p(g1(j))
p(f"s_cmp_lg_u64 {s(NB,2)}, 0")
p("s_cbranch_scc1 L_slow")
mainloop("f", False)
p("L_slow:")
p(f"s_mul_i32 {s(sT0)}, {s(sW)}, 400")
p(f"s_add_u32 s8, s8, {s(sT0)}")
p("s_addc_u32 s9, s9, 0")
srd(SM, 8, 400)
mainloop("s", True)
p("L_store:")
p(f"s_add_u32 {s(sT0)}, {s(sLB)}, {TB}")
p(f"v_lshl_add_u32 v1, v0, 4, {s(sT0)}")
p("s_waitcnt lgkmcnt(0)")
p(f"ds_read_b128 {v(ZB,4)}, v1")
p("s_waitcnt lgkmcnt(0)")
if opt.get("perturb"):
    import struct
    dl = struct.unpack("<I", struct.pack("<f", opt["perturb"] / 1000.0))[0]
    p(f"v_lshlrev_b32 v1, 16, {v(ZB)}")
    p(f"v_and_b32 v2, 0xffff0000, {v(ZB)}")
    p(f"v_add_f32 v1, {dl:#x}, v1")
    p(f"v_cvt_pk_bf16_f32 v1, v1, v2")
    p(f"v_cmp_eq_u32 vcc, 0, {v(VOUT)}")
    p(f"v_cndmask_b32 {v(ZB)}, {v(ZB)}, v1, vcc")
p(f"buffer_store_dwordx4 {v(ZB,4)}, {v(VOUT)}, {s(SO,4)}, 0 offen {NTO}")
p("L_end:")
p("s_endpgm")

nn = p.fix_hazards(verbose=opt["verbose"])
hdr = open(__file__.rsplit("/", 1)[0] + "/../standalone__sequential_behavior_din__recsys.s.ref").read().split("\n")
head = [l for l in hdr if l.startswith(";") and "@launch" not in l and "Override" not in l and "grid=ceil" not in l]
out = "\n".join(head) + f"""
; @launch grid=({NWG},1,1) block=({WPB*64},1,1) lds={WPB*REG}
; generated by gen/gen.py {' '.join(sys.argv[1:])}
.amdgcn_target "amdgcn-amd-amdhsa--gfx950"
.text
.globl {NAME}
.p2align 8
.type {NAME},@function
""" + p.text() + f""".section .rodata,"a"
.p2align 6
.amdhsa_kernel {NAME}
  .amdhsa_next_free_vgpr 256
  .amdhsa_next_free_sgpr 102
  .amdhsa_accum_offset 256
  .amdhsa_group_segment_fixed_size 0
  .amdhsa_kernarg_size 80
  .amdhsa_user_sgpr_count 2
  .amdhsa_user_sgpr_kernarg_segment_ptr 1
  .amdhsa_system_sgpr_workgroup_id_x 1
.end_amdhsa_kernel
"""
sys.stdout.write(out)
```

```python
import sys
from asmlib import Prog

opt = dict(D=7, nt="nt", ntm="nt", nto="", verbose=0)
for a in sys.argv[1:]:
    k, v = a.split("=", 1)
    opt[k] = int(v) if v.lstrip("-").isdigit() else v.replace("+", " ")
D = opt["D"]
NT, NTM, NTO = opt["nt"], opt["ntm"], opt["nto"]

NAME = "standalone__sequential_behavior_din__recsys_kernel"
NWG, WPB = 256, 8
NWAVE = NWG * WPB
KB = 16384 // NWAVE
REG = 20480
SLOT = 2080
TB = D * SLOT
BI = TB + 1024
LI = BI + 2048
assert LI + 2048 <= REG
STG = (D - 2) * SLOT
CNEG = 0xBFB8AA3B

CA, CD, W, ZA, ZB, BIAS, XB, XT, W2, B2, S, ACC, DG, TR, ONE, VA, VB = \
    4, 68, 100, 132, 148, 164, 180, 188, 196, 204, 208, 212, 216, 224, 228, 230, 232
RDB0, RDB1, RDT, RDL, TADR, BADR, OADR, SEL0, SEL1, VOUT, RDM = range(234, 245)
TX = 246
RA, RB, RC, RD = W, BIAS, ZA, CD
MSK = W
SH, SM, ST, SW1, SB1, SW2, SB2, SO = 20, 24, 28, 32, 36, 40, 44, 48
sLB, sW, sw = 52, 53, 54
F, G = 56, 60
sTAU, sK, sT0, sT1 = 64, 65, 66, 67
A0, E0 = 68, 76
NB, P0, P1, P2 = 84, 86, 88, 90
sC, sOFF, sEARLY = 92, 93, 94


def v(a, n=1):
    return f"v{a}" if n == 1 else f"v[{a}:{a+n-1}]"


def s(a, n=1):
    return f"s{a}" if n == 1 else f"s[{a}:{a+n-1}]"


p = Prog()


STAMP = opt.get("stamp", 0)
nstamp = [0]


def stamp(cyc=None):
    if not STAMP:
        return
    p("s_memrealtime s[96:97]")
    p("s_waitcnt lgkmcnt(0)")
    p(f"v_writelane_b32 v254, s96, {nstamp[0]}")
    nstamp[0] += 1
    if cyc is not None:
        p("s_memtime s[96:97]")
        p("s_waitcnt lgkmcnt(0)")
        p(f"v_writelane_b32 v254, s96, {cyc}")


def srd(dst, ptr, nrec, stride=0):
    p(f"s_mov_b32 {s(dst)}, {s(ptr)}")
    p(f"s_and_b32 {s(dst+1)}, {s(ptr+1)}, 0xffff")
    if stride:
        p(f"s_or_b32 {s(dst+1)}, {s(dst+1)}, {stride << 16:#x}")
    p(f"s_mov_b32 {s(dst+2)}, {nrec}")
    p(f"s_mov_b32 {s(dst+3)}, 0x20000")


def dma_tile(slot, fill=()):
    fill = list(fill) + [None, None]
    p(f"s_add_u32 m0, {s(sLB)}, {slot*SLOT}")
    if fill[0]:
        p(fill[0])
    p(f"buffer_load_dwordx4 {v(VA,2)}, {s(SH,4)}, 0 idxen offen {NT} lds")
    p(f"s_add_u32 m0, {s(sLB)}, {slot*SLOT+1056}")
    if fill[1]:
        p(fill[1])
    p(f"buffer_load_dwordx4 {v(VB,2)}, {s(SH,4)}, 0 idxen offen {NT} lds")


def adv_hist():
    p(f"s_add_u32 {s(SH)}, {s(SH)}, {NWAVE*25600}")
    p(f"s_addc_u32 {s(SH+1)}, {s(SH+1)}, 0")


def compact(k):
    m0, m1 = MSK + 2 * k, MSK + 2 * k + 1
    R = ZA
    for e in range(4):
        p(f"v_cmp_neq_f16_sdwa {s(A0+2*e,2)}, {v((m0,m1)[e>>1])}, 0 src0_sel:WORD_{e&1} src1_sel:WORD_0")
    p(f"s_lshl_b32 {s(sT0)}, {s(sTAU)}, 4")
    p(f"s_add_u32 {s(sT0)}, {s(sT0)}, {s(sLB)}")
    p(f"s_add_u32 {s(sT0)}, {s(sT0)}, {LI+16}")
    p(f"v_mov_b32 {v(R)}, {s(sT0)}")
    for e in range(4):
        p(f"v_mbcnt_lo_u32_b32 {v(R)}, {s(A0+2*e)}, {v(R)}")
        p(f"v_mbcnt_hi_u32_b32 {v(R)}, {s(A0+2*e+1)}, {v(R)}")
    for e in range(3):
        p(f"v_addc_co_u32 {v(R+e+1)}, vcc, 0, {v(R+e)}, {s(A0+2*e,2)}")
    for e in range(4):
        p(f"s_mov_b64 exec, {s(A0+2*e,2)}")
        p(f"ds_write_b8{'_d16_hi' if e&1 else ''} {v(R+e)}, {v(ZA+4+(e>>1))}")
    p("s_mov_b64 exec, -1")
    for e in range(4):
        p(f"v_cmp_eq_u16_sdwa {s(E0+2*e,2)}, {v((m0,m1)[e>>1])}, {v(ZA+6)} src0_sel:WORD_{e&1} src1_sel:WORD_0")
    p(f"s_bcnt1_i32_b64 {s(sT0)}, {s(A0,2)}")
    for e in range(1, 4):
        p(f"s_bcnt1_i32_b64 {s(sT1)}, {s(A0+2*e,2)}")
        p(f"s_add_u32 {s(sT0)}, {s(sT0)}, {s(sT1)}")
    p(f"s_add_u32 {s(sT0)}, {s(sT0)}, 15")
    p(f"s_lshr_b32 {s(sT0)}, {s(sT0)}, 4")
    p(f"s_max_u32 {s(sT0)}, {s(sT0)}, 1")
    p(f"s_add_u32 {s(sTAU)}, {s(sTAU)}, {s(sT0)}")
    if k == KB - 1:
        p(f"s_mov_b64 {s(G,2)}, {s(F,2)}")
        p(f"s_mov_b64 {s(G+2,2)}, {s(F+2,2)}")
    p(f"s_lshl_b64 {s(P0,2)}, 1, {s(sTAU)}")
    p(f"s_cmp_lt_u32 {s(sTAU)}, 64")
    p(f"s_cselect_b64 {s(P1,2)}, {s(P0,2)}, 0")
    p(f"s_cselect_b64 {s(P2,2)}, 0, {s(P0,2)}")
    p(f"s_or_b64 {s(F,2)}, {s(F,2)}, {s(P1,2)}")
    p(f"s_or_b64 {s(F+2,2)}, {s(F+2,2)}, {s(P2,2)}")
    for e in range(4):
        p(f"s_andn2_b64 {s(P0,2)}, {s(A0+2*e,2)}, {s(E0+2*e,2)}")
        p(f"s_or_b64 {s(NB,2)}, {s(NB,2)}, {s(P0,2)}")


def wbuild():
    for x in range(4):
        p(f"v_mul_u32_u24 {v(DG+2*x)}, {v(TR+x)}, {v(SEL0)}")
        p(f"v_mul_u32_u24 {v(DG+2*x+1)}, {v(TR+x)}, {v(SEL1)}")
    T = [ZB, ZB + 8, TX]
    pairs = [(hb, ks) for hb in range(4) for ks in range(2)]

    def mm(j):
        hb, ks = pairs[j]
        for u in range(2):
            blk = (hb * 2 + ks) * 2 + u
            p(f"v_mfma_f32_16x16x16_bf16 {v(T[j%3]+4*u,4)}, {v(DG+2*(2*ks+u),2)}, {v(CD+2*blk,2)}, {v(CA+4*blk,4)}")

    def cv(j):
        hb, ks = pairs[j]
        for r in range(4):
            p(f"v_cvt_pk_bf16_f32 {v(W+(hb*2+ks)*4+r)}, {v(T[j%3]+2*r)}, {v(T[j%3]+2*r+1)}")
    p(f"v_add_u32 {v(TADR)}, 128, {v(TADR)}")
    p(f"ds_read_b128 {v(BIAS,4)}, {v(BADR)}")
    mm(0)
    for hb in range(1, 4):
        p(f"ds_read_b128 {v(BIAS+4*hb,4)}, {v(BADR)} offset:{hb*64}")
    mm(1)
    for x in range(4):
        p(f"ds_read_u16 {v(TR+x)}, {v(TADR)} offset:{(x>>1)*64+(x&1)*8}")
    mm(2)
    p(f"v_add_u32 {v(BADR)}, 256, {v(BADR)}")
    for j in range(8):
        cv(j)
        if j + 3 < 8:
            mm(j + 3)
    p("s_waitcnt lgkmcnt(0)")


def g1(j):
    hb, ks = j >> 1, j & 1
    c = v(BIAS + 4 * hb, 4) if ks == 0 else v(ZB + 4 * hb, 4)
    return f"v_mfma_f32_16x16x32_bf16 {v(ZB+4*hb,4)}, {v(W+(hb*2+ks)*4,4)}, {v(XB+4*ks,4)}, {c}"


def read_xb(slot):
    p(f"ds_read_b128 {v(XB,4)}, {v(RDB0)} offset:{slot*SLOT}")
    p(f"ds_read_b128 {v(XB+4,4)}, {v(RDB1)} offset:{slot*SLOT}")


def mainloop(tag, slow):
    ool = []
    p(f"L{tag}_loop:")
    for u in range(D):
        ex = lambda j: p(f"v_exp_f32 {v(ZA+j)}, {v(ZB+j)}")
        rc = lambda j: p(f"v_rcp_f32 {v(ZA+j)}, {v(ZA+j)}")
        cv = lambda j: p(f"v_cvt_pk_bf16_f32 {v(ZA+j)}, {v(ZA+2*j)}, {v(ZA+2*j+1)}")
        g2 = lambda q: p(f"v_mfma_f32_4x4x4_16b_bf16 {v(ACC,4)}, {v(S,2)}, {v(XT+2*q,2)}, {v(ACC,4)} cbsz:4 abid:{4*q}")
        sc = lambda q: p(f"v_mfma_f32_16x16x32_bf16 {v(S,4)}, {v(ZA+4*q,4)}, {v(W2+4*q,4)}, {v(B2,4) if q == 0 else v(S,4)}")
        if slow:
            p(f"ds_read_b32 {v(TX)}, {v(RDM)} offset:{u*16}")
            p("s_waitcnt lgkmcnt(0)")
            for r in range(4):
                p(f"v_bfe_u32 {v(TX+1+r)}, {v(TX)}, {8*r}, 8")
                p(f"v_lshlrev_b32 {v(TX+1+r)}, 1, {v(TX+1+r)}")
            for r in range(4):
                p(f"buffer_load_ushort {v(TX+1+r)}, {v(TX+1+r)}, {s(SM,4)}, 0 offen")
            p("s_waitcnt vmcnt(0)")
            for r in range(4):
                p(f"v_lshlrev_b32 {v(TX+1+r)}, 16, {v(TX+1+r)}")
                p(f"v_mul_f32 {v(S+r)}, {v(S+r)}, {v(TX+1+r)}")
        p(f"s_waitcnt vmcnt({2*(D-2)})")
        read_xb((u + 1) % D)
        p(f"ds_read_u8 {v(VA)}, {v(RDL)} offset:{(u+D)*16}")
        p(f"ds_read_u8 {v(VB)}, {v(RDL)} offset:{(u+D)*16+8}")
        for j in range(4):
            ex(j)
        p(f"v_cvt_pk_bf16_f32 {v(S)}, {v(S)}, {v(S+1)}")
        p(f"v_cvt_pk_bf16_f32 {v(S+1)}, {v(S+2)}, {v(S+3)}")
        for q in range(4):
            ex(4 + 2 * q)
            ex(5 + 2 * q)
            g2(q)
        for q in range(4):
            p(f"ds_read_b64_tr_b16 {v(XT+2*q,2)}, {v(RDT)} offset:{u*SLOT+q*512+(q>>1)*32}")
        for j in range(12, 16):
            ex(j)
        p(f"s_bitcmp1_b64 {s(F,2)}, {u}")
        p(f"s_cbranch_scc1 L{tag}_flush{u}")
        p(f"L{tag}_flushed{u}:")
        p(f"v_mfma_f32_32x32x8_bf16 {v(ZA,16)}, {v(ONE,2)}, {v(ONE,2)}, {v(ZA,16)}")
        p(f"s_bitcmp1_b64 {s(G,2)}, {u+1}")
        p(f"s_cbranch_scc1 L{tag}_wb{u}")
        p(f"L{tag}_wbd{u}:")
        p(f"s_bitcmp1_b64 {s(G,2)}, {u+D}")
        p(f"s_cbranch_scc1 L{tag}_adv{u}")
        p(f"L{tag}_advd{u}:")
        p("s_waitcnt lgkmcnt(4)")
        p(g1(0))
        p(g1(1))
        p("s_waitcnt lgkmcnt(0)")
        dma_tile(u, fill=(g1(2), g1(3)))
        rc(0); rc(1); rc(2); cv(0); p(g1(4))
        rc(3); rc(4); cv(1); p(g1(5))
        rc(5); rc(6); cv(2); p(g1(6))
        rc(7); rc(8); cv(3); p(g1(7))
        rc(9); rc(10); cv(4); sc(0)
        rc(11); rc(12); cv(5)
        rc(13); rc(14); cv(6)
        rc(15)
        if u == D - 1:
            p(f"s_lshr_b64 {s(F,2)}, {s(F,2)}, {D}")
            cv(7)
            p(f"s_lshl_b64 {s(P0,2)}, {s(F+2,2)}, {64-D}")
            p(f"s_or_b64 {s(F,2)}, {s(F,2)}, {s(P0,2)}")
            sc(1)
            p(f"s_lshr_b64 {s(F+2,2)}, {s(F+2,2)}, {D}")
            p(f"s_lshr_b64 {s(G,2)}, {s(G,2)}, {D}")
            p(f"s_lshl_b64 {s(P0,2)}, {s(G+2,2)}, {64-D}")
            p(f"s_or_b64 {s(G,2)}, {s(G,2)}, {s(P0,2)}")
            p(f"s_lshr_b64 {s(G+2,2)}, {s(G+2,2)}, {D}")
            p(f"v_add_u32 {v(RDL)}, {16*D}, {v(RDL)}")
            if slow:
                p(f"v_add_u32 {v(RDM)}, {16*D}, {v(RDM)}")
            p(f"s_branch L{tag}_loop")
        else:
            cv(7)
            sc(1)
    for u in range(D):
        p(f"L{tag}_flush{u}:")
        p(f"v_cvt_pk_bf16_f32 {v(TX)}, {v(ACC)}, {v(ACC)}")
        p(f"v_mov_b32 {v(ACC)}, 0")
        if STAMP:
            p("s_memrealtime s[96:97]")
            p("s_memtime s[98:99]")
            p(f"s_lshl_b32 {s(sT0)}, {s(sK)}, 1")
            p(f"s_sub_u32 {s(sT0)}, {16+2*(KB-1)}, {s(sT0)}")
            p("s_waitcnt lgkmcnt(0)")
            p(f"s_mov_b32 m0, {s(sT0)}")
            p("v_writelane_b32 v254, s96, m0")
            p(f"s_add_u32 m0, m0, 1")
            p("v_writelane_b32 v254, s98, m0")
        p(f"s_sub_u32 {s(sK)}, {s(sK)}, 1")
        p(f"ds_write_b16 {v(OADR)}, {v(TX)}")
        p(f"s_cbranch_scc1 L_store")
        p(f"v_add_u32 {v(OADR)}, 128, {v(OADR)}")
        if slow:
            p(f"s_add_u32 {s(SM)}, {s(SM)}, {NWAVE*400}")
            p(f"s_addc_u32 {s(SM+1)}, {s(SM+1)}, 0")
        p(f"s_branch L{tag}_flushed{u}")
        p(f"L{tag}_wb{u}:")
        wbuild()
        p(f"s_branch L{tag}_wbd{u}")
        p(f"L{tag}_adv{u}:")
        adv_hist()
        p(f"s_branch L{tag}_advd{u}")


p(f"{NAME}:")
if STAMP:
    p("s_memrealtime s[98:99]")
    p("s_memtime s[96:97]")
    p("s_load_dwordx2 s[100:101], s[0:1], 72")
p("s_load_dwordx16 s[4:19], s[0:1], 0")
p(f"s_cmp_ge_u32 s2, {NWG}")
p("s_cbranch_scc1 L_end")
p("v_lshrrev_b32 v1, 6, v0")
p("v_and_b32 v0, 63, v0")
p(f"v_readfirstlane_b32 {s(sw)}, v1")
p("v_lshlrev_b32 v1, 3, v0")
p("v_mov_b32 v2, 0x80000000")
p("v_cmp_gt_u32 vcc, 50, v0")
p(f"s_lshl_b32 {s(sW)}, s2, 3")
p(f"s_add_u32 {s(sW)}, {s(sW)}, {s(sw)}")
p(f"s_mul_i32 {s(sLB)}, {s(sw)}, {REG}")
p("v_cndmask_b32 v1, v2, v1, vcc")
p(f"s_mul_i32 {s(sOFF)}, {s(sW)}, 400")
p("v_lshrrev_b32 v2, 3, v0")
p(f"v_lshlrev_b32 {v(VOUT)}, 18, v2")
p("v_and_b32 v3, 7, v0")
p(f"v_lshl_add_u32 {v(VOUT)}, v3, 4, {v(VOUT)}")
p(f"s_lshl_b32 {s(sT0)}, {s(sW)}, 7")
p(f"v_add_u32 {v(VOUT)}, {s(sT0)}, {v(VOUT)}")
p("s_waitcnt lgkmcnt(0)")
if STAMP:
    p("v_mov_b32 v254, 0")
    p("v_writelane_b32 v254, s98, 0")
    p("v_writelane_b32 v254, s96, 32")
    nstamp[0] = 1
stamp()
srd(SM, 8, 16384 * 400)
for k in range(KB):
    p(f"buffer_load_dwordx2 {v(MSK+2*k,2)}, v1, {s(SM,4)}, {s(sOFF)} offen {NTM}")
    if k < KB - 1:
        p(f"s_add_u32 {s(sOFF)}, {s(sOFF)}, {NWAVE*400}")
srd(ST, 4, 16384 * 128)
p(f"s_add_u32 m0, {s(sLB)}, {TB}")
srd(SW1, 10, 32768)
p(f"buffer_load_dwordx4 {v(VOUT)}, {s(ST,4)}, 0 offen {NTM} lds")
p("v_bfe_u32 v1, v0, 4, 1")
p(f"v_lshlrev_b32 {v(TX)}, 1, v1")
p(f"v_xor_b32 {v(TX)}, {v(TX)}, v3")
p(f"v_lshlrev_b32 {v(TX)}, 4, {v(TX)}")
p(f"v_lshl_add_u32 {v(TX)}, v2, 7, {v(TX)}")
p(f"s_lshl_b32 {s(sT0)}, {s(sw)}, 12")
p(f"v_add_u32 {v(TX)}, {s(sT0)}, {v(TX)}")
p(f"v_xor_b32 {v(TX+1)}, 64, {v(TX)}")
p(f"s_add_u32 m0, {s(sLB)}, {STG}")
srd(SB1, 12, 128)
for j in range(4):
    p(f"buffer_load_dwordx4 {v(TX+(j&1))}, {s(SW1,4)}, 0 offen offset:{j*1024} lds")
p(f"v_lshlrev_b32 {v(VA+1)}, 2, v1")
p(f"v_xor_b32 {v(VA+1)}, {v(VA+1)}, v3")
p(f"v_lshlrev_b32 {v(VA+1)}, 4, {v(VA+1)}")
p(f"v_mov_b32 {v(VB+1)}, {v(VA+1)}")
p(f"v_lshrrev_b32 v1, 4, v0")
p(f"v_lshlrev_b32 {v(TX+2)}, 3, v1")
srd(SW2, 14, 128)
srd(SB2, 16, 2)
B1R = CA + 16
for hb in range(4):
    p(f"buffer_load_dwordx2 {v(B1R+2*hb,2)}, {v(TX+2)}, {s(SB1,4)}, 0 offen offset:{hb*32}")
for hb in range(4):
    p(f"buffer_load_dwordx2 {v(W2+2*hb,2)}, {v(TX+2)}, {s(SW2,4)}, 0 offen offset:{hb*32}")
p(f"buffer_load_ushort {v(B2)}, off, {s(SB2,4)}, 0")
NAFTER_MASK = 1 + 4 + 4 + 4 + 1
p(f"s_mul_i32 {s(sT0)}, {s(sW)}, 25600")
p(f"s_add_u32 s6, s6, {s(sT0)}")
p("s_addc_u32 s7, s7, 0")
srd(SH, 6, 200, stride=128)
srd(SO, 18, 16384 * 128)
p(f"v_mov_b32 {v(ZB)}, -1")
p(f"v_mov_b32 {v(ZB+1)}, -1")
p(f"v_mov_b32 {v(ZB+2)}, -1")
p(f"v_mov_b32 {v(ZB+3)}, -1")
p(f"s_add_u32 {s(sT0)}, {s(sLB)}, {LI}")
p(f"v_lshl_add_u32 {v(ZB+4)}, v0, 4, {s(sT0)}")
p(f"ds_write_b128 {v(ZB+4)}, {v(ZB,4)}")
p(f"ds_write_b128 {v(ZB+4)}, {v(ZB,4)} offset:1024")
p(f"v_add_u32 {v(RDL)}, {s(sT0)}, v2")
p(f"v_add_u32 {v(RDL)}, 16, {v(RDL)}")
p(f"v_lshl_add_u32 {v(RDM)}, v1, 2, {s(sT0)}")
p(f"v_mul_u32_u24 {v(ZA+4)}, 0x40004, v0")
p(f"v_add_u32 {v(ZA+5)}, 0x30002, {v(ZA+4)}")
p(f"v_add_u32 {v(ZA+4)}, 0x10000, {v(ZA+4)}")
p(f"v_mov_b32 {v(ZA+6)}, 0x3f80")
p(f"s_mov_b32 {s(sTAU)}, 0")
p(f"s_mov_b64 {s(F,2)}, 0")
p(f"s_mov_b64 {s(F+2,2)}, 0")
p(f"s_mov_b64 {s(NB,2)}, 0")
p(f"s_mov_b32 {s(sK)}, {KB-1}")
p(f"s_mov_b32 {s(sC)}, {CNEG:#x}")
n_ = TX + 3
p(f"v_and_b32 {v(n_)}, 15, v0")
p(f"v_lshrrev_b32 {v(TX+4)}, 3, {v(n_)}")
p(f"v_lshlrev_b32 {v(TX+4)}, 5, {v(TX+4)}")
p(f"v_lshl_add_u32 {v(TX+4)}, {v(n_)}, 7, {v(TX+4)}")
p(f"v_add_u32 {v(TX+4)}, {s(sLB)}, {v(TX+4)}")
p(f"v_bfe_u32 {v(TX+5)}, v0, 1, 1")
p(f"v_lshlrev_b32 {v(TX+5)}, 2, {v(TX+5)}")
p(f"v_xor_b32 {v(TX+5)}, {v(TX+5)}, v1")
p(f"v_lshl_add_u32 {v(RDB0)}, {v(TX+5)}, 4, {v(TX+4)}")
p(f"v_xor_b32 {v(TX+5)}, 4, {v(TX+5)}")
p(f"v_lshl_add_u32 {v(RDB1)}, {v(TX+5)}, 4, {v(TX+4)}")
p(f"v_bfe_u32 {v(TX+4)}, v0, 2, 2")
p(f"v_bfe_u32 {v(TX+5)}, v0, 1, 1")
p(f"v_lshl_add_u32 {v(TX+5)}, v1, 1, {v(TX+5)}")
p(f"v_bfe_u32 {v(TX+6)}, v0, 3, 1")
p(f"v_lshlrev_b32 {v(TX+7)}, 2, {v(TX+6)}")
p(f"v_xor_b32 {v(TX+5)}, {v(TX+5)}, {v(TX+7)}")
p(f"v_lshlrev_b32 {v(TX+5)}, 4, {v(TX+5)}")
p(f"v_lshl_add_u32 {v(TX+5)}, {v(TX+4)}, 7, {v(TX+5)}")
p(f"v_and_b32 {v(TX+7)}, 1, v0")
p(f"v_lshl_add_u32 {v(TX+5)}, {v(TX+7)}, 3, {v(TX+5)}")
p(f"v_add_u32 {v(RDT)}, {s(sLB)}, {v(TX+5)}")
p(f"v_and_b32 {v(TX+5)}, 3, v0")
p(f"v_lshl_add_u32 {v(TX+7)}, {v(TX+4)}, 3, {v(TX+5)}")
p(f"s_add_u32 {s(sT0)}, {s(sLB)}, {TB}")
p(f"v_lshl_add_u32 {v(TADR)}, {v(TX+7)}, 1, {s(sT0)}")
p(f"v_lshl_add_u32 {v(OADR)}, v0, 1, {s(sT0)}")
p(f"s_add_u32 {s(sT0)}, {s(sLB)}, {BI}")
p(f"v_lshl_add_u32 {v(BADR)}, v1, 4, {s(sT0)}")
p(f"v_and_b32 {v(TX+7)}, 1, v0")
p(f"v_lshlrev_b32 {v(TX+7)}, 4, {v(TX+7)}")
p(f"v_lshlrev_b32 {v(TX+7)}, {v(TX+7)}, 1")
p(f"v_cmp_eq_u32 vcc, {v(TX+4)}, v1")
p(f"v_cndmask_b32 {v(TX+7)}, 0, {v(TX+7)}, vcc")
p(f"v_cmp_gt_u32 vcc, 2, {v(TX+5)}")
p(f"v_cndmask_b32 {v(SEL0)}, 0, {v(TX+7)}, vcc")
p(f"v_sub_u32 {v(SEL1)}, {v(TX+7)}, {v(SEL0)}")
p("v_cmp_gt_u32 vcc, 32, v0")
p(f"v_cndmask_b32 {v(ONE)}, 0, {v(ZA+6)}, vcc")
p(f"v_mov_b32 {v(ONE+1)}, 0")
p(f"v_lshl_add_u32 {v(TX+5)}, v1, 3, {v(TX+4)}")
p(f"v_lshlrev_b32 {v(TX+5)}, 7, {v(TX+5)}")
p(f"v_and_b32 {v(TX+7)}, 1, v0")
p(f"v_lshl_add_u32 {v(TX+5)}, {v(TX+7)}, 3, {v(TX+5)}")
p(f"v_add_u32 {v(TX+5)}, {STG}, {v(TX+5)}")
p(f"v_and_b32 {v(TX+7)}, 1, v1")
p(f"v_lshlrev_b32 {v(TX+7)}, 1, {v(TX+7)}")
p(f"v_add_u32 {v(TX+7)}, {v(TX+7)}, {v(TX+6)}")
p(f"v_lshlrev_b32 {v(TX+7)}, 1, {v(TX+7)}")
p(f"v_bfe_u32 {v(TX+6)}, v0, 1, 1")
p(f"v_xor_b32 {v(TX+7)}, {v(TX+7)}, {v(TX+6)}")
for hb in range(4):
    p(f"v_xor_b32 {v(TX+6)}, {2*hb}, {v(TX+7)}")
    p(f"v_lshl_add_u32 {v(DG+hb)}, {v(TX+6)}, 4, {v(TX+5)}")
    p(f"v_add_u32 {v(DG+4+hb)}, {4*REG}, {v(DG+hb)}")

stamp()
p(f"s_waitcnt vmcnt({NAFTER_MASK})")
stamp()
compact(0)
NE = D - 2


def first_tiles(t0, t1, check):
    for t in range(t0, t1):
        p(f"ds_read_u8 {v(ZB+2*(t-t0))}, {v(RDL)} offset:{t*16}")
        p(f"ds_read_u8 {v(ZB+2*(t-t0)+1)}, {v(RDL)} offset:{t*16+8}")
    for t in range(t0, t1):
        if check and t > 0:
            p(f"s_bitcmp0_b64 {s(G,2)}, {t}")
            p(f"s_cbranch_scc1 L_noadv{t}")
            adv_hist()
            p(f"L_noadv{t}:")
        p(f"s_waitcnt lgkmcnt({2*(t1-t-1)})")
        p(f"v_mov_b32 {v(VA)}, {v(ZB+2*(t-t0))}")
        p(f"v_mov_b32 {v(VB)}, {v(ZB+2*(t-t0)+1)}")
        dma_tile(t)


p(f"s_mov_b32 {s(sEARLY)}, {s(sTAU)}")
p(f"s_cmp_lt_u32 {s(sTAU)}, {NE}")
p("s_cbranch_scc1 L_noearly")
first_tiles(0, NE, False)
p("L_noearly:")
stamp()
for k in range(1, KB):
    compact(k)
p(f"s_cmp_ge_u32 {s(sEARLY)}, {NE}")
p("s_cbranch_scc1 L_nolate")
first_tiles(0, NE, True)
p("L_nolate:")
stamp()
p(f"s_waitcnt vmcnt({2*NE})")
p("s_barrier")
stamp()
for mat, dst in ((1, RB), (2, RC), (0, RA), (3, RD)):
    for hb in range(4):
        for ks in range(2):
            for u in range(2):
                reg = 2 * mat + ks
                blk = (hb * 2 + ks) * 2 + u
                p(f"ds_read_b64_tr_b16 {v(dst+2*blk,2)}, {v(DG+hb+(4 if reg >= 4 else 0))} offset:{(reg&3)*REG+u*512}")
TP, TN = CA + 24, CA + 32
p(f"v_and_b32 {v(TX)}, 7, v0")
p(f"v_lshlrev_b32 {v(TX)}, 7, {v(TX)}")
p(f"v_lshl_add_u32 {v(TX)}, v1, 4, {v(TX)}")
p(f"s_add_u32 {s(sT0)}, {s(sLB)}, {TB}")
p(f"v_add_u32 {v(TX)}, {s(sT0)}, {v(TX)}")
p(f"ds_read_b128 {v(TP,4)}, {v(TX)}")
p(f"ds_read_b128 {v(TP+4,4)}, {v(TX)} offset:64")
for x in range(4):
    p(f"ds_read_u16 {v(TR+x)}, {v(TADR)} offset:{(x>>1)*64+(x&1)*8}")
for hb in range(4):
    for j in range(2):
        p(f"v_lshlrev_b32 {v(CA+4*hb+2*j)}, 16, {v(B1R+2*hb+j)}")
        p(f"v_and_b32 {v(CA+4*hb+2*j+1)}, 0xffff0000, {v(B1R+2*hb+j)}")
p(f"v_lshlrev_b32 {v(B2)}, 16, {v(B2)}")
for r in range(1, 4):
    p(f"v_mov_b32 {v(B2+r)}, {v(B2)}")
p("s_waitcnt lgkmcnt(0)")
p("s_barrier")
stamp()
for t in range(NE, D):
    p(f"ds_read_u8 {v(TX+2*(t-NE))}, {v(RDL)} offset:{t*16}")
    p(f"ds_read_u8 {v(TX+2*(t-NE)+1)}, {v(RDL)} offset:{t*16+8}")
for j in range(8):
    p(f"v_xor_b32 {v(TN+j)}, 0x80008000, {v(TP+j)}")
for t in range(NE, D):
    p(f"s_bitcmp0_b64 {s(G,2)}, {t}")
    p(f"s_cbranch_scc1 L_noadvb{t}")
    adv_hist()
    p(f"L_noadvb{t}:")
    p(f"s_waitcnt lgkmcnt({2*(D-t-1)})")
    p(f"v_mov_b32 {v(VA)}, {v(TX+2*(t-NE))}")
    p(f"v_mov_b32 {v(VB)}, {v(TX+2*(t-NE)+1)}")
    dma_tile(t)
for ks in range(2):
    for (src, tt) in ((RB, TP), (RC, TN)):
        for hb in range(4):
            p(f"v_mfma_f32_16x16x32_bf16 {v(CA+4*hb,4)}, {v(src+(hb*2+ks)*4,4)}, {v(tt+4*ks,4)}, {v(CA+4*hb,4)}")
p(f"v_mul_u32_u24 {v(DG)}, 0x3f80, {v(SEL0)}")
p(f"v_mul_u32_u24 {v(DG+1)}, 0x3f80, {v(SEL1)}")
p(f"v_and_b32 {v(TX)}, 15, v0")
p(f"v_cmp_gt_u32 vcc, 8, {v(TX)}")
p(f"v_lshl_add_u32 {v(TX)}, {v(TX)}, 8, {v(BADR)}")
for j in range(16):
    p(f"v_mul_f32 {v(CA+j)}, {s(sC)}, {v(CA+j)}")
p("s_mov_b64 exec, vcc")
for hb in range(4):
    p(f"ds_write_b128 {v(TX)}, {v(CA+4*hb,4)} offset:{hb*64}")
p("s_mov_b64 exec, -1")
p("s_waitcnt lgkmcnt(0)")
for blk in range(16):
    p(f"v_mfma_f32_16x16x16_bf16 {v(CA+4*blk,4)}, {v(DG,2)}, {v(RA+2*blk,2)}, 0")
    p(f"v_mfma_f32_16x16x16_bf16 {v(CA+4*blk,4)}, {v(DG,2)}, {v(RC+2*blk,2)}, {v(CA+4*blk,4)}")
for half in range(2):
    for b8 in range(8):
        blk = half * 8 + b8
        p(f"v_mfma_f32_16x16x16_bf16 {v(RB+4*b8,4)}, {v(DG,2)}, {v(RD+2*blk,2)}, 0")
    for j in range(32):
        p(f"v_mul_f32 {v(CA+32*half+j)}, {s(sC)}, {v(CA+32*half+j)}")
    for j in range(32):
        p(f"v_mul_f32 {v(RB+j)}, {s(sC)}, {v(RB+j)}")
    for j in range(16):
        p(f"v_cvt_pk_bf16_f32 {v(CD+16*half+j)}, {v(RB+2*j)}, {v(RB+2*j+1)}")
wbuild()
for j in range(8):
    p(f"v_mov_b32 {v(XT+j)}, 0")
for j in range(4):
    p(f"v_mov_b32 {v(S+j)}, 0")
    p(f"v_mov_b32 {v(ACC+j)}, 0")
stamp()
p(f"s_waitcnt vmcnt({2*(D-1)})")
stamp(11)
read_xb(0)
p("s_waitcnt lgkmcnt(0)")
for j in range(8):
    p(g1(j))
p(f"s_cmp_lg_u64 {s(NB,2)}, 0")
p("s_cbranch_scc1 L_slow")
mainloop("f", False)
p("L_slow:")
p(f"s_mul_i32 {s(sT0)}, {s(sW)}, 400")
p(f"s_add_u32 s8, s8, {s(sT0)}")
p("s_addc_u32 s9, s9, 0")
srd(SM, 8, 400)
mainloop("s", True)
p("L_store:")
p(f"s_add_u32 {s(sT0)}, {s(sLB)}, {TB}")
p(f"v_lshl_add_u32 v1, v0, 4, {s(sT0)}")
p("s_waitcnt lgkmcnt(0)")
p(f"ds_read_b128 {v(ZB,4)}, v1")
p("s_waitcnt lgkmcnt(0)")
if opt.get("perturb"):
    import struct
    dl = struct.unpack("<I", struct.pack("<f", opt["perturb"] / 1000.0))[0]
    p(f"v_lshlrev_b32 v1, 16, {v(ZB)}")
    p(f"v_and_b32 v2, 0xffff0000, {v(ZB)}")
    p(f"v_add_f32 v1, {dl:#x}, v1")
    p(f"v_cvt_pk_bf16_f32 v1, v1, v2")
    p(f"v_cmp_eq_u32 vcc, 0, {v(VOUT)}")
    p(f"v_cndmask_b32 {v(ZB)}, {v(ZB)}, v1, vcc")
p(f"buffer_store_dwordx4 {v(ZB,4)}, {v(VOUT)}, {s(SO,4)}, 0 offen {NTO}")
if STAMP:
    stamp(12)
    p(f"v_writelane_b32 v254, {s(sTAU)}, 15")
    p("s_getreg_b32 s96, hwreg(HW_REG_XCC_ID)")
    p("v_writelane_b32 v254, s96, 14")
    p("s_getreg_b32 s96, hwreg(HW_REG_HW_ID)")
    p("v_writelane_b32 v254, s96, 13")
    srd(ST, 100, 2048 * 256)
    p(f"s_lshl_b32 {s(sT0)}, {s(sW)}, 8")
    p(f"v_lshlrev_b32 v1, 2, v0")
    p(f"buffer_store_dword v254, v1, {s(ST,4)}, {s(sT0)} offen")
if STAMP == 2:
    p("s_load_dwordx2 s[100:101], s[0:1], 64")
    p("s_waitcnt lgkmcnt(0)")
    srd(ST, 100, 256)
    for j, k in enumerate((0, 3, 6, 9, 10)):
        p(f"v_readlane_b32 s96, v254, {k}")
        p(f"s_not_b32 s97, s96")
        p(f"v_mov_b32 v1, s96")
        p(f"v_mov_b32 v2, s97")
        p("s_mov_b64 exec, 1")
        p(f"buffer_atomic_umax v1, off, {s(ST,4)}, 0 offset:{8*j}")
        p(f"buffer_atomic_umax v2, off, {s(ST,4)}, 0 offset:{8*j+4}")
        p("s_mov_b64 exec, -1")
p("L_end:")
p("s_endpgm")

nn = p.fix_hazards(verbose=opt["verbose"])
hdr = open(__file__.rsplit("/", 1)[0] + "/../standalone__sequential_behavior_din__recsys.s.ref").read().split("\n")
head = [l for l in hdr if l.startswith(";") and "@launch" not in l and "Override" not in l and "grid=ceil" not in l]
out = "\n".join(head) + f"""
; @launch grid=({NWG},1,1) block=({WPB*64},1,1) lds={WPB*REG}
; generated by gen/gen.py {' '.join(sys.argv[1:])}
.amdgcn_target "amdgcn-amd-amdhsa--gfx950"
.text
.globl {NAME}
.p2align 8
.type {NAME},@function
""" + p.text() + f""".section .rodata,"a"
.p2align 6
.amdhsa_kernel {NAME}
  .amdhsa_next_free_vgpr 256
  .amdhsa_next_free_sgpr 102
  .amdhsa_accum_offset 256
  .amdhsa_group_segment_fixed_size 0
  .amdhsa_kernarg_size 80
  .amdhsa_user_sgpr_count 2
  .amdhsa_user_sgpr_kernarg_segment_ptr 1
  .amdhsa_system_sgpr_workgroup_id_x 1
.end_amdhsa_kernel
"""
sys.stdout.write(out)
```

```python
import sys
from asmlib import Prog

opt = dict(D=7, nt="nt", ntm="nt", nto="", verbose=0)
for a in sys.argv[1:]:
    k, v = a.split("=", 1)
    opt[k] = int(v) if v.lstrip("-").isdigit() else v.replace("+", " ")
D = opt["D"]
NT, NTM, NTO = opt["nt"], opt["ntm"], opt["nto"]

NAME = "standalone__sequential_behavior_din__recsys_kernel"
NWG, WPB = 256, 8
NWAVE = NWG * WPB
KB = 16384 // NWAVE
REG = 20480
SLOT = 2080
TB = D * SLOT
BI = TB + 1024
LI = BI + 2048
assert LI + 2048 <= REG
STG = (D - 2) * SLOT
CNEG = 0xBFB8AA3B

CA, CD, W, ZA, ZB, BIAS, XB, XT, W2, B2, S, ACC, DG, TR, ONE, VA, VB = \
    4, 68, 100, 132, 148, 164, 180, 188, 196, 204, 208, 212, 216, 224, 228, 230, 232
RDB0, RDB1, RDT, RDL, TADR, BADR, OADR, SEL0, SEL1, VOUT, RDM = range(234, 245)
TX = 246
RA, RB, RC, RD = W, BIAS, ZA, CD
MSK = W
SH, SM, ST, SW1, SB1, SW2, SB2, SO = 20, 24, 28, 32, 36, 40, 44, 48
sLB, sW, sw = 52, 53, 54
F, G = 56, 60
sTAU, sK, sT0, sT1 = 64, 65, 66, 67
A0, E0 = 68, 76
NB, P0, P1, P2 = 84, 86, 88, 90
sC, sOFF, sEARLY = 92, 93, 94


def v(a, n=1):
    return f"v{a}" if n == 1 else f"v[{a}:{a+n-1}]"


def s(a, n=1):
    return f"s{a}" if n == 1 else f"s[{a}:{a+n-1}]"


p = Prog()


STAMP = opt.get("stamp", 0)
nstamp = [0]


def stamp(cyc=None):
    if not STAMP:
        return
    p("s_memrealtime s[96:97]")
    p("s_waitcnt lgkmcnt(0)")
    p(f"v_writelane_b32 v254, s96, {nstamp[0]}")
    nstamp[0] += 1
    if cyc is not None:
        p("s_memtime s[96:97]")
        p("s_waitcnt lgkmcnt(0)")
        p(f"v_writelane_b32 v254, s96, {cyc}")


def srd(dst, ptr, nrec, stride=0):
    p(f"s_mov_b32 {s(dst)}, {s(ptr)}")
    p(f"s_and_b32 {s(dst+1)}, {s(ptr+1)}, 0xffff")
    if stride:
        p(f"s_or_b32 {s(dst+1)}, {s(dst+1)}, {stride << 16:#x}")
    p(f"s_mov_b32 {s(dst+2)}, {nrec}")
    p(f"s_mov_b32 {s(dst+3)}, 0x20000")


def dma_tile(slot, fill=()):
    fill = list(fill) + [None, None]
    p(f"s_add_u32 m0, {s(sLB)}, {slot*SLOT}")
    if fill[0]:
        p(fill[0])
    p(f"buffer_load_dwordx4 {v(VA,2)}, {s(SH,4)}, 0 idxen offen {NT} lds")
    p(f"s_add_u32 m0, {s(sLB)}, {slot*SLOT+1056}")
    if fill[1]:
        p(fill[1])
    p(f"buffer_load_dwordx4 {v(VB,2)}, {s(SH,4)}, 0 idxen offen {NT} lds")


def adv_hist():
    p(f"s_add_u32 {s(SH)}, {s(SH)}, {NWAVE*25600}")
    p(f"s_addc_u32 {s(SH+1)}, {s(SH+1)}, 0")


def compact(k):
    m0, m1 = MSK + 2 * k, MSK + 2 * k + 1
    R = ZA
    for e in range(4):
        p(f"v_cmp_neq_f16_sdwa {s(A0+2*e,2)}, {v((m0,m1)[e>>1])}, 0 src0_sel:WORD_{e&1} src1_sel:WORD_0")
    p(f"s_lshl_b32 {s(sT0)}, {s(sTAU)}, 4")
    p(f"s_add_u32 {s(sT0)}, {s(sT0)}, {s(sLB)}")
    p(f"s_add_u32 {s(sT0)}, {s(sT0)}, {LI+16}")
    p(f"v_mov_b32 {v(R)}, {s(sT0)}")
    for e in range(4):
        p(f"v_mbcnt_lo_u32_b32 {v(R)}, {s(A0+2*e)}, {v(R)}")
        p(f"v_mbcnt_hi_u32_b32 {v(R)}, {s(A0+2*e+1)}, {v(R)}")
    for e in range(3):
        p(f"v_addc_co_u32 {v(R+e+1)}, vcc, 0, {v(R+e)}, {s(A0+2*e,2)}")
    for e in range(4):
        p(f"s_mov_b64 exec, {s(A0+2*e,2)}")
        p(f"ds_write_b8{'_d16_hi' if e&1 else ''} {v(R+e)}, {v(ZA+4+(e>>1))}")
    p("s_mov_b64 exec, -1")
    for e in range(4):
        p(f"v_cmp_eq_u16_sdwa {s(E0+2*e,2)}, {v((m0,m1)[e>>1])}, {v(ZA+6)} src0_sel:WORD_{e&1} src1_sel:WORD_0")
    p(f"s_bcnt1_i32_b64 {s(sT0)}, {s(A0,2)}")
    for e in range(1, 4):
        p(f"s_bcnt1_i32_b64 {s(sT1)}, {s(A0+2*e,2)}")
        p(f"s_add_u32 {s(sT0)}, {s(sT0)}, {s(sT1)}")
    p(f"s_add_u32 {s(sT0)}, {s(sT0)}, 15")
    p(f"s_lshr_b32 {s(sT0)}, {s(sT0)}, 4")
    p(f"s_max_u32 {s(sT0)}, {s(sT0)}, 1")
    p(f"s_add_u32 {s(sTAU)}, {s(sTAU)}, {s(sT0)}")
    if k == KB - 1:
        p(f"s_mov_b64 {s(G,2)}, {s(F,2)}")
        p(f"s_mov_b64 {s(G+2,2)}, {s(F+2,2)}")
    p(f"s_lshl_b64 {s(P0,2)}, 1, {s(sTAU)}")
    p(f"s_cmp_lt_u32 {s(sTAU)}, 64")
    p(f"s_cselect_b64 {s(P1,2)}, {s(P0,2)}, 0")
    p(f"s_cselect_b64 {s(P2,2)}, 0, {s(P0,2)}")
    p(f"s_or_b64 {s(F,2)}, {s(F,2)}, {s(P1,2)}")
    p(f"s_or_b64 {s(F+2,2)}, {s(F+2,2)}, {s(P2,2)}")
    for e in range(4):
        p(f"s_andn2_b64 {s(P0,2)}, {s(A0+2*e,2)}, {s(E0+2*e,2)}")
        p(f"s_or_b64 {s(NB,2)}, {s(NB,2)}, {s(P0,2)}")


def wbuild():
    for x in range(4):
        p(f"v_mul_u32_u24 {v(DG+2*x)}, {v(TR+x)}, {v(SEL0)}")
        p(f"v_mul_u32_u24 {v(DG+2*x+1)}, {v(TR+x)}, {v(SEL1)}")
    T = [ZB, ZB + 8, TX]
    pairs = [(hb, ks) for hb in range(4) for ks in range(2)]

    def mm(j):
        hb, ks = pairs[j]
        for u in range(2):
            blk = (hb * 2 + ks) * 2 + u
            p(f"v_mfma_f32_16x16x16_bf16 {v(T[j%3]+4*u,4)}, {v(DG+2*(2*ks+u),2)}, {v(CD+2*blk,2)}, {v(CA+4*blk,4)}")

    def cv(j):
        hb, ks = pairs[j]
        for r in range(4):
            p(f"v_cvt_pk_bf16_f32 {v(W+(hb*2+ks)*4+r)}, {v(T[j%3]+2*r)}, {v(T[j%3]+2*r+1)}")
    p(f"v_add_u32 {v(TADR)}, 128, {v(TADR)}")
    p(f"ds_read_b128 {v(BIAS,4)}, {v(BADR)}")
    mm(0)
    for hb in range(1, 4):
        p(f"ds_read_b128 {v(BIAS+4*hb,4)}, {v(BADR)} offset:{hb*64}")
    mm(1)
    for x in range(4):
        p(f"ds_read_u16 {v(TR+x)}, {v(TADR)} offset:{(x>>1)*64+(x&1)*8}")
    mm(2)
    p(f"v_add_u32 {v(BADR)}, 256, {v(BADR)}")
    for j in range(8):
        cv(j)
        if j + 3 < 8:
            mm(j + 3)
    p("s_waitcnt lgkmcnt(0)")


def g1(j):
    hb, ks = j >> 1, j & 1
    c = v(BIAS + 4 * hb, 4) if ks == 0 else v(ZB + 4 * hb, 4)
    return f"v_mfma_f32_16x16x32_bf16 {v(ZB+4*hb,4)}, {v(W+(hb*2+ks)*4,4)}, {v(XB+4*ks,4)}, {c}"


def read_xb(slot):
    p(f"ds_read_b128 {v(XB,4)}, {v(RDB0)} offset:{slot*SLOT}")
    p(f"ds_read_b128 {v(XB+4,4)}, {v(RDB1)} offset:{slot*SLOT}")


def mainloop(tag, slow):
    ool = []
    p(f"L{tag}_loop:")
    for u in range(D):
        ex = lambda j: p(f"v_exp_f32 {v(ZA+j)}, {v(ZB+j)}")
        rc = lambda j: p(f"v_rcp_f32 {v(ZA+j)}, {v(ZA+j)}")
        cv = lambda j: p(f"v_cvt_pk_bf16_f32 {v(ZA+j)}, {v(ZA+2*j)}, {v(ZA+2*j+1)}")
        g2 = lambda q: p(f"v_mfma_f32_4x4x4_16b_bf16 {v(ACC,4)}, {v(S,2)}, {v(XT+2*q,2)}, {v(ACC,4)} cbsz:4 abid:{4*q}")
        sc = lambda q: p(f"v_mfma_f32_16x16x32_bf16 {v(S,4)}, {v(ZA+4*q,4)}, {v(W2+4*q,4)}, {v(B2,4) if q == 0 else v(S,4)}")
        if slow:
            p(f"ds_read_b32 {v(TX)}, {v(RDM)} offset:{u*16}")
            p("s_waitcnt lgkmcnt(0)")
            for r in range(4):
                p(f"v_bfe_u32 {v(TX+1+r)}, {v(TX)}, {8*r}, 8")
                p(f"v_lshlrev_b32 {v(TX+1+r)}, 1, {v(TX+1+r)}")
            for r in range(4):
                p(f"buffer_load_ushort {v(TX+1+r)}, {v(TX+1+r)}, {s(SM,4)}, 0 offen")
            p("s_waitcnt vmcnt(0)")
            for r in range(4):
                p(f"v_lshlrev_b32 {v(TX+1+r)}, 16, {v(TX+1+r)}")
                p(f"v_mul_f32 {v(S+r)}, {v(S+r)}, {v(TX+1+r)}")
        p(f"s_waitcnt vmcnt({2*(D-2)})")
        read_xb((u + 1) % D)
        p(f"ds_read_u8 {v(VA)}, {v(RDL)} offset:{(u+D)*16}")
        p(f"ds_read_u8 {v(VB)}, {v(RDL)} offset:{(u+D)*16+8}")
        for j in range(4):
            ex(j)
        p(f"v_cvt_pk_bf16_f32 {v(S)}, {v(S)}, {v(S+1)}")
        p(f"v_cvt_pk_bf16_f32 {v(S+1)}, {v(S+2)}, {v(S+3)}")
        for q in range(4):
            ex(4 + 2 * q)
            ex(5 + 2 * q)
            g2(q)
        for q in range(4):
            p(f"ds_read_b64_tr_b16 {v(XT+2*q,2)}, {v(RDT)} offset:{u*SLOT+q*512+(q>>1)*32}")
        for j in range(12, 16):
            ex(j)
        p(f"s_bitcmp1_b64 {s(F,2)}, {u}")
        p(f"s_cbranch_scc1 L{tag}_flush{u}")
        p(f"L{tag}_flushed{u}:")
        p(f"v_mfma_f32_32x32x8_bf16 {v(ZA,16)}, {v(ONE,2)}, {v(ONE,2)}, {v(ZA,16)}")
        p(f"s_bitcmp1_b64 {s(G,2)}, {u+1}")
        p(f"s_cbranch_scc1 L{tag}_wb{u}")
        p(f"L{tag}_wbd{u}:")
        p(f"s_bitcmp1_b64 {s(G,2)}, {u+D}")
        p(f"s_cbranch_scc1 L{tag}_adv{u}")
        p(f"L{tag}_advd{u}:")
        p("s_waitcnt lgkmcnt(4)")
        p(g1(0))
        p(g1(1))
        p("s_waitcnt lgkmcnt(0)")
        dma_tile(u, fill=(g1(2), g1(3)))
        rc(0); rc(1); rc(2); cv(0); p(g1(4))
        rc(3); rc(4); cv(1); p(g1(5))
        rc(5); rc(6); cv(2); p(g1(6))
        rc(7); rc(8); cv(3); p(g1(7))
        rc(9); rc(10); cv(4); sc(0)
        rc(11); rc(12); cv(5)
        rc(13); rc(14); cv(6)
        rc(15)
        if u == D - 1:
            p(f"s_lshr_b64 {s(F,2)}, {s(F,2)}, {D}")
            cv(7)
            p(f"s_lshl_b64 {s(P0,2)}, {s(F+2,2)}, {64-D}")
            p(f"s_or_b64 {s(F,2)}, {s(F,2)}, {s(P0,2)}")
            sc(1)
            p(f"s_lshr_b64 {s(F+2,2)}, {s(F+2,2)}, {D}")
            p(f"s_lshr_b64 {s(G,2)}, {s(G,2)}, {D}")
            p(f"s_lshl_b64 {s(P0,2)}, {s(G+2,2)}, {64-D}")
            p(f"s_or_b64 {s(G,2)}, {s(G,2)}, {s(P0,2)}")
            p(f"s_lshr_b64 {s(G+2,2)}, {s(G+2,2)}, {D}")
            p(f"v_add_u32 {v(RDL)}, {16*D}, {v(RDL)}")
            if slow:
                p(f"v_add_u32 {v(RDM)}, {16*D}, {v(RDM)}")
            p(f"s_branch L{tag}_loop")
        else:
            cv(7)
            sc(1)
    for u in range(D):
        p(f"L{tag}_flush{u}:")
        p(f"v_cvt_pk_bf16_f32 {v(TX)}, {v(ACC)}, {v(ACC)}")
        p(f"v_mov_b32 {v(ACC)}, 0")
        if STAMP:
            p("s_memrealtime s[96:97]")
            p("s_memtime s[98:99]")
            p(f"s_lshl_b32 {s(sT0)}, {s(sK)}, 1")
            p(f"s_sub_u32 {s(sT0)}, {16+2*(KB-1)}, {s(sT0)}")
            p("s_waitcnt lgkmcnt(0)")
            p(f"s_mov_b32 m0, {s(sT0)}")
            p("v_writelane_b32 v254, s96, m0")
            p(f"s_add_u32 m0, m0, 1")
            p("v_writelane_b32 v254, s98, m0")
        p(f"s_sub_u32 {s(sK)}, {s(sK)}, 1")
        p(f"ds_write_b16 {v(OADR)}, {v(TX)}")
        p(f"s_cbranch_scc1 L_store")
        p(f"v_add_u32 {v(OADR)}, 128, {v(OADR)}")
        if slow:
            p(f"s_add_u32 {s(SM)}, {s(SM)}, {NWAVE*400}")
            p(f"s_addc_u32 {s(SM+1)}, {s(SM+1)}, 0")
        p(f"s_branch L{tag}_flushed{u}")
        p(f"L{tag}_wb{u}:")
        wbuild()
        p(f"s_branch L{tag}_wbd{u}")
        p(f"L{tag}_adv{u}:")
        adv_hist()
        p(f"s_branch L{tag}_advd{u}")


p(f"{NAME}:")
if STAMP:
    p("s_memrealtime s[98:99]")
    p("s_memtime s[96:97]")
    p("s_load_dwordx2 s[100:101], s[0:1], 72")
p("s_load_dwordx16 s[4:19], s[0:1], 0")
p(f"s_cmp_ge_u32 s2, {NWG}")
p("s_cbranch_scc1 L_end")
p("v_lshrrev_b32 v1, 6, v0")
p("v_and_b32 v0, 63, v0")
p(f"v_readfirstlane_b32 {s(sw)}, v1")
p("v_lshlrev_b32 v1, 3, v0")
p("v_mov_b32 v2, 0x80000000")
p("v_cmp_gt_u32 vcc, 50, v0")
p(f"s_lshl_b32 {s(sW)}, s2, 3")
p(f"s_add_u32 {s(sW)}, {s(sW)}, {s(sw)}")
p(f"s_mul_i32 {s(sLB)}, {s(sw)}, {REG}")
p("v_cndmask_b32 v1, v2, v1, vcc")
p(f"s_mul_i32 {s(sOFF)}, {s(sW)}, 400")
p("v_lshrrev_b32 v2, 3, v0")
p(f"v_lshlrev_b32 {v(VOUT)}, 18, v2")
p("v_and_b32 v3, 7, v0")
p(f"v_lshl_add_u32 {v(VOUT)}, v3, 4, {v(VOUT)}")
p(f"s_lshl_b32 {s(sT0)}, {s(sW)}, 7")
p(f"v_add_u32 {v(VOUT)}, {s(sT0)}, {v(VOUT)}")
p("s_waitcnt lgkmcnt(0)")
if STAMP:
    p("v_mov_b32 v254, 0")
    p("v_writelane_b32 v254, s98, 0")
    p("v_writelane_b32 v254, s96, 32")
    nstamp[0] = 1
stamp()
srd(SM, 8, 16384 * 400)
for k in range(KB):
    p(f"buffer_load_dwordx2 {v(MSK+2*k,2)}, v1, {s(SM,4)}, {s(sOFF)} offen {NTM}")
    if k < KB - 1:
        p(f"s_add_u32 {s(sOFF)}, {s(sOFF)}, {NWAVE*400}")
srd(ST, 4, 16384 * 128)
p(f"s_add_u32 m0, {s(sLB)}, {TB}")
srd(SW1, 10, 32768)
p(f"buffer_load_dwordx4 {v(VOUT)}, {s(ST,4)}, 0 offen {NTM} lds")
p("v_bfe_u32 v1, v0, 4, 1")
p(f"v_lshlrev_b32 {v(TX)}, 1, v1")
p(f"v_xor_b32 {v(TX)}, {v(TX)}, v3")
p(f"v_lshlrev_b32 {v(TX)}, 4, {v(TX)}")
p(f"v_lshl_add_u32 {v(TX)}, v2, 7, {v(TX)}")
p(f"s_lshl_b32 {s(sT0)}, {s(sw)}, 12")
p(f"v_add_u32 {v(TX)}, {s(sT0)}, {v(TX)}")
p(f"v_xor_b32 {v(TX+1)}, 64, {v(TX)}")
p(f"s_add_u32 m0, {s(sLB)}, {STG}")
srd(SB1, 12, 128)
for j in range(4):
    p(f"buffer_load_dwordx4 {v(TX+(j&1))}, {s(SW1,4)}, 0 offen offset:{j*1024} lds")
p(f"v_lshlrev_b32 {v(VA+1)}, 2, v1")
p(f"v_xor_b32 {v(VA+1)}, {v(VA+1)}, v3")
p(f"v_lshlrev_b32 {v(VA+1)}, 4, {v(VA+1)}")
p(f"v_mov_b32 {v(VB+1)}, {v(VA+1)}")
p(f"v_lshrrev_b32 v1, 4, v0")
p(f"v_lshlrev_b32 {v(TX+2)}, 3, v1")
srd(SW2, 14, 128)
srd(SB2, 16, 2)
B1R = CA + 16
for hb in range(4):
    p(f"buffer_load_dwordx2 {v(B1R+2*hb,2)}, {v(TX+2)}, {s(SB1,4)}, 0 offen offset:{hb*32}")
for hb in range(4):
    p(f"buffer_load_dwordx2 {v(W2+2*hb,2)}, {v(TX+2)}, {s(SW2,4)}, 0 offen offset:{hb*32}")
p(f"buffer_load_ushort {v(B2)}, off, {s(SB2,4)}, 0")
NAFTER_MASK = 1 + 4 + 4 + 4 + 1
p(f"s_mul_i32 {s(sT0)}, {s(sW)}, 25600")
p(f"s_add_u32 s6, s6, {s(sT0)}")
p("s_addc_u32 s7, s7, 0")
srd(SH, 6, 200, stride=128)
srd(SO, 18, 16384 * 128)
p(f"v_mov_b32 {v(ZB)}, -1")
p(f"v_mov_b32 {v(ZB+1)}, -1")
p(f"v_mov_b32 {v(ZB+2)}, -1")
p(f"v_mov_b32 {v(ZB+3)}, -1")
p(f"s_add_u32 {s(sT0)}, {s(sLB)}, {LI}")
p(f"v_lshl_add_u32 {v(ZB+4)}, v0, 4, {s(sT0)}")
p(f"ds_write_b128 {v(ZB+4)}, {v(ZB,4)}")
p(f"ds_write_b128 {v(ZB+4)}, {v(ZB,4)} offset:1024")
p(f"v_add_u32 {v(RDL)}, {s(sT0)}, v2")
p(f"v_add_u32 {v(RDL)}, 16, {v(RDL)}")
p(f"v_lshl_add_u32 {v(RDM)}, v1, 2, {s(sT0)}")
p(f"v_mul_u32_u24 {v(ZA+4)}, 0x40004, v0")
p(f"v_add_u32 {v(ZA+5)}, 0x30002, {v(ZA+4)}")
p(f"v_add_u32 {v(ZA+4)}, 0x10000, {v(ZA+4)}")
p(f"v_mov_b32 {v(ZA+6)}, 0x3f80")
p(f"s_mov_b32 {s(sTAU)}, 0")
p(f"s_mov_b64 {s(F,2)}, 0")
p(f"s_mov_b64 {s(F+2,2)}, 0")
p(f"s_mov_b64 {s(NB,2)}, 0")
p(f"s_mov_b32 {s(sK)}, {KB-1}")
p(f"s_mov_b32 {s(sC)}, {CNEG:#x}")
n_ = TX + 3
p(f"v_and_b32 {v(n_)}, 15, v0")
p(f"v_lshrrev_b32 {v(TX+4)}, 3, {v(n_)}")
p(f"v_lshlrev_b32 {v(TX+4)}, 5, {v(TX+4)}")
p(f"v_lshl_add_u32 {v(TX+4)}, {v(n_)}, 7, {v(TX+4)}")
p(f"v_add_u32 {v(TX+4)}, {s(sLB)}, {v(TX+4)}")
p(f"v_bfe_u32 {v(TX+5)}, v0, 1, 1")
p(f"v_lshlrev_b32 {v(TX+5)}, 2, {v(TX+5)}")
p(f"v_xor_b32 {v(TX+5)}, {v(TX+5)}, v1")
p(f"v_lshl_add_u32 {v(RDB0)}, {v(TX+5)}, 4, {v(TX+4)}")
p(f"v_xor_b32 {v(TX+5)}, 4, {v(TX+5)}")
p(f"v_lshl_add_u32 {v(RDB1)}, {v(TX+5)}, 4, {v(TX+4)}")
p(f"v_bfe_u32 {v(TX+4)}, v0, 2, 2")
p(f"v_bfe_u32 {v(TX+5)}, v0, 1, 1")
p(f"v_lshl_add_u32 {v(TX+5)}, v1, 1, {v(TX+5)}")
p(f"v_bfe_u32 {v(TX+6)}, v0, 3, 1")
p(f"v_lshlrev_b32 {v(TX+7)}, 2, {v(TX+6)}")
p(f"v_xor_b32 {v(TX+5)}, {v(TX+5)}, {v(TX+7)}")
p(f"v_lshlrev_b32 {v(TX+5)}, 4, {v(TX+5)}")
p(f"v_lshl_add_u32 {v(TX+5)}, {v(TX+4)}, 7, {v(TX+5)}")
p(f"v_and_b32 {v(TX+7)}, 1, v0")
p(f"v_lshl_add_u32 {v(TX+5)}, {v(TX+7)}, 3, {v(TX+5)}")
p(f"v_add_u32 {v(RDT)}, {s(sLB)}, {v(TX+5)}")
p(f"v_and_b32 {v(TX+5)}, 3, v0")
p(f"v_lshl_add_u32 {v(TX+7)}, {v(TX+4)}, 3, {v(TX+5)}")
p(f"s_add_u32 {s(sT0)}, {s(sLB)}, {TB}")
p(f"v_lshl_add_u32 {v(TADR)}, {v(TX+7)}, 1, {s(sT0)}")
p(f"v_lshl_add_u32 {v(OADR)}, v0, 1, {s(sT0)}")
p(f"s_add_u32 {s(sT0)}, {s(sLB)}, {BI}")
p(f"v_lshl_add_u32 {v(BADR)}, v1, 4, {s(sT0)}")
p(f"v_and_b32 {v(TX+7)}, 1, v0")
p(f"v_lshlrev_b32 {v(TX+7)}, 4, {v(TX+7)}")
p(f"v_lshlrev_b32 {v(TX+7)}, {v(TX+7)}, 1")
p(f"v_cmp_eq_u32 vcc, {v(TX+4)}, v1")
p(f"v_cndmask_b32 {v(TX+7)}, 0, {v(TX+7)}, vcc")
p(f"v_cmp_gt_u32 vcc, 2, {v(TX+5)}")
p(f"v_cndmask_b32 {v(SEL0)}, 0, {v(TX+7)}, vcc")
p(f"v_sub_u32 {v(SEL1)}, {v(TX+7)}, {v(SEL0)}")
p("v_cmp_gt_u32 vcc, 32, v0")
p(f"v_cndmask_b32 {v(ONE)}, 0, {v(ZA+6)}, vcc")
p(f"v_mov_b32 {v(ONE+1)}, 0")
p(f"v_lshl_add_u32 {v(TX+5)}, v1, 3, {v(TX+4)}")
p(f"v_lshlrev_b32 {v(TX+5)}, 7, {v(TX+5)}")
p(f"v_and_b32 {v(TX+7)}, 1, v0")
p(f"v_lshl_add_u32 {v(TX+5)}, {v(TX+7)}, 3, {v(TX+5)}")
p(f"v_add_u32 {v(TX+5)}, {STG}, {v(TX+5)}")
p(f"v_and_b32 {v(TX+7)}, 1, v1")
p(f"v_lshlrev_b32 {v(TX+7)}, 1, {v(TX+7)}")
p(f"v_add_u32 {v(TX+7)}, {v(TX+7)}, {v(TX+6)}")
p(f"v_lshlrev_b32 {v(TX+7)}, 1, {v(TX+7)}")
p(f"v_bfe_u32 {v(TX+6)}, v0, 1, 1")
p(f"v_xor_b32 {v(TX+7)}, {v(TX+7)}, {v(TX+6)}")
for hb in range(4):
    p(f"v_xor_b32 {v(TX+6)}, {2*hb}, {v(TX+7)}")
    p(f"v_lshl_add_u32 {v(DG+hb)}, {v(TX+6)}, 4, {v(TX+5)}")
    p(f"v_add_u32 {v(DG+4+hb)}, {4*REG}, {v(DG+hb)}")

stamp()
p(f"s_waitcnt vmcnt({NAFTER_MASK})")
stamp()
compact(0)
NE = D - 2


def first_tiles(t0, t1, check):
    for t in range(t0, t1):
        p(f"ds_read_u8 {v(ZB+2*(t-t0))}, {v(RDL)} offset:{t*16}")
        p(f"ds_read_u8 {v(ZB+2*(t-t0)+1)}, {v(RDL)} offset:{t*16+8}")
    for t in range(t0, t1):
        if check and t > 0:
            p(f"s_bitcmp0_b64 {s(G,2)}, {t}")
            p(f"s_cbranch_scc1 L_noadv{t}")
            adv_hist()
            p(f"L_noadv{t}:")
        p(f"s_waitcnt lgkmcnt({2*(t1-t-1)})")
        p(f"v_mov_b32 {v(VA)}, {v(ZB+2*(t-t0))}")
        p(f"v_mov_b32 {v(VB)}, {v(ZB+2*(t-t0)+1)}")
        dma_tile(t)


p(f"s_mov_b32 {s(sEARLY)}, {s(sTAU)}")
p(f"s_cmp_lt_u32 {s(sTAU)}, {NE}")
p("s_cbranch_scc1 L_noearly")
first_tiles(0, NE, False)
p("L_noearly:")
stamp()
for k in range(1, KB):
    compact(k)
p(f"s_cmp_ge_u32 {s(sEARLY)}, {NE}")
p("s_cbranch_scc1 L_nolate")
first_tiles(0, NE, True)
p("L_nolate:")
stamp()
p(f"s_waitcnt vmcnt({2*NE})")
p("s_barrier")
stamp()
for mat, dst in ((1, RB), (2, RC), (0, RA), (3, RD)):
    for hb in range(4):
        for ks in range(2):
            for u in range(2):
                reg = 2 * mat + ks
                blk = (hb * 2 + ks) * 2 + u
                p(f"ds_read_b64_tr_b16 {v(dst+2*blk,2)}, {v(DG+hb+(4 if reg >= 4 else 0))} offset:{(reg&3)*REG+u*512}")
TP, TN = CA + 24, CA + 32
p(f"v_and_b32 {v(TX)}, 7, v0")
p(f"v_lshlrev_b32 {v(TX)}, 7, {v(TX)}")
p(f"v_lshl_add_u32 {v(TX)}, v1, 4, {v(TX)}")
p(f"s_add_u32 {s(sT0)}, {s(sLB)}, {TB}")
p(f"v_add_u32 {v(TX)}, {s(sT0)}, {v(TX)}")
p(f"ds_read_b128 {v(TP,4)}, {v(TX)}")
p(f"ds_read_b128 {v(TP+4,4)}, {v(TX)} offset:64")
for x in range(4):
    p(f"ds_read_u16 {v(TR+x)}, {v(TADR)} offset:{(x>>1)*64+(x&1)*8}")
for hb in range(4):
    for j in range(2):
        p(f"v_lshlrev_b32 {v(CA+4*hb+2*j)}, 16, {v(B1R+2*hb+j)}")
        p(f"v_and_b32 {v(CA+4*hb+2*j+1)}, 0xffff0000, {v(B1R+2*hb+j)}")
p(f"v_lshlrev_b32 {v(B2)}, 16, {v(B2)}")
for r in range(1, 4):
    p(f"v_mov_b32 {v(B2+r)}, {v(B2)}")
p("s_waitcnt lgkmcnt(0)")
p("s_barrier")
stamp()
for t in range(NE, D):
    p(f"ds_read_u8 {v(TX+2*(t-NE))}, {v(RDL)} offset:{t*16}")
    p(f"ds_read_u8 {v(TX+2*(t-NE)+1)}, {v(RDL)} offset:{t*16+8}")
for j in range(8):
    p(f"v_xor_b32 {v(TN+j)}, 0x80008000, {v(TP+j)}")
for t in range(NE, D):
    p(f"s_bitcmp0_b64 {s(G,2)}, {t}")
    p(f"s_cbranch_scc1 L_noadvb{t}")
    adv_hist()
    p(f"L_noadvb{t}:")
    p(f"s_waitcnt lgkmcnt({2*(D-t-1)})")
    p(f"v_mov_b32 {v(VA)}, {v(TX+2*(t-NE))}")
    p(f"v_mov_b32 {v(VB)}, {v(TX+2*(t-NE)+1)}")
    dma_tile(t)
for ks in range(2):
    for (src, tt) in ((RB, TP), (RC, TN)):
        for hb in range(4):
            p(f"v_mfma_f32_16x16x32_bf16 {v(CA+4*hb,4)}, {v(src+(hb*2+ks)*4,4)}, {v(tt+4*ks,4)}, {v(CA+4*hb,4)}")
p(f"v_mul_u32_u24 {v(DG)}, 0x3f80, {v(SEL0)}")
p(f"v_mul_u32_u24 {v(DG+1)}, 0x3f80, {v(SEL1)}")
p(f"v_and_b32 {v(TX)}, 15, v0")
p(f"v_cmp_gt_u32 vcc, 8, {v(TX)}")
p(f"v_lshl_add_u32 {v(TX)}, {v(TX)}, 8, {v(BADR)}")
for j in range(16):
    p(f"v_mul_f32 {v(CA+j)}, {s(sC)}, {v(CA+j)}")
p("s_mov_b64 exec, vcc")
for hb in range(4):
    p(f"ds_write_b128 {v(TX)}, {v(CA+4*hb,4)} offset:{hb*64}")
p("s_mov_b64 exec, -1")
p("s_waitcnt lgkmcnt(0)")
for blk in range(16):
    p(f"v_mfma_f32_16x16x16_bf16 {v(CA+4*blk,4)}, {v(DG,2)}, {v(RA+2*blk,2)}, 0")
    p(f"v_mfma_f32_16x16x16_bf16 {v(CA+4*blk,4)}, {v(DG,2)}, {v(RC+2*blk,2)}, {v(CA+4*blk,4)}")
for half in range(2):
    for b8 in range(8):
        blk = half * 8 + b8
        p(f"v_mfma_f32_16x16x16_bf16 {v(RB+4*b8,4)}, {v(DG,2)}, {v(RD+2*blk,2)}, 0")
    for j in range(32):
        p(f"v_mul_f32 {v(CA+32*half+j)}, {s(sC)}, {v(CA+32*half+j)}")
    for j in range(32):
        p(f"v_mul_f32 {v(RB+j)}, {s(sC)}, {v(RB+j)}")
    for j in range(16):
        p(f"v_cvt_pk_bf16_f32 {v(CD+16*half+j)}, {v(RB+2*j)}, {v(RB+2*j+1)}")
wbuild()
for j in range(8):
    p(f"v_mov_b32 {v(XT+j)}, 0")
for j in range(4):
    p(f"v_mov_b32 {v(S+j)}, 0")
    p(f"v_mov_b32 {v(ACC+j)}, 0")
stamp()
p(f"s_waitcnt vmcnt({2*(D-1)})")
stamp(11)
read_xb(0)
p("s_waitcnt lgkmcnt(0)")
for j in range(8):
    p(g1(j))
p(f"s_cmp_lg_u64 {s(NB,2)}, 0")
p("s_cbranch_scc1 L_slow")
mainloop("f", False)
p("L_slow:")
p(f"s_mul_i32 {s(sT0)}, {s(sW)}, 400")
p(f"s_add_u32 s8, s8, {s(sT0)}")
p("s_addc_u32 s9, s9, 0")
srd(SM, 8, 400)
mainloop("s", True)
p("L_store:")
p(f"s_add_u32 {s(sT0)}, {s(sLB)}, {TB}")
p(f"v_lshl_add_u32 v1, v0, 4, {s(sT0)}")
p("s_waitcnt lgkmcnt(0)")
p(f"ds_read_b128 {v(ZB,4)}, v1")
p("s_waitcnt lgkmcnt(0)")
if opt.get("perturb"):
    import struct
    dl = struct.unpack("<I", struct.pack("<f", opt["perturb"] / 1000.0))[0]
    p(f"v_lshlrev_b32 v1, 16, {v(ZB)}")
    p(f"v_and_b32 v2, 0xffff0000, {v(ZB)}")
    p(f"v_add_f32 v1, {dl:#x}, v1")
    p(f"v_cvt_pk_bf16_f32 v1, v1, v2")
    p(f"v_cmp_eq_u32 vcc, 0, {v(VOUT)}")
    p(f"v_cndmask_b32 {v(ZB)}, {v(ZB)}, v1, vcc")
p(f"buffer_store_dwordx4 {v(ZB,4)}, {v(VOUT)}, {s(SO,4)}, 0 offen {NTO}")
if STAMP:
    stamp(12)
    p(f"v_writelane_b32 v254, {s(sTAU)}, 15")
    p("s_getreg_b32 s96, hwreg(HW_REG_XCC_ID)")
    p("v_writelane_b32 v254, s96, 14")
    p("s_getreg_b32 s96, hwreg(HW_REG_HW_ID)")
    p("v_writelane_b32 v254, s96, 13")
    srd(ST, 100, 2048 * 256)
    p(f"s_lshl_b32 {s(sT0)}, {s(sW)}, 8")
    p(f"v_lshlrev_b32 v1, 2, v0")
    p(f"buffer_store_dword v254, v1, {s(ST,4)}, {s(sT0)} offen")
if STAMP == 2:
    p("s_load_dwordx2 s[100:101], s[0:1], 64")
    p("s_waitcnt lgkmcnt(0)")
    srd(ST, 100, 256)
    p(f"s_cmp_eq_u32 {s(sW)}, 7")
    p("s_cbranch_scc0 L_dbg2")
    p("s_mov_b64 exec, 0x7ff")
    p(f"buffer_store_dword v254, v1, {s(ST,4)}, 0 offen")
    p("L_dbg2:")
    p(f"s_cmp_eq_u32 {s(sW)}, 2047")
    p("s_cbranch_scc0 L_end")
    p("s_mov_b64 exec, 0x601")
    p("v_lshrrev_b32 v1, 3, v0")
    p("v_and_b32 v2, 3, v0")
    p("v_add_u32 v1, v1, v2")
    p("v_lshlrev_b32 v1, 2, v1")
    p(f"buffer_store_dword v254, v1, {s(ST,4)}, 0 offen offset:44")
p("L_end:")
p("s_endpgm")

nn = p.fix_hazards(verbose=opt["verbose"])
hdr = open(__file__.rsplit("/", 1)[0] + "/../standalone__sequential_behavior_din__recsys.s.ref").read().split("\n")
head = [l for l in hdr if l.startswith(";") and "@launch" not in l and "Override" not in l and "grid=ceil" not in l]
out = "\n".join(head) + f"""
; @launch grid=({NWG},1,1) block=({WPB*64},1,1) lds={WPB*REG}
; generated by gen/gen.py {' '.join(sys.argv[1:])}
.amdgcn_target "amdgcn-amd-amdhsa--gfx950"
.text
.globl {NAME}
.p2align 8
.type {NAME},@function
""" + p.text() + f""".section .rodata,"a"
.p2align 6
.amdhsa_kernel {NAME}
  .amdhsa_next_free_vgpr 256
  .amdhsa_next_free_sgpr 102
  .amdhsa_accum_offset 256
  .amdhsa_group_segment_fixed_size 0
  .amdhsa_kernarg_size 80
  .amdhsa_user_sgpr_count 2
  .amdhsa_user_sgpr_kernarg_segment_ptr 1
  .amdhsa_system_sgpr_workgroup_id_x 1
.end_amdhsa_kernel
"""
sys.stdout.write(out)
```

```python
import re

TRANS = ("v_exp_f32", "v_rcp_f32", "v_log_f32", "v_rsq_f32", "v_sqrt_f32", "v_sin_f32", "v_cos_f32",
         "v_exp_f16", "v_rcp_f16")


def regs_of(tok):
    tok = tok.strip()
    neg = tok.lstrip("-|").rstrip("|")
    m = re.fullmatch(r"([vsa])(\d+)", neg)
    if m:
        return [(m.group(1), int(m.group(2)))]
    m = re.fullmatch(r"([vsa])\[(\d+):(\d+)\]", neg)
    if m:
        return [(m.group(1), i) for i in range(int(m.group(2)), int(m.group(3)) + 1)]
    if neg == "vcc":
        return [("s", 106), ("s", 107)]
    if neg == "exec":
        return [("s", 126), ("s", 127)]
    if neg == "m0":
        return [("s", 124)]
    return []


def mfma_passes(mn):
    if "4x4x4" in mn:
        return 2
    if "16x16x32" in mn or "16x16x16" in mn:
        return 4
    if "32x32x16" in mn or "32x32x8" in mn or "16x16x4_4b" in mn:
        return 8
    raise ValueError(mn)


class Ins:
    def __init__(self, text):
        self.text = text.strip()
        self.label = None
        self.cls = None
        self.w = set()
        self.r = set()
        self.srcA = self.srcB = self.srcC = self.dst = ()
        self.target = None
        self.states = 1
        t = self.text.split(";")[0].strip()
        if t.endswith(":"):
            self.label = t[:-1]
            self.cls = "label"
            self.states = 0
            return
        if t == "" or t.startswith("."):
            self.cls = "dir"
            self.states = 0
            return
        parts = t.split(None, 1)
        mn = self.mn = parts[0]
        rest = parts[1] if len(parts) > 1 else ""
        ops, depth, cur = [], 0, ""
        for ch in rest:
            if ch == "[":
                depth += 1
            if ch == "]":
                depth -= 1
            if ch == "," and depth == 0:
                ops.append(cur.strip())
                cur = ""
            else:
                cur += ch
        if cur.strip():
            ops.append(cur.strip())
        mods = ""
        if ops:
            sp = ops[-1].split(None, 1)
            if len(sp) > 1:
                ops[-1], mods = sp[0], sp[1]
        self.ops, self.mods = ops, mods
        R = lambda k: regs_of(ops[k]) if k < len(ops) else []
        if mn.startswith("v_mfma"):
            self.cls = "mfma"
            self.passes = mfma_passes(mn)
            self.dst, self.srcA, self.srcB, self.srcC = map(tuple, (R(0), R(1), R(2), R(3)))
            self.w = set(self.dst)
            self.r = set(self.srcA) | set(self.srcB) | set(self.srcC)
        elif mn.startswith("v_"):
            self.cls = "valu"
            self.trans = any(mn.startswith(x) for x in TRANS)
            if mn.startswith("v_cmp"):
                self.w = set(R(0))
                self.r = set(x for k in range(1, len(ops)) for x in R(k))
            elif mn.startswith(("v_add_co", "v_addc_co", "v_sub_co", "v_subb_co")):
                self.w = set(R(0)) | set(R(1))
                self.r = set(x for k in range(2, len(ops)) for x in R(k))
            else:
                self.w = set(R(0))
                self.r = set(x for k in range(1, len(ops)) for x in R(k))
                if mn.startswith(("v_fmac", "v_permlane", "v_writelane")):
                    self.r |= set(R(0))
                if mn.startswith("v_permlane"):
                    self.w |= set(R(1))
            self.lane_read = mn.startswith(("v_readfirstlane", "v_readlane"))
            self.dpp = "_dpp" in mn
        elif mn.startswith("ds_"):
            self.cls = "ds"
            if "_rtn" in mn:
                self.w = set(R(0))
                self.r = set(x for k in range(1, len(ops)) for x in R(k))
            elif mn.startswith("ds_read"):
                self.w = set(R(0))
                self.r = set(R(1))
                if "d16" in mn:
                    self.r |= set(R(0))
            else:
                self.r = set(x for k in range(len(ops)) for x in R(k))
        elif mn.startswith("global_"):
            self.cls = "vmem"
            self.lds = "_lds_" in mn
            if self.lds:
                self.r = set(x for k in range(len(ops)) for x in R(k))
            elif mn.startswith("global_load"):
                self.w = set(R(0))
                self.r = set(x for k in range(1, len(ops)) for x in R(k))
            else:
                self.r = set(x for k in range(len(ops)) for x in R(k))
                self.store_data = set(R(1)) if ("x4" in mn or "x3" in mn) else set()
        elif mn.startswith("buffer_"):
            self.cls = "vmem"
            self.lds = bool(re.search(r"\blds\b", mods))
            if self.lds:
                self.r = set(x for k in range(len(ops)) for x in R(k))
            elif mn.startswith("buffer_load"):
                self.w = set(R(0))
                self.r = set(x for k in range(1, len(ops)) for x in R(k))
            else:
                self.r = set(x for k in range(len(ops)) for x in R(k))
                self.store_data = set(R(0)) if ("x4" in mn or "x3" in mn) else set()
        elif mn.startswith("s_"):
            self.cls = "salu"
            if mn == "s_nop":
                self.states = int(ops[0], 0) + 1
            elif mn.startswith(("s_cbranch", "s_branch")):
                self.cls = "branch"
                self.target = ops[0]
            elif mn == "s_endpgm":
                self.cls = "end"
            elif mn.startswith(("s_cmp", "s_bitcmp", "s_waitcnt", "s_barrier", "s_setprio", "s_sleep")):
                self.r = set(x for k in range(len(ops)) for x in R(k))
            else:
                self.w = set(R(0))
                self.r = set(x for k in range(1, len(ops)) for x in R(k))
                if "saveexec" in mn:
                    self.w |= {("s", 126), ("s", 127)}
        else:
            raise ValueError("unknown instruction: " + text)


def need(p, c):
    n = 0
    vw = {x for x in p.w if x[0] in "va"}
    sw = {x for x in p.w if x[0] == "s"}
    if p.cls == "valu":
        if c.cls == "valu" and sw & c.r:
            n = max(n, 4 if getattr(c, "lane_read", False) and c.mn.startswith("v_readlane") else 2)
        if c.cls == "vmem" and sw & c.r:
            n = max(n, 5)
        if c.cls == "valu" and c.lane_read and vw & c.r:
            n = max(n, 1)
        if c.cls == "valu" and (c.dpp or c.mn.startswith("v_permlane")) and vw & c.r:
            n = max(n, 2)
        if p.trans and c.cls == "valu" and not c.trans and vw & c.r:
            n = max(n, 1)
        if "sdwa" in p.mn and not p.mn.startswith("v_cmp") and c.cls == "valu" and vw & (c.r | c.w):
            n = max(n, 1)
        if c.cls == "mfma" and vw & c.r:
            n = max(n, 2)
        if c.cls in ("salu",) and sw & c.r:
            n = max(n, 1)
    if p.cls == "mfma":
        k = {2: 0, 4: 1, 8: 2, 16: 3}[p.passes]
        if c.cls == "mfma":
            if set(c.srcC) & vw:
                if c.srcC == p.dst and c.passes == p.passes:
                    n = max(n, [2, 0, 0, 0][k])
                else:
                    n = max(n, [4, 6, 10, 18][k])
            if (set(c.srcA) | set(c.srcB)) & vw:
                n = max(n, [5, 8, 12, 20][k])
            if set(c.dst) & vw and not (c.srcC == p.dst and c.passes == p.passes):
                n = max(n, [4, 6, 10, 18][k])
        elif c.cls in ("valu", "ds", "vmem"):
            if vw & (c.r | c.w):
                n = max(n, [5, 8, 12, 20][k])
            if c.cls == "valu" and set(p.srcC) & c.w:
                n = max(n, [1, 3, 7, 15][k])
    if p.cls == "salu" and ("s", 124) in sw and c.cls == "vmem" and c.lds:
        n = max(n, 1)
    if p.cls == "vmem" and getattr(p, "store_data", None) and p.store_data & c.w:
        n = max(n, 2)
    return n


class Prog:
    def __init__(self):
        self.ins = []

    def __call__(self, text):
        for line in text.split("\n"):
            if line.strip():
                self.ins.append(Ins(line))

    def preds(self):
        lab = {i.label: k for k, i in enumerate(self.ins) if i.label}
        pr = [[] for _ in self.ins]
        for k, i in enumerate(self.ins):
            if i.cls == "branch":
                pr[lab[i.target]].append(k)
                if i.mn == "s_branch":
                    continue
            if i.cls == "end":
                continue
            if k + 1 < len(self.ins):
                pr[k + 1].append(k)
        return pr

    def shortfall(self, k, pr):
        c = self.ins[k]
        if c.cls in ("label", "dir"):
            return 0, None
        worst, who = 0, None
        stack = [(p, 0) for p in pr[k]]
        seen = {}
        while stack:
            j, dist = stack.pop()
            if dist >= 21 or seen.get(j, 99) <= dist:
                continue
            seen[j] = dist
            p = self.ins[j]
            if p.cls not in ("label", "dir"):
                n = need(p, c)
                if n - dist > worst:
                    worst, who = n - dist, p
            for q in pr[j]:
                stack.append((q, dist + p.states))
        return worst, who

    def fix_hazards(self, verbose=False):
        total = 0
        k = 0
        pr = self.preds()
        while k < len(self.ins):
            s, who = self.shortfall(k, pr)
            if s > 0:
                if verbose:
                    print(f"; hazard: +{s} before [{self.ins[k].text}] after [{who.text}]")
                while s > 0:
                    n = min(s, 16)
                    self.ins.insert(k, Ins(f"s_nop {n-1}"))
                    k += 1
                    s -= n
                    total += 1
                pr = self.preds()
                k = max(0, k - 1)
            k += 1
        pr = self.preds()
        for k in range(len(self.ins)):
            s, who = self.shortfall(k, pr)
            assert s == 0, (self.ins[k].text, who.text)
        return total

    def text(self):
        out = []
        for i in self.ins:
            out.append(i.text if i.cls in ("label", "dir") else "    " + i.text)
        return "\n".join(out) + "\n"
```

```python
import sys
from asmlib import Prog

opt = dict(D=7, nt="nt", ntm="nt", nto="", verbose=0, prio=1, sched="a")
for a in sys.argv[1:]:
    k, v = a.split("=", 1)
    opt[k] = int(v) if v.lstrip("-").isdigit() else v.replace("+", " ")
D = opt["D"]
NT, NTM, NTO = opt["nt"], opt["ntm"], opt["nto"]
STAMP = opt.get("stamp", 0)

NAME = "standalone__sequential_behavior_din__recsys_kernel"
NWG, WPB = 256, 8
NWAVE = NWG * WPB
KB = 16384 // NWAVE
REG = 20480
SLOT = 2080
TB = D * SLOT
BI = TB + 1024
PRG = BI + 2048
L0 = 18432
LI = L0 - 16
assert PRG + 16 <= LI and LI + 2048 <= REG
STG = (D - 2) * SLOT
CNEG = 0xBFB8AA3B
DLT0, DLT1 = 25600, 4095 * 25600
MDL0, MDL1 = 400, 4095 * 400

CA, CD, W, ZA, ZB, BIAS, XB, XT, W2, B2, S, ACC, DG, TR, ONE, VA, VB = \
    4, 68, 100, 132, 148, 164, 180, 188, 196, 204, 208, 212, 216, 224, 228, 230, 232
RDB0, RDB1, RDT, RDL, TADR, BADR, OADR, SEL0, SEL1, VOUT, RDM = range(234, 245)
TX = 246
PRV, PADR, PINC = 1, 2, 3
MSK = W
SH, SM = 20, 24
EX50, sB2, sDL, sMDL, sSGN = 28, 30, 31, 32, 33
sLB, sW, sw = 52, 53, 54
F, G = 56, 60
sBASE, sK, sT0, sT1, sT2, sT3 = 64, 65, 66, 67, 34, 35
A0 = 68
NB, P0, P1, P2 = 84, 86, 88, 90
sC, sEARLY = 92, 94


def v(a, n=1):
    return f"v{a}" if n == 1 else f"v[{a}:{a+n-1}]"


def s(a, n=1):
    return f"s{a}" if n == 1 else f"s[{a}:{a+n-1}]"


p = Prog()
nstamp = [0]


def stamp(cyc=None):
    if not STAMP or (STAMP == 3 and cyc is None):
        return
    p("s_memrealtime s[96:97]")
    p("s_waitcnt lgkmcnt(0)")
    p(f"v_writelane_b32 v254, s96, {nstamp[0]}")
    nstamp[0] += 1
    if cyc is not None:
        p("s_memtime s[96:97]")
        p("s_waitcnt lgkmcnt(0)")
        p(f"v_writelane_b32 v254, s96, {cyc}")


def srd(dst, ptr, nrec, stride=0):
    p(f"s_mov_b32 {s(dst)}, {s(ptr)}")
    p(f"s_and_b32 {s(dst+1)}, {s(ptr+1)}, 0xffff")
    if stride:
        p(f"s_or_b32 {s(dst+1)}, {s(dst+1)}, {stride << 16:#x}")
    p(f"s_mov_b32 {s(dst+2)}, {nrec}")
    p(f"s_mov_b32 {s(dst+3)}, 0x20000")


def m0_half(slot, j):
    return f"s_add_u32 m0, {s(sLB)}, {slot*SLOT+j*1056}"


def dma_half(j):
    return f"buffer_load_dwordx4 {v((VA, VB)[j],2)}, {s(SH,4)}, 0 idxen offen {NT} lds"


def adv_hist():
    p(f"s_add_u32 {s(SH)}, {s(SH)}, {s(sDL)}")
    p(f"s_addc_u32 {s(SH+1)}, {s(SH+1)}, 0")
    p(f"s_xor_b32 {s(sDL)}, {s(sDL)}, {DLT0 ^ DLT1:#x}")


R, CV, HI, OACC, SACC = ZA, ZA + 9, ZA + 13, ZA + 14, ZA + 15


def fbit(reg, k):
    p(f"s_lshr_b32 {s(sT3)}, {s(reg)}, 4")
    if 13 * (k + 1) < 64:
        p(f"s_bitset1_b64 {s(F,2)}, {s(sT3)}")
    else:
        p(f"s_lshl_b64 {s(P0,2)}, 1, {s(sT3)}")
        p(f"s_bitcmp1_b32 {s(reg)}, 10")
        p(f"s_cselect_b64 {s(P1,2)}, 0, {s(P0,2)}")
        p(f"s_cselect_b64 {s(P2,2)}, {s(P0,2)}, 0")
        p(f"s_or_b64 {s(F,2)}, {s(F,2)}, {s(P1,2)}")
        p(f"s_or_b64 {s(F+2,2)}, {s(F+2,2)}, {s(P2,2)}")


def compact(j):
    m = [MSK + 4 * j + x for x in range(4)]
    p(f"s_mov_b64 exec, {s(EX50,2)}")
    for e in range(8):
        p(f"v_cmp_neq_f16_sdwa {s(A0+2*e,2)}, {v(m[e>>1])}, 0 src0_sel:WORD_{e&1} src1_sel:WORD_0")
    for x in range(4):
        p(f"v_sad_u16 {v(SACC)}, {v(m[x])}, 0, {v(SACC)}")
    p(f"v_or3_b32 {v(OACC)}, {v(m[0])}, {v(m[1])}, {v(OACC)}")
    p(f"v_or3_b32 {v(OACC)}, {v(m[2])}, {v(m[3])}, {v(OACC)}")
    p("s_mov_b64 exec, -1")
    p(f"v_mov_b32 {v(R)}, {s(sBASE)}")
    for e in range(8):
        p(f"v_mbcnt_lo_u32_b32 {v(R)}, {s(A0+2*e)}, {v(R)}")
        p(f"v_mbcnt_hi_u32_b32 {v(R)}, {s(A0+2*e+1)}, {v(R)}")
    p(f"s_add_u32 {s(sT2)}, {s(sBASE)}, 16")
    p(f"v_readlane_b32 {s(sT0)}, {v(R)}, 25")
    p(f"v_readlane_b32 {s(sT1)}, {v(R)}, 63")
    p(f"s_add_u32 {s(sBASE)}, {s(sT0)}, 15")
    p(f"s_and_b32 {s(sBASE)}, {s(sBASE)}, -16")
    p(f"s_max_u32 {s(sBASE)}, {s(sBASE)}, {s(sT2)}")
    p(f"s_sub_u32 {s(sT0)}, {s(sBASE)}, {s(sT0)}")
    p(f"v_mad_u32_u24 {v(R)}, {v(HI)}, {s(sT0)}, {v(R)}")
    fbit(sBASE, 2 * j)
    for e in range(8):
        p(f"v_addc_co_u32 {v(R+e+1)}, vcc, 0, {v(R+e)}, {s(A0+2*e,2)}")
    p(f"s_add_u32 {s(sT1)}, {s(sT1)}, {s(sT0)}")
    p(f"s_add_u32 {s(sT1)}, {s(sT1)}, 15")
    p(f"s_and_b32 {s(sT1)}, {s(sT1)}, -16")
    p(f"s_add_u32 {s(sBASE)}, {s(sBASE)}, 16")
    p(f"s_max_u32 {s(sBASE)}, {s(sBASE)}, {s(sT1)}")
    for e in range(8):
        p(f"s_mov_b64 exec, {s(A0+2*e,2)}")
        p(f"ds_write_b8{'_d16_hi' if e&1 else ''} {v(R+e)}, {v(CV+(e>>1))}")
    p("s_mov_b64 exec, -1")
    p(f"v_sub_u32 {v(R+8)}, {v(R)}, {v(R+8)}")
    p(f"s_movk_i32 {s(sT0)}, 0x3f80")
    if j == KB // 2 - 1:
        p(f"s_mov_b64 {s(G,2)}, {s(F,2)}")
        p(f"s_mov_b64 {s(G+2,2)}, {s(F+2,2)}")
    p(f"v_mad_i32_i24 {v(SACC)}, {v(R+8)}, {s(sT0)}, {v(SACC)}")
    fbit(sBASE, 2 * j + 1)


def wbuild():
    for x in range(4):
        p(f"v_mul_u32_u24 {v(DG+2*x)}, {v(TR+x)}, {v(SEL0)}")
        p(f"v_mul_u32_u24 {v(DG+2*x+1)}, {v(TR+x)}, {v(SEL1)}")
    T = [ZA, ZA + 8, TX]
    pairs = [(hb, ks) for hb in range(4) for ks in range(2)]

    def mm(j, u):
        hb, ks = pairs[j]
        blk = (hb * 2 + ks) * 2 + u
        p(f"v_mfma_f32_16x16x16_bf16 {v(T[j%3]+4*u,4)}, {v(DG+2*(2*ks+u),2)}, {v(CD+2*blk,2)}, {v(CA+4*blk,4)}")

    def cv(j, r):
        hb, ks = pairs[j]
        p(f"v_cvt_pk_bf16_f32 {v(W+(hb*2+ks)*4+r)}, {v(T[j%3]+2*r)}, {v(T[j%3]+2*r+1)}")
    p(f"v_add_u32 {v(TADR)}, 128, {v(TADR)}")
    p(f"ds_read_b128 {v(BIAS,4)}, {v(BADR)}")
    mm(0, 0)
    p(f"ds_read_b128 {v(BIAS+4,4)}, {v(BADR)} offset:64")
    p(f"ds_read_b128 {v(BIAS+8,4)}, {v(BADR)} offset:128")
    mm(0, 1)
    p(f"ds_read_b128 {v(BIAS+12,4)}, {v(BADR)} offset:192")
    p(f"ds_read_u16 {v(TR)}, {v(TADR)}")
    mm(1, 0)
    p(f"ds_read_u16 {v(TR+1)}, {v(TADR)} offset:8")
    p(f"ds_read_u16 {v(TR+2)}, {v(TADR)} offset:64")
    mm(1, 1)
    p(f"ds_read_u16 {v(TR+3)}, {v(TADR)} offset:72")
    p(f"v_add_u32 {v(BADR)}, 256, {v(BADR)}")
    mm(2, 0)
    cv(0, 0); cv(0, 1)
    mm(2, 1)
    cv(0, 2); cv(0, 3)
    for j in range(1, 8):
        if j + 2 < 8:
            mm(j + 2, 0)
        cv(j, 0); cv(j, 1)
        if j + 2 < 8:
            mm(j + 2, 1)
        cv(j, 2); cv(j, 3)
    p("s_waitcnt lgkmcnt(0)")


def g1(j):
    hb, ks = j >> 1, j & 1
    c = v(BIAS + 4 * hb, 4) if ks == 0 else v(ZB + 4 * hb, 4)
    return f"v_mfma_f32_16x16x32_bf16 {v(ZB+4*hb,4)}, {v(W+(hb*2+ks)*4,4)}, {v(XB+4*ks,4)}, {c}"


def read_xb(slot, ks):
    p(f"ds_read_b128 {v(XB+4*ks,4)}, {v((RDB0, RDB1)[ks])} offset:{slot*SLOT}")


SCHED = {
    "a": "vm c7 x0 x1 k1 mid ia ib E1 P0 e0 e1 e2 e3 s0 s1 A0 e4 q0 t0 e5 e6 q1 t1 e7 L2 G0 e8 A1 r0 q2 t2 r1 G1 e9 q3 t3 e10 G2 "
         "r2 e11 G3 r3 c0 A2 e12 c1 G4 r4 E2 e13 G5 r5 L0 E0 m0 e14 da m1 c2 db P1 e15 G6 r6 A3 r7 G7 r8 c3 r9 B r10 k0 r11 c4 r12 c5 "
         "r13 r14 c6 r15",
}


def mainloop(tag, slow):
    toks = SCHED[opt["sched"]].split()
    big = not any(t.startswith("A") and t[1:].isdigit() for t in toks)
    p(f"L{tag}_loop:")
    for u in range(D):
        ev = opt["prio"] and u in (0, D // 2)
        for t in toks:
            k, n = t[0], (int(t[1:]) if t[1:].isdigit() else None)
            if opt.get("nodma") and t in ("da", "db"):
                continue
            if opt.get("nocomp") and k in "ercsAGqk" and n is not None:
                continue
            if opt.get("notrans") and k in "er" and n is not None:
                continue
            if t == "vm":
                p(f"s_waitcnt vmcnt({2*(D-2)})")
            elif t == "mid":
                if u == 0:
                    p(f"L{tag}_mid:")
                if slow:
                    p(f"ds_read_b32 {v(TX)}, {v(RDM)} offset:{u*16}")
                    p("s_waitcnt lgkmcnt(0)")
                    for r in range(4):
                        p(f"v_bfe_u32 {v(TX+1+r)}, {v(TX)}, {8*r}, 8")
                        p(f"v_lshlrev_b32 {v(TX+1+r)}, 1, {v(TX+1+r)}")
                    for r in range(4):
                        p(f"buffer_load_ushort {v(TX+1+r)}, {v(TX+1+r)}, {s(SM,4)}, 0 offen")
                    p("s_waitcnt vmcnt(0)")
                    for r in range(4):
                        p(f"v_lshlrev_b32 {v(TX+1+r)}, 16, {v(TX+1+r)}")
                        p(f"v_mul_f32 {v(S+r)}, {v(S+r)}, {v(TX+1+r)}")
            elif t == "ia":
                p(f"ds_read_u8 {v(VA)}, {v(RDL)} offset:{(u+D)*16}")
            elif t == "ib":
                p(f"ds_read_u8 {v(VB)}, {v(RDL)} offset:{(u+D)*16+8}")
            elif t == "E1":
                p(f"s_bitcmp1_b64 {s(G,2)}, {u+1}")
                p(f"s_cbranch_scc1 L{tag}_wb{u}")
                p(f"L{tag}_wbd{u}:")
            elif t == "E2":
                p(f"s_bitcmp1_b64 {s(F,2)}, {u}")
                p(f"s_cbranch_scc1 L{tag}_flush{u}")
                p(f"L{tag}_flushed{u}:")
            elif t == "E0":
                p(f"s_bitcmp1_b64 {s(G,2)}, {u+D}")
                p(f"s_cbranch_scc1 L{tag}_adv{u}")
                p(f"L{tag}_advd{u}:")
            elif t == "P0":
                if ev:
                    p("s_mov_b64 exec, 1")
                    p(f"ds_add_rtn_u32 {v(PRV)}, {v(PADR)}, {v(PINC)}")
                    p("s_mov_b64 exec, -1")
            elif t == "P1":
                if ev:
                    p(f"v_readfirstlane_b32 {s(sT0)}, {v(PRV)}")
                    p(f"s_xor_b32 {s(sT0)}, {s(sT0)}, {s(sSGN)}")
                    p(f"s_cmp_gt_i32 {s(sT0)}, 0")
                    p("s_setprio 0")
                    p(f"s_cbranch_scc0 L{tag}_lo{u}")
                    p("s_setprio 1")
                    p(f"L{tag}_lo{u}:")
            elif t == "da":
                p(dma_half(0))
            elif t == "db":
                p(dma_half(1))
            elif t == "AA":
                p(f"v_mfma_f32_32x32x8_bf16 {v(ZA,16)}, {v(ONE,2)}, {v(ONE,2)}, {v(ZA,16)}")
            elif t == "B":
                if u == D - 1:
                    for X in (F, G):
                        p(f"s_lshr_b64 {s(X,2)}, {s(X,2)}, {D}")
                        p(f"s_lshl_b64 {s(P0,2)}, {s(X+2,2)}, {64-D}")
                        p(f"s_or_b64 {s(X,2)}, {s(X,2)}, {s(P0,2)}")
                        p(f"s_lshr_b64 {s(X+2,2)}, {s(X+2,2)}, {D}")
                    p(f"v_add_u32 {v(RDL)}, {16*D}, {v(RDL)}")
                    if slow:
                        p(f"v_add_u32 {v(RDM)}, {16*D}, {v(RDM)}")
            elif k == "m":
                p(m0_half(u, n))
            elif k == "x":
                read_xb((u + 1) % D, n)
            elif k == "e":
                p(f"v_exp_f32 {v(ZA+n)}, {v(ZB+n)}")
            elif k == "r":
                p(f"v_rcp_f32 {v(ZA+n)}, {v(ZA+n)}")
            elif k == "c":
                p(f"v_cvt_pk_bf16_f32 {v(ZA+n)}, {v(ZA+2*n)}, {v(ZA+2*n+1)}")
            elif k == "s":
                p(f"v_cvt_pk_bf16_f32 {v(S+n)}, {v(S+2*n)}, {v(S+2*n+1)}")
            elif k == "A":
                p(f"v_mfma_f32_4x4x4_16b_bf16 {v(ZA+4*n,4)}, {v(ONE,2)}, {v(ONE,2)}, {v(ZA+4*n,4)}")
            elif k == "G":
                p(g1(n))
            elif k == "q":
                p(f"v_mfma_f32_4x4x4_16b_bf16 {v(ACC,4)}, {v(S,2)}, {v(XT+2*n,2)}, {v(ACC,4)} cbsz:4 abid:{4*n}")
            elif k == "t":
                p(f"ds_read_b64_tr_b16 {v(XT+2*n,2)}, {v(RDT)} offset:{u*SLOT+n*512+(n>>1)*32}")
            elif k == "k":
                p(f"v_mfma_f32_16x16x32_bf16 {v(S,4)}, {v(ZA+4*n,4)}, {v(W2+4*n,4)}, {v(B2,4) if n == 0 else v(S,4)}")
            elif k == "L":
                p(f"s_waitcnt lgkmcnt({n})")
            else:
                raise ValueError(t)
    p(f"s_branch L{tag}_loop")
    for u in range(D):
        p(f"L{tag}_flush{u}:")
        p(f"v_cvt_pk_bf16_f32 {v(TX)}, {v(ACC)}, {v(ACC)}")
        p(f"v_mov_b32 {v(ACC)}, 0")
        if STAMP == 1:
            p("s_memrealtime s[96:97]")
            p("s_memtime s[98:99]")
            p(f"s_lshl_b32 {s(sT0)}, {s(sK)}, 1")
            p(f"s_sub_u32 {s(sT0)}, {16+2*(KB-1)}, {s(sT0)}")
            p("s_waitcnt lgkmcnt(0)")
            p(f"s_mov_b32 m0, {s(sT0)}")
            p("v_writelane_b32 v254, s96, m0")
            p(f"s_add_u32 m0, m0, 1")
            p("v_writelane_b32 v254, s98, m0")
        p(f"s_sub_u32 {s(sK)}, {s(sK)}, 1")
        p(f"ds_write_b16 {v(OADR)}, {v(TX)}")
        p(f"s_cbranch_scc1 L_store")
        p(f"v_add_u32 {v(OADR)}, 128, {v(OADR)}")
        if slow:
            p(f"s_add_u32 {s(SM)}, {s(SM)}, {s(sMDL)}")
            p(f"s_addc_u32 {s(SM+1)}, {s(SM+1)}, 0")
            p(f"s_xor_b32 {s(sMDL)}, {s(sMDL)}, {MDL0 ^ MDL1:#x}")
        p(f"s_branch L{tag}_flushed{u}")
        p(f"L{tag}_wb{u}:")
        wbuild()
        p(f"s_branch L{tag}_wbd{u}")
        p(f"L{tag}_adv{u}:")
        adv_hist()
        p(f"s_branch L{tag}_advd{u}")
    return big


p(f"{NAME}:")
if STAMP:
    p("s_memrealtime s[98:99]")
    p("s_memtime s[96:97]")
    p("s_load_dwordx2 s[100:101], s[0:1], 72")
p("s_load_dwordx16 s[4:19], s[0:1], 0")
p(f"s_cmp_ge_u32 s2, {NWG}")
p("s_cbranch_scc1 L_end")
if opt.get("pf", 0):
    p("s_getpc_b64 s[36:37]")
    p("v_lshlrev_b32 v2, 7, v0")
    p(f"v_cmp_gt_u32 vcc, {opt.get('pfl', 128)}, v0")
    p("s_and_saveexec_b64 s[38:39], vcc")
    p("s_cbranch_execz L_nopf")
    p("global_load_dword v255, v2, s[36:37]")
    p("L_nopf:")
    p("s_mov_b64 exec, -1")
p("v_lshrrev_b32 v1, 6, v0")
p("v_and_b32 v0, 63, v0")
p(f"v_readfirstlane_b32 {s(sw)}, v1")
p(f"s_lshl_b32 {s(sW)}, s2, 3")
p("v_lshlrev_b32 v2, 4, v0")
p(f"s_bfm_b64 {s(EX50,2)}, 50, 0")
p(f"s_add_u32 {s(sW)}, {s(sW)}, {s(sw)}")
p(f"s_mul_i32 {s(sT0)}, {s(sW)}, 800")
p(f"s_mul_i32 {s(sLB)}, {s(sw)}, {REG}")
p(f"v_add_u32 v3, {s(sT0)}, v2")
p(f"v_and_b32 {v(TX+2)}, 16, v0")
p(f"v_lshlrev_b32 {v(TX)}, 1, {v(TX+2)}")
p(f"v_xor_b32 {v(TX)}, {v(TX)}, v2")
p(f"s_lshl_b32 {s(sT1)}, {s(sw)}, 12")
p(f"s_add_u32 m0, {s(sLB)}, {STG}")
p(f"s_mov_b64 exec, {s(EX50,2)}")
p("s_waitcnt lgkmcnt(0)")
if STAMP:
    p("s_mov_b64 exec, -1")
    p("v_mov_b32 v254, 0")
    p("v_writelane_b32 v254, s98, 0")
    p("v_writelane_b32 v254, s96, 32")
    nstamp[0] = 1
    stamp()
    p(f"s_mov_b64 exec, {s(EX50,2)}")
p(f"global_load_dwordx4 {v(MSK,4)}, v3, s[8:9] {NTM}")
p("s_mov_b64 exec, -1")
p(f"s_add_u32 s10, s10, {s(sT1)}")
p("s_addc_u32 s11, s11, 0")
p(f"v_xor_b32 {v(TX+1)}, 64, {v(TX)}")
for j in range(4):
    p(f"global_load_lds_dwordx4 {v(TX+(j&1))}, s[10:11] offset:{j*1024}")
p(f"s_load_dword {s(sB2)}, s[16:17], 0")
p("v_lshrrev_b32 v1, 4, v0")
p(f"v_and_b32 {v(VOUT)}, 0xf0, v2")
p(f"v_lshl_add_u32 {v(VOUT)}, v1, 19, {v(VOUT)}")
p(f"s_lshl_b32 {s(sT0)}, {s(sW)}, 8")
p(f"s_add_u32 m0, {s(sLB)}, {TB}")
p(f"v_add_u32 {v(VOUT)}, {s(sT0)}, {v(VOUT)}")
p(f"s_and_b32 {s(sT1)}, {s(sw)}, 3")
p(f"global_load_lds_dwordx4 {v(VOUT)}, s[4:5] {NTM}")
B1R, W2R = CD + 28, DG
p(f"s_lshl_b32 {s(sT0)}, {s(sT1)}, 5")
p(f"v_lshl_add_u32 {v(TX+3)}, v1, 3, {s(sT0)}")
p(f"global_load_dwordx2 {v(B1R,2)}, {v(TX+3)}, s[12:13]")
p(f"s_mov_b64 exec, {s(EX50,2)}")
for j in range(1, 4):
    p(f"v_add_u32 v3, {4096*400}, v3")
    p(f"global_load_dwordx4 {v(MSK+4*j,4)}, v3, s[8:9] {NTM}")
p("s_mov_b64 exec, -1")
p(f"v_and_b32 {v(TX+4)}, 3, v0")
p(f"v_lshlrev_b32 {v(TX+3)}, 3, v1")
p(f"v_lshl_add_u32 {v(TX+3)}, {v(TX+4)}, 5, {v(TX+3)}")
p(f"global_load_dwordx2 {v(W2R,2)}, {v(TX+3)}, s[14:15]")
NVM = 11
stamp()
p(f"s_mul_i32 {s(sT0)}, {s(sW)}, 51200")
p(f"s_add_u32 s6, s6, {s(sT0)}")
p("s_addc_u32 s7, s7, 0")
srd(SH, 6, 200, stride=128)
p(f"s_movk_i32 {s(sDL)}, {DLT0}")
p(f"v_mov_b32 {v(ZB)}, -1")
p(f"v_mov_b32 {v(ZB+1)}, -1")
p(f"v_mov_b32 {v(ZB+2)}, -1")
p(f"v_mov_b32 {v(ZB+3)}, -1")
p(f"s_add_u32 {s(sT0)}, {s(sLB)}, {LI}")
p(f"v_add_u32 {v(ZB+4)}, {s(sT0)}, v2")
p(f"ds_write_b128 {v(ZB+4)}, {v(ZB,4)}")
p(f"ds_write_b128 {v(ZB+4)}, {v(ZB,4)} offset:1024")
p(f"s_add_u32 {s(sBASE)}, {s(sLB)}, {L0}")
p(f"v_lshrrev_b32 {v(RDL)}, 3, v0")
p(f"v_add_u32 {v(RDL)}, {s(sBASE)}, {v(RDL)}")
p(f"v_lshl_add_u32 {v(RDM)}, v1, 2, {s(sT0)}")
p(f"v_and_b32 {v(VA+1)}, 0x70, v2")
p(f"v_lshlrev_b32 {v(TX+2)}, 2, {v(TX+2)}")
p(f"v_xor_b32 {v(VA+1)}, {v(VA+1)}, {v(TX+2)}")
p(f"v_mov_b32 {v(VB+1)}, {v(VA+1)}")
p(f"v_cmp_lt_u32 vcc, 24, v0")
p(f"v_mov_b32 {v(OACC)}, 0")
p(f"v_mov_b32 {v(SACC)}, 0")
p(f"v_cndmask_b32 {v(HI)}, 0, 1, vcc")
p(f"v_mul_u32_u24 {v(CV+1)}, 25, {v(HI)}")
p(f"v_sub_u32 {v(CV+1)}, v0, {v(CV+1)}")
p(f"v_mul_u32_u24 {v(CV+1)}, 0x80008, {v(CV+1)}")
p(f"v_add_u32 {v(CV)}, 0x10000, {v(CV+1)}")
p(f"v_add_u32 {v(CV+2)}, 0x50004, {v(CV+1)}")
p(f"v_add_u32 {v(CV+3)}, 0x70006, {v(CV+1)}")
p(f"v_add_u32 {v(CV+1)}, 0x30002, {v(CV+1)}")
p(f"s_mov_b64 {s(F,2)}, 0")
p(f"s_mov_b64 {s(F+2,2)}, 0")
p(f"s_mov_b32 {s(sK)}, {KB-1}")
p(f"s_mov_b32 {s(sC)}, {CNEG:#x}")
n_, r_, c_ = TX + 5, TX + 6, TX + 4
p(f"v_and_b32 {v(n_)}, 15, v0")
p(f"v_bfe_u32 {v(r_)}, v0, 2, 2")
p(f"v_and_b32 {v(TX)}, 8, v0")
p(f"v_lshlrev_b32 {v(TX)}, 2, {v(TX)}")
p(f"v_lshl_add_u32 {v(TX)}, {v(n_)}, 7, {v(TX)}")
p(f"v_add_u32 {v(TX)}, {s(sLB)}, {v(TX)}")
p(f"v_and_b32 {v(TX+1)}, 2, v0")
p(f"v_lshlrev_b32 {v(TX+2)}, 1, {v(TX+1)}")
p(f"v_xor_b32 {v(TX+2)}, {v(TX+2)}, v1")
p(f"v_lshl_add_u32 {v(RDB0)}, {v(TX+2)}, 4, {v(TX)}")
p(f"v_xor_b32 {v(TX+2)}, 4, {v(TX+2)}")
p(f"v_lshl_add_u32 {v(RDB1)}, {v(TX+2)}, 4, {v(TX)}")
X0 = TX + 7
p(f"v_lshlrev_b32 {v(X0)}, 3, {v(c_)}")
p(f"v_lshl_add_u32 {v(X0)}, {v(r_)}, 7, {v(X0)}")
p(f"v_and_b32 {v(TX)}, 8, v0")
p(f"v_lshlrev_b32 {v(TX+1)}, 3, {v(TX)}")
p(f"v_lshl_add_u32 {v(TX+2)}, v1, 5, {v(X0)}")
p(f"v_xor_b32 {v(TX+2)}, {v(TX+2)}, {v(TX+1)}")
p(f"v_add_u32 {v(RDT)}, {s(sLB)}, {v(TX+2)}")
SA, SC_, SB_ = CA + 60, CA + 61, CA + 62
p(f"v_lshlrev_b32 {v(TX)}, 2, {v(TX)}")
p(f"v_xor_b32 {v(X0)}, {v(X0)}, {v(TX)}")
p(f"v_and_b32 {v(TX)}, 16, v0")
p(f"v_lshlrev_b32 {v(TX)}, 2, {v(TX)}")
p(f"v_xor_b32 {v(X0)}, {v(X0)}, {v(TX)}")
p(f"v_lshl_add_u32 {v(X0)}, v1, 10, {v(X0)}")
p(f"s_lshl_b32 {s(sT0)}, {s(sT1)}, 5")
p(f"v_xor_b32 {v(SB_)}, {s(sT0)}, {v(X0)}")
p(f"v_add_u32 {v(SB_)}, {STG+2*REG}, {v(SB_)}")
p(f"s_lshr_b32 {s(sT0)}, {s(sw)}, 1")
p(f"s_lshl_b32 {s(sT0)}, {s(sT0)}, 5")
p(f"v_xor_b32 {v(SA)}, {s(sT0)}, {v(X0)}")
p(f"s_and_b32 {s(sT0)}, {s(sw)}, 1")
p(f"s_mul_i32 {s(sT0)}, {s(sT0)}, {REG}")
p(f"s_add_u32 {s(sT0)}, {s(sT0)}, {STG}")
p(f"v_add_u32 {v(SA)}, {s(sT0)}, {v(SA)}")
p(f"v_add_u32 {v(SC_)}, {4*REG}, {v(SA)}")
p(f"s_add_u32 {s(sT0)}, {s(sLB)}, {TB}")
p(f"v_lshl_add_u32 {v(TADR)}, {v(c_)}, 1, {s(sT0)}")
p(f"v_lshl_add_u32 {v(TADR)}, {v(r_)}, 4, {v(TADR)}")
p(f"v_lshl_add_u32 {v(OADR)}, v0, 1, {s(sT0)}")
p(f"s_add_u32 {s(sT0)}, {s(sLB)}, {BI}")
p(f"v_lshl_add_u32 {v(BADR)}, v1, 4, {s(sT0)}")
TBA, BWA = CA + 63, CD + 30
p(f"s_and_b32 {s(sT0)}, {s(sw)}, 4")
p(f"v_lshrrev_b32 {v(TX)}, 3, {v(n_)}")
p(f"v_add_u32 {v(TX)}, {s(sT0)}, {v(TX)}")
p(f"v_mul_u32_u24 {v(TX)}, {REG}, {v(TX)}")
p(f"v_lshl_add_u32 {v(TX)}, v1, 4, {v(TX)}")
p(f"v_and_b32 {v(TX+1)}, 7, v0")
p(f"v_lshl_add_u32 {v(TBA)}, {v(TX+1)}, 7, {v(TX)}")
p(f"v_lshl_add_u32 {v(BWA)}, {v(TX+1)}, 8, {v(TX)}")
p(f"s_lshl_b32 {s(sT0)}, {s(sT1)}, 6")
p(f"s_add_u32 {s(sT0)}, {s(sT0)}, {BI}")
p(f"v_add_u32 {v(BWA)}, {s(sT0)}, {v(BWA)}")
p(f"v_cmp_eq_u32 vcc, {v(r_)}, v1")
p(f"v_and_b32 {v(TX)}, 1, v0")
p(f"v_lshlrev_b32 {v(TX)}, 4, {v(TX)}")
p(f"v_lshlrev_b32 {v(TX)}, {v(TX)}, 1")
p(f"v_cndmask_b32 {v(TX)}, 0, {v(TX)}, vcc")
p(f"v_cmp_gt_u32 vcc, 2, {v(c_)}")
p(f"v_mov_b32 {v(ONE+1)}, 0")
p(f"v_mov_b32 {v(ONE)}, 0x3f80")
p(f"v_cndmask_b32 {v(SEL0)}, 0, {v(TX)}, vcc")
p(f"v_cmp_eq_u32 vcc, 0, {v(n_)}")
p(f"v_sub_u32 {v(SEL1)}, {v(TX)}, {v(SEL0)}")
IDN, N0M = TR, TR + 2
p(f"v_mul_u32_u24 {v(DG+2)}, 0x3f80, {v(SEL0)}")
p(f"v_cndmask_b32 {v(DG+4)}, 0, -1, vcc")
p(f"v_mul_u32_u24 {v(DG+3)}, 0x3f80, {v(SEL1)}")
IDN, N0M = DG + 2, DG + 4
if opt["prio"]:
    p(f"s_and_b32 {s(sT0)}, {s(sw)}, 3")
    p(f"s_mul_i32 {s(sT0)}, {s(sT0)}, {REG}")
    p(f"s_add_u32 {s(sT0)}, {s(sT0)}, {PRG}")
    p(f"v_mov_b32 {v(DG+5)}, {s(sT0)}")
    p(f"s_cmp_ge_u32 {s(sw)}, 4")
    p(f"s_cselect_b32 {s(sSGN)}, -1, 0")
    p(f"ds_write_b32 {v(DG+5)}, {v(ONE+1)}")

stamp()
p(f"s_waitcnt vmcnt({NVM-1}) lgkmcnt(0)")
stamp()
compact(0)
NE = D - 2
PLAN = [int(x) for x in str(opt.get("plan", "2111"))]
assert sum(PLAN) == NE
IDX = ZB


def idx_reads():
    for t in range(D):
        p(f"ds_read_u8 {v(IDX+2*t)}, {v(RDL)} offset:{t*16}")
        p(f"ds_read_u8 {v(IDX+2*t+1)}, {v(RDL)} offset:{t*16+8}")


def tiles(t0, t1, bits, tag):
    for t in range(t0, t1):
        if t > 0:
            p(f"s_bitcmp0_b64 {s(bits,2)}, {t}")
            p(f"s_cbranch_scc1 L_noadv{tag}{t}")
            adv_hist()
            p(f"L_noadv{tag}{t}:")
        p(m0_half(t, 0))
        p(f"v_mov_b32 {v(VA)}, {v(IDX+2*t)}")
        p(f"v_mov_b32 {v(VB)}, {v(IDX+2*t+1)}")
        p(dma_half(0))
        p(m0_half(t, 1))
        p("s_nop 0")
        p(dma_half(1))


issued = [0]


def early(n):
    if n == 0:
        return
    t0 = issued[0]
    p(f"s_cmp_eq_u32 {s(sEARLY)}, 0")
    p(f"s_cbranch_scc1 L_skip{t0}")
    tiles(t0, t0 + n, F, "e")
    p(f"L_skip{t0}:")
    issued[0] += n


p(f"s_add_u32 {s(sT0)}, {s(sLB)}, {L0+16*D}")
p(f"s_cmp_ge_u32 {s(sBASE)}, {s(sT0)}")
p(f"s_cselect_b32 {s(sEARLY)}, 1, 0")
p("s_cbranch_scc1 L_early")
p("s_waitcnt vmcnt(0)")
p("L_early:")
idx_reads()
p("s_waitcnt lgkmcnt(0)")
early(PLAN[0])
stamp()
p(f"s_waitcnt vmcnt({4+2*issued[0]})")
p("s_barrier")
stamp()
RWA, RWC, RWD, RBB, RBC, TP, DB, DA, DD = CA, CA + 4, CA + 8, CA + 12, CA + 20, CA + 28, CA + 44, CA + 52, CD
for (dst, base) in ((RBB, 0), (RBC, 2)):
    for ks in range(2):
        for u in range(2):
            p(f"ds_read_b64_tr_b16 {v(dst+4*ks+2*u,2)}, {v(SB_)} offset:{(base+ks)*REG+u*512}")
for j in range(2):
    for ks in range(2):
        p(f"ds_read_b128 {v(TP+8*j+4*ks,4)}, {v(TBA)} offset:{TB+j*2*REG+ks*64}")
for u in range(2):
    p(f"ds_read_b64_tr_b16 {v(RWA+2*u,2)}, {v(SA)} offset:{u*512}")
    p(f"ds_read_b64_tr_b16 {v(RWC+2*u,2)}, {v(SC_)} offset:{u*512}")
    p(f"ds_read_b64_tr_b16 {v(RWD+2*u,2)}, {v(SC_)} offset:{2*REG+u*512}")
for j in range(2):
    p(f"v_lshlrev_b32 {v(DB+2*j)}, 16, {v(B1R+j)}")
    p(f"v_and_b32 {v(DB+2*j+1)}, 0xffff0000, {v(B1R+j)}")
early(PLAN[1])
p(f"s_waitcnt vmcnt({3+2*issued[0]})")
compact(1)
early(PLAN[2])
p("s_waitcnt lgkmcnt(0)")
for j in range(8):
    p(f"v_xor_b32 {v(RBC+j)}, 0x80008000, {v(RBC+j)}")
for u in range(2):
    p(f"v_mfma_f32_16x16x16_bf16 {v(DA+4*u,4)}, {v(IDN,2)}, {v(RWA+2*u,2)}, 0")
    p(f"v_mfma_f32_16x16x16_bf16 {v(DA+4*u,4)}, {v(IDN,2)}, {v(RWC+2*u,2)}, {v(DA+4*u,4)}")
    p(f"v_mfma_f32_16x16x16_bf16 {v(DD+4*u,4)}, {v(IDN,2)}, {v(RWD+2*u,2)}, 0")
for j in (1, 0):
    first = True
    for (src) in (RBB, RBC):
        for ks in range(2):
            c = v(DB, 4) if first else v(DB + 4 * j, 4)
            p(f"v_mfma_f32_16x16x32_bf16 {v(DB+4*j,4)}, {v(src+4*ks,4)}, {v(TP+8*j+4*ks,4)}, {c}")
            first = False
for j in range(8):
    p(f"v_mul_f32 {v(DA+j)}, {s(sC)}, {v(DA+j)}")
for j in range(8):
    p(f"v_mul_f32 {v(DD+j)}, {s(sC)}, {v(DD+j)}")
p(f"s_add_u32 {s(sT0)}, {s(sLB)}, {STG}")
p(f"v_add_u32 v3, {s(sT0)}, v2")
for j in range(4):
    p(f"v_cvt_pk_bf16_f32 {v(DD+j)}, {v(DD+2*j)}, {v(DD+2*j+1)}")
for j in range(8):
    p(f"v_mul_f32 {v(DB+j)}, {s(sC)}, {v(DB+j)}")
early(PLAN[3])
p("s_barrier")
p(f"ds_write_b128 v3, {v(DA,4)}")
p(f"ds_write_b128 v3, {v(DA+4,4)} offset:1024")
p(f"ds_write_b128 v3, {v(DD,4)} offset:2048")
p(f"ds_write_b128 {v(BWA)}, {v(DB,4)}")
p(f"ds_write_b128 {v(BWA)}, {v(DB+4,4)} offset:{2*REG}")
p(f"v_add_u32 v3, {STG}, v2")
p(f"v_add_u32 {v(TX)}, {4*REG}, v3")
p("s_waitcnt lgkmcnt(0)")
p("s_barrier")
stamp()
for w_ in range(8):
    a = "v3" if w_ < 4 else v(TX)
    p(f"ds_read_b128 {v(CA+8*w_,4)}, {a} offset:{(w_&3)*REG}")
    p(f"ds_read_b128 {v(CA+8*w_+4,4)}, {a} offset:{(w_&3)*REG+1024}")
    p(f"ds_read_b128 {v(CD+4*w_,4)}, {a} offset:{(w_&3)*REG+2048}")
for x in range(4):
    p(f"ds_read_u16 {v(TR+x)}, {v(TADR)} offset:{(x>>1)*64+(x&1)*8}")
p(f"s_waitcnt vmcnt({2*NE})")
compact(2)
p("s_waitcnt lgkmcnt(0)")
p("s_barrier")
stamp()
early(2)
compact(3)
p(f"s_mov_b32 {s(sT0)}, {~0x3f803f80 & 0xffffffff:#x}")
p(f"v_and_or_b32 {v(OACC)}, {v(OACC)}, {s(sT0)}, {v(SACC)}")
p(f"v_cmp_ne_u32 {s(NB,2)}, 0, {v(OACC)}")
if opt["prio"]:
    p(f"s_sub_u32 {s(sT0)}, {s(sBASE)}, {s(sLB)}")
    p(f"s_sub_u32 {s(sT0)}, {s(sT0)}, {L0}")
    p(f"s_lshr_b32 {s(sT0)}, {s(sT0)}, 3")
    p(f"s_xor_b32 {s(sT0)}, {s(sT0)}, {s(sSGN)}")
    p(f"s_sub_u32 {s(sT0)}, {s(sT0)}, {s(sSGN)}")
    p(f"s_xor_b32 {s(sT1)}, {-D & 0xffffffff:#x}, {s(sSGN)}")
    p(f"s_sub_u32 {s(sT1)}, {s(sT1)}, {s(sSGN)}")
    p(f"v_mov_b32 {v(PADR)}, {v(DG+5)}")
    p(f"v_mov_b32 {v(PRV)}, {s(sT0)}")
    p(f"v_mov_b32 {v(PINC)}, {s(sT1)}")
    p("s_mov_b64 exec, 1")
    p(f"ds_add_u32 {v(PADR)}, {v(PRV)}")
    p("s_mov_b64 exec, -1")
p(f"s_cmp_eq_u32 {s(sEARLY)}, 1")
p("s_cbranch_scc1 L_nolate")
idx_reads()
p("s_waitcnt lgkmcnt(0)")
tiles(0, D, G, "l")
p("L_nolate:")
for hb in range(4):
    for j in range(2):
        p(f"v_and_b32_dpp {v(W2+2*hb+j)}, {v(W2R+j)}, {v(N0M)} quad_perm:[{hb},{hb},{hb},{hb}] row_mask:0xf bank_mask:0xf")
p(f"s_lshl_b32 {s(sB2)}, {s(sB2)}, 16")
for r in range(4):
    p(f"v_and_b32 {v(B2+r)}, {s(sB2)}, {v(N0M)}")
wbuild()
for j in range(8):
    p(f"v_mov_b32 {v(XT+j)}, 0")
for j in range(4):
    p(f"v_mov_b32 {v(S+j)}, 0")
    p(f"v_mov_b32 {v(ACC+j)}, 0")
BIGADD = "AA" in SCHED[opt["sched"]].split()
if BIGADD:
    p("v_cmp_gt_u32 vcc, 32, v0")
    p(f"v_cndmask_b32 {v(ONE)}, 0, {v(ONE)}, vcc")
stamp()
p(f"s_waitcnt vmcnt({2*(D-1)})")
stamp(33)
read_xb(0, 0)
read_xb(0, 1)
p("s_waitcnt lgkmcnt(0)")
for j in range(8):
    p(g1(j))
p(f"s_waitcnt vmcnt({2*(D-2)})")
read_xb(1, 0)
read_xb(1, 1)
p(f"s_cmp_lg_u64 {s(NB,2)}, 0")
p("s_cbranch_scc0 Lf_mid")
p(f"s_mul_i32 {s(sT0)}, {s(sW)}, 800")
p(f"s_add_u32 s8, s8, {s(sT0)}")
p("s_addc_u32 s9, s9, 0")
srd(SM, 8, 400)
p(f"s_movk_i32 {s(sMDL)}, {MDL0}")
p("s_branch Ls_mid")
mainloop("f", False)
p("L_store:")
p(f"s_add_u32 {s(sT0)}, {s(sLB)}, {TB}")
p(f"v_lshl_add_u32 v1, v0, 4, {s(sT0)}")
p("s_waitcnt lgkmcnt(0)")
p(f"ds_read_b128 {v(ZB,4)}, v1")
p("s_waitcnt lgkmcnt(0)")
p(f"global_store_dwordx4 {v(VOUT)}, {v(ZB,4)}, s[18:19] {NTO}")
if STAMP:
    stamp(34)
    p(f"v_writelane_b32 v254, {s(sBASE)}, 15")
    p("s_getreg_b32 s96, hwreg(HW_REG_XCC_ID)")
    p("v_writelane_b32 v254, s96, 14")
    p("s_getreg_b32 s96, hwreg(HW_REG_HW_ID)")
    p("v_writelane_b32 v254, s96, 13")
    srd(SM, 100, 2048 * 256)
    p(f"s_lshl_b32 {s(sT0)}, {s(sW)}, 8")
    p(f"v_lshlrev_b32 v1, 2, v0")
    p(f"buffer_store_dword v254, v1, {s(SM,4)}, {s(sT0)} offen")
p("L_end:")
p("s_endpgm")
mainloop("s", True)

nn = p.fix_hazards(verbose=opt["verbose"])
hdr = open(__file__.rsplit("/", 1)[0] + "/../standalone__sequential_behavior_din__recsys.s.ref").read().split("\n")
head = [l for l in hdr if l.startswith(";") and "@launch" not in l and "Override" not in l and "grid=ceil" not in l]
out = "\n".join(head) + f"""
; @launch grid=({NWG},1,1) block=({WPB*64},1,1) lds={WPB*REG}
; generated by gen/gen.py {' '.join(sys.argv[1:])}
.amdgcn_target "amdgcn-amd-amdhsa--gfx950"
.text
.globl {NAME}
.p2align 8
.type {NAME},@function
""" + p.text() + f""".section .rodata,"a"
.p2align 6
.amdhsa_kernel {NAME}
  .amdhsa_next_free_vgpr 256
  .amdhsa_next_free_sgpr 102
  .amdhsa_accum_offset 256
  .amdhsa_group_segment_fixed_size 0
  .amdhsa_kernarg_size 80
  .amdhsa_user_sgpr_count 2
  .amdhsa_user_sgpr_kernarg_segment_ptr 1
  .amdhsa_system_sgpr_workgroup_id_x 1
.end_amdhsa_kernel
"""
sys.stdout.write(out)
```

```python
import re

TRANS = ("v_exp_f32", "v_rcp_f32", "v_log_f32", "v_rsq_f32", "v_sqrt_f32", "v_sin_f32", "v_cos_f32",
         "v_exp_f16", "v_rcp_f16")


def regs_of(tok):
    tok = tok.strip()
    neg = tok.lstrip("-|").rstrip("|")
    m = re.fullmatch(r"([vsa])(\d+)", neg)
    if m:
        return [(m.group(1), int(m.group(2)))]
    m = re.fullmatch(r"([vsa])\[(\d+):(\d+)\]", neg)
    if m:
        return [(m.group(1), i) for i in range(int(m.group(2)), int(m.group(3)) + 1)]
    if neg == "vcc":
        return [("s", 106), ("s", 107)]
    if neg == "exec":
        return [("s", 126), ("s", 127)]
    if neg == "m0":
        return [("s", 124)]
    return []


def mfma_passes(mn):
    if "4x4x4" in mn:
        return 2
    if "16x16x32" in mn or "16x16x16" in mn:
        return 4
    if "32x32x16" in mn or "32x32x8" in mn or "16x16x4_4b" in mn:
        return 8
    raise ValueError(mn)


class Ins:
    def __init__(self, text):
        self.text = text.strip()
        self.label = None
        self.cls = None
        self.w = set()
        self.r = set()
        self.srcA = self.srcB = self.srcC = self.dst = ()
        self.target = None
        self.states = 1
        t = self.text.split(";")[0].strip()
        if t.endswith(":"):
            self.label = t[:-1]
            self.cls = "label"
            self.states = 0
            return
        if t == "" or t.startswith("."):
            self.cls = "dir"
            self.states = 0
            return
        parts = t.split(None, 1)
        mn = self.mn = parts[0]
        rest = parts[1] if len(parts) > 1 else ""
        ops, depth, cur = [], 0, ""
        for ch in rest:
            if ch == "[":
                depth += 1
            if ch == "]":
                depth -= 1
            if ch == "," and depth == 0:
                ops.append(cur.strip())
                cur = ""
            else:
                cur += ch
        if cur.strip():
            ops.append(cur.strip())
        mods = ""
        if ops:
            sp = ops[-1].split(None, 1)
            if len(sp) > 1:
                ops[-1], mods = sp[0], sp[1]
        self.ops, self.mods = ops, mods
        R = lambda k: regs_of(ops[k]) if k < len(ops) else []
        if mn.startswith("v_mfma"):
            self.cls = "mfma"
            self.passes = mfma_passes(mn)
            self.dst, self.srcA, self.srcB, self.srcC = map(tuple, (R(0), R(1), R(2), R(3)))
            self.w = set(self.dst)
            self.r = set(self.srcA) | set(self.srcB) | set(self.srcC)
        elif mn.startswith("v_"):
            self.cls = "valu"
            self.trans = any(mn.startswith(x) for x in TRANS)
            if mn.startswith("v_cmp"):
                self.w = set(R(0))
                self.r = set(x for k in range(1, len(ops)) for x in R(k))
            elif mn.startswith(("v_add_co", "v_addc_co", "v_sub_co", "v_subb_co")):
                self.w = set(R(0)) | set(R(1))
                self.r = set(x for k in range(2, len(ops)) for x in R(k))
            else:
                self.w = set(R(0))
                self.r = set(x for k in range(1, len(ops)) for x in R(k))
                if mn.startswith(("v_fmac", "v_permlane", "v_writelane")):
                    self.r |= set(R(0))
                if mn.startswith("v_permlane"):
                    self.w |= set(R(1))
            self.lane_read = mn.startswith(("v_readfirstlane", "v_readlane"))
            self.dpp = "_dpp" in mn
        elif mn.startswith("ds_"):
            self.cls = "ds"
            if "_rtn" in mn:
                self.w = set(R(0))
                self.r = set(x for k in range(1, len(ops)) for x in R(k))
            elif mn.startswith("ds_read"):
                self.w = set(R(0))
                self.r = set(R(1))
                if "d16" in mn:
                    self.r |= set(R(0))
            else:
                self.r = set(x for k in range(len(ops)) for x in R(k))
        elif mn.startswith("global_"):
            self.cls = "vmem"
            self.lds = "_lds_" in mn
            if self.lds:
                self.r = set(x for k in range(len(ops)) for x in R(k))
            elif mn.startswith("global_load"):
                self.w = set(R(0))
                self.r = set(x for k in range(1, len(ops)) for x in R(k))
            else:
                self.r = set(x for k in range(len(ops)) for x in R(k))
                self.store_data = set(R(1)) if ("x4" in mn or "x3" in mn) else set()
        elif mn.startswith("buffer_"):
            self.cls = "vmem"
            self.lds = bool(re.search(r"\blds\b", mods))
            if self.lds:
                self.r = set(x for k in range(len(ops)) for x in R(k))
            elif mn.startswith("buffer_load"):
                self.w = set(R(0))
                self.r = set(x for k in range(1, len(ops)) for x in R(k))
            else:
                self.r = set(x for k in range(len(ops)) for x in R(k))
                self.store_data = set(R(0)) if ("x4" in mn or "x3" in mn) else set()
        elif mn.startswith("s_"):
            self.cls = "salu"
            if mn == "s_nop":
                self.states = int(ops[0], 0) + 1
            elif mn.startswith(("s_cbranch", "s_branch")):
                self.cls = "branch"
                self.target = ops[0]
            elif mn == "s_call_b64":
                self.cls = "call"
                self.target = ops[1]
                self.w = set(R(0))
            elif mn == "s_setpc_b64":
                self.cls = "ret"
                self.r = set(R(0))
                self.target = re.search(r"ret=(\w+)", self.text).group(1)
            elif mn == "s_endpgm":
                self.cls = "end"
            elif mn.startswith(("s_cmp", "s_bitcmp", "s_waitcnt", "s_barrier", "s_setprio", "s_sleep")):
                self.r = set(x for k in range(len(ops)) for x in R(k))
            else:
                self.w = set(R(0))
                self.r = set(x for k in range(1, len(ops)) for x in R(k))
                if "saveexec" in mn:
                    self.w |= {("s", 126), ("s", 127)}
        else:
            raise ValueError("unknown instruction: " + text)


def need(p, c):
    n = 0
    vw = {x for x in p.w if x[0] in "va"}
    sw = {x for x in p.w if x[0] == "s"}
    if p.cls == "valu":
        if c.cls == "valu" and sw & c.r:
            n = max(n, 4 if getattr(c, "lane_read", False) and c.mn.startswith("v_readlane") else 2)
        if c.cls == "vmem" and sw & c.r:
            n = max(n, 5)
        if c.cls == "valu" and c.lane_read and vw & c.r:
            n = max(n, 1)
        if c.cls == "valu" and (c.dpp or c.mn.startswith("v_permlane")) and vw & c.r:
            n = max(n, 2)
        if p.trans and c.cls == "valu" and not c.trans and vw & c.r:
            n = max(n, 1)
        if "sdwa" in p.mn and not p.mn.startswith("v_cmp") and c.cls == "valu" and vw & (c.r | c.w):
            n = max(n, 1)
        if c.cls == "mfma" and vw & c.r:
            n = max(n, 2)
        if c.cls in ("salu",) and sw & c.r:
            n = max(n, 1)
    if p.cls == "mfma":
        k = {2: 0, 4: 1, 8: 2, 16: 3}[p.passes]
        if c.cls == "mfma":
            if set(c.srcC) & vw:
                if c.srcC == p.dst and c.passes == p.passes:
                    n = max(n, [2, 0, 0, 0][k])
                else:
                    n = max(n, [4, 6, 10, 18][k])
            if (set(c.srcA) | set(c.srcB)) & vw:
                n = max(n, [5, 8, 12, 20][k])
            if set(c.dst) & vw and not (c.srcC == p.dst and c.passes == p.passes):
                n = max(n, [4, 6, 10, 18][k])
        elif c.cls in ("valu", "ds", "vmem"):
            if vw & (c.r | c.w):
                n = max(n, [5, 8, 12, 20][k])
            if c.cls == "valu" and set(p.srcC) & c.w:
                n = max(n, [1, 3, 7, 15][k])
    if p.cls == "salu" and ("s", 124) in sw and c.cls == "vmem" and c.lds:
        n = max(n, 1)
    if p.cls == "vmem" and getattr(p, "store_data", None) and p.store_data & c.w:
        n = max(n, 2)
    return n


class Prog:
    def __init__(self):
        self.ins = []

    def __call__(self, text):
        for line in text.split("\n"):
            if line.strip():
                self.ins.append(Ins(line))

    def preds(self):
        lab = {i.label: k for k, i in enumerate(self.ins) if i.label}
        pr = [[] for _ in self.ins]
        for k, i in enumerate(self.ins):
            if i.cls == "call":
                pr[lab[i.target]].append(k)
                continue
            if i.cls == "ret":
                for j, c in enumerate(self.ins):
                    if c.cls == "call" and c.target == i.target:
                        pr[j + 1].append(k)
                continue
            if i.cls == "branch":
                pr[lab[i.target]].append(k)
                if i.mn == "s_branch":
                    continue
            if i.cls == "end":
                continue
            if k + 1 < len(self.ins):
                pr[k + 1].append(k)
        return pr

    def shortfall(self, k, pr):
        c = self.ins[k]
        if c.cls in ("label", "dir"):
            return 0, None
        worst, who = 0, None
        stack = [(p, 0) for p in pr[k]]
        seen = {}
        while stack:
            j, dist = stack.pop()
            if dist >= 21 or seen.get(j, 99) <= dist:
                continue
            seen[j] = dist
            p = self.ins[j]
            if p.cls not in ("label", "dir"):
                n = need(p, c)
                if n - dist > worst:
                    worst, who = n - dist, p
            for q in pr[j]:
                stack.append((q, dist + p.states))
        return worst, who

    def fix_hazards(self, verbose=False):
        total = 0
        k = 0
        pr = self.preds()
        while k < len(self.ins):
            s, who = self.shortfall(k, pr)
            if s > 0:
                if verbose:
                    print(f"; hazard: +{s} before [{self.ins[k].text}] after [{who.text}]")
                while s > 0:
                    n = min(s, 16)
                    self.ins.insert(k, Ins(f"s_nop {n-1}"))
                    k += 1
                    s -= n
                    total += 1
                pr = self.preds()
                k = max(0, k - 1)
            k += 1
        pr = self.preds()
        for k in range(len(self.ins)):
            s, who = self.shortfall(k, pr)
            assert s == 0, (self.ins[k].text, who.text)
        return total

    def text(self):
        out = []
        for i in self.ins:
            out.append(i.text if i.cls in ("label", "dir") else "    " + i.text)
        return "\n".join(out) + "\n"


def check_waits(prog, force=()):
    ins = prog.ins
    lab = {i.label: k for k, i in enumerate(ins) if i.label}
    succ = [[] for _ in ins]
    for k, i in enumerate(ins):
        if i.cls == "branch":
            f = [t for pre, t in force if i.target.startswith(pre)]
            if not f or f[0]:
                succ[k].append(lab[i.target])
            if i.mn == "s_branch" or (f and f[0]):
                continue
        if i.cls == "end":
            continue
        if k + 1 < len(ins):
            succ[k].append(k + 1)
    state = {(0, None): {}}
    work = [(0, None)]
    errs = {}
    while work:
        k, ret = work.pop()
        st = dict(state[(k, ret)])
        i = ins[k]
        if i.cls not in ("label", "dir"):
            touched = (i.r | i.w)
            for r in touched:
                if r in st:
                    same_queue = r in i.w and r not in i.r and ((i.cls == "ds" and st[r][0] == "lgkm") or (i.cls == "vmem" and st[r][0] == "vm"))
                    if not same_queue:
                        errs[k] = (i.text, r)
            if i.mn == "s_waitcnt":
                txt = i.text.split(";")[0]
                for name, cnt in (("vmcnt", "vm"), ("lgkmcnt", "lgkm")):
                    m = re.search(name + r"\((\d+)\)", txt)
                    if m:
                        n = int(m.group(1))
                        st = {r: a for r, a in st.items() if not ((a[0] == cnt and a[1] >= n) or (cnt == "lgkm" and a[0] == "smem" and n == 0))}
            cnt = None
            if i.cls == "ds":
                cnt = "lgkm"
            elif i.cls == "vmem":
                cnt = "vm"
            elif i.mn.startswith(("s_load", "s_memtime", "s_memrealtime")):
                cnt = "smem"
            if cnt == "smem":
                st = {r: (("smem", 0) if a[0] == "lgkm" else a) for r, a in st.items()}
                for r in i.w:
                    st[r] = ("smem", 0)
            elif cnt:
                st = {r: ((a[0], min(a[1] + 1, 70)) if a[0] == cnt else a) for r, a in st.items()}
                for r in i.w:
                    st[r] = (cnt, 0)
        nxt = [(n, ret) for n in succ[k]]
        if i.cls == "call":
            nxt = [(lab[i.target], k + 1)]
        elif i.cls == "ret":
            nxt = [(ret, None)]
        for n in nxt:
            if n not in state:
                state[n] = st
                work.append(n)
            else:
                old = state[n]
                new = dict(old)
                ch = False
                for r, a in st.items():
                    if r not in new or new[r][0] != a[0] and a[0] == "smem" or (new[r][0] == a[0] and a[1] < new[r][1]):
                        new[r] = a
                        ch = True
                if ch:
                    state[n] = new
                    work.append(n)
    return [errs[k] for k in sorted(errs)]
```

```python
import sys
from asmlib import Prog, check_waits

opt = dict(sub=0, map=0, ord=0, place=900022222, il=1, D=4, plan=2000, nt="nt", ntm="nt", nto="", verbose=0, prio=1, sched="d")
for a in sys.argv[1:]:
    k, v = a.split("=", 1)
    opt[k] = int(v) if v.lstrip("-").isdigit() else v.replace("+", " ")
D = opt["D"]
NT, NTM, NTO = opt["nt"], opt["ntm"], opt["nto"]
STAMP = opt.get("stamp", 0)

NAME = "standalone__sequential_behavior_din__recsys_kernel"
NWG, WPB = 256, 8
NWAVE = NWG * WPB
KB = 16384 // NWAVE
REG = 20480
SLOT = 2080
TB = D * SLOT
BI = TB + 1024
BSTR = 272
XCH = BI + 8 * BSTR
PRG = XCH + 3072
L0 = 18432
LI = L0 - 16
assert PRG + 16 <= LI and LI + 2048 <= REG
STG = (D - 2) * SLOT
CNEG = 0xBFB8AA3B
PSTR, WGSTR = (16, 64) if opt["map"] & 1 else (4096, 16)
LGP = PSTR.bit_length() - 1
DLT0, DLT1 = 25600, (PSTR - 1) * 25600
MDL0, MDL1 = 400, (PSTR - 1) * 400

CA, CD, W, ZA, ZB, BIAS, XB, XT, W2, B2, S, ACC, DG, TR, ONE, VA, VB = \
    4, 68, 100, 132, 148, 164, 180, 188, 196, 204, 208, 212, 216, 224, 228, 230, 232
RDB0, RDB1, RDT, RDL, TADR, BADR, OADR, SEL0, SEL1, VOUT, RDM = range(234, 245)
TX = 246
PRV, PADR, PINC = 1, 2, 3
MSK = W
SH, SM = 20, 24
EX50, sB2, sDL, sMDL, sSGN = 28, 30, 31, 32, 33
sLB, sW, sw = 52, 53, 54
F = G = 56
sKA, sKW = 60, 61
sBASE, sK, sT0, sT1, sT2, sT3 = 64, 65, 66, 67, 34, 35
A0 = 68
NB, P0, P1, P2 = 84, 86, 88, 90
sC, sEARLY = 92, 94
RET = 62


def v(a, n=1):
    return f"v{a}" if n == 1 else f"v[{a}:{a+n-1}]"


def s(a, n=1):
    return f"s{a}" if n == 1 else f"s[{a}:{a+n-1}]"


p = Prog()
nstamp = [0]


def stamp(cyc=None):
    if STAMP == 4:
        return
    if not STAMP or (STAMP == 3 and cyc is None):
        return
    p("s_memrealtime s[96:97]")
    p("s_waitcnt lgkmcnt(0)")
    p(f"v_writelane_b32 v254, s96, {nstamp[0]}")
    nstamp[0] += 1
    if cyc is not None:
        p("s_memtime s[96:97]")
        p("s_waitcnt lgkmcnt(0)")
        p(f"v_writelane_b32 v254, s96, {cyc}")


ncyc = [0]


def cst(name):
    if STAMP == 4:
        sys.stderr.write(f"cst{ncyc[0]} = {name}\n")
        p(f"s_memtime {s((36,38,40,42,44,46,48,50,96,98,86,88)[ncyc[0]],2)}")
        ncyc[0] += 1


def srd(dst, ptr, nrec, stride=0):
    p(f"s_mov_b32 {s(dst)}, {s(ptr)}")
    p(f"s_and_b32 {s(dst+1)}, {s(ptr+1)}, 0xffff")
    if stride:
        p(f"s_or_b32 {s(dst+1)}, {s(dst+1)}, {stride << 16:#x}")
    p(f"s_mov_b32 {s(dst+2)}, {nrec}")
    p(f"s_mov_b32 {s(dst+3)}, 0x20000")


def m0_half(slot, j):
    return f"s_add_u32 m0, {s(sLB)}, {slot*SLOT+j*1056}"


def dma_half(j):
    return f"buffer_load_dwordx4 {v((VA, VB)[j],2)}, {s(SH,4)}, 0 idxen offen {NT} lds"


def adv_hist():
    p(f"s_sub_u32 {s(sKA)}, {s(sKA)}, 1")
    p(f"s_cselect_b32 {s(sDL)}, 0, {s(sDL)}")
    p(f"s_add_u32 {s(SH)}, {s(SH)}, {s(sDL)}")
    p(f"s_addc_u32 {s(SH+1)}, {s(SH+1)}, 0")
    p(f"s_xor_b32 {s(sDL)}, {s(sDL)}, {DLT0 ^ DLT1:#x}")


R, CV, HI, OACC, SACC = ZA, ZA + 9, ZA + 13, ZA + 14, ZA + 15


def fbit(reg, k):
    p(f"s_lshr_b32 {s(sT3)}, {s(reg)}, 4")
    if 13 * (k + 1) < 64 and not opt["sub"]:
        p(f"s_bitset1_b64 {s(F,2)}, {s(sT3)}")
    else:
        p(f"s_lshl_b64 {s(P0,2)}, 1, {s(sT3)}")
        p(f"s_bitcmp1_b32 {s(reg)}, 10")
        p(f"s_cselect_b64 {s(P1,2)}, 0, {s(P0,2)}")
        p(f"s_cselect_b64 {s(P2,2)}, {s(P0,2)}, 0")
        p(f"s_or_b64 {s(F,2)}, {s(F,2)}, {s(P1,2)}")
        p(f"s_or_b64 {s(F+2,2)}, {s(F+2,2)}, {s(P2,2)}")


def compact(j):
    if not opt["sub"]:
        return compact_body(j)
    if j:
        for x in range(4):
            p(f"v_mov_b32 {v(MSK+x)}, {v(MSK+4*j+x)}")
    p(f"s_call_b64 {s(RET,2)}, L_compact")


def compact_body(j):
    m = [MSK + 4 * j + x for x in range(4)]
    p(f"s_mov_b64 exec, {s(EX50,2)}")
    for e in range(8):
        p(f"v_cmp_neq_f16_sdwa {s(A0+2*e,2)}, {v(m[e>>1])}, 0 src0_sel:WORD_{e&1} src1_sel:WORD_0")
    for x in range(4):
        p(f"v_sad_u16 {v(SACC)}, {v(m[x])}, 0, {v(SACC)}")
    p(f"v_or3_b32 {v(OACC)}, {v(m[0])}, {v(m[1])}, {v(OACC)}")
    p(f"v_or3_b32 {v(OACC)}, {v(m[2])}, {v(m[3])}, {v(OACC)}")
    p("s_mov_b64 exec, -1")
    p(f"v_mov_b32 {v(R)}, {s(sBASE)}")
    for e in range(8):
        p(f"v_mbcnt_lo_u32_b32 {v(R)}, {s(A0+2*e)}, {v(R)}")
        p(f"v_mbcnt_hi_u32_b32 {v(R)}, {s(A0+2*e+1)}, {v(R)}")
    p(f"s_add_u32 {s(sT2)}, {s(sBASE)}, 16")
    p(f"v_readlane_b32 {s(sT0)}, {v(R)}, 25")
    p(f"v_readlane_b32 {s(sT1)}, {v(R)}, 63")
    p(f"s_add_u32 {s(sBASE)}, {s(sT0)}, 15")
    p(f"s_and_b32 {s(sBASE)}, {s(sBASE)}, -16")
    p(f"s_max_u32 {s(sBASE)}, {s(sBASE)}, {s(sT2)}")
    p(f"s_sub_u32 {s(sT0)}, {s(sBASE)}, {s(sT0)}")
    p(f"v_mad_u32_u24 {v(R)}, {v(HI)}, {s(sT0)}, {v(R)}")
    fbit(sBASE, 2 * j)
    for e in range(8):
        p(f"v_addc_co_u32 {v(R+e+1)}, vcc, 0, {v(R+e)}, {s(A0+2*e,2)}")
    p(f"s_add_u32 {s(sT1)}, {s(sT1)}, {s(sT0)}")
    p(f"s_add_u32 {s(sT1)}, {s(sT1)}, 15")
    p(f"s_and_b32 {s(sT1)}, {s(sT1)}, -16")
    p(f"s_add_u32 {s(sBASE)}, {s(sBASE)}, 16")
    p(f"s_max_u32 {s(sBASE)}, {s(sBASE)}, {s(sT1)}")
    for e in range(8):
        p(f"s_mov_b64 exec, {s(A0+2*e,2)}")
        p(f"ds_write_b8{'_d16_hi' if e&1 else ''} {v(R+e)}, {v(CV+(e>>1))}")
    p("s_mov_b64 exec, -1")
    p(f"v_sub_u32 {v(R+8)}, {v(R)}, {v(R+8)}")
    p(f"s_movk_i32 {s(sT0)}, 0x3f80")
    p(f"v_mad_i32_i24 {v(SACC)}, {v(R+8)}, {s(sT0)}, {v(SACC)}")
    fbit(sBASE, 2 * j + 1)


W44 = opt.get("w44", 1)
DIAGMM = "v_mfma_f32_4x4x4_16b_bf16" if W44 else "v_mfma_f32_16x16x16_bf16"


def wbuild():
    if opt["sub"]:
        p(f"s_call_b64 {s(RET,2)}, L_wbuild")
    else:
        wbuild_body()


def wbuild_body():
    for x in range(4):
        p(f"v_mul_u32_u24 {v(DG+2*x)}, {v(TR+x)}, {v(SEL0)}")
        p(f"v_mul_u32_u24 {v(DG+2*x+1)}, {v(TR+x)}, {v(SEL1)}")
    T = [ZA, ZA + 8, TX]
    pairs = [(hb, ks) for hb in range(4) for ks in range(2)]

    def mm(j, u):
        hb, ks = pairs[j]
        blk = (hb * 2 + ks) * 2 + u
        p(f"{DIAGMM} {v(T[j%3]+4*u,4)}, {v(DG+2*(2*ks+u),2)}, {v(CD+2*blk,2)}, {v(CA+4*blk,4)}")

    def cv(j, r):
        hb, ks = pairs[j]
        p(f"v_cvt_pk_bf16_f32 {v(W+(hb*2+ks)*4+r)}, {v(T[j%3]+2*r)}, {v(T[j%3]+2*r+1)}")
    p(f"v_add_u32 {v(TADR)}, 128, {v(TADR)}")
    p(f"ds_read_b128 {v(BIAS,4)}, {v(BADR)}")
    mm(0, 0)
    p(f"ds_read_b128 {v(BIAS+4,4)}, {v(BADR)} offset:64")
    p(f"ds_read_b128 {v(BIAS+8,4)}, {v(BADR)} offset:128")
    mm(0, 1)
    p(f"ds_read_b128 {v(BIAS+12,4)}, {v(BADR)} offset:192")
    p(f"ds_read_u16 {v(TR)}, {v(TADR)}")
    mm(1, 0)
    p(f"ds_read_u16 {v(TR+1)}, {v(TADR)} offset:8")
    p(f"ds_read_u16 {v(TR+2)}, {v(TADR)} offset:64")
    mm(1, 1)
    p(f"ds_read_u16 {v(TR+3)}, {v(TADR)} offset:72")
    p(f"v_add_u32 {v(BADR)}, {BSTR}, {v(BADR)}")
    mm(2, 0)
    cv(0, 0); cv(0, 1)
    mm(2, 1)
    cv(0, 2); cv(0, 3)
    for j in range(1, 8):
        if j + 2 < 8:
            mm(j + 2, 0)
        cv(j, 0); cv(j, 1)
        if j + 2 < 8:
            mm(j + 2, 1)
        cv(j, 2); cv(j, 3)
    p("s_waitcnt lgkmcnt(0)")


def g1(j):
    hb, ks = j >> 1, j & 1
    c = v(BIAS + 4 * hb, 4) if ks == 0 else v(ZB + 4 * hb, 4)
    return f"v_mfma_f32_16x16x32_bf16 {v(ZB+4*hb,4)}, {v(W+(hb*2+ks)*4,4)}, {v(XB+4*ks,4)}, {c}"


def read_xb(slot, ks):
    p(f"ds_read_b128 {v(XB+4*ks,4)}, {v((RDB0, RDB1)[ks])} offset:{slot*SLOT}")


SCHED = {
    "a": "vm c7 x0 x1 k1 mid ia ib E1 P0 e0 e1 e2 e3 s0 s1 A0 e4 q0 t0 e5 e6 q1 t1 e7 L2 G0 e8 A1 r0 q2 t2 r1 G1 e9 q3 t3 e10 G2 "
         "r2 e11 G3 r3 c0 A2 e12 c1 G4 r4 E2 e13 G5 r5 L0 E0 m0 e14 da m1 c2 db P1 e15 G6 r6 A3 r7 G7 r8 c3 r9 B r10 k0 r11 c4 r12 c5 "
         "r13 r14 c6 r15",
    "b": "ia ib k1 mid E1 P0 e0 e1 e2 e3 e4 e5 A0 s0 s1 L2 G0 e6 q0 t0 e7 G1 e8 q1 t1 A1 r0 q2 t2 e9 G2 r1 q3 t3 e10 G3 "
         "r2 e11 r3 c0 A2 e12 G4 r4 c1 E2 e13 G5 r5 e14 E0 r6 c2 e15 L0 m0 G6 da r7 A3 m1 r8 db G7 P1 r9 c3 vm y0 y1 r10 c4 k0 r11 B r12 c5 "
         "r13 r14 r15 c6 c7",
    "c": "ia ib k1 mid E1 P0 e0 e1 e2 e3 L2 G0 e4 s0 s1 e5 G1 e6 q0 t0 e7 G2 e8 q1 t1 e9 G3 e10 q2 t2 e11 G4 e12 q3 t3 e13 G5 e14 e15 E2 AA E0 "
         "m0 L0 da m1 G6 db P1 G7 vm y0 y1 r0 r1 r2 c0 r3 r4 c1 r5 r6 c2 r7 r8 c3 r9 B r10 c4 k0 r11 r12 c5 r13 r14 r15 c6 c7",
    "d": "ia ib k1 mid E1 P0 e0 e1 e2 e3 e4 e5 A0 s0 s1 L2 G0 e6 q0 t0 e7 G2 e8 q1 t1 A1 r0 q2 t2 e9 G1 r1 q3 t3 e10 G3 "
         "r2 e11 r3 c0 A2 e12 G4 r4 c1 E2 e13 r5 e14 E0 r6 c2 e15 G6 L0 m0 r7 da A3 G5 m1 r8 db G7 P1 r9 c3 vm y0 y1 r10 c4 k0 r11 B r12 c5 "
         "r13 r14 r15 c6 c7",
}


def mainloop(tag, slow):
    toks = SCHED[opt["sched"]].split()

    def emit(u, toks, lab):
        ev = opt["prio"] and u in (0, D // 2)
        for t in toks:
            k, n = t[0], (int(t[1:]) if t[1:].isdigit() else None)
            if opt.get("nodma") and t in ("da", "db"):
                continue
            if opt.get("nolds") and (k in "xytL" and n is not None or t in ("ia", "ib", "vm", "m0", "m1")):
                continue
            if opt.get("nomfma") and k in "AGqk" and n is not None:
                continue
            if opt.get("nocomp") and k in "ercsAGqk" and n is not None:
                continue
            if opt.get("notrans") and k in "er" and n is not None:
                continue
            if t == "vm":
                p(f"s_waitcnt vmcnt({2*(D-2)})")
            elif k == "n":
                pass
            elif k == "y":
                read_xb((u + 2) % D, n)
            elif t == "mid":
                if u == 0 and not lab:
                    p(f"L{tag}_mid:")
                if slow:
                    p(f"ds_read_b32 {v(TX)}, {v(RDM)} offset:{u*16}")
                    p("s_waitcnt lgkmcnt(0)")
                    for r in range(4):
                        p(f"v_bfe_u32 {v(TX+1+r)}, {v(TX)}, {8*r}, 8")
                        p(f"v_lshlrev_b32 {v(TX+1+r)}, 1, {v(TX+1+r)}")
                    for r in range(4):
                        p(f"buffer_load_ushort {v(TX+1+r)}, {v(TX+1+r)}, {s(SM,4)}, 0 offen")
                    p("s_waitcnt vmcnt(0)")
                    for r in range(4):
                        p(f"v_lshlrev_b32 {v(TX+1+r)}, 16, {v(TX+1+r)}")
                        p(f"v_mul_f32 {v(S+r)}, {v(S+r)}, {v(TX+1+r)}")
            elif t == "ia":
                p(f"ds_read_u8 {v(VA)}, {v(RDL)} offset:{(u+D)*16}")
            elif t == "ib":
                p(f"ds_read_u8 {v(VB)}, {v(RDL)} offset:{(u+D)*16+8}")
            elif t == "E1":
                p(f"s_bitcmp1_b64 {s(G,2)}, {u+1}")
                p(f"s_cbranch_scc1 L{tag}_wb{u}")
                p(f"L{tag}_wbd{u}:")
            elif t == "E2":
                p(f"s_bitcmp1_b64 {s(F,2)}, {u}")
                p(f"s_cbranch_scc1 L{tag}_flush{lab}{u}")
                p(f"L{tag}_flushed{lab}{u}:")
            elif t == "E0":
                p(f"s_bitcmp1_b64 {s(G,2)}, {u+D}")
                p(f"s_cbranch_scc1 L{tag}_adv{u}")
                p(f"L{tag}_advd{u}:")
            elif t == "P0":
                if ev:
                    p("s_mov_b64 exec, 1")
                    p(f"ds_add_rtn_u32 {v(PRV)}, {v(PADR)}, {v(PINC)}")
                    p("s_mov_b64 exec, -1")
            elif t == "P1":
                if ev:
                    p(f"v_readfirstlane_b32 {s(sT0)}, {v(PRV)}")
                    p(f"s_xor_b32 {s(sT0)}, {s(sT0)}, {s(sSGN)}")
                    p(f"s_cmp_gt_i32 {s(sT0)}, 0")
                    p("s_setprio 0")
                    p(f"s_cbranch_scc0 L{tag}_lo{u}")
                    p("s_setprio 1")
                    p(f"L{tag}_lo{u}:")
            elif t == "da":
                p(dma_half(0))
            elif t == "db":
                p(dma_half(1))
            elif t == "AA":
                p(f"v_mfma_f32_32x32x8_bf16 {v(ZA,16)}, {v(ONE,2)}, {v(ONE,2)}, {v(ZA,16)}")
            elif t == "B":
                if u == D - 1:
                    for X in (F,):
                        p(f"s_lshr_b64 {s(X,2)}, {s(X,2)}, {D}")
                        p(f"s_lshl_b64 {s(P0,2)}, {s(X+2,2)}, {64-D}")
                        p(f"s_or_b64 {s(X,2)}, {s(X,2)}, {s(P0,2)}")
                        p(f"s_lshr_b64 {s(X+2,2)}, {s(X+2,2)}, {D}")
                    p(f"v_add_u32 {v(RDL)}, {16*D}, {v(RDL)}")
                    if slow:
                        p(f"v_add_u32 {v(RDM)}, {16*D}, {v(RDM)}")
            elif k == "m":
                p(m0_half(u, n))
            elif k == "x":
                read_xb((u + 1) % D, n)
            elif k == "e":
                p(f"v_exp_f32 {v(ZA+n)}, {v(ZB+n)}")
            elif k == "r":
                p(f"v_rcp_f32 {v(ZA+n)}, {v(ZA+n)}")
            elif k == "c":
                p(f"v_cvt_pk_bf16_f32 {v(ZA+n)}, {v(ZA+2*n)}, {v(ZA+2*n+1)}")
            elif k == "s":
                p(f"v_cvt_pk_bf16_f32 {v(S+n)}, {v(S+2*n)}, {v(S+2*n+1)}")
            elif k == "A":
                p(f"v_mfma_f32_4x4x4_16b_bf16 {v(ZA+4*n,4)}, {v(ONE,2)}, {v(ONE,2)}, {v(ZA+4*n,4)}")
            elif k == "G":
                p(g1(n))
            elif k == "q":
                p(f"v_mfma_f32_4x4x4_16b_bf16 {v(ACC,4)}, {v(S,2)}, {v(XT+2*n,2)}, {v(ACC,4)} cbsz:4 abid:{4*n}")
            elif k == "t":
                p(f"ds_read_b64_tr_b16 {v(XT+2*n,2)}, {v(RDT)} offset:{u*SLOT+n*512+(n>>1)*32}")
            elif k == "k":
                p(f"v_mfma_f32_16x16x32_bf16 {v(S,4)}, {v(ZA+4*n,4)}, {v(W2+4*n,4)}, {v(B2,4) if n == 0 else v(S,4)}")
            elif k == "L":
                p(f"s_waitcnt lgkmcnt({0 if opt.get('dbgl0') else n})")
            else:
                raise ValueError(t)

    p(f"L{tag}_loop:")
    for u in range(D):
        emit(u, toks, "")
    p(f"s_branch L{tag}_loop")

    def flush(lab, last=False):
        p(f"L{tag}_flush{lab}:")
        p(f"v_cvt_pk_bf16_f32 {v(TX)}, {v(ACC)}, {v(ACC)}")
        p(f"v_mov_b32 {v(ACC)}, 0")
        if STAMP == 1:
            p("s_memrealtime s[96:97]")
            p("s_memtime s[98:99]")
            p(f"s_lshl_b32 {s(sT0)}, {s(sK)}, 1")
            p(f"s_sub_u32 {s(sT0)}, {16+2*(KB-1)}, {s(sT0)}")
            p("s_waitcnt lgkmcnt(0)")
            p(f"s_mov_b32 m0, {s(sT0)}")
            p("v_writelane_b32 v254, s96, m0")
            p(f"s_add_u32 m0, m0, 1")
            p("v_writelane_b32 v254, s98, m0")
        if STAMP:
            p(f"s_sub_u32 {s(sK)}, {s(sK)}, 1")
        p(f"ds_write_b16 {v(OADR)}, {v(TX)}")
        if last:
            p("s_branch L_store")
            return
        p(f"v_add_u32 {v(OADR)}, 128, {v(OADR)}")
        if slow:
            p(f"s_add_u32 {s(SM)}, {s(SM)}, {s(sMDL)}")
            p(f"s_addc_u32 {s(SM+1)}, {s(SM+1)}, 0")
            p(f"s_xor_b32 {s(sMDL)}, {s(sMDL)}, {MDL0 ^ MDL1:#x}")
        p(f"s_branch L{tag}_flushed{lab}")

    for u in range(D):
        flush(u)
        p(f"L{tag}_wb{u}:")
        p(f"s_sub_u32 {s(sKW)}, {s(sKW)}, 1")
        p(f"s_cbranch_scc1 L{tag}_last{u}")
        if not opt.get("nowb"):
            wbuild()
        p(f"s_branch L{tag}_wbd{u}")
        p(f"L{tag}_adv{u}:")
        adv_hist()
        p(f"s_branch L{tag}_advd{u}")
        p(f"L{tag}_last{u}:")
        if u:
            p(f"v_add_u32 {v(RDT)}, {u*SLOT}, {v(RDT)}")
            p(f"s_lshr_b64 {s(F,2)}, {s(F,2)}, {u}")
        if slow:
            p(f"v_add_u32 {v(RDM)}, {16*(u+1)}, {v(RDM)}")
        if u < D - 1:
            p(f"s_branch L{tag}_tail")
    p(f"L{tag}_tail:")
    i1 = toks.index("E1")
    drop = lambda t: t in ("vm", "ia", "ib", "E0", "E1", "P0", "P1", "da", "db", "B") or (t[0] in "Gxym" and t[1:].isdigit()) or t == "L2"
    emit(0, [t for t in toks[i1:] + toks[:i1] if not drop(t)] + ["s0", "s1", "q0", "q1", "q2", "q3"], "t")
    flush("z", last=True)
    flush("t0")


p(f"{NAME}:")
cst("entry")
if STAMP:
    if STAMP != 4:
        p("s_memrealtime s[98:99]")
        p("s_memtime s[96:97]")
    p("s_load_dwordx2 s[100:101], s[0:1], 72")
p("s_load_dwordx16 s[4:19], s[0:1], 0")
p(f"s_cmp_ge_u32 s2, {NWG}")
p("s_cbranch_scc1 L_end")
if opt.get("pf", 0):
    p("s_getpc_b64 s[36:37]")
    p("v_lshlrev_b32 v2, 7, v0")
    p(f"v_cmp_gt_u32 vcc, {opt.get('pfl', 128)}, v0")
    p("s_and_saveexec_b64 s[38:39], vcc")
    p("s_cbranch_execz L_nopf")
    p("global_load_dword v255, v2, s[36:37]")
    p("L_nopf:")
    p("s_mov_b64 exec, -1")
p("v_lshrrev_b32 v1, 6, v0")
p("v_and_b32 v0, 63, v0")
p(f"v_readfirstlane_b32 {s(sw)}, v1")
if opt["map"] & 2:
    p("s_and_b32 s3, s2, 7")
    p("s_lshl_b32 s3, s3, 5")
    p(f"s_lshr_b32 {s(sW)}, s2, 3")
    p(f"s_add_u32 {s(sW)}, {s(sW)}, s3")
    p(f"s_lshl_b32 {s(sW)}, {s(sW)}, {(WGSTR//2).bit_length()-1}")
else:
    p(f"s_lshl_b32 {s(sW)}, s2, {(WGSTR//2).bit_length()-1}")
p("v_lshlrev_b32 v2, 4, v0")
p(f"s_bfm_b64 {s(EX50,2)}, 50, 0")
p(f"s_add_u32 {s(sW)}, {s(sW)}, {s(sw)}")
p(f"s_mul_i32 {s(sT0)}, {s(sW)}, 800")
p(f"s_mul_i32 {s(sLB)}, {s(sw)}, {REG}")
p(f"v_add_u32 v3, {s(sT0)}, v2")
p(f"v_and_b32 {v(TX+2)}, 16, v0")
p(f"v_lshlrev_b32 {v(TX)}, 1, {v(TX+2)}")
p(f"v_xor_b32 {v(TX)}, {v(TX)}, v2")
p(f"s_lshl_b32 {s(sT1)}, {s(sw)}, 12")
p(f"s_add_u32 m0, {s(sLB)}, {STG}")
p(f"s_mov_b64 exec, {s(EX50,2)}")
p("s_waitcnt lgkmcnt(0)")
cst("kernarg")
if STAMP and STAMP != 4:
    p("s_mov_b64 exec, -1")
    p("v_mov_b32 v254, 0")
    p("v_writelane_b32 v254, s98, 0")
    p("v_writelane_b32 v254, s96, 32")
    nstamp[0] = 1
    stamp()
    p(f"s_mov_b64 exec, {s(EX50,2)}")
p(f"global_load_dwordx4 {v(MSK,4)}, v3, s[8:9] {NTM}")
p("s_mov_b64 exec, -1")
p(f"s_add_u32 s10, s10, {s(sT1)}")
p("s_addc_u32 s11, s11, 0")
p(f"v_xor_b32 {v(TX+1)}, 64, {v(TX)}")
for j in range(4):
    p(f"global_load_lds_dwordx4 {v(TX+(j&1))}, s[10:11] offset:{j*1024}")
p(f"s_load_dword {s(sB2)}, s[16:17], 0")
p("v_lshrrev_b32 v1, 4, v0")
p(f"v_and_b32 {v(VOUT)}, 0xf0, v2")
p(f"v_lshl_add_u32 {v(VOUT)}, v1, {LGP+7}, {v(VOUT)}")
p(f"s_lshl_b32 {s(sT0)}, {s(sW)}, 8")
p(f"s_add_u32 m0, {s(sLB)}, {TB}")
p(f"v_add_u32 {v(VOUT)}, {s(sT0)}, {v(VOUT)}")
p(f"s_and_b32 {s(sT1)}, {s(sw)}, 3")
p(f"global_load_lds_dwordx4 {v(VOUT)}, s[4:5] {NTM}")
B1R, W2R = CD + 28, DG
p(f"s_lshl_b32 {s(sT0)}, {s(sT1)}, 5")
p(f"v_lshl_add_u32 {v(TX+3)}, v1, 3, {s(sT0)}")
p(f"global_load_dwordx2 {v(B1R,2)}, {v(TX+3)}, s[12:13]")
p(f"v_and_b32 {v(TX+4)}, 3, v0")
NVM = 11
stamp()
p(f"s_mul_i32 {s(sT0)}, {s(sW)}, 51200")
p(f"s_add_u32 s6, s6, {s(sT0)}")
p("s_addc_u32 s7, s7, 0")
srd(SH, 6, 200, stride=128)
p(f"s_movk_i32 {s(sDL)}, {DLT0}")
p(f"v_mov_b32 {v(ZB)}, -1")
p(f"v_mov_b32 {v(ZB+1)}, -1")
p(f"v_mov_b32 {v(ZB+2)}, -1")
p(f"v_mov_b32 {v(ZB+3)}, -1")
p(f"s_add_u32 {s(sT0)}, {s(sLB)}, {LI}")
p(f"v_add_u32 {v(ZB+4)}, {s(sT0)}, v2")
p(f"ds_write_b128 {v(ZB+4)}, {v(ZB,4)}")
p(f"ds_write_b128 {v(ZB+4)}, {v(ZB,4)} offset:1024")
p(f"s_add_u32 {s(sBASE)}, {s(sLB)}, {L0}")
p(f"v_lshrrev_b32 {v(RDL)}, 3, v0")
p(f"v_add_u32 {v(RDL)}, {s(sBASE)}, {v(RDL)}")
p(f"v_lshl_add_u32 {v(RDM)}, v1, 2, {s(sT0)}")
p(f"v_and_b32 {v(VA+1)}, 0x70, v2")
p(f"v_lshlrev_b32 {v(TX+2)}, 2, {v(TX+2)}")
p(f"v_xor_b32 {v(VA+1)}, {v(VA+1)}, {v(TX+2)}")
p(f"v_mov_b32 {v(VB+1)}, {v(VA+1)}")
p(f"v_cmp_lt_u32 vcc, 24, v0")
p(f"v_mov_b32 {v(OACC)}, 0")
p(f"v_mov_b32 {v(SACC)}, 0")
p(f"v_cndmask_b32 {v(HI)}, 0, 1, vcc")
p(f"v_mul_u32_u24 {v(CV+1)}, 25, {v(HI)}")
p(f"v_sub_u32 {v(CV+1)}, v0, {v(CV+1)}")
p(f"v_mul_u32_u24 {v(CV+1)}, 0x80008, {v(CV+1)}")
p(f"v_add_u32 {v(CV)}, 0x10000, {v(CV+1)}")
p(f"v_add_u32 {v(CV+2)}, 0x50004, {v(CV+1)}")
p(f"v_add_u32 {v(CV+3)}, 0x70006, {v(CV+1)}")
p(f"v_add_u32 {v(CV+1)}, 0x30002, {v(CV+1)}")
p(f"s_mov_b64 {s(F,2)}, 0")
p(f"s_mov_b64 {s(F+2,2)}, 0")
if STAMP:
    p(f"s_mov_b32 {s(sK)}, {KB-1}")
p(f"s_mov_b32 {s(sKA)}, {KB-1}")
p(f"s_mov_b32 {s(sKW)}, {KB-1}")
p(f"s_mov_b32 {s(sC)}, {CNEG:#x}")
n_, r_, c_ = TX + 5, TX + 6, TX + 4
p(f"v_and_b32 {v(n_)}, 15, v0")
p(f"v_bfe_u32 {v(r_)}, v0, 2, 2")
X0 = TX + 7
SA, SC_, SB_, TBA, BWA = CA + 60, CA + 61, CA + 62, CA + 63, CD + 30
IDN, N0M = DG + 2, DG + 4
p(f"v_lshlrev_b32 {v(X0)}, 3, {v(c_)}")
p(f"v_lshl_add_u32 {v(X0)}, {v(r_)}, 7, {v(X0)}")
p(f"v_and_b32 {v(TX)}, 24, v0")
p(f"v_lshlrev_b32 {v(TX)}, 2, {v(TX)}")
p(f"v_xor_b32 {v(TX)}, {v(X0)}, {v(TX)}")
p(f"v_lshl_add_u32 {v(TX)}, v1, 10, {v(TX)}")
p(f"s_lshl_b32 {s(sT0)}, {s(sT1)}, 5")
p(f"v_xor_b32 {v(SB_)}, {s(sT0)}, {v(TX)}")
p(f"v_add_u32 {v(SB_)}, {STG+2*REG}, {v(SB_)}")
p(f"s_lshr_b32 {s(sT0)}, {s(sw)}, 1")
p(f"s_lshl_b32 {s(sT0)}, {s(sT0)}, 5")
p(f"v_xor_b32 {v(SA)}, {s(sT0)}, {v(TX)}")
p(f"s_and_b32 {s(sT0)}, {s(sw)}, 1")
p(f"s_mul_i32 {s(sT0)}, {s(sT0)}, {REG}")
p(f"s_add_u32 {s(sT0)}, {s(sT0)}, {STG}")
p(f"v_add_u32 {v(SA)}, {s(sT0)}, {v(SA)}")
p(f"v_add_u32 {v(SC_)}, {4*REG}, {v(SA)}")
p(f"s_and_b32 {s(sT0)}, {s(sw)}, 4")
p(f"v_lshrrev_b32 {v(TX)}, 3, {v(n_)}")
p(f"v_add_u32 {v(TX)}, {s(sT0)}, {v(TX)}")
p(f"v_mul_u32_u24 {v(TX)}, {REG}, {v(TX)}")
p(f"v_lshl_add_u32 {v(TX)}, v1, 4, {v(TX)}")
p(f"v_and_b32 {v(TX+1)}, 7, v0")
p(f"v_lshl_add_u32 {v(TBA)}, {v(TX+1)}, 7, {v(TX)}")


def gRDB():
    p(f"v_and_b32 {v(TX+1)}, 8, v0")
    p(f"v_lshlrev_b32 {v(TX+1)}, 2, {v(TX+1)}")
    p(f"v_lshl_add_u32 {v(TX+1)}, {v(n_)}, 7, {v(TX+1)}")
    p(f"v_add_u32 {v(TX+1)}, {s(sLB)}, {v(TX+1)}")
    p(f"v_and_b32 {v(TX+2)}, 2, v0")
    p(f"v_lshlrev_b32 {v(TX+2)}, 1, {v(TX+2)}")
    p(f"v_xor_b32 {v(TX+2)}, {v(TX+2)}, v1")
    p(f"v_lshl_add_u32 {v(RDB0)}, {v(TX+2)}, 4, {v(TX+1)}")
    p(f"v_xor_b32 {v(TX+2)}, 4, {v(TX+2)}")
    p(f"v_lshl_add_u32 {v(RDB1)}, {v(TX+2)}, 4, {v(TX+1)}")


def gRDT():
    p(f"v_and_b32 {v(TX+1)}, 8, v0")
    p(f"v_lshlrev_b32 {v(TX+1)}, 3, {v(TX+1)}")
    p(f"v_lshl_add_u32 {v(TX+2)}, v1, 5, {v(X0)}")
    p(f"v_xor_b32 {v(TX+2)}, {v(TX+2)}, {v(TX+1)}")
    p(f"v_add_u32 {v(RDT)}, {s(sLB)}, {v(TX+2)}")


def gTAD():
    p(f"s_add_u32 {s(sT0)}, {s(sLB)}, {TB}")
    p(f"v_lshl_add_u32 {v(TADR)}, {v(c_)}, 1, {s(sT0)}")
    p(f"v_lshl_add_u32 {v(TADR)}, {'v1' if W44 else v(r_)}, 4, {v(TADR)}")
    p(f"v_lshl_add_u32 {v(OADR)}, v0, 1, {s(sT0)}")
    p(f"s_add_u32 {s(sT0)}, {s(sLB)}, {BI}")
    p(f"v_lshl_add_u32 {v(BADR)}, v1, 4, {s(sT0)}")


def gBWA():
    p(f"s_and_b32 {s(sT0)}, {s(sw)}, 3")
    p(f"s_lshl_b32 {s(sT0)}, {s(sT0)}, 6")
    p(f"s_add_u32 {s(sT0)}, {s(sT0)}, {BI}")
    p(f"v_and_b32 {v(TX+1)}, 7, v0")
    p(f"v_mul_u32_u24 {v(TX+1)}, {BSTR-128}, {v(TX+1)}")
    p(f"v_add3_u32 {v(BWA)}, {v(TBA)}, {v(TX+1)}, {s(sT0)}")


def gSEL():
    if not W44:
        p(f"v_cmp_eq_u32 vcc, {v(r_)}, v1")
    p(f"v_and_b32 {v(TX+1)}, 1, v0")
    p(f"v_lshlrev_b32 {v(TX+1)}, 4, {v(TX+1)}")
    p(f"v_lshlrev_b32 {v(TX+1)}, {v(TX+1)}, 1")
    if not W44:
        p(f"v_cndmask_b32 {v(TX+1)}, 0, {v(TX+1)}, vcc")
    p(f"v_cmp_gt_u32 vcc, 2, {v(c_)}")
    p(f"v_mov_b32 {v(ONE+1)}, 0")
    p(f"v_mov_b32 {v(ONE)}, 0x3f80")
    p(f"v_cndmask_b32 {v(SEL0)}, 0, {v(TX+1)}, vcc")
    p(f"v_cmp_eq_u32 vcc, 0, {v(n_)}")
    p(f"v_sub_u32 {v(SEL1)}, {v(TX+1)}, {v(SEL0)}")
    p(f"v_mul_u32_u24 {v(IDN)}, 0x3f80, {v(SEL0)}")
    p(f"v_cndmask_b32 {v(N0M)}, 0, -1, vcc")
    p(f"v_mul_u32_u24 {v(IDN+1)}, 0x3f80, {v(SEL1)}")


def gZER():
    for j in range(8):
        p(f"v_mov_b32 {v(XT+j)}, 0")
    for j in range(4):
        p(f"v_mov_b32 {v(S+j)}, 0")
        p(f"v_mov_b32 {v(ACC+j)}, 0")


def gB2():
    p(f"s_lshl_b32 {s(sB2)}, {s(sB2)}, 16")
    for r in range(4):
        p(f"v_and_b32 {v(B2+r)}, {s(sB2)}, {v(N0M)}")


def gPRI():
    if opt["prio"]:
        p(f"s_and_b32 {s(sT0)}, {s(sw)}, 3")
        p(f"s_mul_i32 {s(sT0)}, {s(sT0)}, {REG}")
        p(f"s_add_u32 {s(sT0)}, {s(sT0)}, {PRG}")
        p(f"v_mov_b32 {v(DG+5)}, {s(sT0)}")
        p(f"s_cmp_ge_u32 {s(sw)}, 4")
        p(f"s_cselect_b32 {s(sSGN)}, -1, 0")
        p(f"ds_write_b32 {v(DG+5)}, {v(ONE+1)}")


PLACE = dict(zip((gSEL, gBWA, gPRI, gB2, gRDB, gRDT, gTAD, gZER), (int(x) for x in str(opt["place"])[1:])))


def groups(k):
    for f, w_ in PLACE.items():
        if w_ == k:
            f()


groups(0)
p(f"s_mov_b64 exec, {s(EX50,2)}")
for j in range(1, 4):
    p(f"v_add_u32 v3, {PSTR*400}, v3")
    p(f"global_load_dwordx4 {v(MSK+4*j,4)}, v3, s[8:9] {NTM}")
p("s_mov_b64 exec, -1")
p(f"v_lshlrev_b32 {v(TX+3)}, 3, v1")
p(f"v_lshl_add_u32 {v(TX+3)}, {v(TX+4)}, 5, {v(TX+3)}")
p(f"global_load_dwordx2 {v(W2R,2)}, {v(TX+3)}, s[14:15]")
NE = D - 2
PLAN = [int(x) for x in str(opt["plan"])]
assert sum(PLAN) == NE
IDX = ZB


def idx_reads():
    for t in range(D):
        p(f"ds_read_u8 {v(IDX+2*t)}, {v(RDL)} offset:{t*16}")
        p(f"ds_read_u8 {v(IDX+2*t+1)}, {v(RDL)} offset:{t*16+8}")


def tiles(t0, t1, bits, tag):
    for t in range(t0, t1):
        if t > 0:
            p(f"s_bitcmp0_b64 {s(bits,2)}, {t}")
            p(f"s_cbranch_scc1 L_noadv{tag}{t}")
            adv_hist()
            p(f"L_noadv{tag}{t}:")
        p(m0_half(t, 0))
        p(f"v_mov_b32 {v(VA)}, {v(IDX+2*t)}")
        p(f"v_mov_b32 {v(VB)}, {v(IDX+2*t+1)}")
        p(dma_half(0))
        p(m0_half(t, 1))
        p("s_nop 0")
        p(dma_half(1))


issued = [0]


def early(n):
    if n == 0:
        return
    t0 = issued[0]
    p(f"s_cmp_eq_u32 {s(sEARLY)}, 0")
    p(f"s_cbranch_scc1 L_skip{t0}")
    tiles(t0, t0 + n, F, "e")
    p(f"L_skip{t0}:")
    issued[0] += n


def first_pair():
    compact(0)
    p(f"s_add_u32 {s(sT0)}, {s(sLB)}, {L0+16*D}")
    p(f"s_cmp_ge_u32 {s(sBASE)}, {s(sT0)}")
    p(f"s_cselect_b32 {s(sEARLY)}, 1, 0")
    p("s_cbranch_scc1 L_early")
    p("s_waitcnt vmcnt(0)")
    p("L_early:")
    idx_reads()
    p("s_waitcnt lgkmcnt(0)")
    early(PLAN[0])


stamp()
if opt["ord"] == 0:
    p(f"s_waitcnt vmcnt({NVM-1}) lgkmcnt(0)")
    stamp()
    first_pair()
    stamp()
    early(PLAN[1])
cst("preB1")
p(f"s_waitcnt vmcnt({4+2*issued[0]}) lgkmcnt(0)")
p("s_barrier")
stamp()
cst("B1")
RWA, RWC, RWD, RBB, RBC, TP, DB, DA, DD = CA, CA + 4, CA + 8, CA + 12, CA + 20, CA + 28, CA + 44, CA + 52, CD
for (dst, base) in ((RBB, 0), (RBC, 2)):
    for ks in range(2):
        for u in range(2):
            p(f"ds_read_b64_tr_b16 {v(dst+4*ks+2*u,2)}, {v(SB_)} offset:{(base+ks)*REG+u*512}")
for j in range(2):
    for ks in range(2):
        p(f"ds_read_b128 {v(TP+8*j+4*ks,4)}, {v(TBA)} offset:{TB+j*2*REG+ks*64}")
for u in range(2):
    p(f"ds_read_b64_tr_b16 {v(RWA+2*u,2)}, {v(SA)} offset:{u*512}")
    p(f"ds_read_b64_tr_b16 {v(RWC+2*u,2)}, {v(SC_)} offset:{u*512}")
    p(f"ds_read_b64_tr_b16 {v(RWD+2*u,2)}, {v(SC_)} offset:{2*REG+u*512}")
for j in range(2):
    p(f"v_lshlrev_b32 {v(DB+2*j)}, 16, {v(B1R+j)}")
    p(f"v_and_b32 {v(DB+2*j+1)}, 0xffff0000, {v(B1R+j)}")
groups(1)
if opt["ord"] == 1:
    first_pair()
    stamp()
    early(PLAN[1])
    stamp()
early(PLAN[2])
cst("firstpair")
p("s_waitcnt lgkmcnt(0)")
for j in range(8):
    p(f"v_xor_b32 {v(RBC+j)}, 0x80008000, {v(RBC+j)}")
for u in range(2):
    p(f"{DIAGMM} {v(DA+4*u,4)}, {v(IDN,2)}, {v(RWA+2*u,2)}, 0")
    p(f"{DIAGMM} {v(DD+4*u,4)}, {v(IDN,2)}, {v(RWD+2*u,2)}, 0")
for u in range(2):
    p(f"{DIAGMM} {v(DA+4*u,4)}, {v(IDN,2)}, {v(RWC+2*u,2)}, {v(DA+4*u,4)}")
for j in (1, 0):
    first = True
    for (src) in (RBB, RBC):
        for ks in range(2):
            c = v(DB, 4) if first else v(DB + 4 * j, 4)
            p(f"v_mfma_f32_16x16x32_bf16 {v(DB+4*j,4)}, {v(src+4*ks,4)}, {v(TP+8*j+4*ks,4)}, {c}")
            first = False
for j in range(8):
    p(f"v_mul_f32 {v(DA+j)}, {s(sC)}, {v(DA+j)}")
for j in range(8):
    p(f"v_mul_f32 {v(DD+j)}, {s(sC)}, {v(DD+j)}")
p(f"s_add_u32 {s(sT0)}, {s(sLB)}, {XCH}")
p(f"v_add_u32 v3, {s(sT0)}, v2")
for j in range(4):
    p(f"v_cvt_pk_bf16_f32 {v(DD+j)}, {v(DD+2*j)}, {v(DD+2*j+1)}")
for j in range(8):
    p(f"v_mul_f32 {v(DB+j)}, {s(sC)}, {v(DB+j)}")
early(PLAN[3])
p(f"ds_write_b128 v3, {v(DA,4)}")
p(f"ds_write_b128 v3, {v(DA+4,4)} offset:1024")
p(f"ds_write_b128 v3, {v(DD,4)} offset:2048")
p(f"ds_write_b128 {v(BWA)}, {v(DB,4)}")
p(f"ds_write_b128 {v(BWA)}, {v(DB+4,4)} offset:{2*REG}")
p(f"v_add_u32 v3, {XCH}, v2")
p(f"v_add_u32 {v(TX)}, {4*REG}, v3")
cst("preB3")
p("s_waitcnt lgkmcnt(0)")
p("s_barrier")
cst("B3")
stamp()
def const_reads(w0, w1):
    for w_ in range(w0, w1):
        a = "v3" if w_ < 4 else v(TX)
        p(f"ds_read_b128 {v(CA+8*w_,4)}, {a} offset:{(w_&3)*REG}")
        p(f"ds_read_b128 {v(CA+8*w_+4,4)}, {a} offset:{(w_&3)*REG+1024}")
        p(f"ds_read_b128 {v(CD+4*w_,4)}, {a} offset:{(w_&3)*REG+2048}")


cuts = (0, 2, 5, 8) if opt["il"] else (0, 8, 8, 8)
if opt["il"]:
    early(2)
const_reads(cuts[0], cuts[1])
if not opt["il"]:
    early(2)
groups(2)
p(f"s_waitcnt vmcnt({2*D})")
cst("tiles23")
compact(1)
const_reads(cuts[1], cuts[2])
compact(2)
const_reads(cuts[2], cuts[3])
for x in range(4):
    p(f"ds_read_u16 {v(TR+x)}, {v(TADR)} offset:{(x>>1)*64+(x&1)*8}")
stamp()
compact(3)
p(f"s_mov_b32 {s(sT0)}, {~0x3f803f80 & 0xffffffff:#x}")
p(f"v_and_or_b32 {v(OACC)}, {v(OACC)}, {s(sT0)}, {v(SACC)}")
p(f"v_cmp_ne_u32 {s(NB,2)}, 0, {v(OACC)}")
if opt["prio"]:
    p(f"s_sub_u32 {s(sT0)}, {s(sBASE)}, {s(sLB)}")
    p(f"s_sub_u32 {s(sT0)}, {s(sT0)}, {L0}")
    p(f"s_lshr_b32 {s(sT0)}, {s(sT0)}, 3")
    p(f"s_xor_b32 {s(sT0)}, {s(sT0)}, {s(sSGN)}")
    p(f"s_sub_u32 {s(sT0)}, {s(sT0)}, {s(sSGN)}")
    p(f"s_xor_b32 {s(sT1)}, {-D & 0xffffffff:#x}, {s(sSGN)}")
    p(f"s_sub_u32 {s(sT1)}, {s(sT1)}, {s(sSGN)}")
    p(f"v_mov_b32 {v(PADR)}, {v(DG+5)}")
    p(f"v_mov_b32 {v(PRV)}, {s(sT0)}")
    p(f"v_mov_b32 {v(PINC)}, {s(sT1)}")
    p("s_mov_b64 exec, 1")
    p(f"ds_add_u32 {v(PADR)}, {v(PRV)}")
    p("s_mov_b64 exec, -1")
p(f"s_cmp_eq_u32 {s(sEARLY)}, 1")
p("s_cbranch_scc1 L_nolate")
idx_reads()
p("s_waitcnt lgkmcnt(0)")
tiles(0, D, G, "l")
p("L_nolate:")
for hb in range(4):
    for j in range(2):
        p(f"v_and_b32_dpp {v(W2+2*hb+j)}, {v(W2R+j)}, {v(N0M)} quad_perm:[{hb},{hb},{hb},{hb}] row_mask:0xf bank_mask:0xf")
cst("precompactdone")
p(f"s_waitcnt vmcnt({2*(D-1)}) lgkmcnt(0)")
read_xb(0, 0)
read_xb(0, 1)
wbuild()
BIGADD = "AA" in SCHED[opt["sched"]].split()
if BIGADD:
    p("v_cmp_gt_u32 vcc, 32, v0")
    p(f"v_cndmask_b32 {v(ONE)}, 0, {v(ONE)}, vcc")
stamp()
stamp(33)
cst("wbuilt")
if STAMP == 4:
    p("s_waitcnt lgkmcnt(0)")
    p("v_mov_b32 v254, 0")
    for j, r in enumerate((36,38,40,42,44,46,48,50,96,98)):
        p(f"v_writelane_b32 v254, s{r}, {j}")
for j in range(8):
    p(g1(j))
if opt.get("dbgnop"):
    p("s_nop 15"); p("s_nop 15"); p("s_nop 15")
p(f"s_waitcnt vmcnt({2*(D-2)})")
read_xb(1, 0)
read_xb(1, 1)
_t = SCHED[opt["sched"]].split()
if _t.index("ia") < _t.index("mid"):
    p(f"ds_read_u8 {v(VA)}, {v(RDL)} offset:{D*16}")
    p(f"ds_read_u8 {v(VB)}, {v(RDL)} offset:{D*16+8}")
p(f"s_cmp_lg_u64 {s(NB,2)}, 0")
p("s_cbranch_scc0 Lf_mid")
p(f"s_mul_i32 {s(sT0)}, {s(sW)}, 800")
p(f"s_add_u32 s8, s8, {s(sT0)}")
p("s_addc_u32 s9, s9, 0")
srd(SM, 8, 400)
p(f"s_movk_i32 {s(sMDL)}, {MDL0}")
p("s_branch Ls_mid")
if opt["sub"]:
    p("L_compact:")
    compact_body(0)
    p(f"s_setpc_b64 {s(RET,2)} ; ret=L_compact")
    p("L_wbuild:")
    wbuild_body()
    p(f"s_setpc_b64 {s(RET,2)} ; ret=L_wbuild")
mainloop("f", False)
p("L_store:")
p(f"s_add_u32 {s(sT0)}, {s(sLB)}, {TB}")
p(f"v_lshl_add_u32 {v(TX+1)}, v0, 4, {s(sT0)}")
p("s_waitcnt lgkmcnt(0)")
p(f"ds_read_b128 {v(ZB,4)}, {v(TX+1)}")
p("s_waitcnt lgkmcnt(0)")
p(f"global_store_dwordx4 {v(VOUT)}, {v(ZB,4)}, s[18:19] {NTO}")
if STAMP:
    stamp(34)
    p(f"v_writelane_b32 v254, {s(sBASE)}, 15")
    p("s_getreg_b32 s96, hwreg(HW_REG_XCC_ID)")
    p("v_writelane_b32 v254, s96, 14")
    p("s_getreg_b32 s96, hwreg(HW_REG_HW_ID)")
    p("v_writelane_b32 v254, s96, 13")
    srd(SM, 100, 2048 * 256)
    p(f"s_lshl_b32 {s(sT0)}, s2, 3")
    p(f"s_add_u32 {s(sT0)}, {s(sT0)}, {s(sw)}")
    p(f"s_lshl_b32 {s(sT0)}, {s(sT0)}, 8")
    p(f"v_lshlrev_b32 v1, 2, v0")
    p(f"buffer_store_dword v254, v1, {s(SM,4)}, {s(sT0)} offen")
p("L_end:")
p("s_endpgm")
mainloop("s", True)

nn = p.fix_hazards(verbose=opt["verbose"])
for early_ in (True, False):
    for e in check_waits(p, (("L_early", early_), ("L_skip", not early_), ("L_nolate", early_))):
        if not opt.get("nolds"):
            sys.exit(f"WAIT-CHECK early={early_}: {e}")
hdr = open(__file__.rsplit("/", 1)[0] + "/../standalone__sequential_behavior_din__recsys.s.ref").read().split("\n")
head = [l for l in hdr if l.startswith(";") and "@launch" not in l and "Override" not in l and "grid=ceil" not in l]
out = "\n".join(head) + f"""
; @launch grid=({NWG},1,1) block=({WPB*64},1,1) lds={WPB*REG}
; generated by gen/gen.py {' '.join(sys.argv[1:])}
.amdgcn_target "amdgcn-amd-amdhsa--gfx950"
.text
.globl {NAME}
.p2align 8
.type {NAME},@function
""" + p.text() + f""".section .rodata,"a"
.p2align 6
.amdhsa_kernel {NAME}
  .amdhsa_next_free_vgpr 256
  .amdhsa_next_free_sgpr 102
  .amdhsa_accum_offset 256
  .amdhsa_group_segment_fixed_size 0
  .amdhsa_kernarg_size 80
  .amdhsa_user_sgpr_count 2
  .amdhsa_user_sgpr_kernarg_segment_ptr 1
  .amdhsa_system_sgpr_workgroup_id_x 1
.end_amdhsa_kernel
"""
sys.stdout.write(out)
```

```python
import sys
from asmlib import Prog, check_waits

opt = dict(m1=1, sub=0, map=0, ord=2, place=900010000, il=1, D=4, plan=2000, nt="nt", ntm="nt", nto="", verbose=0, prio=1, sched="h")
for a in sys.argv[1:]:
    k, v = a.split("=", 1)
    opt[k] = int(v) if v.lstrip("-").isdigit() else v.replace("+", " ")
D = opt["D"]
NT, NTM, NTO = opt["nt"], opt["ntm"], opt["nto"]
STAMP = opt.get("stamp", 0)

NAME = "standalone__sequential_behavior_din__recsys_kernel"
NWG, WPB = 256, 8
NWAVE = NWG * WPB
KB = 16384 // NWAVE
REG = 20480
SLOT = 2080
TB = D * SLOT
BI = TB + 1024
BSTR = 272
XCH = BI + 8 * BSTR
PRG = XCH + 3072
LI = 18432
L0 = LI + 16
assert PRG + 16 <= LI and LI + 2048 <= REG
STG = (D - 2) * SLOT
CNEG = 0xBFB8AA3B
PSTR, WGSTR = (16, 64) if opt["map"] & 1 else (4096, 16)
LGP = PSTR.bit_length() - 1
DLT0, DLT1 = 25600, (PSTR - 1) * 25600
MDL0, MDL1 = 400, (PSTR - 1) * 400

CA, CD, W, ZA, ZB, BIAS, XB, XT, W2, B2, S, ACC, DG, TR, ONE, VA, VB = \
    4, 68, 100, 132, 148, 164, 180, 188, 196, 204, 208, 212, 216, 224, 228, 230, 232
RDB0, RDB1, RDT, RDL, TADR, BADR, OADR, SEL0, SEL1, VOUT, RDM = range(234, 245)
TX = 246
PRV, PADR, PINC = 1, 2, 3
MSK = W
SH, SM, SH2 = 20, 24, 40
EX50, sB2, sDL, sMDL, sSGN = 28, 30, 31, 32, 33
sLB, sW, sw = 52, 53, 54
F = 56
H = 36
sKA, sKW = 60, 61
sBASE, sK, sT0, sT1, sT2, sT3 = 64, 65, 66, 67, 34, 35
A0 = 68
NB, P0, P1, P2 = 84, 86, 88, 90
sC, sEARLY = 92, 94
RET = 62


def v(a, n=1):
    return f"v{a}" if n == 1 else f"v[{a}:{a+n-1}]"


def s(a, n=1):
    return f"s{a}" if n == 1 else f"s[{a}:{a+n-1}]"


p = Prog()
nstamp = [0]


def stamp(cyc=None):
    if STAMP == 4:
        return
    if not STAMP or (STAMP == 3 and cyc is None):
        return
    p("s_memrealtime s[96:97]")
    p("s_waitcnt lgkmcnt(0)")
    p(f"v_writelane_b32 v254, s96, {nstamp[0]}")
    nstamp[0] += 1
    if cyc is not None:
        p("s_memtime s[96:97]")
        p("s_waitcnt lgkmcnt(0)")
        p(f"v_writelane_b32 v254, s96, {cyc}")


ncyc = [0]


def cst(name):
    if STAMP == 4:
        sys.stderr.write(f"cst{ncyc[0]} = {name}\n")
        p(f"s_memtime {s((38,94,44,46,48,50,96,98,26,86)[ncyc[0]],2)}")
        ncyc[0] += 1


def srd(dst, ptr, nrec, stride=0):
    p(f"s_mov_b32 {s(dst)}, {s(ptr)}")
    p(f"s_and_b32 {s(dst+1)}, {s(ptr+1)}, 0xffff")
    if stride:
        p(f"s_or_b32 {s(dst+1)}, {s(dst+1)}, {stride << 16:#x}")
    p(f"s_mov_b32 {s(dst+2)}, {nrec}")
    p(f"s_mov_b32 {s(dst+3)}, 0x20000")


def m0_half(slot, j):
    return f"s_add_u32 m0, {s(sLB)}, {slot*SLOT+j*1056}"


def dma_half(j):
    if opt["m1"] and j:
        return f"buffer_load_dwordx4 {v(VB,2)}, {s(SH2,4)}, 0 idxen offen offset:1056 {NT} lds"
    return f"buffer_load_dwordx4 {v((VA, VB)[j],2)}, {s(SH,4)}, 0 idxen offen {NT} lds"


def adv_hist():
    p(f"s_sub_u32 {s(sKA)}, {s(sKA)}, 1")
    p(f"s_cselect_b32 {s(sDL)}, 0, {s(sDL)}")
    p(f"s_add_u32 {s(SH)}, {s(SH)}, {s(sDL)}")
    p(f"s_addc_u32 {s(SH+1)}, {s(SH+1)}, 0")
    if opt["m1"]:
        p(f"s_add_u32 {s(SH2)}, {s(SH2)}, {s(sDL)}")
        p(f"s_addc_u32 {s(SH2+1)}, {s(SH2+1)}, 0")
    p(f"s_xor_b32 {s(sDL)}, {s(sDL)}, {DLT0 ^ DLT1:#x}")


R, CV, HI, OACC, SACC = ZA, ZA + 9, ZA + 13, ZA + 14, ZA + 15


def fbit(reg, k):
    p(f"s_lshr_b32 {s(sT3)}, {s(reg)}, 4")
    if 13 * (k + 1) + 1 < 64 and not opt["sub"]:
        p(f"s_bitset1_b64 {s(F,2)}, {s(sT3)}")
    else:
        p(f"s_lshl_b64 {s(P0,2)}, 1, {s(sT3)}")
        p(f"s_bitcmp1_b32 {s(reg)}, 10")
        p(f"s_cselect_b64 {s(P1,2)}, 0, {s(P0,2)}")
        p(f"s_cselect_b64 {s(P2,2)}, {s(P0,2)}, 0")
        p(f"s_or_b64 {s(F,2)}, {s(F,2)}, {s(P1,2)}")
        p(f"s_or_b64 {s(F+2,2)}, {s(F+2,2)}, {s(P2,2)}")


def compact(j):
    if not opt["sub"]:
        return compact_body(j)
    if j:
        for x in range(4):
            p(f"v_mov_b32 {v(MSK+x)}, {v(MSK+4*j+x)}")
    p(f"s_call_b64 {s(RET,2)}, L_compact")


def compact_body(j):
    m = [MSK + 4 * j + x for x in range(4)]
    p(f"s_mov_b64 exec, {s(EX50,2)}")
    for e in range(8):
        p(f"v_cmp_neq_f16_sdwa {s(A0+2*e,2)}, {v(m[e>>1])}, 0 src0_sel:WORD_{e&1} src1_sel:WORD_0")
    for x in range(4):
        p(f"v_sad_u16 {v(SACC)}, {v(m[x])}, 0, {v(SACC)}")
    p(f"v_or3_b32 {v(OACC)}, {v(m[0])}, {v(m[1])}, {v(OACC)}")
    p(f"v_or3_b32 {v(OACC)}, {v(m[2])}, {v(m[3])}, {v(OACC)}")
    p("s_mov_b64 exec, -1")
    p(f"v_mov_b32 {v(R)}, {s(sBASE)}")
    for e in range(8):
        p(f"v_mbcnt_lo_u32_b32 {v(R)}, {s(A0+2*e)}, {v(R)}")
        p(f"v_mbcnt_hi_u32_b32 {v(R)}, {s(A0+2*e+1)}, {v(R)}")
    p(f"s_add_u32 {s(sT2)}, {s(sBASE)}, 16")
    p(f"v_readlane_b32 {s(sT0)}, {v(R)}, 25")
    p(f"v_readlane_b32 {s(sT1)}, {v(R)}, 63")
    p(f"s_add_u32 {s(sBASE)}, {s(sT0)}, 15")
    p(f"s_and_b32 {s(sBASE)}, {s(sBASE)}, -16")
    p(f"s_max_u32 {s(sBASE)}, {s(sBASE)}, {s(sT2)}")
    p(f"s_sub_u32 {s(sT0)}, {s(sBASE)}, {s(sT0)}")
    p(f"v_mad_u32_u24 {v(R)}, {v(HI)}, {s(sT0)}, {v(R)}")
    fbit(sBASE, 2 * j)
    for e in range(8):
        p(f"v_addc_co_u32 {v(R+e+1)}, vcc, 0, {v(R+e)}, {s(A0+2*e,2)}")
    p(f"s_add_u32 {s(sT1)}, {s(sT1)}, {s(sT0)}")
    p(f"s_add_u32 {s(sT1)}, {s(sT1)}, 15")
    p(f"s_and_b32 {s(sT1)}, {s(sT1)}, -16")
    p(f"s_add_u32 {s(sBASE)}, {s(sBASE)}, 16")
    p(f"s_max_u32 {s(sBASE)}, {s(sBASE)}, {s(sT1)}")
    for e in range(8):
        p(f"s_mov_b64 exec, {s(A0+2*e,2)}")
        p(f"ds_write_b8{'_d16_hi' if e&1 else ''} {v(R+e)}, {v(CV+(e>>1))}")
    p("s_mov_b64 exec, -1")
    p(f"v_sub_u32 {v(R+8)}, {v(R)}, {v(R+8)}")
    p(f"s_movk_i32 {s(sT0)}, 0x3f80")
    p(f"v_mad_i32_i24 {v(SACC)}, {v(R+8)}, {s(sT0)}, {v(SACC)}")
    fbit(sBASE, 2 * j + 1)


W44 = opt.get("w44", 1)
DIAGMM = "v_mfma_f32_4x4x4_16b_bf16" if W44 else "v_mfma_f32_16x16x16_bf16"


def wbuild():
    if opt["sub"]:
        p(f"s_call_b64 {s(RET,2)}, L_wbuild")
    else:
        wbuild_body()


def wbuild_body():
    for x in range(4):
        p(f"v_mul_u32_u24 {v(DG+2*x)}, {v(TR+x)}, {v(SEL0)}")
        p(f"v_mul_u32_u24 {v(DG+2*x+1)}, {v(TR+x)}, {v(SEL1)}")
    T = [ZA, ZA + 8, TX]
    pairs = [(hb, ks) for hb in range(4) for ks in range(2)]

    def mm(j, u):
        hb, ks = pairs[j]
        blk = (hb * 2 + ks) * 2 + u
        p(f"{DIAGMM} {v(T[j%3]+4*u,4)}, {v(DG+2*(2*ks+u),2)}, {v(CD+2*blk,2)}, {v(CA+4*blk,4)}")

    def cv(j, r):
        hb, ks = pairs[j]
        p(f"v_cvt_pk_bf16_f32 {v(W+(hb*2+ks)*4+r)}, {v(T[j%3]+2*r)}, {v(T[j%3]+2*r+1)}")
    p(f"v_add_u32 {v(TADR)}, 128, {v(TADR)}")
    p(f"ds_read_b128 {v(BIAS,4)}, {v(BADR)}")
    mm(0, 0)
    p(f"ds_read_b128 {v(BIAS+4,4)}, {v(BADR)} offset:64")
    p(f"ds_read_b128 {v(BIAS+8,4)}, {v(BADR)} offset:128")
    mm(0, 1)
    p(f"ds_read_b128 {v(BIAS+12,4)}, {v(BADR)} offset:192")
    p(f"ds_read_u16 {v(TR)}, {v(TADR)}")
    mm(1, 0)
    p(f"ds_read_u16 {v(TR+1)}, {v(TADR)} offset:8")
    p(f"ds_read_u16 {v(TR+2)}, {v(TADR)} offset:64")
    mm(1, 1)
    p(f"ds_read_u16 {v(TR+3)}, {v(TADR)} offset:72")
    p(f"v_add_u32 {v(BADR)}, {BSTR}, {v(BADR)}")
    mm(2, 0)
    cv(0, 0); cv(0, 1)
    mm(2, 1)
    cv(0, 2); cv(0, 3)
    for j in range(1, 8):
        if j + 2 < 8:
            mm(j + 2, 0)
        cv(j, 0); cv(j, 1)
        if j + 2 < 8:
            mm(j + 2, 1)
        cv(j, 2); cv(j, 3)
    p("s_waitcnt lgkmcnt(0)")


def g1(j):
    hb, ks = j >> 1, j & 1
    c = v(BIAS + 4 * hb, 4) if ks == 0 else v(ZB + 4 * hb, 4)
    return f"v_mfma_f32_16x16x32_bf16 {v(ZB+4*hb,4)}, {v(W+(hb*2+ks)*4,4)}, {v(XB+4*ks,4)}, {c}"


def read_xb(slot, ks):
    p(f"ds_read_b128 {v(XB+4*ks,4)}, {v((RDB0, RDB1)[ks])} offset:{slot*SLOT}")


SCHED = {
    "e": "ia ib k1 ent EV mid P0 e0 e1 e2 e3 e4 e5 A0 s0 s1 L2 G0 e6 q0 t0 e7 G2 e8 q1 t1 A1 r0 q2 t2 e9 G1 r1 q3 t3 e10 G3 "
         "r2 e11 r3 c0 A2 e12 G4 r4 c1 E2 e13 r5 e14 r6 c2 e15 G6 L0 m0 r7 da A3 G5 m1 r8 db G7 P1 r9 c3 vm y0 y1 r10 c4 k0 r11 B r12 c5 "
         "r13 r14 r15 c6 c7",
    "f": "ia ib k1 ent EV mid P0 e0 e1 e2 e3 e4 e5 A0 s0 s1 L2 G0 e6 q0 t0 e7 G2 e8 q1 t1 A1 r0 q2 t2 e9 G1 r1 q3 t3 e10 G3 "
         "r2 e11 r3 c0 A2 e12 G4 r4 c1 E2 m0 L0 da e13 r5 e14 r6 c2 e15 G6 P1 r7 A3 G5 m1 r8 G7 r9 c3 db vm y0 y1 r10 c4 k0 r11 B r12 c5 "
         "r13 r14 r15 c6 c7",
    "g": "ia ib k1 ent EV mid P0 e0 e1 e2 e3 e4 e5 A0 s0 s1 L2 G0 e6 q0 t0 e7 G2 e8 q1 t1 A1 r0 q2 t2 e9 G1 r1 q3 t3 e10 G3 "
         "r2 e11 r3 c0 A2 e12 G4 r4 c1 E2 e13 r5 e14 m0 L0 da r6 c2 e15 G6 P1 r7 A3 G5 m1 r8 G7 r9 c3 db vm y0 y1 r10 c4 k0 r11 B r12 c5 "
         "r13 r14 r15 c6 c7",
    "h": "ia ib k1 ent EV mid P0 e0 e1 e2 e3 e4 e5 A0 s0 s1 L2 G0 e6 q0 t0 e7 G2 e8 q1 t1 A1 r0 q2 t2 e9 G1 r1 q3 t3 e10 G3 "
         "r2 e11 r3 c0 A2 e12 G4 r4 c1 E2 m0 L0 da m1 e13 db r5 e14 r6 c2 e15 G6 P1 r7 A3 G5 r8 G7 r9 c3 vm y0 y1 r10 c4 k0 r11 B r12 c5 "
         "r13 r14 r15 c6 c7",
}


def event_mask():
    p(f"s_lshr_b64 {s(P0,2)}, {s(F,2)}, 2")
    p(f"s_lshr_b64 {s(H,2)}, {s(F,2)}, {D+1}")
    p(f"s_or_b32 {s(H)}, {s(H)}, {s(P0)}")
    p(f"s_or_b32 {s(H)}, {s(H)}, {s(F)}")


def mainloop(tag, slow):
    toks = SCHED[opt["sched"]].split()

    def scale(off):
        p(f"ds_read_b32 {v(TX)}, {v(RDM)} offset:{off}")
        p("s_waitcnt lgkmcnt(0)")
        for r in range(4):
            p(f"v_bfe_u32 {v(TX+1+r)}, {v(TX)}, {8*r}, 8")
            p(f"v_lshlrev_b32 {v(TX+1+r)}, 1, {v(TX+1+r)}")
        for r in range(4):
            p(f"buffer_load_ushort {v(TX+1+r)}, {v(TX+1+r)}, {s(SM,4)}, 0 offen")
        p("s_waitcnt vmcnt(0)")
        for r in range(4):
            p(f"v_lshlrev_b32 {v(TX+1+r)}, 16, {v(TX+1+r)}")
            p(f"v_mul_f32 {v(S+r)}, {v(S+r)}, {v(TX+1+r)}")

    def flush(last=False):
        p(f"v_cvt_pk_bf16_f32 {v(TX)}, {v(ACC)}, {v(ACC)}")
        if not last:
            p(f"v_mov_b32 {v(ACC)}, 0")
        if STAMP == 1:
            p("s_memrealtime s[96:97]")
            p("s_memtime s[98:99]")
            p(f"s_lshl_b32 {s(sT0)}, {s(sK)}, 1")
            p(f"s_sub_u32 {s(sT0)}, {16+2*(KB-1)}, {s(sT0)}")
            p("s_waitcnt lgkmcnt(0)")
            p(f"s_mov_b32 m0, {s(sT0)}")
            p("v_writelane_b32 v254, s96, m0")
            p(f"s_add_u32 m0, m0, 1")
            p("v_writelane_b32 v254, s98, m0")
            p(f"s_sub_u32 {s(sK)}, {s(sK)}, 1")
        p(f"ds_write_b16 {v(OADR)}, {v(TX)}")
        if last:
            return
        p(f"v_add_u32 {v(OADR)}, 128, {v(OADR)}")
        if slow:
            p(f"s_add_u32 {s(SM)}, {s(SM)}, {s(sMDL)}")
            p(f"s_addc_u32 {s(SM+1)}, {s(SM+1)}, 0")
            p(f"s_xor_b32 {s(sMDL)}, {s(sMDL)}, {MDL0 ^ MDL1:#x}")

    def emit(u, toks, tail):
        ev = opt["prio"] and u in ((0, D // 2) if opt["prio"] == 2 else (0,))
        for t in toks:
            k, n = t[0], (int(t[1:]) if t[1:].isdigit() else None)
            if opt.get("nodma") and t in ("da", "db"):
                continue
            if opt.get("nocomp") and k in "ercsAGqk" and n is not None:
                continue
            if t == "vm":
                p(f"s_waitcnt vmcnt({2*(D-2)})")
            elif k == "y":
                read_xb((u + 2) % D, n)
            elif t == "ent":
                if u == 0:
                    p(f"L{tag}_mid:")
            elif t in ("mid", "mi2"):
                if slow:
                    scale(u * 16 + (16 if t == "mi2" else 0))
            elif t == "ia":
                p(f"ds_read_u8 {v(VA)}, {v(RDL)} offset:{(u+D)*16}")
            elif t == "ib":
                p(f"ds_read_u8 {v(VB)}, {v(RDL)} offset:{(u+D)*16+8}")
            elif t == "EV":
                p(f"s_bitcmp1_b32 {s(H)}, {u}")
                p(f"s_cbranch_scc1 L{tag}_ev{u}")
                p(f"L{tag}_evd{u}:")
            elif t == "E2":
                if tail:
                    p(f"s_bitcmp0_b64 {s(F,2)}, 1")
                    p(f"s_cbranch_scc1 L{tag}_tnf")
                    flush()
                    p(f"L{tag}_tnf:")
            elif t == "P0":
                if ev:
                    p("s_mov_b64 exec, 1")
                    p(f"ds_add_rtn_u32 {v(PRV)}, {v(PADR)}, {v(PINC)}")
                    p("s_mov_b64 exec, -1")
            elif t == "P1":
                if ev:
                    p(f"v_readfirstlane_b32 {s(sT0)}, {v(PRV)}")
                    p("s_setprio 0")
                    p(f"s_xor_b32 {s(sT0)}, {s(sT0)}, {s(sSGN)}")
                    p(f"s_cmp_gt_i32 {s(sT0)}, 0")
                    p(f"s_cbranch_scc0 L{tag}_lo{u}")
                    p("s_setprio 1")
                    p(f"L{tag}_lo{u}:")
            elif t == "da":
                p(dma_half(0))
            elif t == "db":
                p(dma_half(1))
            elif t == "B":
                if u == D - 1:
                    p(f"s_lshr_b64 {s(F,2)}, {s(F,2)}, {D}")
                    p(f"s_lshl_b64 {s(P0,2)}, {s(F+2,2)}, {64-D}")
                    p(f"s_or_b64 {s(F,2)}, {s(F,2)}, {s(P0,2)}")
                    p(f"s_lshr_b64 {s(F+2,2)}, {s(F+2,2)}, {D}")
                    event_mask()
                    p(f"v_add_u32 {v(RDL)}, {16*D}, {v(RDL)}")
                    if slow:
                        p(f"v_add_u32 {v(RDM)}, {16*D}, {v(RDM)}")
            elif k == "m":
                if not (opt["m1"] and n):
                    p(m0_half(u, n))
            elif k == "e":
                p(f"v_exp_f32 {v(ZA+n)}, {v(ZB+n)}")
            elif k == "r":
                p(f"v_rcp_f32 {v(ZA+n)}, {v(ZA+n)}")
            elif k == "c":
                p(f"v_cvt_pk_bf16_f32 {v(ZA+n)}, {v(ZA+2*n)}, {v(ZA+2*n+1)}")
            elif k == "s":
                p(f"v_cvt_pk_bf16_f32 {v(S+n)}, {v(S+2*n)}, {v(S+2*n+1)}")
            elif k == "A":
                p(f"v_mfma_f32_4x4x4_16b_bf16 {v(ZA+4*n,4)}, {v(ONE,2)}, {v(ONE,2)}, {v(ZA+4*n,4)}")
            elif k == "G":
                p(g1(n))
            elif k == "q":
                p(f"v_mfma_f32_4x4x4_16b_bf16 {v(ACC,4)}, {v(S,2)}, {v(XT+2*n,2)}, {v(ACC,4)} cbsz:4 abid:{4*n}")
            elif k == "t":
                p(f"ds_read_b64_tr_b16 {v(XT+2*n,2)}, {v(RDT)} offset:{u*SLOT+n*512+(n>>1)*32}")
            elif k == "k":
                p(f"v_mfma_f32_16x16x32_bf16 {v(S,4)}, {v(ZA+4*n,4)}, {v(W2+4*n,4)}, {v(B2,4) if n == 0 else v(S,4)}")
            elif k == "L":
                p(f"s_waitcnt lgkmcnt({n})")
            else:
                raise ValueError(t)

    p(f"L{tag}_loop:")
    for u in range(D):
        emit(u, toks, False)
    p(f"s_branch L{tag}_loop")
    for u in range(D):
        p(f"L{tag}_ev{u}:")
        p(f"s_bitcmp0_b64 {s(F,2)}, {u}")
        p(f"s_cbranch_scc1 L{tag}_nf{u}")
        flush()
        p(f"L{tag}_nf{u}:")
        p(f"s_bitcmp0_b64 {s(F,2)}, {u+D+1}")
        p(f"s_cbranch_scc1 L{tag}_na{u}")
        adv_hist()
        p(f"L{tag}_na{u}:")
        p(f"s_bitcmp0_b64 {s(F,2)}, {u+2}")
        p(f"s_cbranch_scc1 L{tag}_evd{u}")
        p(f"s_sub_u32 {s(sKW)}, {s(sKW)}, 1")
        p(f"s_cbranch_scc1 L{tag}_last{u}")
        wbuild()
        p(f"s_branch L{tag}_evd{u}")
    for u in range(D):
        p(f"L{tag}_last{u}:")
        if u:
            p(f"v_add_u32 {v(RDT)}, {u*SLOT}, {v(RDT)}")
            p(f"s_lshr_b64 {s(F,2)}, {s(F,2)}, {u}")
            if slow:
                p(f"v_add_u32 {v(RDM)}, {16*u}, {v(RDM)}")
        if u < D - 1:
            p(f"s_branch L{tag}_tail")
    p(f"L{tag}_tail:")
    i1 = toks.index("EV")
    drop = lambda t: t in ("vm", "ia", "ib", "EV", "ent", "P0", "P1", "da", "db", "B", "L2") or (t[0] in "Gym" and t[1:].isdigit())
    emit(0, [t for t in toks[i1:] + toks[:i1] if not drop(t)] + ["mi2", "s0", "s1", "q0", "q1", "q2", "q3"], True)
    flush(last=True)
    if slow:
        p("s_branch L_store")


p(f"{NAME}:")
cst("entry")
if STAMP:
    if STAMP != 4:
        p("s_memrealtime s[98:99]")
        p("s_memtime s[96:97]")
    p("s_load_dwordx2 s[100:101], s[0:1], 72")
p("s_load_dwordx16 s[4:19], s[0:1], 0")
p(f"s_cmp_ge_u32 s2, {NWG}")
p("s_cbranch_scc1 L_end")
if opt.get("pf", 0):
    p("s_getpc_b64 s[36:37]")
    p("v_lshlrev_b32 v2, 7, v0")
    p(f"v_cmp_gt_u32 vcc, {opt.get('pfl', 128)}, v0")
    p("s_and_saveexec_b64 s[38:39], vcc")
    p("s_cbranch_execz L_nopf")
    p("global_load_dword v255, v2, s[36:37]")
    p("L_nopf:")
    p("s_mov_b64 exec, -1")
p("v_lshrrev_b32 v1, 6, v0")
p("v_and_b32 v0, 63, v0")
p(f"v_readfirstlane_b32 {s(sw)}, v1")
if opt["map"] & 2:
    p("s_and_b32 s3, s2, 7")
    p("s_lshl_b32 s3, s3, 5")
    p(f"s_lshr_b32 {s(sW)}, s2, 3")
    p(f"s_add_u32 {s(sW)}, {s(sW)}, s3")
    p(f"s_lshl_b32 {s(sW)}, {s(sW)}, {(WGSTR//2).bit_length()-1}")
else:
    p(f"s_lshl_b32 {s(sW)}, s2, {(WGSTR//2).bit_length()-1}")
p("v_lshlrev_b32 v2, 4, v0")
p(f"s_bfm_b64 {s(EX50,2)}, 50, 0")
p(f"s_add_u32 {s(sW)}, {s(sW)}, {s(sw)}")
p(f"s_mul_i32 {s(sT0)}, {s(sW)}, 800")
p(f"s_mul_i32 {s(sLB)}, {s(sw)}, {REG}")
p(f"v_add_u32 v3, {s(sT0)}, v2")
p(f"v_and_b32 {v(TX+2)}, 16, v0")
p(f"v_lshlrev_b32 {v(TX)}, 1, {v(TX+2)}")
p(f"v_xor_b32 {v(TX)}, {v(TX)}, v2")
p(f"s_lshl_b32 {s(sT1)}, {s(sw)}, 12")
p(f"s_add_u32 m0, {s(sLB)}, {STG}")
p(f"s_mov_b64 exec, {s(EX50,2)}")
p("s_waitcnt lgkmcnt(0)")
cst("kernarg")
if STAMP and STAMP != 4:
    p("s_mov_b64 exec, -1")
    p("v_mov_b32 v254, 0")
    p("v_writelane_b32 v254, s98, 0")
    p("v_writelane_b32 v254, s96, 32")
    nstamp[0] = 1
    stamp()
    p(f"s_mov_b64 exec, {s(EX50,2)}")
p(f"global_load_dwordx4 {v(MSK,4)}, v3, s[8:9] {NTM}")
p("s_mov_b64 exec, -1")
p(f"s_add_u32 s10, s10, {s(sT1)}")
p("s_addc_u32 s11, s11, 0")
p(f"v_xor_b32 {v(TX+1)}, 64, {v(TX)}")
for j in range(4):
    p(f"global_load_lds_dwordx4 {v(TX+(j&1))}, s[10:11] offset:{j*1024}")
p(f"s_load_dword {s(sB2)}, s[16:17], 0")
p("v_lshrrev_b32 v1, 4, v0")
p(f"v_and_b32 {v(VOUT)}, 0xf0, v2")
p(f"v_lshl_add_u32 {v(VOUT)}, v1, {LGP+7}, {v(VOUT)}")
p(f"s_lshl_b32 {s(sT0)}, {s(sW)}, 8")
p(f"s_add_u32 m0, {s(sLB)}, {TB}")
p(f"v_add_u32 {v(VOUT)}, {s(sT0)}, {v(VOUT)}")
p(f"s_and_b32 {s(sT1)}, {s(sw)}, 3")
p(f"global_load_lds_dwordx4 {v(VOUT)}, s[4:5] {NTM}")
B1R, W2R = CD + 28, DG
p(f"s_lshl_b32 {s(sT0)}, {s(sT1)}, 5")
p(f"v_lshl_add_u32 {v(TX+3)}, v1, 3, {s(sT0)}")
p(f"global_load_dwordx2 {v(B1R,2)}, {v(TX+3)}, s[12:13]")
p(f"v_and_b32 {v(TX+4)}, 3, v0")
NVM = 11
stamp()
p(f"s_mul_i32 {s(sT0)}, {s(sW)}, 51200")
p(f"s_add_u32 s6, s6, {s(sT0)}")
p("s_addc_u32 s7, s7, 0")
srd(SH, 6, 200, stride=128)
if opt["m1"]:
    p(f"s_sub_u32 s6, s6, 1056")
    p("s_subb_u32 s7, s7, 0")
    srd(SH2, 6, 200, stride=128)
p(f"s_movk_i32 {s(sDL)}, {DLT0}")
p(f"v_mov_b32 {v(ZB)}, -1")
p(f"v_mov_b32 {v(ZB+1)}, -1")
p(f"v_mov_b32 {v(ZB+2)}, -1")
p(f"v_mov_b32 {v(ZB+3)}, -1")
p(f"s_add_u32 {s(sT0)}, {s(sLB)}, {LI}")
p(f"v_add_u32 {v(ZB+4)}, {s(sT0)}, v2")
p(f"ds_write_b128 {v(ZB+4)}, {v(ZB,4)}")
p(f"ds_write_b128 {v(ZB+4)}, {v(ZB,4)} offset:1024")
for j in range(5, 2 * D):
    p(f"v_mov_b32 {v(ZB+j)}, -1")
p(f"s_add_u32 {s(sBASE)}, {s(sLB)}, {L0}")
p(f"v_lshrrev_b32 {v(RDL)}, 3, v0")
p(f"v_add_u32 {v(RDL)}, {s(sBASE)}, {v(RDL)}")
p(f"v_lshl_add_u32 {v(RDM)}, v1, 2, {s(sT0)}")
p(f"v_and_b32 {v(VA+1)}, 0x70, v2")
p(f"v_lshlrev_b32 {v(TX+2)}, 2, {v(TX+2)}")
p(f"v_xor_b32 {v(VA+1)}, {v(VA+1)}, {v(TX+2)}")
p(f"v_mov_b32 {v(VB+1)}, {v(VA+1)}")
p(f"v_cmp_lt_u32 vcc, 24, v0")
p(f"v_mov_b32 {v(OACC)}, 0")
p(f"v_mov_b32 {v(SACC)}, 0")
p(f"v_cndmask_b32 {v(HI)}, 0, 1, vcc")
p(f"v_mul_u32_u24 {v(CV+1)}, 25, {v(HI)}")
p(f"v_sub_u32 {v(CV+1)}, v0, {v(CV+1)}")
p(f"v_mul_u32_u24 {v(CV+1)}, 0x80008, {v(CV+1)}")
p(f"v_add_u32 {v(CV)}, 0x10000, {v(CV+1)}")
p(f"v_add_u32 {v(CV+2)}, 0x50004, {v(CV+1)}")
p(f"v_add_u32 {v(CV+3)}, 0x70006, {v(CV+1)}")
p(f"v_add_u32 {v(CV+1)}, 0x30002, {v(CV+1)}")
p(f"s_mov_b64 {s(F,2)}, 0")
p(f"s_mov_b64 {s(F+2,2)}, 0")
if STAMP:
    p(f"s_mov_b32 {s(sK)}, {KB-1}")
p(f"s_mov_b32 {s(sKA)}, {KB-1}")
p(f"s_mov_b32 {s(sKW)}, {KB-1}")
p(f"s_mov_b32 {s(sC)}, {CNEG:#x}")
n_, r_, c_ = TX + 5, TX + 6, TX + 4
p(f"v_and_b32 {v(n_)}, 15, v0")
p(f"v_bfe_u32 {v(r_)}, v0, 2, 2")
X0 = TX + 7
SA, SC_, SB_, TBA, BWA = CA + 60, CA + 61, CA + 62, CA + 63, CD + 30
IDN, N0M = DG + 2, DG + 4
p(f"v_lshlrev_b32 {v(X0)}, 3, {v(c_)}")
p(f"v_lshl_add_u32 {v(X0)}, {v(r_)}, 7, {v(X0)}")
p(f"v_and_b32 {v(TX)}, 24, v0")
p(f"v_lshlrev_b32 {v(TX)}, 2, {v(TX)}")
p(f"v_xor_b32 {v(TX)}, {v(X0)}, {v(TX)}")
p(f"v_lshl_add_u32 {v(TX)}, v1, 10, {v(TX)}")
p(f"s_lshl_b32 {s(sT0)}, {s(sT1)}, 5")
p(f"v_xor_b32 {v(SB_)}, {s(sT0)}, {v(TX)}")
p(f"v_add_u32 {v(SB_)}, {STG+2*REG}, {v(SB_)}")
p(f"s_lshr_b32 {s(sT0)}, {s(sw)}, 1")
p(f"s_lshl_b32 {s(sT0)}, {s(sT0)}, 5")
p(f"v_xor_b32 {v(SA)}, {s(sT0)}, {v(TX)}")
p(f"s_and_b32 {s(sT0)}, {s(sw)}, 1")
p(f"s_mul_i32 {s(sT0)}, {s(sT0)}, {REG}")
p(f"s_add_u32 {s(sT0)}, {s(sT0)}, {STG}")
p(f"v_add_u32 {v(SA)}, {s(sT0)}, {v(SA)}")
p(f"v_add_u32 {v(SC_)}, {4*REG}, {v(SA)}")
p(f"s_and_b32 {s(sT0)}, {s(sw)}, 4")
p(f"v_lshrrev_b32 {v(TX)}, 3, {v(n_)}")
p(f"v_add_u32 {v(TX)}, {s(sT0)}, {v(TX)}")
p(f"v_mul_u32_u24 {v(TX)}, {REG}, {v(TX)}")
p(f"v_lshl_add_u32 {v(TX)}, v1, 4, {v(TX)}")
p(f"v_and_b32 {v(TX+1)}, 7, v0")
p(f"v_lshl_add_u32 {v(TBA)}, {v(TX+1)}, 7, {v(TX)}")


def gRDB():
    p(f"v_and_b32 {v(TX+1)}, 8, v0")
    p(f"v_lshlrev_b32 {v(TX+1)}, 2, {v(TX+1)}")
    p(f"v_lshl_add_u32 {v(TX+1)}, {v(n_)}, 7, {v(TX+1)}")
    p(f"v_add_u32 {v(TX+1)}, {s(sLB)}, {v(TX+1)}")
    p(f"v_and_b32 {v(TX+2)}, 2, v0")
    p(f"v_lshlrev_b32 {v(TX+2)}, 1, {v(TX+2)}")
    p(f"v_xor_b32 {v(TX+2)}, {v(TX+2)}, v1")
    p(f"v_lshl_add_u32 {v(RDB0)}, {v(TX+2)}, 4, {v(TX+1)}")
    p(f"v_xor_b32 {v(TX+2)}, 4, {v(TX+2)}")
    p(f"v_lshl_add_u32 {v(RDB1)}, {v(TX+2)}, 4, {v(TX+1)}")


def gRDT():
    p(f"v_and_b32 {v(TX+1)}, 8, v0")
    p(f"v_lshlrev_b32 {v(TX+1)}, 3, {v(TX+1)}")
    p(f"v_lshl_add_u32 {v(TX+2)}, v1, 5, {v(X0)}")
    p(f"v_xor_b32 {v(TX+2)}, {v(TX+2)}, {v(TX+1)}")
    p(f"v_add_u32 {v(RDT)}, {s(sLB)}, {v(TX+2)}")


def gTAD():
    p(f"s_add_u32 {s(sT0)}, {s(sLB)}, {TB}")
    p(f"v_lshl_add_u32 {v(TADR)}, {v(c_)}, 1, {s(sT0)}")
    p(f"v_lshl_add_u32 {v(TADR)}, {'v1' if W44 else v(r_)}, 4, {v(TADR)}")
    p(f"v_lshl_add_u32 {v(OADR)}, v0, 1, {s(sT0)}")
    p(f"s_add_u32 {s(sT0)}, {s(sLB)}, {BI}")
    p(f"v_lshl_add_u32 {v(BADR)}, v1, 4, {s(sT0)}")


def gBWA():
    p(f"s_and_b32 {s(sT0)}, {s(sw)}, 3")
    p(f"s_lshl_b32 {s(sT0)}, {s(sT0)}, 6")
    p(f"s_add_u32 {s(sT0)}, {s(sT0)}, {BI}")
    p(f"v_and_b32 {v(TX+1)}, 7, v0")
    p(f"v_mul_u32_u24 {v(TX+1)}, {BSTR-128}, {v(TX+1)}")
    p(f"v_add3_u32 {v(BWA)}, {v(TBA)}, {v(TX+1)}, {s(sT0)}")


def gSEL():
    if not W44:
        p(f"v_cmp_eq_u32 vcc, {v(r_)}, v1")
    p(f"v_and_b32 {v(TX+1)}, 1, v0")
    p(f"v_lshlrev_b32 {v(TX+1)}, 4, {v(TX+1)}")
    p(f"v_lshlrev_b32 {v(TX+1)}, {v(TX+1)}, 1")
    if not W44:
        p(f"v_cndmask_b32 {v(TX+1)}, 0, {v(TX+1)}, vcc")
    p(f"v_cmp_gt_u32 vcc, 2, {v(c_)}")
    p(f"v_mov_b32 {v(ONE+1)}, 0")
    p(f"v_mov_b32 {v(ONE)}, 0x3f80")
    p(f"v_cndmask_b32 {v(SEL0)}, 0, {v(TX+1)}, vcc")
    p(f"v_cmp_eq_u32 vcc, 0, {v(n_)}")
    p(f"v_sub_u32 {v(SEL1)}, {v(TX+1)}, {v(SEL0)}")
    p(f"v_mul_u32_u24 {v(IDN)}, 0x3f80, {v(SEL0)}")
    p(f"v_cndmask_b32 {v(N0M)}, 0, -1, vcc")
    p(f"v_mul_u32_u24 {v(IDN+1)}, 0x3f80, {v(SEL1)}")


def gZER():
    for j in range(8):
        p(f"v_mov_b32 {v(XT+j)}, 0")
    for j in range(4):
        p(f"v_mov_b32 {v(S+j)}, 0")
        p(f"v_mov_b32 {v(ACC+j)}, 0")


def gB2():
    p(f"s_lshl_b32 {s(sB2)}, {s(sB2)}, 16")
    for r in range(4):
        p(f"v_and_b32 {v(B2+r)}, {s(sB2)}, {v(N0M)}")


def gPRI():
    if opt["prio"]:
        p(f"s_and_b32 {s(sT0)}, {s(sw)}, 3")
        p(f"s_mul_i32 {s(sT0)}, {s(sT0)}, {REG}")
        p(f"s_add_u32 {s(sT0)}, {s(sT0)}, {PRG}")
        p(f"v_mov_b32 {v(DG+5)}, {s(sT0)}")
        p(f"s_cmp_ge_u32 {s(sw)}, 4")
        p(f"s_cselect_b32 {s(sSGN)}, -1, 0")
        p(f"ds_write_b32 {v(DG+5)}, {v(ONE+1)}")


PLACE = dict(zip((gSEL, gBWA, gPRI, gB2, gRDB, gRDT, gTAD, gZER), (int(x) for x in str(opt["place"])[1:])))


def groups(k):
    for f, w_ in PLACE.items():
        if w_ == k:
            f()


groups(0)
p(f"s_mov_b64 exec, {s(EX50,2)}")
for j in range(1, 4):
    p(f"v_add_u32 v3, {PSTR*400}, v3")
    p(f"global_load_dwordx4 {v(MSK+4*j,4)}, v3, s[8:9] {NTM}")
p("s_mov_b64 exec, -1")
p(f"v_lshlrev_b32 {v(TX+3)}, 3, v1")
p(f"v_lshl_add_u32 {v(TX+3)}, {v(TX+4)}, 5, {v(TX+3)}")
p(f"global_load_dwordx2 {v(W2R,2)}, {v(TX+3)}, s[14:15]")
NE = D - 2
PLAN = [int(x) for x in str(opt["plan"])]
assert sum(PLAN) == NE
IDX = ZB


def idx_reads():
    for t in range(D):
        p(f"ds_read_u8 {v(IDX+2*t)}, {v(RDL)} offset:{t*16}")
        p(f"ds_read_u8 {v(IDX+2*t+1)}, {v(RDL)} offset:{t*16+8}")


def tiles(t0, t1, bits, tag):
    for t in range(t0, t1):
        if t > 0:
            p(f"s_bitcmp0_b64 {s(bits,2)}, {t+1}")
            p(f"s_cbranch_scc1 L_noadv{tag}{t}")
            adv_hist()
            p(f"L_noadv{tag}{t}:")
        p(m0_half(t, 0))
        p(f"v_mov_b32 {v(VA)}, {v(IDX+2*t)}")
        p(f"v_mov_b32 {v(VB)}, {v(IDX+2*t+1)}")
        p(dma_half(0))
        if not opt["m1"]:
            p(m0_half(t, 1))
            p("s_nop 0")
        p(dma_half(1))


issued = [0]


def early(n):
    if n == 0:
        return
    t0 = issued[0]
    p(f"s_cmp_eq_u32 {s(sEARLY)}, 0")
    p(f"s_cbranch_scc1 L_skip{t0}")
    tiles(t0, t0 + n, F, "e")
    p(f"L_skip{t0}:")
    issued[0] += n


def first_pair():
    compact(0)
    p(f"s_add_u32 {s(sT0)}, {s(sLB)}, {L0+16*D}")
    p(f"s_cmp_ge_u32 {s(sBASE)}, {s(sT0)}")
    p(f"s_cselect_b32 {s(sEARLY)}, 1, 0")
    p("s_cbranch_scc1 L_early")
    p("s_waitcnt vmcnt(0)")
    p("L_early:")
    idx_reads()
    p("s_waitcnt lgkmcnt(0)")
    early(PLAN[0])


stamp()
ASYM = opt["ord"] == 2
if opt["ord"] == 0:
    p(f"s_waitcnt vmcnt({NVM-1}) lgkmcnt(0)")
    stamp()
    first_pair()
    stamp()
    early(PLAN[1])
if ASYM:
    assert PLAN[1:] == [0, 0, 0]
    p(f"s_cmp_ge_u32 {s(sw)}, 4")
    p("s_cbranch_scc1 L_young1")
    p(f"s_waitcnt vmcnt({NVM-1}) lgkmcnt(0)")
    p(f"s_call_b64 {s(RET,2)}, L_fp")
    p(f"s_waitcnt vmcnt({5+2*PLAN[0]})")
    p("s_branch L_old1")
    p("L_young1:")
    p(f"s_waitcnt vmcnt(5)")
    p("L_old1:")
cst("preB1")
if ASYM:
    p(f"s_waitcnt lgkmcnt(0)")
else:
    p(f"s_waitcnt vmcnt({5+2*issued[0]}) lgkmcnt(0)")
p("s_barrier")
stamp()
cst("B1")
RWA, RWC, RWD, RBB, RBC, TP, DB, DA, DD = CA, CA + 4, CA + 8, CA + 12, CA + 20, CA + 28, CA + 44, CA + 52, CD
for (dst, base) in ((RBB, 0), (RBC, 2)):
    for ks in range(2):
        for u in range(2):
            p(f"ds_read_b64_tr_b16 {v(dst+4*ks+2*u,2)}, {v(SB_)} offset:{(base+ks)*REG+u*512}")
for j in range(2):
    for ks in range(2):
        p(f"ds_read_b128 {v(TP+8*j+4*ks,4)}, {v(TBA)} offset:{TB+j*2*REG+ks*64}")
for u in range(2):
    p(f"ds_read_b64_tr_b16 {v(RWA+2*u,2)}, {v(SA)} offset:{u*512}")
    p(f"ds_read_b64_tr_b16 {v(RWC+2*u,2)}, {v(SC_)} offset:{u*512}")
    p(f"ds_read_b64_tr_b16 {v(RWD+2*u,2)}, {v(SC_)} offset:{2*REG+u*512}")
if ASYM:
    p(f"s_cmp_ge_u32 {s(sw)}, 4")
    p("s_cbranch_scc1 L_young2")
    p(f"s_waitcnt vmcnt({4+2*PLAN[0]})")
    p("s_branch L_old2")
    p("L_young2:")
    p(f"s_waitcnt vmcnt(4)")
    p("L_old2:")
else:
    p(f"s_waitcnt vmcnt({4+2*issued[0]})")
for j in range(2):
    p(f"v_lshlrev_b32 {v(DB+2*j)}, 16, {v(B1R+j)}")
    p(f"v_and_b32 {v(DB+2*j+1)}, 0xffff0000, {v(B1R+j)}")
groups(1)
if opt["ord"] == 1:
    first_pair()
    stamp()
    early(PLAN[1])
    stamp()
early(PLAN[2])
cst("firstpair")
p("s_waitcnt lgkmcnt(0)")
for j in range(8):
    p(f"v_xor_b32 {v(RBC+j)}, 0x80008000, {v(RBC+j)}")
for u in range(2):
    p(f"{DIAGMM} {v(DA+4*u,4)}, {v(IDN,2)}, {v(RWA+2*u,2)}, 0")
    p(f"{DIAGMM} {v(DD+4*u,4)}, {v(IDN,2)}, {v(RWD+2*u,2)}, 0")
for u in range(2):
    p(f"{DIAGMM} {v(DA+4*u,4)}, {v(IDN,2)}, {v(RWC+2*u,2)}, {v(DA+4*u,4)}")
for j in (1, 0):
    first = True
    for (src) in (RBB, RBC):
        for ks in range(2):
            c = v(DB, 4) if first else v(DB + 4 * j, 4)
            p(f"v_mfma_f32_16x16x32_bf16 {v(DB+4*j,4)}, {v(src+4*ks,4)}, {v(TP+8*j+4*ks,4)}, {c}")
            first = False
for j in range(8):
    p(f"v_mul_f32 {v(DA+j)}, {s(sC)}, {v(DA+j)}")
for j in range(8):
    p(f"v_mul_f32 {v(DD+j)}, {s(sC)}, {v(DD+j)}")
p(f"s_add_u32 {s(sT0)}, {s(sLB)}, {XCH}")
p(f"v_add_u32 v3, {s(sT0)}, v2")
for j in range(4):
    p(f"v_cvt_pk_bf16_f32 {v(DD+j)}, {v(DD+2*j)}, {v(DD+2*j+1)}")
for j in range(8):
    p(f"v_mul_f32 {v(DB+j)}, {s(sC)}, {v(DB+j)}")
early(PLAN[3])
p(f"ds_write_b128 v3, {v(DA,4)}")
p(f"ds_write_b128 v3, {v(DA+4,4)} offset:1024")
p(f"ds_write_b128 v3, {v(DD,4)} offset:2048")
p(f"ds_write_b128 {v(BWA)}, {v(DB,4)}")
p(f"ds_write_b128 {v(BWA)}, {v(DB+4,4)} offset:{2*REG}")
p(f"v_add_u32 v3, {XCH}, v2")
p(f"v_add_u32 {v(TX)}, {4*REG}, v3")
cst("preB3")
p("s_waitcnt lgkmcnt(0)")
p("s_barrier")
cst("B3")
stamp()
def const_reads(w0, w1):
    for w_ in range(w0, w1):
        a = "v3" if w_ < 4 else v(TX)
        p(f"ds_read_b128 {v(CA+8*w_,4)}, {a} offset:{(w_&3)*REG}")
        p(f"ds_read_b128 {v(CA+8*w_+4,4)}, {a} offset:{(w_&3)*REG+1024}")
        p(f"ds_read_b128 {v(CD+4*w_,4)}, {a} offset:{(w_&3)*REG+2048}")


cuts = (0, 2, 5, 8) if opt["il"] else (0, 8, 8, 8)
if ASYM:
    p(f"s_cmp_lt_u32 {s(sw)}, 4")
    p("s_cbranch_scc1 L_old3")
    p(f"s_call_b64 {s(RET,2)}, L_fp")
    p("L_old3:")
    issued[0] = PLAN[0]
if opt["il"]:
    early(2)
const_reads(cuts[0], cuts[1])
if not opt["il"]:
    early(2)
groups(2)
p(f"s_waitcnt vmcnt({2*D})")
cst("tiles23")
compact(1)
const_reads(cuts[1], cuts[2])
compact(2)
const_reads(cuts[2], cuts[3])
for x in range(4):
    p(f"ds_read_u16 {v(TR+x)}, {v(TADR)} offset:{(x>>1)*64+(x&1)*8}")
stamp()
compact(3)
p(f"s_mov_b32 {s(sT0)}, {~0x3f803f80 & 0xffffffff:#x}")
p(f"v_and_or_b32 {v(OACC)}, {v(OACC)}, {s(sT0)}, {v(SACC)}")
p(f"v_cmp_ne_u32 {s(NB,2)}, 0, {v(OACC)}")
if opt["prio"]:
    p(f"s_sub_u32 {s(sT0)}, {s(sBASE)}, {s(sLB)}")
    p(f"s_sub_u32 {s(sT0)}, {s(sT0)}, {L0}")
    p(f"s_lshr_b32 {s(sT0)}, {s(sT0)}, 3")
    p(f"s_xor_b32 {s(sT0)}, {s(sT0)}, {s(sSGN)}")
    p(f"s_sub_u32 {s(sT0)}, {s(sT0)}, {s(sSGN)}")
    p(f"s_xor_b32 {s(sT1)}, {(-D if opt['prio'] == 2 else -2*D) & 0xffffffff:#x}, {s(sSGN)}")
    p(f"s_sub_u32 {s(sT1)}, {s(sT1)}, {s(sSGN)}")
    p(f"v_mov_b32 {v(PADR)}, {v(DG+5)}")
    p(f"v_mov_b32 {v(PRV)}, {s(sT0)}")
    p(f"v_mov_b32 {v(PINC)}, {s(sT1)}")
    p("s_mov_b64 exec, 1")
    p(f"ds_add_u32 {v(PADR)}, {v(PRV)}")
    p("s_mov_b64 exec, -1")
p(f"s_cmp_eq_u32 {s(sEARLY)}, 1")
p("s_cbranch_scc1 L_nolate")
idx_reads()
p("s_waitcnt lgkmcnt(0)")
tiles(0, D, F, "l")
p("L_nolate:")
for hb in range(4):
    for j in range(2):
        p(f"v_and_b32_dpp {v(W2+2*hb+j)}, {v(W2R+j)}, {v(N0M)} quad_perm:[{hb},{hb},{hb},{hb}] row_mask:0xf bank_mask:0xf")
cst("precompactdone")
p(f"s_waitcnt vmcnt({2*(D-1)}) lgkmcnt(0)")
read_xb(0, 0)
read_xb(0, 1)
wbuild()
stamp()
stamp(33)
cst("wbuilt")
if STAMP == 4:
    p("s_waitcnt lgkmcnt(0)")
    p("v_mov_b32 v254, 0")
    for j, r in enumerate((38,94,44,46,48,50,96,98,26,86)):
        p(f"v_writelane_b32 v254, s{r}, {j}")
for j in range(8):
    p(g1(j))
if opt.get("dbgnop"):
    p("s_nop 15"); p("s_nop 15"); p("s_nop 15")
p(f"s_waitcnt vmcnt({2*(D-2)})")
read_xb(1, 0)
read_xb(1, 1)
p(f"ds_read_u8 {v(VA)}, {v(RDL)} offset:{D*16}")
p(f"ds_read_u8 {v(VB)}, {v(RDL)} offset:{D*16+8}")
event_mask()
p(f"s_cmp_lg_u64 {s(NB,2)}, 0")
p("s_cbranch_scc0 Lf_mid")
p(f"s_mul_i32 {s(sT0)}, {s(sW)}, 800")
p(f"s_add_u32 s8, s8, {s(sT0)}")
p("s_addc_u32 s9, s9, 0")
srd(SM, 8, 400)
p(f"s_movk_i32 {s(sMDL)}, {MDL0}")
p("s_branch Ls_mid")
if ASYM:
    assert not opt["sub"]
    p("L_fp:")
    issued[0] = 0
    first_pair()
    p(f"s_setpc_b64 {s(RET,2)} ; ret=L_fp")
if opt["sub"]:
    p("L_compact:")
    compact_body(0)
    p(f"s_setpc_b64 {s(RET,2)} ; ret=L_compact")
    p("L_wbuild:")
    wbuild_body()
    p(f"s_setpc_b64 {s(RET,2)} ; ret=L_wbuild")
mainloop("f", False)
p("L_store:")
p(f"s_add_u32 {s(sT0)}, {s(sLB)}, {TB}")
p(f"v_lshl_add_u32 {v(TX+1)}, v0, 4, {s(sT0)}")
p("s_waitcnt lgkmcnt(0)")
p(f"ds_read_b128 {v(ZB,4)}, {v(TX+1)}")
p("s_waitcnt lgkmcnt(0)")
p(f"global_store_dwordx4 {v(VOUT)}, {v(ZB,4)}, s[18:19] {NTO}")
if STAMP:
    stamp(34)
    p(f"v_writelane_b32 v254, {s(sBASE)}, 15")
    p("s_getreg_b32 s96, hwreg(HW_REG_XCC_ID)")
    p("v_writelane_b32 v254, s96, 14")
    p("s_getreg_b32 s96, hwreg(HW_REG_HW_ID)")
    p("v_writelane_b32 v254, s96, 13")
    srd(SM, 100, 2048 * 256)
    p(f"s_lshl_b32 {s(sT0)}, s2, 3")
    p(f"s_add_u32 {s(sT0)}, {s(sT0)}, {s(sw)}")
    p(f"s_lshl_b32 {s(sT0)}, {s(sT0)}, 8")
    p(f"v_lshlrev_b32 v1, 2, v0")
    p(f"buffer_store_dword v254, v1, {s(SM,4)}, {s(sT0)} offen")
p("L_end:")
p("s_endpgm")
mainloop("s", True)

nn = p.fix_hazards(verbose=opt["verbose"])
for early_, old_ in ((True, True), (False, True), (True, False), (False, False)):
    for e in check_waits(p, (("L_early", early_), ("L_skip", not early_), ("L_nolate", early_), ("L_young", not old_), ("L_old3", old_))):
        sys.exit(f"WAIT-CHECK early={early_}: {e}")
hdr = open(__file__.rsplit("/", 1)[0] + "/../standalone__sequential_behavior_din__recsys.s.ref").read().split("\n")
head = [l for l in hdr if l.startswith(";") and "@launch" not in l and "Override" not in l and "grid=ceil" not in l]
out = "\n".join(head) + f"""
; @launch grid=({NWG},1,1) block=({WPB*64},1,1) lds={WPB*REG}
; generated by gen/gen.py {' '.join(sys.argv[1:])}
.amdgcn_target "amdgcn-amd-amdhsa--gfx950"
.text
.globl {NAME}
.p2align 8
.type {NAME},@function
""" + p.text() + f""".section .rodata,"a"
.p2align 6
.amdhsa_kernel {NAME}
  .amdhsa_next_free_vgpr 256
  .amdhsa_next_free_sgpr 102
  .amdhsa_accum_offset 256
  .amdhsa_group_segment_fixed_size 0
  .amdhsa_kernarg_size 80
  .amdhsa_user_sgpr_count 2
  .amdhsa_user_sgpr_kernarg_segment_ptr 1
  .amdhsa_system_sgpr_workgroup_id_x 1
.end_amdhsa_kernel
"""
sys.stdout.write(out)
```

```python
import sys
from asmlib import Prog, check_waits

opt = dict(m1=1, sub=0, map=0, ord=2, place=900010000, il=1, D=4, plan=2000, nt="nt", ntm="nt", nto="", verbose=0, prio=1, sched="h")
for a in sys.argv[1:]:
    k, v = a.split("=", 1)
    opt[k] = int(v) if v.lstrip("-").isdigit() else v.replace("+", " ")
D = opt["D"]
NT, NTM, NTO = opt["nt"], opt["ntm"], opt["nto"]
STAMP = opt.get("stamp", 0)

NAME = "standalone__sequential_behavior_din__recsys_kernel"
NWG, WPB = 256, 8
NWAVE = NWG * WPB
KB = 16384 // NWAVE
REG = 20480
SLOT = 2080
TB = D * SLOT
BI = TB + 1024
BSTR = 272
XCH = BI + 8 * BSTR
PRG = XCH + 3072
LI = 18432
L0 = LI + 16
assert PRG + 16 <= LI and LI + 2048 <= REG
STG = (D - 2) * SLOT
CNEG = 0xBFB8AA3B
PSTR, WGSTR = (16, 64) if opt["map"] & 1 else (4096, 16)
LGP = PSTR.bit_length() - 1
DLT0, DLT1 = 25600, (PSTR - 1) * 25600
MDL0, MDL1 = 400, (PSTR - 1) * 400

CA, CD, W, ZA, ZB, BIAS, XB, XT, W2, B2, S, ACC, DG, TR, ONE, VA, VB = \
    4, 68, 100, 132, 148, 164, 180, 188, 196, 204, 208, 212, 216, 224, 228, 230, 232
RDB0, RDB1, RDT, RDL, TADR, BADR, OADR, SEL0, SEL1, VOUT, RDM = range(234, 245)
TX = 246
PRV, PADR, PINC = 1, 2, 3
MSK = W
SH, SM, SH2 = 20, 24, 40
EX50, sB2, sDL, sMDL, sSGN = 28, 30, 31, 32, 33
sLB, sW, sw = 52, 53, 54
F = 56
H = 36
sKA, sKW = 60, 61
sBASE, sK, sT0, sT1, sT2, sT3 = 64, 65, 66, 67, 34, 35
A0 = 68
NB, P0, P1, P2 = 84, 86, 88, 90
sC, sEARLY = 92, 94
RET = 62


def v(a, n=1):
    return f"v{a}" if n == 1 else f"v[{a}:{a+n-1}]"


def s(a, n=1):
    return f"s{a}" if n == 1 else f"s[{a}:{a+n-1}]"


p = Prog()
nstamp = [0]


def stamp(cyc=None):
    if STAMP == 4:
        return
    if not STAMP or (STAMP == 3 and cyc is None):
        return
    p("s_memrealtime s[96:97]")
    p("s_waitcnt lgkmcnt(0)")
    p(f"v_writelane_b32 v254, s96, {nstamp[0]}")
    nstamp[0] += 1
    if cyc is not None:
        p("s_memtime s[96:97]")
        p("s_waitcnt lgkmcnt(0)")
        p(f"v_writelane_b32 v254, s96, {cyc}")


ncyc = [0]


def cst(name):
    if STAMP == 4:
        sys.stderr.write(f"cst{ncyc[0]} = {name}\n")
        p(f"s_memtime {s((38,94,44,46,48,50,96,98,26,86)[ncyc[0]],2)}")
        ncyc[0] += 1


def srd(dst, ptr, nrec, stride=0):
    p(f"s_mov_b32 {s(dst)}, {s(ptr)}")
    p(f"s_and_b32 {s(dst+1)}, {s(ptr+1)}, 0xffff")
    if stride:
        p(f"s_or_b32 {s(dst+1)}, {s(dst+1)}, {stride << 16:#x}")
    p(f"s_mov_b32 {s(dst+2)}, {nrec}")
    p(f"s_mov_b32 {s(dst+3)}, 0x20000")


def m0_half(slot, j):
    return f"s_add_u32 m0, {s(sLB)}, {slot*SLOT+j*1056}"


def dma_half(j):
    if opt["m1"] and j:
        return f"buffer_load_dwordx4 {v(VB,2)}, {s(SH2,4)}, 0 idxen offen offset:1056 {NT} lds"
    return f"buffer_load_dwordx4 {v((VA, VB)[j],2)}, {s(SH,4)}, 0 idxen offen {NT} lds"


def adv_hist():
    p(f"s_sub_u32 {s(sKA)}, {s(sKA)}, 1")
    p(f"s_cselect_b32 {s(sDL)}, 0, {s(sDL)}")
    p(f"s_add_u32 {s(SH)}, {s(SH)}, {s(sDL)}")
    p(f"s_addc_u32 {s(SH+1)}, {s(SH+1)}, 0")
    if opt["m1"]:
        p(f"s_add_u32 {s(SH2)}, {s(SH2)}, {s(sDL)}")
        p(f"s_addc_u32 {s(SH2+1)}, {s(SH2+1)}, 0")
    p(f"s_xor_b32 {s(sDL)}, {s(sDL)}, {DLT0 ^ DLT1:#x}")


R, CV, HI, OACC, SACC = ZA, ZA + 9, ZA + 13, ZA + 14, ZA + 15


def fbit(reg, k):
    p(f"s_lshr_b32 {s(sT3)}, {s(reg)}, 4")
    if 13 * (k + 1) + 1 < 64 and not opt["sub"]:
        p(f"s_bitset1_b64 {s(F,2)}, {s(sT3)}")
    else:
        p(f"s_lshl_b64 {s(P0,2)}, 1, {s(sT3)}")
        p(f"s_bitcmp1_b32 {s(reg)}, 10")
        p(f"s_cselect_b64 {s(P1,2)}, 0, {s(P0,2)}")
        p(f"s_cselect_b64 {s(P2,2)}, {s(P0,2)}, 0")
        p(f"s_or_b64 {s(F,2)}, {s(F,2)}, {s(P1,2)}")
        p(f"s_or_b64 {s(F+2,2)}, {s(F+2,2)}, {s(P2,2)}")


def compact(j):
    if not opt["sub"]:
        return compact_body(j)
    if j:
        for x in range(4):
            p(f"v_mov_b32 {v(MSK+x)}, {v(MSK+4*j+x)}")
    p(f"s_call_b64 {s(RET,2)}, L_compact")


def compact_body(j):
    m = [MSK + 4 * j + x for x in range(4)]
    p(f"s_mov_b64 exec, {s(EX50,2)}")
    for e in range(8):
        p(f"v_cmp_neq_f16_sdwa {s(A0+2*e,2)}, {v(m[e>>1])}, 0 src0_sel:WORD_{e&1} src1_sel:WORD_0")
    for x in range(4):
        p(f"v_sad_u16 {v(SACC)}, {v(m[x])}, 0, {v(SACC)}")
    p(f"v_or3_b32 {v(OACC)}, {v(m[0])}, {v(m[1])}, {v(OACC)}")
    p(f"v_or3_b32 {v(OACC)}, {v(m[2])}, {v(m[3])}, {v(OACC)}")
    p("s_mov_b64 exec, -1")
    p(f"v_mov_b32 {v(R)}, {s(sBASE)}")
    for e in range(8):
        p(f"v_mbcnt_lo_u32_b32 {v(R)}, {s(A0+2*e)}, {v(R)}")
        p(f"v_mbcnt_hi_u32_b32 {v(R)}, {s(A0+2*e+1)}, {v(R)}")
    p(f"s_add_u32 {s(sT2)}, {s(sBASE)}, 16")
    p(f"v_readlane_b32 {s(sT0)}, {v(R)}, 25")
    p(f"v_readlane_b32 {s(sT1)}, {v(R)}, 63")
    p(f"s_add_u32 {s(sBASE)}, {s(sT0)}, 15")
    p(f"s_and_b32 {s(sBASE)}, {s(sBASE)}, -16")
    p(f"s_max_u32 {s(sBASE)}, {s(sBASE)}, {s(sT2)}")
    p(f"s_sub_u32 {s(sT0)}, {s(sBASE)}, {s(sT0)}")
    p(f"v_mad_u32_u24 {v(R)}, {v(HI)}, {s(sT0)}, {v(R)}")
    fbit(sBASE, 2 * j)
    for e in range(8):
        p(f"v_addc_co_u32 {v(R+e+1)}, vcc, 0, {v(R+e)}, {s(A0+2*e,2)}")
    p(f"s_add_u32 {s(sT1)}, {s(sT1)}, {s(sT0)}")
    p(f"s_add_u32 {s(sT1)}, {s(sT1)}, 15")
    p(f"s_and_b32 {s(sT1)}, {s(sT1)}, -16")
    p(f"s_add_u32 {s(sBASE)}, {s(sBASE)}, 16")
    p(f"s_max_u32 {s(sBASE)}, {s(sBASE)}, {s(sT1)}")
    for e in range(8):
        p(f"s_mov_b64 exec, {s(A0+2*e,2)}")
        p(f"ds_write_b8{'_d16_hi' if e&1 else ''} {v(R+e)}, {v(CV+(e>>1))}")
    p("s_mov_b64 exec, -1")
    p(f"v_sub_u32 {v(R+8)}, {v(R)}, {v(R+8)}")
    p(f"s_movk_i32 {s(sT0)}, 0x3f80")
    p(f"v_mad_i32_i24 {v(SACC)}, {v(R+8)}, {s(sT0)}, {v(SACC)}")
    fbit(sBASE, 2 * j + 1)


W44 = opt.get("w44", 1)
DIAGMM = "v_mfma_f32_4x4x4_16b_bf16" if W44 else "v_mfma_f32_16x16x16_bf16"


def wbuild():
    if opt["sub"]:
        p(f"s_call_b64 {s(RET,2)}, L_wbuild")
    else:
        wbuild_body()


def wbuild_body():
    for x in range(4):
        p(f"v_mul_u32_u24 {v(DG+2*x)}, {v(TR+x)}, {v(SEL0)}")
        p(f"v_mul_u32_u24 {v(DG+2*x+1)}, {v(TR+x)}, {v(SEL1)}")
    T = [ZA, ZA + 8, TX]
    pairs = [(hb, ks) for hb in range(4) for ks in range(2)]

    def mm(j, u):
        hb, ks = pairs[j]
        blk = (hb * 2 + ks) * 2 + u
        p(f"{DIAGMM} {v(T[j%3]+4*u,4)}, {v(DG+2*(2*ks+u),2)}, {v(CD+2*blk,2)}, {v(CA+4*blk,4)}")

    def cv(j, r):
        hb, ks = pairs[j]
        p(f"v_cvt_pk_bf16_f32 {v(W+(hb*2+ks)*4+r)}, {v(T[j%3]+2*r)}, {v(T[j%3]+2*r+1)}")
    p(f"v_add_u32 {v(TADR)}, 128, {v(TADR)}")
    p(f"ds_read_b128 {v(BIAS,4)}, {v(BADR)}")
    mm(0, 0)
    p(f"ds_read_b128 {v(BIAS+4,4)}, {v(BADR)} offset:64")
    p(f"ds_read_b128 {v(BIAS+8,4)}, {v(BADR)} offset:128")
    mm(0, 1)
    p(f"ds_read_b128 {v(BIAS+12,4)}, {v(BADR)} offset:192")
    p(f"ds_read_u16 {v(TR)}, {v(TADR)}")
    mm(1, 0)
    p(f"ds_read_u16 {v(TR+1)}, {v(TADR)} offset:8")
    p(f"ds_read_u16 {v(TR+2)}, {v(TADR)} offset:64")
    mm(1, 1)
    p(f"ds_read_u16 {v(TR+3)}, {v(TADR)} offset:72")
    p(f"v_add_u32 {v(BADR)}, {BSTR}, {v(BADR)}")
    mm(2, 0)
    cv(0, 0); cv(0, 1)
    mm(2, 1)
    cv(0, 2); cv(0, 3)
    for j in range(1, 8):
        if j + 2 < 8:
            mm(j + 2, 0)
        cv(j, 0); cv(j, 1)
        if j + 2 < 8:
            mm(j + 2, 1)
        cv(j, 2); cv(j, 3)
    p("s_waitcnt lgkmcnt(0)")


def g1(j):
    hb, ks = j >> 1, j & 1
    c = v(BIAS + 4 * hb, 4) if ks == 0 else v(ZB + 4 * hb, 4)
    return f"v_mfma_f32_16x16x32_bf16 {v(ZB+4*hb,4)}, {v(W+(hb*2+ks)*4,4)}, {v(XB+4*ks,4)}, {c}"


def read_xb(slot, ks):
    p(f"ds_read_b128 {v(XB+4*ks,4)}, {v((RDB0, RDB1)[ks])} offset:{slot*SLOT}")


SCHED = {
    "e": "ia ib k1 ent EV mid P0 e0 e1 e2 e3 e4 e5 A0 s0 s1 L2 G0 e6 q0 t0 e7 G2 e8 q1 t1 A1 r0 q2 t2 e9 G1 r1 q3 t3 e10 G3 "
         "r2 e11 r3 c0 A2 e12 G4 r4 c1 E2 e13 r5 e14 r6 c2 e15 G6 L0 m0 r7 da A3 G5 m1 r8 db G7 P1 r9 c3 vm y0 y1 r10 c4 k0 r11 B r12 c5 "
         "r13 r14 r15 c6 c7",
    "f": "ia ib k1 ent EV mid P0 e0 e1 e2 e3 e4 e5 A0 s0 s1 L2 G0 e6 q0 t0 e7 G2 e8 q1 t1 A1 r0 q2 t2 e9 G1 r1 q3 t3 e10 G3 "
         "r2 e11 r3 c0 A2 e12 G4 r4 c1 E2 m0 L0 da e13 r5 e14 r6 c2 e15 G6 P1 r7 A3 G5 m1 r8 G7 r9 c3 db vm y0 y1 r10 c4 k0 r11 B r12 c5 "
         "r13 r14 r15 c6 c7",
    "g": "ia ib k1 ent EV mid P0 e0 e1 e2 e3 e4 e5 A0 s0 s1 L2 G0 e6 q0 t0 e7 G2 e8 q1 t1 A1 r0 q2 t2 e9 G1 r1 q3 t3 e10 G3 "
         "r2 e11 r3 c0 A2 e12 G4 r4 c1 E2 e13 r5 e14 m0 L0 da r6 c2 e15 G6 P1 r7 A3 G5 m1 r8 G7 r9 c3 db vm y0 y1 r10 c4 k0 r11 B r12 c5 "
         "r13 r14 r15 c6 c7",
    "h": "ia ib k1 ent EV mid P0 e0 e1 e2 e3 e4 e5 A0 s0 s1 L2 G0 e6 q0 t0 e7 G2 e8 q1 t1 A1 r0 q2 t2 e9 G1 r1 q3 t3 e10 G3 "
         "r2 e11 r3 c0 A2 e12 G4 r4 c1 E2 m0 L0 da m1 e13 db r5 e14 r6 c2 e15 G6 P1 r7 A3 G5 r8 G7 r9 c3 vm y0 y1 r10 c4 k0 r11 B r12 c5 "
         "r13 r14 r15 c6 c7",
}


def event_mask():
    p(f"s_lshr_b64 {s(P0,2)}, {s(F,2)}, 2")
    p(f"s_lshr_b64 {s(H,2)}, {s(F,2)}, {D+1}")
    p(f"s_or_b32 {s(H)}, {s(H)}, {s(P0)}")
    p(f"s_or_b32 {s(H)}, {s(H)}, {s(F)}")


def mainloop(tag, slow):
    toks = SCHED[opt["sched"]].split()

    def scale(off):
        p(f"ds_read_b32 {v(TX)}, {v(RDM)} offset:{off}")
        p("s_waitcnt lgkmcnt(0)")
        for r in range(4):
            p(f"v_bfe_u32 {v(TX+1+r)}, {v(TX)}, {8*r}, 8")
            p(f"v_lshlrev_b32 {v(TX+1+r)}, 1, {v(TX+1+r)}")
        for r in range(4):
            p(f"buffer_load_ushort {v(TX+1+r)}, {v(TX+1+r)}, {s(SM,4)}, 0 offen")
        p("s_waitcnt vmcnt(0)")
        for r in range(4):
            p(f"v_lshlrev_b32 {v(TX+1+r)}, 16, {v(TX+1+r)}")
            p(f"v_mul_f32 {v(S+r)}, {v(S+r)}, {v(TX+1+r)}")

    def flush(last=False):
        p(f"v_cvt_pk_bf16_f32 {v(TX)}, {v(ACC)}, {v(ACC)}")
        if not last:
            p(f"v_mov_b32 {v(ACC)}, 0")
        if STAMP == 1:
            p("s_memrealtime s[96:97]")
            p("s_memtime s[98:99]")
            p(f"s_lshl_b32 {s(sT0)}, {s(sK)}, 1")
            p(f"s_sub_u32 {s(sT0)}, {16+2*(KB-1)}, {s(sT0)}")
            p("s_waitcnt lgkmcnt(0)")
            p(f"s_mov_b32 m0, {s(sT0)}")
            p("v_writelane_b32 v254, s96, m0")
            p(f"s_add_u32 m0, m0, 1")
            p("v_writelane_b32 v254, s98, m0")
            p(f"s_sub_u32 {s(sK)}, {s(sK)}, 1")
        p(f"ds_write_b16 {v(OADR)}, {v(TX)}")
        if last:
            return
        p(f"v_add_u32 {v(OADR)}, 128, {v(OADR)}")
        if slow:
            p(f"s_add_u32 {s(SM)}, {s(SM)}, {s(sMDL)}")
            p(f"s_addc_u32 {s(SM+1)}, {s(SM+1)}, 0")
            p(f"s_xor_b32 {s(sMDL)}, {s(sMDL)}, {MDL0 ^ MDL1:#x}")

    def emit(u, toks, tail):
        ev = opt["prio"] and u in ((0, D // 2) if opt["prio"] == 2 else (0,))
        for t in toks:
            k, n = t[0], (int(t[1:]) if t[1:].isdigit() else None)
            if opt.get("nodma") and t in ("da", "db"):
                continue
            if opt.get("nocomp") and k in "ercsAGqk" and n is not None:
                continue
            if t == "vm":
                p(f"s_waitcnt vmcnt({2*(D-2)})")
            elif k == "y":
                read_xb((u + 2) % D, n)
            elif t == "ent":
                if u == 0:
                    p(f"L{tag}_mid:")
            elif t in ("mid", "mi2"):
                if slow:
                    scale(u * 16 + (16 if t == "mi2" else 0))
            elif t == "ia":
                p(f"ds_read_u8 {v(VA)}, {v(RDL)} offset:{(u+D)*16}")
            elif t == "ib":
                p(f"ds_read_u8 {v(VB)}, {v(RDL)} offset:{(u+D)*16+8}")
            elif t == "EV":
                p(f"s_bitcmp1_b32 {s(H)}, {u}")
                p(f"s_cbranch_scc1 L{tag}_ev{u}")
                p(f"L{tag}_evd{u}:")
            elif t == "E2":
                if tail:
                    p(f"s_bitcmp0_b64 {s(F,2)}, 1")
                    p(f"s_cbranch_scc1 L{tag}_tnf")
                    flush()
                    p(f"L{tag}_tnf:")
            elif t == "P0":
                if ev:
                    p("s_mov_b64 exec, 1")
                    p(f"ds_add_rtn_u32 {v(PRV)}, {v(PADR)}, {v(PINC)}")
                    p("s_mov_b64 exec, -1")
            elif t == "P1":
                if ev:
                    p(f"v_readfirstlane_b32 {s(sT0)}, {v(PRV)}")
                    p("s_setprio 0")
                    p(f"s_xor_b32 {s(sT0)}, {s(sT0)}, {s(sSGN)}")
                    p(f"s_cmp_gt_i32 {s(sT0)}, 0")
                    p(f"s_cbranch_scc0 L{tag}_lo{u}")
                    p("s_setprio 1")
                    p(f"L{tag}_lo{u}:")
            elif t == "da":
                p(dma_half(0))
            elif t == "db":
                p(dma_half(1))
            elif t == "B":
                if u == D - 1:
                    p(f"s_lshr_b64 {s(F,2)}, {s(F,2)}, {D}")
                    p(f"s_lshl_b64 {s(P0,2)}, {s(F+2,2)}, {64-D}")
                    p(f"s_or_b64 {s(F,2)}, {s(F,2)}, {s(P0,2)}")
                    p(f"s_lshr_b64 {s(F+2,2)}, {s(F+2,2)}, {D}")
                    event_mask()
                    p(f"v_add_u32 {v(RDL)}, {16*D}, {v(RDL)}")
                    if slow:
                        p(f"v_add_u32 {v(RDM)}, {16*D}, {v(RDM)}")
            elif k == "m":
                if not (opt["m1"] and n):
                    p(m0_half(u, n))
            elif k == "e":
                p(f"v_exp_f32 {v(ZA+n)}, {v(ZB+n)}")
            elif k == "r":
                p(f"v_rcp_f32 {v(ZA+n)}, {v(ZA+n)}")
            elif k == "c":
                p(f"v_cvt_pk_bf16_f32 {v(ZA+n)}, {v(ZA+2*n)}, {v(ZA+2*n+1)}")
            elif k == "s":
                p(f"v_cvt_pk_bf16_f32 {v(S+n)}, {v(S+2*n)}, {v(S+2*n+1)}")
            elif k == "A":
                p(f"v_mfma_f32_4x4x4_16b_bf16 {v(ZA+4*n,4)}, {v(ONE,2)}, {v(ONE,2)}, {v(ZA+4*n,4)}")
            elif k == "G":
                p(g1(n))
            elif k == "q":
                p(f"v_mfma_f32_4x4x4_16b_bf16 {v(ACC,4)}, {v(S,2)}, {v(XT+2*n,2)}, {v(ACC,4)} cbsz:4 abid:{4*n}")
            elif k == "t":
                p(f"ds_read_b64_tr_b16 {v(XT+2*n,2)}, {v(RDT)} offset:{u*SLOT+n*512+(n>>1)*32}")
            elif k == "k":
                p(f"v_mfma_f32_16x16x32_bf16 {v(S,4)}, {v(ZA+4*n,4)}, {v(W2+4*n,4)}, {v(B2,4) if n == 0 else v(S,4)}")
            elif k == "L":
                p(f"s_waitcnt lgkmcnt({n})")
            else:
                raise ValueError(t)

    p(f"L{tag}_loop:")
    for u in range(D):
        emit(u, toks, False)
    p(f"s_branch L{tag}_loop")
    for u in range(D):
        p(f"L{tag}_ev{u}:")
        p(f"s_bitcmp0_b64 {s(F,2)}, {u}")
        p(f"s_cbranch_scc1 L{tag}_nf{u}")
        flush()
        p(f"L{tag}_nf{u}:")
        p(f"s_bitcmp0_b64 {s(F,2)}, {u+D+1}")
        p(f"s_cbranch_scc1 L{tag}_na{u}")
        adv_hist()
        p(f"L{tag}_na{u}:")
        p(f"s_bitcmp0_b64 {s(F,2)}, {u+2}")
        p(f"s_cbranch_scc1 L{tag}_evd{u}")
        p(f"s_sub_u32 {s(sKW)}, {s(sKW)}, 1")
        p(f"s_cbranch_scc1 L{tag}_last{u}")
        wbuild()
        p(f"s_branch L{tag}_evd{u}")
    for u in range(D):
        p(f"L{tag}_last{u}:")
        if u:
            p(f"v_add_u32 {v(RDT)}, {u*SLOT}, {v(RDT)}")
            p(f"s_lshr_b64 {s(F,2)}, {s(F,2)}, {u}")
            if slow:
                p(f"v_add_u32 {v(RDM)}, {16*u}, {v(RDM)}")
        if u < D - 1:
            p(f"s_branch L{tag}_tail")
    p(f"L{tag}_tail:")
    i1 = toks.index("EV")
    drop = lambda t: t in ("vm", "ia", "ib", "EV", "ent", "P0", "P1", "da", "db", "B", "L2") or (t[0] in "Gym" and t[1:].isdigit())
    emit(0, [t for t in toks[i1:] + toks[:i1] if not drop(t)] + ["mi2", "s0", "s1", "q0", "q1", "q2", "q3"], True)
    flush(last=True)
    if slow:
        p("s_branch L_store")


p(f"{NAME}:")
if opt.get("spin"):
    p("s_memrealtime s[44:45]")
cst("entry")
if STAMP:
    if STAMP != 4:
        p("s_memrealtime s[98:99]")
        p("s_memtime s[96:97]")
    p("s_load_dwordx2 s[100:101], s[0:1], 72")
p("s_load_dwordx16 s[4:19], s[0:1], 0")
p(f"s_cmp_ge_u32 s2, {NWG}")
p("s_cbranch_scc1 L_end")
if opt.get("pf", 0):
    p("s_getpc_b64 s[36:37]")
    p("v_lshlrev_b32 v2, 7, v0")
    p(f"v_cmp_gt_u32 vcc, {opt.get('pfl', 128)}, v0")
    p("s_and_saveexec_b64 s[38:39], vcc")
    p("s_cbranch_execz L_nopf")
    p("global_load_dword v255, v2, s[36:37]")
    p("L_nopf:")
    p("s_mov_b64 exec, -1")
p("v_lshrrev_b32 v1, 6, v0")
p("v_and_b32 v0, 63, v0")
p(f"v_readfirstlane_b32 {s(sw)}, v1")
if opt["map"] & 2:
    p("s_and_b32 s3, s2, 7")
    p("s_lshl_b32 s3, s3, 5")
    p(f"s_lshr_b32 {s(sW)}, s2, 3")
    p(f"s_add_u32 {s(sW)}, {s(sW)}, s3")
    p(f"s_lshl_b32 {s(sW)}, {s(sW)}, {(WGSTR//2).bit_length()-1}")
else:
    p(f"s_lshl_b32 {s(sW)}, s2, {(WGSTR//2).bit_length()-1}")
p("v_lshlrev_b32 v2, 4, v0")
p(f"s_bfm_b64 {s(EX50,2)}, 50, 0")
p(f"s_add_u32 {s(sW)}, {s(sW)}, {s(sw)}")
p(f"s_mul_i32 {s(sT0)}, {s(sW)}, 800")
p(f"s_mul_i32 {s(sLB)}, {s(sw)}, {REG}")
p(f"v_add_u32 v3, {s(sT0)}, v2")
p(f"v_and_b32 {v(TX+2)}, 16, v0")
p(f"v_lshlrev_b32 {v(TX)}, 1, {v(TX+2)}")
p(f"v_xor_b32 {v(TX)}, {v(TX)}, v2")
p(f"s_lshl_b32 {s(sT1)}, {s(sw)}, 12")
p(f"s_add_u32 m0, {s(sLB)}, {STG}")
p(f"s_mov_b64 exec, {s(EX50,2)}")
p("s_waitcnt lgkmcnt(0)")
cst("kernarg")
if STAMP and STAMP != 4:
    p("s_mov_b64 exec, -1")
    p("v_mov_b32 v254, 0")
    p("v_writelane_b32 v254, s98, 0")
    p("v_writelane_b32 v254, s96, 32")
    nstamp[0] = 1
    stamp()
    p(f"s_mov_b64 exec, {s(EX50,2)}")
p(f"global_load_dwordx4 {v(MSK,4)}, v3, s[8:9] {NTM}")
p("s_mov_b64 exec, -1")
p(f"s_add_u32 s10, s10, {s(sT1)}")
p("s_addc_u32 s11, s11, 0")
p(f"v_xor_b32 {v(TX+1)}, 64, {v(TX)}")
for j in range(4):
    p(f"global_load_lds_dwordx4 {v(TX+(j&1))}, s[10:11] offset:{j*1024}")
p(f"s_load_dword {s(sB2)}, s[16:17], 0")
p("v_lshrrev_b32 v1, 4, v0")
p(f"v_and_b32 {v(VOUT)}, 0xf0, v2")
p(f"v_lshl_add_u32 {v(VOUT)}, v1, {LGP+7}, {v(VOUT)}")
p(f"s_lshl_b32 {s(sT0)}, {s(sW)}, 8")
p(f"s_add_u32 m0, {s(sLB)}, {TB}")
p(f"v_add_u32 {v(VOUT)}, {s(sT0)}, {v(VOUT)}")
p(f"s_and_b32 {s(sT1)}, {s(sw)}, 3")
p(f"global_load_lds_dwordx4 {v(VOUT)}, s[4:5] {NTM}")
B1R, W2R = CD + 28, DG
p(f"s_lshl_b32 {s(sT0)}, {s(sT1)}, 5")
p(f"v_lshl_add_u32 {v(TX+3)}, v1, 3, {s(sT0)}")
p(f"global_load_dwordx2 {v(B1R,2)}, {v(TX+3)}, s[12:13]")
p(f"v_and_b32 {v(TX+4)}, 3, v0")
NVM = 11
stamp()
p(f"s_mul_i32 {s(sT0)}, {s(sW)}, 51200")
p(f"s_add_u32 s6, s6, {s(sT0)}")
p("s_addc_u32 s7, s7, 0")
srd(SH, 6, 200, stride=128)
if opt["m1"]:
    p(f"s_sub_u32 s6, s6, 1056")
    p("s_subb_u32 s7, s7, 0")
    srd(SH2, 6, 200, stride=128)
p(f"s_movk_i32 {s(sDL)}, {DLT0}")
p(f"v_mov_b32 {v(ZB)}, -1")
p(f"v_mov_b32 {v(ZB+1)}, -1")
p(f"v_mov_b32 {v(ZB+2)}, -1")
p(f"v_mov_b32 {v(ZB+3)}, -1")
p(f"s_add_u32 {s(sT0)}, {s(sLB)}, {LI}")
p(f"v_add_u32 {v(ZB+4)}, {s(sT0)}, v2")
p(f"ds_write_b128 {v(ZB+4)}, {v(ZB,4)}")
p(f"ds_write_b128 {v(ZB+4)}, {v(ZB,4)} offset:1024")
for j in range(5, 2 * D):
    p(f"v_mov_b32 {v(ZB+j)}, -1")
p(f"s_add_u32 {s(sBASE)}, {s(sLB)}, {L0}")
p(f"v_lshrrev_b32 {v(RDL)}, 3, v0")
p(f"v_add_u32 {v(RDL)}, {s(sBASE)}, {v(RDL)}")
p(f"v_lshl_add_u32 {v(RDM)}, v1, 2, {s(sT0)}")
p(f"v_and_b32 {v(VA+1)}, 0x70, v2")
p(f"v_lshlrev_b32 {v(TX+2)}, 2, {v(TX+2)}")
p(f"v_xor_b32 {v(VA+1)}, {v(VA+1)}, {v(TX+2)}")
p(f"v_mov_b32 {v(VB+1)}, {v(VA+1)}")
p(f"v_cmp_lt_u32 vcc, 24, v0")
p(f"v_mov_b32 {v(OACC)}, 0")
p(f"v_mov_b32 {v(SACC)}, 0")
p(f"v_cndmask_b32 {v(HI)}, 0, 1, vcc")
p(f"v_mul_u32_u24 {v(CV+1)}, 25, {v(HI)}")
p(f"v_sub_u32 {v(CV+1)}, v0, {v(CV+1)}")
p(f"v_mul_u32_u24 {v(CV+1)}, 0x80008, {v(CV+1)}")
p(f"v_add_u32 {v(CV)}, 0x10000, {v(CV+1)}")
p(f"v_add_u32 {v(CV+2)}, 0x50004, {v(CV+1)}")
p(f"v_add_u32 {v(CV+3)}, 0x70006, {v(CV+1)}")
p(f"v_add_u32 {v(CV+1)}, 0x30002, {v(CV+1)}")
p(f"s_mov_b64 {s(F,2)}, 0")
p(f"s_mov_b64 {s(F+2,2)}, 0")
if STAMP:
    p(f"s_mov_b32 {s(sK)}, {KB-1}")
p(f"s_mov_b32 {s(sKA)}, {KB-1}")
p(f"s_mov_b32 {s(sKW)}, {KB-1}")
p(f"s_mov_b32 {s(sC)}, {CNEG:#x}")
n_, r_, c_ = TX + 5, TX + 6, TX + 4
p(f"v_and_b32 {v(n_)}, 15, v0")
p(f"v_bfe_u32 {v(r_)}, v0, 2, 2")
X0 = TX + 7
SA, SC_, SB_, TBA, BWA = CA + 60, CA + 61, CA + 62, CA + 63, CD + 30
IDN, N0M = DG + 2, DG + 4
p(f"v_lshlrev_b32 {v(X0)}, 3, {v(c_)}")
p(f"v_lshl_add_u32 {v(X0)}, {v(r_)}, 7, {v(X0)}")
p(f"v_and_b32 {v(TX)}, 24, v0")
p(f"v_lshlrev_b32 {v(TX)}, 2, {v(TX)}")
p(f"v_xor_b32 {v(TX)}, {v(X0)}, {v(TX)}")
p(f"v_lshl_add_u32 {v(TX)}, v1, 10, {v(TX)}")
p(f"s_lshl_b32 {s(sT0)}, {s(sT1)}, 5")
p(f"v_xor_b32 {v(SB_)}, {s(sT0)}, {v(TX)}")
p(f"v_add_u32 {v(SB_)}, {STG+2*REG}, {v(SB_)}")
p(f"s_lshr_b32 {s(sT0)}, {s(sw)}, 1")
p(f"s_lshl_b32 {s(sT0)}, {s(sT0)}, 5")
p(f"v_xor_b32 {v(SA)}, {s(sT0)}, {v(TX)}")
p(f"s_and_b32 {s(sT0)}, {s(sw)}, 1")
p(f"s_mul_i32 {s(sT0)}, {s(sT0)}, {REG}")
p(f"s_add_u32 {s(sT0)}, {s(sT0)}, {STG}")
p(f"v_add_u32 {v(SA)}, {s(sT0)}, {v(SA)}")
p(f"v_add_u32 {v(SC_)}, {4*REG}, {v(SA)}")
p(f"s_and_b32 {s(sT0)}, {s(sw)}, 4")
p(f"v_lshrrev_b32 {v(TX)}, 3, {v(n_)}")
p(f"v_add_u32 {v(TX)}, {s(sT0)}, {v(TX)}")
p(f"v_mul_u32_u24 {v(TX)}, {REG}, {v(TX)}")
p(f"v_lshl_add_u32 {v(TX)}, v1, 4, {v(TX)}")
p(f"v_and_b32 {v(TX+1)}, 7, v0")
p(f"v_lshl_add_u32 {v(TBA)}, {v(TX+1)}, 7, {v(TX)}")


def gRDB():
    p(f"v_and_b32 {v(TX+1)}, 8, v0")
    p(f"v_lshlrev_b32 {v(TX+1)}, 2, {v(TX+1)}")
    p(f"v_lshl_add_u32 {v(TX+1)}, {v(n_)}, 7, {v(TX+1)}")
    p(f"v_add_u32 {v(TX+1)}, {s(sLB)}, {v(TX+1)}")
    p(f"v_and_b32 {v(TX+2)}, 2, v0")
    p(f"v_lshlrev_b32 {v(TX+2)}, 1, {v(TX+2)}")
    p(f"v_xor_b32 {v(TX+2)}, {v(TX+2)}, v1")
    p(f"v_lshl_add_u32 {v(RDB0)}, {v(TX+2)}, 4, {v(TX+1)}")
    p(f"v_xor_b32 {v(TX+2)}, 4, {v(TX+2)}")
    p(f"v_lshl_add_u32 {v(RDB1)}, {v(TX+2)}, 4, {v(TX+1)}")


def gRDT():
    p(f"v_and_b32 {v(TX+1)}, 8, v0")
    p(f"v_lshlrev_b32 {v(TX+1)}, 3, {v(TX+1)}")
    p(f"v_lshl_add_u32 {v(TX+2)}, v1, 5, {v(X0)}")
    p(f"v_xor_b32 {v(TX+2)}, {v(TX+2)}, {v(TX+1)}")
    p(f"v_add_u32 {v(RDT)}, {s(sLB)}, {v(TX+2)}")


def gTAD():
    p(f"s_add_u32 {s(sT0)}, {s(sLB)}, {TB}")
    p(f"v_lshl_add_u32 {v(TADR)}, {v(c_)}, 1, {s(sT0)}")
    p(f"v_lshl_add_u32 {v(TADR)}, {'v1' if W44 else v(r_)}, 4, {v(TADR)}")
    p(f"v_lshl_add_u32 {v(OADR)}, v0, 1, {s(sT0)}")
    p(f"s_add_u32 {s(sT0)}, {s(sLB)}, {BI}")
    p(f"v_lshl_add_u32 {v(BADR)}, v1, 4, {s(sT0)}")


def gBWA():
    p(f"s_and_b32 {s(sT0)}, {s(sw)}, 3")
    p(f"s_lshl_b32 {s(sT0)}, {s(sT0)}, 6")
    p(f"s_add_u32 {s(sT0)}, {s(sT0)}, {BI}")
    p(f"v_and_b32 {v(TX+1)}, 7, v0")
    p(f"v_mul_u32_u24 {v(TX+1)}, {BSTR-128}, {v(TX+1)}")
    p(f"v_add3_u32 {v(BWA)}, {v(TBA)}, {v(TX+1)}, {s(sT0)}")


def gSEL():
    if not W44:
        p(f"v_cmp_eq_u32 vcc, {v(r_)}, v1")
    p(f"v_and_b32 {v(TX+1)}, 1, v0")
    p(f"v_lshlrev_b32 {v(TX+1)}, 4, {v(TX+1)}")
    p(f"v_lshlrev_b32 {v(TX+1)}, {v(TX+1)}, 1")
    if not W44:
        p(f"v_cndmask_b32 {v(TX+1)}, 0, {v(TX+1)}, vcc")
    p(f"v_cmp_gt_u32 vcc, 2, {v(c_)}")
    p(f"v_mov_b32 {v(ONE+1)}, 0")
    p(f"v_mov_b32 {v(ONE)}, 0x3f80")
    p(f"v_cndmask_b32 {v(SEL0)}, 0, {v(TX+1)}, vcc")
    p(f"v_cmp_eq_u32 vcc, 0, {v(n_)}")
    p(f"v_sub_u32 {v(SEL1)}, {v(TX+1)}, {v(SEL0)}")
    p(f"v_mul_u32_u24 {v(IDN)}, 0x3f80, {v(SEL0)}")
    p(f"v_cndmask_b32 {v(N0M)}, 0, -1, vcc")
    p(f"v_mul_u32_u24 {v(IDN+1)}, 0x3f80, {v(SEL1)}")


def gZER():
    for j in range(8):
        p(f"v_mov_b32 {v(XT+j)}, 0")
    for j in range(4):
        p(f"v_mov_b32 {v(S+j)}, 0")
        p(f"v_mov_b32 {v(ACC+j)}, 0")


def gB2():
    p(f"s_lshl_b32 {s(sB2)}, {s(sB2)}, 16")
    for r in range(4):
        p(f"v_and_b32 {v(B2+r)}, {s(sB2)}, {v(N0M)}")


def gPRI():
    if opt["prio"]:
        p(f"s_and_b32 {s(sT0)}, {s(sw)}, 3")
        p(f"s_mul_i32 {s(sT0)}, {s(sT0)}, {REG}")
        p(f"s_add_u32 {s(sT0)}, {s(sT0)}, {PRG}")
        p(f"v_mov_b32 {v(DG+5)}, {s(sT0)}")
        p(f"s_cmp_ge_u32 {s(sw)}, 4")
        p(f"s_cselect_b32 {s(sSGN)}, -1, 0")
        p(f"ds_write_b32 {v(DG+5)}, {v(ONE+1)}")


PLACE = dict(zip((gSEL, gBWA, gPRI, gB2, gRDB, gRDT, gTAD, gZER), (int(x) for x in str(opt["place"])[1:])))


def groups(k):
    for f, w_ in PLACE.items():
        if w_ == k:
            f()


groups(0)
p(f"s_mov_b64 exec, {s(EX50,2)}")
for j in range(1, 4):
    p(f"v_add_u32 v3, {PSTR*400}, v3")
    p(f"global_load_dwordx4 {v(MSK+4*j,4)}, v3, s[8:9] {NTM}")
p("s_mov_b64 exec, -1")
p(f"v_lshlrev_b32 {v(TX+3)}, 3, v1")
p(f"v_lshl_add_u32 {v(TX+3)}, {v(TX+4)}, 5, {v(TX+3)}")
p(f"global_load_dwordx2 {v(W2R,2)}, {v(TX+3)}, s[14:15]")
NE = D - 2
PLAN = [int(x) for x in str(opt["plan"])]
assert sum(PLAN) == NE
IDX = ZB


def idx_reads():
    for t in range(D):
        p(f"ds_read_u8 {v(IDX+2*t)}, {v(RDL)} offset:{t*16}")
        p(f"ds_read_u8 {v(IDX+2*t+1)}, {v(RDL)} offset:{t*16+8}")


def tiles(t0, t1, bits, tag):
    for t in range(t0, t1):
        if t > 0:
            p(f"s_bitcmp0_b64 {s(bits,2)}, {t+1}")
            p(f"s_cbranch_scc1 L_noadv{tag}{t}")
            adv_hist()
            p(f"L_noadv{tag}{t}:")
        p(m0_half(t, 0))
        p(f"v_mov_b32 {v(VA)}, {v(IDX+2*t)}")
        p(f"v_mov_b32 {v(VB)}, {v(IDX+2*t+1)}")
        p(dma_half(0))
        if not opt["m1"]:
            p(m0_half(t, 1))
            p("s_nop 0")
        p(dma_half(1))


issued = [0]


def early(n):
    if n == 0:
        return
    t0 = issued[0]
    p(f"s_cmp_eq_u32 {s(sEARLY)}, 0")
    p(f"s_cbranch_scc1 L_skip{t0}")
    tiles(t0, t0 + n, F, "e")
    p(f"L_skip{t0}:")
    issued[0] += n


def first_pair():
    compact(0)
    p(f"s_add_u32 {s(sT0)}, {s(sLB)}, {L0+16*D}")
    p(f"s_cmp_ge_u32 {s(sBASE)}, {s(sT0)}")
    p(f"s_cselect_b32 {s(sEARLY)}, 1, 0")
    p("s_cbranch_scc1 L_early")
    p("s_waitcnt vmcnt(0)")
    p("L_early:")
    idx_reads()
    p("s_waitcnt lgkmcnt(0)")
    early(PLAN[0])


stamp()
ASYM = opt["ord"] == 2
if opt["ord"] == 0:
    p(f"s_waitcnt vmcnt({NVM-1}) lgkmcnt(0)")
    stamp()
    first_pair()
    stamp()
    early(PLAN[1])
if ASYM:
    assert PLAN[1:] == [0, 0, 0]
    p(f"s_cmp_ge_u32 {s(sw)}, 4")
    p("s_cbranch_scc1 L_young1")
    p(f"s_waitcnt vmcnt({NVM-1}) lgkmcnt(0)")
    p(f"s_call_b64 {s(RET,2)}, L_fp")
    p(f"s_waitcnt vmcnt({5+2*PLAN[0]})")
    p("s_branch L_old1")
    p("L_young1:")
    p(f"s_waitcnt vmcnt(5)")
    p("L_old1:")
cst("preB1")
if ASYM:
    p(f"s_waitcnt lgkmcnt(0)")
else:
    p(f"s_waitcnt vmcnt({5+2*issued[0]}) lgkmcnt(0)")
p("s_barrier")
stamp()
cst("B1")
RWA, RWC, RWD, RBB, RBC, TP, DB, DA, DD = CA, CA + 4, CA + 8, CA + 12, CA + 20, CA + 28, CA + 44, CA + 52, CD
for (dst, base) in ((RBB, 0), (RBC, 2)):
    for ks in range(2):
        for u in range(2):
            p(f"ds_read_b64_tr_b16 {v(dst+4*ks+2*u,2)}, {v(SB_)} offset:{(base+ks)*REG+u*512}")
for j in range(2):
    for ks in range(2):
        p(f"ds_read_b128 {v(TP+8*j+4*ks,4)}, {v(TBA)} offset:{TB+j*2*REG+ks*64}")
for u in range(2):
    p(f"ds_read_b64_tr_b16 {v(RWA+2*u,2)}, {v(SA)} offset:{u*512}")
    p(f"ds_read_b64_tr_b16 {v(RWC+2*u,2)}, {v(SC_)} offset:{u*512}")
    p(f"ds_read_b64_tr_b16 {v(RWD+2*u,2)}, {v(SC_)} offset:{2*REG+u*512}")
if ASYM:
    p(f"s_cmp_ge_u32 {s(sw)}, 4")
    p("s_cbranch_scc1 L_young2")
    p(f"s_waitcnt vmcnt({4+2*PLAN[0]})")
    p("s_branch L_old2")
    p("L_young2:")
    p(f"s_waitcnt vmcnt(4)")
    p("L_old2:")
else:
    p(f"s_waitcnt vmcnt({4+2*issued[0]})")
for j in range(2):
    p(f"v_lshlrev_b32 {v(DB+2*j)}, 16, {v(B1R+j)}")
    p(f"v_and_b32 {v(DB+2*j+1)}, 0xffff0000, {v(B1R+j)}")
groups(1)
if opt["ord"] == 1:
    first_pair()
    stamp()
    early(PLAN[1])
    stamp()
early(PLAN[2])
cst("firstpair")
p("s_waitcnt lgkmcnt(0)")
for j in range(8):
    p(f"v_xor_b32 {v(RBC+j)}, 0x80008000, {v(RBC+j)}")
for u in range(2):
    p(f"{DIAGMM} {v(DA+4*u,4)}, {v(IDN,2)}, {v(RWA+2*u,2)}, 0")
    p(f"{DIAGMM} {v(DD+4*u,4)}, {v(IDN,2)}, {v(RWD+2*u,2)}, 0")
for u in range(2):
    p(f"{DIAGMM} {v(DA+4*u,4)}, {v(IDN,2)}, {v(RWC+2*u,2)}, {v(DA+4*u,4)}")
for j in (1, 0):
    first = True
    for (src) in (RBB, RBC):
        for ks in range(2):
            c = v(DB, 4) if first else v(DB + 4 * j, 4)
            p(f"v_mfma_f32_16x16x32_bf16 {v(DB+4*j,4)}, {v(src+4*ks,4)}, {v(TP+8*j+4*ks,4)}, {c}")
            first = False
for j in range(8):
    p(f"v_mul_f32 {v(DA+j)}, {s(sC)}, {v(DA+j)}")
for j in range(8):
    p(f"v_mul_f32 {v(DD+j)}, {s(sC)}, {v(DD+j)}")
p(f"s_add_u32 {s(sT0)}, {s(sLB)}, {XCH}")
p(f"v_add_u32 v3, {s(sT0)}, v2")
for j in range(4):
    p(f"v_cvt_pk_bf16_f32 {v(DD+j)}, {v(DD+2*j)}, {v(DD+2*j+1)}")
for j in range(8):
    p(f"v_mul_f32 {v(DB+j)}, {s(sC)}, {v(DB+j)}")
early(PLAN[3])
p(f"ds_write_b128 v3, {v(DA,4)}")
p(f"ds_write_b128 v3, {v(DA+4,4)} offset:1024")
p(f"ds_write_b128 v3, {v(DD,4)} offset:2048")
p(f"ds_write_b128 {v(BWA)}, {v(DB,4)}")
p(f"ds_write_b128 {v(BWA)}, {v(DB+4,4)} offset:{2*REG}")
p(f"v_add_u32 v3, {XCH}, v2")
p(f"v_add_u32 {v(TX)}, {4*REG}, v3")
cst("preB3")
p("s_waitcnt lgkmcnt(0)")
p("s_barrier")
cst("B3")
stamp()
def const_reads(w0, w1):
    for w_ in range(w0, w1):
        a = "v3" if w_ < 4 else v(TX)
        p(f"ds_read_b128 {v(CA+8*w_,4)}, {a} offset:{(w_&3)*REG}")
        p(f"ds_read_b128 {v(CA+8*w_+4,4)}, {a} offset:{(w_&3)*REG+1024}")
        p(f"ds_read_b128 {v(CD+4*w_,4)}, {a} offset:{(w_&3)*REG+2048}")


cuts = (0, 2, 5, 8) if opt["il"] else (0, 8, 8, 8)
if ASYM:
    p(f"s_cmp_lt_u32 {s(sw)}, 4")
    p("s_cbranch_scc1 L_old3")
    p(f"s_call_b64 {s(RET,2)}, L_fp")
    p("L_old3:")
    issued[0] = PLAN[0]
if opt["il"]:
    early(2)
const_reads(cuts[0], cuts[1])
if not opt["il"]:
    early(2)
groups(2)
p(f"s_waitcnt vmcnt({2*D})")
cst("tiles23")
compact(1)
const_reads(cuts[1], cuts[2])
compact(2)
const_reads(cuts[2], cuts[3])
for x in range(4):
    p(f"ds_read_u16 {v(TR+x)}, {v(TADR)} offset:{(x>>1)*64+(x&1)*8}")
stamp()
compact(3)
p(f"s_mov_b32 {s(sT0)}, {~0x3f803f80 & 0xffffffff:#x}")
p(f"v_and_or_b32 {v(OACC)}, {v(OACC)}, {s(sT0)}, {v(SACC)}")
p(f"v_cmp_ne_u32 {s(NB,2)}, 0, {v(OACC)}")
if opt["prio"]:
    p(f"s_sub_u32 {s(sT0)}, {s(sBASE)}, {s(sLB)}")
    p(f"s_sub_u32 {s(sT0)}, {s(sT0)}, {L0}")
    p(f"s_lshr_b32 {s(sT0)}, {s(sT0)}, 3")
    p(f"s_xor_b32 {s(sT0)}, {s(sT0)}, {s(sSGN)}")
    p(f"s_sub_u32 {s(sT0)}, {s(sT0)}, {s(sSGN)}")
    p(f"s_xor_b32 {s(sT1)}, {(-D if opt['prio'] == 2 else -2*D) & 0xffffffff:#x}, {s(sSGN)}")
    p(f"s_sub_u32 {s(sT1)}, {s(sT1)}, {s(sSGN)}")
    p(f"v_mov_b32 {v(PADR)}, {v(DG+5)}")
    p(f"v_mov_b32 {v(PRV)}, {s(sT0)}")
    p(f"v_mov_b32 {v(PINC)}, {s(sT1)}")
    p("s_mov_b64 exec, 1")
    p(f"ds_add_u32 {v(PADR)}, {v(PRV)}")
    p("s_mov_b64 exec, -1")
p(f"s_cmp_eq_u32 {s(sEARLY)}, 1")
p("s_cbranch_scc1 L_nolate")
idx_reads()
p("s_waitcnt lgkmcnt(0)")
tiles(0, D, F, "l")
p("L_nolate:")
for hb in range(4):
    for j in range(2):
        p(f"v_and_b32_dpp {v(W2+2*hb+j)}, {v(W2R+j)}, {v(N0M)} quad_perm:[{hb},{hb},{hb},{hb}] row_mask:0xf bank_mask:0xf")
cst("precompactdone")
p(f"s_waitcnt vmcnt({2*(D-1)}) lgkmcnt(0)")
read_xb(0, 0)
read_xb(0, 1)
wbuild()
stamp()
stamp(33)
cst("wbuilt")
if STAMP == 4:
    p("s_waitcnt lgkmcnt(0)")
    p("v_mov_b32 v254, 0")
    for j, r in enumerate((38,94,44,46,48,50,96,98,26,86)):
        p(f"v_writelane_b32 v254, s{r}, {j}")
for j in range(8):
    p(g1(j))
if opt.get("dbgnop"):
    p("s_nop 15"); p("s_nop 15"); p("s_nop 15")
p(f"s_waitcnt vmcnt({2*(D-2)})")
read_xb(1, 0)
read_xb(1, 1)
p(f"ds_read_u8 {v(VA)}, {v(RDL)} offset:{D*16}")
p(f"ds_read_u8 {v(VB)}, {v(RDL)} offset:{D*16+8}")
event_mask()
p(f"s_cmp_lg_u64 {s(NB,2)}, 0")
p("s_cbranch_scc0 Lf_mid")
p(f"s_mul_i32 {s(sT0)}, {s(sW)}, 800")
p(f"s_add_u32 s8, s8, {s(sT0)}")
p("s_addc_u32 s9, s9, 0")
srd(SM, 8, 400)
p(f"s_movk_i32 {s(sMDL)}, {MDL0}")
p("s_branch Ls_mid")
if ASYM:
    assert not opt["sub"]
    p("L_fp:")
    issued[0] = 0
    first_pair()
    p(f"s_setpc_b64 {s(RET,2)} ; ret=L_fp")
if opt["sub"]:
    p("L_compact:")
    compact_body(0)
    p(f"s_setpc_b64 {s(RET,2)} ; ret=L_compact")
    p("L_wbuild:")
    wbuild_body()
    p(f"s_setpc_b64 {s(RET,2)} ; ret=L_wbuild")
mainloop("f", False)
p("L_store:")
p(f"s_add_u32 {s(sT0)}, {s(sLB)}, {TB}")
p(f"v_lshl_add_u32 {v(TX+1)}, v0, 4, {s(sT0)}")
p("s_waitcnt lgkmcnt(0)")
p(f"ds_read_b128 {v(ZB,4)}, {v(TX+1)}")
p("s_waitcnt lgkmcnt(0)")
p(f"global_store_dwordx4 {v(VOUT)}, {v(ZB,4)}, s[18:19] {NTO}")
if STAMP:
    stamp(34)
    p(f"v_writelane_b32 v254, {s(sBASE)}, 15")
    p("s_getreg_b32 s96, hwreg(HW_REG_XCC_ID)")
    p("v_writelane_b32 v254, s96, 14")
    p("s_getreg_b32 s96, hwreg(HW_REG_HW_ID)")
    p("v_writelane_b32 v254, s96, 13")
    srd(SM, 100, 2048 * 256)
    p(f"s_lshl_b32 {s(sT0)}, s2, 3")
    p(f"s_add_u32 {s(sT0)}, {s(sT0)}, {s(sw)}")
    p(f"s_lshl_b32 {s(sT0)}, {s(sT0)}, 8")
    p(f"v_lshlrev_b32 v1, 2, v0")
    p(f"buffer_store_dword v254, v1, {s(SM,4)}, {s(sT0)} offen")
if opt.get("spin"):
    p("L_spin:")
    p("s_memrealtime s[46:47]")
    p("s_waitcnt lgkmcnt(0)")
    p("s_sub_u32 s46, s46, s44")
    p(f"s_cmp_lt_u32 s46, {opt['spin']*100}")
    p("s_cbranch_scc1 L_spin")
p("L_end:")
p("s_endpgm")
mainloop("s", True)

nn = p.fix_hazards(verbose=opt["verbose"])
for early_, old_ in ((True, True), (False, True), (True, False), (False, False)):
    for e in check_waits(p, (("L_early", early_), ("L_skip", not early_), ("L_nolate", early_), ("L_young", not old_), ("L_old3", old_))):
        sys.exit(f"WAIT-CHECK early={early_}: {e}")
hdr = open(__file__.rsplit("/", 1)[0] + "/../standalone__sequential_behavior_din__recsys.s.ref").read().split("\n")
head = [l for l in hdr if l.startswith(";") and "@launch" not in l and "Override" not in l and "grid=ceil" not in l]
out = "\n".join(head) + f"""
; @launch grid=({NWG},1,1) block=({WPB*64},1,1) lds={WPB*REG}
; generated by gen/gen.py {' '.join(sys.argv[1:])}
.amdgcn_target "amdgcn-amd-amdhsa--gfx950"
.text
.globl {NAME}
.p2align 8
.type {NAME},@function
""" + p.text() + f""".section .rodata,"a"
.p2align 6
.amdhsa_kernel {NAME}
  .amdhsa_next_free_vgpr 256
  .amdhsa_next_free_sgpr 102
  .amdhsa_accum_offset 256
  .amdhsa_group_segment_fixed_size 0
  .amdhsa_kernarg_size 80
  .amdhsa_user_sgpr_count 2
  .amdhsa_user_sgpr_kernarg_segment_ptr 1
  .amdhsa_system_sgpr_workgroup_id_x 1
.end_amdhsa_kernel
"""
sys.stdout.write(out)
```

```python
import sys
from asmlib import Prog, check_waits

opt = dict(est=0, m1=1, sub=0, map=0, ord=2, place=900010000, il=1, D=4, plan=2000, nt="nt", ntm="nt", nto="sc0 sc1", verbose=0, prio=1, sched="h")
for a in sys.argv[1:]:
    k, v = a.split("=", 1)
    opt[k] = int(v) if v.lstrip("-").isdigit() else v.replace("+", " ")
D = opt["D"]
NT, NTM, NTO = opt["nt"], opt["ntm"], opt["nto"]
STAMP = opt.get("stamp", 0)

NAME = "standalone__sequential_behavior_din__recsys_kernel"
NWG, WPB = 256, 8
NWAVE = NWG * WPB
KB = 16384 // NWAVE
REG = opt.get('reg', 20480)
SLOT = 2080
TB = D * SLOT
BI = TB + 1024
BSTR = 272
XCH = BI + 8 * BSTR
PRG = XCH + 3072
LI = REG - 2048
L0 = LI + 16
assert PRG + 16 <= LI and LI + 2048 <= REG
STG = (D - 2) * SLOT
CNEG = 0xBFB8AA3B
PSTR, WGSTR = (16, 64) if opt["map"] & 1 else (4096, 16)
LGP = PSTR.bit_length() - 1
DLT0, DLT1 = 25600, (PSTR - 1) * 25600
MDL0, MDL1 = 400, (PSTR - 1) * 400

CA, CD, W, ZA, ZB, BIAS, XB, XT, W2, B2, S, ACC, DG, TR, ONE, VA, VB = \
    4, 68, 100, 132, 148, 164, 180, 188, 196, 204, 208, 212, 216, 224, 228, 230, 232
RDB0, RDB1, RDT, RDL, TADR, BADR, OADR, SEL0, SEL1, VOUT, RDM = range(234, 245)
TX = 246
PRV, PADR, PINC = 1, 2, 3
MSK = W
SH, SM, SH2 = 20, 24, 40
EX50, sB2, sDL, sMDL, sSGN = 28, 30, 31, 32, 33
sLB, sW, sw = 52, 53, 54
F = 56
H = 36
sKA, sKW = 60, 61
sBASE, sK, sT0, sT1, sT2, sT3 = 64, 65, 66, 67, 34, 35
A0 = 68
NB, P0, P1, P2 = 84, 86, 88, 90
sC, sEARLY = 92, 94
RET = 62


def v(a, n=1):
    return f"v{a}" if n == 1 else f"v[{a}:{a+n-1}]"


def s(a, n=1):
    return f"s{a}" if n == 1 else f"s[{a}:{a+n-1}]"


p = Prog()
nstamp = [0]


def stamp(cyc=None):
    if STAMP == 4:
        return
    if not STAMP or (STAMP == 3 and cyc is None):
        return
    p("s_memrealtime s[96:97]")
    p("s_waitcnt lgkmcnt(0)")
    p(f"v_writelane_b32 v254, s96, {nstamp[0]}")
    nstamp[0] += 1
    if cyc is not None:
        p("s_memtime s[96:97]")
        p("s_waitcnt lgkmcnt(0)")
        p(f"v_writelane_b32 v254, s96, {cyc}")


ncyc = [0]


def cst(name):
    if STAMP == 4:
        sys.stderr.write(f"cst{ncyc[0]} = {name}\n")
        p(f"s_memtime {s((38,94,44,46,48,50,96,98,26,86)[ncyc[0]],2)}")
        ncyc[0] += 1


def srd(dst, ptr, nrec, stride=0):
    p(f"s_mov_b32 {s(dst)}, {s(ptr)}")
    p(f"s_and_b32 {s(dst+1)}, {s(ptr+1)}, 0xffff")
    if stride:
        p(f"s_or_b32 {s(dst+1)}, {s(dst+1)}, {stride << 16:#x}")
    p(f"s_mov_b32 {s(dst+2)}, {nrec}")
    p(f"s_mov_b32 {s(dst+3)}, 0x20000")


def m0_half(slot, j):
    return f"s_add_u32 m0, {s(sLB)}, {slot*SLOT+j*1056}"


def dma_half(j):
    if opt["m1"] and j:
        return f"buffer_load_dwordx4 {v(VB,2)}, {s(SH2,4)}, 0 idxen offen offset:1056 {NT} lds"
    return f"buffer_load_dwordx4 {v((VA, VB)[j],2)}, {s(SH,4)}, 0 idxen offen {NT} lds"


def adv_hist():
    p(f"s_sub_u32 {s(sKA)}, {s(sKA)}, 1")
    p(f"s_cselect_b32 {s(sDL)}, 0, {s(sDL)}")
    p(f"s_add_u32 {s(SH)}, {s(SH)}, {s(sDL)}")
    p(f"s_addc_u32 {s(SH+1)}, {s(SH+1)}, 0")
    if opt["m1"]:
        p(f"s_add_u32 {s(SH2)}, {s(SH2)}, {s(sDL)}")
        p(f"s_addc_u32 {s(SH2+1)}, {s(SH2+1)}, 0")
    p(f"s_xor_b32 {s(sDL)}, {s(sDL)}, {DLT0 ^ DLT1:#x}")


R, CV, HI, OACC, SACC = ZA, ZA + 9, ZA + 13, ZA + 14, ZA + 15


def fbit(reg, k):
    p(f"s_lshr_b32 {s(sT3)}, {s(reg)}, 4")
    if 13 * (k + 1) + 1 < 64 and not opt["sub"]:
        p(f"s_bitset1_b64 {s(F,2)}, {s(sT3)}")
    else:
        p(f"s_lshl_b64 {s(P0,2)}, 1, {s(sT3)}")
        p(f"s_bitcmp1_b32 {s(reg)}, 10")
        p(f"s_cselect_b64 {s(P1,2)}, 0, {s(P0,2)}")
        p(f"s_cselect_b64 {s(P2,2)}, {s(P0,2)}, 0")
        p(f"s_or_b64 {s(F,2)}, {s(F,2)}, {s(P1,2)}")
        p(f"s_or_b64 {s(F+2,2)}, {s(F+2,2)}, {s(P2,2)}")


def compact(j):
    if not opt["sub"]:
        return compact_body(j)
    if j:
        for x in range(4):
            p(f"v_mov_b32 {v(MSK+x)}, {v(MSK+4*j+x)}")
    p(f"s_call_b64 {s(RET,2)}, L_compact")


def compact_body(j):
    m = [MSK + 4 * j + x for x in range(4)]
    p(f"s_mov_b64 exec, {s(EX50,2)}")
    for e in range(8):
        p(f"v_cmp_neq_f16_sdwa {s(A0+2*e,2)}, {v(m[e>>1])}, 0 src0_sel:WORD_{e&1} src1_sel:WORD_0")
    for x in range(4):
        p(f"v_sad_u16 {v(SACC)}, {v(m[x])}, 0, {v(SACC)}")
    p(f"v_or3_b32 {v(OACC)}, {v(m[0])}, {v(m[1])}, {v(OACC)}")
    p(f"v_or3_b32 {v(OACC)}, {v(m[2])}, {v(m[3])}, {v(OACC)}")
    p("s_mov_b64 exec, -1")
    p(f"v_mov_b32 {v(R)}, {s(sBASE)}")
    for e in range(8):
        p(f"v_mbcnt_lo_u32_b32 {v(R)}, {s(A0+2*e)}, {v(R)}")
        p(f"v_mbcnt_hi_u32_b32 {v(R)}, {s(A0+2*e+1)}, {v(R)}")
    p(f"s_add_u32 {s(sT2)}, {s(sBASE)}, 16")
    p(f"v_readlane_b32 {s(sT0)}, {v(R)}, 25")
    p(f"v_readlane_b32 {s(sT1)}, {v(R)}, 63")
    p(f"s_add_u32 {s(sBASE)}, {s(sT0)}, 15")
    p(f"s_and_b32 {s(sBASE)}, {s(sBASE)}, -16")
    p(f"s_max_u32 {s(sBASE)}, {s(sBASE)}, {s(sT2)}")
    p(f"s_sub_u32 {s(sT0)}, {s(sBASE)}, {s(sT0)}")
    p(f"v_mad_u32_u24 {v(R)}, {v(HI)}, {s(sT0)}, {v(R)}")
    fbit(sBASE, 2 * j)
    for e in range(8):
        p(f"v_addc_co_u32 {v(R+e+1)}, vcc, 0, {v(R+e)}, {s(A0+2*e,2)}")
    p(f"s_add_u32 {s(sT1)}, {s(sT1)}, {s(sT0)}")
    p(f"s_add_u32 {s(sT1)}, {s(sT1)}, 15")
    p(f"s_and_b32 {s(sT1)}, {s(sT1)}, -16")
    p(f"s_add_u32 {s(sBASE)}, {s(sBASE)}, 16")
    p(f"s_max_u32 {s(sBASE)}, {s(sBASE)}, {s(sT1)}")
    for e in range(8):
        p(f"s_mov_b64 exec, {s(A0+2*e,2)}")
        p(f"ds_write_b8{'_d16_hi' if e&1 else ''} {v(R+e)}, {v(CV+(e>>1))}")
    p("s_mov_b64 exec, -1")
    p(f"v_sub_u32 {v(R+8)}, {v(R)}, {v(R+8)}")
    p(f"s_movk_i32 {s(sT0)}, 0x3f80")
    p(f"v_mad_i32_i24 {v(SACC)}, {v(R+8)}, {s(sT0)}, {v(SACC)}")
    fbit(sBASE, 2 * j + 1)


W44 = opt.get("w44", 1)
DIAGMM = "v_mfma_f32_4x4x4_16b_bf16" if W44 else "v_mfma_f32_16x16x16_bf16"


def wbuild():
    if opt["sub"]:
        p(f"s_call_b64 {s(RET,2)}, L_wbuild")
    else:
        wbuild_body()


def wbuild_body():
    for x in range(4):
        p(f"v_mul_u32_u24 {v(DG+2*x)}, {v(TR+x)}, {v(SEL0)}")
        p(f"v_mul_u32_u24 {v(DG+2*x+1)}, {v(TR+x)}, {v(SEL1)}")
    T = [ZA, ZA + 8, TX]
    pairs = [(hb, ks) for hb in range(4) for ks in range(2)]

    def mm(j, u):
        hb, ks = pairs[j]
        blk = (hb * 2 + ks) * 2 + u
        p(f"{DIAGMM} {v(T[j%3]+4*u,4)}, {v(DG+2*(2*ks+u),2)}, {v(CD+2*blk,2)}, {v(CA+4*blk,4)}")

    def cv(j, r):
        hb, ks = pairs[j]
        p(f"v_cvt_pk_bf16_f32 {v(W+(hb*2+ks)*4+r)}, {v(T[j%3]+2*r)}, {v(T[j%3]+2*r+1)}")
    p(f"v_add_u32 {v(TADR)}, 128, {v(TADR)}")
    p(f"ds_read_b128 {v(BIAS,4)}, {v(BADR)}")
    mm(0, 0)
    p(f"ds_read_b128 {v(BIAS+4,4)}, {v(BADR)} offset:64")
    p(f"ds_read_b128 {v(BIAS+8,4)}, {v(BADR)} offset:128")
    mm(0, 1)
    p(f"ds_read_b128 {v(BIAS+12,4)}, {v(BADR)} offset:192")
    p(f"ds_read_u16 {v(TR)}, {v(TADR)}")
    mm(1, 0)
    p(f"ds_read_u16 {v(TR+1)}, {v(TADR)} offset:8")
    p(f"ds_read_u16 {v(TR+2)}, {v(TADR)} offset:64")
    mm(1, 1)
    p(f"ds_read_u16 {v(TR+3)}, {v(TADR)} offset:72")
    p(f"v_add_u32 {v(BADR)}, {BSTR}, {v(BADR)}")
    mm(2, 0)
    cv(0, 0); cv(0, 1)
    mm(2, 1)
    cv(0, 2); cv(0, 3)
    for j in range(1, 8):
        if j + 2 < 8:
            mm(j + 2, 0)
        cv(j, 0); cv(j, 1)
        if j + 2 < 8:
            mm(j + 2, 1)
        cv(j, 2); cv(j, 3)
    p("s_waitcnt lgkmcnt(0)")


def g1(j):
    hb, ks = j >> 1, j & 1
    c = v(BIAS + 4 * hb, 4) if ks == 0 else v(ZB + 4 * hb, 4)
    return f"v_mfma_f32_16x16x32_bf16 {v(ZB+4*hb,4)}, {v(W+(hb*2+ks)*4,4)}, {v(XB+4*ks,4)}, {c}"


def read_xb(slot, ks):
    p(f"ds_read_b128 {v(XB+4*ks,4)}, {v((RDB0, RDB1)[ks])} offset:{slot*SLOT}")


SCHED = {
    "e": "ia ib k1 ent EV mid P0 e0 e1 e2 e3 e4 e5 A0 s0 s1 L2 G0 e6 q0 t0 e7 G2 e8 q1 t1 A1 r0 q2 t2 e9 G1 r1 q3 t3 e10 G3 "
         "r2 e11 r3 c0 A2 e12 G4 r4 c1 E2 e13 r5 e14 r6 c2 e15 G6 L0 m0 r7 da A3 G5 m1 r8 db G7 P1 r9 c3 vm y0 y1 r10 c4 k0 r11 B r12 c5 "
         "r13 r14 r15 c6 c7",
    "f": "ia ib k1 ent EV mid P0 e0 e1 e2 e3 e4 e5 A0 s0 s1 L2 G0 e6 q0 t0 e7 G2 e8 q1 t1 A1 r0 q2 t2 e9 G1 r1 q3 t3 e10 G3 "
         "r2 e11 r3 c0 A2 e12 G4 r4 c1 E2 m0 L0 da e13 r5 e14 r6 c2 e15 G6 P1 r7 A3 G5 m1 r8 G7 r9 c3 db vm y0 y1 r10 c4 k0 r11 B r12 c5 "
         "r13 r14 r15 c6 c7",
    "g": "ia ib k1 ent EV mid P0 e0 e1 e2 e3 e4 e5 A0 s0 s1 L2 G0 e6 q0 t0 e7 G2 e8 q1 t1 A1 r0 q2 t2 e9 G1 r1 q3 t3 e10 G3 "
         "r2 e11 r3 c0 A2 e12 G4 r4 c1 E2 e13 r5 e14 m0 L0 da r6 c2 e15 G6 P1 r7 A3 G5 m1 r8 G7 r9 c3 db vm y0 y1 r10 c4 k0 r11 B r12 c5 "
         "r13 r14 r15 c6 c7",
    "h": "ia ib k1 ent EV mid P0 e0 e1 e2 e3 e4 e5 A0 s0 s1 L2 G0 e6 q0 t0 e7 G2 e8 q1 t1 A1 r0 q2 t2 e9 G1 r1 q3 t3 e10 G3 "
         "r2 e11 r3 c0 A2 e12 G4 r4 c1 E2 m0 L0 da m1 e13 db r5 e14 r6 c2 e15 G6 P1 r7 A3 G5 r8 G7 r9 c3 vm y0 y1 r10 c4 k0 r11 B r12 c5 "
         "r13 r14 r15 c6 c7",
}


def event_mask():
    p(f"s_lshr_b64 {s(P0,2)}, {s(F,2)}, 2")
    p(f"s_lshr_b64 {s(H,2)}, {s(F,2)}, {D+1}")
    p(f"s_or_b32 {s(H)}, {s(H)}, {s(P0)}")
    p(f"s_or_b32 {s(H)}, {s(H)}, {s(F)}")


def mainloop(tag, slow):
    toks = SCHED[opt["sched"]].split()

    def scale(off):
        p(f"ds_read_b32 {v(TX)}, {v(RDM)} offset:{off}")
        p("s_waitcnt lgkmcnt(0)")
        for r in range(4):
            p(f"v_bfe_u32 {v(TX+1+r)}, {v(TX)}, {8*r}, 8")
            p(f"v_lshlrev_b32 {v(TX+1+r)}, 1, {v(TX+1+r)}")
        for r in range(4):
            p(f"buffer_load_ushort {v(TX+1+r)}, {v(TX+1+r)}, {s(SM,4)}, 0 offen")
        p("s_waitcnt vmcnt(0)")
        for r in range(4):
            p(f"v_lshlrev_b32 {v(TX+1+r)}, 16, {v(TX+1+r)}")
            p(f"v_mul_f32 {v(S+r)}, {v(S+r)}, {v(TX+1+r)}")

    def flush(last=False):
        p(f"v_cvt_pk_bf16_f32 {v(TX)}, {v(ACC)}, {v(ACC)}")
        if not last:
            p(f"v_mov_b32 {v(ACC)}, 0")
        if STAMP == 1:
            p("s_memrealtime s[96:97]")
            p("s_memtime s[98:99]")
            p(f"s_lshl_b32 {s(sT0)}, {s(sK)}, 1")
            p(f"s_sub_u32 {s(sT0)}, {16+2*(KB-1)}, {s(sT0)}")
            p("s_waitcnt lgkmcnt(0)")
            p(f"s_mov_b32 m0, {s(sT0)}")
            p("v_writelane_b32 v254, s96, m0")
            p(f"s_add_u32 m0, m0, 1")
            p("v_writelane_b32 v254, s98, m0")
            p(f"s_sub_u32 {s(sK)}, {s(sK)}, 1")
        p(f"ds_write_b16 {v(OADR)}, {v(TX)}")
        if last:
            return
        p(f"v_add_u32 {v(OADR)}, 128, {v(OADR)}")
        if slow:
            p(f"s_add_u32 {s(SM)}, {s(SM)}, {s(sMDL)}")
            p(f"s_addc_u32 {s(SM+1)}, {s(SM+1)}, 0")
            p(f"s_xor_b32 {s(sMDL)}, {s(sMDL)}, {MDL0 ^ MDL1:#x}")

    def emit(u, toks, tail):
        ev = opt["prio"] and u in ((0, D // 2) if opt["prio"] == 2 else (0,))
        for t in toks:
            k, n = t[0], (int(t[1:]) if t[1:].isdigit() else None)
            if opt.get("nodma") and t in ("da", "db"):
                continue
            if opt.get("nocomp") and k in "ercsAGqk" and n is not None:
                continue
            if t == "vm":
                p(f"s_waitcnt vmcnt({2*(D-2)})")
            elif k == "y":
                read_xb((u + 2) % D, n)
            elif t == "ent":
                if u == 0:
                    p(f"L{tag}_mid:")
            elif t in ("mid", "mi2"):
                if slow:
                    scale(u * 16 + (16 if t == "mi2" else 0))
            elif t == "ia":
                p(f"ds_read_u8 {v(VA)}, {v(RDL)} offset:{(u+D)*16}")
            elif t == "ib":
                p(f"ds_read_u8 {v(VB)}, {v(RDL)} offset:{(u+D)*16+8}")
            elif t == "EV":
                p(f"s_bitcmp1_b32 {s(H)}, {u}")
                p(f"s_cbranch_scc1 L{tag}_ev{u}")
                p(f"L{tag}_evd{u}:")
            elif t == "E2":
                if tail and opt["est"]:
                    p("s_waitcnt lgkmcnt(4)")
                    p(f"s_bfm_b64 exec, 48, 0")
                    p(f"global_store_dwordx4 {v(VOUT)}, {v(XB,4)}, s[18:19] sc0 sc1")
                    p("s_mov_b64 exec, -1")
                if tail:
                    p(f"s_bitcmp0_b64 {s(F,2)}, 1")
                    p(f"s_cbranch_scc1 L{tag}_tnf")
                    flush()
                    p(f"L{tag}_tnf:")
            elif t == "P0":
                if ev:
                    p("s_mov_b64 exec, 1")
                    p(f"ds_add_rtn_u32 {v(PRV)}, {v(PADR)}, {v(PINC)}")
                    p("s_mov_b64 exec, -1")
            elif t == "P1":
                if ev:
                    p(f"v_readfirstlane_b32 {s(sT0)}, {v(PRV)}")
                    p("s_setprio 0")
                    p(f"s_xor_b32 {s(sT0)}, {s(sT0)}, {s(sSGN)}")
                    p(f"s_cmp_gt_i32 {s(sT0)}, 0")
                    p(f"s_cbranch_scc0 L{tag}_lo{u}")
                    p("s_setprio 1")
                    p(f"L{tag}_lo{u}:")
            elif t == "da":
                p(dma_half(0))
            elif t == "db":
                p(dma_half(1))
            elif t == "B":
                if u == D - 1:
                    p(f"s_lshr_b64 {s(F,2)}, {s(F,2)}, {D}")
                    p(f"s_lshl_b64 {s(P0,2)}, {s(F+2,2)}, {64-D}")
                    p(f"s_or_b64 {s(F,2)}, {s(F,2)}, {s(P0,2)}")
                    p(f"s_lshr_b64 {s(F+2,2)}, {s(F+2,2)}, {D}")
                    event_mask()
                    p(f"v_add_u32 {v(RDL)}, {16*D}, {v(RDL)}")
                    if slow:
                        p(f"v_add_u32 {v(RDM)}, {16*D}, {v(RDM)}")
            elif k == "m":
                if not (opt["m1"] and n):
                    p(m0_half(u, n))
            elif k == "e":
                p(f"v_exp_f32 {v(ZA+n)}, {v(ZB+n)}")
            elif k == "r":
                p(f"v_rcp_f32 {v(ZA+n)}, {v(ZA+n)}")
            elif k == "c":
                p(f"v_cvt_pk_bf16_f32 {v(ZA+n)}, {v(ZA+2*n)}, {v(ZA+2*n+1)}")
            elif k == "s":
                p(f"v_cvt_pk_bf16_f32 {v(S+n)}, {v(S+2*n)}, {v(S+2*n+1)}")
            elif k == "A":
                p(f"v_mfma_f32_4x4x4_16b_bf16 {v(ZA+4*n,4)}, {v(ONE,2)}, {v(ONE,2)}, {v(ZA+4*n,4)}")
            elif k == "G":
                p(g1(n))
            elif k == "q":
                p(f"v_mfma_f32_4x4x4_16b_bf16 {v(ACC,4)}, {v(S,2)}, {v(XT+2*n,2)}, {v(ACC,4)} cbsz:4 abid:{4*n}")
            elif k == "t":
                p(f"ds_read_b64_tr_b16 {v(XT+2*n,2)}, {v(RDT)} offset:{u*SLOT+n*512+(n>>1)*32}")
            elif k == "k":
                p(f"v_mfma_f32_16x16x32_bf16 {v(S,4)}, {v(ZA+4*n,4)}, {v(W2+4*n,4)}, {v(B2,4) if n == 0 else v(S,4)}")
            elif k == "L":
                p(f"s_waitcnt lgkmcnt({n})")
            else:
                raise ValueError(t)

    p(f"L{tag}_loop:")
    for u in range(D):
        emit(u, toks, False)
    p(f"s_branch L{tag}_loop")
    for u in range(D):
        p(f"L{tag}_ev{u}:")
        p(f"s_bitcmp0_b64 {s(F,2)}, {u}")
        p(f"s_cbranch_scc1 L{tag}_nf{u}")
        flush()
        p(f"L{tag}_nf{u}:")
        p(f"s_bitcmp0_b64 {s(F,2)}, {u+D+1}")
        p(f"s_cbranch_scc1 L{tag}_na{u}")
        adv_hist()
        p(f"L{tag}_na{u}:")
        p(f"s_bitcmp0_b64 {s(F,2)}, {u+2}")
        p(f"s_cbranch_scc1 L{tag}_evd{u}")
        p(f"s_sub_u32 {s(sKW)}, {s(sKW)}, 1")
        p(f"s_cbranch_scc1 L{tag}_last{u}")
        wbuild()
        p(f"s_branch L{tag}_evd{u}")
    for u in range(D):
        p(f"L{tag}_last{u}:")
        if u:
            p(f"v_add_u32 {v(RDT)}, {u*SLOT}, {v(RDT)}")
            p(f"s_lshr_b64 {s(F,2)}, {s(F,2)}, {u}")
            if slow:
                p(f"v_add_u32 {v(RDM)}, {16*u}, {v(RDM)}")
        if u < D - 1:
            p(f"s_branch L{tag}_tail")
    p(f"L{tag}_tail:")
    if opt["est"]:
        p(f"s_add_u32 {s(sT0)}, {s(sLB)}, {TB}")
        p(f"v_lshl_add_u32 {v(RDL)}, v0, 4, {s(sT0)}")
        p(f"ds_read_b128 {v(XB,4)}, {v(RDL)}")
    i1 = toks.index("EV")
    drop = lambda t: t in ("vm", "ia", "ib", "EV", "ent", "P0", "P1", "da", "db", "B", "L2") or (t[0] in "Gym" and t[1:].isdigit())
    emit(0, [t for t in toks[i1:] + toks[:i1] if not drop(t)] + ["mi2", "s0", "s1", "q0", "q1", "q2", "q3"], True)
    flush(last=True)
    if slow:
        p("s_branch L_store")


p(f"{NAME}:")
if opt.get("spin"):
    p("s_memrealtime s[44:45]")
cst("entry")
if STAMP:
    if STAMP != 4:
        p("s_memrealtime s[98:99]")
        p("s_memtime s[96:97]")
    p("s_load_dwordx2 s[100:101], s[0:1], 72")
p("s_load_dwordx16 s[4:19], s[0:1], 0")
p(f"s_cmp_ge_u32 s2, {NWG}")
p("s_cbranch_scc1 L_end")
if opt.get("pf", 0):
    p("s_getpc_b64 s[36:37]")
    p("v_lshlrev_b32 v2, 7, v0")
    p(f"v_cmp_gt_u32 vcc, {opt.get('pfl', 128)}, v0")
    p("s_and_saveexec_b64 s[38:39], vcc")
    p("s_cbranch_execz L_nopf")
    p("global_load_dword v255, v2, s[36:37]")
    p("L_nopf:")
    p("s_mov_b64 exec, -1")
p("v_lshrrev_b32 v1, 6, v0")
p("v_and_b32 v0, 63, v0")
p(f"v_readfirstlane_b32 {s(sw)}, v1")
if opt["map"] & 2:
    p("s_and_b32 s3, s2, 7")
    p("s_lshl_b32 s3, s3, 5")
    p(f"s_lshr_b32 {s(sW)}, s2, 3")
    p(f"s_add_u32 {s(sW)}, {s(sW)}, s3")
    p(f"s_lshl_b32 {s(sW)}, {s(sW)}, {(WGSTR//2).bit_length()-1}")
else:
    p(f"s_lshl_b32 {s(sW)}, s2, {(WGSTR//2).bit_length()-1}")
p("v_lshlrev_b32 v2, 4, v0")
p(f"s_bfm_b64 {s(EX50,2)}, 50, 0")
p(f"s_add_u32 {s(sW)}, {s(sW)}, {s(sw)}")
p(f"s_mul_i32 {s(sT0)}, {s(sW)}, 800")
p(f"s_mul_i32 {s(sLB)}, {s(sw)}, {REG}")
p(f"v_add_u32 v3, {s(sT0)}, v2")
p(f"v_and_b32 {v(TX+2)}, 16, v0")
p(f"v_lshlrev_b32 {v(TX)}, 1, {v(TX+2)}")
p(f"v_xor_b32 {v(TX)}, {v(TX)}, v2")
p(f"s_lshl_b32 {s(sT1)}, {s(sw)}, 12")
p(f"s_add_u32 m0, {s(sLB)}, {STG}")
p(f"s_mov_b64 exec, {s(EX50,2)}")
p("s_waitcnt lgkmcnt(0)")
cst("kernarg")
if STAMP and STAMP != 4:
    p("s_mov_b64 exec, -1")
    p("v_mov_b32 v254, 0")
    p("v_writelane_b32 v254, s98, 0")
    p("v_writelane_b32 v254, s96, 32")
    nstamp[0] = 1
    stamp()
    p(f"s_mov_b64 exec, {s(EX50,2)}")
p(f"global_load_dwordx4 {v(MSK,4)}, v3, s[8:9] {NTM}")
p("s_mov_b64 exec, -1")
p(f"s_add_u32 s10, s10, {s(sT1)}")
p("s_addc_u32 s11, s11, 0")
p(f"v_xor_b32 {v(TX+1)}, 64, {v(TX)}")
for j in range(4):
    p(f"global_load_lds_dwordx4 {v(TX+(j&1))}, s[10:11] offset:{j*1024}")
p(f"s_load_dword {s(sB2)}, s[16:17], 0")
p("v_lshrrev_b32 v1, 4, v0")
p(f"v_and_b32 {v(VOUT)}, 0xf0, v2")
p(f"v_lshl_add_u32 {v(VOUT)}, v1, {LGP+7}, {v(VOUT)}")
p(f"s_lshl_b32 {s(sT0)}, {s(sW)}, 8")
p(f"s_add_u32 m0, {s(sLB)}, {TB}")
p(f"v_add_u32 {v(VOUT)}, {s(sT0)}, {v(VOUT)}")
p(f"s_and_b32 {s(sT1)}, {s(sw)}, 3")
p(f"global_load_lds_dwordx4 {v(VOUT)}, s[4:5] {NTM}")
B1R, W2R = CD + 28, DG
p(f"s_lshl_b32 {s(sT0)}, {s(sT1)}, 5")
p(f"v_lshl_add_u32 {v(TX+3)}, v1, 3, {s(sT0)}")
p(f"global_load_dwordx2 {v(B1R,2)}, {v(TX+3)}, s[12:13]")
p(f"v_and_b32 {v(TX+4)}, 3, v0")
NVM = 11
stamp()
p(f"s_mul_i32 {s(sT0)}, {s(sW)}, 51200")
p(f"s_add_u32 s6, s6, {s(sT0)}")
p("s_addc_u32 s7, s7, 0")
srd(SH, 6, 200, stride=128)
if opt["m1"]:
    p(f"s_sub_u32 s6, s6, 1056")
    p("s_subb_u32 s7, s7, 0")
    srd(SH2, 6, 200, stride=128)
p(f"s_movk_i32 {s(sDL)}, {DLT0}")
p(f"v_mov_b32 {v(ZB)}, -1")
p(f"v_mov_b32 {v(ZB+1)}, -1")
p(f"v_mov_b32 {v(ZB+2)}, -1")
p(f"v_mov_b32 {v(ZB+3)}, -1")
p(f"s_add_u32 {s(sT0)}, {s(sLB)}, {LI}")
p(f"v_add_u32 {v(ZB+4)}, {s(sT0)}, v2")
p(f"ds_write_b128 {v(ZB+4)}, {v(ZB,4)}")
p(f"ds_write_b128 {v(ZB+4)}, {v(ZB,4)} offset:1024")
for j in range(5, 2 * D):
    p(f"v_mov_b32 {v(ZB+j)}, -1")
p(f"s_add_u32 {s(sBASE)}, {s(sLB)}, {L0}")
p(f"v_lshrrev_b32 {v(RDL)}, 3, v0")
p(f"v_add_u32 {v(RDL)}, {s(sBASE)}, {v(RDL)}")
p(f"v_lshl_add_u32 {v(RDM)}, v1, 2, {s(sT0)}")
p(f"v_and_b32 {v(VA+1)}, 0x70, v2")
p(f"v_lshlrev_b32 {v(TX+2)}, 2, {v(TX+2)}")
p(f"v_xor_b32 {v(VA+1)}, {v(VA+1)}, {v(TX+2)}")
p(f"v_mov_b32 {v(VB+1)}, {v(VA+1)}")
p(f"v_cmp_lt_u32 vcc, 24, v0")
p(f"v_mov_b32 {v(OACC)}, 0")
p(f"v_mov_b32 {v(SACC)}, 0")
p(f"v_cndmask_b32 {v(HI)}, 0, 1, vcc")
p(f"v_mul_u32_u24 {v(CV+1)}, 25, {v(HI)}")
p(f"v_sub_u32 {v(CV+1)}, v0, {v(CV+1)}")
p(f"v_mul_u32_u24 {v(CV+1)}, 0x80008, {v(CV+1)}")
p(f"v_add_u32 {v(CV)}, 0x10000, {v(CV+1)}")
p(f"v_add_u32 {v(CV+2)}, 0x50004, {v(CV+1)}")
p(f"v_add_u32 {v(CV+3)}, 0x70006, {v(CV+1)}")
p(f"v_add_u32 {v(CV+1)}, 0x30002, {v(CV+1)}")
p(f"s_mov_b64 {s(F,2)}, 0")
p(f"s_mov_b64 {s(F+2,2)}, 0")
if STAMP:
    p(f"s_mov_b32 {s(sK)}, {KB-1}")
p(f"s_mov_b32 {s(sKA)}, {KB-1}")
p(f"s_mov_b32 {s(sKW)}, {KB-1}")
p(f"s_mov_b32 {s(sC)}, {CNEG:#x}")
n_, r_, c_ = TX + 5, TX + 6, TX + 4
p(f"v_and_b32 {v(n_)}, 15, v0")
p(f"v_bfe_u32 {v(r_)}, v0, 2, 2")
X0 = TX + 7
SA, SC_, SB_, TBA, BWA = CA + 60, CA + 61, CA + 62, CA + 63, CD + 30
IDN, N0M = DG + 2, DG + 4
p(f"v_lshlrev_b32 {v(X0)}, 3, {v(c_)}")
p(f"v_lshl_add_u32 {v(X0)}, {v(r_)}, 7, {v(X0)}")
p(f"v_and_b32 {v(TX)}, 24, v0")
p(f"v_lshlrev_b32 {v(TX)}, 2, {v(TX)}")
p(f"v_xor_b32 {v(TX)}, {v(X0)}, {v(TX)}")
p(f"v_lshl_add_u32 {v(TX)}, v1, 10, {v(TX)}")
p(f"s_lshl_b32 {s(sT0)}, {s(sT1)}, 5")
p(f"v_xor_b32 {v(SB_)}, {s(sT0)}, {v(TX)}")
p(f"v_add_u32 {v(SB_)}, {STG+2*REG}, {v(SB_)}")
p(f"s_lshr_b32 {s(sT0)}, {s(sw)}, 1")
p(f"s_lshl_b32 {s(sT0)}, {s(sT0)}, 5")
p(f"v_xor_b32 {v(SA)}, {s(sT0)}, {v(TX)}")
p(f"s_and_b32 {s(sT0)}, {s(sw)}, 1")
p(f"s_mul_i32 {s(sT0)}, {s(sT0)}, {REG}")
p(f"s_add_u32 {s(sT0)}, {s(sT0)}, {STG}")
p(f"v_add_u32 {v(SA)}, {s(sT0)}, {v(SA)}")
p(f"v_add_u32 {v(SC_)}, {4*REG}, {v(SA)}")
p(f"s_and_b32 {s(sT0)}, {s(sw)}, 4")
p(f"v_lshrrev_b32 {v(TX)}, 3, {v(n_)}")
p(f"v_add_u32 {v(TX)}, {s(sT0)}, {v(TX)}")
p(f"v_mul_u32_u24 {v(TX)}, {REG}, {v(TX)}")
p(f"v_lshl_add_u32 {v(TX)}, v1, 4, {v(TX)}")
p(f"v_and_b32 {v(TX+1)}, 7, v0")
p(f"v_lshl_add_u32 {v(TBA)}, {v(TX+1)}, 7, {v(TX)}")


def gRDB():
    p(f"v_and_b32 {v(TX+1)}, 8, v0")
    p(f"v_lshlrev_b32 {v(TX+1)}, 2, {v(TX+1)}")
    p(f"v_lshl_add_u32 {v(TX+1)}, {v(n_)}, 7, {v(TX+1)}")
    p(f"v_add_u32 {v(TX+1)}, {s(sLB)}, {v(TX+1)}")
    p(f"v_and_b32 {v(TX+2)}, 2, v0")
    p(f"v_lshlrev_b32 {v(TX+2)}, 1, {v(TX+2)}")
    p(f"v_xor_b32 {v(TX+2)}, {v(TX+2)}, v1")
    p(f"v_lshl_add_u32 {v(RDB0)}, {v(TX+2)}, 4, {v(TX+1)}")
    p(f"v_xor_b32 {v(TX+2)}, 4, {v(TX+2)}")
    p(f"v_lshl_add_u32 {v(RDB1)}, {v(TX+2)}, 4, {v(TX+1)}")


def gRDT():
    p(f"v_and_b32 {v(TX+1)}, 8, v0")
    p(f"v_lshlrev_b32 {v(TX+1)}, 3, {v(TX+1)}")
    p(f"v_lshl_add_u32 {v(TX+2)}, v1, 5, {v(X0)}")
    p(f"v_xor_b32 {v(TX+2)}, {v(TX+2)}, {v(TX+1)}")
    p(f"v_add_u32 {v(RDT)}, {s(sLB)}, {v(TX+2)}")


def gTAD():
    p(f"s_add_u32 {s(sT0)}, {s(sLB)}, {TB}")
    p(f"v_lshl_add_u32 {v(TADR)}, {v(c_)}, 1, {s(sT0)}")
    p(f"v_lshl_add_u32 {v(TADR)}, {'v1' if W44 else v(r_)}, 4, {v(TADR)}")
    p(f"v_lshl_add_u32 {v(OADR)}, v0, 1, {s(sT0)}")
    p(f"s_add_u32 {s(sT0)}, {s(sLB)}, {BI}")
    p(f"v_lshl_add_u32 {v(BADR)}, v1, 4, {s(sT0)}")


def gBWA():
    p(f"s_and_b32 {s(sT0)}, {s(sw)}, 3")
    p(f"s_lshl_b32 {s(sT0)}, {s(sT0)}, 6")
    p(f"s_add_u32 {s(sT0)}, {s(sT0)}, {BI}")
    p(f"v_and_b32 {v(TX+1)}, 7, v0")
    p(f"v_mul_u32_u24 {v(TX+1)}, {BSTR-128}, {v(TX+1)}")
    p(f"v_add3_u32 {v(BWA)}, {v(TBA)}, {v(TX+1)}, {s(sT0)}")


def gSEL():
    if not W44:
        p(f"v_cmp_eq_u32 vcc, {v(r_)}, v1")
    p(f"v_and_b32 {v(TX+1)}, 1, v0")
    p(f"v_lshlrev_b32 {v(TX+1)}, 4, {v(TX+1)}")
    p(f"v_lshlrev_b32 {v(TX+1)}, {v(TX+1)}, 1")
    if not W44:
        p(f"v_cndmask_b32 {v(TX+1)}, 0, {v(TX+1)}, vcc")
    p(f"v_cmp_gt_u32 vcc, 2, {v(c_)}")
    p(f"v_mov_b32 {v(ONE+1)}, 0")
    p(f"v_mov_b32 {v(ONE)}, 0x3f80")
    p(f"v_cndmask_b32 {v(SEL0)}, 0, {v(TX+1)}, vcc")
    p(f"v_cmp_eq_u32 vcc, 0, {v(n_)}")
    p(f"v_sub_u32 {v(SEL1)}, {v(TX+1)}, {v(SEL0)}")
    p(f"v_mul_u32_u24 {v(IDN)}, 0x3f80, {v(SEL0)}")
    p(f"v_cndmask_b32 {v(N0M)}, 0, -1, vcc")
    p(f"v_mul_u32_u24 {v(IDN+1)}, 0x3f80, {v(SEL1)}")


def gZER():
    for j in range(8):
        p(f"v_mov_b32 {v(XT+j)}, 0")
    for j in range(4):
        p(f"v_mov_b32 {v(S+j)}, 0")
        p(f"v_mov_b32 {v(ACC+j)}, 0")


def gB2():
    p(f"s_lshl_b32 {s(sB2)}, {s(sB2)}, 16")
    for r in range(4):
        p(f"v_and_b32 {v(B2+r)}, {s(sB2)}, {v(N0M)}")


def gPRI():
    if opt["prio"]:
        p(f"s_and_b32 {s(sT0)}, {s(sw)}, 3")
        p(f"s_mul_i32 {s(sT0)}, {s(sT0)}, {REG}")
        p(f"s_add_u32 {s(sT0)}, {s(sT0)}, {PRG}")
        p(f"v_mov_b32 {v(DG+5)}, {s(sT0)}")
        p(f"s_cmp_ge_u32 {s(sw)}, 4")
        p(f"s_cselect_b32 {s(sSGN)}, -1, 0")
        p(f"ds_write_b32 {v(DG+5)}, {v(ONE+1)}")


PLACE = dict(zip((gSEL, gBWA, gPRI, gB2, gRDB, gRDT, gTAD, gZER), (int(x) for x in str(opt["place"])[1:])))


def groups(k):
    for f, w_ in PLACE.items():
        if w_ == k:
            f()


groups(0)
p(f"s_mov_b64 exec, {s(EX50,2)}")
for j in range(1, 4):
    p(f"v_add_u32 v3, {PSTR*400}, v3")
    p(f"global_load_dwordx4 {v(MSK+4*j,4)}, v3, s[8:9] {NTM}")
p("s_mov_b64 exec, -1")
p(f"v_lshlrev_b32 {v(TX+3)}, 3, v1")
p(f"v_lshl_add_u32 {v(TX+3)}, {v(TX+4)}, 5, {v(TX+3)}")
p(f"global_load_dwordx2 {v(W2R,2)}, {v(TX+3)}, s[14:15]")
NE = D - 2
PLAN = [int(x) for x in str(opt["plan"])]
assert sum(PLAN) == NE
IDX = ZB


def idx_reads():
    for t in range(D):
        p(f"ds_read_u8 {v(IDX+2*t)}, {v(RDL)} offset:{t*16}")
        p(f"ds_read_u8 {v(IDX+2*t+1)}, {v(RDL)} offset:{t*16+8}")


def tiles(t0, t1, bits, tag):
    for t in range(t0, t1):
        if t > 0:
            p(f"s_bitcmp0_b64 {s(bits,2)}, {t+1}")
            p(f"s_cbranch_scc1 L_noadv{tag}{t}")
            adv_hist()
            p(f"L_noadv{tag}{t}:")
        p(m0_half(t, 0))
        p(f"v_mov_b32 {v(VA)}, {v(IDX+2*t)}")
        p(f"v_mov_b32 {v(VB)}, {v(IDX+2*t+1)}")
        p(dma_half(0))
        if not opt["m1"]:
            p(m0_half(t, 1))
            p("s_nop 0")
        p(dma_half(1))


issued = [0]


def early(n):
    if n == 0:
        return
    t0 = issued[0]
    p(f"s_cmp_eq_u32 {s(sEARLY)}, 0")
    p(f"s_cbranch_scc1 L_skip{t0}")
    tiles(t0, t0 + n, F, "e")
    p(f"L_skip{t0}:")
    issued[0] += n


def first_pair():
    compact(0)
    p(f"s_add_u32 {s(sT0)}, {s(sLB)}, {L0+16*D}")
    p(f"s_cmp_ge_u32 {s(sBASE)}, {s(sT0)}")
    p(f"s_cselect_b32 {s(sEARLY)}, 1, 0")
    p("s_cbranch_scc1 L_early")
    p("s_waitcnt vmcnt(0)")
    p("L_early:")
    idx_reads()
    p("s_waitcnt lgkmcnt(0)")
    early(PLAN[0])


stamp()
ASYM = opt["ord"] == 2
if opt["ord"] == 0:
    p(f"s_waitcnt vmcnt({NVM-1}) lgkmcnt(0)")
    stamp()
    first_pair()
    stamp()
    early(PLAN[1])
if ASYM:
    assert PLAN[1:] == [0, 0, 0]
    p(f"s_cmp_ge_u32 {s(sw)}, 4")
    p("s_cbranch_scc1 L_young1")
    p(f"s_waitcnt vmcnt({NVM-1}) lgkmcnt(0)")
    p(f"s_call_b64 {s(RET,2)}, L_fp")
    p(f"s_waitcnt vmcnt({5+2*PLAN[0]})")
    p("s_branch L_old1")
    p("L_young1:")
    p(f"s_waitcnt vmcnt(5)")
    p("L_old1:")
cst("preB1")
if ASYM:
    p(f"s_waitcnt lgkmcnt(0)")
else:
    p(f"s_waitcnt vmcnt({5+2*issued[0]}) lgkmcnt(0)")
p("s_barrier")
stamp()
cst("B1")
RWA, RWC, RWD, RBB, RBC, TP, DB, DA, DD = CA, CA + 4, CA + 8, CA + 12, CA + 20, CA + 28, CA + 44, CA + 52, CD
for (dst, base) in ((RBB, 0), (RBC, 2)):
    for ks in range(2):
        for u in range(2):
            p(f"ds_read_b64_tr_b16 {v(dst+4*ks+2*u,2)}, {v(SB_)} offset:{(base+ks)*REG+u*512}")
for j in range(2):
    for ks in range(2):
        p(f"ds_read_b128 {v(TP+8*j+4*ks,4)}, {v(TBA)} offset:{TB+j*2*REG+ks*64}")
for u in range(2):
    p(f"ds_read_b64_tr_b16 {v(RWA+2*u,2)}, {v(SA)} offset:{u*512}")
    p(f"ds_read_b64_tr_b16 {v(RWC+2*u,2)}, {v(SC_)} offset:{u*512}")
    p(f"ds_read_b64_tr_b16 {v(RWD+2*u,2)}, {v(SC_)} offset:{2*REG+u*512}")
if ASYM:
    p(f"s_cmp_ge_u32 {s(sw)}, 4")
    p("s_cbranch_scc1 L_young2")
    p(f"s_waitcnt vmcnt({4+2*PLAN[0]})")
    p("s_branch L_old2")
    p("L_young2:")
    p(f"s_waitcnt vmcnt(4)")
    p("L_old2:")
else:
    p(f"s_waitcnt vmcnt({4+2*issued[0]})")
for j in range(2):
    p(f"v_lshlrev_b32 {v(DB+2*j)}, 16, {v(B1R+j)}")
    p(f"v_and_b32 {v(DB+2*j+1)}, 0xffff0000, {v(B1R+j)}")
groups(1)
if opt["ord"] == 1:
    first_pair()
    stamp()
    early(PLAN[1])
    stamp()
early(PLAN[2])
cst("firstpair")
p("s_waitcnt lgkmcnt(0)")
for j in range(8):
    p(f"v_xor_b32 {v(RBC+j)}, 0x80008000, {v(RBC+j)}")
for u in range(2):
    p(f"{DIAGMM} {v(DA+4*u,4)}, {v(IDN,2)}, {v(RWA+2*u,2)}, 0")
    p(f"{DIAGMM} {v(DD+4*u,4)}, {v(IDN,2)}, {v(RWD+2*u,2)}, 0")
for u in range(2):
    p(f"{DIAGMM} {v(DA+4*u,4)}, {v(IDN,2)}, {v(RWC+2*u,2)}, {v(DA+4*u,4)}")
for j in (1, 0):
    first = True
    for (src) in (RBB, RBC):
        for ks in range(2):
            c = v(DB, 4) if first else v(DB + 4 * j, 4)
            p(f"v_mfma_f32_16x16x32_bf16 {v(DB+4*j,4)}, {v(src+4*ks,4)}, {v(TP+8*j+4*ks,4)}, {c}")
            first = False
for j in range(8):
    p(f"v_mul_f32 {v(DA+j)}, {s(sC)}, {v(DA+j)}")
for j in range(8):
    p(f"v_mul_f32 {v(DD+j)}, {s(sC)}, {v(DD+j)}")
p(f"s_add_u32 {s(sT0)}, {s(sLB)}, {XCH}")
p(f"v_add_u32 v3, {s(sT0)}, v2")
for j in range(4):
    p(f"v_cvt_pk_bf16_f32 {v(DD+j)}, {v(DD+2*j)}, {v(DD+2*j+1)}")
for j in range(8):
    p(f"v_mul_f32 {v(DB+j)}, {s(sC)}, {v(DB+j)}")
early(PLAN[3])
p(f"ds_write_b128 v3, {v(DA,4)}")
p(f"ds_write_b128 v3, {v(DA+4,4)} offset:1024")
p(f"ds_write_b128 v3, {v(DD,4)} offset:2048")
p(f"ds_write_b128 {v(BWA)}, {v(DB,4)}")
p(f"ds_write_b128 {v(BWA)}, {v(DB+4,4)} offset:{2*REG}")
p(f"v_add_u32 v3, {XCH}, v2")
p(f"v_add_u32 {v(TX)}, {4*REG}, v3")
cst("preB3")
p("s_waitcnt lgkmcnt(0)")
p("s_barrier")
cst("B3")
stamp()
def const_reads(w0, w1):
    for w_ in range(w0, w1):
        a = "v3" if w_ < 4 else v(TX)
        p(f"ds_read_b128 {v(CA+8*w_,4)}, {a} offset:{(w_&3)*REG}")
        p(f"ds_read_b128 {v(CA+8*w_+4,4)}, {a} offset:{(w_&3)*REG+1024}")
        p(f"ds_read_b128 {v(CD+4*w_,4)}, {a} offset:{(w_&3)*REG+2048}")


cuts = (0, 2, 5, 8) if opt["il"] else (0, 8, 8, 8)
if ASYM:
    p(f"s_cmp_lt_u32 {s(sw)}, 4")
    p("s_cbranch_scc1 L_old3")
    p(f"s_call_b64 {s(RET,2)}, L_fp")
    p("L_old3:")
    issued[0] = PLAN[0]
if opt["il"]:
    early(2)
const_reads(cuts[0], cuts[1])
if not opt["il"]:
    early(2)
groups(2)
p(f"s_waitcnt vmcnt({2*D})")
cst("tiles23")
compact(1)
const_reads(cuts[1], cuts[2])
compact(2)
const_reads(cuts[2], cuts[3])
for x in range(4):
    p(f"ds_read_u16 {v(TR+x)}, {v(TADR)} offset:{(x>>1)*64+(x&1)*8}")
stamp()
compact(3)
p(f"s_mov_b32 {s(sT0)}, {~0x3f803f80 & 0xffffffff:#x}")
p(f"v_and_or_b32 {v(OACC)}, {v(OACC)}, {s(sT0)}, {v(SACC)}")
p(f"v_cmp_ne_u32 {s(NB,2)}, 0, {v(OACC)}")
if opt["prio"]:
    p(f"s_sub_u32 {s(sT0)}, {s(sBASE)}, {s(sLB)}")
    p(f"s_sub_u32 {s(sT0)}, {s(sT0)}, {L0}")
    p(f"s_lshr_b32 {s(sT0)}, {s(sT0)}, 3")
    p(f"s_xor_b32 {s(sT0)}, {s(sT0)}, {s(sSGN)}")
    p(f"s_sub_u32 {s(sT0)}, {s(sT0)}, {s(sSGN)}")
    p(f"s_xor_b32 {s(sT1)}, {(-D if opt['prio'] == 2 else -2*D) & 0xffffffff:#x}, {s(sSGN)}")
    p(f"s_sub_u32 {s(sT1)}, {s(sT1)}, {s(sSGN)}")
    p(f"v_mov_b32 {v(PADR)}, {v(DG+5)}")
    p(f"v_mov_b32 {v(PRV)}, {s(sT0)}")
    p(f"v_mov_b32 {v(PINC)}, {s(sT1)}")
    p("s_mov_b64 exec, 1")
    p(f"ds_add_u32 {v(PADR)}, {v(PRV)}")
    p("s_mov_b64 exec, -1")
p(f"s_cmp_eq_u32 {s(sEARLY)}, 1")
p("s_cbranch_scc1 L_nolate")
idx_reads()
p("s_waitcnt lgkmcnt(0)")
tiles(0, D, F, "l")
p("L_nolate:")
for hb in range(4):
    for j in range(2):
        p(f"v_and_b32_dpp {v(W2+2*hb+j)}, {v(W2R+j)}, {v(N0M)} quad_perm:[{hb},{hb},{hb},{hb}] row_mask:0xf bank_mask:0xf")
cst("precompactdone")
p(f"s_waitcnt vmcnt({2*(D-1)}) lgkmcnt(0)")
read_xb(0, 0)
read_xb(0, 1)
wbuild()
stamp()
stamp(33)
cst("wbuilt")
if STAMP == 4:
    p("s_waitcnt lgkmcnt(0)")
    p("v_mov_b32 v254, 0")
    for j, r in enumerate((38,94,44,46,48,50,96,98,26,86)):
        p(f"v_writelane_b32 v254, s{r}, {j}")
for j in range(8):
    p(g1(j))
if opt.get("dbgnop"):
    p("s_nop 15"); p("s_nop 15"); p("s_nop 15")
p(f"s_waitcnt vmcnt({2*(D-2)})")
read_xb(1, 0)
read_xb(1, 1)
p(f"ds_read_u8 {v(VA)}, {v(RDL)} offset:{D*16}")
p(f"ds_read_u8 {v(VB)}, {v(RDL)} offset:{D*16+8}")
event_mask()
p(f"s_cmp_lg_u64 {s(NB,2)}, 0")
p("s_cbranch_scc0 Lf_mid")
p(f"s_mul_i32 {s(sT0)}, {s(sW)}, 800")
p(f"s_add_u32 s8, s8, {s(sT0)}")
p("s_addc_u32 s9, s9, 0")
srd(SM, 8, 400)
p(f"s_movk_i32 {s(sMDL)}, {MDL0}")
p("s_branch Ls_mid")
if ASYM:
    assert not opt["sub"]
    p("L_fp:")
    issued[0] = 0
    first_pair()
    p(f"s_setpc_b64 {s(RET,2)} ; ret=L_fp")
if opt["sub"]:
    p("L_compact:")
    compact_body(0)
    p(f"s_setpc_b64 {s(RET,2)} ; ret=L_compact")
    p("L_wbuild:")
    wbuild_body()
    p(f"s_setpc_b64 {s(RET,2)} ; ret=L_wbuild")
mainloop("f", False)
p("L_store:")
if opt["est"]:
    p(f"s_bfm_b64 exec, 16, 48")
    p(f"ds_read_b128 {v(ZB,4)}, {v(RDL)}")
else:
    p(f"s_add_u32 {s(sT0)}, {s(sLB)}, {TB}")
    p(f"v_lshl_add_u32 {v(TX+1)}, v0, 4, {s(sT0)}")
    p(f"ds_read_b128 {v(ZB,4)}, {v(TX+1)}")
p("s_waitcnt lgkmcnt(0)")
p(f"global_store_dwordx4 {v(VOUT)}, {v(ZB,4)}, s[18:19] {NTO}")
if STAMP:
    p("s_mov_b64 exec, -1")
    stamp(34)
    p(f"v_writelane_b32 v254, {s(sBASE)}, 15")
    p("s_getreg_b32 s96, hwreg(HW_REG_XCC_ID)")
    p("v_writelane_b32 v254, s96, 14")
    p("s_getreg_b32 s96, hwreg(HW_REG_HW_ID)")
    p("v_writelane_b32 v254, s96, 13")
    srd(SM, 100, 2048 * 256)
    p(f"s_lshl_b32 {s(sT0)}, s2, 3")
    p(f"s_add_u32 {s(sT0)}, {s(sT0)}, {s(sw)}")
    p(f"s_lshl_b32 {s(sT0)}, {s(sT0)}, 8")
    p(f"v_lshlrev_b32 v1, 2, v0")
    p(f"buffer_store_dword v254, v1, {s(SM,4)}, {s(sT0)} offen")
if opt.get("spin"):
    p("L_spin:")
    p("s_memrealtime s[46:47]")
    p("s_waitcnt lgkmcnt(0)")
    p("s_sub_u32 s46, s46, s44")
    p(f"s_cmp_lt_u32 s46, {opt['spin']*100}")
    p("s_cbranch_scc1 L_spin")
p("L_end:")
p("s_endpgm")
mainloop("s", True)

nn = p.fix_hazards(verbose=opt["verbose"])
for early_, old_ in ((True, True), (False, True), (True, False), (False, False)):
    for e in check_waits(p, (("L_early", early_), ("L_skip", not early_), ("L_nolate", early_), ("L_young", not old_), ("L_old3", old_))):
        sys.exit(f"WAIT-CHECK early={early_}: {e}")
hdr = open(__file__.rsplit("/", 1)[0] + "/../standalone__sequential_behavior_din__recsys.s.ref").read().split("\n")
head = [l for l in hdr if l.startswith(";") and "@launch" not in l and "Override" not in l and "grid=ceil" not in l]
out = "\n".join(head) + f"""
; @launch grid=({NWG},1,1) block=({WPB*64},1,1) lds={WPB*REG}
; generated by gen/gen.py {' '.join(sys.argv[1:])}
.amdgcn_target "amdgcn-amd-amdhsa--gfx950"
.text
.globl {NAME}
.p2align 8
.type {NAME},@function
""" + p.text() + f""".section .rodata,"a"
.p2align 6
.amdhsa_kernel {NAME}
  .amdhsa_next_free_vgpr 256
  .amdhsa_next_free_sgpr 102
  .amdhsa_accum_offset 256
  .amdhsa_group_segment_fixed_size 0
  .amdhsa_kernarg_size 80
  .amdhsa_user_sgpr_count 2
  .amdhsa_user_sgpr_kernarg_segment_ptr 1
  .amdhsa_system_sgpr_workgroup_id_x 1
.end_amdhsa_kernel
"""
sys.stdout.write(out)
```

```python
import re

TRANS = ("v_exp_f32", "v_rcp_f32", "v_log_f32", "v_rsq_f32", "v_sqrt_f32", "v_sin_f32", "v_cos_f32",
         "v_exp_f16", "v_rcp_f16")


def regs_of(tok):
    tok = tok.strip()
    neg = tok.lstrip("-|").rstrip("|")
    m = re.fullmatch(r"([vsa])(\d+)", neg)
    if m:
        return [(m.group(1), int(m.group(2)))]
    m = re.fullmatch(r"([vsa])\[(\d+):(\d+)\]", neg)
    if m:
        return [(m.group(1), i) for i in range(int(m.group(2)), int(m.group(3)) + 1)]
    if neg == "vcc":
        return [("s", 106), ("s", 107)]
    if neg == "exec":
        return [("s", 126), ("s", 127)]
    if neg == "m0":
        return [("s", 124)]
    return []


def mfma_passes(mn):
    if "4x4x4" in mn:
        return 2
    if "16x16x32" in mn or "16x16x16" in mn or "16x16x64" in mn:
        return 4
    if "32x32x16" in mn or "32x32x8" in mn or "16x16x4_4b" in mn:
        return 8
    raise ValueError(mn)


class Ins:
    def __init__(self, text):
        self.text = text.strip()
        self.label = None
        self.cls = None
        self.w = set()
        self.r = set()
        self.srcA = self.srcB = self.srcC = self.dst = ()
        self.target = None
        self.states = 1
        t = self.text.split(";")[0].strip()
        if t.endswith(":"):
            self.label = t[:-1]
            self.cls = "label"
            self.states = 0
            return
        if t == "" or t.startswith("."):
            self.cls = "dir"
            self.states = 0
            return
        parts = t.split(None, 1)
        mn = self.mn = parts[0]
        rest = parts[1] if len(parts) > 1 else ""
        ops, depth, cur = [], 0, ""
        for ch in rest:
            if ch == "[":
                depth += 1
            if ch == "]":
                depth -= 1
            if ch == "," and depth == 0:
                ops.append(cur.strip())
                cur = ""
            else:
                cur += ch
        if cur.strip():
            ops.append(cur.strip())
        mods = ""
        if ops:
            sp = ops[-1].split(None, 1)
            if len(sp) > 1:
                ops[-1], mods = sp[0], sp[1]
        self.ops, self.mods = ops, mods
        R = lambda k: regs_of(ops[k]) if k < len(ops) else []
        if mn.startswith("v_mfma"):
            self.cls = "mfma"
            self.passes = mfma_passes(mn)
            self.dst, self.srcA, self.srcB, self.srcC = map(tuple, (R(0), R(1), R(2), R(3)))
            self.w = set(self.dst)
            self.r = set(self.srcA) | set(self.srcB) | set(self.srcC)
        elif mn.startswith("v_"):
            self.cls = "valu"
            self.trans = any(mn.startswith(x) for x in TRANS)
            if mn.startswith("v_cmp"):
                self.w = set(R(0))
                self.r = set(x for k in range(1, len(ops)) for x in R(k))
            elif mn.startswith(("v_add_co", "v_addc_co", "v_sub_co", "v_subb_co")):
                self.w = set(R(0)) | set(R(1))
                self.r = set(x for k in range(2, len(ops)) for x in R(k))
            else:
                self.w = set(R(0))
                self.r = set(x for k in range(1, len(ops)) for x in R(k))
                if mn.startswith(("v_fmac", "v_permlane", "v_writelane")):
                    self.r |= set(R(0))
                if mn.startswith("v_permlane"):
                    self.w |= set(R(1))
            self.lane_read = mn.startswith(("v_readfirstlane", "v_readlane"))
            self.dpp = "_dpp" in mn
        elif mn.startswith("ds_"):
            self.cls = "ds"
            if "_rtn" in mn:
                self.w = set(R(0))
                self.r = set(x for k in range(1, len(ops)) for x in R(k))
            elif mn.startswith("ds_read"):
                self.w = set(R(0))
                self.r = set(R(1))
                if "d16" in mn:
                    self.r |= set(R(0))
            else:
                self.r = set(x for k in range(len(ops)) for x in R(k))
        elif mn.startswith("global_"):
            self.cls = "vmem"
            self.lds = "_lds_" in mn
            if self.lds:
                self.r = set(x for k in range(len(ops)) for x in R(k))
            elif mn.startswith("global_load"):
                self.w = set(R(0))
                self.r = set(x for k in range(1, len(ops)) for x in R(k))
            else:
                self.r = set(x for k in range(len(ops)) for x in R(k))
                self.store_data = set(R(1)) if ("x4" in mn or "x3" in mn) else set()
        elif mn.startswith("buffer_"):
            self.cls = "vmem"
            self.lds = bool(re.search(r"\blds\b", mods))
            if self.lds:
                self.r = set(x for k in range(len(ops)) for x in R(k))
            elif mn.startswith("buffer_load"):
                self.w = set(R(0))
                self.r = set(x for k in range(1, len(ops)) for x in R(k))
            else:
                self.r = set(x for k in range(len(ops)) for x in R(k))
                self.store_data = set(R(0)) if ("x4" in mn or "x3" in mn) else set()
        elif mn.startswith("s_"):
            self.cls = "salu"
            if mn == "s_nop":
                self.states = int(ops[0], 0) + 1
            elif mn.startswith(("s_cbranch", "s_branch")):
                self.cls = "branch"
                self.target = ops[0]
            elif mn == "s_call_b64":
                self.cls = "call"
                self.target = ops[1]
                self.w = set(R(0))
            elif mn == "s_setpc_b64":
                self.cls = "ret"
                self.r = set(R(0))
                self.target = re.search(r"ret=(\w+)", self.text).group(1)
            elif mn == "s_endpgm":
                self.cls = "end"
            elif mn.startswith(("s_cmp", "s_bitcmp", "s_waitcnt", "s_barrier", "s_setprio", "s_sleep")):
                self.r = set(x for k in range(len(ops)) for x in R(k))
            else:
                self.w = set(R(0))
                self.r = set(x for k in range(1, len(ops)) for x in R(k))
                if "saveexec" in mn:
                    self.w |= {("s", 126), ("s", 127)}
        else:
            raise ValueError("unknown instruction: " + text)


def need(p, c):
    n = 0
    vw = {x for x in p.w if x[0] in "va"}
    sw = {x for x in p.w if x[0] == "s"}
    if p.cls == "valu":
        if c.cls == "valu" and sw & c.r:
            n = max(n, 4 if getattr(c, "lane_read", False) and c.mn.startswith("v_readlane") else 2)
        if c.cls == "vmem" and sw & c.r:
            n = max(n, 5)
        if c.cls == "valu" and c.lane_read and vw & c.r:
            n = max(n, 1)
        if c.cls == "valu" and (c.dpp or c.mn.startswith("v_permlane")) and vw & c.r:
            n = max(n, 2)
        if p.trans and c.cls == "valu" and not c.trans and vw & c.r:
            n = max(n, 1)
        if "sdwa" in p.mn and not p.mn.startswith("v_cmp") and c.cls == "valu" and vw & (c.r | c.w):
            n = max(n, 1)
        if c.cls == "mfma" and vw & c.r:
            n = max(n, 2)
        if c.cls in ("salu",) and sw & c.r:
            n = max(n, 1)
    if p.cls == "mfma":
        k = {2: 0, 4: 1, 8: 2, 16: 3}[p.passes]
        if c.cls == "mfma":
            if set(c.srcC) & vw:
                if c.srcC == p.dst and c.passes == p.passes:
                    n = max(n, [2, 0, 0, 0][k])
                else:
                    n = max(n, [4, 6, 10, 18][k])
            if (set(c.srcA) | set(c.srcB)) & vw:
                n = max(n, [5, 8, 12, 20][k])
            if set(c.dst) & vw and not (c.srcC == p.dst and c.passes == p.passes):
                n = max(n, [4, 6, 10, 18][k])
        elif c.cls in ("valu", "ds", "vmem"):
            if vw & (c.r | c.w):
                n = max(n, [5, 8, 12, 20][k])
            if c.cls == "valu" and set(p.srcC) & c.w:
                n = max(n, [1, 3, 7, 15][k])
    if p.cls == "salu" and ("s", 124) in sw and c.cls == "vmem" and c.lds:
        n = max(n, 1)
    if p.cls == "vmem" and getattr(p, "store_data", None) and p.store_data & c.w:
        n = max(n, 2)
    return n


class Prog:
    def __init__(self):
        self.ins = []

    def __call__(self, text):
        for line in text.split("\n"):
            if line.strip():
                self.ins.append(Ins(line))

    def preds(self):
        lab = {i.label: k for k, i in enumerate(self.ins) if i.label}
        pr = [[] for _ in self.ins]
        for k, i in enumerate(self.ins):
            if i.cls == "call":
                pr[lab[i.target]].append(k)
                continue
            if i.cls == "ret":
                for j, c in enumerate(self.ins):
                    if c.cls == "call" and c.target == i.target:
                        pr[j + 1].append(k)
                continue
            if i.cls == "branch":
                pr[lab[i.target]].append(k)
                if i.mn == "s_branch":
                    continue
            if i.cls == "end":
                continue
            if k + 1 < len(self.ins):
                pr[k + 1].append(k)
        return pr

    def shortfall(self, k, pr):
        c = self.ins[k]
        if c.cls in ("label", "dir"):
            return 0, None
        worst, who = 0, None
        stack = [(p, 0) for p in pr[k]]
        seen = {}
        while stack:
            j, dist = stack.pop()
            if dist >= 21 or seen.get(j, 99) <= dist:
                continue
            seen[j] = dist
            p = self.ins[j]
            if p.cls not in ("label", "dir"):
                n = need(p, c)
                if n - dist > worst:
                    worst, who = n - dist, p
            for q in pr[j]:
                stack.append((q, dist + p.states))
        return worst, who

    def fix_hazards(self, verbose=False):
        total = 0
        k = 0
        pr = self.preds()
        while k < len(self.ins):
            s, who = self.shortfall(k, pr)
            if s > 0:
                if verbose:
                    print(f"; hazard: +{s} before [{self.ins[k].text}] after [{who.text}]")
                while s > 0:
                    n = min(s, 16)
                    self.ins.insert(k, Ins(f"s_nop {n-1}"))
                    k += 1
                    s -= n
                    total += 1
                pr = self.preds()
                k = max(0, k - 1)
            k += 1
        pr = self.preds()
        for k in range(len(self.ins)):
            s, who = self.shortfall(k, pr)
            assert s == 0, (self.ins[k].text, who.text)
        return total

    def text(self):
        out = []
        for i in self.ins:
            out.append(i.text if i.cls in ("label", "dir") else "    " + i.text)
        return "\n".join(out) + "\n"


def check_waits(prog, force=(), cut=None):
    ins = prog.ins
    lab = {i.label: k for k, i in enumerate(ins) if i.label}
    succ = [[] for _ in ins]
    for k, i in enumerate(ins):
        if i.cls == "branch":
            f = [t for pre, t in force if i.target.startswith(pre)]
            if not f or f[0]:
                succ[k].append(lab[i.target])
            if i.mn == "s_branch" or (f and f[0]):
                continue
        if i.cls == "end":
            continue
        if k + 1 < len(ins):
            succ[k].append(k + 1)
    state = {(0, None): {}}
    work = [(0, None)]
    errs = {}
    while work:
        k, ret = work.pop()
        st = dict(state[(k, ret)])
        i = ins[k]
        if i.cls not in ("label", "dir"):
            touched = (i.r | i.w)
            for r in touched:
                if r in st:
                    same_queue = r in i.w and r not in i.r and ((i.cls == "ds" and st[r][0] == "lgkm") or (i.cls == "vmem" and st[r][0] == "vm"))
                    if not same_queue:
                        errs[k] = (i.text, r)
            if i.mn == "s_waitcnt":
                txt = i.text.split(";")[0]
                for name, cnt in (("vmcnt", "vm"), ("lgkmcnt", "lgkm")):
                    m = re.search(name + r"\((\d+)\)", txt)
                    if m:
                        n = int(m.group(1))
                        st = {r: a for r, a in st.items() if not ((a[0] == cnt and a[1] >= n) or (cnt == "lgkm" and a[0] == "smem" and n == 0))}
            cnt = None
            if i.cls == "ds":
                cnt = "lgkm"
            elif i.cls == "vmem":
                cnt = "vm"
            elif i.mn.startswith(("s_load", "s_memtime", "s_memrealtime")):
                cnt = "smem"
            if cnt == "smem":
                st = {r: (("smem", 0) if a[0] == "lgkm" else a) for r, a in st.items()}
                for r in i.w:
                    st[r] = ("smem", 0)
            elif cnt:
                st = {r: ((a[0], min(a[1] + 1, 70)) if a[0] == cnt else a) for r, a in st.items()}
                for r in i.w:
                    st[r] = (cnt, 0)
        nxt = [(n, ret) for n in succ[k]]
        if cut and i.cls == "branch" and i.target.startswith(cut):
            nxt = []
        if i.cls == "call":
            nxt = [(lab[i.target], k + 1)]
        elif i.cls == "ret":
            nxt = [(ret, None)]
        for n in nxt:
            if n not in state:
                state[n] = st
                work.append(n)
            else:
                old = state[n]
                new = dict(old)
                ch = False
                for r, a in st.items():
                    if r not in new or new[r][0] != a[0] and a[0] == "smem" or (new[r][0] == a[0] and a[1] < new[r][1]):
                        new[r] = a
                        ch = True
                if ch:
                    state[n] = new
                    work.append(n)
    return [errs[k] for k in sorted(errs)]
```

```python
import sys
from asmlib import Prog, check_waits

opt = dict(g2=1, ym=1, swap=0, bias=1, y2=1, yp=0, vx=0, m1=1, map=0, place=900010000, D=4, nt="nt", ntm="nt", nto="sc0 sc1", verbose=0, prio=1, sched="h")
for a in sys.argv[1:]:
    k, v = a.split("=", 1)
    opt[k] = int(v) if v.lstrip("-").isdigit() else v.replace("+", " ")
D = opt["D"]
NT, NTM, NTO = opt["nt"], opt["ntm"], opt["nto"]
STAMP = opt.get("stamp", 0)
assert not (STAMP == 4 and opt["swap"])

NAME = "standalone__sequential_behavior_din__recsys_kernel"
NWG, WPB = 256, 8
NWAVE = NWG * WPB
KB = 16384 // NWAVE
REG = opt.get('reg', 20480)
SLOT = 2080
TB = D * SLOT
BI = TB + 1024
BSTR = 272
XCH = BI + 8 * BSTR
PRG = XCH + 3072
KEY = PRG + 256
TKT = PRG + 272
LI = REG - 2048
L0 = LI + 16
assert PRG + 288 <= LI - 2048 and LI + 2048 <= REG and LI % 2048 == 0 and REG % 2048 == 0
STG = (D - 2) * SLOT
CNEG = 0xBFB8AA3B
PSTR, WGSTR = (16, 64) if opt["map"] & 1 else (4096, 16)
LGP = PSTR.bit_length() - 1
DLT0, DLT1 = 25600, (PSTR - 1) * 25600
MDL0, MDL1 = 400, (PSTR - 1) * 400

CA, CD, W, ZA, ZB, BIAS, XB, XT, W2, B2, S, ACC, DG, TR, ONE, VA, VB = \
    4, 68, 100, 132, 148, 164, 180, 188, 196, 204, 208, 212, 216, 224, 228, 230, 232
RDB0, RDB1, RDT, RDL, TADR, BADR, OADR, SEL0, SEL1, VOUT, RDM = range(234, 245)
TX = 246
PRV, PADR, PINC = 1, 2, 3
MSK = W
SH, SM, SH2 = 20, 24, 40
EX50, sB2, sDL, sMDL, sSGN, sDL1 = 28, 30, 31, 32, 33, 51
sLB, sW, sw = 52, 53, 54
F = 56
H = 36
sKA, sKW = 60, 61
sBASE, sK, sT0, sT1, sT2, sT3 = 64, 65, 66, 67, 55, 95
A0 = 68
NB, P0, P1, P2 = 84, 86, 88, 90
sC, sOFF, sEARLY, sRO = 92, 93, 94, 35
sB3, sM3, sE3, sDLB, sKF, sU, sDG = 44, 45, 46, 47, 48, 49, 50
RET = 62


def v(a, n=1):
    return f"v{a}" if n == 1 else f"v[{a}:{a+n-1}]"


def s(a, n=1):
    return f"s{a}" if n == 1 else f"s[{a}:{a+n-1}]"


p = Prog()
nstamp = [0]


def stamp(cyc=None):
    if STAMP == 4:
        return
    if not STAMP or (STAMP == 3 and cyc is None):
        return
    p("s_memrealtime s[96:97]")
    p("s_waitcnt lgkmcnt(0)")
    p(f"v_writelane_b32 v254, s96, {nstamp[0]}")
    nstamp[0] += 1
    if cyc is not None:
        p("s_memtime s[96:97]")
        p("s_waitcnt lgkmcnt(0)")
        p(f"v_writelane_b32 v254, s96, {cyc}")


ncyc = [0]


def cst(name):
    if STAMP == 4 and (not opt.get("arr") or name in ("entry", "kernarg") or name.startswith("arr")):
        sys.stderr.write(f"cst{ncyc[0]} = {name}\n")
        p(f"s_memtime {s((38,80,82,96,98,44,46,48,50,16)[ncyc[0]],2)}")
        ncyc[0] += 1


def srd(dst, ptr, nrec, stride=0):
    p(f"s_mov_b32 {s(dst)}, {s(ptr)}")
    p(f"s_and_b32 {s(dst+1)}, {s(ptr+1)}, 0xffff")
    if stride:
        p(f"s_or_b32 {s(dst+1)}, {s(dst+1)}, {stride << 16:#x}")
    p(f"s_mov_b32 {s(dst+2)}, {nrec}")
    p(f"s_mov_b32 {s(dst+3)}, 0x20000")


def m0_half(slot, j):
    return f"s_add_u32 m0, {s(sLB)}, {slot*SLOT+j*1056}"


def dma_half(j):
    if opt["m1"] and j:
        return f"buffer_load_dwordx4 {v(VB,2)}, {s(SH2,4)}, {s(sRO)} idxen offen offset:1056 {NT} lds"
    return f"buffer_load_dwordx4 {v((VA, VB)[j],2)}, {s(SH,4)}, {s(sRO)} idxen offen {NT} lds"


def adv_hist():
    p(f"s_add_u32 {s(sRO)}, {s(sRO)}, {s(sDL)}")
    p(f"s_min_u32 {s(sRO)}, {s(sRO)}, {16383*25600}")
    if opt["swap"]:
        p(f"s_sub_u32 {s(sKA)}, {s(sKA)}, 1")
        p(f"s_bitcmp1_b32 {s(sKA)}, 0")
        p(f"s_cselect_b32 {s(sDL)}, {DLT0}, {s(sDL1)}")
    else:
        p(f"s_xor_b32 {s(sDL)}, {s(sDL)}, {DLT0 ^ DLT1:#x}")


R, CV, HI = ZA, ZA + 9, ZA + 13
AP, AT, QV, QH, NBA = W + 16, W + 22, W + 26, W + 30, W + 31
QR, QT, QE = (ZA, ZA + 8, BIAS), (BIAS + 8, BIAS + 12, XB), (XB + 4, XB + 5, XB + 6)
NT0, NT1 = ZB + 12, ZB + 13
CNT = 0xBFE0BFE0


def fbit(reg, k):
    p(f"s_lshr_b32 {s(sT3)}, {s(reg)}, 4")
    if 13 * (k + 1) + 1 < 64:
        p(f"s_bitset1_b64 {s(F,2)}, {s(sT3)}")
    else:
        p(f"s_lshl_b64 {s(P0,2)}, 1, {s(sT3)}")
        p(f"s_bitcmp1_b32 {s(reg)}, 10")
        p(f"s_cselect_b64 {s(P1,2)}, 0, {s(P0,2)}")
        p(f"s_cselect_b64 {s(P2,2)}, {s(P0,2)}, 0")
        p(f"s_or_b64 {s(F,2)}, {s(F,2)}, {s(P1,2)}")
        p(f"s_or_b64 {s(F+2,2)}, {s(F+2,2)}, {s(P2,2)}")


def compact_body(j):
    m = [MSK + 4 * j + x for x in range(4)]
    p(f"s_mov_b64 exec, {s(EX50,2)}")
    for e in range(8):
        p(f"v_cmp_neq_f16_sdwa {s(A0+2*e,2)}, {v(m[e>>1])}, 0 src0_sel:WORD_{e&1} src1_sel:WORD_0")
    p("s_mov_b64 exec, -1")
    p(f"v_mov_b32 {v(R)}, {s(sBASE)}")
    for e in range(8):
        p(f"v_mbcnt_lo_u32_b32 {v(R)}, {s(A0+2*e)}, {v(R)}")
        p(f"v_mbcnt_hi_u32_b32 {v(R)}, {s(A0+2*e+1)}, {v(R)}")
    p(f"s_add_u32 {s(sT2)}, {s(sBASE)}, 16")
    p(f"v_readlane_b32 {s(sT0)}, {v(R)}, 25")
    p(f"v_readlane_b32 {s(sT1)}, {v(R)}, 63")
    p(f"s_add_u32 {s(sBASE)}, {s(sT0)}, 15")
    p(f"s_and_b32 {s(sBASE)}, {s(sBASE)}, -16")
    p(f"s_max_u32 {s(sBASE)}, {s(sBASE)}, {s(sT2)}")
    p(f"s_sub_u32 {s(sT0)}, {s(sBASE)}, {s(sT0)}")
    p(f"v_mad_u32_u24 {v(R)}, {v(HI)}, {s(sT0)}, {v(R)}")
    p(f"s_mov_b32 {s(sT2)}, {s(sBASE)}")
    for e in range(7):
        p(f"v_addc_co_u32 {v(R+e+1)}, vcc, 0, {v(R+e)}, {s(A0+2*e,2)}")
    p(f"s_add_u32 {s(sT1)}, {s(sT1)}, {s(sT0)}")
    p(f"s_add_u32 {s(sT1)}, {s(sT1)}, 15")
    p(f"s_and_b32 {s(sT1)}, {s(sT1)}, -16")
    p(f"s_add_u32 {s(sBASE)}, {s(sBASE)}, 16")
    p(f"s_max_u32 {s(sBASE)}, {s(sBASE)}, {s(sT1)}")
    for e in range(8):
        p(f"s_mov_b64 exec, {s(A0+2*e,2)}")
        p(f"ds_write_b8{'_d16_hi' if e&1 else ''} {v(R+e)}, {v(CV+(e>>1))}")
    p("s_mov_b64 exec, -1")
    pair_bits(j, sT2)


def q_total(i, j):
    p(f"v_mfma_i32_16x16x64_i8 {v(QT[i],4)}, {v(AT,4)}, {v(MSK+4*j,4)}, 0")


def q_test(j):
    out = []
    if opt.get("xt"):
        return out
    for x in range(4):
        t = (NT0, NT1)[x & 1]
        out += [f"v_and_b32 {v(t)}, 0x800080, {v(MSK+4*j+x)}", f"v_mul_u32_u24 {v(t)}, 0x7f, {v(t)}",
                f"v_bitop3_b32 {v(NBA)}, {v(MSK+4*j+x)}, {v(t)}, {v(NBA)} bitop3:0xbe"]
    return out


def q_scan(i, step):
    dpp = "row_mask:0xf bank_mask:0xf bound_ctrl:0"
    if step == 0:
        return f"v_mov_b32_dpp {v(QE[i])}, {v(QT[i])} row_shr:1 {dpp}"
    return f"v_add_u32_dpp {v(QE[i])}, {v(QE[i])}, {v(QE[i])} row_shr:{1 << (step-1)} {dpp}"


def q_lanes(i):
    p(f"v_readlane_b32 {s(A0+4*i)}, {v(QE[i])}, 6")
    p(f"v_readlane_b32 {s(A0+4*i+1)}, {v(QT[i]+1)}, 6")
    p(f"v_readlane_b32 {s(A0+4*i+2)}, {v(QE[i])}, 15")


def q_ranks(i, j):
    a = A0 + 4 * i
    p(f"s_add_u32 {s(sT0)}, {s(a)}, {s(a+1)}")
    p(f"s_add_u32 {s(sT0)}, {s(sT0)}, {s(sBASE)}")
    p(f"s_add_u32 {s(sT1)}, {s(sT0)}, 15")
    p(f"s_and_b32 {s(sT1)}, {s(sT1)}, -16")
    p(f"s_add_u32 {s(sT2)}, {s(sBASE)}, 16")
    p(f"s_max_u32 {s(sT1)}, {s(sT1)}, {s(sT2)}")
    p(f"s_sub_u32 {s(sT0)}, {s(sT1)}, {s(sT0)}")
    p(f"v_mad_u32_u24 {v(QE[i])}, {v(QH)}, {s(sT0)}, {v(QE[i])}")
    p(f"s_sub_u32 {s(sT2)}, {s(sBASE)}, 2048")
    for r in range(4):
        p(f"v_add_u32 {v(QT[i]+r)}, {s(sT2)}, {v(QE[i])}")
    p(f"s_add_u32 {s(sBASE)}, {s(sBASE)}, {s(a+2)}")
    p(f"s_add_u32 {s(sBASE)}, {s(sBASE)}, {s(sT0)}")
    p(f"v_mfma_i32_16x16x64_i8 {v(QR[i],4)}, {v(AP+2,4)}, {v(MSK+4*j,4)}, {v(QT[i],4)}")
    p(f"v_mfma_i32_16x16x64_i8 {v(QR[i]+4,4)}, {v(AP,4)}, {v(MSK+4*j,4)}, {v(QT[i],4)}")
    p(f"s_add_u32 {s(sBASE)}, {s(sBASE)}, 15")
    p(f"s_and_b32 {s(sBASE)}, {s(sBASE)}, -16")
    p(f"s_add_u32 {s(sT2)}, {s(sT1)}, 16")
    p(f"s_max_u32 {s(sBASE)}, {s(sBASE)}, {s(sT2)}")
    pair_bits(j, sT1)


def pair_bits(j, mid):
    if opt["swap"] and j == 3:
        p(f"s_mov_b32 {s(sM3)}, {s(mid)}")
        p(f"s_mov_b32 {s(sE3)}, {s(sBASE)}")
        return
    fbit(mid, 2 * j)
    fbit(sBASE, 2 * j + 1)
    if opt["swap"] and j == 2:
        p(f"s_mov_b32 {s(sB3)}, {s(sBASE)}")


def q_write(i):
    if opt.get("xw"):
        return
    if opt["vx"]:
        p(f"s_mov_b64 exec, {s(EX50,2)}")
    for e in range(8):
        p(f"ds_write_b8{'_d16_hi' if e&1 else ''} {v(QR[i]+e)}, {v(QV+(e>>1))}")
    if opt["vx"]:
        p("s_mov_b64 exec, -1")


W44 = 1
DIAGMM = "v_mfma_f32_4x4x4_16b_bf16" if W44 else "v_mfma_f32_16x16x16_bf16"


def wbuild():
    for x in range(4):
        p(f"v_mul_u32_u24 {v(DG+2*x)}, {v(TR+x)}, {v(SEL0)}")
        p(f"v_mul_u32_u24 {v(DG+2*x+1)}, {v(TR+x)}, {v(SEL1)}")
    T = [ZA, ZA + 8, TX]
    pairs = [(hb, ks) for hb in range(4) for ks in range(2)]

    def mm(j, u):
        hb, ks = pairs[j]
        blk = (hb * 2 + ks) * 2 + u
        p(f"{DIAGMM} {v(T[j%3]+4*u,4)}, {v(DG+2*(2*ks+u),2)}, {v(CD+2*blk,2)}, {v(CA+4*blk,4)}")

    def cv(j, r):
        hb, ks = pairs[j]
        p(f"v_cvt_pk_bf16_f32 {v(W+(hb*2+ks)*4+r)}, {v(T[j%3]+2*r)}, {v(T[j%3]+2*r+1)}")
    p(f"v_add_u32 {v(TADR)}, 128, {v(TADR)}")
    p(f"ds_read_b128 {v(BIAS,4)}, {v(BADR)}")
    mm(0, 0)
    p(f"ds_read_b128 {v(BIAS+4,4)}, {v(BADR)} offset:64")
    p(f"ds_read_b128 {v(BIAS+8,4)}, {v(BADR)} offset:128")
    mm(0, 1)
    p(f"ds_read_b128 {v(BIAS+12,4)}, {v(BADR)} offset:192")
    p(f"ds_read_u16 {v(TR)}, {v(TADR)}")
    mm(1, 0)
    p(f"ds_read_u16 {v(TR+1)}, {v(TADR)} offset:8")
    p(f"ds_read_u16 {v(TR+2)}, {v(TADR)} offset:64")
    mm(1, 1)
    p(f"ds_read_u16 {v(TR+3)}, {v(TADR)} offset:72")
    p(f"v_add_u32 {v(BADR)}, {BSTR}, {v(BADR)}")
    mm(2, 0)
    cv(0, 0); cv(0, 1)
    mm(2, 1)
    cv(0, 2); cv(0, 3)
    for j in range(1, 8):
        if j + 2 < 8:
            mm(j + 2, 0)
        cv(j, 0); cv(j, 1)
        if j + 2 < 8:
            mm(j + 2, 1)
        cv(j, 2); cv(j, 3)
    p("s_waitcnt lgkmcnt(0)")


def t_reads():
    for x in range(4):
        p(f"ds_read_u16 {v(TR+x)}, {v(TADR)} offset:{(x>>1)*64+(x&1)*8}")


def g1(j):
    hb, ks = j >> 1, j & 1
    c = v(BIAS + 4 * hb, 4) if ks == 0 else v(ZB + 4 * hb, 4)
    return f"v_mfma_f32_16x16x32_bf16 {v(ZB+4*hb,4)}, {v(W+(hb*2+ks)*4,4)}, {v(XB+4*ks,4)}, {c}"


def read_xb(slot, ks):
    p(f"ds_read_b128 {v(XB+4*ks,4)}, {v((RDB0, RDB1)[ks])} offset:{slot*SLOT}")


SCHED = {
    "e": "ia ib k1 ent EV mid P0 e0 e1 e2 e3 e4 e5 A0 s0 s1 L2 G0 e6 q0 t0 e7 G2 e8 q1 t1 A1 r0 q2 t2 e9 G1 r1 q3 t3 e10 G3 "
         "r2 e11 r3 c0 A2 e12 G4 r4 c1 E2 e13 r5 e14 r6 c2 e15 G6 L0 m0 r7 da A3 G5 m1 r8 db G7 P1 r9 c3 vm y0 y1 r10 c4 k0 r11 B r12 c5 "
         "r13 r14 r15 c6 c7",
    "f": "ia ib k1 ent EV mid P0 e0 e1 e2 e3 e4 e5 A0 s0 s1 L2 G0 e6 q0 t0 e7 G2 e8 q1 t1 A1 r0 q2 t2 e9 G1 r1 q3 t3 e10 G3 "
         "r2 e11 r3 c0 A2 e12 G4 r4 c1 E2 m0 L0 da e13 r5 e14 r6 c2 e15 G6 P1 r7 A3 G5 m1 r8 G7 r9 c3 db vm y0 y1 r10 c4 k0 r11 B r12 c5 "
         "r13 r14 r15 c6 c7",
    "g": "ia ib k1 ent EV mid P0 e0 e1 e2 e3 e4 e5 A0 s0 s1 L2 G0 e6 q0 t0 e7 G2 e8 q1 t1 A1 r0 q2 t2 e9 G1 r1 q3 t3 e10 G3 "
         "r2 e11 r3 c0 A2 e12 G4 r4 c1 E2 e13 r5 e14 m0 L0 da r6 c2 e15 G6 P1 r7 A3 G5 m1 r8 G7 r9 c3 db vm y0 y1 r10 c4 k0 r11 B r12 c5 "
         "r13 r14 r15 c6 c7",
    "h": "ia ib k1 ent EV mid P0 e0 e1 e2 e3 e4 e5 A0 s0 s1 L2 G0 e6 q0 t0 e7 G2 e8 q1 t1 A1 r0 q2 t2 e9 G1 r1 q3 t3 e10 G3 "
         "r2 e11 r3 c0 A2 e12 G4 r4 c1 E2 m0 L0 da m1 e13 db r5 e14 r6 c2 e15 G6 P1 r7 A3 G5 r8 G7 r9 c3 vm y0 y1 r10 c4 k0 r11 B r12 c5 "
         "r13 r14 r15 c6 c7",
}


def event_mask():
    p(f"s_lshr_b64 {s(P0,2)}, {s(F,2)}, 2")
    p(f"s_lshr_b64 {s(H,2)}, {s(F,2)}, {D+1}")
    p(f"s_or_b32 {s(H)}, {s(H)}, {s(P0)}")
    p(f"s_or_b32 {s(H)}, {s(H)}, {s(F)}")


def mainloop(tag, slow):
    toks = SCHED[opt["sched"]].split()

    def scale(off):
        p(f"ds_read_b32 {v(TX)}, {v(RDM)} offset:{off}")
        p("s_waitcnt lgkmcnt(0)")
        for r in range(4):
            p(f"v_bfe_u32 {v(TX+1+r)}, {v(TX)}, {8*r}, 8")
            p(f"v_lshlrev_b32 {v(TX+1+r)}, 1, {v(TX+1+r)}")
        for r in range(4):
            p(f"buffer_load_ushort {v(TX+1+r)}, {v(TX+1+r)}, {s(SM,4)}, 0 offen")
        p("s_waitcnt vmcnt(0)")
        for r in range(4):
            p(f"v_lshlrev_b32 {v(TX+1+r)}, 16, {v(TX+1+r)}")
            p(f"v_mul_f32 {v(S+r)}, {v(S+r)}, {v(TX+1+r)}")

    def flush(last=False):
        p(f"v_cvt_pk_bf16_f32 {v(TX)}, {v(ACC)}, {v(ACC)}")
        if not last:
            p(f"v_mov_b32 {v(ACC)}, 0")
        if STAMP == 1:
            p("s_memrealtime s[96:97]")
            p("s_memtime s[98:99]")
            p(f"s_lshl_b32 {s(sT0)}, {s(sK)}, 1")
            p(f"s_sub_u32 {s(sT0)}, {16+2*(KB-1)}, {s(sT0)}")
            p("s_waitcnt lgkmcnt(0)")
            p(f"s_mov_b32 m0, {s(sT0)}")
            p("v_writelane_b32 v254, s96, m0")
            p(f"s_add_u32 m0, m0, 1")
            p("v_writelane_b32 v254, s98, m0")
            p(f"s_sub_u32 {s(sK)}, {s(sK)}, 1")
        p(f"ds_write_b16 {v(OADR)}, {v(TX)}")
        if last:
            return
        if opt["swap"]:
            p(f"s_sub_u32 {s(sKF)}, {s(sKF)}, 1")
            p(f"s_cselect_b32 {s(sT0)}, {s(sDLB)}, 0")
            p(f"s_cselect_b32 {s(sKF)}, 64, {s(sKF)}")
            p(f"s_add_u32 {s(sT0)}, {s(sT0)}, 128")
            p(f"v_add_u32 {v(OADR)}, {s(sT0)}, {v(OADR)}")
        else:
            p(f"v_add_u32 {v(OADR)}, 128, {v(OADR)}")
        if slow:
            p(f"s_add_u32 {s(SM)}, {s(SM)}, {s(sMDL)}")
            p(f"s_addc_u32 {s(SM+1)}, {s(SM+1)}, 0")
            p(f"s_xor_b32 {s(sMDL)}, {s(sMDL)}, {MDL0 ^ MDL1:#x}")

    def emit(u, toks, tail):
        ev = opt["prio"] and u in ((0, D // 2) if opt["prio"] == 2 else (0,))
        for t in toks:
            k, n = t[0], (int(t[1:]) if t[1:].isdigit() else None)
            if opt.get("nodma") and t in ("da", "db"):
                continue
            if opt.get("nocomp") and k in "ercsAGqk" and n is not None:
                continue
            if t == "vm":
                p(f"s_waitcnt vmcnt({2*(D-2)})")
            elif k == "y":
                read_xb((u + 2) % D, n)
            elif t == "ent":
                if u == 0:
                    p(f"L{tag}_mid:")
            elif t in ("mid", "mi2"):
                if slow:
                    scale(u * 16 + (16 if t == "mi2" else 0))
            elif t == "ia" and opt.get("xv") and not tail:
                for j in range(opt["xv"]):
                    p(f"v_exp_f32 v255, {v(ZB+j)}")
                p(f"ds_read_u8 {v(VA)}, {v(RDL)} offset:{(u+D)*16}")
            elif t == "ia":
                p(f"ds_read_u8 {v(VA)}, {v(RDL)} offset:{(u+D)*16}")
            elif t == "ib":
                p(f"ds_read_u8 {v(VB)}, {v(RDL)} offset:{(u+D)*16+8}")
            elif t == "EV":
                p(f"s_bitcmp1_b32 {s(H)}, {u}")
                p(f"s_cbranch_scc1 L{tag}_ev{u}")
                p(f"L{tag}_evd{u}:")
            elif t == "E2":
                if tail:
                    p(f"s_bitcmp0_b64 {s(F,2)}, 1")
                    p(f"s_cbranch_scc1 L{tag}_tnf")
                    flush()
                    p(f"L{tag}_tnf:")
            elif t == "P0":
                if ev:
                    p(f"ds_add_rtn_u32 {v(PRV)}, {v(PADR)}, {v(PINC)}")
            elif t == "P1":
                if ev:
                    p(f"v_readfirstlane_b32 {s(sT0)}, {v(PRV)}")
                    p("s_setprio 0")
                    p(f"s_cmp_gt_i32 {s(sT0)}, 0")
                    p(f"s_cbranch_scc0 L{tag}_lo{u}")
                    p("s_setprio 1")
                    p(f"L{tag}_lo{u}:")
            elif t == "da":
                p(dma_half(0))
            elif t == "db":
                p(dma_half(1))
            elif t == "B":
                if u == D - 1:
                    p(f"s_lshr_b64 {s(F,2)}, {s(F,2)}, {D}")
                    p(f"s_lshl_b64 {s(P0,2)}, {s(F+2,2)}, {64-D}")
                    p(f"s_or_b64 {s(F,2)}, {s(F,2)}, {s(P0,2)}")
                    p(f"s_lshr_b64 {s(F+2,2)}, {s(F+2,2)}, {D}")
                    event_mask()
                    p(f"v_add_u32 {v(RDL)}, {16*D}, {v(RDL)}")
                    if slow:
                        p(f"v_add_u32 {v(RDM)}, {16*D}, {v(RDM)}")
            elif k == "m":
                if not (opt["m1"] and n):
                    p(m0_half(u, n))
            elif k == "e":
                p(f"v_exp_f32 {v(ZA+n)}, {v(ZB+n)}")
            elif k == "r":
                p(f"v_rcp_f32 {v(ZA+n)}, {v(ZA+n)}")
            elif k == "c":
                p(f"v_cvt_pk_bf16_f32 {v(ZA+n)}, {v(ZA+2*n)}, {v(ZA+2*n+1)}")
            elif k == "s":
                p(f"v_cvt_pk_bf16_f32 {v(S+n)}, {v(S+2*n)}, {v(S+2*n+1)}")
            elif k == "A":
                p(f"v_mfma_f32_4x4x4_16b_bf16 {v(ZA+4*n,4)}, {v(ONE,2)}, {v(ONE,2)}, {v(ZA+4*n,4)}")
            elif k == "G":
                p(g1(n))
            elif k == "q":
                p(f"v_mfma_f32_4x4x4_16b_bf16 {v(ACC,4)}, {v(S,2)}, {v(XT+2*n,2)}, {v(ACC,4)} cbsz:4 abid:{4*n}")
            elif k == "t":
                p(f"ds_read_b64_tr_b16 {v(XT+2*n,2)}, {v(RDT)} offset:{u*SLOT+n*512+(n>>1)*32}")
            elif k == "k":
                p(f"v_mfma_f32_16x16x32_bf16 {v(S,4)}, {v(ZA+4*n,4)}, {v(W2+4*n,4)}, {v(B2,4) if n == 0 else v(S,4)}")
            elif k == "L":
                p(f"s_waitcnt lgkmcnt({n})")
            else:
                raise ValueError(t)

    p(f"L{tag}_loop:")
    for u in range(D):
        emit(u, toks, False)
    p(f"s_branch L{tag}_loop")
    for u in range(D):
        p(f"L{tag}_ev{u}:")
        p(f"s_bitcmp0_b64 {s(F,2)}, {u}")
        p(f"s_cbranch_scc1 L{tag}_nf{u}")
        flush()
        p(f"L{tag}_nf{u}:")
        p(f"s_bitcmp0_b64 {s(F,2)}, {u+D+1}")
        p(f"s_cbranch_scc1 L{tag}_na{u}")
        if opt["swap"]:
            p(f"s_cmp_lg_u32 {s(sKA)}, 2")
            p(f"s_cbranch_scc1 L{tag}_ns{u}")
            p(f"s_mov_b32 {s(sU)}, {u+D+1}")
            p(f"s_call_b64 {s(RET,2)}, L_swap")
            p(f"ds_read_u8 {v(VA)}, {v(RDL)} offset:{(u+D)*16}")
            p(f"ds_read_u8 {v(VB)}, {v(RDL)} offset:{(u+D)*16+8}")
            adv_hist()
            p(f"s_bitcmp0_b64 {s(F,2)}, {u+2}")
            p(f"s_cbranch_scc1 L{tag}_evd{u}")
            p("s_waitcnt lgkmcnt(0)")
            p(f"s_branch L{tag}_e1{u}")
            p(f"L{tag}_ns{u}:")
        adv_hist()
        p(f"L{tag}_na{u}:")
        p(f"s_bitcmp0_b64 {s(F,2)}, {u+2}")
        p(f"s_cbranch_scc1 L{tag}_evd{u}")
        p(f"L{tag}_e1{u}:")
        p(f"s_sub_u32 {s(sKW)}, {s(sKW)}, 1")
        p(f"s_cbranch_scc1 L{tag}_last{u}")
        if opt["swap"]:
            p(f"s_cmp_lg_u32 {s(sKW)}, {s(sM3)}")
            p(f"s_cbranch_scc1 L{tag}_nw{u}")
            p(f"v_add_u32 {v(TADR)}, {s(sDLB)}, {v(TADR)}")
            p(f"v_add_u32 {v(BADR)}, {s(sDLB)}, {v(BADR)}")
            t_reads()
            p("s_waitcnt lgkmcnt(0)")
            p(f"L{tag}_nw{u}:")
        wbuild()
        p(f"s_branch L{tag}_evd{u}")
    for u in range(D):
        p(f"L{tag}_last{u}:")
        if u:
            p(f"v_add_u32 {v(RDT)}, {u*SLOT}, {v(RDT)}")
            p(f"s_lshr_b64 {s(F,2)}, {s(F,2)}, {u}")
            if slow:
                p(f"v_add_u32 {v(RDM)}, {16*u}, {v(RDM)}")
        if u < D - 1:
            p(f"s_branch L{tag}_tail")
    p(f"L{tag}_tail:")
    i1 = toks.index("EV")
    drop = lambda t: t in ("vm", "ia", "ib", "EV", "ent", "P0", "P1", "da", "db", "B", "L2") or (t[0] in "Gym" and t[1:].isdigit())
    emit(0, [t for t in toks[i1:] + toks[:i1] if not drop(t)] + ["mi2", "s0", "s1", "q0", "q1", "q2", "q3"], True)
    flush(last=True)
    if slow:
        p("s_branch L_store")


p(f"{NAME}:")
if opt.get("twice"):
    p("s_mov_b32 s3, 0")
    p("L_again:")
if opt.get("spin"):
    p("s_memrealtime s[80:81]")
cst("entry")
if STAMP:
    if STAMP != 4:
        p("s_memrealtime s[98:99]")
        p("s_memtime s[96:97]")
    p("s_load_dwordx2 s[100:101], s[0:1], 72")
p("s_load_dwordx16 s[4:19], s[0:1], 0")
p(f"s_cmp_ge_u32 s2, {NWG}")
p("s_cbranch_scc1 L_end")
p("v_lshrrev_b32 v1, 6, v0")
p("v_and_b32 v0, 63, v0")
p(f"v_readfirstlane_b32 {s(sw)}, v1")
if opt["map"] & 2:
    p("s_and_b32 s3, s2, 7")
    p("s_lshl_b32 s3, s3, 5")
    p(f"s_lshr_b32 {s(sW)}, s2, 3")
    p(f"s_add_u32 {s(sW)}, {s(sW)}, s3")
    p(f"s_lshl_b32 {s(sW)}, {s(sW)}, {(WGSTR//2).bit_length()-1}")
else:
    p(f"s_lshl_b32 {s(sW)}, s2, {(WGSTR//2).bit_length()-1}")
p("v_lshlrev_b32 v2, 4, v0")
p("v_lshrrev_b32 v1, 4, v0")
p("v_and_b32 v3, 0xf0, v2")
p("v_lshlrev_b32 v3, 2, v3")
p(f"v_lshl_add_u32 {v(QH)}, v1, 4, v3")
p("v_bfrev_b32 v3, 1")
p(f"s_add_u32 {s(sW)}, {s(sW)}, {s(sw)}")
p(f"s_movk_i32 {s(sT0)}, 800")
p(f"v_cmp_gt_u32 vcc, {s(sT0)}, {v(QH)}")
p(f"s_mul_i32 {s(sOFF)}, {s(sW)}, 800")
p(f"s_mul_i32 {s(sLB)}, {s(sw)}, {REG}")
p(f"s_mov_b64 {s(EX50,2)}, vcc")
p(f"v_cndmask_b32 v3, v3, {v(QH)}, vcc")
p(f"v_and_b32 {v(TX+2)}, 16, v0")
p(f"v_lshlrev_b32 {v(TX)}, 1, {v(TX+2)}")
p(f"v_xor_b32 {v(TX)}, {v(TX)}, v2")
p(f"v_and_b32 {v(VOUT)}, 0xf0, v2")
p(f"v_lshl_add_u32 {v(VOUT)}, v1, {LGP+7}, {v(VOUT)}")
p(f"s_lshl_b32 {s(sT0)}, {s(sW)}, 8")
p(f"v_add_u32 {v(VOUT)}, {s(sT0)}, {v(VOUT)}")
p(f"s_lshl_b32 {s(sT1)}, {s(sw)}, 12")
p(f"s_add_u32 m0, {s(sLB)}, {TB}")
p(f"s_mov_b32 {s(SM+2)}, {16384*400}")
p(f"s_mov_b32 {s(SM+3)}, 0x20000")
p("s_waitcnt lgkmcnt(0)")
cst("kernarg")
if STAMP and STAMP != 4:
    p("v_mov_b32 v254, 0")
    p("v_writelane_b32 v254, s98, 0")
    p("v_writelane_b32 v254, s96, 32")
    nstamp[0] = 1
    stamp()
p(f"s_mov_b32 {s(SM)}, s8")
p(f"s_and_b32 {s(SM+1)}, s9, 0xffff")
if opt["ym"]:
    p(f"s_cmp_ge_u32 {s(sw)}, 4")
    p("s_cbranch_scc1 L_young0")
p(f"buffer_load_dwordx4 {v(MSK,4)}, v3, {s(SM,4)}, {s(sOFF)} offen {NTM}")
p("L_young0:")
if opt.get("xs"):
    for j in range(opt["xs"]):
        p("s_nop 15")
p(f"global_load_lds_dwordx4 {v(VOUT)}, s[4:5] {NTM}")
p(f"s_add_u32 m0, {s(sLB)}, {STG}")
p(f"s_add_u32 s10, s10, {s(sT1)}")
p("s_addc_u32 s11, s11, 0")
p(f"v_xor_b32 {v(TX+1)}, 64, {v(TX)}")
if opt.get("nsw"):
    p(f"v_mov_b32 {v(TX)}, v2")
    p(f"v_mov_b32 {v(TX+1)}, v2")
for j in range(4):
    p(f"global_load_lds_dwordx4 {v(TX+(j&1))}, s[10:11] offset:{j*1024}")
p(f"s_load_dword {s(sB2)}, s[16:17], 0")
p(f"s_and_b32 {s(sT1)}, {s(sw)}, 3")
B1R, W2R = CD + 28, DG


def load_b1():
    p(f"s_and_b32 {s(sT0)}, {s(sw)}, 3")
    p(f"s_lshl_b32 {s(sT0)}, {s(sT0)}, 5")
    p(f"v_lshl_add_u32 {v(TX+3)}, v1, 3, {s(sT0)}")
    p(f"global_load_dwordx2 {v(B1R,2)}, {v(TX+3)}, s[12:13]")


if not opt["ym"]:
    load_b1()
p(f"v_and_b32 {v(TX+4)}, 3, v0")
NVM = 11
if opt.get("arr"):
    cst("arr_issued")
    for n_out in (5, 4, 3, 2, 1, 0):
        p(f"s_waitcnt vmcnt({n_out})")
        cst(f"arr{n_out}")
stamp()
srd(SH, 6, 200, stride=128)
if opt["m1"]:
    p(f"s_sub_u32 {s(SH2)}, {s(SH)}, 1056")
    p(f"s_subb_u32 {s(SH2+1)}, {s(SH+1)}, 0")
    p(f"s_mov_b32 {s(SH2+2)}, 200")
    p(f"s_mov_b32 {s(SH2+3)}, 0x20000")


def list_reset():
    p(f"s_mul_i32 {s(sRO)}, {s(sW)}, 51200")
    p(f"s_movk_i32 {s(sDL)}, {DLT0}")
    if opt["swap"]:
        p(f"s_mov_b32 {s(sDL1)}, {DLT1}")
        p(f"s_mov_b32 {s(sKA)}, {KB-1}")
    p(f"s_mov_b64 {s(F,2)}, 0")
    p(f"s_mov_b64 {s(F+2,2)}, 0")
    for j in range(4):
        p(f"v_mov_b32 {v(ZB+j)}, -1")
    p(f"s_add_u32 {s(sT0)}, {s(sLB)}, {LI}")
    p(f"v_add_u32 {v(ZB+4)}, {s(sT0)}, v2")
    p(f"ds_write_b128 {v(ZB+4)}, {v(ZB,4)}")
    p(f"ds_write_b128 {v(ZB+4)}, {v(ZB,4)} offset:1024")
    p(f"s_add_u32 {s(sBASE)}, {s(sLB)}, {L0}")


list_reset()
for j in range(5, 2 * D):
    p(f"v_mov_b32 {v(ZB+j)}, -1")
p(f"v_lshrrev_b32 {v(RDL)}, 3, v0")
p(f"v_add_u32 {v(RDL)}, {s(sBASE)}, {v(RDL)}")
p(f"v_lshl_add_u32 {v(RDM)}, v1, 2, {s(sT0)}")
p(f"v_and_b32 {v(VA+1)}, 0x70, v2")
p(f"v_lshlrev_b32 {v(TX+2)}, 2, {v(TX+2)}")
p(f"v_xor_b32 {v(VA+1)}, {v(VA+1)}, {v(TX+2)}")
p(f"v_mov_b32 {v(VB+1)}, {v(VA+1)}")
lane_mask = lambda f: sum(1 << i for i in range(64) if f(i & 15, i >> 4))


def smask(dst, m):
    p(f"s_mov_b32 {s(dst)}, {m & 0xffffffff:#x}")
    p(f"s_mov_b32 {s(dst+1)}, {m >> 32:#x}")


p(f"s_movk_i32 {s(sT0)}, 400")
p(f"v_cmp_le_u32 vcc, {s(sT0)}, {v(QH)}")
p(f"v_lshrrev_b32 {v(QV)}, 1, {v(QH)}")
p(f"s_movk_i32 {s(sT0)}, -200")
p(f"v_cndmask_b32 {v(QH)}, 0, 1, vcc")
p(f"v_mad_i32_i24 {v(QV)}, {v(QH)}, {s(sT0)}, {v(QV)}")
p(f"v_mul_u32_u24 {v(QV+1)}, 0x10001, {v(QV)}")
p(f"v_add_u32 {v(QV)}, 0x10000, {v(QV+1)}")
p(f"v_add_u32 {v(QV+2)}, 0x50004, {v(QV+1)}")
p(f"v_add_u32 {v(QV+3)}, 0x70006, {v(QV+1)}")
p(f"v_add_u32 {v(QV+1)}, 0x30002, {v(QV+1)}")
p(f"v_mov_b32 {v(NBA)}, {CNT:#x}")
smask(P0, lane_mask(lambda m, g: (m >> 2) >= g))
smask(P1, lane_mask(lambda m, g: (m >> 2) > g))
smask(P2, lane_mask(lambda m, g: (m >> 2) == g))
smask(NB, lane_mask(lambda m, g: (m & 3) == 0 or (m, g) == (1, 0)))
for x in range(2):
    p(f"v_cndmask_b32 {v(AP+x)}, 0, {v(NBA)}, {s(P0,2)}")
    p(f"v_cndmask_b32 {v(AP+4+x)}, 0, {v(NBA)}, {s(P1,2)}")
for x in range(4):
    p(f"v_cndmask_b32 {v(AT+x)}, 0, {v(NBA)}, {s(NB,2)}")
p(f"v_lshlrev_b32 {v(TX)}, 4, {v(TX+4)}")
p(f"v_sub_u32 {v(TX)}, 48, {v(TX)}")
smask(P0, 0x00F0BFE0BFE0BFE0)
p(f"v_lshrrev_b64 {v(AP+2,2)}, {v(TX)}, {s(P0,2)}")
p(f"v_mov_b32 {v(NBA)}, 0")
p(f"s_mov_b64 {s(NB,2)}, 0")
for x in range(2):
    p(f"v_cndmask_b32 {v(AP+2+x)}, {v(AP+4+x)}, {v(AP+2+x)}, {s(P2,2)}")
if STAMP:
    p(f"s_mov_b32 {s(sK)}, {KB-1}")
p(f"s_mov_b32 {s(sKW)}, {KB-1}")
p(f"s_mov_b32 {s(sC)}, {CNEG:#x}")
n_, r_, c_ = TX + 5, TX + 6, TX + 4
p(f"v_and_b32 {v(n_)}, 15, v0")
p(f"v_bfe_u32 {v(r_)}, v0, 2, 2")
X0 = TX + 7
SA, SC_, SB_, TBA, BWA = CA + 60, CA + 61, CA + 62, CA + 63, CD + 30
IDN, N0M = DG + 2, DG + 4
p(f"v_lshlrev_b32 {v(X0)}, 3, {v(c_)}")
p(f"v_lshl_add_u32 {v(X0)}, {v(r_)}, 7, {v(X0)}")
p(f"v_and_b32 {v(TX)}, 24, v0")
p(f"v_lshlrev_b32 {v(TX)}, 2, {v(TX)}")
p(f"v_xor_b32 {v(TX)}, {v(X0)}, {v(TX)}")
p(f"v_lshl_add_u32 {v(TX)}, v1, 10, {v(TX)}")
p(f"s_lshl_b32 {s(sT0)}, {s(sT1)}, 5")
p(f"v_xor_b32 {v(SB_)}, {s(sT0)}, {v(TX)}")
p(f"v_add_u32 {v(SB_)}, {STG+2*REG}, {v(SB_)}")
p(f"s_lshr_b32 {s(sT0)}, {s(sw)}, 1")
p(f"s_lshl_b32 {s(sT0)}, {s(sT0)}, 5")
p(f"v_xor_b32 {v(SA)}, {s(sT0)}, {v(TX)}")
p(f"s_and_b32 {s(sT0)}, {s(sw)}, 1")
p(f"s_mul_i32 {s(sT0)}, {s(sT0)}, {REG}")
p(f"s_add_u32 {s(sT0)}, {s(sT0)}, {STG}")
p(f"v_add_u32 {v(SA)}, {s(sT0)}, {v(SA)}")
p(f"v_add_u32 {v(SC_)}, {4*REG}, {v(SA)}")
p(f"s_and_b32 {s(sT0)}, {s(sw)}, 4")
p(f"v_lshrrev_b32 {v(TX)}, 3, {v(n_)}")
p(f"v_add_u32 {v(TX)}, {s(sT0)}, {v(TX)}")
p(f"v_mul_u32_u24 {v(TX)}, {REG}, {v(TX)}")
p(f"v_lshl_add_u32 {v(TX)}, v1, 4, {v(TX)}")
p(f"v_and_b32 {v(TX+1)}, 7, v0")
p(f"v_lshl_add_u32 {v(TBA)}, {v(TX+1)}, 7, {v(TX)}")


def gRDB():
    p(f"v_and_b32 {v(TX+1)}, 8, v0")
    p(f"v_lshlrev_b32 {v(TX+1)}, 2, {v(TX+1)}")
    p(f"v_lshl_add_u32 {v(TX+1)}, {v(n_)}, 7, {v(TX+1)}")
    p(f"v_add_u32 {v(TX+1)}, {s(sLB)}, {v(TX+1)}")
    p(f"v_and_b32 {v(TX+2)}, 2, v0")
    p(f"v_lshlrev_b32 {v(TX+2)}, 1, {v(TX+2)}")
    p(f"v_xor_b32 {v(TX+2)}, {v(TX+2)}, v1")
    p(f"v_lshl_add_u32 {v(RDB0)}, {v(TX+2)}, 4, {v(TX+1)}")
    p(f"v_xor_b32 {v(TX+2)}, 4, {v(TX+2)}")
    p(f"v_lshl_add_u32 {v(RDB1)}, {v(TX+2)}, 4, {v(TX+1)}")


def gRDT():
    p(f"v_and_b32 {v(TX+1)}, 8, v0")
    p(f"v_lshlrev_b32 {v(TX+1)}, 3, {v(TX+1)}")
    p(f"v_lshl_add_u32 {v(TX+2)}, v1, 5, {v(X0)}")
    p(f"v_xor_b32 {v(TX+2)}, {v(TX+2)}, {v(TX+1)}")
    p(f"v_add_u32 {v(RDT)}, {s(sLB)}, {v(TX+2)}")


def gTAD():
    p(f"s_add_u32 {s(sT0)}, {s(sLB)}, {TB}")
    p(f"v_lshl_add_u32 {v(TADR)}, {v(c_)}, 1, {s(sT0)}")
    p(f"v_lshl_add_u32 {v(TADR)}, {'v1' if W44 else v(r_)}, 4, {v(TADR)}")
    p(f"v_lshl_add_u32 {v(OADR)}, v0, 1, {s(sT0)}")
    p(f"s_add_u32 {s(sT0)}, {s(sLB)}, {BI}")
    p(f"v_lshl_add_u32 {v(BADR)}, v1, 4, {s(sT0)}")


def gBWA():
    p(f"s_and_b32 {s(sT0)}, {s(sw)}, 3")
    p(f"s_lshl_b32 {s(sT0)}, {s(sT0)}, 6")
    p(f"s_add_u32 {s(sT0)}, {s(sT0)}, {BI}")
    p(f"v_and_b32 {v(TX+1)}, 7, v0")
    p(f"v_mul_u32_u24 {v(TX+1)}, {BSTR-128}, {v(TX+1)}")
    p(f"v_add3_u32 {v(BWA)}, {v(TBA)}, {v(TX+1)}, {s(sT0)}")


def gSEL():
    if not W44:
        p(f"v_cmp_eq_u32 vcc, {v(r_)}, v1")
    p(f"v_and_b32 {v(TX+1)}, 1, v0")
    p(f"v_lshlrev_b32 {v(TX+1)}, 4, {v(TX+1)}")
    p(f"v_lshlrev_b32 {v(TX+1)}, {v(TX+1)}, 1")
    if not W44:
        p(f"v_cndmask_b32 {v(TX+1)}, 0, {v(TX+1)}, vcc")
    p(f"v_cmp_gt_u32 vcc, 2, {v(c_)}")
    p(f"v_mov_b32 {v(ONE+1)}, 0")
    p(f"v_mov_b32 {v(ONE)}, 0x3f80")
    p(f"v_cndmask_b32 {v(SEL0)}, 0, {v(TX+1)}, vcc")
    p(f"v_cmp_eq_u32 vcc, 0, {v(n_)}")
    p(f"v_sub_u32 {v(SEL1)}, {v(TX+1)}, {v(SEL0)}")
    p(f"v_mul_u32_u24 {v(IDN)}, 0x3f80, {v(SEL0)}")
    p(f"v_cndmask_b32 {v(N0M)}, 0, -1, vcc")
    p(f"v_mul_u32_u24 {v(IDN+1)}, 0x3f80, {v(SEL1)}")


def gZER():
    for j in range(8):
        p(f"v_mov_b32 {v(XT+j)}, 0")
    for j in range(4):
        p(f"v_mov_b32 {v(S+j)}, 0")
        p(f"v_mov_b32 {v(ACC+j)}, 0")


def gB2():
    p(f"s_lshl_b32 {s(sB2)}, {s(sB2)}, 16")
    for r in range(4):
        p(f"v_and_b32 {v(B2+r)}, {s(sB2)}, {v(N0M)}")


def gPRI():
    if opt["prio"]:
        p(f"s_add_u32 {s(sT0)}, {s(sLB)}, {PRG}")
        p(f"v_lshl_add_u32 {v(DG+5)}, v0, 2, {s(sT0)}")
        p(f"ds_write_b32 {v(DG+5)}, {v(ONE+1)}")
        p(f"s_xor_b32 {s(sT0)}, {s(sw)}, 4")
        p(f"s_mul_i32 {s(sT0)}, {s(sT0)}, {REG}")
        p(f"s_add_u32 {s(sT0)}, {s(sT0)}, {PRG}")
        p(f"v_writelane_b32 {v(DG+5)}, {s(sT0)}, 1")
    if opt["swap"]:
        p(f"v_mov_b32 {v(DG+6)}, {s(sLB)}")
        p(f"ds_write_b32 {v(DG+6)}, {v(ONE+1)} offset:{KEY}")
        p(f"ds_write_b32 {v(DG+6)}, {v(ONE+1)} offset:{TKT}")
        p(f"s_mov_b32 {s(sDLB)}, 0")
        p(f"s_mov_b32 {s(sDG)}, 0")
        p(f"s_mov_b32 {s(sKF)}, {KB-3}")


PLACE = dict(zip((gSEL, gBWA, gPRI, gB2, gRDB, gRDT, gTAD, gZER), (int(x) for x in str(opt["place"])[1:])))


def groups(k):
    for f, w_ in PLACE.items():
        if w_ == k:
            f()


groups(0)
if opt["ym"]:
    load_b1()
    p(f"s_cmp_ge_u32 {s(sw)}, 4")
    p("s_cbranch_scc0 L_old3z")
    p(f"buffer_load_dwordx4 {v(MSK,4)}, v3, {s(SM,4)}, {s(sOFF)} offen {NTM}")
    p("L_old3z:")


def late_loads():
    for j in range(1, 4):
        p(f"s_add_u32 {s(sOFF)}, {s(sOFF)}, {PSTR*400}")
        p(f"buffer_load_dwordx4 {v(MSK+4*j,4)}, v3, {s(SM,4)}, {s(sOFF)} offen {NTM}")
    p(f"v_lshlrev_b32 {v(TX+3)}, 3, v1")
    p(f"v_lshl_add_u32 {v(TX+3)}, {v(TX+4)}, 5, {v(TX+3)}")
    p(f"global_load_dwordx2 {v(W2R,2)}, {v(TX+3)}, s[14:15]")


G2 = opt["g2"]
if not G2:
    late_loads()
LL = 0 if G2 else 4
NE = D - 2
IDX = ZB


def idx_reads():
    for t in range(D):
        p(f"ds_read_u8 {v(IDX+2*t)}, {v(RDL)} offset:{t*16}")
        p(f"ds_read_u8 {v(IDX+2*t+1)}, {v(RDL)} offset:{t*16+8}")


def tiles(t0, t1, bits, tag):
    for t in range(t0, t1):
        if t > 0:
            p(f"s_bitcmp0_b64 {s(bits,2)}, {t+1}")
            p(f"s_cbranch_scc1 L_noadv{tag}{t}")
            adv_hist()
            p(f"L_noadv{tag}{t}:")
        p(m0_half(t, 0))
        p(f"v_mov_b32 {v(VA)}, {v(IDX+2*t)}")
        p(f"v_mov_b32 {v(VB)}, {v(IDX+2*t+1)}")
        p(dma_half(0))
        if not opt["m1"]:
            p(m0_half(t, 1))
            p("s_nop 0")
        p(dma_half(1))


issued = [0]


def early(n):
    if n == 0:
        return
    t0 = issued[0]
    p(f"s_cmp_eq_u32 {s(sEARLY)}, 0")
    p(f"s_cbranch_scc1 L_skip{t0}")
    tiles(t0, t0 + n, F, "e")
    p(f"L_skip{t0}:")
    issued[0] += n


def first_pair():
    q_total(0, 0)
    t = q_test(0)
    for x in t[:8]:
        p(x)
    for step in range(5):
        p(q_scan(0, step))
        for x in t[8 + step:9 + step]:
            p(x)
    p(f"v_cmp_ne_u32 vcc, 0, {v(NBA)}")
    q_lanes(0)
    p(f"s_mov_b32 {s(sEARLY)}, 0")
    p("s_cbranch_vccnz L_late")
    q_ranks(0, 0)
    p(f"s_add_u32 {s(sT0)}, {s(sLB)}, {L0+16*D}")
    p(f"s_cmp_ge_u32 {s(sBASE)}, {s(sT0)}")
    q_write(0)
    p("s_cbranch_scc0 L_late")
    p(f"s_mov_b32 {s(sEARLY)}, 1")
    idx_reads()
    p("s_waitcnt lgkmcnt(0)")
    tiles(0, NE, F, "e")
    p(f"s_setpc_b64 {s(RET,2)} ; ret=L_fp")
    p("L_late:")
    p("s_waitcnt vmcnt(0)")
    p(f"s_setpc_b64 {s(RET,2)} ; ret=L_fp")


stamp()
p(f"s_cmp_ge_u32 {s(sw)}, 4")
p("s_cbranch_scc1 L_young1")
p(f"s_waitcnt vmcnt({6+LL}) lgkmcnt(0)")
p(f"s_call_b64 {s(RET,2)}, L_fp")
p(f"s_waitcnt vmcnt({1+LL+2*NE})")
p("s_branch L_old1")
p("L_young1:")
p(f"s_waitcnt vmcnt({1+LL+opt['ym']})")
p("L_old1:")
cst("preB1")
p(f"s_waitcnt lgkmcnt(0)")
p("s_barrier")
stamp()
cst("B1")
RWA, RWC, RWD, RBB, RBC, TP, DB, DA, DD = CA, CA + 4, CA + 8, CA + 12, CA + 20, CA + 28, CA + 44, CA + 52, CD
for (dst, base) in ((RBB, 0), (RBC, 2)):
    for ks in range(2):
        for u in range(2):
            p(f"ds_read_b64_tr_b16 {v(dst+4*ks+2*u,2)}, {v(SB_)} offset:{(base+ks)*REG+u*512}")
for j in range(2):
    for ks in range(2):
        p(f"ds_read_b128 {v(TP+8*j+4*ks,4)}, {v(TBA)} offset:{TB+j*2*REG+ks*64}")
for u in range(2):
    p(f"ds_read_b64_tr_b16 {v(RWA+2*u,2)}, {v(SA)} offset:{u*512}")
    p(f"ds_read_b64_tr_b16 {v(RWC+2*u,2)}, {v(SC_)} offset:{u*512}")
    p(f"ds_read_b64_tr_b16 {v(RWD+2*u,2)}, {v(SC_)} offset:{2*REG+u*512}")
p(f"s_cmp_ge_u32 {s(sw)}, 4")
p("s_cbranch_scc1 L_young2")
p(f"s_waitcnt vmcnt({LL+2*NE})")
p("s_branch L_old2")
p("L_young2:")
p(f"s_waitcnt vmcnt({LL+opt['ym']})")
p("L_old2:")
if G2:
    late_loads()
for j in range(2):
    p(f"v_lshlrev_b32 {v(DB+2*j)}, 16, {v(B1R+j)}")
    p(f"v_and_b32 {v(DB+2*j+1)}, 0xffff0000, {v(B1R+j)}")
groups(1)
cst("firstpair")
p("s_waitcnt lgkmcnt(0)")
for j in range(8):
    p(f"v_xor_b32 {v(RBC+j)}, 0x80008000, {v(RBC+j)}")
for u in range(2):
    p(f"{DIAGMM} {v(DA+4*u,4)}, {v(IDN,2)}, {v(RWA+2*u,2)}, 0")
    p(f"{DIAGMM} {v(DD+4*u,4)}, {v(IDN,2)}, {v(RWD+2*u,2)}, 0")
for u in range(2):
    p(f"{DIAGMM} {v(DA+4*u,4)}, {v(IDN,2)}, {v(RWC+2*u,2)}, {v(DA+4*u,4)}")
for j in (1, 0):
    first = True
    for (src) in (RBB, RBC):
        for ks in range(2):
            c = v(DB, 4) if first else v(DB + 4 * j, 4)
            p(f"v_mfma_f32_16x16x32_bf16 {v(DB+4*j,4)}, {v(src+4*ks,4)}, {v(TP+8*j+4*ks,4)}, {c}")
            first = False
for j in range(8):
    p(f"v_mul_f32 {v(DA+j)}, {s(sC)}, {v(DA+j)}")
for j in range(8):
    p(f"v_mul_f32 {v(DD+j)}, {s(sC)}, {v(DD+j)}")
p(f"s_add_u32 {s(sT0)}, {s(sLB)}, {XCH}")
p(f"v_add_u32 v3, {s(sT0)}, v2")
for j in range(4):
    p(f"v_cvt_pk_bf16_f32 {v(DD+j)}, {v(DD+2*j)}, {v(DD+2*j+1)}")
for j in range(8):
    p(f"v_mul_f32 {v(DB+j)}, {s(sC)}, {v(DB+j)}")
p(f"ds_write_b128 v3, {v(DA,4)}")
p(f"ds_write_b128 v3, {v(DA+4,4)} offset:1024")
p(f"ds_write_b128 v3, {v(DD,4)} offset:2048")
p(f"ds_write_b128 {v(BWA)}, {v(DB,4)}")
p(f"ds_write_b128 {v(BWA)}, {v(DB+4,4)} offset:{2*REG}")
p(f"v_add_u32 v3, {XCH}, v2")
p(f"v_add_u32 {v(TX)}, {4*REG}, v3")
cst("preB3")
p("s_waitcnt lgkmcnt(0)")
p("s_barrier")
cst("B3")
stamp()
def const_reads(w0, w1):
    if opt.get("xc"):
        return
    for w_ in range(w0, w1):
        a = "v3" if w_ < 4 else v(TX)
        p(f"ds_read_b128 {v(CA+8*w_,4)}, {a} offset:{(w_&3)*REG}")
        p(f"ds_read_b128 {v(CA+8*w_+4,4)}, {a} offset:{(w_&3)*REG+1024}")
        p(f"ds_read_b128 {v(CD+4*w_,4)}, {a} offset:{(w_&3)*REG+2048}")


p(f"s_cmp_ge_u32 {s(sw)}, 4")
p("s_cbranch_scc0 L_old3")
if opt["yp"]:
    p("s_setprio 2")
if opt["ym"]:
    p("s_waitcnt vmcnt(4)")
p(f"s_call_b64 {s(RET,2)}, L_fp")
if opt["y2"]:
    p("s_branch L_yng3")
p("L_old3:")
p(f"s_call_b64 {s(RET,2)}, L_t23")
p("L_yng3:")
const_reads(0, 3)
groups(2)
p(f"s_waitcnt vmcnt({2*NE if opt['y2'] else 2*D})")
cst("tiles23")
for i in range(3):
    q_total(i, i + 1)
t = q_test(1) + q_test(2) + q_test(3)
for x in t[:9]:
    p(x)
for step in range(5):
    for i in range(3):
        p(q_scan(i, step))
const_reads(3, 5)
for x in t[9:]:
    p(x)
p(f"v_cmp_ne_u32 vcc, 0, {v(NBA)}")
for i in range(3):
    q_lanes(i)
p("s_cbranch_vccnz L_general")
q_ranks(0, 1)
q_ranks(1, 2)
q_write(0)
q_ranks(2, 3)
q_write(1)
const_reads(5, 8)
t_reads()
q_write(2)
if opt["y2"]:
    p(f"s_cmp_ge_u32 {s(sw)}, 4")
    p("s_cbranch_scc0 L_old3b")
    p(f"s_call_b64 {s(RET,2)}, L_t23")
    p("L_old3b:")
p("L_listed:")
stamp()
if opt["swap"]:
    p(f"s_sub_u32 {s(sT0)}, {s(sE3)}, {s(sB3)}")
    p(f"s_or_b32 {s(sT0)}, {s(sT0)}, {s(sw)}")
    p(f"s_and_b32 {s(sT1)}, {s(NB)}, 0x40000000")
    p(f"s_or_b32 {s(sT0)}, {s(sT0)}, {s(sT1)}")
    p(f"s_bitset1_b32 {s(sT0)}, 31")
    for x, r in enumerate((sT0, sB3, sM3, sE3)):
        p(f"v_mov_b32 {v(ZA+x)}, {s(r)}")
    p("s_mov_b64 exec, 1")
    p(f"ds_write_b128 {v(DG+6)}, {v(ZA,4)} offset:{KEY}")
    p("s_mov_b64 exec, -1")
if opt["prio"]:
    step = D if opt["prio"] == 2 else 2 * D
    p(f"s_sub_u32 {s(sT0)}, {s(sBASE)}, {s(sLB)}")
    p(f"s_sub_u32 {s(sT0)}, {s(sT0)}, {L0}")
    p(f"s_lshr_b32 {s(sT0)}, {s(sT0)}, 3")
    if opt["bias"]:
        p(f"s_lshr_b32 {s(sT1)}, {s(sw)}, 2")
        p(f"s_mul_i32 {s(sT1)}, {s(sT1)}, {2*opt['bias']}")
        p(f"s_add_u32 {s(sT0)}, {s(sT0)}, {s(sT1)}")
    p(f"s_sub_u32 {s(sT1)}, 0, {s(sT0)}")
    p(f"v_mov_b32 {v(PADR)}, {v(DG+5)}")
    p(f"v_mov_b32 {v(PRV)}, {s(sT0)}")
    p(f"v_mov_b32 {v(PINC)}, {-step}")
    p(f"v_writelane_b32 {v(PRV)}, {s(sT1)}, 1")
    p(f"v_writelane_b32 {v(PINC)}, {step}, 1")
    p(f"ds_add_u32 {v(PADR)}, {v(PRV)}")
p(f"s_cmp_eq_u32 {s(sEARLY)}, 1")
p("s_cbranch_scc1 L_nolate")
idx_reads()
p("s_waitcnt lgkmcnt(0)")
tiles(0, D, F, "l")
p("L_nolate:")
for hb in range(4):
    for j in range(2):
        p(f"v_and_b32_dpp {v(W2+2*hb+j)}, {v(W2R+j)}, {v(N0M)} quad_perm:[{hb},{hb},{hb},{hb}] row_mask:0xf bank_mask:0xf")
if opt.get("xp"):
    for j in range(opt["xp"]):
        p("s_nop 15")
cst("precompactdone")
p(f"s_waitcnt vmcnt({2*(D-1)}) lgkmcnt(0)")
read_xb(0, 0)
read_xb(0, 1)
wbuild()
stamp()
stamp(33)
cst("wbuilt")
if STAMP == 4:
    p("s_waitcnt lgkmcnt(0)")
    p("v_mov_b32 v254, 0")
    for j, r in enumerate((38,80,82,96,98,44,46,48,50,16)):
        p(f"v_writelane_b32 v254, s{r}, {j}")
for j in range(8):
    p(g1(j))
p(f"s_waitcnt vmcnt({2*(D-2)})")
read_xb(1, 0)
read_xb(1, 1)
p(f"ds_read_u8 {v(VA)}, {v(RDL)} offset:{D*16}")
p(f"ds_read_u8 {v(VB)}, {v(RDL)} offset:{D*16+8}")
event_mask()
p(f"s_cmp_lg_u64 {s(NB,2)}, 0")
p("s_cbranch_scc0 Lf_mid")
p(f"s_mul_i32 {s(sT0)}, {s(sW)}, 800")
p(f"s_add_u32 s8, s8, {s(sT0)}")
p("s_addc_u32 s9, s9, 0")
srd(SM, 8, 400)
p(f"s_movk_i32 {s(sMDL)}, {MDL0}")
p("s_branch Ls_mid")
p("L_fp:")
first_pair()
if opt["swap"]:
    A_, B_, KB_, TK_, KA_ = ZA + 8, ZA + 9, ZA + 10, ZA + 11, ZA + 12
    p("L_swap:")
    p(f"v_lshrrev_b32 {v(A_)}, 3, v0")
    p(f"v_and_b32 {v(B_)}, 7, v0")
    p(f"v_mul_u32_u24 {v(A_)}, {REG}, {v(A_)}")
    p(f"v_mul_u32_u24 {v(B_)}, {REG}, {v(B_)}")
    p(f"v_mov_b32 {v(TK_)}, 1")
    p("s_mov_b64 exec, 1")
    p(f"ds_add_rtn_u32 {v(TK_)}, {v(A_)}, {v(TK_)} offset:{TKT}")
    p("s_mov_b64 exec, -1")
    p("L_swap_poll:")
    p(f"ds_read_b128 {v(KA_,4)}, {v(A_)} offset:{KEY}")
    p(f"ds_read_b32 {v(KB_)}, {v(B_)} offset:{KEY}")
    p(f"v_and_b32 {v(TX+2)}, 56, v0")
    p("s_waitcnt lgkmcnt(0)")
    p(f"v_cmp_le_i32 vcc, 0, {v(KB_)}")
    p(f"v_cmp_gt_u32 {s(P0,2)}, {v(KB_)}, {v(KA_)}")
    p(f"v_lshlrev_b32 {v(TX+3)}, 1, {v(KB_)}")
    p(f"v_readfirstlane_b32 {s(sT0)}, {v(TK_)}")
    p("s_cbranch_vccnz L_swap_poll")
    p(f"v_lshrrev_b64 {v(TX,2)}, {v(TX+2)}, {s(P0,2)}")
    p(f"v_cmp_gt_i32 {s(P1,2)}, 0, {v(TX+3)}")
    p(f"v_and_b32 {v(TX)}, 0xff, {v(TX)}")
    p(f"v_bcnt_u32_b32 {v(TX)}, {v(TX)}, 0")
    p(f"v_cmp_eq_u32 vcc, {s(sT0)}, {v(TX)}")
    p(f"s_lshl_b32 {s(sT1)}, {s(sw)}, 3")
    p(f"s_ff1_i32_b64 {s(sT0)}, vcc")
    p(f"s_cmp_lg_u64 {s(P1,2)}, 0")
    p(f"s_cselect_b32 {s(sT0)}, {s(sT1)}, {s(sT0)}")
    p(f"s_sub_u32 {s(sT3)}, {s(sT0)}, {s(sT1)}")
    p(f"v_readlane_b32 {s(sT1)}, {v(KA_+2)}, {s(sT0)}")
    p(f"v_readlane_b32 {s(sT2)}, {v(KA_+3)}, {s(sT0)}")
    p(f"v_readlane_b32 {s(sT0)}, {v(KA_+1)}, {s(sT0)}")
    p(f"s_mul_i32 {s(sDLB)}, {s(sT3)}, {REG // 8}")
    p(f"s_lshl_b32 {s(sDG)}, {s(sT3)}, 5")
    p(f"s_mul_i32 {s(sT3)}, {s(sT3)}, 6400")
    p(f"s_add_u32 {s(sDL)}, {s(sDL)}, {s(sT3)}")
    p(f"s_sub_u32 {s(sB3)}, {s(sT0)}, {s(sB3)}")
    p(f"v_add_u32 {v(RDL)}, {s(sB3)}, {v(RDL)}")
    p(f"s_sub_u32 {s(sE3)}, {s(sT2)}, {s(sE3)}")
    p(f"s_sub_u32 {s(sE3)}, {s(sE3)}, {s(sB3)}")
    for r in (sT1, sT2):
        p(f"s_sub_u32 {s(r)}, {s(r)}, {s(sT0)}")
        p(f"s_lshr_b32 {s(r)}, {s(r)}, 4")
        p(f"s_add_u32 {s(r)}, {s(r)}, {s(sU)}")
        p(f"s_bitset1_b64 {s(F,2)}, {s(r)}")
    event_mask()
    if opt["prio"]:
        p(f"s_ashr_i32 {s(sE3)}, {s(sE3)}, 3")
        p(f"v_mov_b32 {v(A_)}, {s(sE3)}")
        p(f"s_sub_u32 {s(sE3)}, 0, {s(sE3)}")
        p(f"v_writelane_b32 {v(A_)}, {s(sE3)}, 1")
        p(f"ds_add_u32 {v(PADR)}, {v(A_)}")
    p(f"s_cmp_lg_u32 {s(sKW)}, 2")
    p(f"s_cselect_b32 {s(sM3)}, 1, -1")
    p("s_cbranch_scc1 L_swap_ret")
    p(f"v_add_u32 {v(TADR)}, {s(sDLB)}, {v(TADR)}")
    p(f"v_add_u32 {v(BADR)}, {s(sDLB)}, {v(BADR)}")
    t_reads()
    p("L_swap_ret:")
    p(f"s_setpc_b64 {s(RET,2)} ; ret=L_swap")
p("L_t23:")
p(f"s_cmp_eq_u32 {s(sEARLY)}, 0")
p("s_cbranch_scc1 L_skip23")
tiles(NE, D, F, "e")
p(f"s_setpc_b64 {s(RET,2)} ; ret=L_t23")
p("L_skip23:")
p("s_waitcnt vmcnt(0)")
p(f"s_setpc_b64 {s(RET,2)} ; ret=L_t23")
mainloop("f", False)
p("L_store:")
p(f"s_add_u32 {s(sT0)}, {s(sLB)}, {TB}")
p(f"v_lshl_add_u32 {v(TX+1)}, v0, 4, {s(sT0)}")
if opt["swap"]:
    p(f"s_bfm_b64 exec, 16, 48")
    p(f"v_add_u32 {v(TX+1)}, {s(sDLB)}, {v(TX+1)}")
    p(f"v_add_u32 {v(VOUT)}, {s(sDG)}, {v(VOUT)}")
    p("s_mov_b64 exec, -1")
p(f"ds_read_b128 {v(ZB,4)}, {v(TX+1)}")
p("s_waitcnt lgkmcnt(0)")
p(f"global_store_dwordx4 {v(VOUT)}, {v(ZB,4)}, s[18:19] {NTO}")
if STAMP:
    p("s_mov_b64 exec, -1")
    stamp(34)
    p(f"v_writelane_b32 v254, {s(sBASE)}, 15")
    p("s_getreg_b32 s96, hwreg(HW_REG_XCC_ID)")
    p("v_writelane_b32 v254, s96, 14")
    p("s_getreg_b32 s96, hwreg(HW_REG_HW_ID)")
    p("v_writelane_b32 v254, s96, 13")
    srd(SM, 100, 2048 * 256)
    p(f"s_lshl_b32 {s(sT0)}, s2, 3")
    p(f"s_add_u32 {s(sT0)}, {s(sT0)}, {s(sw)}")
    p(f"s_lshl_b32 {s(sT0)}, {s(sT0)}, 8")
    p(f"v_lshlrev_b32 v1, 2, v0")
    p(f"buffer_store_dword v254, v1, {s(SM,4)}, {s(sT0)} offen")
if opt.get("twice"):
    p("s_waitcnt vmcnt(0) lgkmcnt(0)")
    p("s_barrier")
    p("s_setprio 0")
    p(f"s_lshl_b32 {s(sT0)}, {s(sw)}, 6")
    p(f"v_add_u32 v0, {s(sT0)}, v0")
    p("s_add_u32 s3, s3, 1")
    p("s_cmp_eq_u32 s3, 1")
    p("s_cbranch_scc1 L_again")
if opt.get("spin"):
    p("L_spin:")
    p("s_memrealtime s[38:39]")
    p("s_waitcnt lgkmcnt(0)")
    p("s_sub_u32 s38, s38, s80")
    p(f"s_cmp_lt_u32 s38, {opt['spin']*100}")
    p("s_cbranch_scc1 L_spin")
p("L_end:")
p("s_endpgm")
p("L_general:")
p("s_waitcnt vmcnt(0)")
const_reads(5, 8)
t_reads()
list_reset()
p(f"s_bfm_b64 {s(EX50,2)}, 50, 0")
p(f"s_mul_i32 {s(sT0)}, {s(sW)}, 800")
p(f"v_add_u32 {v(TX+1)}, {s(sT0)}, v2")
p(f"s_mov_b64 exec, {s(EX50,2)}")
for j in range(4):
    p(f"global_load_dwordx4 {v(MSK+4*j,4)}, {v(TX+1)}, s[8:9]")
    p(f"v_add_u32 {v(TX+1)}, {PSTR*400}, {v(TX+1)}")
p("s_mov_b64 exec, -1")
p(f"v_cmp_lt_u32 vcc, 24, v0")
p(f"v_cndmask_b32 {v(HI)}, 0, 1, vcc")
p(f"v_mul_u32_u24 {v(CV+1)}, 25, {v(HI)}")
p(f"v_sub_u32 {v(CV+1)}, v0, {v(CV+1)}")
p(f"v_mul_u32_u24 {v(CV+1)}, 0x80008, {v(CV+1)}")
p(f"v_add_u32 {v(CV)}, 0x10000, {v(CV+1)}")
p(f"v_add_u32 {v(CV+2)}, 0x50004, {v(CV+1)}")
p(f"v_add_u32 {v(CV+3)}, 0x70006, {v(CV+1)}")
p(f"v_add_u32 {v(CV+1)}, 0x30002, {v(CV+1)}")
p("s_waitcnt vmcnt(0)")
for j in range(4):
    compact_body(j)
p(f"s_mov_b32 {s(sEARLY)}, 0")
p(f"s_mov_b64 {s(NB,2)}, -1")
p("s_branch L_listed")
mainloop("s", True)

nn = p.fix_hazards(verbose=opt["verbose"])
for early_, old_, gen_ in ((a_, b_, c_) for a_ in (True, False) for b_ in (True, False) for c_ in (True, False)):
    force = [("L_skip", not early_), ("L_nolate", early_ and not gen_), ("L_young", not old_), ("L_old3", old_), ("L_general", gen_)]
    for e in check_waits(p, force + ([("L_late", False)] if early_ else [])) if early_ else check_waits(p, force, cut="L_noadve"):
        if STAMP != 4:
            sys.exit(f"WAIT-CHECK early={early_}: {e}")
hdr = open(__file__.rsplit("/", 1)[0] + "/../standalone__sequential_behavior_din__recsys.s.ref").read().split("\n")
head = [l for l in hdr if l.startswith(";") and "@launch" not in l and "Override" not in l and "grid=ceil" not in l]
out = "\n".join(head) + f"""
; @launch grid=({NWG},1,1) block=({WPB*64},1,1) lds={WPB*REG}
; generated by gen/gen.py {' '.join(sys.argv[1:])}
.amdgcn_target "amdgcn-amd-amdhsa--gfx950"
.text
.globl {NAME}
.p2align 8
.type {NAME},@function
""" + p.text() + f""".section .rodata,"a"
.p2align 6
.amdhsa_kernel {NAME}
  .amdhsa_next_free_vgpr 256
  .amdhsa_next_free_sgpr 102
  .amdhsa_accum_offset 256
  .amdhsa_group_segment_fixed_size 0
  .amdhsa_kernarg_size 80
  .amdhsa_user_sgpr_count 2
  .amdhsa_user_sgpr_kernarg_segment_ptr 1
  .amdhsa_system_sgpr_workgroup_id_x 1
.end_amdhsa_kernel
"""
sys.stdout.write(out)
```

```python
import sys
from asmlib import Prog, check_waits

opt = dict(tlb=0, g2=1, ym=1, swap=1, bias=1, y2=1, yp=0, vx=0, m1=1, map=0, place=900010000, D=4, nt="nt", ntm="nt", nto="sc0 sc1", verbose=0, prio=1, sched="h")
for a in sys.argv[1:]:
    k, v = a.split("=", 1)
    opt[k] = int(v) if v.lstrip("-").isdigit() else v.replace("+", " ")
D = opt["D"]
NT, NTM, NTO = opt["nt"], opt["ntm"], opt["nto"]
STAMP = opt.get("stamp", 0)
assert not (STAMP == 4 and opt["swap"])

NAME = "standalone__sequential_behavior_din__recsys_kernel"
NWG, WPB = 256, 8
NWAVE = NWG * WPB
KB = 16384 // NWAVE
REG = opt.get('reg', 20480)
SLOT = 2080
TB = D * SLOT
BI = TB + 1024
BSTR = 272
XCH = BI + 8 * BSTR
PRG = XCH + 3072
KEY = PRG + 256
OUTS = PRG + 288
TKT = PRG + 272
LI = REG - 2048
L0 = LI + 16
assert OUTS + 1024 <= LI - 2048 and LI + 2048 <= REG and LI % 2048 == 0 and REG % 2048 == 0
STG = (D - 2) * SLOT
CNEG = 0xBFB8AA3B
PSTR, WGSTR = (16, 64) if opt["map"] & 1 else (4096, 16)
LGP = PSTR.bit_length() - 1
DLT0, DLT1 = 25600, (PSTR - 1) * 25600
MDL0, MDL1 = 400, (PSTR - 1) * 400

CA, CD, W, ZA, ZB, BIAS, XB, XT, W2, B2, S, ACC, DG, TR, ONE, VA, VB = \
    4, 68, 100, 132, 148, 164, 180, 188, 196, 204, 208, 212, 216, 224, 228, 230, 232
RDB0, RDB1, RDT, RDL, TADR, BADR, OADR, SEL0, SEL1, VOUT, RDM = range(234, 245)
TX = 246
PRV, PADR, PINC = 1, 2, 3
MSK = W
SH, SM, SH2 = 20, 24, 40
EX50, sB2, sDL, sMDL, sSGN, sDL1 = 28, 30, 31, 32, 33, 51
sLB, sW, sw = 52, 53, 54
F = 56
H = 36
sKA, sKW = 60, 61
sBASE, sK, sT0, sT1, sT2, sT3 = 64, 65, 66, 67, 55, 95
A0 = 68
NB, P0, P1, P2 = 84, 86, 88, 90
sC, sOFF, sEARLY, sRO = 92, 93, 94, 35
sB3, sM3, sE3, sDLB, sKF, sU, sDG = 44, 45, 46, 47, 48, 49, 50
RET = 62


def v(a, n=1):
    return f"v{a}" if n == 1 else f"v[{a}:{a+n-1}]"


def s(a, n=1):
    return f"s{a}" if n == 1 else f"s[{a}:{a+n-1}]"


p = Prog()
nstamp = [0]


def stamp(cyc=None):
    if STAMP == 4:
        return
    if not STAMP or (STAMP == 3 and cyc is None):
        return
    p("s_memrealtime s[96:97]")
    p("s_waitcnt lgkmcnt(0)")
    p(f"v_writelane_b32 v254, s96, {nstamp[0]}")
    nstamp[0] += 1
    if cyc is not None:
        p("s_memtime s[96:97]")
        p("s_waitcnt lgkmcnt(0)")
        p(f"v_writelane_b32 v254, s96, {cyc}")


ncyc = [0]


def cst(name):
    if opt.get("probe") == name:
        p("s_memrealtime s[98:99]")
        p("s_waitcnt lgkmcnt(0)")
    if STAMP == 4 and (not opt.get("arr") or name in ("entry", "kernarg") or name.startswith("arr")):
        sys.stderr.write(f"cst{ncyc[0]} = {name}\n")
        p(f"s_memtime {s((38,80,82,96,98,44,46,48,50,16)[ncyc[0]],2)}")
        ncyc[0] += 1


njit = [0]


def jit(long=False):
    if not opt.get("jitter"):
        return
    njit[0] += 1
    k = njit[0]
    p(f"s_mul_i32 s3, {s(sW)}, {37 + 2 * k + opt['jitter'] * 16}")
    p(f"s_add_u32 s3, s3, {k * 5}")
    p(f"s_lshr_b32 s3, s3, 2")
    p(f"s_and_b32 s3, s3, {7 if long else 3}")
    p("s_cmp_lg_u32 s3, 0")
    p(f"s_cbranch_scc1 L_jit{k}")
    for _ in range(10 if long else 1):
        p(f"s_sleep {127 if long else 30}")
    p(f"L_jit{k}:")


def srd(dst, ptr, nrec, stride=0):
    p(f"s_mov_b32 {s(dst)}, {s(ptr)}")
    p(f"s_and_b32 {s(dst+1)}, {s(ptr+1)}, 0xffff")
    if stride:
        p(f"s_or_b32 {s(dst+1)}, {s(dst+1)}, {stride << 16:#x}")
    p(f"s_mov_b32 {s(dst+2)}, {nrec}")
    p(f"s_mov_b32 {s(dst+3)}, 0x20000")


def m0_half(slot, j):
    return f"s_add_u32 m0, {s(sLB)}, {slot*SLOT+j*1056}"


def dma_half(j):
    if opt["m1"] and j:
        return f"buffer_load_dwordx4 {v(VB,2)}, {s(SH2,4)}, {s(sRO)} idxen offen offset:1056 {NT} lds"
    return f"buffer_load_dwordx4 {v((VA, VB)[j],2)}, {s(SH,4)}, {s(sRO)} idxen offen {NT} lds"


def adv_hist():
    p(f"s_add_u32 {s(sRO)}, {s(sRO)}, {s(sDL)}")
    p(f"s_min_u32 {s(sRO)}, {s(sRO)}, {16383*25600}")
    p(f"s_xor_b32 {s(sDL)}, {s(sDL)}, {DLT0 ^ DLT1:#x}")


R, CV, HI = ZA, ZA + 9, ZA + 13
AP, AT, QV, QH, NBA = W + 16, W + 22, W + 26, W + 30, W + 31
QR, QT, QE = (ZA, ZA + 8, BIAS), (BIAS + 8, BIAS + 12, XB), (XB + 4, XB + 5, XB + 6)
NT0, NT1 = ZB + 12, ZB + 13
CNT = 0xBFE0BFE0


def fbit(reg, k):
    p(f"s_lshr_b32 {s(sT3)}, {s(reg)}, 4")
    if 13 * (k + 1) + 1 < 64:
        p(f"s_bitset1_b64 {s(F,2)}, {s(sT3)}")
    else:
        p(f"s_lshl_b64 {s(P0,2)}, 1, {s(sT3)}")
        p(f"s_bitcmp1_b32 {s(reg)}, 10")
        p(f"s_cselect_b64 {s(P1,2)}, 0, {s(P0,2)}")
        p(f"s_cselect_b64 {s(P2,2)}, {s(P0,2)}, 0")
        p(f"s_or_b64 {s(F,2)}, {s(F,2)}, {s(P1,2)}")
        p(f"s_or_b64 {s(F+2,2)}, {s(F+2,2)}, {s(P2,2)}")


def compact_body(j):
    m = [MSK + 4 * j + x for x in range(4)]
    p(f"s_mov_b64 exec, {s(EX50,2)}")
    for e in range(8):
        p(f"v_cmp_neq_f16_sdwa {s(A0+2*e,2)}, {v(m[e>>1])}, 0 src0_sel:WORD_{e&1} src1_sel:WORD_0")
    p("s_mov_b64 exec, -1")
    p(f"v_mov_b32 {v(R)}, {s(sBASE)}")
    for e in range(8):
        p(f"v_mbcnt_lo_u32_b32 {v(R)}, {s(A0+2*e)}, {v(R)}")
        p(f"v_mbcnt_hi_u32_b32 {v(R)}, {s(A0+2*e+1)}, {v(R)}")
    p(f"s_add_u32 {s(sT2)}, {s(sBASE)}, 16")
    p(f"v_readlane_b32 {s(sT0)}, {v(R)}, 25")
    p(f"v_readlane_b32 {s(sT1)}, {v(R)}, 63")
    p(f"s_add_u32 {s(sBASE)}, {s(sT0)}, 15")
    p(f"s_and_b32 {s(sBASE)}, {s(sBASE)}, -16")
    p(f"s_max_u32 {s(sBASE)}, {s(sBASE)}, {s(sT2)}")
    p(f"s_sub_u32 {s(sT0)}, {s(sBASE)}, {s(sT0)}")
    p(f"v_mad_u32_u24 {v(R)}, {v(HI)}, {s(sT0)}, {v(R)}")
    p(f"s_mov_b32 {s(sT2)}, {s(sBASE)}")
    for e in range(7):
        p(f"v_addc_co_u32 {v(R+e+1)}, vcc, 0, {v(R+e)}, {s(A0+2*e,2)}")
    p(f"s_add_u32 {s(sT1)}, {s(sT1)}, {s(sT0)}")
    p(f"s_add_u32 {s(sT1)}, {s(sT1)}, 15")
    p(f"s_and_b32 {s(sT1)}, {s(sT1)}, -16")
    p(f"s_add_u32 {s(sBASE)}, {s(sBASE)}, 16")
    p(f"s_max_u32 {s(sBASE)}, {s(sBASE)}, {s(sT1)}")
    for e in range(8):
        p(f"s_mov_b64 exec, {s(A0+2*e,2)}")
        p(f"ds_write_b8{'_d16_hi' if e&1 else ''} {v(R+e)}, {v(CV+(e>>1))}")
    p("s_mov_b64 exec, -1")
    pair_bits(j, sT2)


def q_total(i, j):
    p(f"v_mfma_i32_16x16x64_i8 {v(QT[i],4)}, {v(AT,4)}, {v(MSK+4*j,4)}, 0")


def q_test(j):
    out = []
    if opt.get("xt"):
        return out
    for x in range(4):
        t = (NT0, NT1)[x & 1]
        out += [f"v_and_b32 {v(t)}, 0x800080, {v(MSK+4*j+x)}", f"v_mul_u32_u24 {v(t)}, 0x7f, {v(t)}",
                f"v_bitop3_b32 {v(NBA)}, {v(MSK+4*j+x)}, {v(t)}, {v(NBA)} bitop3:0xbe"]
    return out


def q_scan(i, step):
    dpp = "row_mask:0xf bank_mask:0xf bound_ctrl:0"
    if step == 0:
        return f"v_mov_b32_dpp {v(QE[i])}, {v(QT[i])} row_shr:1 {dpp}"
    return f"v_add_u32_dpp {v(QE[i])}, {v(QE[i])}, {v(QE[i])} row_shr:{1 << (step-1)} {dpp}"


def q_lanes(i):
    p(f"v_readlane_b32 {s(A0+4*i)}, {v(QE[i])}, 6")
    p(f"v_readlane_b32 {s(A0+4*i+1)}, {v(QT[i]+1)}, 6")
    p(f"v_readlane_b32 {s(A0+4*i+2)}, {v(QE[i])}, 15")


def q_ranks(i, j):
    a = A0 + 4 * i
    p(f"s_add_u32 {s(sT0)}, {s(a)}, {s(a+1)}")
    p(f"s_add_u32 {s(sT0)}, {s(sT0)}, {s(sBASE)}")
    p(f"s_add_u32 {s(sT1)}, {s(sT0)}, 15")
    p(f"s_and_b32 {s(sT1)}, {s(sT1)}, -16")
    p(f"s_add_u32 {s(sT2)}, {s(sBASE)}, 16")
    p(f"s_max_u32 {s(sT1)}, {s(sT1)}, {s(sT2)}")
    p(f"s_sub_u32 {s(sT0)}, {s(sT1)}, {s(sT0)}")
    p(f"v_mad_u32_u24 {v(QE[i])}, {v(QH)}, {s(sT0)}, {v(QE[i])}")
    p(f"s_sub_u32 {s(sT2)}, {s(sBASE)}, 2048")
    for r in range(4):
        p(f"v_add_u32 {v(QT[i]+r)}, {s(sT2)}, {v(QE[i])}")
    p(f"s_add_u32 {s(sBASE)}, {s(sBASE)}, {s(a+2)}")
    p(f"s_add_u32 {s(sBASE)}, {s(sBASE)}, {s(sT0)}")
    p(f"v_mfma_i32_16x16x64_i8 {v(QR[i],4)}, {v(AP+2,4)}, {v(MSK+4*j,4)}, {v(QT[i],4)}")
    p(f"v_mfma_i32_16x16x64_i8 {v(QR[i]+4,4)}, {v(AP,4)}, {v(MSK+4*j,4)}, {v(QT[i],4)}")
    p(f"s_add_u32 {s(sBASE)}, {s(sBASE)}, 15")
    p(f"s_and_b32 {s(sBASE)}, {s(sBASE)}, -16")
    p(f"s_add_u32 {s(sT2)}, {s(sT1)}, 16")
    p(f"s_max_u32 {s(sBASE)}, {s(sBASE)}, {s(sT2)}")
    pair_bits(j, sT1)


def pair_bits(j, mid):
    if opt["swap"] and j == 3:
        p(f"s_mov_b32 {s(sM3)}, {s(mid)}")
        p(f"s_mov_b32 {s(sE3)}, {s(sBASE)}")
        return
    fbit(mid, 2 * j)
    fbit(sBASE, 2 * j + 1)
    if opt["swap"] and j == 2:
        p(f"s_mov_b32 {s(sB3)}, {s(sBASE)}")


def q_write(i):
    if opt.get("xw"):
        return
    if opt["vx"]:
        p(f"s_mov_b64 exec, {s(EX50,2)}")
    for e in range(8):
        p(f"ds_write_b8{'_d16_hi' if e&1 else ''} {v(QR[i]+e)}, {v(QV+(e>>1))}")
    if opt["vx"]:
        p("s_mov_b64 exec, -1")


W44 = 1
DIAGMM = "v_mfma_f32_4x4x4_16b_bf16" if W44 else "v_mfma_f32_16x16x16_bf16"


def wbuild():
    for x in range(4):
        p(f"v_mul_u32_u24 {v(DG+2*x)}, {v(TR+x)}, {v(SEL0)}")
        p(f"v_mul_u32_u24 {v(DG+2*x+1)}, {v(TR+x)}, {v(SEL1)}")
    T = [ZA, ZA + 8, TX]
    pairs = [(hb, ks) for hb in range(4) for ks in range(2)]

    def mm(j, u):
        hb, ks = pairs[j]
        blk = (hb * 2 + ks) * 2 + u
        p(f"{DIAGMM} {v(T[j%3]+4*u,4)}, {v(DG+2*(2*ks+u),2)}, {v(CD+2*blk,2)}, {v(CA+4*blk,4)}")

    def cv(j, r):
        hb, ks = pairs[j]
        p(f"v_cvt_pk_bf16_f32 {v(W+(hb*2+ks)*4+r)}, {v(T[j%3]+2*r)}, {v(T[j%3]+2*r+1)}")
    p(f"v_add_u32 {v(TADR)}, 128, {v(TADR)}")
    p(f"ds_read_b128 {v(BIAS,4)}, {v(BADR)}")
    mm(0, 0)
    p(f"ds_read_b128 {v(BIAS+4,4)}, {v(BADR)} offset:64")
    p(f"ds_read_b128 {v(BIAS+8,4)}, {v(BADR)} offset:128")
    mm(0, 1)
    p(f"ds_read_b128 {v(BIAS+12,4)}, {v(BADR)} offset:192")
    p(f"ds_read_u16 {v(TR)}, {v(TADR)}")
    mm(1, 0)
    p(f"ds_read_u16 {v(TR+1)}, {v(TADR)} offset:8")
    p(f"ds_read_u16 {v(TR+2)}, {v(TADR)} offset:64")
    mm(1, 1)
    p(f"ds_read_u16 {v(TR+3)}, {v(TADR)} offset:72")
    p(f"v_add_u32 {v(BADR)}, {BSTR}, {v(BADR)}")
    mm(2, 0)
    cv(0, 0); cv(0, 1)
    mm(2, 1)
    cv(0, 2); cv(0, 3)
    for j in range(1, 8):
        if j + 2 < 8:
            mm(j + 2, 0)
        cv(j, 0); cv(j, 1)
        if j + 2 < 8:
            mm(j + 2, 1)
        cv(j, 2); cv(j, 3)
    p("s_waitcnt lgkmcnt(0)")


def t_reads():
    for x in range(4):
        p(f"ds_read_u16 {v(TR+x)}, {v(TADR)} offset:{(x>>1)*64+(x&1)*8}")


def g1(j):
    hb, ks = j >> 1, j & 1
    c = v(BIAS + 4 * hb, 4) if ks == 0 else v(ZB + 4 * hb, 4)
    return f"v_mfma_f32_16x16x32_bf16 {v(ZB+4*hb,4)}, {v(W+(hb*2+ks)*4,4)}, {v(XB+4*ks,4)}, {c}"


def read_xb(slot, ks):
    p(f"ds_read_b128 {v(XB+4*ks,4)}, {v((RDB0, RDB1)[ks])} offset:{slot*SLOT}")


SCHED = {
    "e": "ia ib k1 ent EV mid P0 e0 e1 e2 e3 e4 e5 A0 s0 s1 L2 G0 e6 q0 t0 e7 G2 e8 q1 t1 A1 r0 q2 t2 e9 G1 r1 q3 t3 e10 G3 "
         "r2 e11 r3 c0 A2 e12 G4 r4 c1 E2 e13 r5 e14 r6 c2 e15 G6 L0 m0 r7 da A3 G5 m1 r8 db G7 P1 r9 c3 vm y0 y1 r10 c4 k0 r11 B r12 c5 "
         "r13 r14 r15 c6 c7",
    "f": "ia ib k1 ent EV mid P0 e0 e1 e2 e3 e4 e5 A0 s0 s1 L2 G0 e6 q0 t0 e7 G2 e8 q1 t1 A1 r0 q2 t2 e9 G1 r1 q3 t3 e10 G3 "
         "r2 e11 r3 c0 A2 e12 G4 r4 c1 E2 m0 L0 da e13 r5 e14 r6 c2 e15 G6 P1 r7 A3 G5 m1 r8 G7 r9 c3 db vm y0 y1 r10 c4 k0 r11 B r12 c5 "
         "r13 r14 r15 c6 c7",
    "g": "ia ib k1 ent EV mid P0 e0 e1 e2 e3 e4 e5 A0 s0 s1 L2 G0 e6 q0 t0 e7 G2 e8 q1 t1 A1 r0 q2 t2 e9 G1 r1 q3 t3 e10 G3 "
         "r2 e11 r3 c0 A2 e12 G4 r4 c1 E2 e13 r5 e14 m0 L0 da r6 c2 e15 G6 P1 r7 A3 G5 m1 r8 G7 r9 c3 db vm y0 y1 r10 c4 k0 r11 B r12 c5 "
         "r13 r14 r15 c6 c7",
    "h": "ia ib k1 ent EV mid P0 e0 e1 e2 e3 e4 e5 A0 s0 s1 L2 G0 e6 q0 t0 e7 G2 e8 q1 t1 A1 r0 q2 t2 e9 G1 r1 q3 t3 e10 G3 "
         "r2 e11 r3 c0 A2 e12 G4 r4 c1 E2 m0 L0 da m1 e13 db r5 e14 r6 c2 e15 G6 P1 r7 A3 G5 r8 G7 r9 c3 vm y0 y1 r10 c4 k0 r11 B r12 c5 "
         "r13 r14 r15 c6 c7",
    "l": "ia ib k1 ent EV mid P0 e0 e1 e2 e3 e4 e5 A0 s0 s1 L2 G0 e6 q0 t0 e7 e8 q1 t1 G2 A1 q2 t2 r0 e9 q3 t3 G1 r1 e10 G3 "
         "r2 e11 m0 L0 da m1 r3 db c0 A2 e12 G4 r4 c1 E2 e13 r5 e14 r6 c2 e15 G6 P1 r7 A3 G5 r8 G7 r9 c3 r10 c4 k0 r11 B r12 c5 "
         "r13 r14 r15 vm y0 y1 c6 c7",
    "s": "ia ib k1 ent EV mid P0 e0 e1 e2 e3 e4 e5 A0 s0 s1 L2 G0 e6 q0 t0 e7 G2 e8 q1 t1 A1 r0 q2 t2 e9 G1 r1 q3 t3 e10 G3 "
         "r2 e11 r3 c0 A2 e12 G4 r4 c1 E2 e13 r5 e14 r6 c2 e15 G6 r7 A3 G5 r8 G7 m0 L0 da P1 m1 r9 db c3 vm y0 y1 r10 c4 k0 r11 B r12 c5 "
         "r13 r14 r15 c6 c7",
}


def event_mask():
    p(f"s_lshr_b64 {s(P0,2)}, {s(F,2)}, 2")
    p(f"s_lshr_b64 {s(H,2)}, {s(F,2)}, {D+1}")
    p(f"s_or_b32 {s(H)}, {s(H)}, {s(P0)}")
    p(f"s_or_b32 {s(H)}, {s(H)}, {s(F)}")


def mainloop(tag, slow, sched=None):
    toks = SCHED[sched or opt["sched"]].split()

    def scale(off):
        p(f"ds_read_b32 {v(TX)}, {v(RDM)} offset:{off}")
        p("s_waitcnt lgkmcnt(0)")
        for r in range(4):
            p(f"v_bfe_u32 {v(TX+1+r)}, {v(TX)}, {8*r}, 8")
            p(f"v_lshlrev_b32 {v(TX+1+r)}, 1, {v(TX+1+r)}")
        for r in range(4):
            p(f"buffer_load_ushort {v(TX+1+r)}, {v(TX+1+r)}, {s(SM,4)}, 0 offen")
        p("s_waitcnt vmcnt(0)")
        for r in range(4):
            p(f"v_lshlrev_b32 {v(TX+1+r)}, 16, {v(TX+1+r)}")
            p(f"v_mul_f32 {v(S+r)}, {v(S+r)}, {v(TX+1+r)}")

    def flush(last=False):
        p(f"v_cvt_pk_bf16_f32 {v(TX)}, {v(ACC)}, {v(ACC)}")
        if not last:
            p(f"v_mov_b32 {v(ACC)}, 0")
        if STAMP == 1:
            p("s_memrealtime s[96:97]")
            p("s_memtime s[98:99]")
            p(f"s_lshl_b32 {s(sT0)}, {s(sK)}, 1")
            p(f"s_sub_u32 {s(sT0)}, {16+2*(KB-1)}, {s(sT0)}")
            p("s_waitcnt lgkmcnt(0)")
            p(f"s_mov_b32 m0, {s(sT0)}")
            p("v_writelane_b32 v254, s96, m0")
            p(f"s_add_u32 m0, m0, 1")
            p("v_writelane_b32 v254, s98, m0")
            p(f"s_sub_u32 {s(sK)}, {s(sK)}, 1")
        p(f"ds_write_b16 {v(OADR)}, {v(TX)}")
        if last:
            return
        p(f"v_add_u32 {v(OADR)}, 128, {v(OADR)}")
        if slow:
            p(f"s_add_u32 {s(SM)}, {s(SM)}, {s(sMDL)}")
            p(f"s_addc_u32 {s(SM+1)}, {s(SM+1)}, 0")
            p(f"s_xor_b32 {s(sMDL)}, {s(sMDL)}, {MDL0 ^ MDL1:#x}")

    def emit(u, toks, tail):
        ev = opt["prio"] and u in ((0, D // 2) if opt["prio"] == 2 else (0,))
        for t in toks:
            k, n = t[0], (int(t[1:]) if t[1:].isdigit() else None)
            if opt.get("nodma") and t in ("da", "db"):
                continue
            if opt.get("nocomp") and k in "ercsAGqk" and n is not None:
                continue
            if t == "vm":
                p(f"s_waitcnt vmcnt({2*(D-2)})")
            elif k == "y":
                read_xb((u + 2) % D, n)
            elif t == "ent":
                if u == 0:
                    p(f"L{tag}_mid:")
            elif t in ("mid", "mi2"):
                if slow:
                    scale(u * 16 + (16 if t == "mi2" else 0))
            elif t == "ia" and opt.get("xv") and not tail:
                for j in range(opt["xv"]):
                    p(f"v_exp_f32 v255, {v(ZB+j)}")
                p(f"ds_read_u8 {v(VA)}, {v(RDL)} offset:{(u+D)*16}")
            elif t == "ia":
                p(f"ds_read_u8 {v(VA)}, {v(RDL)} offset:{(u+D)*16}")
            elif t == "ib":
                p(f"ds_read_u8 {v(VB)}, {v(RDL)} offset:{(u+D)*16+8}")
            elif t == "EV":
                p(f"s_bitcmp1_b32 {s(H)}, {u}")
                p(f"s_cbranch_scc1 L{tag}_ev{u}")
                p(f"L{tag}_evd{u}:")
            elif t == "E2":
                if tail:
                    p(f"s_bitcmp0_b64 {s(F,2)}, 1")
                    p(f"s_cbranch_scc1 L{tag}_tnf")
                    flush()
                    p(f"L{tag}_tnf:")
            elif t == "P0":
                if ev:
                    p(f"ds_add_rtn_u32 {v(PRV)}, {v(PADR)}, {v(PINC)}")
            elif t == "P1":
                if ev:
                    p(f"v_readfirstlane_b32 {s(sT0)}, {v(PRV)}")
                    p("s_setprio 0")
                    p(f"s_cmp_gt_i32 {s(sT0)}, 0")
                    p(f"s_cbranch_scc0 L{tag}_lo{u}")
                    p("s_setprio 1")
                    p(f"L{tag}_lo{u}:")
            elif t == "da":
                p(dma_half(0))
            elif t == "db":
                p(dma_half(1))
            elif t == "B":
                if u == D - 1:
                    p(f"s_lshr_b64 {s(F,2)}, {s(F,2)}, {D}")
                    p(f"s_lshl_b64 {s(P0,2)}, {s(F+2,2)}, {64-D}")
                    p(f"s_or_b64 {s(F,2)}, {s(F,2)}, {s(P0,2)}")
                    p(f"s_lshr_b64 {s(F+2,2)}, {s(F+2,2)}, {D}")
                    event_mask()
                    p(f"v_add_u32 {v(RDL)}, {16*D}, {v(RDL)}")
                    if slow:
                        p(f"v_add_u32 {v(RDM)}, {16*D}, {v(RDM)}")
            elif k == "m":
                if not (opt["m1"] and n):
                    p(m0_half(u, n))
            elif k == "e":
                p(f"v_exp_f32 {v(ZA+n)}, {v(ZB+n)}")
            elif k == "r":
                p(f"v_rcp_f32 {v(ZA+n)}, {v(ZA+n)}")
            elif k == "c":
                p(f"v_cvt_pk_bf16_f32 {v(ZA+n)}, {v(ZA+2*n)}, {v(ZA+2*n+1)}")
            elif k == "s":
                p(f"v_cvt_pk_bf16_f32 {v(S+n)}, {v(S+2*n)}, {v(S+2*n+1)}")
            elif k == "A":
                p(f"v_mfma_f32_4x4x4_16b_bf16 {v(ZA+4*n,4)}, {v(ONE,2)}, {v(ONE,2)}, {v(ZA+4*n,4)}")
            elif k == "G":
                p(g1(n))
            elif k == "q":
                p(f"v_mfma_f32_4x4x4_16b_bf16 {v(ACC,4)}, {v(S,2)}, {v(XT+2*n,2)}, {v(ACC,4)} cbsz:4 abid:{4*n}")
            elif k == "t":
                p(f"ds_read_b64_tr_b16 {v(XT+2*n,2)}, {v(RDT)} offset:{u*SLOT+n*512+(n>>1)*32}")
            elif k == "k":
                p(f"v_mfma_f32_16x16x32_bf16 {v(S,4)}, {v(ZA+4*n,4)}, {v(W2+4*n,4)}, {v(B2,4) if n == 0 else v(S,4)}")
            elif k == "L":
                p(f"s_waitcnt lgkmcnt({n})")
            else:
                raise ValueError(t)

    p(f"L{tag}_loop:")
    for u in range(D):
        emit(u, toks, False)
    p(f"s_branch L{tag}_loop")
    for u in range(D):
        p(f"L{tag}_ev{u}:")
        jit()
        p(f"s_bitcmp0_b64 {s(F,2)}, {u}")
        p(f"s_cbranch_scc1 L{tag}_nf{u}")
        flush()
        p(f"L{tag}_nf{u}:")
        p(f"s_bitcmp0_b64 {s(F,2)}, {u+D+1}")
        p(f"s_cbranch_scc1 L{tag}_na{u}")
        if opt["swap"]:
            p(f"s_sub_u32 {s(sKA)}, {s(sKA)}, 1")
            p(f"s_cbranch_scc0 L{tag}_ns{u}")
            p(f"s_mov_b32 {s(sU)}, {u+D+1}")
            p(f"s_call_b64 {s(RET,2)}, L_swap")
            p(f"ds_read_u8 {v(VA)}, {v(RDL)} offset:{(u+D)*16}")
            p(f"ds_read_u8 {v(VB)}, {v(RDL)} offset:{(u+D)*16+8}")
            adv_hist()
            p(f"s_bitcmp0_b64 {s(F,2)}, {u+2}")
            p(f"s_cbranch_scc1 L{tag}_evd{u}")
            p("s_waitcnt lgkmcnt(0)")
            p(f"s_branch L{tag}_e1{u}")
            p(f"L{tag}_ns{u}:")
        adv_hist()
        p(f"L{tag}_na{u}:")
        p(f"s_bitcmp0_b64 {s(F,2)}, {u+2}")
        p(f"s_cbranch_scc1 L{tag}_evd{u}")
        p(f"L{tag}_e1{u}:")
        p(f"s_sub_u32 {s(sKW)}, {s(sKW)}, 1")
        p(f"s_cbranch_scc1 L{tag}_last{u}")
        if opt["swap"]:
            p(f"s_cmp_lg_u32 {s(sKW)}, {s(sM3)}")
            p(f"s_cbranch_scc1 L{tag}_nw{u}")
            p(f"v_add_u32 {v(TADR)}, {s(sDLB)}, {v(TADR)}")
            p(f"v_add_u32 {v(BADR)}, {s(sDLB)}, {v(BADR)}")
            t_reads()
            p("s_waitcnt lgkmcnt(0)")
            p(f"L{tag}_nw{u}:")
        wbuild()
        p(f"s_branch L{tag}_evd{u}")
    for u in range(D):
        p(f"L{tag}_last{u}:")
        if u:
            p(f"v_add_u32 {v(RDT)}, {u*SLOT}, {v(RDT)}")
            p(f"s_lshr_b64 {s(F,2)}, {s(F,2)}, {u}")
            if slow:
                p(f"v_add_u32 {v(RDM)}, {16*u}, {v(RDM)}")
        if u < D - 1:
            p(f"s_branch L{tag}_tail")
    p(f"L{tag}_tail:")
    i1 = toks.index("EV")
    drop = lambda t: t in ("vm", "ia", "ib", "EV", "ent", "P0", "P1", "da", "db", "B", "L2") or (t[0] in "Gym" and t[1:].isdigit())
    emit(0, [t for t in toks[i1:] + toks[:i1] if not drop(t)] + ["mi2", "s0", "s1", "q0", "q1", "q2", "q3"], True)
    flush(last=True)
    if tag != "f":
        p("s_branch L_store")


p(f"{NAME}:")
if opt.get("twice"):
    p("s_mov_b32 s3, 0")
    p("L_again:")
if opt.get("spin"):
    p("s_memrealtime s[80:81]")
cst("entry")
if STAMP:
    if STAMP != 4:
        p("s_memrealtime s[98:99]")
        p("s_memtime s[96:97]")
    p("s_load_dwordx2 s[100:101], s[0:1], 72")
p("s_load_dwordx16 s[4:19], s[0:1], 0")
p(f"s_cmp_ge_u32 s2, {NWG}")
p("s_cbranch_scc1 L_end")
p("v_lshrrev_b32 v1, 6, v0")
p("v_and_b32 v0, 63, v0")
p(f"v_readfirstlane_b32 {s(sw)}, v1")
if opt["map"] & 2:
    p("s_and_b32 s3, s2, 7")
    p("s_lshl_b32 s3, s3, 5")
    p(f"s_lshr_b32 {s(sW)}, s2, 3")
    p(f"s_add_u32 {s(sW)}, {s(sW)}, s3")
    p(f"s_lshl_b32 {s(sW)}, {s(sW)}, {(WGSTR//2).bit_length()-1}")
else:
    p(f"s_lshl_b32 {s(sW)}, s2, {(WGSTR//2).bit_length()-1}")
p("v_lshlrev_b32 v2, 4, v0")
p("v_lshrrev_b32 v1, 4, v0")
p("v_and_b32 v3, 0xf0, v2")
p("v_lshlrev_b32 v3, 2, v3")
p(f"v_lshl_add_u32 {v(QH)}, v1, 4, v3")
p("v_bfrev_b32 v3, 1")
p(f"s_add_u32 {s(sW)}, {s(sW)}, {s(sw)}")
p(f"s_movk_i32 {s(sT0)}, 800")
p(f"v_cmp_gt_u32 vcc, {s(sT0)}, {v(QH)}")
p(f"s_mul_i32 {s(sOFF)}, {s(sW)}, 800")
p(f"s_mul_i32 {s(sLB)}, {s(sw)}, {REG}")
p(f"s_mov_b64 {s(EX50,2)}, vcc")
p(f"v_cndmask_b32 v3, v3, {v(QH)}, vcc")
p(f"v_and_b32 {v(TX+2)}, 16, v0")
p(f"v_lshlrev_b32 {v(TX)}, 1, {v(TX+2)}")
p(f"v_xor_b32 {v(TX)}, {v(TX)}, v2")
p(f"v_and_b32 {v(VOUT)}, 0xf0, v2")
p(f"v_lshl_add_u32 {v(VOUT)}, v1, {LGP+7}, {v(VOUT)}")
p(f"s_lshl_b32 {s(sT0)}, {s(sW)}, 8")
p(f"v_add_u32 {v(VOUT)}, {s(sT0)}, {v(VOUT)}")
p(f"s_lshl_b32 {s(sT1)}, {s(sw)}, 12")
p(f"s_add_u32 m0, {s(sLB)}, {TB}")
p(f"s_mov_b32 {s(SM+2)}, {16384*400}")
p(f"s_mov_b32 {s(SM+3)}, 0x20000")
p("s_waitcnt lgkmcnt(0)")
cst("kernarg")
if STAMP and STAMP != 4:
    p("v_mov_b32 v254, 0")
    p("v_writelane_b32 v254, s98, 0")
    p("v_writelane_b32 v254, s96, 32")
    nstamp[0] = 1
    stamp()
p(f"s_mov_b32 {s(SM)}, s8")
p(f"s_and_b32 {s(SM+1)}, s9, 0xffff")
if opt["ym"]:
    p(f"s_cmp_ge_u32 {s(sw)}, 4")
    p("s_cbranch_scc1 L_young0")
p(f"buffer_load_dwordx4 {v(MSK,4)}, v3, {s(SM,4)}, {s(sOFF)} offen {NTM}")
p("L_young0:")
if opt.get("xs"):
    for j in range(opt["xs"]):
        p("s_nop 15")
p(f"global_load_lds_dwordx4 {v(VOUT)}, s[4:5] {NTM}")
p(f"s_add_u32 m0, {s(sLB)}, {STG}")
p(f"s_add_u32 s10, s10, {s(sT1)}")
p("s_addc_u32 s11, s11, 0")
p(f"v_xor_b32 {v(TX+1)}, 64, {v(TX)}")
if opt.get("nsw"):
    p(f"v_mov_b32 {v(TX)}, v2")
    p(f"v_mov_b32 {v(TX+1)}, v2")
for j in range(4):
    p(f"global_load_lds_dwordx4 {v(TX+(j&1))}, s[10:11] offset:{j*1024}")
p(f"s_load_dword {s(sB2)}, s[16:17], 0")
p(f"s_and_b32 {s(sT1)}, {s(sw)}, 3")
B1R, W2R = CD + 28, DG


def load_b1():
    p(f"s_and_b32 {s(sT0)}, {s(sw)}, 3")
    p(f"s_lshl_b32 {s(sT0)}, {s(sT0)}, 5")
    p(f"v_lshl_add_u32 {v(TX+3)}, v1, 3, {s(sT0)}")
    p(f"global_load_dwordx2 {v(B1R,2)}, {v(TX+3)}, s[12:13]")


if not opt["ym"]:
    load_b1()
p(f"v_and_b32 {v(TX+4)}, 3, v0")
NVM = 11
if opt.get("arr"):
    cst("arr_issued")
    for n_out in (5, 4, 3, 2, 1, 0):
        p(f"s_waitcnt vmcnt({n_out})")
        cst(f"arr{n_out}")
stamp()
srd(SH, 6, 200, stride=128)
if opt["m1"]:
    p(f"s_sub_u32 {s(SH2)}, {s(SH)}, 1056")
    p(f"s_subb_u32 {s(SH2+1)}, {s(SH+1)}, 0")
    p(f"s_mov_b32 {s(SH2+2)}, 200")
    p(f"s_mov_b32 {s(SH2+3)}, 0x20000")


def list_reset():
    p(f"s_mul_i32 {s(sRO)}, {s(sW)}, 51200")
    p(f"s_movk_i32 {s(sDL)}, {DLT0}")
    if opt["swap"]:
        p(f"s_mov_b32 {s(sKA)}, {KB-3}")
    p(f"s_mov_b64 {s(F,2)}, 0")
    p(f"s_mov_b64 {s(F+2,2)}, 0")
    for j in range(4):
        p(f"v_mov_b32 {v(ZB+j)}, -1")
    p(f"s_add_u32 {s(sT0)}, {s(sLB)}, {LI}")
    p(f"v_add_u32 {v(ZB+4)}, {s(sT0)}, v2")
    p(f"ds_write_b128 {v(ZB+4)}, {v(ZB,4)}")
    p(f"ds_write_b128 {v(ZB+4)}, {v(ZB,4)} offset:1024")
    p(f"s_add_u32 {s(sBASE)}, {s(sLB)}, {L0}")


list_reset()
for j in range(5, 2 * D):
    p(f"v_mov_b32 {v(ZB+j)}, -1")
p(f"v_lshrrev_b32 {v(RDL)}, 3, v0")
p(f"v_add_u32 {v(RDL)}, {s(sBASE)}, {v(RDL)}")
p(f"v_lshl_add_u32 {v(RDM)}, v1, 2, {s(sT0)}")
p(f"v_and_b32 {v(VA+1)}, 0x70, v2")
p(f"v_lshlrev_b32 {v(TX+2)}, 2, {v(TX+2)}")
p(f"v_xor_b32 {v(VA+1)}, {v(VA+1)}, {v(TX+2)}")
p(f"v_mov_b32 {v(VB+1)}, {v(VA+1)}")
lane_mask = lambda f: sum(1 << i for i in range(64) if f(i & 15, i >> 4))


def smask(dst, m):
    p(f"s_mov_b32 {s(dst)}, {m & 0xffffffff:#x}")
    p(f"s_mov_b32 {s(dst+1)}, {m >> 32:#x}")


p(f"s_movk_i32 {s(sT0)}, 400")
p(f"v_cmp_le_u32 vcc, {s(sT0)}, {v(QH)}")
p(f"v_lshrrev_b32 {v(QV)}, 1, {v(QH)}")
p(f"s_movk_i32 {s(sT0)}, -200")
p(f"v_cndmask_b32 {v(QH)}, 0, 1, vcc")
p(f"v_mad_i32_i24 {v(QV)}, {v(QH)}, {s(sT0)}, {v(QV)}")
p(f"v_mul_u32_u24 {v(QV+1)}, 0x10001, {v(QV)}")
p(f"v_add_u32 {v(QV)}, 0x10000, {v(QV+1)}")
p(f"v_add_u32 {v(QV+2)}, 0x50004, {v(QV+1)}")
p(f"v_add_u32 {v(QV+3)}, 0x70006, {v(QV+1)}")
p(f"v_add_u32 {v(QV+1)}, 0x30002, {v(QV+1)}")
p(f"v_mov_b32 {v(NBA)}, {CNT:#x}")
smask(P0, lane_mask(lambda m, g: (m >> 2) >= g))
smask(P1, lane_mask(lambda m, g: (m >> 2) > g))
smask(P2, lane_mask(lambda m, g: (m >> 2) == g))
smask(NB, lane_mask(lambda m, g: (m & 3) == 0 or (m, g) == (1, 0)))
for x in range(2):
    p(f"v_cndmask_b32 {v(AP+x)}, 0, {v(NBA)}, {s(P0,2)}")
    p(f"v_cndmask_b32 {v(AP+4+x)}, 0, {v(NBA)}, {s(P1,2)}")
for x in range(4):
    p(f"v_cndmask_b32 {v(AT+x)}, 0, {v(NBA)}, {s(NB,2)}")
p(f"v_lshlrev_b32 {v(TX)}, 4, {v(TX+4)}")
p(f"v_sub_u32 {v(TX)}, 48, {v(TX)}")
smask(P0, 0x00F0BFE0BFE0BFE0)
p(f"v_lshrrev_b64 {v(AP+2,2)}, {v(TX)}, {s(P0,2)}")
p(f"v_mov_b32 {v(NBA)}, 0")
p(f"s_mov_b64 {s(NB,2)}, 0")
for x in range(2):
    p(f"v_cndmask_b32 {v(AP+2+x)}, {v(AP+4+x)}, {v(AP+2+x)}, {s(P2,2)}")
if STAMP:
    p(f"s_mov_b32 {s(sK)}, {KB-1}")
p(f"s_mov_b32 {s(sKW)}, {KB-1}")
p(f"s_mov_b32 {s(sC)}, {CNEG:#x}")
n_, r_, c_ = TX + 5, TX + 6, TX + 4
p(f"v_and_b32 {v(n_)}, 15, v0")
p(f"v_bfe_u32 {v(r_)}, v0, 2, 2")
X0 = TX + 7
SA, SC_, SB_, TBA, BWA = CA + 60, CA + 61, CA + 62, CA + 63, CD + 30
IDN, N0M = DG + 2, DG + 4
p(f"v_lshlrev_b32 {v(X0)}, 3, {v(c_)}")
p(f"v_lshl_add_u32 {v(X0)}, {v(r_)}, 7, {v(X0)}")
p(f"v_and_b32 {v(TX)}, 24, v0")
p(f"v_lshlrev_b32 {v(TX)}, 2, {v(TX)}")
p(f"v_xor_b32 {v(TX)}, {v(X0)}, {v(TX)}")
p(f"v_lshl_add_u32 {v(TX)}, v1, 10, {v(TX)}")
p(f"s_lshl_b32 {s(sT0)}, {s(sT1)}, 5")
p(f"v_xor_b32 {v(SB_)}, {s(sT0)}, {v(TX)}")
p(f"v_add_u32 {v(SB_)}, {STG+2*REG}, {v(SB_)}")
p(f"s_lshr_b32 {s(sT0)}, {s(sw)}, 1")
p(f"s_lshl_b32 {s(sT0)}, {s(sT0)}, 5")
p(f"v_xor_b32 {v(SA)}, {s(sT0)}, {v(TX)}")
p(f"s_and_b32 {s(sT0)}, {s(sw)}, 1")
p(f"s_mul_i32 {s(sT0)}, {s(sT0)}, {REG}")
p(f"s_add_u32 {s(sT0)}, {s(sT0)}, {STG}")
p(f"v_add_u32 {v(SA)}, {s(sT0)}, {v(SA)}")
p(f"v_add_u32 {v(SC_)}, {4*REG}, {v(SA)}")
p(f"s_and_b32 {s(sT0)}, {s(sw)}, 4")
p(f"v_lshrrev_b32 {v(TX)}, 3, {v(n_)}")
p(f"v_add_u32 {v(TX)}, {s(sT0)}, {v(TX)}")
p(f"v_mul_u32_u24 {v(TX)}, {REG}, {v(TX)}")
p(f"v_lshl_add_u32 {v(TX)}, v1, 4, {v(TX)}")
p(f"v_and_b32 {v(TX+1)}, 7, v0")
p(f"v_lshl_add_u32 {v(TBA)}, {v(TX+1)}, 7, {v(TX)}")


def gRDB():
    p(f"v_and_b32 {v(TX+1)}, 8, v0")
    p(f"v_lshlrev_b32 {v(TX+1)}, 2, {v(TX+1)}")
    p(f"v_lshl_add_u32 {v(TX+1)}, {v(n_)}, 7, {v(TX+1)}")
    p(f"v_add_u32 {v(TX+1)}, {s(sLB)}, {v(TX+1)}")
    p(f"v_and_b32 {v(TX+2)}, 2, v0")
    p(f"v_lshlrev_b32 {v(TX+2)}, 1, {v(TX+2)}")
    p(f"v_xor_b32 {v(TX+2)}, {v(TX+2)}, v1")
    p(f"v_lshl_add_u32 {v(RDB0)}, {v(TX+2)}, 4, {v(TX+1)}")
    p(f"v_xor_b32 {v(TX+2)}, 4, {v(TX+2)}")
    p(f"v_lshl_add_u32 {v(RDB1)}, {v(TX+2)}, 4, {v(TX+1)}")


def gRDT():
    p(f"v_and_b32 {v(TX+1)}, 8, v0")
    p(f"v_lshlrev_b32 {v(TX+1)}, 3, {v(TX+1)}")
    p(f"v_lshl_add_u32 {v(TX+2)}, v1, 5, {v(X0)}")
    p(f"v_xor_b32 {v(TX+2)}, {v(TX+2)}, {v(TX+1)}")
    p(f"v_add_u32 {v(RDT)}, {s(sLB)}, {v(TX+2)}")


def gTAD():
    p(f"s_add_u32 {s(sT0)}, {s(sLB)}, {TB}")
    p(f"v_lshl_add_u32 {v(TADR)}, {v(c_)}, 1, {s(sT0)}")
    p(f"v_lshl_add_u32 {v(TADR)}, {'v1' if W44 else v(r_)}, 4, {v(TADR)}")
    p(f"s_add_u32 {s(sT0)}, {s(sLB)}, {OUTS}")
    p(f"v_lshl_add_u32 {v(OADR)}, v0, 1, {s(sT0)}")
    p(f"s_add_u32 {s(sT0)}, {s(sLB)}, {BI}")
    p(f"v_lshl_add_u32 {v(BADR)}, v1, 4, {s(sT0)}")


def gBWA():
    p(f"s_and_b32 {s(sT0)}, {s(sw)}, 3")
    p(f"s_lshl_b32 {s(sT0)}, {s(sT0)}, 6")
    p(f"s_add_u32 {s(sT0)}, {s(sT0)}, {BI}")
    p(f"v_and_b32 {v(TX+1)}, 7, v0")
    p(f"v_mul_u32_u24 {v(TX+1)}, {BSTR-128}, {v(TX+1)}")
    p(f"v_add3_u32 {v(BWA)}, {v(TBA)}, {v(TX+1)}, {s(sT0)}")


def gSEL():
    if not W44:
        p(f"v_cmp_eq_u32 vcc, {v(r_)}, v1")
    p(f"v_and_b32 {v(TX+1)}, 1, v0")
    p(f"v_lshlrev_b32 {v(TX+1)}, 4, {v(TX+1)}")
    p(f"v_lshlrev_b32 {v(TX+1)}, {v(TX+1)}, 1")
    if not W44:
        p(f"v_cndmask_b32 {v(TX+1)}, 0, {v(TX+1)}, vcc")
    p(f"v_cmp_gt_u32 vcc, 2, {v(c_)}")
    p(f"v_mov_b32 {v(ONE+1)}, 0")
    p(f"v_mov_b32 {v(ONE)}, 0x3f80")
    p(f"v_cndmask_b32 {v(SEL0)}, 0, {v(TX+1)}, vcc")
    p(f"v_cmp_eq_u32 vcc, 0, {v(n_)}")
    p(f"v_sub_u32 {v(SEL1)}, {v(TX+1)}, {v(SEL0)}")
    p(f"v_mul_u32_u24 {v(IDN)}, 0x3f80, {v(SEL0)}")
    p(f"v_cndmask_b32 {v(N0M)}, 0, -1, vcc")
    p(f"v_mul_u32_u24 {v(IDN+1)}, 0x3f80, {v(SEL1)}")


def gZER():
    for j in range(8):
        p(f"v_mov_b32 {v(XT+j)}, 0")
    for j in range(4):
        p(f"v_mov_b32 {v(S+j)}, 0")
        p(f"v_mov_b32 {v(ACC+j)}, 0")


def gB2():
    p(f"s_lshl_b32 {s(sB2)}, {s(sB2)}, 16")
    for r in range(4):
        p(f"v_and_b32 {v(B2+r)}, {s(sB2)}, {v(N0M)}")


def gPRI():
    if opt["prio"]:
        p(f"s_add_u32 {s(sT0)}, {s(sLB)}, {PRG}")
        p(f"v_lshl_add_u32 {v(DG+5)}, v0, 2, {s(sT0)}")
        p(f"ds_write_b32 {v(DG+5)}, {v(ONE+1)}")
        p(f"s_xor_b32 {s(sT0)}, {s(sw)}, 4")
        p(f"s_mul_i32 {s(sT0)}, {s(sT0)}, {REG}")
        p(f"s_add_u32 {s(sT0)}, {s(sT0)}, {PRG}")
        p(f"v_writelane_b32 {v(DG+5)}, {s(sT0)}, 1")
    if opt["swap"]:
        p(f"v_mov_b32 {v(DG+6)}, {s(sLB)}")
        p(f"ds_write_b32 {v(DG+6)}, {v(ONE+1)} offset:{KEY}")
        p(f"ds_write_b32 {v(DG+6)}, {v(ONE+1)} offset:{TKT}")
        p(f"s_mov_b32 {s(sDLB)}, 0")
        p(f"s_mov_b32 {s(sDG)}, 0")


PLACE = dict(zip((gSEL, gBWA, gPRI, gB2, gRDB, gRDT, gTAD, gZER), (int(x) for x in str(opt["place"])[1:])))


def groups(k):
    for f, w_ in PLACE.items():
        if w_ == k:
            f()


groups(0)
if opt["ym"]:
    load_b1()
    p(f"s_cmp_ge_u32 {s(sw)}, 4")
    p("s_cbranch_scc0 L_old3z")
    p(f"buffer_load_dwordx4 {v(MSK,4)}, v3, {s(SM,4)}, {s(sOFF)} offen {NTM}")
    p("L_old3z:")


def late_loads():
    if opt["tlb"]:
        p(f"s_add_u32 {s(sT0)}, {s(sw)}, 1")
        p(f"s_and_b32 {s(sT0)}, {s(sT0)}, 6")
        p("s_cbranch_scc1 L_notouch")
        p(f"s_mov_b32 {s(sT0)}, {PSTR*25600}")
        p(f"v_mul_lo_u32 v255, v0, {s(sT0)}")
        p(f"s_mul_i32 {s(sT0)}, {s(sW)}, 51200")
        p(f"s_and_b32 {s(sT1)}, {s(sw)}, 1")
        p(f"s_mul_i32 {s(sT1)}, {s(sT1)}, {51200-128}")
        p(f"s_add_u32 {s(sT0)}, {s(sT0)}, {s(sT1)}")
        p(f"v_add_u32 v255, {s(sT0)}, v255")
        p("s_mov_b64 exec, 14")
        p(f"global_load_dword v255, v255, s[6:7] {NT}")
        p("s_mov_b64 exec, -1")
        p("L_notouch:")
    for j in range(1, 4):
        p(f"s_add_u32 {s(sOFF)}, {s(sOFF)}, {PSTR*400}")
        p(f"buffer_load_dwordx4 {v(MSK+4*j,4)}, v3, {s(SM,4)}, {s(sOFF)} offen {NTM}")
    p(f"v_lshlrev_b32 {v(TX+3)}, 3, v1")
    p(f"v_lshl_add_u32 {v(TX+3)}, {v(TX+4)}, 5, {v(TX+3)}")
    p(f"global_load_dwordx2 {v(W2R,2)}, {v(TX+3)}, s[14:15]")


G2 = opt["g2"]
if not G2:
    late_loads()
LL = 0 if G2 else 4
NE = D - 2
IDX = ZB


def idx_reads():
    for t in range(D):
        p(f"ds_read_u8 {v(IDX+2*t)}, {v(RDL)} offset:{t*16}")
        p(f"ds_read_u8 {v(IDX+2*t+1)}, {v(RDL)} offset:{t*16+8}")


def tiles(t0, t1, bits, tag):
    for t in range(t0, t1):
        if t > 0:
            p(f"s_bitcmp0_b64 {s(bits,2)}, {t+1}")
            p(f"s_cbranch_scc1 L_noadv{tag}{t}")
            adv_hist()
            if opt["swap"]:
                p(f"s_sub_u32 {s(sKA)}, {s(sKA)}, 1")
            p(f"L_noadv{tag}{t}:")
        p(m0_half(t, 0))
        p(f"v_mov_b32 {v(VA)}, {v(IDX+2*t)}")
        p(f"v_mov_b32 {v(VB)}, {v(IDX+2*t+1)}")
        p(dma_half(0))
        if not opt["m1"]:
            p(m0_half(t, 1))
            p("s_nop 0")
        p(dma_half(1))


issued = [0]


def early(n):
    if n == 0:
        return
    t0 = issued[0]
    p(f"s_cmp_eq_u32 {s(sEARLY)}, 0")
    p(f"s_cbranch_scc1 L_skip{t0}")
    tiles(t0, t0 + n, F, "e")
    p(f"L_skip{t0}:")
    issued[0] += n


def first_pair():
    q_total(0, 0)
    t = q_test(0)
    for x in t[:8]:
        p(x)
    for step in range(5):
        p(q_scan(0, step))
        for x in t[8 + step:9 + step]:
            p(x)
    p(f"v_cmp_ne_u32 vcc, 0, {v(NBA)}")
    q_lanes(0)
    p(f"s_mov_b32 {s(sEARLY)}, 0")
    p("s_cbranch_vccnz L_late")
    q_ranks(0, 0)
    p(f"s_add_u32 {s(sT0)}, {s(sLB)}, {L0+16*D}")
    p(f"s_cmp_ge_u32 {s(sBASE)}, {s(sT0)}")
    q_write(0)
    p("s_cbranch_scc0 L_late")
    p(f"s_mov_b32 {s(sEARLY)}, 1")
    idx_reads()
    p("s_waitcnt lgkmcnt(0)")
    tiles(0, NE, F, "e")
    p(f"s_setpc_b64 {s(RET,2)} ; ret=L_fp")
    p("L_late:")
    p("s_waitcnt vmcnt(0)")
    p(f"s_setpc_b64 {s(RET,2)} ; ret=L_fp")


stamp()
jit()
p(f"s_cmp_ge_u32 {s(sw)}, 4")
p("s_cbranch_scc1 L_young1")
p(f"s_waitcnt vmcnt({6+LL}) lgkmcnt(0)")
p(f"s_call_b64 {s(RET,2)}, L_fp")
p(f"s_waitcnt vmcnt({1+LL+2*NE})")
p("s_branch L_old1")
p("L_young1:")
p(f"s_waitcnt vmcnt({1+LL+opt['ym']})")
p("L_old1:")
cst("preB1")
p(f"s_waitcnt lgkmcnt(0)")
p("s_barrier")
stamp()
cst("B1")
jit()
RWA, RWC, RWD, RBB, RBC, TP, DB, DA, DD = CA, CA + 4, CA + 8, CA + 12, CA + 20, CA + 28, CA + 44, CA + 52, CD
for (dst, base) in ((RBB, 0), (RBC, 2)):
    for ks in range(2):
        for u in range(2):
            p(f"ds_read_b64_tr_b16 {v(dst+4*ks+2*u,2)}, {v(SB_)} offset:{(base+ks)*REG+u*512}")
for j in range(2):
    for ks in range(2):
        p(f"ds_read_b128 {v(TP+8*j+4*ks,4)}, {v(TBA)} offset:{TB+j*2*REG+ks*64}")
for u in range(2):
    p(f"ds_read_b64_tr_b16 {v(RWA+2*u,2)}, {v(SA)} offset:{u*512}")
    p(f"ds_read_b64_tr_b16 {v(RWC+2*u,2)}, {v(SC_)} offset:{u*512}")
    p(f"ds_read_b64_tr_b16 {v(RWD+2*u,2)}, {v(SC_)} offset:{2*REG+u*512}")
p(f"s_cmp_ge_u32 {s(sw)}, 4")
p("s_cbranch_scc1 L_young2")
p(f"s_waitcnt vmcnt({LL+2*NE})")
p("s_branch L_old2")
p("L_young2:")
p(f"s_waitcnt vmcnt({LL+opt['ym']})")
p("L_old2:")
if G2:
    late_loads()
for j in range(2):
    p(f"v_lshlrev_b32 {v(DB+2*j)}, 16, {v(B1R+j)}")
    p(f"v_and_b32 {v(DB+2*j+1)}, 0xffff0000, {v(B1R+j)}")
groups(1)
jit()
cst("firstpair")
p("s_waitcnt lgkmcnt(0)")
for j in range(8):
    p(f"v_xor_b32 {v(RBC+j)}, 0x80008000, {v(RBC+j)}")
for u in range(2):
    p(f"{DIAGMM} {v(DA+4*u,4)}, {v(IDN,2)}, {v(RWA+2*u,2)}, 0")
    p(f"{DIAGMM} {v(DD+4*u,4)}, {v(IDN,2)}, {v(RWD+2*u,2)}, 0")
for u in range(2):
    p(f"{DIAGMM} {v(DA+4*u,4)}, {v(IDN,2)}, {v(RWC+2*u,2)}, {v(DA+4*u,4)}")
for j in (1, 0):
    first = True
    for (src) in (RBB, RBC):
        for ks in range(2):
            c = v(DB, 4) if first else v(DB + 4 * j, 4)
            p(f"v_mfma_f32_16x16x32_bf16 {v(DB+4*j,4)}, {v(src+4*ks,4)}, {v(TP+8*j+4*ks,4)}, {c}")
            first = False
for j in range(8):
    p(f"v_mul_f32 {v(DA+j)}, {s(sC)}, {v(DA+j)}")
for j in range(8):
    p(f"v_mul_f32 {v(DD+j)}, {s(sC)}, {v(DD+j)}")
p(f"s_add_u32 {s(sT0)}, {s(sLB)}, {XCH}")
p(f"v_add_u32 v3, {s(sT0)}, v2")
for j in range(4):
    p(f"v_cvt_pk_bf16_f32 {v(DD+j)}, {v(DD+2*j)}, {v(DD+2*j+1)}")
for j in range(8):
    p(f"v_mul_f32 {v(DB+j)}, {s(sC)}, {v(DB+j)}")
p(f"ds_write_b128 v3, {v(DA,4)}")
p(f"ds_write_b128 v3, {v(DA+4,4)} offset:1024")
p(f"ds_write_b128 v3, {v(DD,4)} offset:2048")
p(f"ds_write_b128 {v(BWA)}, {v(DB,4)}")
p(f"ds_write_b128 {v(BWA)}, {v(DB+4,4)} offset:{2*REG}")
p(f"v_add_u32 v3, {XCH}, v2")
p(f"v_add_u32 {v(TX)}, {4*REG}, v3")
cst("preB3")
p("s_waitcnt lgkmcnt(0)")
p("s_barrier")
cst("B3")
jit()
stamp()
def const_reads(w0, w1):
    if opt.get("xc"):
        return
    for w_ in range(w0, w1):
        a = "v3" if w_ < 4 else v(TX)
        p(f"ds_read_b128 {v(CA+8*w_,4)}, {a} offset:{(w_&3)*REG}")
        p(f"ds_read_b128 {v(CA+8*w_+4,4)}, {a} offset:{(w_&3)*REG+1024}")
        p(f"ds_read_b128 {v(CD+4*w_,4)}, {a} offset:{(w_&3)*REG+2048}")


p(f"s_cmp_ge_u32 {s(sw)}, 4")
p("s_cbranch_scc0 L_old3")
if opt["yp"]:
    p("s_setprio 2")
if opt["ym"]:
    p("s_waitcnt vmcnt(4)")
p(f"s_call_b64 {s(RET,2)}, L_fp")
if opt["y2"]:
    p("s_branch L_yng3")
p("L_old3:")
p(f"s_call_b64 {s(RET,2)}, L_t23")
p("L_yng3:")
const_reads(0, 3)
groups(2)
p(f"s_waitcnt vmcnt({2*NE if opt['y2'] else 2*D})")
cst("tiles23")
for i in range(3):
    q_total(i, i + 1)
t = q_test(1) + q_test(2) + q_test(3)
for x in t[:9]:
    p(x)
for step in range(5):
    for i in range(3):
        p(q_scan(i, step))
const_reads(3, 5)
for x in t[9:]:
    p(x)
p(f"v_cmp_ne_u32 vcc, 0, {v(NBA)}")
for i in range(3):
    q_lanes(i)
p("s_cbranch_vccnz L_general")
q_ranks(0, 1)
q_ranks(1, 2)
q_write(0)
q_ranks(2, 3)
q_write(1)
const_reads(5, 8)
t_reads()
q_write(2)
if opt["y2"]:
    p(f"s_cmp_ge_u32 {s(sw)}, 4")
    p("s_cbranch_scc0 L_old3b")
    p(f"s_call_b64 {s(RET,2)}, L_t23")
    p("L_old3b:")
p("L_listed:")
stamp()
jit(True)
if opt["swap"]:
    if opt.get("krow", 0):
        p(f"s_and_b32 {s(sT0)}, {s(A0+10)}, 0x1ff")
        p(f"s_lshl_b32 {s(sT0)}, {s(sT0)}, 3")
    else:
        p(f"s_sub_u32 {s(sT0)}, {s(sE3)}, {s(sB3)}")
    p(f"s_or_b32 {s(sT0)}, {s(sT0)}, {s(sw)}")
    p(f"s_and_b32 {s(sT1)}, {s(NB)}, 0x40000000")
    p(f"s_or_b32 {s(sT0)}, {s(sT0)}, {s(sT1)}")
    p(f"s_bitset1_b32 {s(sT0)}, 31")
    for x, r in enumerate((sT0, sB3, sM3, sE3)):
        p(f"v_mov_b32 {v(ZA+x)}, {s(r)}")
    p("s_mov_b64 exec, 1")
    p(f"ds_write_b128 {v(DG+6)}, {v(ZA,4)} offset:{KEY}")
    p("s_mov_b64 exec, -1")
if opt["prio"]:
    step = D if opt["prio"] == 2 else 2 * D
    p(f"s_sub_u32 {s(sT0)}, {s(sBASE)}, {s(sLB)}")
    p(f"s_sub_u32 {s(sT0)}, {s(sT0)}, {L0}")
    p(f"s_lshr_b32 {s(sT0)}, {s(sT0)}, 3")
    if opt["bias"]:
        p(f"s_lshr_b32 {s(sT1)}, {s(sw)}, 2")
        p(f"s_mul_i32 {s(sT1)}, {s(sT1)}, {2*opt['bias']}")
        p(f"s_add_u32 {s(sT0)}, {s(sT0)}, {s(sT1)}")
    p(f"s_sub_u32 {s(sT1)}, 0, {s(sT0)}")
    p(f"v_mov_b32 {v(PADR)}, {v(DG+5)}")
    p(f"v_mov_b32 {v(PRV)}, {s(sT0)}")
    p(f"v_mov_b32 {v(PINC)}, {-step}")
    p(f"v_writelane_b32 {v(PRV)}, {s(sT1)}, 1")
    p(f"v_writelane_b32 {v(PINC)}, {step}, 1")
    p(f"ds_add_u32 {v(PADR)}, {v(PRV)}")
p(f"s_cmp_eq_u32 {s(sEARLY)}, 1")
p("s_cbranch_scc1 L_nolate")
idx_reads()
p("s_waitcnt lgkmcnt(0)")
tiles(0, D, F, "l")
p("L_nolate:")
for hb in range(4):
    for j in range(2):
        p(f"v_and_b32_dpp {v(W2+2*hb+j)}, {v(W2R+j)}, {v(N0M)} quad_perm:[{hb},{hb},{hb},{hb}] row_mask:0xf bank_mask:0xf")
if opt.get("xp"):
    for j in range(opt["xp"]):
        p("s_nop 15")
cst("precompactdone")
p(f"s_waitcnt vmcnt({2*(D-1)}) lgkmcnt(0)")
read_xb(0, 0)
read_xb(0, 1)
wbuild()
stamp()
stamp(33)
cst("wbuilt")
if STAMP == 4:
    p("s_waitcnt lgkmcnt(0)")
    p("v_mov_b32 v254, 0")
    for j, r in enumerate((38,80,82,96,98,44,46,48,50,16)):
        p(f"v_writelane_b32 v254, s{r}, {j}")
for j in range(8):
    p(g1(j))
p(f"s_waitcnt vmcnt({2*(D-2)})")
read_xb(1, 0)
read_xb(1, 1)
p(f"ds_read_u8 {v(VA)}, {v(RDL)} offset:{D*16}")
p(f"ds_read_u8 {v(VB)}, {v(RDL)} offset:{D*16+8}")
event_mask()
p(f"s_cmp_lg_u64 {s(NB,2)}, 0")
if opt.get("so"):
    p("s_cbranch_scc1 L_gen2")
    p(f"s_getreg_b32 {s(sT0)}, hwreg(HW_REG_XCC_ID, 0, 1)")
    p(f"s_cmp_eq_u32 {s(sT0)}, 0")
    p("s_cbranch_scc1 Lf_mid")
    p("s_branch Lo_mid")
    p("L_gen2:")
else:
    p("s_cbranch_scc0 Lf_mid")
p(f"s_mul_i32 {s(sT0)}, {s(sW)}, 800")
p(f"s_add_u32 s8, s8, {s(sT0)}")
p("s_addc_u32 s9, s9, 0")
srd(SM, 8, 400)
p(f"s_movk_i32 {s(sMDL)}, {MDL0}")
p("s_branch Ls_mid")
p("L_fp:")
first_pair()
if opt["swap"]:
    A_, B_, KB_, TK_, KA_ = ZA + 8, ZA + 9, ZA + 10, ZA + 11, ZA + 12
    p("L_swap:")
    p(f"v_lshrrev_b32 {v(A_)}, 3, v0")
    p(f"v_and_b32 {v(B_)}, 7, v0")
    p(f"v_mul_u32_u24 {v(A_)}, {REG}, {v(A_)}")
    p(f"v_mul_u32_u24 {v(B_)}, {REG}, {v(B_)}")
    p(f"v_mov_b32 {v(TK_)}, 1")
    p("s_mov_b64 exec, 1")
    p(f"ds_add_rtn_u32 {v(TK_)}, {v(A_)}, {v(TK_)} offset:{TKT}")
    p("s_mov_b64 exec, -1")
    p("L_swap_poll:")
    p(f"ds_read_b32 {v(KB_)}, {v(B_)} offset:{KEY}")
    p(f"ds_read_b128 {v(KA_,4)}, {v(A_)} offset:{KEY}")
    p(f"v_and_b32 {v(TX+2)}, 56, v0")
    p("s_waitcnt lgkmcnt(0)")
    p(f"v_cmp_le_i32 vcc, 0, {v(KB_)}")
    p(f"v_cmp_gt_u32 {s(P0,2)}, {v(KB_)}, {v(KA_)}")
    p(f"v_lshlrev_b32 {v(TX+3)}, 1, {v(KB_)}")
    p(f"v_readfirstlane_b32 {s(sT0)}, {v(TK_)}")
    p("s_cbranch_vccnz L_swap_poll")
    p(f"v_lshrrev_b64 {v(TX,2)}, {v(TX+2)}, {s(P0,2)}")
    p(f"v_cmp_gt_i32 {s(P1,2)}, 0, {v(TX+3)}")
    p(f"v_and_b32 {v(TX)}, 0xff, {v(TX)}")
    p(f"v_bcnt_u32_b32 {v(TX)}, {v(TX)}, 0")
    p(f"v_cmp_eq_u32 vcc, {s(sT0)}, {v(TX)}")
    p(f"s_lshl_b32 {s(sT1)}, {s(sw)}, 3")
    p(f"s_ff1_i32_b64 {s(sT0)}, vcc")
    p(f"s_cmp_lg_u64 {s(P1,2)}, 0")
    p(f"s_cselect_b32 {s(sT0)}, {s(sT1)}, {s(sT0)}")
    p(f"s_sub_u32 {s(sT3)}, {s(sT0)}, {s(sT1)}")
    p(f"v_readlane_b32 {s(sT1)}, {v(KA_+2)}, {s(sT0)}")
    p(f"v_readlane_b32 {s(sT2)}, {v(KA_+3)}, {s(sT0)}")
    p(f"v_readlane_b32 {s(sT0)}, {v(KA_+1)}, {s(sT0)}")
    p(f"s_mul_i32 {s(sDLB)}, {s(sT3)}, {REG // 8}")
    p(f"s_lshl_b32 {s(sDG)}, {s(sT3)}, 5")
    p(f"s_mul_i32 {s(sT3)}, {s(sT3)}, 6400")
    p(f"s_add_u32 {s(sRO)}, {s(sRO)}, {s(sT3)}")
    p(f"s_mov_b32 {s(sKA)}, 8")
    p(f"s_sub_u32 {s(sB3)}, {s(sT0)}, {s(sB3)}")
    p(f"v_add_u32 {v(RDL)}, {s(sB3)}, {v(RDL)}")
    p(f"s_sub_u32 {s(sE3)}, {s(sT2)}, {s(sE3)}")
    p(f"s_sub_u32 {s(sE3)}, {s(sE3)}, {s(sB3)}")
    for r in (sT1, sT2):
        p(f"s_sub_u32 {s(r)}, {s(r)}, {s(sT0)}")
        p(f"s_lshr_b32 {s(r)}, {s(r)}, 4")
        p(f"s_add_u32 {s(r)}, {s(r)}, {s(sU)}")
        p(f"s_bitset1_b64 {s(F,2)}, {s(r)}")
    event_mask()
    if opt["prio"]:
        p(f"s_ashr_i32 {s(sE3)}, {s(sE3)}, 3")
        p(f"v_mov_b32 {v(A_)}, {s(sE3)}")
        p(f"s_sub_u32 {s(sE3)}, 0, {s(sE3)}")
        p(f"v_writelane_b32 {v(A_)}, {s(sE3)}, 1")
        p(f"ds_add_u32 {v(PADR)}, {v(A_)}")
    p(f"s_cmp_lg_u32 {s(sKW)}, 2")
    p(f"s_cselect_b32 {s(sM3)}, 1, -1")
    p("s_cbranch_scc1 L_swap_ret")
    p(f"v_add_u32 {v(TADR)}, {s(sDLB)}, {v(TADR)}")
    p(f"v_add_u32 {v(BADR)}, {s(sDLB)}, {v(BADR)}")
    t_reads()
    p("L_swap_ret:")
    p(f"s_setpc_b64 {s(RET,2)} ; ret=L_swap")
p("L_t23:")
p(f"s_cmp_eq_u32 {s(sEARLY)}, 0")
p("s_cbranch_scc1 L_skip23")
tiles(NE, D, F, "e")
p(f"s_setpc_b64 {s(RET,2)} ; ret=L_t23")
p("L_skip23:")
p("s_waitcnt vmcnt(0)")
p(f"s_setpc_b64 {s(RET,2)} ; ret=L_t23")
mainloop("f", False)
p("L_store:")
p(f"s_add_u32 {s(sT0)}, {s(sLB)}, {OUTS}")
p(f"v_lshl_add_u32 {v(TX+1)}, v0, 4, {s(sT0)}")
if opt["swap"]:
    p(f"s_bfm_b64 exec, 16, 48")
    p(f"v_add_u32 {v(VOUT)}, {s(sDG)}, {v(VOUT)}")
    p("s_mov_b64 exec, -1")
p(f"ds_read_b128 {v(ZB,4)}, {v(TX+1)}")
p("s_waitcnt lgkmcnt(0)")
p(f"global_store_dwordx4 {v(VOUT)}, {v(ZB,4)}, s[18:19] {NTO}")
if STAMP:
    p("s_mov_b64 exec, -1")
    stamp(34)
    p(f"v_writelane_b32 v254, {s(sBASE)}, 15")
    p("s_getreg_b32 s96, hwreg(HW_REG_XCC_ID)")
    p("v_writelane_b32 v254, s96, 14")
    p("s_getreg_b32 s96, hwreg(HW_REG_HW_ID)")
    p("v_writelane_b32 v254, s96, 13")
    srd(SM, 100, 2048 * 256)
    p(f"s_lshl_b32 {s(sT0)}, s2, 3")
    p(f"s_add_u32 {s(sT0)}, {s(sT0)}, {s(sw)}")
    p(f"s_lshl_b32 {s(sT0)}, {s(sT0)}, 8")
    p(f"v_lshlrev_b32 v1, 2, v0")
    p(f"buffer_store_dword v254, v1, {s(SM,4)}, {s(sT0)} offen")
if opt.get("twice"):
    p("s_waitcnt vmcnt(0) lgkmcnt(0)")
    p("s_barrier")
    p("s_setprio 0")
    p(f"s_lshl_b32 {s(sT0)}, {s(sw)}, 6")
    p(f"v_add_u32 v0, {s(sT0)}, v0")
    p("s_add_u32 s3, s3, 1")
    p("s_cmp_eq_u32 s3, 1")
    p("s_cbranch_scc1 L_again")
if opt.get("spin"):
    if opt.get("probe"):
        if opt["probe"] == "end":
            p("s_memrealtime s[98:99]")
            p("s_waitcnt lgkmcnt(0)")
        p("s_sub_u32 s98, s98, s80")
        p(f"s_mul_i32 s98, s98, {opt.get('pk', 4)}")
        p("s_add_u32 s80, s80, s98")
    p("L_spin:")
    p("s_memrealtime s[38:39]")
    p("s_waitcnt lgkmcnt(0)")
    p("s_sub_u32 s38, s38, s80")
    p(f"s_cmp_lt_i32 s38, {opt['spin']*100}")
    p("s_cbranch_scc1 L_spin")
p("L_end:")
p("s_endpgm")
if opt.get("so"):
    mainloop("o", False, opt["so"])
p("L_general:")
p("s_waitcnt vmcnt(0)")
const_reads(5, 8)
t_reads()
list_reset()
p(f"s_bfm_b64 {s(EX50,2)}, 50, 0")
p(f"s_mul_i32 {s(sT0)}, {s(sW)}, 800")
p(f"v_add_u32 {v(TX+1)}, {s(sT0)}, v2")
p(f"s_mov_b64 exec, {s(EX50,2)}")
for j in range(4):
    p(f"global_load_dwordx4 {v(MSK+4*j,4)}, {v(TX+1)}, s[8:9]")
    p(f"v_add_u32 {v(TX+1)}, {PSTR*400}, {v(TX+1)}")
p("s_mov_b64 exec, -1")
p(f"v_cmp_lt_u32 vcc, 24, v0")
p(f"v_cndmask_b32 {v(HI)}, 0, 1, vcc")
p(f"v_mul_u32_u24 {v(CV+1)}, 25, {v(HI)}")
p(f"v_sub_u32 {v(CV+1)}, v0, {v(CV+1)}")
p(f"v_mul_u32_u24 {v(CV+1)}, 0x80008, {v(CV+1)}")
p(f"v_add_u32 {v(CV)}, 0x10000, {v(CV+1)}")
p(f"v_add_u32 {v(CV+2)}, 0x50004, {v(CV+1)}")
p(f"v_add_u32 {v(CV+3)}, 0x70006, {v(CV+1)}")
p(f"v_add_u32 {v(CV+1)}, 0x30002, {v(CV+1)}")
p("s_waitcnt vmcnt(0)")
for j in range(4):
    compact_body(j)
p(f"s_mov_b32 {s(sEARLY)}, 0")
p(f"s_mov_b64 {s(NB,2)}, -1")
p("s_branch L_listed")
mainloop("s", True)

nn = p.fix_hazards(verbose=opt["verbose"])
for early_, old_, gen_ in ((a_, b_, c_) for a_ in (True, False) for b_ in (True, False) for c_ in (True, False)):
    force = [("L_skip", not early_), ("L_nolate", early_ and not gen_), ("L_young", not old_), ("L_old3", old_), ("L_general", gen_)]
    for e in check_waits(p, force + ([("L_late", False)] if early_ else [])) if early_ else check_waits(p, force, cut="L_noadve"):
        if STAMP != 4:
            sys.exit(f"WAIT-CHECK early={early_}: {e}")
hdr = open(__file__.rsplit("/", 1)[0] + "/../standalone__sequential_behavior_din__recsys.s.ref").read().split("\n")
head = [l for l in hdr if l.startswith(";") and "@launch" not in l and "Override" not in l and "grid=ceil" not in l]
out = "\n".join(head) + f"""
; @launch grid=({NWG},1,1) block=({WPB*64},1,1) lds={WPB*REG}
; generated by gen/gen.py {' '.join(sys.argv[1:])}
.amdgcn_target "amdgcn-amd-amdhsa--gfx950"
.text
.globl {NAME}
.p2align 8
.type {NAME},@function
""" + p.text() + f""".section .rodata,"a"
.p2align 6
.amdhsa_kernel {NAME}
  .amdhsa_next_free_vgpr 256
  .amdhsa_next_free_sgpr 102
  .amdhsa_accum_offset 256
  .amdhsa_group_segment_fixed_size 0
  .amdhsa_kernarg_size 80
  .amdhsa_user_sgpr_count 2
  .amdhsa_user_sgpr_kernarg_segment_ptr 1
  .amdhsa_system_sgpr_workgroup_id_x 1
.end_amdhsa_kernel
"""
sys.stdout.write(out)
```

```python
import sys
from asmlib import Prog, check_waits

opt = dict(yf=0, tlb=0, g2=1, ym=1, swap=1, bias=1, y2=1, yp=0, vx=0, m1=1, map=0, place=900010000, D=4, nt="nt", ntm="nt", nto="sc0 sc1", verbose=0, prio=1, sched="h")
for a in sys.argv[1:]:
    k, v = a.split("=", 1)
    opt[k] = int(v) if v.lstrip("-").isdigit() else v.replace("+", " ")
D = opt["D"]
NT, NTM, NTO = opt["nt"], opt["ntm"], opt["nto"]
STAMP = opt.get("stamp", 0)
assert not (STAMP == 4 and opt["swap"])

NAME = "standalone__sequential_behavior_din__recsys_kernel"
NWG, WPB = 256, 8
NWAVE = NWG * WPB
KB = 16384 // NWAVE
REG = opt.get('reg', 20480)
SLOT = 2080
TB = D * SLOT
BI = TB + 1024
BSTR = 272
XCH = BI + 8 * BSTR
PRG = XCH + 3072
KEY = PRG + 256
OUTS = PRG + 288
TKT = PRG + 272
LI = REG - 2048
L0 = LI + 16
assert OUTS + 1024 <= LI - 2048 and LI + 2048 <= REG and LI % 2048 == 0 and REG % 2048 == 0
STG = (D - 2) * SLOT
CNEG = 0xBFB8AA3B
PSTR, WGSTR = (16, 64) if opt["map"] & 1 else (4096, 16)
LGP = PSTR.bit_length() - 1
DLT0, DLT1 = 25600, (PSTR - 1) * 25600
MDL0, MDL1 = 400, (PSTR - 1) * 400

CA, CD, W, ZA, ZB, BIAS, XB, XT, W2, B2, S, ACC, DG, TR, ONE, VA, VB = \
    4, 68, 100, 132, 148, 164, 180, 188, 196, 204, 208, 212, 216, 224, 228, 230, 232
RDB0, RDB1, RDT, RDL, TADR, BADR, OADR, SEL0, SEL1, VOUT, RDM = range(234, 245)
TX = 246
PRV, PADR, PINC = 1, 2, 3
MSK = W
SH, SM, SH2 = 20, 24, 40
EX50, sB2, sDL, sMDL, sSGN, sDL1 = 28, 30, 31, 32, 33, 51
sLB, sW, sw = 52, 53, 54
F = 56
H = 36
sKA, sKW = 60, 61
sBASE, sK, sT0, sT1, sT2, sT3 = 64, 65, 66, 67, 55, 95
A0 = 68
NB, P0, P1, P2 = 84, 86, 88, 90
sC, sOFF, sEARLY, sRO = 92, 93, 94, 35
sB3, sM3, sE3, sDLB, sKF, sU, sDG = 44, 45, 46, 47, 48, 49, 50
RET = 62


def v(a, n=1):
    return f"v{a}" if n == 1 else f"v[{a}:{a+n-1}]"


def s(a, n=1):
    return f"s{a}" if n == 1 else f"s[{a}:{a+n-1}]"


p = Prog()
nstamp = [0]


def stamp(cyc=None):
    if STAMP == 4:
        return
    if not STAMP or (STAMP == 3 and cyc is None):
        return
    p("s_memrealtime s[96:97]")
    p("s_waitcnt lgkmcnt(0)")
    p(f"v_writelane_b32 v254, s96, {nstamp[0]}")
    nstamp[0] += 1
    if cyc is not None:
        p("s_memtime s[96:97]")
        p("s_waitcnt lgkmcnt(0)")
        p(f"v_writelane_b32 v254, s96, {cyc}")


ncyc = [0]


def cst(name):
    if opt.get("probe") == name:
        p("s_memrealtime s[98:99]")
        p("s_waitcnt lgkmcnt(0)")
    if STAMP == 4 and (not opt.get("arr") or name in ("entry", "kernarg") or name.startswith("arr")):
        sys.stderr.write(f"cst{ncyc[0]} = {name}\n")
        p(f"s_memtime {s((38,80,82,96,98,44,46,48,50,16)[ncyc[0]],2)}")
        ncyc[0] += 1


njit = [0]


def jit(long=False):
    if not opt.get("jitter"):
        return
    njit[0] += 1
    k = njit[0]
    p(f"s_mul_i32 s3, {s(sW)}, {37 + 2 * k + opt['jitter'] * 16}")
    p(f"s_add_u32 s3, s3, {k * 5}")
    p(f"s_lshr_b32 s3, s3, 2")
    p(f"s_and_b32 s3, s3, {7 if long else 3}")
    p("s_cmp_lg_u32 s3, 0")
    p(f"s_cbranch_scc1 L_jit{k}")
    for _ in range(10 if long else 1):
        p(f"s_sleep {127 if long else 30}")
    p(f"L_jit{k}:")


def srd(dst, ptr, nrec, stride=0):
    p(f"s_mov_b32 {s(dst)}, {s(ptr)}")
    p(f"s_and_b32 {s(dst+1)}, {s(ptr+1)}, 0xffff")
    if stride:
        p(f"s_or_b32 {s(dst+1)}, {s(dst+1)}, {stride << 16:#x}")
    p(f"s_mov_b32 {s(dst+2)}, {nrec}")
    p(f"s_mov_b32 {s(dst+3)}, 0x20000")


def m0_half(slot, j):
    return f"s_add_u32 m0, {s(sLB)}, {slot*SLOT+j*1056}"


def dma_half(j):
    if opt["m1"] and j:
        return f"buffer_load_dwordx4 {v(VB,2)}, {s(SH2,4)}, {s(sRO)} idxen offen offset:1056 {NT} lds"
    return f"buffer_load_dwordx4 {v((VA, VB)[j],2)}, {s(SH,4)}, {s(sRO)} idxen offen {NT} lds"


def adv_hist():
    p(f"s_add_u32 {s(sRO)}, {s(sRO)}, {s(sDL)}")
    p(f"s_min_u32 {s(sRO)}, {s(sRO)}, {16383*25600}")
    p(f"s_xor_b32 {s(sDL)}, {s(sDL)}, {DLT0 ^ DLT1:#x}")


R, CV, HI = ZA, ZA + 9, ZA + 13
AP, AT, QV, QH, NBA = W + 16, W + 22, W + 26, W + 30, W + 31
QR, QT, QE = (ZA, ZA + 8, BIAS), (BIAS + 8, BIAS + 12, XB), (XB + 4, XB + 5, XB + 6)
NT0, NT1 = ZB + 12, ZB + 13
CNT = 0xBFE0BFE0


def fbit(reg, k):
    p(f"s_lshr_b32 {s(sT3)}, {s(reg)}, 4")
    if 13 * (k + 1) + 1 < 64:
        p(f"s_bitset1_b64 {s(F,2)}, {s(sT3)}")
    else:
        p(f"s_lshl_b64 {s(P0,2)}, 1, {s(sT3)}")
        p(f"s_bitcmp1_b32 {s(reg)}, 10")
        p(f"s_cselect_b64 {s(P1,2)}, 0, {s(P0,2)}")
        p(f"s_cselect_b64 {s(P2,2)}, {s(P0,2)}, 0")
        p(f"s_or_b64 {s(F,2)}, {s(F,2)}, {s(P1,2)}")
        p(f"s_or_b64 {s(F+2,2)}, {s(F+2,2)}, {s(P2,2)}")


def compact_body(j):
    m = [MSK + 4 * j + x for x in range(4)]
    p(f"s_mov_b64 exec, {s(EX50,2)}")
    for e in range(8):
        p(f"v_cmp_neq_f16_sdwa {s(A0+2*e,2)}, {v(m[e>>1])}, 0 src0_sel:WORD_{e&1} src1_sel:WORD_0")
    p("s_mov_b64 exec, -1")
    p(f"v_mov_b32 {v(R)}, {s(sBASE)}")
    for e in range(8):
        p(f"v_mbcnt_lo_u32_b32 {v(R)}, {s(A0+2*e)}, {v(R)}")
        p(f"v_mbcnt_hi_u32_b32 {v(R)}, {s(A0+2*e+1)}, {v(R)}")
    p(f"s_add_u32 {s(sT2)}, {s(sBASE)}, 16")
    p(f"v_readlane_b32 {s(sT0)}, {v(R)}, 25")
    p(f"v_readlane_b32 {s(sT1)}, {v(R)}, 63")
    p(f"s_add_u32 {s(sBASE)}, {s(sT0)}, 15")
    p(f"s_and_b32 {s(sBASE)}, {s(sBASE)}, -16")
    p(f"s_max_u32 {s(sBASE)}, {s(sBASE)}, {s(sT2)}")
    p(f"s_sub_u32 {s(sT0)}, {s(sBASE)}, {s(sT0)}")
    p(f"v_mad_u32_u24 {v(R)}, {v(HI)}, {s(sT0)}, {v(R)}")
    p(f"s_mov_b32 {s(sT2)}, {s(sBASE)}")
    for e in range(7):
        p(f"v_addc_co_u32 {v(R+e+1)}, vcc, 0, {v(R+e)}, {s(A0+2*e,2)}")
    p(f"s_add_u32 {s(sT1)}, {s(sT1)}, {s(sT0)}")
    p(f"s_add_u32 {s(sT1)}, {s(sT1)}, 15")
    p(f"s_and_b32 {s(sT1)}, {s(sT1)}, -16")
    p(f"s_add_u32 {s(sBASE)}, {s(sBASE)}, 16")
    p(f"s_max_u32 {s(sBASE)}, {s(sBASE)}, {s(sT1)}")
    for e in range(8):
        p(f"s_mov_b64 exec, {s(A0+2*e,2)}")
        p(f"ds_write_b8{'_d16_hi' if e&1 else ''} {v(R+e)}, {v(CV+(e>>1))}")
    p("s_mov_b64 exec, -1")
    pair_bits(j, sT2)


def q_total(i, j):
    p(f"v_mfma_i32_16x16x64_i8 {v(QT[i],4)}, {v(AT,4)}, {v(MSK+4*j,4)}, 0")


def q_test(j):
    out = []
    if opt.get("xt"):
        return out
    for x in range(4):
        t = (NT0, NT1)[x & 1]
        out += [f"v_and_b32 {v(t)}, 0x800080, {v(MSK+4*j+x)}", f"v_mul_u32_u24 {v(t)}, 0x7f, {v(t)}",
                f"v_bitop3_b32 {v(NBA)}, {v(MSK+4*j+x)}, {v(t)}, {v(NBA)} bitop3:0xbe"]
    return out


def q_scan(i, step):
    dpp = "row_mask:0xf bank_mask:0xf bound_ctrl:0"
    if step == 0:
        return f"v_mov_b32_dpp {v(QE[i])}, {v(QT[i])} row_shr:1 {dpp}"
    return f"v_add_u32_dpp {v(QE[i])}, {v(QE[i])}, {v(QE[i])} row_shr:{1 << (step-1)} {dpp}"


def q_lanes(i):
    p(f"v_readlane_b32 {s(A0+4*i)}, {v(QE[i])}, 6")
    p(f"v_readlane_b32 {s(A0+4*i+1)}, {v(QT[i]+1)}, 6")
    p(f"v_readlane_b32 {s(A0+4*i+2)}, {v(QE[i])}, 15")


def q_ranks(i, j):
    a = A0 + 4 * i
    p(f"s_add_u32 {s(sT0)}, {s(a)}, {s(a+1)}")
    p(f"s_add_u32 {s(sT0)}, {s(sT0)}, {s(sBASE)}")
    p(f"s_add_u32 {s(sT1)}, {s(sT0)}, 15")
    p(f"s_and_b32 {s(sT1)}, {s(sT1)}, -16")
    p(f"s_add_u32 {s(sT2)}, {s(sBASE)}, 16")
    p(f"s_max_u32 {s(sT1)}, {s(sT1)}, {s(sT2)}")
    p(f"s_sub_u32 {s(sT0)}, {s(sT1)}, {s(sT0)}")
    p(f"v_mad_u32_u24 {v(QE[i])}, {v(QH)}, {s(sT0)}, {v(QE[i])}")
    p(f"s_sub_u32 {s(sT2)}, {s(sBASE)}, 2048")
    for r in range(4):
        p(f"v_add_u32 {v(QT[i]+r)}, {s(sT2)}, {v(QE[i])}")
    p(f"s_add_u32 {s(sBASE)}, {s(sBASE)}, {s(a+2)}")
    p(f"s_add_u32 {s(sBASE)}, {s(sBASE)}, {s(sT0)}")
    p(f"v_mfma_i32_16x16x64_i8 {v(QR[i],4)}, {v(AP+2,4)}, {v(MSK+4*j,4)}, {v(QT[i],4)}")
    p(f"v_mfma_i32_16x16x64_i8 {v(QR[i]+4,4)}, {v(AP,4)}, {v(MSK+4*j,4)}, {v(QT[i],4)}")
    p(f"s_add_u32 {s(sBASE)}, {s(sBASE)}, 15")
    p(f"s_and_b32 {s(sBASE)}, {s(sBASE)}, -16")
    p(f"s_add_u32 {s(sT2)}, {s(sT1)}, 16")
    p(f"s_max_u32 {s(sBASE)}, {s(sBASE)}, {s(sT2)}")
    pair_bits(j, sT1)


def pair_bits(j, mid):
    if opt["swap"] and j == 3:
        p(f"s_mov_b32 {s(sM3)}, {s(mid)}")
        p(f"s_mov_b32 {s(sE3)}, {s(sBASE)}")
        return
    fbit(mid, 2 * j)
    fbit(sBASE, 2 * j + 1)
    if opt["swap"] and j == 2:
        p(f"s_mov_b32 {s(sB3)}, {s(sBASE)}")


def q_write(i):
    if opt.get("xw"):
        return
    if opt["vx"]:
        p(f"s_mov_b64 exec, {s(EX50,2)}")
    for e in range(8):
        p(f"ds_write_b8{'_d16_hi' if e&1 else ''} {v(QR[i]+e)}, {v(QV+(e>>1))}")
    if opt["vx"]:
        p("s_mov_b64 exec, -1")


W44 = 1
DIAGMM = "v_mfma_f32_4x4x4_16b_bf16" if W44 else "v_mfma_f32_16x16x16_bf16"


def wbuild():
    for x in range(4):
        p(f"v_mul_u32_u24 {v(DG+2*x)}, {v(TR+x)}, {v(SEL0)}")
        p(f"v_mul_u32_u24 {v(DG+2*x+1)}, {v(TR+x)}, {v(SEL1)}")
    T = [ZA, ZA + 8, TX]
    pairs = [(hb, ks) for hb in range(4) for ks in range(2)]

    def mm(j, u):
        hb, ks = pairs[j]
        blk = (hb * 2 + ks) * 2 + u
        p(f"{DIAGMM} {v(T[j%3]+4*u,4)}, {v(DG+2*(2*ks+u),2)}, {v(CD+2*blk,2)}, {v(CA+4*blk,4)}")

    def cv(j, r):
        hb, ks = pairs[j]
        p(f"v_cvt_pk_bf16_f32 {v(W+(hb*2+ks)*4+r)}, {v(T[j%3]+2*r)}, {v(T[j%3]+2*r+1)}")
    p(f"v_add_u32 {v(TADR)}, 128, {v(TADR)}")
    p(f"ds_read_b128 {v(BIAS,4)}, {v(BADR)}")
    mm(0, 0)
    p(f"ds_read_b128 {v(BIAS+4,4)}, {v(BADR)} offset:64")
    p(f"ds_read_b128 {v(BIAS+8,4)}, {v(BADR)} offset:128")
    mm(0, 1)
    p(f"ds_read_b128 {v(BIAS+12,4)}, {v(BADR)} offset:192")
    p(f"ds_read_u16 {v(TR)}, {v(TADR)}")
    mm(1, 0)
    p(f"ds_read_u16 {v(TR+1)}, {v(TADR)} offset:8")
    p(f"ds_read_u16 {v(TR+2)}, {v(TADR)} offset:64")
    mm(1, 1)
    p(f"ds_read_u16 {v(TR+3)}, {v(TADR)} offset:72")
    p(f"v_add_u32 {v(BADR)}, {BSTR}, {v(BADR)}")
    mm(2, 0)
    cv(0, 0); cv(0, 1)
    mm(2, 1)
    cv(0, 2); cv(0, 3)
    for j in range(1, 8):
        if j + 2 < 8:
            mm(j + 2, 0)
        cv(j, 0); cv(j, 1)
        if j + 2 < 8:
            mm(j + 2, 1)
        cv(j, 2); cv(j, 3)
    p("s_waitcnt lgkmcnt(0)")


def t_reads():
    for x in range(4):
        p(f"ds_read_u16 {v(TR+x)}, {v(TADR)} offset:{(x>>1)*64+(x&1)*8}")


def g1(j):
    hb, ks = j >> 1, j & 1
    c = v(BIAS + 4 * hb, 4) if ks == 0 else v(ZB + 4 * hb, 4)
    return f"v_mfma_f32_16x16x32_bf16 {v(ZB+4*hb,4)}, {v(W+(hb*2+ks)*4,4)}, {v(XB+4*ks,4)}, {c}"


def read_xb(slot, ks):
    p(f"ds_read_b128 {v(XB+4*ks,4)}, {v((RDB0, RDB1)[ks])} offset:{slot*SLOT}")


SCHED = {
    "e": "ia ib k1 ent EV mid P0 e0 e1 e2 e3 e4 e5 A0 s0 s1 L2 G0 e6 q0 t0 e7 G2 e8 q1 t1 A1 r0 q2 t2 e9 G1 r1 q3 t3 e10 G3 "
         "r2 e11 r3 c0 A2 e12 G4 r4 c1 E2 e13 r5 e14 r6 c2 e15 G6 L0 m0 r7 da A3 G5 m1 r8 db G7 P1 r9 c3 vm y0 y1 r10 c4 k0 r11 B r12 c5 "
         "r13 r14 r15 c6 c7",
    "f": "ia ib k1 ent EV mid P0 e0 e1 e2 e3 e4 e5 A0 s0 s1 L2 G0 e6 q0 t0 e7 G2 e8 q1 t1 A1 r0 q2 t2 e9 G1 r1 q3 t3 e10 G3 "
         "r2 e11 r3 c0 A2 e12 G4 r4 c1 E2 m0 L0 da e13 r5 e14 r6 c2 e15 G6 P1 r7 A3 G5 m1 r8 G7 r9 c3 db vm y0 y1 r10 c4 k0 r11 B r12 c5 "
         "r13 r14 r15 c6 c7",
    "g": "ia ib k1 ent EV mid P0 e0 e1 e2 e3 e4 e5 A0 s0 s1 L2 G0 e6 q0 t0 e7 G2 e8 q1 t1 A1 r0 q2 t2 e9 G1 r1 q3 t3 e10 G3 "
         "r2 e11 r3 c0 A2 e12 G4 r4 c1 E2 e13 r5 e14 m0 L0 da r6 c2 e15 G6 P1 r7 A3 G5 m1 r8 G7 r9 c3 db vm y0 y1 r10 c4 k0 r11 B r12 c5 "
         "r13 r14 r15 c6 c7",
    "h": "ia ib k1 ent EV mid P0 e0 e1 e2 e3 e4 e5 A0 s0 s1 L2 G0 e6 q0 t0 e7 G2 e8 q1 t1 A1 r0 q2 t2 e9 G1 r1 q3 t3 e10 G3 "
         "r2 e11 r3 c0 A2 e12 G4 r4 c1 E2 m0 L0 da m1 e13 db r5 e14 r6 c2 e15 G6 P1 r7 A3 G5 r8 G7 r9 c3 vm y0 y1 r10 c4 k0 r11 B r12 c5 "
         "r13 r14 r15 c6 c7",
    "l": "ia ib k1 ent EV mid P0 e0 e1 e2 e3 e4 e5 A0 s0 s1 L2 G0 e6 q0 t0 e7 e8 q1 t1 G2 A1 q2 t2 r0 e9 q3 t3 G1 r1 e10 G3 "
         "r2 e11 m0 L0 da m1 r3 db c0 A2 e12 G4 r4 c1 E2 e13 r5 e14 r6 c2 e15 G6 P1 r7 A3 G5 r8 G7 r9 c3 r10 c4 k0 r11 B r12 c5 "
         "r13 r14 r15 vm y0 y1 c6 c7",
    "s": "ia ib k1 ent EV mid P0 e0 e1 e2 e3 e4 e5 A0 s0 s1 L2 G0 e6 q0 t0 e7 G2 e8 q1 t1 A1 r0 q2 t2 e9 G1 r1 q3 t3 e10 G3 "
         "r2 e11 r3 c0 A2 e12 G4 r4 c1 E2 e13 r5 e14 r6 c2 e15 G6 r7 A3 G5 r8 G7 m0 L0 da P1 m1 r9 db c3 vm y0 y1 r10 c4 k0 r11 B r12 c5 "
         "r13 r14 r15 c6 c7",
}


def event_mask():
    p(f"s_lshr_b64 {s(P0,2)}, {s(F,2)}, 2")
    p(f"s_lshr_b64 {s(H,2)}, {s(F,2)}, {D+1}")
    p(f"s_or_b32 {s(H)}, {s(H)}, {s(P0)}")
    p(f"s_or_b32 {s(H)}, {s(H)}, {s(F)}")


def mainloop(tag, slow, sched=None):
    toks = SCHED[sched or opt["sched"]].split()

    def scale(off):
        p(f"ds_read_b32 {v(TX)}, {v(RDM)} offset:{off}")
        p("s_waitcnt lgkmcnt(0)")
        for r in range(4):
            p(f"v_bfe_u32 {v(TX+1+r)}, {v(TX)}, {8*r}, 8")
            p(f"v_lshlrev_b32 {v(TX+1+r)}, 1, {v(TX+1+r)}")
        for r in range(4):
            p(f"buffer_load_ushort {v(TX+1+r)}, {v(TX+1+r)}, {s(SM,4)}, 0 offen")
        p("s_waitcnt vmcnt(0)")
        for r in range(4):
            p(f"v_lshlrev_b32 {v(TX+1+r)}, 16, {v(TX+1+r)}")
            p(f"v_mul_f32 {v(S+r)}, {v(S+r)}, {v(TX+1+r)}")

    def flush(last=False):
        p(f"v_cvt_pk_bf16_f32 {v(TX)}, {v(ACC)}, {v(ACC)}")
        if not last:
            p(f"v_mov_b32 {v(ACC)}, 0")
        if STAMP == 1:
            p("s_memrealtime s[96:97]")
            p("s_memtime s[98:99]")
            p(f"s_lshl_b32 {s(sT0)}, {s(sK)}, 1")
            p(f"s_sub_u32 {s(sT0)}, {16+2*(KB-1)}, {s(sT0)}")
            p("s_waitcnt lgkmcnt(0)")
            p(f"s_mov_b32 m0, {s(sT0)}")
            p("v_writelane_b32 v254, s96, m0")
            p(f"s_add_u32 m0, m0, 1")
            p("v_writelane_b32 v254, s98, m0")
            p(f"s_sub_u32 {s(sK)}, {s(sK)}, 1")
        p(f"ds_write_b16 {v(OADR)}, {v(TX)}")
        if last:
            return
        p(f"v_add_u32 {v(OADR)}, 128, {v(OADR)}")
        if slow:
            p(f"s_add_u32 {s(SM)}, {s(SM)}, {s(sMDL)}")
            p(f"s_addc_u32 {s(SM+1)}, {s(SM+1)}, 0")
            p(f"s_xor_b32 {s(sMDL)}, {s(sMDL)}, {MDL0 ^ MDL1:#x}")

    def emit(u, toks, tail):
        ev = opt["prio"] and u in ((0, D // 2) if opt["prio"] == 2 else (0,))
        for t in toks:
            k, n = t[0], (int(t[1:]) if t[1:].isdigit() else None)
            if opt.get("nodma") and t in ("da", "db"):
                continue
            if opt.get("lite") and k == "r" and n >= 16 - opt["lite"]:
                continue
            if opt.get("nocomp") and k in "ercsAGqk" and n is not None:
                continue
            if t == "vm":
                p(f"s_waitcnt vmcnt({2*(D-2)})")
            elif k == "y":
                read_xb((u + 2) % D, n)
            elif t == "ent":
                if u == 0:
                    p(f"L{tag}_mid:")
            elif t in ("mid", "mi2"):
                if slow:
                    scale(u * 16 + (16 if t == "mi2" else 0))
            elif t == "ia" and opt.get("xv") and not tail:
                for j in range(opt["xv"]):
                    p(f"v_exp_f32 v255, {v(ZB+j)}")
                p(f"ds_read_u8 {v(VA)}, {v(RDL)} offset:{(u+D)*16}")
            elif t == "ia":
                p(f"ds_read_u8 {v(VA)}, {v(RDL)} offset:{(u+D)*16}")
            elif t == "ib":
                p(f"ds_read_u8 {v(VB)}, {v(RDL)} offset:{(u+D)*16+8}")
            elif t == "EV":
                p(f"s_bitcmp1_b32 {s(H)}, {u}")
                p(f"s_cbranch_scc1 L{tag}_ev{u}")
                p(f"L{tag}_evd{u}:")
            elif t == "E2":
                if tail:
                    p(f"s_bitcmp0_b64 {s(F,2)}, 1")
                    p(f"s_cbranch_scc1 L{tag}_tnf")
                    flush()
                    p(f"L{tag}_tnf:")
            elif t == "P0":
                if ev:
                    p(f"ds_add_rtn_u32 {v(PRV)}, {v(PADR)}, {v(PINC)}")
            elif t == "P1":
                if ev:
                    p(f"v_readfirstlane_b32 {s(sT0)}, {v(PRV)}")
                    p("s_setprio 0")
                    p(f"s_cmp_gt_i32 {s(sT0)}, 0")
                    p(f"s_cbranch_scc0 L{tag}_lo{u}")
                    p("s_setprio 1")
                    p(f"L{tag}_lo{u}:")
            elif t == "da":
                p(dma_half(0))
            elif t == "db":
                p(dma_half(1))
            elif t == "B":
                if u == D - 1:
                    p(f"s_lshr_b64 {s(F,2)}, {s(F,2)}, {D}")
                    p(f"s_lshl_b64 {s(P0,2)}, {s(F+2,2)}, {64-D}")
                    p(f"s_or_b64 {s(F,2)}, {s(F,2)}, {s(P0,2)}")
                    p(f"s_lshr_b64 {s(F+2,2)}, {s(F+2,2)}, {D}")
                    event_mask()
                    p(f"v_add_u32 {v(RDL)}, {16*D}, {v(RDL)}")
                    if slow:
                        p(f"v_add_u32 {v(RDM)}, {16*D}, {v(RDM)}")
            elif k == "m":
                if not (opt["m1"] and n):
                    p(m0_half(u, n))
            elif k == "e":
                p(f"v_exp_f32 {v(ZA+n)}, {v(ZB+n)}")
            elif k == "r":
                p(f"v_rcp_f32 {v(ZA+n)}, {v(ZA+n)}")
            elif k == "c":
                p(f"v_cvt_pk_bf16_f32 {v(ZA+n)}, {v(ZA+2*n)}, {v(ZA+2*n+1)}")
            elif k == "s":
                p(f"v_cvt_pk_bf16_f32 {v(S+n)}, {v(S+2*n)}, {v(S+2*n+1)}")
            elif k == "A":
                p(f"v_mfma_f32_4x4x4_16b_bf16 {v(ZA+4*n,4)}, {v(ONE,2)}, {v(ONE,2)}, {v(ZA+4*n,4)}")
            elif k == "G":
                p(g1(n))
            elif k == "q":
                p(f"v_mfma_f32_4x4x4_16b_bf16 {v(ACC,4)}, {v(S,2)}, {v(XT+2*n,2)}, {v(ACC,4)} cbsz:4 abid:{4*n}")
            elif k == "t":
                p(f"ds_read_b64_tr_b16 {v(XT+2*n,2)}, {v(RDT)} offset:{u*SLOT+n*512+(n>>1)*32}")
            elif k == "k":
                p(f"v_mfma_f32_16x16x32_bf16 {v(S,4)}, {v(ZA+4*n,4)}, {v(W2+4*n,4)}, {v(B2,4) if n == 0 else v(S,4)}")
            elif k == "L":
                p(f"s_waitcnt lgkmcnt({n})")
            else:
                raise ValueError(t)

    p(f"L{tag}_loop:")
    for u in range(D):
        emit(u, toks, False)
    p(f"s_branch L{tag}_loop")
    for u in range(D):
        p(f"L{tag}_ev{u}:")
        jit()
        p(f"s_bitcmp0_b64 {s(F,2)}, {u}")
        p(f"s_cbranch_scc1 L{tag}_nf{u}")
        flush()
        p(f"L{tag}_nf{u}:")
        p(f"s_bitcmp0_b64 {s(F,2)}, {u+D+1}")
        p(f"s_cbranch_scc1 L{tag}_na{u}")
        if opt["swap"]:
            p(f"s_sub_u32 {s(sKA)}, {s(sKA)}, 1")
            p(f"s_cbranch_scc0 L{tag}_ns{u}")
            p(f"s_mov_b32 {s(sU)}, {u+D+1}")
            p(f"s_call_b64 {s(RET,2)}, L_swap")
            p(f"ds_read_u8 {v(VA)}, {v(RDL)} offset:{(u+D)*16}")
            p(f"ds_read_u8 {v(VB)}, {v(RDL)} offset:{(u+D)*16+8}")
            adv_hist()
            p(f"s_bitcmp0_b64 {s(F,2)}, {u+2}")
            p(f"s_cbranch_scc1 L{tag}_evd{u}")
            p("s_waitcnt lgkmcnt(0)")
            p(f"s_branch L{tag}_e1{u}")
            p(f"L{tag}_ns{u}:")
        adv_hist()
        p(f"L{tag}_na{u}:")
        p(f"s_bitcmp0_b64 {s(F,2)}, {u+2}")
        p(f"s_cbranch_scc1 L{tag}_evd{u}")
        p(f"L{tag}_e1{u}:")
        p(f"s_sub_u32 {s(sKW)}, {s(sKW)}, 1")
        p(f"s_cbranch_scc1 L{tag}_last{u}")
        if opt["swap"]:
            p(f"s_cmp_lg_u32 {s(sKW)}, {s(sM3)}")
            p(f"s_cbranch_scc1 L{tag}_nw{u}")
            p(f"v_add_u32 {v(TADR)}, {s(sDLB)}, {v(TADR)}")
            p(f"v_add_u32 {v(BADR)}, {s(sDLB)}, {v(BADR)}")
            t_reads()
            p("s_waitcnt lgkmcnt(0)")
            p(f"L{tag}_nw{u}:")
        wbuild()
        p(f"s_branch L{tag}_evd{u}")
    for u in range(D):
        p(f"L{tag}_last{u}:")
        if u:
            p(f"v_add_u32 {v(RDT)}, {u*SLOT}, {v(RDT)}")
            p(f"s_lshr_b64 {s(F,2)}, {s(F,2)}, {u}")
            if slow:
                p(f"v_add_u32 {v(RDM)}, {16*u}, {v(RDM)}")
        if u < D - 1:
            p(f"s_branch L{tag}_tail")
    p(f"L{tag}_tail:")
    i1 = toks.index("EV")
    drop = lambda t: t in ("vm", "ia", "ib", "EV", "ent", "P0", "P1", "da", "db", "B", "L2") or (t[0] in "Gym" and t[1:].isdigit())
    emit(0, [t for t in toks[i1:] + toks[:i1] if not drop(t)] + ["mi2", "s0", "s1", "q0", "q1", "q2", "q3"], True)
    flush(last=True)
    if tag != "f":
        p("s_branch L_store")


p(f"{NAME}:")
if opt.get("twice"):
    p("s_mov_b32 s3, 0")
    p("L_again:")
if opt.get("spin"):
    p("s_memrealtime s[80:81]")
cst("entry")
if STAMP:
    if STAMP != 4:
        p("s_memrealtime s[98:99]")
        p("s_memtime s[96:97]")
    p("s_load_dwordx2 s[100:101], s[0:1], 72")
p("s_load_dwordx16 s[4:19], s[0:1], 0")
p(f"s_cmp_ge_u32 s2, {NWG}")
p("s_cbranch_scc1 L_end")
p("v_lshrrev_b32 v1, 6, v0")
p("v_and_b32 v0, 63, v0")
p(f"v_readfirstlane_b32 {s(sw)}, v1")
if opt["map"] & 2:
    p("s_and_b32 s3, s2, 7")
    p("s_lshl_b32 s3, s3, 5")
    p(f"s_lshr_b32 {s(sW)}, s2, 3")
    p(f"s_add_u32 {s(sW)}, {s(sW)}, s3")
    p(f"s_lshl_b32 {s(sW)}, {s(sW)}, {(WGSTR//2).bit_length()-1}")
else:
    p(f"s_lshl_b32 {s(sW)}, s2, {(WGSTR//2).bit_length()-1}")
p("v_lshlrev_b32 v2, 4, v0")
p("v_lshrrev_b32 v1, 4, v0")
p("v_and_b32 v3, 0xf0, v2")
p("v_lshlrev_b32 v3, 2, v3")
p(f"v_lshl_add_u32 {v(QH)}, v1, 4, v3")
p("v_bfrev_b32 v3, 1")
p(f"s_add_u32 {s(sW)}, {s(sW)}, {s(sw)}")
p(f"s_movk_i32 {s(sT0)}, 800")
p(f"v_cmp_gt_u32 vcc, {s(sT0)}, {v(QH)}")
p(f"s_mul_i32 {s(sOFF)}, {s(sW)}, 800")
p(f"s_mul_i32 {s(sLB)}, {s(sw)}, {REG}")
p(f"s_mov_b64 {s(EX50,2)}, vcc")
p(f"v_cndmask_b32 v3, v3, {v(QH)}, vcc")
p(f"v_and_b32 {v(TX+2)}, 16, v0")
p(f"v_lshlrev_b32 {v(TX)}, 1, {v(TX+2)}")
p(f"v_xor_b32 {v(TX)}, {v(TX)}, v2")
p(f"v_and_b32 {v(VOUT)}, 0xf0, v2")
p(f"v_lshl_add_u32 {v(VOUT)}, v1, {LGP+7}, {v(VOUT)}")
p(f"s_lshl_b32 {s(sT0)}, {s(sW)}, 8")
p(f"v_add_u32 {v(VOUT)}, {s(sT0)}, {v(VOUT)}")
p(f"s_lshl_b32 {s(sT1)}, {s(sw)}, 12")
p(f"s_add_u32 m0, {s(sLB)}, {TB}")
p(f"s_mov_b32 {s(SM+2)}, {16384*400}")
p(f"s_mov_b32 {s(SM+3)}, 0x20000")
p("s_waitcnt lgkmcnt(0)")
cst("kernarg")
if STAMP and STAMP != 4:
    p("v_mov_b32 v254, 0")
    p("v_writelane_b32 v254, s98, 0")
    p("v_writelane_b32 v254, s96, 32")
    nstamp[0] = 1
    stamp()
p(f"s_mov_b32 {s(SM)}, s8")
p(f"s_and_b32 {s(SM+1)}, s9, 0xffff")
if opt["ym"]:
    p(f"s_cmp_ge_u32 {s(sw)}, 4")
    p("s_cbranch_scc1 L_young0")
p(f"buffer_load_dwordx4 {v(MSK,4)}, v3, {s(SM,4)}, {s(sOFF)} offen {NTM}")
p("L_young0:")
if opt.get("xs"):
    for j in range(opt["xs"]):
        p("s_nop 15")
p(f"global_load_lds_dwordx4 {v(VOUT)}, s[4:5] {NTM}")
p(f"s_add_u32 m0, {s(sLB)}, {STG}")
p(f"s_add_u32 s10, s10, {s(sT1)}")
p("s_addc_u32 s11, s11, 0")
p(f"v_xor_b32 {v(TX+1)}, 64, {v(TX)}")
if opt.get("nsw"):
    p(f"v_mov_b32 {v(TX)}, v2")
    p(f"v_mov_b32 {v(TX+1)}, v2")
for j in range(4):
    p(f"global_load_lds_dwordx4 {v(TX+(j&1))}, s[10:11] offset:{j*1024}")
p(f"s_load_dword {s(sB2)}, s[16:17], 0")
p(f"s_and_b32 {s(sT1)}, {s(sw)}, 3")
B1R, W2R = CD + 28, DG


def load_b1():
    p(f"s_and_b32 {s(sT0)}, {s(sw)}, 3")
    p(f"s_lshl_b32 {s(sT0)}, {s(sT0)}, 5")
    p(f"v_lshl_add_u32 {v(TX+3)}, v1, 3, {s(sT0)}")
    p(f"global_load_dwordx2 {v(B1R,2)}, {v(TX+3)}, s[12:13]")


if not opt["ym"]:
    load_b1()
p(f"v_and_b32 {v(TX+4)}, 3, v0")
NVM = 11
if opt.get("arr"):
    cst("arr_issued")
    for n_out in (5, 4, 3, 2, 1, 0):
        p(f"s_waitcnt vmcnt({n_out})")
        cst(f"arr{n_out}")
stamp()
srd(SH, 6, 200, stride=128)
if opt["m1"]:
    p(f"s_sub_u32 {s(SH2)}, {s(SH)}, 1056")
    p(f"s_subb_u32 {s(SH2+1)}, {s(SH+1)}, 0")
    p(f"s_mov_b32 {s(SH2+2)}, 200")
    p(f"s_mov_b32 {s(SH2+3)}, 0x20000")


def list_reset():
    p(f"s_mul_i32 {s(sRO)}, {s(sW)}, 51200")
    p(f"s_movk_i32 {s(sDL)}, {DLT0}")
    if opt["swap"]:
        p(f"s_mov_b32 {s(sKA)}, {KB-3}")
    p(f"s_mov_b64 {s(F,2)}, 0")
    p(f"s_mov_b64 {s(F+2,2)}, 0")
    for j in range(4):
        p(f"v_mov_b32 {v(ZB+j)}, -1")
    p(f"s_add_u32 {s(sT0)}, {s(sLB)}, {LI}")
    p(f"v_add_u32 {v(ZB+4)}, {s(sT0)}, v2")
    p(f"ds_write_b128 {v(ZB+4)}, {v(ZB,4)}")
    p(f"ds_write_b128 {v(ZB+4)}, {v(ZB,4)} offset:1024")
    p(f"s_add_u32 {s(sBASE)}, {s(sLB)}, {L0}")


list_reset()
for j in range(5, 2 * D):
    p(f"v_mov_b32 {v(ZB+j)}, -1")
p(f"v_lshrrev_b32 {v(RDL)}, 3, v0")
p(f"v_add_u32 {v(RDL)}, {s(sBASE)}, {v(RDL)}")
p(f"v_lshl_add_u32 {v(RDM)}, v1, 2, {s(sT0)}")
p(f"v_and_b32 {v(VA+1)}, 0x70, v2")
p(f"v_lshlrev_b32 {v(TX+2)}, 2, {v(TX+2)}")
p(f"v_xor_b32 {v(VA+1)}, {v(VA+1)}, {v(TX+2)}")
p(f"v_mov_b32 {v(VB+1)}, {v(VA+1)}")
lane_mask = lambda f: sum(1 << i for i in range(64) if f(i & 15, i >> 4))


def smask(dst, m):
    p(f"s_mov_b32 {s(dst)}, {m & 0xffffffff:#x}")
    p(f"s_mov_b32 {s(dst+1)}, {m >> 32:#x}")


p(f"s_movk_i32 {s(sT0)}, 400")
p(f"v_cmp_le_u32 vcc, {s(sT0)}, {v(QH)}")
p(f"v_lshrrev_b32 {v(QV)}, 1, {v(QH)}")
p(f"s_movk_i32 {s(sT0)}, -200")
p(f"v_cndmask_b32 {v(QH)}, 0, 1, vcc")
p(f"v_mad_i32_i24 {v(QV)}, {v(QH)}, {s(sT0)}, {v(QV)}")
p(f"v_mul_u32_u24 {v(QV+1)}, 0x10001, {v(QV)}")
p(f"v_add_u32 {v(QV)}, 0x10000, {v(QV+1)}")
p(f"v_add_u32 {v(QV+2)}, 0x50004, {v(QV+1)}")
p(f"v_add_u32 {v(QV+3)}, 0x70006, {v(QV+1)}")
p(f"v_add_u32 {v(QV+1)}, 0x30002, {v(QV+1)}")
p(f"v_mov_b32 {v(NBA)}, {CNT:#x}")
smask(P0, lane_mask(lambda m, g: (m >> 2) >= g))
smask(P1, lane_mask(lambda m, g: (m >> 2) > g))
smask(P2, lane_mask(lambda m, g: (m >> 2) == g))
smask(NB, lane_mask(lambda m, g: (m & 3) == 0 or (m, g) == (1, 0)))
for x in range(2):
    p(f"v_cndmask_b32 {v(AP+x)}, 0, {v(NBA)}, {s(P0,2)}")
    p(f"v_cndmask_b32 {v(AP+4+x)}, 0, {v(NBA)}, {s(P1,2)}")
for x in range(4):
    p(f"v_cndmask_b32 {v(AT+x)}, 0, {v(NBA)}, {s(NB,2)}")
p(f"v_lshlrev_b32 {v(TX)}, 4, {v(TX+4)}")
p(f"v_sub_u32 {v(TX)}, 48, {v(TX)}")
smask(P0, 0x00F0BFE0BFE0BFE0)
p(f"v_lshrrev_b64 {v(AP+2,2)}, {v(TX)}, {s(P0,2)}")
p(f"v_mov_b32 {v(NBA)}, 0")
p(f"s_mov_b64 {s(NB,2)}, 0")
for x in range(2):
    p(f"v_cndmask_b32 {v(AP+2+x)}, {v(AP+4+x)}, {v(AP+2+x)}, {s(P2,2)}")
if STAMP:
    p(f"s_mov_b32 {s(sK)}, {KB-1}")
p(f"s_mov_b32 {s(sKW)}, {KB-1}")
p(f"s_mov_b32 {s(sC)}, {CNEG:#x}")
n_, r_, c_ = TX + 5, TX + 6, TX + 4
p(f"v_and_b32 {v(n_)}, 15, v0")
p(f"v_bfe_u32 {v(r_)}, v0, 2, 2")
X0 = TX + 7
SA, SC_, SB_, TBA, BWA = CA + 60, CA + 61, CA + 62, CA + 63, CD + 30
IDN, N0M = DG + 2, DG + 4
p(f"v_lshlrev_b32 {v(X0)}, 3, {v(c_)}")
p(f"v_lshl_add_u32 {v(X0)}, {v(r_)}, 7, {v(X0)}")
p(f"v_and_b32 {v(TX)}, 24, v0")
p(f"v_lshlrev_b32 {v(TX)}, 2, {v(TX)}")
p(f"v_xor_b32 {v(TX)}, {v(X0)}, {v(TX)}")
p(f"v_lshl_add_u32 {v(TX)}, v1, 10, {v(TX)}")
p(f"s_lshl_b32 {s(sT0)}, {s(sT1)}, 5")
p(f"v_xor_b32 {v(SB_)}, {s(sT0)}, {v(TX)}")
p(f"v_add_u32 {v(SB_)}, {STG+2*REG}, {v(SB_)}")
p(f"s_lshr_b32 {s(sT0)}, {s(sw)}, 1")
p(f"s_lshl_b32 {s(sT0)}, {s(sT0)}, 5")
p(f"v_xor_b32 {v(SA)}, {s(sT0)}, {v(TX)}")
p(f"s_and_b32 {s(sT0)}, {s(sw)}, 1")
p(f"s_mul_i32 {s(sT0)}, {s(sT0)}, {REG}")
p(f"s_add_u32 {s(sT0)}, {s(sT0)}, {STG}")
p(f"v_add_u32 {v(SA)}, {s(sT0)}, {v(SA)}")
p(f"v_add_u32 {v(SC_)}, {4*REG}, {v(SA)}")
p(f"s_and_b32 {s(sT0)}, {s(sw)}, 4")
p(f"v_lshrrev_b32 {v(TX)}, 3, {v(n_)}")
p(f"v_add_u32 {v(TX)}, {s(sT0)}, {v(TX)}")
p(f"v_mul_u32_u24 {v(TX)}, {REG}, {v(TX)}")
p(f"v_lshl_add_u32 {v(TX)}, v1, 4, {v(TX)}")
p(f"v_and_b32 {v(TX+1)}, 7, v0")
p(f"v_lshl_add_u32 {v(TBA)}, {v(TX+1)}, 7, {v(TX)}")


def gRDB():
    p(f"v_and_b32 {v(TX+1)}, 8, v0")
    p(f"v_lshlrev_b32 {v(TX+1)}, 2, {v(TX+1)}")
    p(f"v_lshl_add_u32 {v(TX+1)}, {v(n_)}, 7, {v(TX+1)}")
    p(f"v_add_u32 {v(TX+1)}, {s(sLB)}, {v(TX+1)}")
    p(f"v_and_b32 {v(TX+2)}, 2, v0")
    p(f"v_lshlrev_b32 {v(TX+2)}, 1, {v(TX+2)}")
    p(f"v_xor_b32 {v(TX+2)}, {v(TX+2)}, v1")
    p(f"v_lshl_add_u32 {v(RDB0)}, {v(TX+2)}, 4, {v(TX+1)}")
    p(f"v_xor_b32 {v(TX+2)}, 4, {v(TX+2)}")
    p(f"v_lshl_add_u32 {v(RDB1)}, {v(TX+2)}, 4, {v(TX+1)}")


def gRDT():
    p(f"v_and_b32 {v(TX+1)}, 8, v0")
    p(f"v_lshlrev_b32 {v(TX+1)}, 3, {v(TX+1)}")
    p(f"v_lshl_add_u32 {v(TX+2)}, v1, 5, {v(X0)}")
    p(f"v_xor_b32 {v(TX+2)}, {v(TX+2)}, {v(TX+1)}")
    p(f"v_add_u32 {v(RDT)}, {s(sLB)}, {v(TX+2)}")


def gTAD():
    p(f"s_add_u32 {s(sT0)}, {s(sLB)}, {TB}")
    p(f"v_lshl_add_u32 {v(TADR)}, {v(c_)}, 1, {s(sT0)}")
    p(f"v_lshl_add_u32 {v(TADR)}, {'v1' if W44 else v(r_)}, 4, {v(TADR)}")
    p(f"s_add_u32 {s(sT0)}, {s(sLB)}, {OUTS}")
    p(f"v_lshl_add_u32 {v(OADR)}, v0, 1, {s(sT0)}")
    p(f"s_add_u32 {s(sT0)}, {s(sLB)}, {BI}")
    p(f"v_lshl_add_u32 {v(BADR)}, v1, 4, {s(sT0)}")


def gBWA():
    p(f"s_and_b32 {s(sT0)}, {s(sw)}, 3")
    p(f"s_lshl_b32 {s(sT0)}, {s(sT0)}, 6")
    p(f"s_add_u32 {s(sT0)}, {s(sT0)}, {BI}")
    p(f"v_and_b32 {v(TX+1)}, 7, v0")
    p(f"v_mul_u32_u24 {v(TX+1)}, {BSTR-128}, {v(TX+1)}")
    p(f"v_add3_u32 {v(BWA)}, {v(TBA)}, {v(TX+1)}, {s(sT0)}")


def gSEL():
    if not W44:
        p(f"v_cmp_eq_u32 vcc, {v(r_)}, v1")
    p(f"v_and_b32 {v(TX+1)}, 1, v0")
    p(f"v_lshlrev_b32 {v(TX+1)}, 4, {v(TX+1)}")
    p(f"v_lshlrev_b32 {v(TX+1)}, {v(TX+1)}, 1")
    if not W44:
        p(f"v_cndmask_b32 {v(TX+1)}, 0, {v(TX+1)}, vcc")
    p(f"v_cmp_gt_u32 vcc, 2, {v(c_)}")
    p(f"v_mov_b32 {v(ONE+1)}, 0")
    p(f"v_mov_b32 {v(ONE)}, 0x3f80")
    p(f"v_cndmask_b32 {v(SEL0)}, 0, {v(TX+1)}, vcc")
    p(f"v_cmp_eq_u32 vcc, 0, {v(n_)}")
    p(f"v_sub_u32 {v(SEL1)}, {v(TX+1)}, {v(SEL0)}")
    p(f"v_mul_u32_u24 {v(IDN)}, 0x3f80, {v(SEL0)}")
    p(f"v_cndmask_b32 {v(N0M)}, 0, -1, vcc")
    p(f"v_mul_u32_u24 {v(IDN+1)}, 0x3f80, {v(SEL1)}")


def gZER():
    for j in range(8):
        p(f"v_mov_b32 {v(XT+j)}, 0")
    for j in range(4):
        p(f"v_mov_b32 {v(S+j)}, 0")
        p(f"v_mov_b32 {v(ACC+j)}, 0")


def gB2():
    p(f"s_lshl_b32 {s(sB2)}, {s(sB2)}, 16")
    for r in range(4):
        p(f"v_and_b32 {v(B2+r)}, {s(sB2)}, {v(N0M)}")


def gPRI():
    if opt["prio"]:
        p(f"s_add_u32 {s(sT0)}, {s(sLB)}, {PRG}")
        p(f"v_lshl_add_u32 {v(DG+5)}, v0, 2, {s(sT0)}")
        p(f"ds_write_b32 {v(DG+5)}, {v(ONE+1)}")
        p(f"s_xor_b32 {s(sT0)}, {s(sw)}, 4")
        p(f"s_mul_i32 {s(sT0)}, {s(sT0)}, {REG}")
        p(f"s_add_u32 {s(sT0)}, {s(sT0)}, {PRG}")
        p(f"v_writelane_b32 {v(DG+5)}, {s(sT0)}, 1")
    if opt["swap"]:
        p(f"v_mov_b32 {v(DG+6)}, {s(sLB)}")
        p(f"ds_write_b32 {v(DG+6)}, {v(ONE+1)} offset:{KEY}")
        p(f"ds_write_b32 {v(DG+6)}, {v(ONE+1)} offset:{TKT}")
        p(f"s_mov_b32 {s(sDLB)}, 0")
        p(f"s_mov_b32 {s(sDG)}, 0")


PLACE = dict(zip((gSEL, gBWA, gPRI, gB2, gRDB, gRDT, gTAD, gZER), (int(x) for x in str(opt["place"])[1:])))


def groups(k):
    for f, w_ in PLACE.items():
        if w_ == k:
            f()


groups(0)
if opt["ym"]:
    load_b1()
    p(f"s_cmp_ge_u32 {s(sw)}, 4")
    p("s_cbranch_scc0 L_old3z")
    p(f"buffer_load_dwordx4 {v(MSK,4)}, v3, {s(SM,4)}, {s(sOFF)} offen {NTM}")
    p("L_old3z:")


def late_loads():
    if opt["tlb"]:
        p(f"s_add_u32 {s(sT0)}, {s(sw)}, 1")
        p(f"s_and_b32 {s(sT0)}, {s(sT0)}, 6")
        p("s_cbranch_scc1 L_notouch")
        p(f"s_mov_b32 {s(sT0)}, {PSTR*25600}")
        p(f"v_mul_lo_u32 v255, v0, {s(sT0)}")
        p(f"s_mul_i32 {s(sT0)}, {s(sW)}, 51200")
        p(f"s_and_b32 {s(sT1)}, {s(sw)}, 1")
        p(f"s_mul_i32 {s(sT1)}, {s(sT1)}, {51200-128}")
        p(f"s_add_u32 {s(sT0)}, {s(sT0)}, {s(sT1)}")
        p(f"v_add_u32 v255, {s(sT0)}, v255")
        p("s_mov_b64 exec, 14")
        p(f"global_load_dword v255, v255, s[6:7] {NT}")
        p("s_mov_b64 exec, -1")
        p("L_notouch:")
    for j in range(1, 4):
        p(f"s_add_u32 {s(sOFF)}, {s(sOFF)}, {PSTR*400}")
        p(f"buffer_load_dwordx4 {v(MSK+4*j,4)}, v3, {s(SM,4)}, {s(sOFF)} offen {NTM}")
    p(f"v_lshlrev_b32 {v(TX+3)}, 3, v1")
    p(f"v_lshl_add_u32 {v(TX+3)}, {v(TX+4)}, 5, {v(TX+3)}")
    p(f"global_load_dwordx2 {v(W2R,2)}, {v(TX+3)}, s[14:15]")


G2 = opt["g2"]
if not G2:
    late_loads()
LL = 0 if G2 else 4
NE = D - 2
IDX = ZB


def idx_reads():
    for t in range(D):
        p(f"ds_read_u8 {v(IDX+2*t)}, {v(RDL)} offset:{t*16}")
        p(f"ds_read_u8 {v(IDX+2*t+1)}, {v(RDL)} offset:{t*16+8}")


def tiles(t0, t1, bits, tag):
    for t in range(t0, t1):
        if t > 0:
            p(f"s_bitcmp0_b64 {s(bits,2)}, {t+1}")
            p(f"s_cbranch_scc1 L_noadv{tag}{t}")
            adv_hist()
            if opt["swap"]:
                p(f"s_sub_u32 {s(sKA)}, {s(sKA)}, 1")
            p(f"L_noadv{tag}{t}:")
        p(m0_half(t, 0))
        p(f"v_mov_b32 {v(VA)}, {v(IDX+2*t)}")
        p(f"v_mov_b32 {v(VB)}, {v(IDX+2*t+1)}")
        p(dma_half(0))
        if not opt["m1"]:
            p(m0_half(t, 1))
            p("s_nop 0")
        p(dma_half(1))


issued = [0]


def early(n):
    if n == 0:
        return
    t0 = issued[0]
    p(f"s_cmp_eq_u32 {s(sEARLY)}, 0")
    p(f"s_cbranch_scc1 L_skip{t0}")
    tiles(t0, t0 + n, F, "e")
    p(f"L_skip{t0}:")
    issued[0] += n


def first_pair():
    q_total(0, 0)
    t = q_test(0)
    for x in t[:8]:
        p(x)
    for step in range(5):
        p(q_scan(0, step))
        for x in t[8 + step:9 + step]:
            p(x)
    p(f"v_cmp_ne_u32 vcc, 0, {v(NBA)}")
    q_lanes(0)
    p(f"s_mov_b32 {s(sEARLY)}, 0")
    p("s_cbranch_vccnz L_late")
    q_ranks(0, 0)
    p(f"s_add_u32 {s(sT0)}, {s(sLB)}, {L0+16*D}")
    p(f"s_cmp_ge_u32 {s(sBASE)}, {s(sT0)}")
    q_write(0)
    p("s_cbranch_scc0 L_late")
    p(f"s_mov_b32 {s(sEARLY)}, 1")
    idx_reads()
    p("s_waitcnt lgkmcnt(0)")
    tiles(0, NE, F, "e")
    p(f"s_setpc_b64 {s(RET,2)} ; ret=L_fp")
    p("L_late:")
    p("s_waitcnt vmcnt(0)")
    p(f"s_setpc_b64 {s(RET,2)} ; ret=L_fp")


stamp()
jit()
if not opt["yf"]:
    p(f"s_cmp_ge_u32 {s(sw)}, 4")
    p("s_cbranch_scc1 L_young1")
p(f"s_waitcnt vmcnt({6+LL}) lgkmcnt(0)")
p(f"s_call_b64 {s(RET,2)}, L_fp")
p(f"s_waitcnt vmcnt({1+LL+2*NE})")
p("s_branch L_old1")
p("L_young1:")
p(f"s_waitcnt vmcnt({1+LL+opt['ym']})")
p("L_old1:")
cst("preB1")
p(f"s_waitcnt lgkmcnt(0)")
p("s_barrier")
stamp()
cst("B1")
jit()
RWA, RWC, RWD, RBB, RBC, TP, DB, DA, DD = CA, CA + 4, CA + 8, CA + 12, CA + 20, CA + 28, CA + 44, CA + 52, CD
for (dst, base) in ((RBB, 0), (RBC, 2)):
    for ks in range(2):
        for u in range(2):
            p(f"ds_read_b64_tr_b16 {v(dst+4*ks+2*u,2)}, {v(SB_)} offset:{(base+ks)*REG+u*512}")
for j in range(2):
    for ks in range(2):
        p(f"ds_read_b128 {v(TP+8*j+4*ks,4)}, {v(TBA)} offset:{TB+j*2*REG+ks*64}")
for u in range(2):
    p(f"ds_read_b64_tr_b16 {v(RWA+2*u,2)}, {v(SA)} offset:{u*512}")
    p(f"ds_read_b64_tr_b16 {v(RWC+2*u,2)}, {v(SC_)} offset:{u*512}")
    p(f"ds_read_b64_tr_b16 {v(RWD+2*u,2)}, {v(SC_)} offset:{2*REG+u*512}")
if not opt["yf"]:
    p(f"s_cmp_ge_u32 {s(sw)}, 4")
    p("s_cbranch_scc1 L_young2")
p(f"s_waitcnt vmcnt({LL+2*NE})")
p("s_branch L_old2")
p("L_young2:")
p(f"s_waitcnt vmcnt({LL+opt['ym']})")
p("L_old2:")
if G2:
    late_loads()
for j in range(2):
    p(f"v_lshlrev_b32 {v(DB+2*j)}, 16, {v(B1R+j)}")
    p(f"v_and_b32 {v(DB+2*j+1)}, 0xffff0000, {v(B1R+j)}")
groups(1)
jit()
cst("firstpair")
p("s_waitcnt lgkmcnt(0)")
for j in range(8):
    p(f"v_xor_b32 {v(RBC+j)}, 0x80008000, {v(RBC+j)}")
for u in range(2):
    p(f"{DIAGMM} {v(DA+4*u,4)}, {v(IDN,2)}, {v(RWA+2*u,2)}, 0")
    p(f"{DIAGMM} {v(DD+4*u,4)}, {v(IDN,2)}, {v(RWD+2*u,2)}, 0")
for u in range(2):
    p(f"{DIAGMM} {v(DA+4*u,4)}, {v(IDN,2)}, {v(RWC+2*u,2)}, {v(DA+4*u,4)}")
for j in (1, 0):
    first = True
    for (src) in (RBB, RBC):
        for ks in range(2):
            c = v(DB, 4) if first else v(DB + 4 * j, 4)
            p(f"v_mfma_f32_16x16x32_bf16 {v(DB+4*j,4)}, {v(src+4*ks,4)}, {v(TP+8*j+4*ks,4)}, {c}")
            first = False
for j in range(8):
    p(f"v_mul_f32 {v(DA+j)}, {s(sC)}, {v(DA+j)}")
for j in range(8):
    p(f"v_mul_f32 {v(DD+j)}, {s(sC)}, {v(DD+j)}")
p(f"s_add_u32 {s(sT0)}, {s(sLB)}, {XCH}")
p(f"v_add_u32 v3, {s(sT0)}, v2")
for j in range(4):
    p(f"v_cvt_pk_bf16_f32 {v(DD+j)}, {v(DD+2*j)}, {v(DD+2*j+1)}")
for j in range(8):
    p(f"v_mul_f32 {v(DB+j)}, {s(sC)}, {v(DB+j)}")
p(f"ds_write_b128 v3, {v(DA,4)}")
p(f"ds_write_b128 v3, {v(DA+4,4)} offset:1024")
p(f"ds_write_b128 v3, {v(DD,4)} offset:2048")
p(f"ds_write_b128 {v(BWA)}, {v(DB,4)}")
p(f"ds_write_b128 {v(BWA)}, {v(DB+4,4)} offset:{2*REG}")
p(f"v_add_u32 v3, {XCH}, v2")
p(f"v_add_u32 {v(TX)}, {4*REG}, v3")
cst("preB3")
p("s_waitcnt lgkmcnt(0)")
p("s_barrier")
cst("B3")
jit()
stamp()
def const_reads(w0, w1):
    if opt.get("xc"):
        return
    for w_ in range(w0, w1):
        a = "v3" if w_ < 4 else v(TX)
        p(f"ds_read_b128 {v(CA+8*w_,4)}, {a} offset:{(w_&3)*REG}")
        p(f"ds_read_b128 {v(CA+8*w_+4,4)}, {a} offset:{(w_&3)*REG+1024}")
        p(f"ds_read_b128 {v(CD+4*w_,4)}, {a} offset:{(w_&3)*REG+2048}")


if opt["yf"]:
    assert not opt["ym"] and not opt["y2"]
    p("s_branch L_old3")
p(f"s_cmp_ge_u32 {s(sw)}, 4")
p("s_cbranch_scc0 L_old3")
if opt["yp"]:
    p("s_setprio 2")
if opt["ym"]:
    p("s_waitcnt vmcnt(4)")
p(f"s_call_b64 {s(RET,2)}, L_fp")
if opt["y2"]:
    p("s_branch L_yng3")
p("L_old3:")
p(f"s_call_b64 {s(RET,2)}, L_t23")
p("L_yng3:")
const_reads(0, 3)
groups(2)
p(f"s_waitcnt vmcnt({2*NE if opt['y2'] or G2 else 2*D})")
cst("tiles23")
for i in range(3):
    q_total(i, i + 1)
t = q_test(1) + q_test(2) + q_test(3)
for x in t[:9]:
    p(x)
for step in range(5):
    for i in range(3):
        p(q_scan(i, step))
const_reads(3, 5)
for x in t[9:]:
    p(x)
p(f"v_cmp_ne_u32 vcc, 0, {v(NBA)}")
for i in range(3):
    q_lanes(i)
p("s_cbranch_vccnz L_general")
q_ranks(0, 1)
q_ranks(1, 2)
q_write(0)
q_ranks(2, 3)
q_write(1)
const_reads(5, 8)
t_reads()
q_write(2)
if opt["y2"]:
    p(f"s_cmp_ge_u32 {s(sw)}, 4")
    p("s_cbranch_scc0 L_old3b")
    p(f"s_call_b64 {s(RET,2)}, L_t23")
    p("L_old3b:")
p("L_listed:")
stamp()
jit(True)
if opt["swap"]:
    if opt.get("krow", 0):
        p(f"s_and_b32 {s(sT0)}, {s(A0+10)}, 0x1ff")
        p(f"s_lshl_b32 {s(sT0)}, {s(sT0)}, 3")
    else:
        p(f"s_sub_u32 {s(sT0)}, {s(sE3)}, {s(sB3)}")
    p(f"s_or_b32 {s(sT0)}, {s(sT0)}, {s(sw)}")
    p(f"s_and_b32 {s(sT1)}, {s(NB)}, 0x40000000")
    p(f"s_or_b32 {s(sT0)}, {s(sT0)}, {s(sT1)}")
    p(f"s_bitset1_b32 {s(sT0)}, 31")
    for x, r in enumerate((sT0, sB3, sM3, sE3)):
        p(f"v_mov_b32 {v(ZA+x)}, {s(r)}")
    p("s_mov_b64 exec, 1")
    p(f"ds_write_b128 {v(DG+6)}, {v(ZA,4)} offset:{KEY}")
    p("s_mov_b64 exec, -1")
if opt["prio"]:
    step = D if opt["prio"] == 2 else 2 * D
    p(f"s_sub_u32 {s(sT0)}, {s(sBASE)}, {s(sLB)}")
    p(f"s_sub_u32 {s(sT0)}, {s(sT0)}, {L0}")
    p(f"s_lshr_b32 {s(sT0)}, {s(sT0)}, 3")
    if opt["bias"]:
        p(f"s_lshr_b32 {s(sT1)}, {s(sw)}, 2")
        p(f"s_mul_i32 {s(sT1)}, {s(sT1)}, {2*opt['bias']}")
        p(f"s_add_u32 {s(sT0)}, {s(sT0)}, {s(sT1)}")
    p(f"s_sub_u32 {s(sT1)}, 0, {s(sT0)}")
    p(f"v_mov_b32 {v(PADR)}, {v(DG+5)}")
    p(f"v_mov_b32 {v(PRV)}, {s(sT0)}")
    p(f"v_mov_b32 {v(PINC)}, {-step}")
    p(f"v_writelane_b32 {v(PRV)}, {s(sT1)}, 1")
    p(f"v_writelane_b32 {v(PINC)}, {step}, 1")
    p(f"ds_add_u32 {v(PADR)}, {v(PRV)}")
p(f"s_cmp_eq_u32 {s(sEARLY)}, 1")
p("s_cbranch_scc1 L_nolate")
idx_reads()
p("s_waitcnt lgkmcnt(0)")
tiles(0, D, F, "l")
p("L_nolate:")
for hb in range(4):
    for j in range(2):
        p(f"v_and_b32_dpp {v(W2+2*hb+j)}, {v(W2R+j)}, {v(N0M)} quad_perm:[{hb},{hb},{hb},{hb}] row_mask:0xf bank_mask:0xf")
if opt.get("xp"):
    for j in range(opt["xp"]):
        p("s_nop 15")
cst("precompactdone")
p(f"s_waitcnt vmcnt({2*(D-1)}) lgkmcnt(0)")
read_xb(0, 0)
read_xb(0, 1)
wbuild()
stamp()
stamp(33)
cst("wbuilt")
if STAMP == 4:
    p("s_waitcnt lgkmcnt(0)")
    p("v_mov_b32 v254, 0")
    for j, r in enumerate((38,80,82,96,98,44,46,48,50,16)):
        p(f"v_writelane_b32 v254, s{r}, {j}")
for j in range(8):
    p(g1(j))
p(f"s_waitcnt vmcnt({2*(D-2)})")
read_xb(1, 0)
read_xb(1, 1)
p(f"ds_read_u8 {v(VA)}, {v(RDL)} offset:{D*16}")
p(f"ds_read_u8 {v(VB)}, {v(RDL)} offset:{D*16+8}")
event_mask()
p(f"s_cmp_lg_u64 {s(NB,2)}, 0")
if opt.get("so"):
    p("s_cbranch_scc1 L_gen2")
    p(f"s_getreg_b32 {s(sT0)}, hwreg(HW_REG_XCC_ID, 0, 1)")
    p(f"s_cmp_eq_u32 {s(sT0)}, 0")
    p("s_cbranch_scc1 Lf_mid")
    p("s_branch Lo_mid")
    p("L_gen2:")
else:
    p("s_cbranch_scc0 Lf_mid")
p(f"s_mul_i32 {s(sT0)}, {s(sW)}, 800")
p(f"s_add_u32 s8, s8, {s(sT0)}")
p("s_addc_u32 s9, s9, 0")
srd(SM, 8, 400)
p(f"s_movk_i32 {s(sMDL)}, {MDL0}")
p("s_branch Ls_mid")
p("L_fp:")
first_pair()
if opt["swap"]:
    A_, B_, KB_, TK_, KA_ = ZA + 8, ZA + 9, ZA + 10, ZA + 11, ZA + 12
    p("L_swap:")
    p(f"v_lshrrev_b32 {v(A_)}, 3, v0")
    p(f"v_and_b32 {v(B_)}, 7, v0")
    p(f"v_mul_u32_u24 {v(A_)}, {REG}, {v(A_)}")
    p(f"v_mul_u32_u24 {v(B_)}, {REG}, {v(B_)}")
    p(f"v_mov_b32 {v(TK_)}, 1")
    p("s_mov_b64 exec, 1")
    p(f"ds_add_rtn_u32 {v(TK_)}, {v(A_)}, {v(TK_)} offset:{TKT}")
    p("s_mov_b64 exec, -1")
    p("L_swap_poll:")
    p(f"ds_read_b32 {v(KB_)}, {v(B_)} offset:{KEY}")
    p(f"ds_read_b128 {v(KA_,4)}, {v(A_)} offset:{KEY}")
    p(f"v_and_b32 {v(TX+2)}, 56, v0")
    p("s_waitcnt lgkmcnt(0)")
    p(f"v_cmp_le_i32 vcc, 0, {v(KB_)}")
    p(f"v_cmp_gt_u32 {s(P0,2)}, {v(KB_)}, {v(KA_)}")
    p(f"v_lshlrev_b32 {v(TX+3)}, 1, {v(KB_)}")
    p(f"v_readfirstlane_b32 {s(sT0)}, {v(TK_)}")
    p("s_cbranch_vccnz L_swap_poll")
    p(f"v_lshrrev_b64 {v(TX,2)}, {v(TX+2)}, {s(P0,2)}")
    p(f"v_cmp_gt_i32 {s(P1,2)}, 0, {v(TX+3)}")
    p(f"v_and_b32 {v(TX)}, 0xff, {v(TX)}")
    p(f"v_bcnt_u32_b32 {v(TX)}, {v(TX)}, 0")
    p(f"v_cmp_eq_u32 vcc, {s(sT0)}, {v(TX)}")
    p(f"s_lshl_b32 {s(sT1)}, {s(sw)}, 3")
    p(f"s_ff1_i32_b64 {s(sT0)}, vcc")
    p(f"s_cmp_lg_u64 {s(P1,2)}, 0")
    p(f"s_cselect_b32 {s(sT0)}, {s(sT1)}, {s(sT0)}")
    p(f"s_sub_u32 {s(sT3)}, {s(sT0)}, {s(sT1)}")
    p(f"v_readlane_b32 {s(sT1)}, {v(KA_+2)}, {s(sT0)}")
    p(f"v_readlane_b32 {s(sT2)}, {v(KA_+3)}, {s(sT0)}")
    p(f"v_readlane_b32 {s(sT0)}, {v(KA_+1)}, {s(sT0)}")
    p(f"s_mul_i32 {s(sDLB)}, {s(sT3)}, {REG // 8}")
    p(f"s_lshl_b32 {s(sDG)}, {s(sT3)}, 5")
    p(f"s_mul_i32 {s(sT3)}, {s(sT3)}, 6400")
    p(f"s_add_u32 {s(sRO)}, {s(sRO)}, {s(sT3)}")
    p(f"s_mov_b32 {s(sKA)}, 8")
    p(f"s_sub_u32 {s(sB3)}, {s(sT0)}, {s(sB3)}")
    p(f"v_add_u32 {v(RDL)}, {s(sB3)}, {v(RDL)}")
    p(f"s_sub_u32 {s(sE3)}, {s(sT2)}, {s(sE3)}")
    p(f"s_sub_u32 {s(sE3)}, {s(sE3)}, {s(sB3)}")
    for r in (sT1, sT2):
        p(f"s_sub_u32 {s(r)}, {s(r)}, {s(sT0)}")
        p(f"s_lshr_b32 {s(r)}, {s(r)}, 4")
        p(f"s_add_u32 {s(r)}, {s(r)}, {s(sU)}")
        p(f"s_bitset1_b64 {s(F,2)}, {s(r)}")
    event_mask()
    if opt["prio"]:
        p(f"s_ashr_i32 {s(sE3)}, {s(sE3)}, 3")
        p(f"v_mov_b32 {v(A_)}, {s(sE3)}")
        p(f"s_sub_u32 {s(sE3)}, 0, {s(sE3)}")
        p(f"v_writelane_b32 {v(A_)}, {s(sE3)}, 1")
        p(f"ds_add_u32 {v(PADR)}, {v(A_)}")
    p(f"s_cmp_lg_u32 {s(sKW)}, 2")
    p(f"s_cselect_b32 {s(sM3)}, 1, -1")
    p("s_cbranch_scc1 L_swap_ret")
    p(f"v_add_u32 {v(TADR)}, {s(sDLB)}, {v(TADR)}")
    p(f"v_add_u32 {v(BADR)}, {s(sDLB)}, {v(BADR)}")
    t_reads()
    p("L_swap_ret:")
    p(f"s_setpc_b64 {s(RET,2)} ; ret=L_swap")
p("L_t23:")
p(f"s_cmp_eq_u32 {s(sEARLY)}, 0")
p("s_cbranch_scc1 L_skip23")
tiles(NE, D, F, "e")
p(f"s_setpc_b64 {s(RET,2)} ; ret=L_t23")
p("L_skip23:")
p("s_waitcnt vmcnt(0)")
p(f"s_setpc_b64 {s(RET,2)} ; ret=L_t23")
mainloop("f", False)
p("L_store:")
p(f"s_add_u32 {s(sT0)}, {s(sLB)}, {OUTS}")
p(f"v_lshl_add_u32 {v(TX+1)}, v0, 4, {s(sT0)}")
if opt["swap"]:
    p(f"s_bfm_b64 exec, 16, 48")
    p(f"v_add_u32 {v(VOUT)}, {s(sDG)}, {v(VOUT)}")
    p("s_mov_b64 exec, -1")
p(f"ds_read_b128 {v(ZB,4)}, {v(TX+1)}")
p("s_waitcnt lgkmcnt(0)")
p(f"global_store_dwordx4 {v(VOUT)}, {v(ZB,4)}, s[18:19] {NTO}")
if STAMP:
    p("s_mov_b64 exec, -1")
    stamp(34)
    p(f"v_writelane_b32 v254, {s(sBASE)}, 15")
    p("s_getreg_b32 s96, hwreg(HW_REG_XCC_ID)")
    p("v_writelane_b32 v254, s96, 14")
    p("s_getreg_b32 s96, hwreg(HW_REG_HW_ID)")
    p("v_writelane_b32 v254, s96, 13")
    srd(SM, 100, 2048 * 256)
    p(f"s_lshl_b32 {s(sT0)}, s2, 3")
    p(f"s_add_u32 {s(sT0)}, {s(sT0)}, {s(sw)}")
    p(f"s_lshl_b32 {s(sT0)}, {s(sT0)}, 8")
    p(f"v_lshlrev_b32 v1, 2, v0")
    p(f"buffer_store_dword v254, v1, {s(SM,4)}, {s(sT0)} offen")
if opt.get("twice"):
    p("s_waitcnt vmcnt(0) lgkmcnt(0)")
    p("s_barrier")
    p("s_setprio 0")
    p(f"s_lshl_b32 {s(sT0)}, {s(sw)}, 6")
    p(f"v_add_u32 v0, {s(sT0)}, v0")
    p("s_add_u32 s3, s3, 1")
    p("s_cmp_eq_u32 s3, 1")
    p("s_cbranch_scc1 L_again")
if opt.get("spin"):
    if opt.get("probe"):
        if opt["probe"] == "end":
            p("s_memrealtime s[98:99]")
            p("s_waitcnt lgkmcnt(0)")
        p("s_sub_u32 s98, s98, s80")
        p(f"s_mul_i32 s98, s98, {opt.get('pk', 4)}")
        p("s_add_u32 s80, s80, s98")
    p("L_spin:")
    p("s_memrealtime s[38:39]")
    p("s_waitcnt lgkmcnt(0)")
    p("s_sub_u32 s38, s38, s80")
    p(f"s_cmp_lt_i32 s38, {opt['spin']*100}")
    p("s_cbranch_scc1 L_spin")
p("L_end:")
p("s_endpgm")
if opt.get("so"):
    mainloop("o", False, opt["so"])
p("L_general:")
p("s_waitcnt vmcnt(0)")
const_reads(5, 8)
t_reads()
list_reset()
p(f"s_bfm_b64 {s(EX50,2)}, 50, 0")
p(f"s_mul_i32 {s(sT0)}, {s(sW)}, 800")
p(f"v_add_u32 {v(TX+1)}, {s(sT0)}, v2")
p(f"s_mov_b64 exec, {s(EX50,2)}")
for j in range(4):
    p(f"global_load_dwordx4 {v(MSK+4*j,4)}, {v(TX+1)}, s[8:9]")
    p(f"v_add_u32 {v(TX+1)}, {PSTR*400}, {v(TX+1)}")
p("s_mov_b64 exec, -1")
p(f"v_cmp_lt_u32 vcc, 24, v0")
p(f"v_cndmask_b32 {v(HI)}, 0, 1, vcc")
p(f"v_mul_u32_u24 {v(CV+1)}, 25, {v(HI)}")
p(f"v_sub_u32 {v(CV+1)}, v0, {v(CV+1)}")
p(f"v_mul_u32_u24 {v(CV+1)}, 0x80008, {v(CV+1)}")
p(f"v_add_u32 {v(CV)}, 0x10000, {v(CV+1)}")
p(f"v_add_u32 {v(CV+2)}, 0x50004, {v(CV+1)}")
p(f"v_add_u32 {v(CV+3)}, 0x70006, {v(CV+1)}")
p(f"v_add_u32 {v(CV+1)}, 0x30002, {v(CV+1)}")
p("s_waitcnt vmcnt(0)")
for j in range(4):
    compact_body(j)
p(f"s_mov_b32 {s(sEARLY)}, 0")
p(f"s_mov_b64 {s(NB,2)}, -1")
p("s_branch L_listed")
mainloop("s", True)

nn = p.fix_hazards(verbose=opt["verbose"])
for early_, old_, gen_ in ((a_, b_, c_) for a_ in (True, False) for b_ in (True, False) for c_ in (True, False)):
    force = [("L_skip", not early_), ("L_nolate", early_ and not gen_), ("L_young", not old_), ("L_old3", old_), ("L_general", gen_)]
    for e in check_waits(p, force + ([("L_late", False)] if early_ else [])) if early_ else check_waits(p, force, cut="L_noadve"):
        if STAMP != 4:
            sys.exit(f"WAIT-CHECK early={early_}: {e}")
hdr = open(__file__.rsplit("/", 1)[0] + "/../standalone__sequential_behavior_din__recsys.s.ref").read().split("\n")
head = [l for l in hdr if l.startswith(";") and "@launch" not in l and "Override" not in l and "grid=ceil" not in l]
out = "\n".join(head) + f"""
; @launch grid=({NWG},1,1) block=({WPB*64},1,1) lds={WPB*REG}
; generated by gen/gen.py {' '.join(sys.argv[1:])}
.amdgcn_target "amdgcn-amd-amdhsa--gfx950"
.text
.globl {NAME}
.p2align 8
.type {NAME},@function
""" + p.text() + f""".section .rodata,"a"
.p2align 6
.amdhsa_kernel {NAME}
  .amdhsa_next_free_vgpr 256
  .amdhsa_next_free_sgpr 102
  .amdhsa_accum_offset 256
  .amdhsa_group_segment_fixed_size 0
  .amdhsa_kernarg_size 80
  .amdhsa_user_sgpr_count 2
  .amdhsa_user_sgpr_kernarg_segment_ptr 1
  .amdhsa_system_sgpr_workgroup_id_x 1
.end_amdhsa_kernel
"""
sys.stdout.write(out)
```

```python
import sys
from asmlib import Prog, check_waits

opt = dict(yf=0, tlb=0, g2=1, ym=1, swap=1, bias=1, y2=1, yp=0, vx=0, m1=1, map=0, place=900010000, D=4, nt="nt", ntm="nt", nto="sc0 sc1", verbose=0, prio=1, sched="h")
for a in sys.argv[1:]:
    k, v = a.split("=", 1)
    opt[k] = int(v) if v.lstrip("-").isdigit() else v.replace("+", " ")
D = opt["D"]
NT, NTM, NTO = opt["nt"], opt["ntm"], opt["nto"]
STAMP = opt.get("stamp", 0)
assert not (STAMP == 4 and opt["swap"])

NAME = "standalone__sequential_behavior_din__recsys_kernel"
NWG, WPB = 256, 8
NWAVE = NWG * WPB
KB = 16384 // NWAVE
REG = opt.get('reg', 20480)
SLOT = 2080
TB = D * SLOT
BI = TB + 1024
BSTR = 272
XCH = BI + 8 * BSTR
PRG = XCH + 3072
KEY = PRG + 256
OUTS = PRG + 288
TKT = PRG + 272
LI = REG - 2048
L0 = LI + 16
assert OUTS + 1024 <= LI - 2048 and LI + 2048 <= REG and LI % 2048 == 0 and REG % 2048 == 0
STG = (D - 2) * SLOT
CNEG = 0xBFB8AA3B
PSTR, WGSTR = (16, 64) if opt["map"] & 1 else (4096, 16)
LGP = PSTR.bit_length() - 1
DLT0, DLT1 = 25600, (PSTR - 1) * 25600
MDL0, MDL1 = 400, (PSTR - 1) * 400

CA, CD, W, ZA, ZB, BIAS, XB, XT, W2, B2, S, ACC, DG, TR, ONE, VA, VB = \
    4, 68, 100, 132, 148, 164, 180, 188, 196, 204, 208, 212, 216, 224, 228, 230, 232
RDB0, RDB1, RDT, RDL, TADR, BADR, OADR, SEL0, SEL1, VOUT, RDM = range(234, 245)
TX = 246
PRV, PADR, PINC = 1, 2, 3
MSK = W
SH, SM, SH2 = 20, 24, 40
EX50, sB2, sDL, sMDL, sSGN, sDL1 = 28, 30, 31, 32, 33, 51
sLB, sW, sw = 52, 53, 54
F = 56
H = 36
sKA, sKW = 60, 61
sBASE, sK, sT0, sT1, sT2, sT3 = 64, 65, 66, 67, 55, 95
A0 = 68
NB, P0, P1, P2 = 84, 86, 88, 90
sC, sOFF, sEARLY, sRO = 92, 93, 94, 35
sB3, sM3, sE3, sDLB, sKF, sU, sDG = 44, 45, 46, 47, 48, 49, 50
RET = 62


def v(a, n=1):
    return f"v{a}" if n == 1 else f"v[{a}:{a+n-1}]"


def s(a, n=1):
    return f"s{a}" if n == 1 else f"s[{a}:{a+n-1}]"


p = Prog()
nstamp = [0]


def stamp(cyc=None):
    if STAMP == 4:
        return
    if not STAMP or (STAMP == 3 and cyc is None):
        return
    p("s_memrealtime s[96:97]")
    p("s_waitcnt lgkmcnt(0)")
    p(f"v_writelane_b32 v254, s96, {nstamp[0]}")
    nstamp[0] += 1
    if cyc is not None:
        p("s_memtime s[96:97]")
        p("s_waitcnt lgkmcnt(0)")
        p(f"v_writelane_b32 v254, s96, {cyc}")


ncyc = [0]


def cst(name):
    if opt.get("probe") == name:
        p("s_memrealtime s[98:99]")
        p("s_waitcnt lgkmcnt(0)")
    if STAMP == 4 and (not opt.get("arr") or name in ("entry", "kernarg") or name.startswith("arr")):
        sys.stderr.write(f"cst{ncyc[0]} = {name}\n")
        p(f"s_memtime {s((38,80,82,96,98,44,46,48,50,16)[ncyc[0]],2)}")
        ncyc[0] += 1


njit = [0]


def jit(long=False):
    if not opt.get("jitter"):
        return
    njit[0] += 1
    k = njit[0]
    p(f"s_mul_i32 s3, {s(sW)}, {37 + 2 * k + opt['jitter'] * 16}")
    p(f"s_add_u32 s3, s3, {k * 5}")
    p(f"s_lshr_b32 s3, s3, 2")
    p(f"s_and_b32 s3, s3, {7 if long else 3}")
    p("s_cmp_lg_u32 s3, 0")
    p(f"s_cbranch_scc1 L_jit{k}")
    for _ in range(10 if long else 1):
        p(f"s_sleep {127 if long else 30}")
    p(f"L_jit{k}:")


def srd(dst, ptr, nrec, stride=0):
    p(f"s_mov_b32 {s(dst)}, {s(ptr)}")
    p(f"s_and_b32 {s(dst+1)}, {s(ptr+1)}, 0xffff")
    if stride:
        p(f"s_or_b32 {s(dst+1)}, {s(dst+1)}, {stride << 16:#x}")
    p(f"s_mov_b32 {s(dst+2)}, {nrec}")
    p(f"s_mov_b32 {s(dst+3)}, 0x20000")


def m0_half(slot, j):
    return f"s_add_u32 m0, {s(sLB)}, {slot*SLOT+j*1056}"


def dma_half(j):
    if opt["m1"] and j:
        return f"buffer_load_dwordx4 {v(VB,2)}, {s(SH2,4)}, {s(sRO)} idxen offen offset:1056 {NT} lds"
    return f"buffer_load_dwordx4 {v((VA, VB)[j],2)}, {s(SH,4)}, {s(sRO)} idxen offen {NT} lds"


def adv_hist():
    p(f"s_add_u32 {s(sRO)}, {s(sRO)}, {s(sDL)}")
    p(f"s_min_u32 {s(sRO)}, {s(sRO)}, {16383*25600}")
    p(f"s_xor_b32 {s(sDL)}, {s(sDL)}, {DLT0 ^ DLT1:#x}")


R, CV, HI = ZA, ZA + 9, ZA + 13
AP, AT, QV, QH, NBA = W + 16, W + 22, W + 26, W + 30, W + 31
QR, QT, QE = (ZA, ZA + 8, BIAS), (BIAS + 8, BIAS + 12, XB), (XB + 4, XB + 5, XB + 6)
NT0, NT1 = ZB + 12, ZB + 13
CNT = 0xBFE0BFE0


def fbit(reg, k):
    p(f"s_lshr_b32 {s(sT3)}, {s(reg)}, 4")
    if 13 * (k + 1) + 1 < 64:
        p(f"s_bitset1_b64 {s(F,2)}, {s(sT3)}")
    else:
        p(f"s_lshl_b64 {s(P0,2)}, 1, {s(sT3)}")
        p(f"s_bitcmp1_b32 {s(reg)}, 10")
        p(f"s_cselect_b64 {s(P1,2)}, 0, {s(P0,2)}")
        p(f"s_cselect_b64 {s(P2,2)}, {s(P0,2)}, 0")
        p(f"s_or_b64 {s(F,2)}, {s(F,2)}, {s(P1,2)}")
        p(f"s_or_b64 {s(F+2,2)}, {s(F+2,2)}, {s(P2,2)}")


def compact_body(j):
    m = [MSK + 4 * j + x for x in range(4)]
    p(f"s_mov_b64 exec, {s(EX50,2)}")
    for e in range(8):
        p(f"v_cmp_neq_f16_sdwa {s(A0+2*e,2)}, {v(m[e>>1])}, 0 src0_sel:WORD_{e&1} src1_sel:WORD_0")
    p("s_mov_b64 exec, -1")
    p(f"v_mov_b32 {v(R)}, {s(sBASE)}")
    for e in range(8):
        p(f"v_mbcnt_lo_u32_b32 {v(R)}, {s(A0+2*e)}, {v(R)}")
        p(f"v_mbcnt_hi_u32_b32 {v(R)}, {s(A0+2*e+1)}, {v(R)}")
    p(f"s_add_u32 {s(sT2)}, {s(sBASE)}, 16")
    p(f"v_readlane_b32 {s(sT0)}, {v(R)}, 25")
    p(f"v_readlane_b32 {s(sT1)}, {v(R)}, 63")
    p(f"s_add_u32 {s(sBASE)}, {s(sT0)}, 15")
    p(f"s_and_b32 {s(sBASE)}, {s(sBASE)}, -16")
    p(f"s_max_u32 {s(sBASE)}, {s(sBASE)}, {s(sT2)}")
    p(f"s_sub_u32 {s(sT0)}, {s(sBASE)}, {s(sT0)}")
    p(f"v_mad_u32_u24 {v(R)}, {v(HI)}, {s(sT0)}, {v(R)}")
    p(f"s_mov_b32 {s(sT2)}, {s(sBASE)}")
    for e in range(7):
        p(f"v_addc_co_u32 {v(R+e+1)}, vcc, 0, {v(R+e)}, {s(A0+2*e,2)}")
    p(f"s_add_u32 {s(sT1)}, {s(sT1)}, {s(sT0)}")
    p(f"s_add_u32 {s(sT1)}, {s(sT1)}, 15")
    p(f"s_and_b32 {s(sT1)}, {s(sT1)}, -16")
    p(f"s_add_u32 {s(sBASE)}, {s(sBASE)}, 16")
    p(f"s_max_u32 {s(sBASE)}, {s(sBASE)}, {s(sT1)}")
    for e in range(8):
        p(f"s_mov_b64 exec, {s(A0+2*e,2)}")
        p(f"ds_write_b8{'_d16_hi' if e&1 else ''} {v(R+e)}, {v(CV+(e>>1))}")
    p("s_mov_b64 exec, -1")
    pair_bits(j, sT2)


def q_total(i, j):
    p(f"v_mfma_i32_16x16x64_i8 {v(QT[i],4)}, {v(AT,4)}, {v(MSK+4*j,4)}, 0")


def q_test(j):
    out = []
    if opt.get("xt"):
        return out
    for x in range(4):
        t = (NT0, NT1)[x & 1]
        out += [f"v_and_b32 {v(t)}, 0x800080, {v(MSK+4*j+x)}", f"v_mul_u32_u24 {v(t)}, 0x7f, {v(t)}",
                f"v_bitop3_b32 {v(NBA)}, {v(MSK+4*j+x)}, {v(t)}, {v(NBA)} bitop3:0xbe"]
    return out


def q_scan(i, step):
    dpp = "row_mask:0xf bank_mask:0xf bound_ctrl:0"
    if step == 0:
        return f"v_mov_b32_dpp {v(QE[i])}, {v(QT[i])} row_shr:1 {dpp}"
    return f"v_add_u32_dpp {v(QE[i])}, {v(QE[i])}, {v(QE[i])} row_shr:{1 << (step-1)} {dpp}"


def q_lanes(i):
    p(f"v_readlane_b32 {s(A0+4*i)}, {v(QE[i])}, 6")
    p(f"v_readlane_b32 {s(A0+4*i+1)}, {v(QT[i]+1)}, 6")
    p(f"v_readlane_b32 {s(A0+4*i+2)}, {v(QE[i])}, 15")


def q_ranks(i, j):
    a = A0 + 4 * i
    p(f"s_add_u32 {s(sT0)}, {s(a)}, {s(a+1)}")
    p(f"s_add_u32 {s(sT0)}, {s(sT0)}, {s(sBASE)}")
    p(f"s_add_u32 {s(sT1)}, {s(sT0)}, 15")
    p(f"s_and_b32 {s(sT1)}, {s(sT1)}, -16")
    p(f"s_add_u32 {s(sT2)}, {s(sBASE)}, 16")
    p(f"s_max_u32 {s(sT1)}, {s(sT1)}, {s(sT2)}")
    p(f"s_sub_u32 {s(sT0)}, {s(sT1)}, {s(sT0)}")
    p(f"v_mad_u32_u24 {v(QE[i])}, {v(QH)}, {s(sT0)}, {v(QE[i])}")
    p(f"s_sub_u32 {s(sT2)}, {s(sBASE)}, 2048")
    for r in range(4):
        p(f"v_add_u32 {v(QT[i]+r)}, {s(sT2)}, {v(QE[i])}")
    p(f"s_add_u32 {s(sBASE)}, {s(sBASE)}, {s(a+2)}")
    p(f"s_add_u32 {s(sBASE)}, {s(sBASE)}, {s(sT0)}")
    p(f"v_mfma_i32_16x16x64_i8 {v(QR[i],4)}, {v(AP+2,4)}, {v(MSK+4*j,4)}, {v(QT[i],4)}")
    p(f"v_mfma_i32_16x16x64_i8 {v(QR[i]+4,4)}, {v(AP,4)}, {v(MSK+4*j,4)}, {v(QT[i],4)}")
    p(f"s_add_u32 {s(sBASE)}, {s(sBASE)}, 15")
    p(f"s_and_b32 {s(sBASE)}, {s(sBASE)}, -16")
    p(f"s_add_u32 {s(sT2)}, {s(sT1)}, 16")
    p(f"s_max_u32 {s(sBASE)}, {s(sBASE)}, {s(sT2)}")
    pair_bits(j, sT1)


def pair_bits(j, mid):
    if opt["swap"] and j == 3:
        p(f"s_mov_b32 {s(sM3)}, {s(mid)}")
        p(f"s_mov_b32 {s(sE3)}, {s(sBASE)}")
        return
    fbit(mid, 2 * j)
    fbit(sBASE, 2 * j + 1)
    if opt["swap"] and j == 2:
        p(f"s_mov_b32 {s(sB3)}, {s(sBASE)}")


def q_write(i):
    if opt.get("xw"):
        return
    if opt["vx"]:
        p(f"s_mov_b64 exec, {s(EX50,2)}")
    for e in range(8):
        p(f"ds_write_b8{'_d16_hi' if e&1 else ''} {v(QR[i]+e)}, {v(QV+(e>>1))}")
    if opt["vx"]:
        p("s_mov_b64 exec, -1")


W44 = 1
DIAGMM = "v_mfma_f32_4x4x4_16b_bf16" if W44 else "v_mfma_f32_16x16x16_bf16"


def wbuild():
    for x in range(4):
        p(f"v_mul_u32_u24 {v(DG+2*x)}, {v(TR+x)}, {v(SEL0)}")
        p(f"v_mul_u32_u24 {v(DG+2*x+1)}, {v(TR+x)}, {v(SEL1)}")
    T = [ZA, ZA + 8, TX]
    pairs = [(hb, ks) for hb in range(4) for ks in range(2)]

    def mm(j, u):
        hb, ks = pairs[j]
        blk = (hb * 2 + ks) * 2 + u
        p(f"{DIAGMM} {v(T[j%3]+4*u,4)}, {v(DG+2*(2*ks+u),2)}, {v(CD+2*blk,2)}, {v(CA+4*blk,4)}")

    def cv(j, r):
        hb, ks = pairs[j]
        p(f"v_cvt_pk_bf16_f32 {v(W+(hb*2+ks)*4+r)}, {v(T[j%3]+2*r)}, {v(T[j%3]+2*r+1)}")
    p(f"v_add_u32 {v(TADR)}, 128, {v(TADR)}")
    p(f"ds_read_b128 {v(BIAS,4)}, {v(BADR)}")
    mm(0, 0)
    p(f"ds_read_b128 {v(BIAS+4,4)}, {v(BADR)} offset:64")
    p(f"ds_read_b128 {v(BIAS+8,4)}, {v(BADR)} offset:128")
    mm(0, 1)
    p(f"ds_read_b128 {v(BIAS+12,4)}, {v(BADR)} offset:192")
    p(f"ds_read_u16 {v(TR)}, {v(TADR)}")
    mm(1, 0)
    p(f"ds_read_u16 {v(TR+1)}, {v(TADR)} offset:8")
    p(f"ds_read_u16 {v(TR+2)}, {v(TADR)} offset:64")
    mm(1, 1)
    p(f"ds_read_u16 {v(TR+3)}, {v(TADR)} offset:72")
    p(f"v_add_u32 {v(BADR)}, {BSTR}, {v(BADR)}")
    mm(2, 0)
    cv(0, 0); cv(0, 1)
    mm(2, 1)
    cv(0, 2); cv(0, 3)
    for j in range(1, 8):
        if j + 2 < 8:
            mm(j + 2, 0)
        cv(j, 0); cv(j, 1)
        if j + 2 < 8:
            mm(j + 2, 1)
        cv(j, 2); cv(j, 3)
    p("s_waitcnt lgkmcnt(0)")


def t_reads():
    for x in range(4):
        p(f"ds_read_u16 {v(TR+x)}, {v(TADR)} offset:{(x>>1)*64+(x&1)*8}")


def g1(j):
    hb, ks = j >> 1, j & 1
    c = v(BIAS + 4 * hb, 4) if ks == 0 else v(ZB + 4 * hb, 4)
    return f"v_mfma_f32_16x16x32_bf16 {v(ZB+4*hb,4)}, {v(W+(hb*2+ks)*4,4)}, {v(XB+4*ks,4)}, {c}"


def read_xb(slot, ks):
    p(f"ds_read_b128 {v(XB+4*ks,4)}, {v((RDB0, RDB1)[ks])} offset:{slot*SLOT}")


SCHED = {
    "e": "ia ib k1 ent EV mid P0 e0 e1 e2 e3 e4 e5 A0 s0 s1 L2 G0 e6 q0 t0 e7 G2 e8 q1 t1 A1 r0 q2 t2 e9 G1 r1 q3 t3 e10 G3 "
         "r2 e11 r3 c0 A2 e12 G4 r4 c1 E2 e13 r5 e14 r6 c2 e15 G6 L0 m0 r7 da A3 G5 m1 r8 db G7 P1 r9 c3 vm y0 y1 r10 c4 k0 r11 B r12 c5 "
         "r13 r14 r15 c6 c7",
    "f": "ia ib k1 ent EV mid P0 e0 e1 e2 e3 e4 e5 A0 s0 s1 L2 G0 e6 q0 t0 e7 G2 e8 q1 t1 A1 r0 q2 t2 e9 G1 r1 q3 t3 e10 G3 "
         "r2 e11 r3 c0 A2 e12 G4 r4 c1 E2 m0 L0 da e13 r5 e14 r6 c2 e15 G6 P1 r7 A3 G5 m1 r8 G7 r9 c3 db vm y0 y1 r10 c4 k0 r11 B r12 c5 "
         "r13 r14 r15 c6 c7",
    "g": "ia ib k1 ent EV mid P0 e0 e1 e2 e3 e4 e5 A0 s0 s1 L2 G0 e6 q0 t0 e7 G2 e8 q1 t1 A1 r0 q2 t2 e9 G1 r1 q3 t3 e10 G3 "
         "r2 e11 r3 c0 A2 e12 G4 r4 c1 E2 e13 r5 e14 m0 L0 da r6 c2 e15 G6 P1 r7 A3 G5 m1 r8 G7 r9 c3 db vm y0 y1 r10 c4 k0 r11 B r12 c5 "
         "r13 r14 r15 c6 c7",
    "h": "ia ib k1 ent EV mid P0 e0 e1 e2 e3 e4 e5 A0 s0 s1 L2 G0 e6 q0 t0 e7 G2 e8 q1 t1 A1 r0 q2 t2 e9 G1 r1 q3 t3 e10 G3 "
         "r2 e11 r3 c0 A2 e12 G4 r4 c1 E2 m0 L0 da m1 e13 db r5 e14 r6 c2 e15 G6 P1 r7 A3 G5 r8 G7 r9 c3 vm y0 y1 r10 c4 k0 r11 B r12 c5 "
         "r13 r14 r15 c6 c7",
    "l": "ia ib k1 ent EV mid P0 e0 e1 e2 e3 e4 e5 A0 s0 s1 L2 G0 e6 q0 t0 e7 e8 q1 t1 G2 A1 q2 t2 r0 e9 q3 t3 G1 r1 e10 G3 "
         "r2 e11 m0 L0 da m1 r3 db c0 A2 e12 G4 r4 c1 E2 e13 r5 e14 r6 c2 e15 G6 P1 r7 A3 G5 r8 G7 r9 c3 r10 c4 k0 r11 B r12 c5 "
         "r13 r14 r15 vm y0 y1 c6 c7",
    "s": "ia ib k1 ent EV mid P0 e0 e1 e2 e3 e4 e5 A0 s0 s1 L2 G0 e6 q0 t0 e7 G2 e8 q1 t1 A1 r0 q2 t2 e9 G1 r1 q3 t3 e10 G3 "
         "r2 e11 r3 c0 A2 e12 G4 r4 c1 E2 e13 r5 e14 r6 c2 e15 G6 r7 A3 G5 r8 G7 m0 L0 da P1 m1 r9 db c3 vm y0 y1 r10 c4 k0 r11 B r12 c5 "
         "r13 r14 r15 c6 c7",
}


def event_mask():
    p(f"s_lshr_b64 {s(P0,2)}, {s(F,2)}, 2")
    p(f"s_lshr_b64 {s(H,2)}, {s(F,2)}, {D+1}")
    p(f"s_or_b32 {s(H)}, {s(H)}, {s(P0)}")
    p(f"s_or_b32 {s(H)}, {s(H)}, {s(F)}")


def mainloop(tag, slow, sched=None):
    toks = SCHED[sched or opt["sched"]].split()

    def scale(off):
        p(f"ds_read_b32 {v(TX)}, {v(RDM)} offset:{off}")
        p("s_waitcnt lgkmcnt(0)")
        for r in range(4):
            p(f"v_bfe_u32 {v(TX+1+r)}, {v(TX)}, {8*r}, 8")
            p(f"v_lshlrev_b32 {v(TX+1+r)}, 1, {v(TX+1+r)}")
        for r in range(4):
            p(f"buffer_load_ushort {v(TX+1+r)}, {v(TX+1+r)}, {s(SM,4)}, 0 offen")
        p("s_waitcnt vmcnt(0)")
        for r in range(4):
            p(f"v_lshlrev_b32 {v(TX+1+r)}, 16, {v(TX+1+r)}")
            p(f"v_mul_f32 {v(S+r)}, {v(S+r)}, {v(TX+1+r)}")

    def flush(last=False):
        p(f"v_cvt_pk_bf16_f32 {v(TX)}, {v(ACC)}, {v(ACC)}")
        if not last:
            p(f"v_mov_b32 {v(ACC)}, 0")
        if STAMP == 1:
            p("s_memrealtime s[96:97]")
            p("s_memtime s[98:99]")
            p(f"s_lshl_b32 {s(sT0)}, {s(sK)}, 1")
            p(f"s_sub_u32 {s(sT0)}, {16+2*(KB-1)}, {s(sT0)}")
            p("s_waitcnt lgkmcnt(0)")
            p(f"s_mov_b32 m0, {s(sT0)}")
            p("v_writelane_b32 v254, s96, m0")
            p(f"s_add_u32 m0, m0, 1")
            p("v_writelane_b32 v254, s98, m0")
            p(f"s_sub_u32 {s(sK)}, {s(sK)}, 1")
        p(f"ds_write_b16 {v(OADR)}, {v(TX)}")
        if last:
            return
        p(f"v_add_u32 {v(OADR)}, 128, {v(OADR)}")
        if slow:
            p(f"s_add_u32 {s(SM)}, {s(SM)}, {s(sMDL)}")
            p(f"s_addc_u32 {s(SM+1)}, {s(SM+1)}, 0")
            p(f"s_xor_b32 {s(sMDL)}, {s(sMDL)}, {MDL0 ^ MDL1:#x}")

    def emit(u, toks, tail):
        ev = opt["prio"] and u in ((0, D // 2) if opt["prio"] == 2 else (0,))
        for t in toks:
            k, n = t[0], (int(t[1:]) if t[1:].isdigit() else None)
            if opt.get("nodma") and t in ("da", "db"):
                continue
            if opt.get("lite") and k == "r" and n >= 16 - opt["lite"]:
                continue
            if opt.get("nocomp") and k in "ercsAGqk" and n is not None:
                continue
            if t == "vm":
                p(f"s_waitcnt vmcnt({2*(D-2)})")
            elif k == "y":
                read_xb((u + 2) % D, n)
            elif t == "ent":
                if u == 0:
                    p(f"L{tag}_mid:")
            elif t in ("mid", "mi2"):
                if slow:
                    scale(u * 16 + (16 if t == "mi2" else 0))
            elif t == "ia" and opt.get("xv") and not tail:
                for j in range(opt["xv"]):
                    p(f"v_exp_f32 v255, {v(ZB+j)}")
                p(f"ds_read_u8 {v(VA)}, {v(RDL)} offset:{(u+D)*16}")
            elif t == "ia":
                p(f"ds_read_u8 {v(VA)}, {v(RDL)} offset:{(u+D)*16}")
            elif t == "ib":
                p(f"ds_read_u8 {v(VB)}, {v(RDL)} offset:{(u+D)*16+8}")
            elif t == "EV":
                p(f"s_bitcmp1_b32 {s(H)}, {u}")
                p(f"s_cbranch_scc1 L{tag}_ev{u}")
                p(f"L{tag}_evd{u}:")
            elif t == "E2":
                if tail:
                    p(f"s_bitcmp0_b64 {s(F,2)}, 1")
                    p(f"s_cbranch_scc1 L{tag}_tnf")
                    flush()
                    p(f"L{tag}_tnf:")
            elif t == "P0":
                if ev:
                    p(f"ds_add_rtn_u32 {v(PRV)}, {v(PADR)}, {v(PINC)}")
            elif t == "P1":
                if ev:
                    p(f"v_readfirstlane_b32 {s(sT0)}, {v(PRV)}")
                    p("s_setprio 0")
                    p(f"s_cmp_gt_i32 {s(sT0)}, 0")
                    p(f"s_cbranch_scc0 L{tag}_lo{u}")
                    p("s_setprio 1")
                    p(f"L{tag}_lo{u}:")
            elif t == "da":
                p(dma_half(0))
            elif t == "db":
                p(dma_half(1))
            elif t == "B":
                if u == D - 1:
                    p(f"s_lshr_b64 {s(F,2)}, {s(F,2)}, {D}")
                    p(f"s_lshl_b64 {s(P0,2)}, {s(F+2,2)}, {64-D}")
                    p(f"s_or_b64 {s(F,2)}, {s(F,2)}, {s(P0,2)}")
                    p(f"s_lshr_b64 {s(F+2,2)}, {s(F+2,2)}, {D}")
                    event_mask()
                    p(f"v_add_u32 {v(RDL)}, {16*D}, {v(RDL)}")
                    if slow:
                        p(f"v_add_u32 {v(RDM)}, {16*D}, {v(RDM)}")
            elif k == "m":
                if not (opt["m1"] and n):
                    p(m0_half(u, n))
            elif k == "e":
                p(f"v_exp_f32 {v(ZA+n)}, {v(ZB+n)}")
            elif k == "r":
                p(f"v_rcp_f32 {v(ZA+n)}, {v(ZA+n)}")
            elif k == "c":
                p(f"v_cvt_pk_bf16_f32 {v(ZA+n)}, {v(ZA+2*n)}, {v(ZA+2*n+1)}")
            elif k == "s":
                p(f"v_cvt_pk_bf16_f32 {v(S+n)}, {v(S+2*n)}, {v(S+2*n+1)}")
            elif k == "A":
                p(f"v_mfma_f32_4x4x4_16b_bf16 {v(ZA+4*n,4)}, {v(ONE,2)}, {v(ONE,2)}, {v(ZA+4*n,4)}")
            elif k == "G":
                p(g1(n))
            elif k == "q":
                p(f"v_mfma_f32_4x4x4_16b_bf16 {v(ACC,4)}, {v(S,2)}, {v(XT+2*n,2)}, {v(ACC,4)} cbsz:4 abid:{4*n}")
            elif k == "t":
                p(f"ds_read_b64_tr_b16 {v(XT+2*n,2)}, {v(RDT)} offset:{u*SLOT+n*512+(n>>1)*32}")
            elif k == "k":
                p(f"v_mfma_f32_16x16x32_bf16 {v(S,4)}, {v(ZA+4*n,4)}, {v(W2+4*n,4)}, {v(B2,4) if n == 0 else v(S,4)}")
            elif k == "L":
                p(f"s_waitcnt lgkmcnt({n})")
            else:
                raise ValueError(t)

    p(f"L{tag}_loop:")
    for u in range(D):
        emit(u, toks, False)
    p(f"s_branch L{tag}_loop")
    for u in range(D):
        p(f"L{tag}_ev{u}:")
        jit()
        p(f"s_bitcmp0_b64 {s(F,2)}, {u}")
        p(f"s_cbranch_scc1 L{tag}_nf{u}")
        flush()
        p(f"L{tag}_nf{u}:")
        p(f"s_bitcmp0_b64 {s(F,2)}, {u+D+1}")
        p(f"s_cbranch_scc1 L{tag}_na{u}")
        if opt["swap"]:
            p(f"s_sub_u32 {s(sKA)}, {s(sKA)}, 1")
            p(f"s_cbranch_scc0 L{tag}_ns{u}")
            p(f"s_mov_b32 {s(sU)}, {u+D+1}")
            p(f"s_call_b64 {s(RET,2)}, L_swap")
            p(f"ds_read_u8 {v(VA)}, {v(RDL)} offset:{(u+D)*16}")
            p(f"ds_read_u8 {v(VB)}, {v(RDL)} offset:{(u+D)*16+8}")
            adv_hist()
            p(f"s_bitcmp0_b64 {s(F,2)}, {u+2}")
            p(f"s_cbranch_scc1 L{tag}_evd{u}")
            p("s_waitcnt lgkmcnt(0)")
            p(f"s_branch L{tag}_e1{u}")
            p(f"L{tag}_ns{u}:")
        adv_hist()
        p(f"L{tag}_na{u}:")
        p(f"s_bitcmp0_b64 {s(F,2)}, {u+2}")
        p(f"s_cbranch_scc1 L{tag}_evd{u}")
        p(f"L{tag}_e1{u}:")
        p(f"s_sub_u32 {s(sKW)}, {s(sKW)}, 1")
        p(f"s_cbranch_scc1 L{tag}_last{u}")
        if opt["swap"]:
            p(f"s_cmp_lg_u32 {s(sKW)}, {s(sM3)}")
            p(f"s_cbranch_scc1 L{tag}_nw{u}")
            p(f"v_add_u32 {v(TADR)}, {s(sDLB)}, {v(TADR)}")
            p(f"v_add_u32 {v(BADR)}, {s(sDLB)}, {v(BADR)}")
            t_reads()
            p("s_waitcnt lgkmcnt(0)")
            p(f"L{tag}_nw{u}:")
        wbuild()
        p(f"s_branch L{tag}_evd{u}")
    for u in range(D):
        p(f"L{tag}_last{u}:")
        if u:
            p(f"v_add_u32 {v(RDT)}, {u*SLOT}, {v(RDT)}")
            p(f"s_lshr_b64 {s(F,2)}, {s(F,2)}, {u}")
            if slow:
                p(f"v_add_u32 {v(RDM)}, {16*u}, {v(RDM)}")
        if u < D - 1:
            p(f"s_branch L{tag}_tail")
    p(f"L{tag}_tail:")
    i1 = toks.index("EV")
    drop = lambda t: t in ("vm", "ia", "ib", "EV", "ent", "P0", "P1", "da", "db", "B", "L2") or (t[0] in "Gym" and t[1:].isdigit())
    emit(0, [t for t in toks[i1:] + toks[:i1] if not drop(t)] + ["mi2", "s0", "s1", "q0", "q1", "q2", "q3"], True)
    flush(last=True)
    if tag != "f":
        p("s_branch L_store")


p(f"{NAME}:")
if opt.get("twice"):
    p("s_mov_b32 s3, 0")
    p("L_again:")
if opt.get("spin") or opt.get("endp"):
    p("s_memrealtime s[80:81]")
cst("entry")
if STAMP:
    if STAMP != 4:
        p("s_memrealtime s[98:99]")
        p("s_memtime s[96:97]")
    p("s_load_dwordx2 s[100:101], s[0:1], 72")
p("s_load_dwordx16 s[4:19], s[0:1], 0")
p(f"s_cmp_ge_u32 s2, {NWG}")
p("s_cbranch_scc1 L_end")
p("v_lshrrev_b32 v1, 6, v0")
p("v_and_b32 v0, 63, v0")
p(f"v_readfirstlane_b32 {s(sw)}, v1")
if opt["map"] & 2:
    p("s_and_b32 s3, s2, 7")
    p("s_lshl_b32 s3, s3, 5")
    p(f"s_lshr_b32 {s(sW)}, s2, 3")
    p(f"s_add_u32 {s(sW)}, {s(sW)}, s3")
    p(f"s_lshl_b32 {s(sW)}, {s(sW)}, {(WGSTR//2).bit_length()-1}")
else:
    p(f"s_lshl_b32 {s(sW)}, s2, {(WGSTR//2).bit_length()-1}")
p("v_lshlrev_b32 v2, 4, v0")
p("v_lshrrev_b32 v1, 4, v0")
p("v_and_b32 v3, 0xf0, v2")
p("v_lshlrev_b32 v3, 2, v3")
p(f"v_lshl_add_u32 {v(QH)}, v1, 4, v3")
p("v_bfrev_b32 v3, 1")
p(f"s_add_u32 {s(sW)}, {s(sW)}, {s(sw)}")
p(f"s_movk_i32 {s(sT0)}, 800")
p(f"v_cmp_gt_u32 vcc, {s(sT0)}, {v(QH)}")
p(f"s_mul_i32 {s(sOFF)}, {s(sW)}, 800")
p(f"s_mul_i32 {s(sLB)}, {s(sw)}, {REG}")
p(f"s_mov_b64 {s(EX50,2)}, vcc")
p(f"v_cndmask_b32 v3, v3, {v(QH)}, vcc")
p(f"v_and_b32 {v(TX+2)}, 16, v0")
p(f"v_lshlrev_b32 {v(TX)}, 1, {v(TX+2)}")
p(f"v_xor_b32 {v(TX)}, {v(TX)}, v2")
p(f"v_and_b32 {v(VOUT)}, 0xf0, v2")
p(f"v_lshl_add_u32 {v(VOUT)}, v1, {LGP+7}, {v(VOUT)}")
p(f"s_lshl_b32 {s(sT0)}, {s(sW)}, 8")
p(f"v_add_u32 {v(VOUT)}, {s(sT0)}, {v(VOUT)}")
p(f"s_lshl_b32 {s(sT1)}, {s(sw)}, 12")
p(f"s_add_u32 m0, {s(sLB)}, {TB}")
p(f"s_mov_b32 {s(SM+2)}, {16384*400}")
p(f"s_mov_b32 {s(SM+3)}, 0x20000")
p("s_waitcnt lgkmcnt(0)")
cst("kernarg")
if STAMP and STAMP != 4:
    p("v_mov_b32 v254, 0")
    p("v_writelane_b32 v254, s98, 0")
    p("v_writelane_b32 v254, s96, 32")
    nstamp[0] = 1
    stamp()
p(f"s_mov_b32 {s(SM)}, s8")
p(f"s_and_b32 {s(SM+1)}, s9, 0xffff")
if opt["ym"]:
    p(f"s_cmp_ge_u32 {s(sw)}, 4")
    p("s_cbranch_scc1 L_young0")
p(f"buffer_load_dwordx4 {v(MSK,4)}, v3, {s(SM,4)}, {s(sOFF)} offen {NTM}")
p("L_young0:")
if opt.get("xs"):
    for j in range(opt["xs"]):
        p("s_nop 15")
p(f"global_load_lds_dwordx4 {v(VOUT)}, s[4:5] {NTM}")
p(f"s_add_u32 m0, {s(sLB)}, {STG}")
p(f"s_add_u32 s10, s10, {s(sT1)}")
p("s_addc_u32 s11, s11, 0")
p(f"v_xor_b32 {v(TX+1)}, 64, {v(TX)}")
if opt.get("nsw"):
    p(f"v_mov_b32 {v(TX)}, v2")
    p(f"v_mov_b32 {v(TX+1)}, v2")
for j in range(4):
    p(f"global_load_lds_dwordx4 {v(TX+(j&1))}, s[10:11] offset:{j*1024}")
p(f"s_load_dword {s(sB2)}, s[16:17], 0")
p(f"s_and_b32 {s(sT1)}, {s(sw)}, 3")
B1R, W2R = CD + 28, DG


def load_b1():
    p(f"s_and_b32 {s(sT0)}, {s(sw)}, 3")
    p(f"s_lshl_b32 {s(sT0)}, {s(sT0)}, 5")
    p(f"v_lshl_add_u32 {v(TX+3)}, v1, 3, {s(sT0)}")
    p(f"global_load_dwordx2 {v(B1R,2)}, {v(TX+3)}, s[12:13]")


if not opt["ym"]:
    load_b1()
p(f"v_and_b32 {v(TX+4)}, 3, v0")
NVM = 11
if opt.get("arr"):
    cst("arr_issued")
    for n_out in (5, 4, 3, 2, 1, 0):
        p(f"s_waitcnt vmcnt({n_out})")
        cst(f"arr{n_out}")
stamp()
srd(SH, 6, 200, stride=128)
if opt["m1"]:
    p(f"s_sub_u32 {s(SH2)}, {s(SH)}, 1056")
    p(f"s_subb_u32 {s(SH2+1)}, {s(SH+1)}, 0")
    p(f"s_mov_b32 {s(SH2+2)}, 200")
    p(f"s_mov_b32 {s(SH2+3)}, 0x20000")


def list_reset():
    p(f"s_mul_i32 {s(sRO)}, {s(sW)}, 51200")
    p(f"s_movk_i32 {s(sDL)}, {DLT0}")
    if opt["swap"]:
        p(f"s_mov_b32 {s(sKA)}, {KB-3}")
    p(f"s_mov_b64 {s(F,2)}, 0")
    p(f"s_mov_b64 {s(F+2,2)}, 0")
    for j in range(4):
        p(f"v_mov_b32 {v(ZB+j)}, -1")
    p(f"s_add_u32 {s(sT0)}, {s(sLB)}, {LI}")
    p(f"v_add_u32 {v(ZB+4)}, {s(sT0)}, v2")
    p(f"ds_write_b128 {v(ZB+4)}, {v(ZB,4)}")
    p(f"ds_write_b128 {v(ZB+4)}, {v(ZB,4)} offset:1024")
    p(f"s_add_u32 {s(sBASE)}, {s(sLB)}, {L0}")


list_reset()
for j in range(5, 2 * D):
    p(f"v_mov_b32 {v(ZB+j)}, -1")
p(f"v_lshrrev_b32 {v(RDL)}, 3, v0")
p(f"v_add_u32 {v(RDL)}, {s(sBASE)}, {v(RDL)}")
p(f"v_lshl_add_u32 {v(RDM)}, v1, 2, {s(sT0)}")
p(f"v_and_b32 {v(VA+1)}, 0x70, v2")
p(f"v_lshlrev_b32 {v(TX+2)}, 2, {v(TX+2)}")
p(f"v_xor_b32 {v(VA+1)}, {v(VA+1)}, {v(TX+2)}")
p(f"v_mov_b32 {v(VB+1)}, {v(VA+1)}")
lane_mask = lambda f: sum(1 << i for i in range(64) if f(i & 15, i >> 4))


def smask(dst, m):
    p(f"s_mov_b32 {s(dst)}, {m & 0xffffffff:#x}")
    p(f"s_mov_b32 {s(dst+1)}, {m >> 32:#x}")


p(f"s_movk_i32 {s(sT0)}, 400")
p(f"v_cmp_le_u32 vcc, {s(sT0)}, {v(QH)}")
p(f"v_lshrrev_b32 {v(QV)}, 1, {v(QH)}")
p(f"s_movk_i32 {s(sT0)}, -200")
p(f"v_cndmask_b32 {v(QH)}, 0, 1, vcc")
p(f"v_mad_i32_i24 {v(QV)}, {v(QH)}, {s(sT0)}, {v(QV)}")
p(f"v_mul_u32_u24 {v(QV+1)}, 0x10001, {v(QV)}")
p(f"v_add_u32 {v(QV)}, 0x10000, {v(QV+1)}")
p(f"v_add_u32 {v(QV+2)}, 0x50004, {v(QV+1)}")
p(f"v_add_u32 {v(QV+3)}, 0x70006, {v(QV+1)}")
p(f"v_add_u32 {v(QV+1)}, 0x30002, {v(QV+1)}")
p(f"v_mov_b32 {v(NBA)}, {CNT:#x}")
smask(P0, lane_mask(lambda m, g: (m >> 2) >= g))
smask(P1, lane_mask(lambda m, g: (m >> 2) > g))
smask(P2, lane_mask(lambda m, g: (m >> 2) == g))
smask(NB, lane_mask(lambda m, g: (m & 3) == 0 or (m, g) == (1, 0)))
for x in range(2):
    p(f"v_cndmask_b32 {v(AP+x)}, 0, {v(NBA)}, {s(P0,2)}")
    p(f"v_cndmask_b32 {v(AP+4+x)}, 0, {v(NBA)}, {s(P1,2)}")
for x in range(4):
    p(f"v_cndmask_b32 {v(AT+x)}, 0, {v(NBA)}, {s(NB,2)}")
p(f"v_lshlrev_b32 {v(TX)}, 4, {v(TX+4)}")
p(f"v_sub_u32 {v(TX)}, 48, {v(TX)}")
smask(P0, 0x00F0BFE0BFE0BFE0)
p(f"v_lshrrev_b64 {v(AP+2,2)}, {v(TX)}, {s(P0,2)}")
p(f"v_mov_b32 {v(NBA)}, 0")
p(f"s_mov_b64 {s(NB,2)}, 0")
for x in range(2):
    p(f"v_cndmask_b32 {v(AP+2+x)}, {v(AP+4+x)}, {v(AP+2+x)}, {s(P2,2)}")
if STAMP:
    p(f"s_mov_b32 {s(sK)}, {KB-1}")
p(f"s_mov_b32 {s(sKW)}, {KB-1}")
p(f"s_mov_b32 {s(sC)}, {CNEG:#x}")
n_, r_, c_ = TX + 5, TX + 6, TX + 4
p(f"v_and_b32 {v(n_)}, 15, v0")
p(f"v_bfe_u32 {v(r_)}, v0, 2, 2")
X0 = TX + 7
SA, SC_, SB_, TBA, BWA = CA + 60, CA + 61, CA + 62, CA + 63, CD + 30
IDN, N0M = DG + 2, DG + 4
p(f"v_lshlrev_b32 {v(X0)}, 3, {v(c_)}")
p(f"v_lshl_add_u32 {v(X0)}, {v(r_)}, 7, {v(X0)}")
p(f"v_and_b32 {v(TX)}, 24, v0")
p(f"v_lshlrev_b32 {v(TX)}, 2, {v(TX)}")
p(f"v_xor_b32 {v(TX)}, {v(X0)}, {v(TX)}")
p(f"v_lshl_add_u32 {v(TX)}, v1, 10, {v(TX)}")
p(f"s_lshl_b32 {s(sT0)}, {s(sT1)}, 5")
p(f"v_xor_b32 {v(SB_)}, {s(sT0)}, {v(TX)}")
p(f"v_add_u32 {v(SB_)}, {STG+2*REG}, {v(SB_)}")
p(f"s_lshr_b32 {s(sT0)}, {s(sw)}, 1")
p(f"s_lshl_b32 {s(sT0)}, {s(sT0)}, 5")
p(f"v_xor_b32 {v(SA)}, {s(sT0)}, {v(TX)}")
p(f"s_and_b32 {s(sT0)}, {s(sw)}, 1")
p(f"s_mul_i32 {s(sT0)}, {s(sT0)}, {REG}")
p(f"s_add_u32 {s(sT0)}, {s(sT0)}, {STG}")
p(f"v_add_u32 {v(SA)}, {s(sT0)}, {v(SA)}")
p(f"v_add_u32 {v(SC_)}, {4*REG}, {v(SA)}")
p(f"s_and_b32 {s(sT0)}, {s(sw)}, 4")
p(f"v_lshrrev_b32 {v(TX)}, 3, {v(n_)}")
p(f"v_add_u32 {v(TX)}, {s(sT0)}, {v(TX)}")
p(f"v_mul_u32_u24 {v(TX)}, {REG}, {v(TX)}")
p(f"v_lshl_add_u32 {v(TX)}, v1, 4, {v(TX)}")
p(f"v_and_b32 {v(TX+1)}, 7, v0")
p(f"v_lshl_add_u32 {v(TBA)}, {v(TX+1)}, 7, {v(TX)}")


def gRDB():
    p(f"v_and_b32 {v(TX+1)}, 8, v0")
    p(f"v_lshlrev_b32 {v(TX+1)}, 2, {v(TX+1)}")
    p(f"v_lshl_add_u32 {v(TX+1)}, {v(n_)}, 7, {v(TX+1)}")
    p(f"v_add_u32 {v(TX+1)}, {s(sLB)}, {v(TX+1)}")
    p(f"v_and_b32 {v(TX+2)}, 2, v0")
    p(f"v_lshlrev_b32 {v(TX+2)}, 1, {v(TX+2)}")
    p(f"v_xor_b32 {v(TX+2)}, {v(TX+2)}, v1")
    p(f"v_lshl_add_u32 {v(RDB0)}, {v(TX+2)}, 4, {v(TX+1)}")
    p(f"v_xor_b32 {v(TX+2)}, 4, {v(TX+2)}")
    p(f"v_lshl_add_u32 {v(RDB1)}, {v(TX+2)}, 4, {v(TX+1)}")


def gRDT():
    p(f"v_and_b32 {v(TX+1)}, 8, v0")
    p(f"v_lshlrev_b32 {v(TX+1)}, 3, {v(TX+1)}")
    p(f"v_lshl_add_u32 {v(TX+2)}, v1, 5, {v(X0)}")
    p(f"v_xor_b32 {v(TX+2)}, {v(TX+2)}, {v(TX+1)}")
    p(f"v_add_u32 {v(RDT)}, {s(sLB)}, {v(TX+2)}")


def gTAD():
    p(f"s_add_u32 {s(sT0)}, {s(sLB)}, {TB}")
    p(f"v_lshl_add_u32 {v(TADR)}, {v(c_)}, 1, {s(sT0)}")
    p(f"v_lshl_add_u32 {v(TADR)}, {'v1' if W44 else v(r_)}, 4, {v(TADR)}")
    p(f"s_add_u32 {s(sT0)}, {s(sLB)}, {OUTS}")
    p(f"v_lshl_add_u32 {v(OADR)}, v0, 1, {s(sT0)}")
    p(f"s_add_u32 {s(sT0)}, {s(sLB)}, {BI}")
    p(f"v_lshl_add_u32 {v(BADR)}, v1, 4, {s(sT0)}")


def gBWA():
    p(f"s_and_b32 {s(sT0)}, {s(sw)}, 3")
    p(f"s_lshl_b32 {s(sT0)}, {s(sT0)}, 6")
    p(f"s_add_u32 {s(sT0)}, {s(sT0)}, {BI}")
    p(f"v_and_b32 {v(TX+1)}, 7, v0")
    p(f"v_mul_u32_u24 {v(TX+1)}, {BSTR-128}, {v(TX+1)}")
    p(f"v_add3_u32 {v(BWA)}, {v(TBA)}, {v(TX+1)}, {s(sT0)}")


def gSEL():
    if not W44:
        p(f"v_cmp_eq_u32 vcc, {v(r_)}, v1")
    p(f"v_and_b32 {v(TX+1)}, 1, v0")
    p(f"v_lshlrev_b32 {v(TX+1)}, 4, {v(TX+1)}")
    p(f"v_lshlrev_b32 {v(TX+1)}, {v(TX+1)}, 1")
    if not W44:
        p(f"v_cndmask_b32 {v(TX+1)}, 0, {v(TX+1)}, vcc")
    p(f"v_cmp_gt_u32 vcc, 2, {v(c_)}")
    p(f"v_mov_b32 {v(ONE+1)}, 0")
    p(f"v_mov_b32 {v(ONE)}, 0x3f80")
    p(f"v_cndmask_b32 {v(SEL0)}, 0, {v(TX+1)}, vcc")
    p(f"v_cmp_eq_u32 vcc, 0, {v(n_)}")
    p(f"v_sub_u32 {v(SEL1)}, {v(TX+1)}, {v(SEL0)}")
    p(f"v_mul_u32_u24 {v(IDN)}, 0x3f80, {v(SEL0)}")
    p(f"v_cndmask_b32 {v(N0M)}, 0, -1, vcc")
    p(f"v_mul_u32_u24 {v(IDN+1)}, 0x3f80, {v(SEL1)}")


def gZER():
    for j in range(8):
        p(f"v_mov_b32 {v(XT+j)}, 0")
    for j in range(4):
        p(f"v_mov_b32 {v(S+j)}, 0")
        p(f"v_mov_b32 {v(ACC+j)}, 0")


def gB2():
    p(f"s_lshl_b32 {s(sB2)}, {s(sB2)}, 16")
    for r in range(4):
        p(f"v_and_b32 {v(B2+r)}, {s(sB2)}, {v(N0M)}")


def gPRI():
    if opt["prio"]:
        p(f"s_add_u32 {s(sT0)}, {s(sLB)}, {PRG}")
        p(f"v_lshl_add_u32 {v(DG+5)}, v0, 2, {s(sT0)}")
        p(f"ds_write_b32 {v(DG+5)}, {v(ONE+1)}")
        p(f"s_xor_b32 {s(sT0)}, {s(sw)}, 4")
        p(f"s_mul_i32 {s(sT0)}, {s(sT0)}, {REG}")
        p(f"s_add_u32 {s(sT0)}, {s(sT0)}, {PRG}")
        p(f"v_writelane_b32 {v(DG+5)}, {s(sT0)}, 1")
    if opt["swap"]:
        p(f"v_mov_b32 {v(DG+6)}, {s(sLB)}")
        p(f"ds_write_b32 {v(DG+6)}, {v(ONE+1)} offset:{KEY}")
        p(f"ds_write_b32 {v(DG+6)}, {v(ONE+1)} offset:{TKT}")
        p(f"s_mov_b32 {s(sDLB)}, 0")
        p(f"s_mov_b32 {s(sDG)}, 0")


PLACE = dict(zip((gSEL, gBWA, gPRI, gB2, gRDB, gRDT, gTAD, gZER), (int(x) for x in str(opt["place"])[1:])))


def groups(k):
    for f, w_ in PLACE.items():
        if w_ == k:
            f()


groups(0)
if opt["ym"]:
    load_b1()
    p(f"s_cmp_ge_u32 {s(sw)}, 4")
    p("s_cbranch_scc0 L_old3z")
    p(f"buffer_load_dwordx4 {v(MSK,4)}, v3, {s(SM,4)}, {s(sOFF)} offen {NTM}")
    p("L_old3z:")


def late_loads():
    if opt["tlb"]:
        p(f"s_add_u32 {s(sT0)}, {s(sw)}, 1")
        p(f"s_and_b32 {s(sT0)}, {s(sT0)}, 6")
        p("s_cbranch_scc1 L_notouch")
        p(f"s_mov_b32 {s(sT0)}, {PSTR*25600}")
        p(f"v_mul_lo_u32 v255, v0, {s(sT0)}")
        p(f"s_mul_i32 {s(sT0)}, {s(sW)}, 51200")
        p(f"s_and_b32 {s(sT1)}, {s(sw)}, 1")
        p(f"s_mul_i32 {s(sT1)}, {s(sT1)}, {51200-128}")
        p(f"s_add_u32 {s(sT0)}, {s(sT0)}, {s(sT1)}")
        p(f"v_add_u32 v255, {s(sT0)}, v255")
        p("s_mov_b64 exec, 14")
        p(f"global_load_dword v255, v255, s[6:7] {NT}")
        p("s_mov_b64 exec, -1")
        p("L_notouch:")
    for j in range(1, 4):
        p(f"s_add_u32 {s(sOFF)}, {s(sOFF)}, {PSTR*400}")
        p(f"buffer_load_dwordx4 {v(MSK+4*j,4)}, v3, {s(SM,4)}, {s(sOFF)} offen {NTM}")
    p(f"v_lshlrev_b32 {v(TX+3)}, 3, v1")
    p(f"v_lshl_add_u32 {v(TX+3)}, {v(TX+4)}, 5, {v(TX+3)}")
    p(f"global_load_dwordx2 {v(W2R,2)}, {v(TX+3)}, s[14:15]")


G2 = opt["g2"]
if not G2:
    late_loads()
LL = 0 if G2 else 4
NE = D - 2
IDX = ZB


def idx_reads():
    for t in range(D):
        p(f"ds_read_u8 {v(IDX+2*t)}, {v(RDL)} offset:{t*16}")
        p(f"ds_read_u8 {v(IDX+2*t+1)}, {v(RDL)} offset:{t*16+8}")


def tiles(t0, t1, bits, tag):
    for t in range(t0, t1):
        if t > 0:
            p(f"s_bitcmp0_b64 {s(bits,2)}, {t+1}")
            p(f"s_cbranch_scc1 L_noadv{tag}{t}")
            adv_hist()
            if opt["swap"]:
                p(f"s_sub_u32 {s(sKA)}, {s(sKA)}, 1")
            p(f"L_noadv{tag}{t}:")
        p(m0_half(t, 0))
        p(f"v_mov_b32 {v(VA)}, {v(IDX+2*t)}")
        p(f"v_mov_b32 {v(VB)}, {v(IDX+2*t+1)}")
        p(dma_half(0))
        if not opt["m1"]:
            p(m0_half(t, 1))
            p("s_nop 0")
        p(dma_half(1))


issued = [0]


def early(n):
    if n == 0:
        return
    t0 = issued[0]
    p(f"s_cmp_eq_u32 {s(sEARLY)}, 0")
    p(f"s_cbranch_scc1 L_skip{t0}")
    tiles(t0, t0 + n, F, "e")
    p(f"L_skip{t0}:")
    issued[0] += n


def x5tile():
    p(f"ds_read_u8 {v(VA)}, {v(RDL)} offset:{D*16}")
    p(f"ds_read_u8 {v(VB)}, {v(RDL)} offset:{D*16+8}")
    p(f"s_add_u32 m0, {s(sLB)}, {LI-2176}")
    p("s_waitcnt lgkmcnt(0)")
    p(dma_half(0))
    p(dma_half(1))


def first_pair():
    q_total(0, 0)
    t = q_test(0)
    for x in t[:8]:
        p(x)
    for step in range(5):
        p(q_scan(0, step))
        for x in t[8 + step:9 + step]:
            p(x)
    p(f"v_cmp_ne_u32 vcc, 0, {v(NBA)}")
    q_lanes(0)
    p(f"s_mov_b32 {s(sEARLY)}, 0")
    p("s_cbranch_vccnz L_late")
    q_ranks(0, 0)
    p(f"s_add_u32 {s(sT0)}, {s(sLB)}, {L0+16*D}")
    p(f"s_cmp_ge_u32 {s(sBASE)}, {s(sT0)}")
    q_write(0)
    p("s_cbranch_scc0 L_late")
    p(f"s_mov_b32 {s(sEARLY)}, 1")
    idx_reads()
    p("s_waitcnt lgkmcnt(0)")
    tiles(0, NE, F, "e")
    if opt.get("x5") == 2:
        x5tile()
    p(f"s_setpc_b64 {s(RET,2)} ; ret=L_fp")
    p("L_late:")
    p("s_waitcnt vmcnt(0)")
    p(f"s_setpc_b64 {s(RET,2)} ; ret=L_fp")


stamp()
jit()
if not opt["yf"]:
    p(f"s_cmp_ge_u32 {s(sw)}, 4")
    p("s_cbranch_scc1 L_young1")
p(f"s_waitcnt vmcnt({6+LL}) lgkmcnt(0)")
p(f"s_call_b64 {s(RET,2)}, L_fp")
p(f"s_waitcnt vmcnt({1+LL+2*NE})")
p("s_branch L_old1")
p("L_young1:")
p(f"s_waitcnt vmcnt({1+LL+opt['ym']})")
p("L_old1:")
cst("preB1")
p(f"s_waitcnt lgkmcnt(0)")
p("s_barrier")
stamp()
cst("B1")
jit()
RWA, RWC, RWD, RBB, RBC, TP, DB, DA, DD = CA, CA + 4, CA + 8, CA + 12, CA + 20, CA + 28, CA + 44, CA + 52, CD
for (dst, base) in ((RBB, 0), (RBC, 2)):
    for ks in range(2):
        for u in range(2):
            p(f"ds_read_b64_tr_b16 {v(dst+4*ks+2*u,2)}, {v(SB_)} offset:{(base+ks)*REG+u*512}")
for j in range(2):
    for ks in range(2):
        p(f"ds_read_b128 {v(TP+8*j+4*ks,4)}, {v(TBA)} offset:{TB+j*2*REG+ks*64}")
for u in range(2):
    p(f"ds_read_b64_tr_b16 {v(RWA+2*u,2)}, {v(SA)} offset:{u*512}")
    p(f"ds_read_b64_tr_b16 {v(RWC+2*u,2)}, {v(SC_)} offset:{u*512}")
    p(f"ds_read_b64_tr_b16 {v(RWD+2*u,2)}, {v(SC_)} offset:{2*REG+u*512}")
if not opt["yf"]:
    p(f"s_cmp_ge_u32 {s(sw)}, 4")
    p("s_cbranch_scc1 L_young2")
p(f"s_waitcnt vmcnt({LL+2*NE})")
p("s_branch L_old2")
p("L_young2:")
p(f"s_waitcnt vmcnt({LL+opt['ym']})")
p("L_old2:")
if G2:
    late_loads()
for j in range(2):
    p(f"v_lshlrev_b32 {v(DB+2*j)}, 16, {v(B1R+j)}")
    p(f"v_and_b32 {v(DB+2*j+1)}, 0xffff0000, {v(B1R+j)}")
groups(1)
jit()
cst("firstpair")
p("s_waitcnt lgkmcnt(0)")
for j in range(8):
    p(f"v_xor_b32 {v(RBC+j)}, 0x80008000, {v(RBC+j)}")
for u in range(2):
    p(f"{DIAGMM} {v(DA+4*u,4)}, {v(IDN,2)}, {v(RWA+2*u,2)}, 0")
    p(f"{DIAGMM} {v(DD+4*u,4)}, {v(IDN,2)}, {v(RWD+2*u,2)}, 0")
for u in range(2):
    p(f"{DIAGMM} {v(DA+4*u,4)}, {v(IDN,2)}, {v(RWC+2*u,2)}, {v(DA+4*u,4)}")
for j in (1, 0):
    first = True
    for (src) in (RBB, RBC):
        for ks in range(2):
            c = v(DB, 4) if first else v(DB + 4 * j, 4)
            p(f"v_mfma_f32_16x16x32_bf16 {v(DB+4*j,4)}, {v(src+4*ks,4)}, {v(TP+8*j+4*ks,4)}, {c}")
            first = False
for j in range(8):
    p(f"v_mul_f32 {v(DA+j)}, {s(sC)}, {v(DA+j)}")
for j in range(8):
    p(f"v_mul_f32 {v(DD+j)}, {s(sC)}, {v(DD+j)}")
p(f"s_add_u32 {s(sT0)}, {s(sLB)}, {XCH}")
p(f"v_add_u32 v3, {s(sT0)}, v2")
for j in range(4):
    p(f"v_cvt_pk_bf16_f32 {v(DD+j)}, {v(DD+2*j)}, {v(DD+2*j+1)}")
for j in range(8):
    p(f"v_mul_f32 {v(DB+j)}, {s(sC)}, {v(DB+j)}")
p(f"ds_write_b128 v3, {v(DA,4)}")
p(f"ds_write_b128 v3, {v(DA+4,4)} offset:1024")
p(f"ds_write_b128 v3, {v(DD,4)} offset:2048")
p(f"ds_write_b128 {v(BWA)}, {v(DB,4)}")
p(f"ds_write_b128 {v(BWA)}, {v(DB+4,4)} offset:{2*REG}")
p(f"v_add_u32 v3, {XCH}, v2")
p(f"v_add_u32 {v(TX)}, {4*REG}, v3")
cst("preB3")
p("s_waitcnt lgkmcnt(0)")
p("s_barrier")
cst("B3")
jit()
stamp()
def const_reads(w0, w1):
    if opt.get("xc"):
        return
    for w_ in range(w0, w1):
        a = "v3" if w_ < 4 else v(TX)
        p(f"ds_read_b128 {v(CA+8*w_,4)}, {a} offset:{(w_&3)*REG}")
        p(f"ds_read_b128 {v(CA+8*w_+4,4)}, {a} offset:{(w_&3)*REG+1024}")
        p(f"ds_read_b128 {v(CD+4*w_,4)}, {a} offset:{(w_&3)*REG+2048}")


if opt["yf"]:
    assert not opt["ym"] and not opt["y2"]
    p("s_branch L_old3")
p(f"s_cmp_ge_u32 {s(sw)}, 4")
p("s_cbranch_scc0 L_old3")
if opt["yp"]:
    p("s_setprio 2")
if opt["ym"]:
    p("s_waitcnt vmcnt(4)")
p(f"s_call_b64 {s(RET,2)}, L_fp")
if opt["y2"]:
    p("s_branch L_yng3")
p("L_old3:")
p(f"s_call_b64 {s(RET,2)}, L_t23")
p("L_yng3:")
const_reads(0, 3)
groups(2)
p(f"s_waitcnt vmcnt({2*NE if opt['y2'] or G2 else 2*D})")
cst("tiles23")
for i in range(3):
    q_total(i, i + 1)
t = q_test(1) + q_test(2) + q_test(3)
for x in t[:9]:
    p(x)
for step in range(5):
    for i in range(3):
        p(q_scan(i, step))
const_reads(3, 5)
for x in t[9:]:
    p(x)
p(f"v_cmp_ne_u32 vcc, 0, {v(NBA)}")
for i in range(3):
    q_lanes(i)
p("s_cbranch_vccnz L_general")
q_ranks(0, 1)
q_ranks(1, 2)
q_write(0)
q_ranks(2, 3)
q_write(1)
const_reads(5, 8)
t_reads()
q_write(2)
if opt["y2"]:
    p(f"s_cmp_ge_u32 {s(sw)}, 4")
    p("s_cbranch_scc0 L_old3b")
    p(f"s_call_b64 {s(RET,2)}, L_t23")
    p("L_old3b:")
p("L_listed:")
stamp()
jit(True)
if opt["swap"]:
    if opt.get("krow", 0):
        p(f"s_and_b32 {s(sT0)}, {s(A0+10)}, 0x1ff")
        p(f"s_lshl_b32 {s(sT0)}, {s(sT0)}, 3")
    else:
        p(f"s_sub_u32 {s(sT0)}, {s(sE3)}, {s(sB3)}")
    p(f"s_or_b32 {s(sT0)}, {s(sT0)}, {s(sw)}")
    p(f"s_and_b32 {s(sT1)}, {s(NB)}, 0x40000000")
    p(f"s_or_b32 {s(sT0)}, {s(sT0)}, {s(sT1)}")
    p(f"s_bitset1_b32 {s(sT0)}, 31")
    for x, r in enumerate((sT0, sB3, sM3, sE3)):
        p(f"v_mov_b32 {v(ZA+x)}, {s(r)}")
    p("s_mov_b64 exec, 1")
    p(f"ds_write_b128 {v(DG+6)}, {v(ZA,4)} offset:{KEY}")
    p("s_mov_b64 exec, -1")
if opt["prio"]:
    step = D if opt["prio"] == 2 else 2 * D
    p(f"s_sub_u32 {s(sT0)}, {s(sBASE)}, {s(sLB)}")
    p(f"s_sub_u32 {s(sT0)}, {s(sT0)}, {L0}")
    p(f"s_lshr_b32 {s(sT0)}, {s(sT0)}, 3")
    if opt["bias"]:
        p(f"s_lshr_b32 {s(sT1)}, {s(sw)}, 2")
        p(f"s_mul_i32 {s(sT1)}, {s(sT1)}, {2*opt['bias']}")
        p(f"s_add_u32 {s(sT0)}, {s(sT0)}, {s(sT1)}")
    p(f"s_sub_u32 {s(sT1)}, 0, {s(sT0)}")
    p(f"v_mov_b32 {v(PADR)}, {v(DG+5)}")
    p(f"v_mov_b32 {v(PRV)}, {s(sT0)}")
    p(f"v_mov_b32 {v(PINC)}, {-step}")
    p(f"v_writelane_b32 {v(PRV)}, {s(sT1)}, 1")
    p(f"v_writelane_b32 {v(PINC)}, {step}, 1")
    p(f"ds_add_u32 {v(PADR)}, {v(PRV)}")
p(f"s_cmp_eq_u32 {s(sEARLY)}, 1")
p("s_cbranch_scc1 L_nolate")
idx_reads()
p("s_waitcnt lgkmcnt(0)")
tiles(0, D, F, "l")
p("L_nolate:")
for hb in range(4):
    for j in range(2):
        p(f"v_and_b32_dpp {v(W2+2*hb+j)}, {v(W2R+j)}, {v(N0M)} quad_perm:[{hb},{hb},{hb},{hb}] row_mask:0xf bank_mask:0xf")
if opt.get("xp"):
    for j in range(opt["xp"]):
        p("s_nop 15")
cst("precompactdone")
p(f"s_waitcnt vmcnt({2*(D-1)}) lgkmcnt(0)")
read_xb(0, 0)
read_xb(0, 1)
wbuild()
stamp()
stamp(33)
cst("wbuilt")
if STAMP == 4:
    p("s_waitcnt lgkmcnt(0)")
    p("v_mov_b32 v254, 0")
    for j, r in enumerate((38,80,82,96,98,44,46,48,50,16)):
        p(f"v_writelane_b32 v254, s{r}, {j}")
for j in range(8):
    p(g1(j))
p(f"s_waitcnt vmcnt({2*(D-2)})")
read_xb(1, 0)
read_xb(1, 1)
p(f"ds_read_u8 {v(VA)}, {v(RDL)} offset:{D*16}")
p(f"ds_read_u8 {v(VB)}, {v(RDL)} offset:{D*16+8}")
if opt.get("x5"):
    p("s_waitcnt lgkmcnt(0)")
    p(f"v_mov_b32 {v(VA)}, 0xff")
    p(f"v_mov_b32 {v(VB)}, 0xff")
event_mask()
p(f"s_cmp_lg_u64 {s(NB,2)}, 0")
if opt.get("so"):
    p("s_cbranch_scc1 L_gen2")
    p(f"s_getreg_b32 {s(sT0)}, hwreg(HW_REG_XCC_ID, 0, 1)")
    p(f"s_cmp_eq_u32 {s(sT0)}, 0")
    p("s_cbranch_scc1 Lf_mid")
    p("s_branch Lo_mid")
    p("L_gen2:")
else:
    p("s_cbranch_scc0 Lf_mid")
p(f"s_mul_i32 {s(sT0)}, {s(sW)}, 800")
p(f"s_add_u32 s8, s8, {s(sT0)}")
p("s_addc_u32 s9, s9, 0")
srd(SM, 8, 400)
p(f"s_movk_i32 {s(sMDL)}, {MDL0}")
p("s_branch Ls_mid")
p("L_fp:")
first_pair()
if opt["swap"]:
    A_, B_, KB_, TK_, KA_ = ZA + 8, ZA + 9, ZA + 10, ZA + 11, ZA + 12
    p("L_swap:")
    p(f"v_lshrrev_b32 {v(A_)}, 3, v0")
    p(f"v_and_b32 {v(B_)}, 7, v0")
    p(f"v_mul_u32_u24 {v(A_)}, {REG}, {v(A_)}")
    p(f"v_mul_u32_u24 {v(B_)}, {REG}, {v(B_)}")
    p(f"v_mov_b32 {v(TK_)}, 1")
    p("s_mov_b64 exec, 1")
    p(f"ds_add_rtn_u32 {v(TK_)}, {v(A_)}, {v(TK_)} offset:{TKT}")
    p("s_mov_b64 exec, -1")
    p("L_swap_poll:")
    p(f"ds_read_b32 {v(KB_)}, {v(B_)} offset:{KEY}")
    p(f"ds_read_b128 {v(KA_,4)}, {v(A_)} offset:{KEY}")
    p(f"v_and_b32 {v(TX+2)}, 56, v0")
    p("s_waitcnt lgkmcnt(0)")
    p(f"v_cmp_le_i32 vcc, 0, {v(KB_)}")
    p(f"v_cmp_gt_u32 {s(P0,2)}, {v(KB_)}, {v(KA_)}")
    p(f"v_lshlrev_b32 {v(TX+3)}, 1, {v(KB_)}")
    p(f"v_readfirstlane_b32 {s(sT0)}, {v(TK_)}")
    p("s_cbranch_vccnz L_swap_poll")
    p(f"v_lshrrev_b64 {v(TX,2)}, {v(TX+2)}, {s(P0,2)}")
    p(f"v_cmp_gt_i32 {s(P1,2)}, 0, {v(TX+3)}")
    p(f"v_and_b32 {v(TX)}, 0xff, {v(TX)}")
    p(f"v_bcnt_u32_b32 {v(TX)}, {v(TX)}, 0")
    p(f"v_cmp_eq_u32 vcc, {s(sT0)}, {v(TX)}")
    p(f"s_lshl_b32 {s(sT1)}, {s(sw)}, 3")
    p(f"s_ff1_i32_b64 {s(sT0)}, vcc")
    p(f"s_cmp_lg_u64 {s(P1,2)}, 0")
    p(f"s_cselect_b32 {s(sT0)}, {s(sT1)}, {s(sT0)}")
    p(f"s_sub_u32 {s(sT3)}, {s(sT0)}, {s(sT1)}")
    p(f"v_readlane_b32 {s(sT1)}, {v(KA_+2)}, {s(sT0)}")
    p(f"v_readlane_b32 {s(sT2)}, {v(KA_+3)}, {s(sT0)}")
    p(f"v_readlane_b32 {s(sT0)}, {v(KA_+1)}, {s(sT0)}")
    p(f"s_mul_i32 {s(sDLB)}, {s(sT3)}, {REG // 8}")
    p(f"s_lshl_b32 {s(sDG)}, {s(sT3)}, 5")
    p(f"s_mul_i32 {s(sT3)}, {s(sT3)}, 6400")
    p(f"s_add_u32 {s(sRO)}, {s(sRO)}, {s(sT3)}")
    p(f"s_mov_b32 {s(sKA)}, 8")
    p(f"s_sub_u32 {s(sB3)}, {s(sT0)}, {s(sB3)}")
    p(f"v_add_u32 {v(RDL)}, {s(sB3)}, {v(RDL)}")
    p(f"s_sub_u32 {s(sE3)}, {s(sT2)}, {s(sE3)}")
    p(f"s_sub_u32 {s(sE3)}, {s(sE3)}, {s(sB3)}")
    for r in (sT1, sT2):
        p(f"s_sub_u32 {s(r)}, {s(r)}, {s(sT0)}")
        p(f"s_lshr_b32 {s(r)}, {s(r)}, 4")
        p(f"s_add_u32 {s(r)}, {s(r)}, {s(sU)}")
        p(f"s_bitset1_b64 {s(F,2)}, {s(r)}")
    event_mask()
    if opt["prio"]:
        p(f"s_ashr_i32 {s(sE3)}, {s(sE3)}, 3")
        p(f"v_mov_b32 {v(A_)}, {s(sE3)}")
        p(f"s_sub_u32 {s(sE3)}, 0, {s(sE3)}")
        p(f"v_writelane_b32 {v(A_)}, {s(sE3)}, 1")
        p(f"ds_add_u32 {v(PADR)}, {v(A_)}")
    p(f"s_cmp_lg_u32 {s(sKW)}, 2")
    p(f"s_cselect_b32 {s(sM3)}, 1, -1")
    p("s_cbranch_scc1 L_swap_ret")
    p(f"v_add_u32 {v(TADR)}, {s(sDLB)}, {v(TADR)}")
    p(f"v_add_u32 {v(BADR)}, {s(sDLB)}, {v(BADR)}")
    t_reads()
    p("L_swap_ret:")
    p(f"s_setpc_b64 {s(RET,2)} ; ret=L_swap")
p("L_t23:")
p(f"s_cmp_eq_u32 {s(sEARLY)}, 0")
p("s_cbranch_scc1 L_skip23")
tiles(NE, D, F, "e")
if opt.get("x5") == 1:
    x5tile()
p(f"s_setpc_b64 {s(RET,2)} ; ret=L_t23")
p("L_skip23:")
p("s_waitcnt vmcnt(0)")
p(f"s_setpc_b64 {s(RET,2)} ; ret=L_t23")
mainloop("f", False)
p("L_store:")
p(f"s_add_u32 {s(sT0)}, {s(sLB)}, {OUTS}")
p(f"v_lshl_add_u32 {v(TX+1)}, v0, 4, {s(sT0)}")
if opt["swap"]:
    p(f"s_bfm_b64 exec, 16, 48")
    p(f"v_add_u32 {v(VOUT)}, {s(sDG)}, {v(VOUT)}")
    p("s_mov_b64 exec, -1")
p(f"ds_read_b128 {v(ZB,4)}, {v(TX+1)}")
p("s_waitcnt lgkmcnt(0)")
if opt.get("endp"):
    p("s_cmp_lg_u32 s2, 0")
    p("s_cbranch_scc1 L_endp")
    p("L_endq:")
    p("s_memrealtime s[38:39]")
    p("s_waitcnt lgkmcnt(0)")
    p("s_sub_u32 s38, s38, s80")
    p(f"s_cmp_lt_i32 s38, {opt['endp']*100}")
    p("s_cbranch_scc1 L_endq")
    p("L_endp:")
    if opt.get("fr"):
        p(f"s_and_b32 s38, s2, {opt['fr']}")
        p("s_cbranch_scc0 L_endr")
        p(f"global_store_dwordx4 {v(VOUT)}, {v(ZB,4)}, s[18:19] sc0 sc1")
        p("s_endpgm")
        p("L_endr:")
p(f"global_store_dwordx4 {v(VOUT)}, {v(ZB,4)}, s[18:19] {NTO}")
if STAMP:
    p("s_mov_b64 exec, -1")
    stamp(34)
    p(f"v_writelane_b32 v254, {s(sBASE)}, 15")
    p("s_getreg_b32 s96, hwreg(HW_REG_XCC_ID)")
    p("v_writelane_b32 v254, s96, 14")
    p("s_getreg_b32 s96, hwreg(HW_REG_HW_ID)")
    p("v_writelane_b32 v254, s96, 13")
    srd(SM, 100, 2048 * 256)
    p(f"s_lshl_b32 {s(sT0)}, s2, 3")
    p(f"s_add_u32 {s(sT0)}, {s(sT0)}, {s(sw)}")
    p(f"s_lshl_b32 {s(sT0)}, {s(sT0)}, 8")
    p(f"v_lshlrev_b32 v1, 2, v0")
    p(f"buffer_store_dword v254, v1, {s(SM,4)}, {s(sT0)} offen")
if opt.get("twice"):
    p("s_waitcnt vmcnt(0) lgkmcnt(0)")
    p("s_barrier")
    p("s_setprio 0")
    p(f"s_lshl_b32 {s(sT0)}, {s(sw)}, 6")
    p(f"v_add_u32 v0, {s(sT0)}, v0")
    p("s_add_u32 s3, s3, 1")
    p("s_cmp_eq_u32 s3, 1")
    p("s_cbranch_scc1 L_again")
if opt.get("spin"):
    if opt.get("probe"):
        if opt["probe"] == "end":
            p("s_memrealtime s[98:99]")
            p("s_waitcnt lgkmcnt(0)")
        p("s_sub_u32 s98, s98, s80")
        p(f"s_mul_i32 s98, s98, {opt.get('pk', 4)}")
        p("s_add_u32 s80, s80, s98")
    p("L_spin:")
    p("s_memrealtime s[38:39]")
    p("s_waitcnt lgkmcnt(0)")
    p("s_sub_u32 s38, s38, s80")
    p(f"s_cmp_lt_i32 s38, {opt['spin']*100}")
    p("s_cbranch_scc1 L_spin")
p("L_end:")
p("s_endpgm")
if opt.get("so"):
    mainloop("o", False, opt["so"])
p("L_general:")
p("s_waitcnt vmcnt(0)")
const_reads(5, 8)
t_reads()
list_reset()
p(f"s_bfm_b64 {s(EX50,2)}, 50, 0")
p(f"s_mul_i32 {s(sT0)}, {s(sW)}, 800")
p(f"v_add_u32 {v(TX+1)}, {s(sT0)}, v2")
p(f"s_mov_b64 exec, {s(EX50,2)}")
for j in range(4):
    p(f"global_load_dwordx4 {v(MSK+4*j,4)}, {v(TX+1)}, s[8:9]")
    p(f"v_add_u32 {v(TX+1)}, {PSTR*400}, {v(TX+1)}")
p("s_mov_b64 exec, -1")
p(f"v_cmp_lt_u32 vcc, 24, v0")
p(f"v_cndmask_b32 {v(HI)}, 0, 1, vcc")
p(f"v_mul_u32_u24 {v(CV+1)}, 25, {v(HI)}")
p(f"v_sub_u32 {v(CV+1)}, v0, {v(CV+1)}")
p(f"v_mul_u32_u24 {v(CV+1)}, 0x80008, {v(CV+1)}")
p(f"v_add_u32 {v(CV)}, 0x10000, {v(CV+1)}")
p(f"v_add_u32 {v(CV+2)}, 0x50004, {v(CV+1)}")
p(f"v_add_u32 {v(CV+3)}, 0x70006, {v(CV+1)}")
p(f"v_add_u32 {v(CV+1)}, 0x30002, {v(CV+1)}")
p("s_waitcnt vmcnt(0)")
for j in range(4):
    compact_body(j)
p(f"s_mov_b32 {s(sEARLY)}, 0")
p(f"s_mov_b64 {s(NB,2)}, -1")
p("s_branch L_listed")
mainloop("s", True)

nn = p.fix_hazards(verbose=opt["verbose"])
for early_, old_, gen_ in ((a_, b_, c_) for a_ in (True, False) for b_ in (True, False) for c_ in (True, False)):
    force = [("L_skip", not early_), ("L_nolate", early_ and not gen_), ("L_young", not old_), ("L_old3", old_), ("L_general", gen_)]
    for e in check_waits(p, force + ([("L_late", False)] if early_ else [])) if early_ else check_waits(p, force, cut="L_noadve"):
        if STAMP != 4 and not opt.get('x5'):
            sys.exit(f"WAIT-CHECK early={early_}: {e}")
hdr = open(__file__.rsplit("/", 1)[0] + "/../standalone__sequential_behavior_din__recsys.s.ref").read().split("\n")
head = [l for l in hdr if l.startswith(";") and "@launch" not in l and "Override" not in l and "grid=ceil" not in l]
out = "\n".join(head) + f"""
; @launch grid=({NWG},1,1) block=({WPB*64},1,1) lds={WPB*REG}
; generated by gen/gen.py {' '.join(sys.argv[1:])}
.amdgcn_target "amdgcn-amd-amdhsa--gfx950"
.text
.globl {NAME}
.p2align 8
.type {NAME},@function
""" + p.text() + f""".section .rodata,"a"
.p2align 6
.amdhsa_kernel {NAME}
  .amdhsa_next_free_vgpr 256
  .amdhsa_next_free_sgpr 102
  .amdhsa_accum_offset 256
  .amdhsa_group_segment_fixed_size 0
  .amdhsa_kernarg_size 80
  .amdhsa_user_sgpr_count 2
  .amdhsa_user_sgpr_kernarg_segment_ptr 1
  .amdhsa_system_sgpr_workgroup_id_x 1
.end_amdhsa_kernel
"""
sys.stdout.write(out)
```

```python
import sys
from asmlib import Prog, check_waits

opt = dict(al=0, yf=0, tlb=0, g2=1, ym=1, swap=1, bias=1, y2=1, yp=0, vx=0, m1=1, map=0, place=900010000, D=4, nt="nt", ntm="nt", nto="sc0 sc1", verbose=0, prio=1, sched="r")
for a in sys.argv[1:]:
    k, v = a.split("=", 1)
    opt[k] = int(v) if v.lstrip("-").isdigit() else v.replace("+", " ")
D = opt["D"]
NT, NTM, NTO = opt["nt"], opt["ntm"], opt["nto"]
STAMP = opt.get("stamp", 0)
assert not (STAMP == 4 and opt["swap"])

NAME = "standalone__sequential_behavior_din__recsys_kernel"
NWG, WPB = 256, 8
NWAVE = NWG * WPB
KB = 16384 // NWAVE
REG = opt.get('reg', 20480)
SLOT = 2080
TB = D * SLOT
BI = TB + 1024
BSTR = 272
XCH = BI + 8 * BSTR
PRG = XCH + 3072
KEY = PRG + 256
OUTS = PRG + 288
TKT = PRG + 272
LI = REG - 2048
L0 = LI + 16
assert OUTS + 1024 <= LI - 2048 and LI + 2048 <= REG and LI % 2048 == 0 and REG % 2048 == 0
STG = (D - 2) * SLOT
CNEG = 0xBFB8AA3B
PSTR, WGSTR = (16, 64) if opt["map"] & 1 else (4096, 16)
LGP = PSTR.bit_length() - 1
DLT0, DLT1 = 25600, (PSTR - 1) * 25600
MDL0, MDL1 = 400, (PSTR - 1) * 400

CA, CD, W, ZA, ZB, BIAS, XB, XT, W2, B2, S, ACC, DG, TR, ONE, VA, VB = \
    4, 68, 100, 132, 148, 164, 180, 188, 196, 204, 208, 212, 216, 224, 228, 230, 232
RDB0, RDB1, RDT, RDL, TADR, BADR, OADR, SEL0, SEL1, VOUT, RDM = range(234, 245)
TX = 246
PRV, PADR, PINC = 1, 2, 3
MSK = W
SH, SM, SH2 = 20, 24, 40
EX50, sB2, sDL, sMDL, sSGN, sDL1 = 28, 30, 31, 32, 33, 51
sLB, sW, sw = 52, 53, 54
F = 56
H = 36
sKA, sKW = 60, 61
sBASE, sK, sT0, sT1, sT2, sT3 = 64, 65, 66, 67, 55, 95
A0 = 68
NB, P0, P1, P2 = 84, 86, 88, 90
sC, sOFF, sEARLY, sRO = 92, 93, 94, 35
sB3, sM3, sE3, sDLB, sKF, sU, sDG = 44, 45, 46, 47, 48, 49, 50
RET = 62


def v(a, n=1):
    return f"v{a}" if n == 1 else f"v[{a}:{a+n-1}]"


def s(a, n=1):
    return f"s{a}" if n == 1 else f"s[{a}:{a+n-1}]"


p = Prog()
nstamp = [0]


def stamp(cyc=None):
    if STAMP == 4:
        return
    if not STAMP or (STAMP == 3 and cyc is None):
        return
    p("s_memrealtime s[96:97]")
    p("s_waitcnt lgkmcnt(0)")
    p(f"v_writelane_b32 v254, s96, {nstamp[0]}")
    nstamp[0] += 1
    if cyc is not None:
        p("s_memtime s[96:97]")
        p("s_waitcnt lgkmcnt(0)")
        p(f"v_writelane_b32 v254, s96, {cyc}")


ncyc = [0]


def cst(name):
    if opt.get("probe") == name:
        p("s_memrealtime s[98:99]")
        p("s_waitcnt lgkmcnt(0)")
    if STAMP == 4 and (not opt.get("arr") or name in ("entry", "kernarg") or name.startswith("arr")):
        sys.stderr.write(f"cst{ncyc[0]} = {name}\n")
        p(f"s_memtime {s((38,80,82,96,98,44,46,48,50,16)[ncyc[0]],2)}")
        ncyc[0] += 1


nfl = [0]
njit = [0]


def jit(long=False):
    if not opt.get("jitter"):
        return
    njit[0] += 1
    k = njit[0]
    p(f"s_mul_i32 s3, {s(sW)}, {37 + 2 * k + opt['jitter'] * 16}")
    p(f"s_add_u32 s3, s3, {k * 5}")
    p(f"s_lshr_b32 s3, s3, 2")
    p(f"s_and_b32 s3, s3, {7 if long else 3}")
    p("s_cmp_lg_u32 s3, 0")
    p(f"s_cbranch_scc1 L_jit{k}")
    for _ in range(10 if long else 1):
        p(f"s_sleep {127 if long else 30}")
    p(f"L_jit{k}:")


def srd(dst, ptr, nrec, stride=0):
    p(f"s_mov_b32 {s(dst)}, {s(ptr)}")
    p(f"s_and_b32 {s(dst+1)}, {s(ptr+1)}, 0xffff")
    if stride:
        p(f"s_or_b32 {s(dst+1)}, {s(dst+1)}, {stride << 16:#x}")
    p(f"s_mov_b32 {s(dst+2)}, {nrec}")
    p(f"s_mov_b32 {s(dst+3)}, 0x20000")


def m0_half(slot, j):
    return f"s_add_u32 m0, {s(sLB)}, {slot*SLOT+j*1056}"


def dma_half(j):
    if opt["m1"] and j:
        return f"buffer_load_dwordx4 {v(VB,2)}, {s(SH2,4)}, {s(sRO)} idxen offen offset:1056 {NT} lds"
    return f"buffer_load_dwordx4 {v((VA, VB)[j],2)}, {s(SH,4)}, {s(sRO)} idxen offen {NT} lds"


def adv_hist():
    p(f"s_add_u32 {s(sRO)}, {s(sRO)}, {s(sDL)}")
    p(f"s_min_u32 {s(sRO)}, {s(sRO)}, {16383*25600}")
    p(f"s_xor_b32 {s(sDL)}, {s(sDL)}, {DLT0 ^ DLT1:#x}")


R, CV, HI = ZA, ZA + 9, ZA + 13
AP, AT, QV, QH, NBA = W + 16, W + 22, W + 26, W + 30, W + 31
QR, QT, QE = (ZA, ZA + 8, BIAS), (BIAS + 8, BIAS + 12, XB), (XB + 4, XB + 5, XB + 6)
NT0, NT1 = ZB + 12, ZB + 13
CNT = 0xBFE0BFE0


def fbit(reg, k):
    p(f"s_lshr_b32 {s(sT3)}, {s(reg)}, 4")
    if 13 * (k + 1) + 1 < 64:
        p(f"s_bitset1_b64 {s(F,2)}, {s(sT3)}")
    else:
        p(f"s_lshl_b64 {s(P0,2)}, 1, {s(sT3)}")
        p(f"s_bitcmp1_b32 {s(reg)}, 10")
        p(f"s_cselect_b64 {s(P1,2)}, 0, {s(P0,2)}")
        p(f"s_cselect_b64 {s(P2,2)}, {s(P0,2)}, 0")
        p(f"s_or_b64 {s(F,2)}, {s(F,2)}, {s(P1,2)}")
        p(f"s_or_b64 {s(F+2,2)}, {s(F+2,2)}, {s(P2,2)}")


def compact_body(j):
    m = [MSK + 4 * j + x for x in range(4)]
    p(f"s_mov_b64 exec, {s(EX50,2)}")
    for e in range(8):
        p(f"v_cmp_neq_f16_sdwa {s(A0+2*e,2)}, {v(m[e>>1])}, 0 src0_sel:WORD_{e&1} src1_sel:WORD_0")
    p("s_mov_b64 exec, -1")
    p(f"v_mov_b32 {v(R)}, {s(sBASE)}")
    for e in range(8):
        p(f"v_mbcnt_lo_u32_b32 {v(R)}, {s(A0+2*e)}, {v(R)}")
        p(f"v_mbcnt_hi_u32_b32 {v(R)}, {s(A0+2*e+1)}, {v(R)}")
    p(f"s_add_u32 {s(sT2)}, {s(sBASE)}, 16")
    p(f"v_readlane_b32 {s(sT0)}, {v(R)}, 25")
    p(f"v_readlane_b32 {s(sT1)}, {v(R)}, 63")
    p(f"s_add_u32 {s(sBASE)}, {s(sT0)}, 15")
    p(f"s_and_b32 {s(sBASE)}, {s(sBASE)}, -16")
    p(f"s_max_u32 {s(sBASE)}, {s(sBASE)}, {s(sT2)}")
    p(f"s_sub_u32 {s(sT0)}, {s(sBASE)}, {s(sT0)}")
    p(f"v_mad_u32_u24 {v(R)}, {v(HI)}, {s(sT0)}, {v(R)}")
    p(f"s_mov_b32 {s(sT2)}, {s(sBASE)}")
    for e in range(7):
        p(f"v_addc_co_u32 {v(R+e+1)}, vcc, 0, {v(R+e)}, {s(A0+2*e,2)}")
    p(f"s_add_u32 {s(sT1)}, {s(sT1)}, {s(sT0)}")
    p(f"s_add_u32 {s(sT1)}, {s(sT1)}, 15")
    p(f"s_and_b32 {s(sT1)}, {s(sT1)}, -16")
    p(f"s_add_u32 {s(sBASE)}, {s(sBASE)}, 16")
    p(f"s_max_u32 {s(sBASE)}, {s(sBASE)}, {s(sT1)}")
    for e in range(8):
        p(f"s_mov_b64 exec, {s(A0+2*e,2)}")
        p(f"ds_write_b8{'_d16_hi' if e&1 else ''} {v(R+e)}, {v(CV+(e>>1))}")
    p("s_mov_b64 exec, -1")
    pair_bits(j, sT2)


def q_total(i, j):
    p(f"v_mfma_i32_16x16x64_i8 {v(QT[i],4)}, {v(AT,4)}, {v(MSK+4*j,4)}, 0")


def q_test(j):
    out = []
    if opt.get("xt"):
        return out
    for x in range(4):
        t = (NT0, NT1)[x & 1]
        out += [f"v_and_b32 {v(t)}, 0x800080, {v(MSK+4*j+x)}", f"v_mul_u32_u24 {v(t)}, 0x7f, {v(t)}",
                f"v_bitop3_b32 {v(NBA)}, {v(MSK+4*j+x)}, {v(t)}, {v(NBA)} bitop3:0xbe"]
    return out


def q_scan(i, step):
    dpp = "row_mask:0xf bank_mask:0xf bound_ctrl:0"
    if step == 0:
        return f"v_mov_b32_dpp {v(QE[i])}, {v(QT[i])} row_shr:1 {dpp}"
    return f"v_add_u32_dpp {v(QE[i])}, {v(QE[i])}, {v(QE[i])} row_shr:{1 << (step-1)} {dpp}"


def q_lanes(i):
    p(f"v_readlane_b32 {s(A0+4*i)}, {v(QE[i])}, 6")
    p(f"v_readlane_b32 {s(A0+4*i+1)}, {v(QT[i]+1)}, 6")
    p(f"v_readlane_b32 {s(A0+4*i+2)}, {v(QE[i])}, 15")


def q_ranks(i, j):
    a = A0 + 4 * i
    p(f"s_add_u32 {s(sT0)}, {s(a)}, {s(a+1)}")
    p(f"s_add_u32 {s(sT0)}, {s(sT0)}, {s(sBASE)}")
    p(f"s_add_u32 {s(sT1)}, {s(sT0)}, 15")
    p(f"s_and_b32 {s(sT1)}, {s(sT1)}, -16")
    p(f"s_add_u32 {s(sT2)}, {s(sBASE)}, 16")
    p(f"s_max_u32 {s(sT1)}, {s(sT1)}, {s(sT2)}")
    p(f"s_sub_u32 {s(sT0)}, {s(sT1)}, {s(sT0)}")
    p(f"v_mad_u32_u24 {v(QE[i])}, {v(QH)}, {s(sT0)}, {v(QE[i])}")
    p(f"s_sub_u32 {s(sT2)}, {s(sBASE)}, 2048")
    for r in range(4):
        p(f"v_add_u32 {v(QT[i]+r)}, {s(sT2)}, {v(QE[i])}")
    p(f"s_add_u32 {s(sBASE)}, {s(sBASE)}, {s(a+2)}")
    p(f"s_add_u32 {s(sBASE)}, {s(sBASE)}, {s(sT0)}")
    p(f"v_mfma_i32_16x16x64_i8 {v(QR[i],4)}, {v(AP+2,4)}, {v(MSK+4*j,4)}, {v(QT[i],4)}")
    p(f"v_mfma_i32_16x16x64_i8 {v(QR[i]+4,4)}, {v(AP,4)}, {v(MSK+4*j,4)}, {v(QT[i],4)}")
    p(f"s_add_u32 {s(sBASE)}, {s(sBASE)}, 15")
    p(f"s_and_b32 {s(sBASE)}, {s(sBASE)}, -16")
    p(f"s_add_u32 {s(sT2)}, {s(sT1)}, 16")
    p(f"s_max_u32 {s(sBASE)}, {s(sBASE)}, {s(sT2)}")
    pair_bits(j, sT1)


def pair_bits(j, mid):
    if opt["swap"] and j == 3:
        p(f"s_mov_b32 {s(sM3)}, {s(mid)}")
        p(f"s_mov_b32 {s(sE3)}, {s(sBASE)}")
        return
    fbit(mid, 2 * j)
    fbit(sBASE, 2 * j + 1)
    if opt["swap"] and j == 2:
        p(f"s_mov_b32 {s(sB3)}, {s(sBASE)}")


def q_write(i):
    if opt.get("xw"):
        return
    if opt["vx"]:
        p(f"s_mov_b64 exec, {s(EX50,2)}")
    for e in range(8):
        p(f"ds_write_b8{'_d16_hi' if e&1 else ''} {v(QR[i]+e)}, {v(QV+(e>>1))}")
    if opt["vx"]:
        p("s_mov_b64 exec, -1")


W44 = 1
DIAGMM = "v_mfma_f32_4x4x4_16b_bf16" if W44 else "v_mfma_f32_16x16x16_bf16"


def wbuild():
    for x in range(4):
        p(f"v_mul_u32_u24 {v(DG+2*x)}, {v(TR+x)}, {v(SEL0)}")
        p(f"v_mul_u32_u24 {v(DG+2*x+1)}, {v(TR+x)}, {v(SEL1)}")
    T = [ZA + 8, TX]
    pairs = [(hb, ks) for hb in range(4) for ks in range(2)]

    def mm(j, u):
        hb, ks = pairs[j]
        blk = (hb * 2 + ks) * 2 + u
        p(f"{DIAGMM} {v(T[j%2]+4*u,4)}, {v(DG+2*(2*ks+u),2)}, {v(CD+2*blk,2)}, {v(CA+4*blk,4)}")

    def cv(j, r):
        hb, ks = pairs[j]
        p(f"v_cvt_pk_bf16_f32 {v(W+(hb*2+ks)*4+r)}, {v(T[j%2]+2*r)}, {v(T[j%2]+2*r+1)}")
    mm(0, 0)
    p(f"v_add_u32 {v(TADR)}, 128, {v(TADR)}")
    for hb in range(2):
        p(f"ds_read_b128 {v(BIAS+4*hb,4)}, {v(BADR)} offset:{64*hb}")
    mm(0, 1)
    for hb in range(2, 4):
        p(f"ds_read_b128 {v(BIAS+4*hb,4)}, {v(BADR)} offset:{64*hb}")
    t_reads()
    for j in range(8):
        if j < 7:
            mm(j + 1, 0)
        cv(j, 0); cv(j, 1)
        if j < 7:
            mm(j + 1, 1)
        else:
            p(f"v_add_u32 {v(BADR)}, {BSTR}, {v(BADR)}")
        cv(j, 2); cv(j, 3)
    p("s_waitcnt lgkmcnt(0)")


def t_reads():
    for x in range(4):
        p(f"ds_read_u16 {v(TR+x)}, {v(TADR)} offset:{(x>>1)*64+(x&1)*8}")


def g1(j):
    hb, ks = j >> 1, j & 1
    c = v(BIAS + 4 * hb, 4) if ks == 0 else v(ZB + 4 * hb, 4)
    return f"v_mfma_f32_16x16x32_bf16 {v(ZB+4*hb,4)}, {v(W+(hb*2+ks)*4,4)}, {v(XB+4*ks,4)}, {c}"


def read_xb(slot, ks):
    p(f"ds_read_b128 {v(XB+4*ks,4)}, {v((RDB0, RDB1)[ks])} offset:{slot*SLOT}")


SCHED = {
    "e": "ia ib k1 ent EV mid P0 e0 e1 e2 e3 e4 e5 A0 s0 s1 L2 G0 e6 q0 t0 e7 G2 e8 q1 t1 A1 r0 q2 t2 e9 G1 r1 q3 t3 e10 G3 "
         "r2 e11 r3 c0 A2 e12 G4 r4 c1 E2 e13 r5 e14 r6 c2 e15 G6 L0 m0 r7 da A3 G5 m1 r8 db G7 P1 r9 c3 vm y0 y1 r10 c4 k0 r11 B r12 c5 "
         "r13 r14 r15 c6 c7",
    "f": "ia ib k1 ent EV mid P0 e0 e1 e2 e3 e4 e5 A0 s0 s1 L2 G0 e6 q0 t0 e7 G2 e8 q1 t1 A1 r0 q2 t2 e9 G1 r1 q3 t3 e10 G3 "
         "r2 e11 r3 c0 A2 e12 G4 r4 c1 E2 m0 L0 da e13 r5 e14 r6 c2 e15 G6 P1 r7 A3 G5 m1 r8 G7 r9 c3 db vm y0 y1 r10 c4 k0 r11 B r12 c5 "
         "r13 r14 r15 c6 c7",
    "g": "ia ib k1 ent EV mid P0 e0 e1 e2 e3 e4 e5 A0 s0 s1 L2 G0 e6 q0 t0 e7 G2 e8 q1 t1 A1 r0 q2 t2 e9 G1 r1 q3 t3 e10 G3 "
         "r2 e11 r3 c0 A2 e12 G4 r4 c1 E2 e13 r5 e14 m0 L0 da r6 c2 e15 G6 P1 r7 A3 G5 m1 r8 G7 r9 c3 db vm y0 y1 r10 c4 k0 r11 B r12 c5 "
         "r13 r14 r15 c6 c7",
    "h": "ia ib k1 ent EV mid P0 e0 e1 e2 e3 e4 e5 A0 s0 s1 L2 G0 e6 q0 t0 e7 G2 e8 q1 t1 A1 r0 q2 t2 e9 G1 r1 q3 t3 e10 G3 "
         "r2 e11 r3 c0 A2 e12 G4 r4 c1 E2 m0 L0 da m1 e13 db r5 e14 r6 c2 e15 G6 P1 r7 A3 G5 r8 G7 r9 c3 vm y0 y1 r10 c4 k0 r11 B r12 c5 "
         "r13 r14 r15 c6 c7",
    "l": "ia ib k1 ent EV mid P0 e0 e1 e2 e3 e4 e5 A0 s0 s1 L2 G0 e6 q0 t0 e7 e8 q1 t1 G2 A1 q2 t2 r0 e9 q3 t3 G1 r1 e10 G3 "
         "r2 e11 m0 L0 da m1 r3 db c0 A2 e12 G4 r4 c1 E2 e13 r5 e14 r6 c2 e15 G6 P1 r7 A3 G5 r8 G7 r9 c3 r10 c4 k0 r11 B r12 c5 "
         "r13 r14 r15 vm y0 y1 c6 c7",
    "m": "ia ib k1 ent EV mid P0 e0 e1 e2 e3 e4 e5 A0 s0 s1 e6 e7 q0 t0 e8 A1 q1 t1 e9 e10 q2 t2 e11 r0 q3 t3 vm x0 x1 A2 e12 r1 e13 r2 "
         "e14 r3 c0 e15 E2 m0 L2 da m1 c1 db A3 L0 G0 r4 G2 r5 P1 G1 r6 c2 G3 r7 r8 G4 c3 r9 G6 r10 c4 G5 r11 k0 r12 G7 c5 B r13 r14 r15 c6 c7",
    "n": "ia ib k1 ent EV mid P0 e0 e1 e2 e3 e4 e5 A0 s0 s1 vm x0 x1 e6 e7 q0 t0 e8 A1 q1 t1 e9 e10 q2 t2 e11 r0 q3 t3 A2 L4 G0 e12 r1 G2 e13 r2 "
         "e14 G1 r3 c0 e15 E2 m0 L0 da m1 c1 db A3 G3 r4 r5 P1 G4 r6 c2 r7 G6 r8 c3 r9 G5 r10 c4 r11 k0 r12 G7 c5 B r13 r14 r15 c6 c7",
    "r": "ent EV k1 mid e0 e1 e2 e3 e4 e5 A0 e6 e7 s0 s1 e8 e9 q0 A1 e10 q1 e11 e12 q2 e13 A2 q3 P0 ia ib t0 t1 t2 t3 vm x0 x1 m0 e14 e15 "
         "r0 r1 A3 r2 E2 c0 L2 da m1 db L0 G0 r3 G2 r4 c1 G1 r5 P1 G3 r6 c2 G4 r7 G6 r8 c3 G5 r9 G7 r10 c4 k0 r11 r12 c5 B r13 r14 r15 c6 c7",
    "s": "ia ib k1 ent EV mid P0 e0 e1 e2 e3 e4 e5 A0 s0 s1 L2 G0 e6 q0 t0 e7 G2 e8 q1 t1 A1 r0 q2 t2 e9 G1 r1 q3 t3 e10 G3 "
         "r2 e11 r3 c0 A2 e12 G4 r4 c1 E2 e13 r5 e14 r6 c2 e15 G6 r7 A3 G5 r8 G7 m0 L0 da P1 m1 r9 db c3 vm y0 y1 r10 c4 k0 r11 B r12 c5 "
         "r13 r14 r15 c6 c7",
}


if opt.get("toks"):
    SCHED["cli"] = opt["toks"].replace(".", " ")
    opt["sched"] = "cli"


def event_mask():
    p(f"s_lshr_b64 {s(P0,2)}, {s(F,2)}, 2")
    p(f"s_lshr_b64 {s(H,2)}, {s(F,2)}, {D+1}")
    p(f"s_or_b32 {s(H)}, {s(H)}, {s(P0)}")
    p(f"s_or_b32 {s(H)}, {s(H)}, {s(F)}")


def mainloop(tag, slow, sched=None):
    toks = SCHED[sched or opt["sched"]].split()

    def scale(off):
        p(f"ds_read_b32 {v(TX)}, {v(RDM)} offset:{off}")
        p("s_waitcnt lgkmcnt(0)")
        for r in range(4):
            p(f"v_bfe_u32 {v(TX+1+r)}, {v(TX)}, {8*r}, 8")
            p(f"v_lshlrev_b32 {v(TX+1+r)}, 1, {v(TX+1+r)}")
        for r in range(4):
            p(f"buffer_load_ushort {v(TX+1+r)}, {v(TX+1+r)}, {s(SM,4)}, 0 offen")
        p("s_waitcnt vmcnt(0)")
        for r in range(4):
            p(f"v_lshlrev_b32 {v(TX+1+r)}, 16, {v(TX+1+r)}")
            p(f"v_mul_f32 {v(S+r)}, {v(S+r)}, {v(TX+1+r)}")

    def flush(last=False):
        p(f"v_cvt_pk_bf16_f32 {v(TX)}, {v(ACC)}, {v(ACC)}")
        if not last:
            p(f"v_mov_b32 {v(ACC)}, 0")
        if STAMP == 1:
            p("s_memrealtime s[96:97]")
            p("s_memtime s[98:99]")
            p(f"s_lshl_b32 {s(sT0)}, {s(sK)}, 1")
            p(f"s_sub_u32 {s(sT0)}, {16+2*(KB-1)}, {s(sT0)}")
            p("s_waitcnt lgkmcnt(0)")
            p(f"s_mov_b32 m0, {s(sT0)}")
            p("v_writelane_b32 v254, s96, m0")
            p(f"s_add_u32 m0, m0, 1")
            p("v_writelane_b32 v254, s98, m0")
            p(f"s_sub_u32 {s(sK)}, {s(sK)}, 1")
        if str(opt.get("probe", "")).startswith("fl"):
            nfl[0] += 1
            p("s_add_u32 s3, s3, 1")
            p(f"s_cmp_lg_u32 s3, {int(opt['probe'][2:])}")
            p(f"s_cbranch_scc1 L_nfl{nfl[0]}")
            p("s_memrealtime s[98:99]")
            p("s_waitcnt lgkmcnt(0)")
            p(f"L_nfl{nfl[0]}:")
        p(f"ds_write_b16 {v(OADR)}, {v(TX)}")
        if last:
            return
        p(f"v_add_u32 {v(OADR)}, 128, {v(OADR)}")
        if slow:
            p(f"s_add_u32 {s(SM)}, {s(SM)}, {s(sMDL)}")
            p(f"s_addc_u32 {s(SM+1)}, {s(SM+1)}, 0")
            p(f"s_xor_b32 {s(sMDL)}, {s(sMDL)}, {MDL0 ^ MDL1:#x}")

    def emit(u, toks, tail):
        ev = opt["prio"] and u in ((0, D // 2) if opt["prio"] == 2 else (0,))
        for t in toks:
            k, n = t[0], (int(t[1:]) if t[1:].isdigit() else None)
            if opt.get("nodma") and t in ("da", "db"):
                continue
            if opt.get("lite") and k == "r" and n >= 16 - opt["lite"]:
                continue
            if opt.get("nocomp") and k in "ercsAGqk" and n is not None:
                continue
            if t == "vm":
                p(f"s_waitcnt vmcnt({2*(D-2)})")
            elif k == "y":
                read_xb((u + 2) % D, n)
            elif k == "x":
                read_xb((u + 1) % D, n)
            elif t == "ent":
                if u == 0:
                    p(f"L{tag}_mid:")
            elif t in ("mid", "mi2"):
                if slow:
                    scale(u * 16 + (16 if t == "mi2" else 0))
            elif t == "ia" and opt.get("xv") and not tail:
                for j in range(opt["xv"]):
                    p(f"v_exp_f32 v255, {v(ZB+j)}")
                p(f"ds_read_u8 {v(VA)}, {v(RDL)} offset:{(u+D)*16}")
            elif t == "ia":
                p(f"ds_read_u8 {v(VA)}, {v(RDL)} offset:{(u+D)*16}")
            elif t == "ib":
                p(f"ds_read_u8 {v(VB)}, {v(RDL)} offset:{(u+D)*16+8}")
            elif t == "EV":
                p(f"s_bitcmp1_b32 {s(H)}, {u}")
                p(f"s_cbranch_scc1 L{tag}_ev{u}")
                p(f"L{tag}_evd{u}:")
            elif t == "E2":
                if tail:
                    p(f"s_bitcmp0_b64 {s(F,2)}, 1")
                    p(f"s_cbranch_scc1 L{tag}_tnf")
                    flush()
                    p(f"L{tag}_tnf:")
            elif t == "P0":
                if ev:
                    p(f"ds_add_rtn_u32 {v(PRV)}, {v(PADR)}, {v(PINC)}")
            elif t == "P1":
                if ev:
                    p(f"v_readfirstlane_b32 {s(sT0)}, {v(PRV)}")
                    p("s_setprio 0")
                    p(f"s_cmp_gt_i32 {s(sT0)}, 0")
                    p(f"s_cbranch_scc0 L{tag}_lo{u}")
                    p("s_setprio 1")
                    p(f"L{tag}_lo{u}:")
            elif t == "da":
                p(dma_half(0))
            elif t == "db":
                p(dma_half(1))
            elif t == "B":
                if u == D - 1:
                    p(f"s_lshr_b64 {s(F,2)}, {s(F,2)}, {D}")
                    p(f"s_lshl_b64 {s(P0,2)}, {s(F+2,2)}, {64-D}")
                    p(f"s_or_b64 {s(F,2)}, {s(F,2)}, {s(P0,2)}")
                    p(f"s_lshr_b64 {s(F+2,2)}, {s(F+2,2)}, {D}")
                    event_mask()
                    p(f"v_add_u32 {v(RDL)}, {16*D}, {v(RDL)}")
                    if slow:
                        p(f"v_add_u32 {v(RDM)}, {16*D}, {v(RDM)}")
            elif k == "m":
                if not (opt["m1"] and n):
                    p(m0_half(u, n))
            elif k == "e":
                p(f"v_exp_f32 {v(ZA+n)}, {v(ZB+n)}")
            elif k == "r":
                p(f"v_rcp_f32 {v(ZA+n)}, {v(ZA+n)}")
            elif k == "c":
                p(f"v_cvt_pk_bf16_f32 {v(ZA+n)}, {v(ZA+2*n)}, {v(ZA+2*n+1)}")
            elif k == "s":
                p(f"v_cvt_pk_bf16_f32 {v(S+n)}, {v(S+2*n)}, {v(S+2*n+1)}")
            elif k == "A":
                p(f"v_mfma_f32_4x4x4_16b_bf16 {v(ZA+4*n,4)}, {v(ONE,2)}, {v(ONE,2)}, {v(ZA+4*n,4)}")
            elif k == "G":
                p(g1(n))
            elif k == "q":
                p(f"v_mfma_f32_4x4x4_16b_bf16 {v(ACC,4)}, {v(S,2)}, {v(XT+2*n,2)}, {v(ACC,4)} cbsz:4 abid:{4*n}")
            elif k == "t":
                p(f"ds_read_b64_tr_b16 {v(XT+2*n,2)}, {v(RDT)} offset:{u*SLOT+n*512+(n>>1)*32}")
            elif k == "k":
                p(f"v_mfma_f32_16x16x32_bf16 {v(S,4)}, {v(ZA+4*n,4)}, {v(W2+4*n,4)}, {v(B2,4) if n == 0 else v(S,4)}")
            elif k == "L":
                p(f"s_waitcnt lgkmcnt({n})")
            else:
                raise ValueError(t)

    if tag == "f" and opt.get("al") is not None:
        p(".p2align 6")
        for _ in range(opt["al"]):
            p("s_nop 0")
    p(f"L{tag}_loop:")
    for u in range(D):
        emit(u, toks, False)
    p(f"s_branch L{tag}_loop")
    for u in range(D):
        p(f"L{tag}_ev{u}:")
        jit()
        p(f"s_bitcmp0_b64 {s(F,2)}, {u}")
        p(f"s_cbranch_scc1 L{tag}_nf{u}")
        flush()
        p(f"L{tag}_nf{u}:")
        p(f"s_bitcmp0_b64 {s(F,2)}, {u+D+1}")
        p(f"s_cbranch_scc1 L{tag}_na{u}")
        if opt["swap"]:
            p(f"s_sub_u32 {s(sKA)}, {s(sKA)}, 1")
            p(f"s_cbranch_scc0 L{tag}_ns{u}")
            p(f"s_mov_b32 {s(sU)}, {u+D+1}")
            p(f"s_call_b64 {s(RET,2)}, L_swap")
            if toks.index("ia") < toks.index("EV"):
                p(f"ds_read_u8 {v(VA)}, {v(RDL)} offset:{(u+D)*16}")
                p(f"ds_read_u8 {v(VB)}, {v(RDL)} offset:{(u+D)*16+8}")
            adv_hist()
            p(f"s_bitcmp0_b64 {s(F,2)}, {u+2}")
            p(f"s_cbranch_scc1 L{tag}_evd{u}")
            p("s_waitcnt lgkmcnt(0)")
            p(f"s_branch L{tag}_e1{u}")
            p(f"L{tag}_ns{u}:")
        adv_hist()
        p(f"L{tag}_na{u}:")
        p(f"s_bitcmp0_b64 {s(F,2)}, {u+2}")
        p(f"s_cbranch_scc1 L{tag}_evd{u}")
        p(f"L{tag}_e1{u}:")
        p(f"s_sub_u32 {s(sKW)}, {s(sKW)}, 1")
        p(f"s_cbranch_scc1 L{tag}_last{u}")
        if opt["swap"]:
            p(f"s_cmp_lg_u32 {s(sKW)}, {s(sM3)}")
            p(f"s_cbranch_scc1 L{tag}_nw{u}")
            p(f"v_add_u32 {v(TADR)}, {s(sDLB)}, {v(TADR)}")
            p(f"v_add_u32 {v(BADR)}, {s(sDLB)}, {v(BADR)}")
            t_reads()
            p("s_waitcnt lgkmcnt(0)")
            p(f"L{tag}_nw{u}:")
        wbuild()
        p(f"s_branch L{tag}_evd{u}")
    for u in range(D):
        p(f"L{tag}_last{u}:")
        if u:
            p(f"v_add_u32 {v(RDT)}, {u*SLOT}, {v(RDT)}")
            p(f"s_lshr_b64 {s(F,2)}, {s(F,2)}, {u}")
            if slow:
                p(f"v_add_u32 {v(RDM)}, {16*u}, {v(RDM)}")
        if u < D - 1:
            p(f"s_branch L{tag}_tail")
    p(f"L{tag}_tail:")
    i1 = toks.index("EV")
    drop = lambda t: t in ("vm", "ia", "ib", "EV", "ent", "P0", "P1", "da", "db", "B", "L2", "L4") or (t[0] in "Gxym" and t[1:].isdigit())
    last = ["k1"] if toks.index("k1") > i1 else []
    emit(0, [t for t in toks[i1:] + toks[:i1] if not drop(t)] + last + ["mi2", "s0", "s1", "q0", "q1", "q2", "q3"], True)
    flush(last=True)
    if tag != "f":
        p("s_branch L_store")


p(f"{NAME}:")
if opt.get("twice"):
    p("s_mov_b32 s3, 0")
    p("L_again:")
if opt.get("spin") or opt.get("endp"):
    p("s_memrealtime s[80:81]")
    p("s_mov_b32 s3, 0")
cst("entry")
if STAMP:
    if STAMP != 4:
        p("s_memrealtime s[98:99]")
        p("s_memtime s[96:97]")
    p("s_load_dwordx2 s[100:101], s[0:1], 72")
p("s_load_dwordx16 s[4:19], s[0:1], 0")
p(f"s_cmp_ge_u32 s2, {NWG}")
p("s_cbranch_scc1 L_end")
p("v_lshrrev_b32 v1, 6, v0")
p("v_and_b32 v0, 63, v0")
p(f"v_readfirstlane_b32 {s(sw)}, v1")
if opt["map"] & 2:
    p("s_and_b32 s3, s2, 7")
    p("s_lshl_b32 s3, s3, 5")
    p(f"s_lshr_b32 {s(sW)}, s2, 3")
    p(f"s_add_u32 {s(sW)}, {s(sW)}, s3")
    p(f"s_lshl_b32 {s(sW)}, {s(sW)}, {(WGSTR//2).bit_length()-1}")
else:
    p(f"s_lshl_b32 {s(sW)}, s2, {(WGSTR//2).bit_length()-1}")
p("v_lshlrev_b32 v2, 4, v0")
p("v_lshrrev_b32 v1, 4, v0")
p("v_and_b32 v3, 0xf0, v2")
p("v_lshlrev_b32 v3, 2, v3")
p(f"v_lshl_add_u32 {v(QH)}, v1, 4, v3")
p("v_bfrev_b32 v3, 1")
p(f"s_add_u32 {s(sW)}, {s(sW)}, {s(sw)}")
p(f"s_movk_i32 {s(sT0)}, 800")
p(f"v_cmp_gt_u32 vcc, {s(sT0)}, {v(QH)}")
p(f"s_mul_i32 {s(sOFF)}, {s(sW)}, 800")
p(f"s_mul_i32 {s(sLB)}, {s(sw)}, {REG}")
p(f"s_mov_b64 {s(EX50,2)}, vcc")
p(f"v_cndmask_b32 v3, v3, {v(QH)}, vcc")
p(f"v_and_b32 {v(TX+2)}, 16, v0")
p(f"v_lshlrev_b32 {v(TX)}, 1, {v(TX+2)}")
p(f"v_xor_b32 {v(TX)}, {v(TX)}, v2")
p(f"v_and_b32 {v(VOUT)}, 0xf0, v2")
p(f"v_lshl_add_u32 {v(VOUT)}, v1, {LGP+7}, {v(VOUT)}")
p(f"s_lshl_b32 {s(sT0)}, {s(sW)}, 8")
p(f"v_add_u32 {v(VOUT)}, {s(sT0)}, {v(VOUT)}")
p(f"s_lshl_b32 {s(sT1)}, {s(sw)}, 12")
p(f"s_add_u32 m0, {s(sLB)}, {TB}")
p(f"s_mov_b32 {s(SM+2)}, {16384*400}")
p(f"s_mov_b32 {s(SM+3)}, 0x20000")
p("s_waitcnt lgkmcnt(0)")
cst("kernarg")
if STAMP and STAMP != 4:
    p("v_mov_b32 v254, 0")
    p("v_writelane_b32 v254, s98, 0")
    p("v_writelane_b32 v254, s96, 32")
    nstamp[0] = 1
    stamp()
p(f"s_mov_b32 {s(SM)}, s8")
p(f"s_and_b32 {s(SM+1)}, s9, 0xffff")
if opt["ym"]:
    p(f"s_cmp_ge_u32 {s(sw)}, 4")
    p("s_cbranch_scc1 L_young0")
p(f"buffer_load_dwordx4 {v(MSK,4)}, v3, {s(SM,4)}, {s(sOFF)} offen {NTM}")
p("L_young0:")
if opt.get("xs"):
    for j in range(opt["xs"]):
        p("s_nop 15")
p(f"global_load_lds_dwordx4 {v(VOUT)}, s[4:5] {NTM}")
p(f"s_add_u32 m0, {s(sLB)}, {STG}")
p(f"s_add_u32 s10, s10, {s(sT1)}")
p("s_addc_u32 s11, s11, 0")
p(f"v_xor_b32 {v(TX+1)}, 64, {v(TX)}")
if opt.get("nsw"):
    p(f"v_mov_b32 {v(TX)}, v2")
    p(f"v_mov_b32 {v(TX+1)}, v2")
for j in range(4):
    p(f"global_load_lds_dwordx4 {v(TX+(j&1))}, s[10:11] offset:{j*1024}")
p(f"s_load_dword {s(sB2)}, s[16:17], 0")
p(f"s_and_b32 {s(sT1)}, {s(sw)}, 3")
B1R, W2R = CD + 28, DG


def load_b1():
    p(f"s_and_b32 {s(sT0)}, {s(sw)}, 3")
    p(f"s_lshl_b32 {s(sT0)}, {s(sT0)}, 5")
    p(f"v_lshl_add_u32 {v(TX+3)}, v1, 3, {s(sT0)}")
    p(f"global_load_dwordx2 {v(B1R,2)}, {v(TX+3)}, s[12:13]")


if not opt["ym"]:
    load_b1()
p(f"v_and_b32 {v(TX+4)}, 3, v0")
NVM = 11
if opt.get("arr"):
    cst("arr_issued")
    for n_out in (5, 4, 3, 2, 1, 0):
        p(f"s_waitcnt vmcnt({n_out})")
        cst(f"arr{n_out}")
stamp()
srd(SH, 6, 200, stride=128)
if opt["m1"]:
    p(f"s_sub_u32 {s(SH2)}, {s(SH)}, 1056")
    p(f"s_subb_u32 {s(SH2+1)}, {s(SH+1)}, 0")
    p(f"s_mov_b32 {s(SH2+2)}, 200")
    p(f"s_mov_b32 {s(SH2+3)}, 0x20000")


def list_reset():
    p(f"s_mul_i32 {s(sRO)}, {s(sW)}, 51200")
    p(f"s_movk_i32 {s(sDL)}, {DLT0}")
    if opt["swap"]:
        p(f"s_mov_b32 {s(sKA)}, {KB-3}")
    p(f"s_mov_b64 {s(F,2)}, 0")
    p(f"s_mov_b64 {s(F+2,2)}, 0")
    for j in range(4):
        p(f"v_mov_b32 {v(ZB+j)}, -1")
    p(f"s_add_u32 {s(sT0)}, {s(sLB)}, {LI}")
    p(f"v_add_u32 {v(ZB+4)}, {s(sT0)}, v2")
    p(f"ds_write_b128 {v(ZB+4)}, {v(ZB,4)}")
    p(f"ds_write_b128 {v(ZB+4)}, {v(ZB,4)} offset:1024")
    p(f"s_add_u32 {s(sBASE)}, {s(sLB)}, {L0}")


list_reset()
for j in range(5, 2 * D):
    p(f"v_mov_b32 {v(ZB+j)}, -1")
p(f"v_lshrrev_b32 {v(RDL)}, 3, v0")
p(f"v_add_u32 {v(RDL)}, {s(sBASE)}, {v(RDL)}")
p(f"v_lshl_add_u32 {v(RDM)}, v1, 2, {s(sT0)}")
p(f"v_and_b32 {v(VA+1)}, 0x70, v2")
p(f"v_lshlrev_b32 {v(TX+2)}, 2, {v(TX+2)}")
p(f"v_xor_b32 {v(VA+1)}, {v(VA+1)}, {v(TX+2)}")
p(f"v_mov_b32 {v(VB+1)}, {v(VA+1)}")
lane_mask = lambda f: sum(1 << i for i in range(64) if f(i & 15, i >> 4))


def smask(dst, m):
    p(f"s_mov_b32 {s(dst)}, {m & 0xffffffff:#x}")
    p(f"s_mov_b32 {s(dst+1)}, {m >> 32:#x}")


p(f"s_movk_i32 {s(sT0)}, 400")
p(f"v_cmp_le_u32 vcc, {s(sT0)}, {v(QH)}")
p(f"v_lshrrev_b32 {v(QV)}, 1, {v(QH)}")
p(f"s_movk_i32 {s(sT0)}, -200")
p(f"v_cndmask_b32 {v(QH)}, 0, 1, vcc")
p(f"v_mad_i32_i24 {v(QV)}, {v(QH)}, {s(sT0)}, {v(QV)}")
p(f"v_mul_u32_u24 {v(QV+1)}, 0x10001, {v(QV)}")
p(f"v_add_u32 {v(QV)}, 0x10000, {v(QV+1)}")
p(f"v_add_u32 {v(QV+2)}, 0x50004, {v(QV+1)}")
p(f"v_add_u32 {v(QV+3)}, 0x70006, {v(QV+1)}")
p(f"v_add_u32 {v(QV+1)}, 0x30002, {v(QV+1)}")
p(f"v_mov_b32 {v(NBA)}, {CNT:#x}")
smask(P0, lane_mask(lambda m, g: (m >> 2) >= g))
smask(P1, lane_mask(lambda m, g: (m >> 2) > g))
smask(P2, lane_mask(lambda m, g: (m >> 2) == g))
smask(NB, lane_mask(lambda m, g: (m & 3) == 0 or (m, g) == (1, 0)))
for x in range(2):
    p(f"v_cndmask_b32 {v(AP+x)}, 0, {v(NBA)}, {s(P0,2)}")
    p(f"v_cndmask_b32 {v(AP+4+x)}, 0, {v(NBA)}, {s(P1,2)}")
for x in range(4):
    p(f"v_cndmask_b32 {v(AT+x)}, 0, {v(NBA)}, {s(NB,2)}")
p(f"v_lshlrev_b32 {v(TX)}, 4, {v(TX+4)}")
p(f"v_sub_u32 {v(TX)}, 48, {v(TX)}")
smask(P0, 0x00F0BFE0BFE0BFE0)
p(f"v_lshrrev_b64 {v(AP+2,2)}, {v(TX)}, {s(P0,2)}")
p(f"v_mov_b32 {v(NBA)}, 0")
p(f"s_mov_b64 {s(NB,2)}, 0")
for x in range(2):
    p(f"v_cndmask_b32 {v(AP+2+x)}, {v(AP+4+x)}, {v(AP+2+x)}, {s(P2,2)}")
if STAMP:
    p(f"s_mov_b32 {s(sK)}, {KB-1}")
p(f"s_mov_b32 {s(sKW)}, {KB-1}")
p(f"s_mov_b32 {s(sC)}, {CNEG:#x}")
n_, r_, c_ = TX + 5, TX + 6, TX + 4
p(f"v_and_b32 {v(n_)}, 15, v0")
p(f"v_bfe_u32 {v(r_)}, v0, 2, 2")
X0 = TX + 7
SA, SC_, SB_, TBA, BWA = CA + 60, CA + 61, CA + 62, CA + 63, CD + 30
IDN, N0M = DG + 2, DG + 4
p(f"v_lshlrev_b32 {v(X0)}, 3, {v(c_)}")
p(f"v_lshl_add_u32 {v(X0)}, {v(r_)}, 7, {v(X0)}")
p(f"v_and_b32 {v(TX)}, 24, v0")
p(f"v_lshlrev_b32 {v(TX)}, 2, {v(TX)}")
p(f"v_xor_b32 {v(TX)}, {v(X0)}, {v(TX)}")
p(f"v_lshl_add_u32 {v(TX)}, v1, 10, {v(TX)}")
p(f"s_lshl_b32 {s(sT0)}, {s(sT1)}, 5")
p(f"v_xor_b32 {v(SB_)}, {s(sT0)}, {v(TX)}")
p(f"v_add_u32 {v(SB_)}, {STG+2*REG}, {v(SB_)}")
p(f"s_lshr_b32 {s(sT0)}, {s(sw)}, 1")
p(f"s_lshl_b32 {s(sT0)}, {s(sT0)}, 5")
p(f"v_xor_b32 {v(SA)}, {s(sT0)}, {v(TX)}")
p(f"s_and_b32 {s(sT0)}, {s(sw)}, 1")
p(f"s_mul_i32 {s(sT0)}, {s(sT0)}, {REG}")
p(f"s_add_u32 {s(sT0)}, {s(sT0)}, {STG}")
p(f"v_add_u32 {v(SA)}, {s(sT0)}, {v(SA)}")
p(f"v_add_u32 {v(SC_)}, {4*REG}, {v(SA)}")
p(f"s_and_b32 {s(sT0)}, {s(sw)}, 4")
p(f"v_lshrrev_b32 {v(TX)}, 3, {v(n_)}")
p(f"v_add_u32 {v(TX)}, {s(sT0)}, {v(TX)}")
p(f"v_mul_u32_u24 {v(TX)}, {REG}, {v(TX)}")
p(f"v_lshl_add_u32 {v(TX)}, v1, 4, {v(TX)}")
p(f"v_and_b32 {v(TX+1)}, 7, v0")
p(f"v_lshl_add_u32 {v(TBA)}, {v(TX+1)}, 7, {v(TX)}")


def gRDB():
    p(f"v_and_b32 {v(TX+1)}, 8, v0")
    p(f"v_lshlrev_b32 {v(TX+1)}, 2, {v(TX+1)}")
    p(f"v_lshl_add_u32 {v(TX+1)}, {v(n_)}, 7, {v(TX+1)}")
    p(f"v_add_u32 {v(TX+1)}, {s(sLB)}, {v(TX+1)}")
    p(f"v_and_b32 {v(TX+2)}, 2, v0")
    p(f"v_lshlrev_b32 {v(TX+2)}, 1, {v(TX+2)}")
    p(f"v_xor_b32 {v(TX+2)}, {v(TX+2)}, v1")
    p(f"v_lshl_add_u32 {v(RDB0)}, {v(TX+2)}, 4, {v(TX+1)}")
    p(f"v_xor_b32 {v(TX+2)}, 4, {v(TX+2)}")
    p(f"v_lshl_add_u32 {v(RDB1)}, {v(TX+2)}, 4, {v(TX+1)}")


def gRDT():
    p(f"v_and_b32 {v(TX+1)}, 8, v0")
    p(f"v_lshlrev_b32 {v(TX+1)}, 3, {v(TX+1)}")
    p(f"v_lshl_add_u32 {v(TX+2)}, v1, 5, {v(X0)}")
    p(f"v_xor_b32 {v(TX+2)}, {v(TX+2)}, {v(TX+1)}")
    p(f"v_add_u32 {v(RDT)}, {s(sLB)}, {v(TX+2)}")


def gTAD():
    p(f"s_add_u32 {s(sT0)}, {s(sLB)}, {TB}")
    p(f"v_lshl_add_u32 {v(TADR)}, {v(c_)}, 1, {s(sT0)}")
    p(f"v_lshl_add_u32 {v(TADR)}, {'v1' if W44 else v(r_)}, 4, {v(TADR)}")
    p(f"s_add_u32 {s(sT0)}, {s(sLB)}, {OUTS}")
    p(f"v_lshl_add_u32 {v(OADR)}, v0, 1, {s(sT0)}")
    p(f"s_add_u32 {s(sT0)}, {s(sLB)}, {BI}")
    p(f"v_lshl_add_u32 {v(BADR)}, v1, 4, {s(sT0)}")


def gBWA():
    p(f"s_and_b32 {s(sT0)}, {s(sw)}, 3")
    p(f"s_lshl_b32 {s(sT0)}, {s(sT0)}, 6")
    p(f"s_add_u32 {s(sT0)}, {s(sT0)}, {BI}")
    p(f"v_and_b32 {v(TX+1)}, 7, v0")
    p(f"v_mul_u32_u24 {v(TX+1)}, {BSTR-128}, {v(TX+1)}")
    p(f"v_add3_u32 {v(BWA)}, {v(TBA)}, {v(TX+1)}, {s(sT0)}")


def gSEL():
    if not W44:
        p(f"v_cmp_eq_u32 vcc, {v(r_)}, v1")
    p(f"v_and_b32 {v(TX+1)}, 1, v0")
    p(f"v_lshlrev_b32 {v(TX+1)}, 4, {v(TX+1)}")
    p(f"v_lshlrev_b32 {v(TX+1)}, {v(TX+1)}, 1")
    if not W44:
        p(f"v_cndmask_b32 {v(TX+1)}, 0, {v(TX+1)}, vcc")
    p(f"v_cmp_gt_u32 vcc, 2, {v(c_)}")
    p(f"v_mov_b32 {v(ONE+1)}, 0")
    p(f"v_mov_b32 {v(ONE)}, 0x3f80")
    p(f"v_cndmask_b32 {v(SEL0)}, 0, {v(TX+1)}, vcc")
    p(f"v_cmp_eq_u32 vcc, 0, {v(n_)}")
    p(f"v_sub_u32 {v(SEL1)}, {v(TX+1)}, {v(SEL0)}")
    p(f"v_mul_u32_u24 {v(IDN)}, 0x3f80, {v(SEL0)}")
    p(f"v_cndmask_b32 {v(N0M)}, 0, -1, vcc")
    p(f"v_mul_u32_u24 {v(IDN+1)}, 0x3f80, {v(SEL1)}")


def gZER():
    for j in range(8):
        p(f"v_mov_b32 {v(XT+j)}, 0")
    for j in range(4):
        p(f"v_mov_b32 {v(S+j)}, 0")
        p(f"v_mov_b32 {v(ACC+j)}, 0")


def gB2():
    p(f"s_lshl_b32 {s(sB2)}, {s(sB2)}, 16")
    for r in range(4):
        p(f"v_and_b32 {v(B2+r)}, {s(sB2)}, {v(N0M)}")


def gPRI():
    if opt["prio"]:
        p(f"s_add_u32 {s(sT0)}, {s(sLB)}, {PRG}")
        p(f"v_lshl_add_u32 {v(DG+5)}, v0, 2, {s(sT0)}")
        p(f"ds_write_b32 {v(DG+5)}, {v(ONE+1)}")
        p(f"s_xor_b32 {s(sT0)}, {s(sw)}, 4")
        p(f"s_mul_i32 {s(sT0)}, {s(sT0)}, {REG}")
        p(f"s_add_u32 {s(sT0)}, {s(sT0)}, {PRG}")
        p(f"v_writelane_b32 {v(DG+5)}, {s(sT0)}, 1")
    if opt["swap"]:
        p(f"v_mov_b32 {v(DG+6)}, {s(sLB)}")
        p(f"ds_write_b32 {v(DG+6)}, {v(ONE+1)} offset:{KEY}")
        p(f"ds_write_b32 {v(DG+6)}, {v(ONE+1)} offset:{TKT}")
        p(f"s_mov_b32 {s(sDLB)}, 0")
        p(f"s_mov_b32 {s(sDG)}, 0")


PLACE = dict(zip((gSEL, gBWA, gPRI, gB2, gRDB, gRDT, gTAD, gZER), (int(x) for x in str(opt["place"])[1:])))


def groups(k):
    for f, w_ in PLACE.items():
        if w_ == k:
            f()


groups(0)
if opt["ym"]:
    load_b1()
    p(f"s_cmp_ge_u32 {s(sw)}, 4")
    p("s_cbranch_scc0 L_old3z")
    p(f"buffer_load_dwordx4 {v(MSK,4)}, v3, {s(SM,4)}, {s(sOFF)} offen {NTM}")
    p("L_old3z:")


def late_loads():
    if opt["tlb"]:
        p(f"s_add_u32 {s(sT0)}, {s(sw)}, 1")
        p(f"s_and_b32 {s(sT0)}, {s(sT0)}, 6")
        p("s_cbranch_scc1 L_notouch")
        p(f"s_mov_b32 {s(sT0)}, {PSTR*25600}")
        p(f"v_mul_lo_u32 v255, v0, {s(sT0)}")
        p(f"s_mul_i32 {s(sT0)}, {s(sW)}, 51200")
        p(f"s_and_b32 {s(sT1)}, {s(sw)}, 1")
        p(f"s_mul_i32 {s(sT1)}, {s(sT1)}, {51200-128}")
        p(f"s_add_u32 {s(sT0)}, {s(sT0)}, {s(sT1)}")
        p(f"v_add_u32 v255, {s(sT0)}, v255")
        p("s_mov_b64 exec, 14")
        p(f"global_load_dword v255, v255, s[6:7] {NT}")
        p("s_mov_b64 exec, -1")
        p("L_notouch:")
    for j in range(1, 4):
        p(f"s_add_u32 {s(sOFF)}, {s(sOFF)}, {PSTR*400}")
        p(f"buffer_load_dwordx4 {v(MSK+4*j,4)}, v3, {s(SM,4)}, {s(sOFF)} offen {NTM}")
    p(f"v_lshlrev_b32 {v(TX+3)}, 3, v1")
    p(f"v_lshl_add_u32 {v(TX+3)}, {v(TX+4)}, 5, {v(TX+3)}")
    p(f"global_load_dwordx2 {v(W2R,2)}, {v(TX+3)}, s[14:15]")


G2 = opt["g2"]
if not G2:
    late_loads()
LL = 0 if G2 else 4
NE = D - 2
IDX = ZB


def idx_reads():
    for t in range(D):
        p(f"ds_read_u8 {v(IDX+2*t)}, {v(RDL)} offset:{t*16}")
        p(f"ds_read_u8 {v(IDX+2*t+1)}, {v(RDL)} offset:{t*16+8}")


def tiles(t0, t1, bits, tag):
    for t in range(t0, t1):
        if t > 0:
            p(f"s_bitcmp0_b64 {s(bits,2)}, {t+1}")
            p(f"s_cbranch_scc1 L_noadv{tag}{t}")
            adv_hist()
            if opt["swap"]:
                p(f"s_sub_u32 {s(sKA)}, {s(sKA)}, 1")
            p(f"L_noadv{tag}{t}:")
        p(m0_half(t, 0))
        p(f"v_mov_b32 {v(VA)}, {v(IDX+2*t)}")
        p(f"v_mov_b32 {v(VB)}, {v(IDX+2*t+1)}")
        p(dma_half(0))
        if not opt["m1"]:
            p(m0_half(t, 1))
            p("s_nop 0")
        p(dma_half(1))


issued = [0]


def early(n):
    if n == 0:
        return
    t0 = issued[0]
    p(f"s_cmp_eq_u32 {s(sEARLY)}, 0")
    p(f"s_cbranch_scc1 L_skip{t0}")
    tiles(t0, t0 + n, F, "e")
    p(f"L_skip{t0}:")
    issued[0] += n


def x5tile():
    p(f"ds_read_u8 {v(VA)}, {v(RDL)} offset:{D*16}")
    p(f"ds_read_u8 {v(VB)}, {v(RDL)} offset:{D*16+8}")
    p(f"s_add_u32 m0, {s(sLB)}, {LI-2176}")
    p("s_waitcnt lgkmcnt(0)")
    p(dma_half(0))
    p(dma_half(1))


def first_pair():
    q_total(0, 0)
    t = q_test(0)
    for x in t[:8]:
        p(x)
    for step in range(5):
        p(q_scan(0, step))
        for x in t[8 + step:9 + step]:
            p(x)
    p(f"v_cmp_ne_u32 vcc, 0, {v(NBA)}")
    q_lanes(0)
    p(f"s_mov_b32 {s(sEARLY)}, 0")
    p("s_cbranch_vccnz L_late")
    q_ranks(0, 0)
    p(f"s_add_u32 {s(sT0)}, {s(sLB)}, {L0+16*D}")
    p(f"s_cmp_ge_u32 {s(sBASE)}, {s(sT0)}")
    q_write(0)
    p("s_cbranch_scc0 L_late")
    p(f"s_mov_b32 {s(sEARLY)}, 1")
    idx_reads()
    p("s_waitcnt lgkmcnt(0)")
    tiles(0, NE, F, "e")
    if opt.get("x5") == 2:
        x5tile()
    p(f"s_setpc_b64 {s(RET,2)} ; ret=L_fp")
    p("L_late:")
    p("s_waitcnt vmcnt(0)")
    p(f"s_setpc_b64 {s(RET,2)} ; ret=L_fp")


stamp()
jit()
if not opt["yf"]:
    p(f"s_cmp_ge_u32 {s(sw)}, 4")
    p("s_cbranch_scc1 L_young1")
p(f"s_waitcnt vmcnt({6+LL}) lgkmcnt(0)")
p(f"s_call_b64 {s(RET,2)}, L_fp")
p(f"s_waitcnt vmcnt({1+LL+2*NE})")
p("s_branch L_old1")
p("L_young1:")
p(f"s_waitcnt vmcnt({1+LL+opt['ym']})")
p("L_old1:")
cst("preB1")
p(f"s_waitcnt lgkmcnt(0)")
p("s_barrier")
stamp()
cst("B1")
jit()
RWA, RWC, RWD, RBB, RBC, TP, DB, DA, DD = CA, CA + 4, CA + 8, CA + 12, CA + 20, CA + 28, CA + 44, CA + 52, CD
for (dst, base) in ((RBB, 0), (RBC, 2)):
    for ks in range(2):
        for u in range(2):
            p(f"ds_read_b64_tr_b16 {v(dst+4*ks+2*u,2)}, {v(SB_)} offset:{(base+ks)*REG+u*512}")
for j in range(2):
    for ks in range(2):
        p(f"ds_read_b128 {v(TP+8*j+4*ks,4)}, {v(TBA)} offset:{TB+j*2*REG+ks*64}")
for u in range(2):
    p(f"ds_read_b64_tr_b16 {v(RWA+2*u,2)}, {v(SA)} offset:{u*512}")
    p(f"ds_read_b64_tr_b16 {v(RWC+2*u,2)}, {v(SC_)} offset:{u*512}")
    p(f"ds_read_b64_tr_b16 {v(RWD+2*u,2)}, {v(SC_)} offset:{2*REG+u*512}")
if not opt["yf"]:
    p(f"s_cmp_ge_u32 {s(sw)}, 4")
    p("s_cbranch_scc1 L_young2")
p(f"s_waitcnt vmcnt({LL+2*NE})")
p("s_branch L_old2")
p("L_young2:")
p(f"s_waitcnt vmcnt({LL+opt['ym']})")
p("L_old2:")
if G2:
    late_loads()
for j in range(2):
    p(f"v_lshlrev_b32 {v(DB+2*j)}, 16, {v(B1R+j)}")
    p(f"v_and_b32 {v(DB+2*j+1)}, 0xffff0000, {v(B1R+j)}")
groups(1)
jit()
cst("firstpair")
p("s_waitcnt lgkmcnt(0)")
for j in range(8):
    p(f"v_xor_b32 {v(RBC+j)}, 0x80008000, {v(RBC+j)}")
for u in range(2):
    p(f"{DIAGMM} {v(DA+4*u,4)}, {v(IDN,2)}, {v(RWA+2*u,2)}, 0")
    p(f"{DIAGMM} {v(DD+4*u,4)}, {v(IDN,2)}, {v(RWD+2*u,2)}, 0")
for u in range(2):
    p(f"{DIAGMM} {v(DA+4*u,4)}, {v(IDN,2)}, {v(RWC+2*u,2)}, {v(DA+4*u,4)}")
for j in (1, 0):
    first = True
    for (src) in (RBB, RBC):
        for ks in range(2):
            c = v(DB, 4) if first else v(DB + 4 * j, 4)
            p(f"v_mfma_f32_16x16x32_bf16 {v(DB+4*j,4)}, {v(src+4*ks,4)}, {v(TP+8*j+4*ks,4)}, {c}")
            first = False
for j in range(8):
    p(f"v_mul_f32 {v(DA+j)}, {s(sC)}, {v(DA+j)}")
for j in range(8):
    p(f"v_mul_f32 {v(DD+j)}, {s(sC)}, {v(DD+j)}")
p(f"s_add_u32 {s(sT0)}, {s(sLB)}, {XCH}")
p(f"v_add_u32 v3, {s(sT0)}, v2")
for j in range(4):
    p(f"v_cvt_pk_bf16_f32 {v(DD+j)}, {v(DD+2*j)}, {v(DD+2*j+1)}")
for j in range(8):
    p(f"v_mul_f32 {v(DB+j)}, {s(sC)}, {v(DB+j)}")
p(f"ds_write_b128 v3, {v(DA,4)}")
p(f"ds_write_b128 v3, {v(DA+4,4)} offset:1024")
p(f"ds_write_b128 v3, {v(DD,4)} offset:2048")
p(f"ds_write_b128 {v(BWA)}, {v(DB,4)}")
p(f"ds_write_b128 {v(BWA)}, {v(DB+4,4)} offset:{2*REG}")
p(f"v_add_u32 v3, {XCH}, v2")
p(f"v_add_u32 {v(TX)}, {4*REG}, v3")
cst("preB3")
p("s_waitcnt lgkmcnt(0)")
p("s_barrier")
cst("B3")
jit()
stamp()
def const_reads(w0, w1):
    if opt.get("xc"):
        return
    for w_ in range(w0, w1):
        a = "v3" if w_ < 4 else v(TX)
        p(f"ds_read_b128 {v(CA+8*w_,4)}, {a} offset:{(w_&3)*REG}")
        p(f"ds_read_b128 {v(CA+8*w_+4,4)}, {a} offset:{(w_&3)*REG+1024}")
        p(f"ds_read_b128 {v(CD+4*w_,4)}, {a} offset:{(w_&3)*REG+2048}")


if opt["yf"]:
    assert not opt["ym"] and not opt["y2"]
    p("s_branch L_old3")
p(f"s_cmp_ge_u32 {s(sw)}, 4")
p("s_cbranch_scc0 L_old3")
if opt["yp"]:
    p("s_setprio 2")
if opt["ym"]:
    p("s_waitcnt vmcnt(4)")
p(f"s_call_b64 {s(RET,2)}, L_fp")
if opt["y2"]:
    p("s_branch L_yng3")
p("L_old3:")
p(f"s_call_b64 {s(RET,2)}, L_t23")
p("L_yng3:")
const_reads(0, 3)
groups(2)
p(f"s_waitcnt vmcnt({2*NE if opt['y2'] or G2 else 2*D})")
cst("tiles23")
for i in range(3):
    q_total(i, i + 1)
t = q_test(1) + q_test(2) + q_test(3)
for x in t[:9]:
    p(x)
for step in range(5):
    for i in range(3):
        p(q_scan(i, step))
const_reads(3, 5)
for x in t[9:]:
    p(x)
p(f"v_cmp_ne_u32 vcc, 0, {v(NBA)}")
for i in range(3):
    q_lanes(i)
p("s_cbranch_vccnz L_general")
q_ranks(0, 1)
q_ranks(1, 2)
q_write(0)
q_ranks(2, 3)
q_write(1)
const_reads(5, 8)
t_reads()
q_write(2)
if opt["y2"]:
    p(f"s_cmp_ge_u32 {s(sw)}, 4")
    p("s_cbranch_scc0 L_old3b")
    p(f"s_call_b64 {s(RET,2)}, L_t23")
    p("L_old3b:")
p("L_listed:")
stamp()
jit(True)
if opt["swap"]:
    if opt.get("krow", 0):
        p(f"s_and_b32 {s(sT0)}, {s(A0+10)}, 0x1ff")
        p(f"s_lshl_b32 {s(sT0)}, {s(sT0)}, 3")
    else:
        p(f"s_sub_u32 {s(sT0)}, {s(sE3)}, {s(sB3)}")
    p(f"s_or_b32 {s(sT0)}, {s(sT0)}, {s(sw)}")
    p(f"s_and_b32 {s(sT1)}, {s(NB)}, 0x40000000")
    p(f"s_or_b32 {s(sT0)}, {s(sT0)}, {s(sT1)}")
    p(f"s_bitset1_b32 {s(sT0)}, 31")
    for x, r in enumerate((sT0, sB3, sM3, sE3)):
        p(f"v_mov_b32 {v(ZA+x)}, {s(r)}")
    p("s_mov_b64 exec, 1")
    p(f"ds_write_b128 {v(DG+6)}, {v(ZA,4)} offset:{KEY}")
    p("s_mov_b64 exec, -1")
if opt["prio"]:
    step = D if opt["prio"] == 2 else 2 * D
    p(f"s_sub_u32 {s(sT0)}, {s(sBASE)}, {s(sLB)}")
    p(f"s_sub_u32 {s(sT0)}, {s(sT0)}, {L0}")
    p(f"s_lshr_b32 {s(sT0)}, {s(sT0)}, 3")
    if opt["bias"]:
        p(f"s_lshr_b32 {s(sT1)}, {s(sw)}, 2")
        p(f"s_mul_i32 {s(sT1)}, {s(sT1)}, {2*opt['bias']}")
        p(f"s_add_u32 {s(sT0)}, {s(sT0)}, {s(sT1)}")
    p(f"s_sub_u32 {s(sT1)}, 0, {s(sT0)}")
    p(f"v_mov_b32 {v(PADR)}, {v(DG+5)}")
    p(f"v_mov_b32 {v(PRV)}, {s(sT0)}")
    p(f"v_mov_b32 {v(PINC)}, {-step}")
    p(f"v_writelane_b32 {v(PRV)}, {s(sT1)}, 1")
    p(f"v_writelane_b32 {v(PINC)}, {step}, 1")
    p(f"ds_add_u32 {v(PADR)}, {v(PRV)}")
p(f"s_cmp_eq_u32 {s(sEARLY)}, 1")
p("s_cbranch_scc1 L_nolate")
idx_reads()
p("s_waitcnt lgkmcnt(0)")
tiles(0, D, F, "l")
p("L_nolate:")
for hb in range(4):
    for j in range(2):
        p(f"v_and_b32_dpp {v(W2+2*hb+j)}, {v(W2R+j)}, {v(N0M)} quad_perm:[{hb},{hb},{hb},{hb}] row_mask:0xf bank_mask:0xf")
if opt.get("xp"):
    for j in range(opt["xp"]):
        p("s_nop 15")
cst("precompactdone")
p(f"s_waitcnt vmcnt({2*(D-1)}) lgkmcnt(0)")
read_xb(0, 0)
read_xb(0, 1)
wbuild()
stamp()
stamp(33)
cst("wbuilt")
if STAMP == 4:
    p("s_waitcnt lgkmcnt(0)")
    p("v_mov_b32 v254, 0")
    for j, r in enumerate((38,80,82,96,98,44,46,48,50,16)):
        p(f"v_writelane_b32 v254, s{r}, {j}")
for j in range(8):
    p(g1(j))
if "y0" in SCHED[opt["sched"]]:
    p(f"s_waitcnt vmcnt({2*(D-2)})")
    read_xb(1, 0)
    read_xb(1, 1)
_t = SCHED[opt["sched"]].split()
if _t.index("ia") < _t.index("EV"):
    p(f"ds_read_u8 {v(VA)}, {v(RDL)} offset:{D*16}")
    p(f"ds_read_u8 {v(VB)}, {v(RDL)} offset:{D*16+8}")
if _t.index("k1") > _t.index("EV"):
    for j in range(4, 8):
        p(f"v_mov_b32 {v(ZA+j)}, 0")
if opt.get("x5"):
    p("s_waitcnt lgkmcnt(0)")
    p(f"v_mov_b32 {v(VA)}, 0xff")
    p(f"v_mov_b32 {v(VB)}, 0xff")
event_mask()
p(f"s_cmp_lg_u64 {s(NB,2)}, 0")
if opt.get("so"):
    p("s_cbranch_scc1 L_gen2")
    p(f"s_getreg_b32 {s(sT0)}, hwreg(HW_REG_XCC_ID, 0, 1)")
    p(f"s_cmp_eq_u32 {s(sT0)}, 0")
    p("s_cbranch_scc1 Lf_mid")
    p("s_branch Lo_mid")
    p("L_gen2:")
else:
    p("s_cbranch_scc0 Lf_mid")
p(f"s_mul_i32 {s(sT0)}, {s(sW)}, 800")
p(f"s_add_u32 s8, s8, {s(sT0)}")
p("s_addc_u32 s9, s9, 0")
srd(SM, 8, 400)
p(f"s_movk_i32 {s(sMDL)}, {MDL0}")
p("s_branch Ls_mid")
p("L_fp:")
first_pair()
if opt["swap"]:
    A_, B_, KB_, TK_, KA_ = ZA + 8, ZA + 9, ZA + 10, ZA + 11, ZA + 12
    p("L_swap:")
    p(f"v_lshrrev_b32 {v(A_)}, 3, v0")
    p(f"v_and_b32 {v(B_)}, 7, v0")
    p(f"v_mul_u32_u24 {v(A_)}, {REG}, {v(A_)}")
    p(f"v_mul_u32_u24 {v(B_)}, {REG}, {v(B_)}")
    p(f"v_mov_b32 {v(TK_)}, 1")
    p("s_mov_b64 exec, 1")
    p(f"ds_add_rtn_u32 {v(TK_)}, {v(A_)}, {v(TK_)} offset:{TKT}")
    p("s_mov_b64 exec, -1")
    p("L_swap_poll:")
    p(f"ds_read_b32 {v(KB_)}, {v(B_)} offset:{KEY}")
    p(f"ds_read_b128 {v(KA_,4)}, {v(A_)} offset:{KEY}")
    p(f"v_and_b32 {v(TX+2)}, 56, v0")
    p("s_waitcnt lgkmcnt(0)")
    p(f"v_cmp_le_i32 vcc, 0, {v(KB_)}")
    p(f"v_cmp_gt_u32 {s(P0,2)}, {v(KB_)}, {v(KA_)}")
    p(f"v_lshlrev_b32 {v(TX+3)}, 1, {v(KB_)}")
    p(f"v_readfirstlane_b32 {s(sT0)}, {v(TK_)}")
    p("s_cbranch_vccnz L_swap_poll")
    p(f"v_lshrrev_b64 {v(TX,2)}, {v(TX+2)}, {s(P0,2)}")
    p(f"v_cmp_gt_i32 {s(P1,2)}, 0, {v(TX+3)}")
    p(f"v_and_b32 {v(TX)}, 0xff, {v(TX)}")
    p(f"v_bcnt_u32_b32 {v(TX)}, {v(TX)}, 0")
    p(f"v_cmp_eq_u32 vcc, {s(sT0)}, {v(TX)}")
    p(f"s_lshl_b32 {s(sT1)}, {s(sw)}, 3")
    p(f"s_ff1_i32_b64 {s(sT0)}, vcc")
    p(f"s_cmp_lg_u64 {s(P1,2)}, 0")
    p(f"s_cselect_b32 {s(sT0)}, {s(sT1)}, {s(sT0)}")
    p(f"s_sub_u32 {s(sT3)}, {s(sT0)}, {s(sT1)}")
    p(f"v_readlane_b32 {s(sT1)}, {v(KA_+2)}, {s(sT0)}")
    p(f"v_readlane_b32 {s(sT2)}, {v(KA_+3)}, {s(sT0)}")
    p(f"v_readlane_b32 {s(sT0)}, {v(KA_+1)}, {s(sT0)}")
    p(f"s_mul_i32 {s(sDLB)}, {s(sT3)}, {REG // 8}")
    p(f"s_lshl_b32 {s(sDG)}, {s(sT3)}, 5")
    p(f"s_mul_i32 {s(sT3)}, {s(sT3)}, 6400")
    p(f"s_add_u32 {s(sRO)}, {s(sRO)}, {s(sT3)}")
    p(f"s_mov_b32 {s(sKA)}, 8")
    p(f"s_sub_u32 {s(sB3)}, {s(sT0)}, {s(sB3)}")
    p(f"v_add_u32 {v(RDL)}, {s(sB3)}, {v(RDL)}")
    p(f"s_sub_u32 {s(sE3)}, {s(sT2)}, {s(sE3)}")
    p(f"s_sub_u32 {s(sE3)}, {s(sE3)}, {s(sB3)}")
    for r in (sT1, sT2):
        p(f"s_sub_u32 {s(r)}, {s(r)}, {s(sT0)}")
        p(f"s_lshr_b32 {s(r)}, {s(r)}, 4")
        p(f"s_add_u32 {s(r)}, {s(r)}, {s(sU)}")
        p(f"s_bitset1_b64 {s(F,2)}, {s(r)}")
    event_mask()
    if opt["prio"]:
        p(f"s_ashr_i32 {s(sE3)}, {s(sE3)}, 3")
        p(f"v_mov_b32 {v(A_)}, {s(sE3)}")
        p(f"s_sub_u32 {s(sE3)}, 0, {s(sE3)}")
        p(f"v_writelane_b32 {v(A_)}, {s(sE3)}, 1")
        p(f"ds_add_u32 {v(PADR)}, {v(A_)}")
    p(f"s_cmp_lg_u32 {s(sKW)}, 2")
    p(f"s_cselect_b32 {s(sM3)}, 1, -1")
    p("s_cbranch_scc1 L_swap_ret")
    p(f"v_add_u32 {v(TADR)}, {s(sDLB)}, {v(TADR)}")
    p(f"v_add_u32 {v(BADR)}, {s(sDLB)}, {v(BADR)}")
    t_reads()
    p("L_swap_ret:")
    p(f"s_setpc_b64 {s(RET,2)} ; ret=L_swap")
p("L_t23:")
p(f"s_cmp_eq_u32 {s(sEARLY)}, 0")
p("s_cbranch_scc1 L_skip23")
tiles(NE, D, F, "e")
if opt.get("x5") == 1:
    x5tile()
p(f"s_setpc_b64 {s(RET,2)} ; ret=L_t23")
p("L_skip23:")
p("s_waitcnt vmcnt(0)")
p(f"s_setpc_b64 {s(RET,2)} ; ret=L_t23")
mainloop("f", False)
p("L_store:")
p(f"s_add_u32 {s(sT0)}, {s(sLB)}, {OUTS}")
p(f"v_lshl_add_u32 {v(TX+1)}, v0, 4, {s(sT0)}")
if opt["swap"]:
    p(f"s_bfm_b64 exec, 16, 48")
    p(f"v_add_u32 {v(VOUT)}, {s(sDG)}, {v(VOUT)}")
    p("s_mov_b64 exec, -1")
p(f"ds_read_b128 {v(ZB,4)}, {v(TX+1)}")
p("s_waitcnt lgkmcnt(0)")
if opt.get("endp"):
    p("s_cmp_lg_u32 s2, 0")
    p("s_cbranch_scc1 L_endp")
    p("L_endq:")
    p("s_memrealtime s[38:39]")
    p("s_waitcnt lgkmcnt(0)")
    p("s_sub_u32 s38, s38, s80")
    p(f"s_cmp_lt_i32 s38, {opt['endp']*100}")
    p("s_cbranch_scc1 L_endq")
    p("L_endp:")
    if opt.get("fr"):
        p(f"s_and_b32 s38, s2, {opt['fr']}")
        p("s_cbranch_scc0 L_endr")
        p(f"global_store_dwordx4 {v(VOUT)}, {v(ZB,4)}, s[18:19] sc0 sc1")
        p("s_endpgm")
        p("L_endr:")
p(f"global_store_dwordx4 {v(VOUT)}, {v(ZB,4)}, s[18:19] {NTO}")
if STAMP:
    p("s_mov_b64 exec, -1")
    stamp(34)
    p(f"v_writelane_b32 v254, {s(sBASE)}, 15")
    p("s_getreg_b32 s96, hwreg(HW_REG_XCC_ID)")
    p("v_writelane_b32 v254, s96, 14")
    p("s_getreg_b32 s96, hwreg(HW_REG_HW_ID)")
    p("v_writelane_b32 v254, s96, 13")
    srd(SM, 100, 2048 * 256)
    p(f"s_lshl_b32 {s(sT0)}, s2, 3")
    p(f"s_add_u32 {s(sT0)}, {s(sT0)}, {s(sw)}")
    p(f"s_lshl_b32 {s(sT0)}, {s(sT0)}, 8")
    p(f"v_lshlrev_b32 v1, 2, v0")
    p(f"buffer_store_dword v254, v1, {s(SM,4)}, {s(sT0)} offen")
if opt.get("twice"):
    p("s_waitcnt vmcnt(0) lgkmcnt(0)")
    p("s_barrier")
    p("s_setprio 0")
    p(f"s_lshl_b32 {s(sT0)}, {s(sw)}, 6")
    p(f"v_add_u32 v0, {s(sT0)}, v0")
    p("s_add_u32 s3, s3, 1")
    p("s_cmp_eq_u32 s3, 1")
    p("s_cbranch_scc1 L_again")
if opt.get("spin"):
    if opt.get("probe"):
        if opt["probe"] == "end":
            p("s_memrealtime s[98:99]")
            p("s_waitcnt lgkmcnt(0)")
        p("s_sub_u32 s98, s98, s80")
        p(f"s_mul_i32 s98, s98, {opt.get('pk', 4)}")
        p("s_add_u32 s80, s80, s98")
    p("L_spin:")
    p("s_memrealtime s[38:39]")
    p("s_waitcnt lgkmcnt(0)")
    p("s_sub_u32 s38, s38, s80")
    p(f"s_cmp_lt_i32 s38, {opt['spin']*100}")
    p("s_cbranch_scc1 L_spin")
p("L_end:")
p("s_endpgm")
if opt.get("so"):
    mainloop("o", False, opt["so"])
p("L_general:")
p("s_waitcnt vmcnt(0)")
const_reads(5, 8)
t_reads()
list_reset()
p(f"s_bfm_b64 {s(EX50,2)}, 50, 0")
p(f"s_mul_i32 {s(sT0)}, {s(sW)}, 800")
p(f"v_add_u32 {v(TX+1)}, {s(sT0)}, v2")
p(f"s_mov_b64 exec, {s(EX50,2)}")
for j in range(4):
    p(f"global_load_dwordx4 {v(MSK+4*j,4)}, {v(TX+1)}, s[8:9]")
    p(f"v_add_u32 {v(TX+1)}, {PSTR*400}, {v(TX+1)}")
p("s_mov_b64 exec, -1")
p(f"v_cmp_lt_u32 vcc, 24, v0")
p(f"v_cndmask_b32 {v(HI)}, 0, 1, vcc")
p(f"v_mul_u32_u24 {v(CV+1)}, 25, {v(HI)}")
p(f"v_sub_u32 {v(CV+1)}, v0, {v(CV+1)}")
p(f"v_mul_u32_u24 {v(CV+1)}, 0x80008, {v(CV+1)}")
p(f"v_add_u32 {v(CV)}, 0x10000, {v(CV+1)}")
p(f"v_add_u32 {v(CV+2)}, 0x50004, {v(CV+1)}")
p(f"v_add_u32 {v(CV+3)}, 0x70006, {v(CV+1)}")
p(f"v_add_u32 {v(CV+1)}, 0x30002, {v(CV+1)}")
p("s_waitcnt vmcnt(0)")
for j in range(4):
    compact_body(j)
p(f"s_mov_b32 {s(sEARLY)}, 0")
p(f"s_mov_b64 {s(NB,2)}, -1")
p("s_branch L_listed")
mainloop("s", True)

nn = p.fix_hazards(verbose=opt["verbose"])
for early_, old_, gen_ in ((a_, b_, c_) for a_ in (True, False) for b_ in (True, False) for c_ in (True, False)):
    force = [("L_skip", not early_), ("L_nolate", early_ and not gen_), ("L_young", not old_), ("L_old3", old_), ("L_general", gen_)]
    for e in check_waits(p, force + ([("L_late", False)] if early_ else [])) if early_ else check_waits(p, force, cut="L_noadve"):
        if STAMP != 4 and not opt.get('x5'):
            sys.exit(f"WAIT-CHECK early={early_}: {e}")
hdr = open(__file__.rsplit("/", 1)[0] + "/../standalone__sequential_behavior_din__recsys.s.ref").read().split("\n")
head = [l for l in hdr if l.startswith(";") and "@launch" not in l and "Override" not in l and "grid=ceil" not in l]
out = "\n".join(head) + f"""
; @launch grid=({NWG},1,1) block=({WPB*64},1,1) lds={WPB*REG}
; generated by gen/gen.py {' '.join(sys.argv[1:])}
.amdgcn_target "amdgcn-amd-amdhsa--gfx950"
.text
.globl {NAME}
.p2align 8
.type {NAME},@function
""" + p.text() + f""".section .rodata,"a"
.p2align 6
.amdhsa_kernel {NAME}
  .amdhsa_next_free_vgpr 256
  .amdhsa_next_free_sgpr 102
  .amdhsa_accum_offset 256
  .amdhsa_group_segment_fixed_size 0
  .amdhsa_kernarg_size 80
  .amdhsa_user_sgpr_count 2
  .amdhsa_user_sgpr_kernarg_segment_ptr 1
  .amdhsa_system_sgpr_workgroup_id_x 1
.end_amdhsa_kernel
"""
sys.stdout.write(out)
```

```python
import sys
from asmlib import Prog, check_waits

opt = dict(pv=1, U=4, al=0, yf=0, tlb=0, g2=1, ym=1, swap=1, bias=1, y2=1, yp=0, vx=0, m1=1, map=0, place=900010000, D=4, nt="nt", ntm="nt", nto="sc0 sc1", verbose=0, prio=1, sched="r")
for a in sys.argv[1:]:
    k, v = a.split("=", 1)
    opt[k] = int(v) if v.lstrip("-").isdigit() else v.replace("+", " ")
D = opt["D"]
U = opt["U"]
assert U % D == 0
NT, NTM, NTO = opt["nt"], opt["ntm"], opt["nto"]
STAMP = opt.get("stamp", 0)
assert not (STAMP == 4 and opt["swap"])

NAME = "standalone__sequential_behavior_din__recsys_kernel"
NWG, WPB = 256, 8
NWAVE = NWG * WPB
KB = 16384 // NWAVE
REG = opt.get('reg', 20480)
SLOT = 2080
TB = D * SLOT
BI = TB + 1024
BSTR = 272
XCH = BI + 8 * BSTR
PRG = XCH + 3072
KEY = PRG + 256
OUTS = PRG + 320
TKT = PRG + 288
LI = REG - 2048
L0 = LI + 16
assert OUTS + 1024 <= LI - 2048 and LI + 2048 <= REG and LI % 2048 == 0 and REG % 2048 == 0
STG = (D - 2) * SLOT
CNEG = 0xBFB8AA3B
PSTR, WGSTR = (16, 64) if opt["map"] & 1 else (4096, 16)
LGP = PSTR.bit_length() - 1
DLT0, DLT1 = 25600, (PSTR - 1) * 25600
MDL0, MDL1 = 400, (PSTR - 1) * 400

CA, CD, W, ZA, ZB, BIAS, XB, XT, W2, B2, S, ACC, DG, TR, ONE, VA, VB = \
    4, 68, 100, 132, 148, 164, 180, 188, 196, 204, 208, 212, 216, 224, 228, 230, 232
RDB0, RDB1, RDT, RDL, TADR, BADR, OADR, SEL0, SEL1, VOUT, RDM = range(234, 245)
TX = 246
PTH = 245
PRV, PADR, PINC = 1, 2, 3
MSK = W
SH, SM, SH2 = 20, 24, 40
EX50, sB2, sDL, sMDL = 28, 30, 31, 32
sLB, sW, sw = 52, 53, 54
F = 56
H = 36
sKA, sKW = 60, 61
sBASE, sK, sT0, sT1, sT2, sT3 = 64, 65, 66, 67, 55, 95
A0 = 68
NB, P0, P1, P2 = 84, 86, 88, 90
sC, sOFF, sEARLY, sRO = 92, 93, 94, 35
sCUR, sM2, sB3, sM3, sE3 = 44, 45, 46, 47, 48
sU, sOW, sRND, sPM = 49, 50, 51, 33
sPD, sDG, sSZ = 80, 82, 68
RET = 62


def v(a, n=1):
    return f"v{a}" if n == 1 else f"v[{a}:{a+n-1}]"


def s(a, n=1):
    return f"s{a}" if n == 1 else f"s[{a}:{a+n-1}]"


p = Prog()
nstamp = [0]


def stamp(cyc=None):
    if STAMP == 4:
        return
    if not STAMP or (STAMP == 3 and cyc is None):
        return
    p("s_memrealtime s[96:97]")
    p("s_waitcnt lgkmcnt(0)")
    p(f"v_writelane_b32 v254, s96, {nstamp[0]}")
    nstamp[0] += 1
    if cyc is not None:
        p("s_memtime s[96:97]")
        p("s_waitcnt lgkmcnt(0)")
        p(f"v_writelane_b32 v254, s96, {cyc}")


ncyc = [0]


def cst(name):
    if opt.get("probe") == name:
        p("s_memrealtime s[98:99]")
        p("s_waitcnt lgkmcnt(0)")
    if STAMP == 4 and (not opt.get("arr") or name in ("entry", "kernarg") or name.startswith("arr")):
        sys.stderr.write(f"cst{ncyc[0]} = {name}\n")
        p(f"s_memtime {s((38,80,82,96,98,44,46,48,50,16)[ncyc[0]],2)}")
        ncyc[0] += 1


nfl = [0]
njit = [0]


def jit(long=False):
    if not opt.get("jitter"):
        return
    njit[0] += 1
    k = njit[0]
    p(f"s_mul_i32 s3, {s(sW)}, {37 + 2 * k + opt['jitter'] * 16}")
    p(f"s_add_u32 s3, s3, {k * 5}")
    p(f"s_lshr_b32 s3, s3, 2")
    p(f"s_and_b32 s3, s3, {7 if long else 3}")
    p("s_cmp_lg_u32 s3, 0")
    p(f"s_cbranch_scc1 L_jit{k}")
    for _ in range(10 if long else 1):
        p(f"s_sleep {127 if long else 30}")
    p(f"L_jit{k}:")


def srd(dst, ptr, nrec, stride=0):
    p(f"s_mov_b32 {s(dst)}, {s(ptr)}")
    p(f"s_and_b32 {s(dst+1)}, {s(ptr+1)}, 0xffff")
    if stride:
        p(f"s_or_b32 {s(dst+1)}, {s(dst+1)}, {stride << 16:#x}")
    p(f"s_mov_b32 {s(dst+2)}, {nrec}")
    p(f"s_mov_b32 {s(dst+3)}, 0x20000")


def m0_half(slot, j):
    return f"s_add_u32 m0, {s(sLB)}, {slot*SLOT+j*1056}"


def dma_half(j):
    if opt["m1"] and j:
        return f"buffer_load_dwordx4 {v(VB,2)}, {s(SH2,4)}, {s(sRO)} idxen offen offset:1056 {NT} lds"
    return f"buffer_load_dwordx4 {v((VA, VB)[j],2)}, {s(SH,4)}, {s(sRO)} idxen offen {NT} lds"


def adv_hist():
    p(f"s_add_u32 {s(sRO)}, {s(sRO)}, {s(sDL)}")
    p(f"s_min_u32 {s(sRO)}, {s(sRO)}, {16383*25600}")
    p(f"s_xor_b32 {s(sDL)}, {s(sDL)}, {DLT0 ^ DLT1:#x}")


R, CV, HI = ZA, ZA + 9, ZA + 13
AP, AT, QV, QH, NBA = W + 16, W + 22, W + 26, W + 30, W + 31
QR, QT, QE = (ZA, ZA + 8, BIAS), (BIAS + 8, BIAS + 12, XB), (XB + 4, XB + 5, XB + 6)
NT0, NT1 = ZB + 12, ZB + 13
CNT = 0xBFE0BFE0


def fbit(reg, k):
    p(f"s_lshr_b32 {s(sT3)}, {s(reg)}, 4")
    if 13 * (k + 1) + 1 < 64:
        p(f"s_bitset1_b64 {s(F,2)}, {s(sT3)}")
    else:
        p(f"s_lshl_b64 {s(P0,2)}, 1, {s(sT3)}")
        p(f"s_bitcmp1_b32 {s(reg)}, 10")
        p(f"s_cselect_b64 {s(P1,2)}, 0, {s(P0,2)}")
        p(f"s_cselect_b64 {s(P2,2)}, {s(P0,2)}, 0")
        p(f"s_or_b64 {s(F,2)}, {s(F,2)}, {s(P1,2)}")
        p(f"s_or_b64 {s(F+2,2)}, {s(F+2,2)}, {s(P2,2)}")


def compact_body(j):
    m = [MSK + 4 * j + x for x in range(4)]
    p(f"s_mov_b64 exec, {s(EX50,2)}")
    for e in range(8):
        p(f"v_cmp_neq_f16_sdwa {s(A0+2*e,2)}, {v(m[e>>1])}, 0 src0_sel:WORD_{e&1} src1_sel:WORD_0")
    p("s_mov_b64 exec, -1")
    p(f"v_mov_b32 {v(R)}, {s(sBASE)}")
    for e in range(8):
        p(f"v_mbcnt_lo_u32_b32 {v(R)}, {s(A0+2*e)}, {v(R)}")
        p(f"v_mbcnt_hi_u32_b32 {v(R)}, {s(A0+2*e+1)}, {v(R)}")
    p(f"s_add_u32 {s(sT2)}, {s(sBASE)}, 16")
    p(f"v_readlane_b32 {s(sT0)}, {v(R)}, 25")
    p(f"v_readlane_b32 {s(sT1)}, {v(R)}, 63")
    p(f"s_add_u32 {s(sBASE)}, {s(sT0)}, 15")
    p(f"s_and_b32 {s(sBASE)}, {s(sBASE)}, -16")
    p(f"s_max_u32 {s(sBASE)}, {s(sBASE)}, {s(sT2)}")
    p(f"s_sub_u32 {s(sT0)}, {s(sBASE)}, {s(sT0)}")
    p(f"v_mad_u32_u24 {v(R)}, {v(HI)}, {s(sT0)}, {v(R)}")
    p(f"s_mov_b32 {s(sT2)}, {s(sBASE)}")
    for e in range(7):
        p(f"v_addc_co_u32 {v(R+e+1)}, vcc, 0, {v(R+e)}, {s(A0+2*e,2)}")
    p(f"s_add_u32 {s(sT1)}, {s(sT1)}, {s(sT0)}")
    p(f"s_add_u32 {s(sT1)}, {s(sT1)}, 15")
    p(f"s_and_b32 {s(sT1)}, {s(sT1)}, -16")
    p(f"s_add_u32 {s(sBASE)}, {s(sBASE)}, 16")
    p(f"s_max_u32 {s(sBASE)}, {s(sBASE)}, {s(sT1)}")
    for e in range(8):
        p(f"s_mov_b64 exec, {s(A0+2*e,2)}")
        p(f"ds_write_b8{'_d16_hi' if e&1 else ''} {v(R+e)}, {v(CV+(e>>1))}")
    p("s_mov_b64 exec, -1")
    pair_bits(j, sT2)


def q_total(i, j):
    p(f"v_mfma_i32_16x16x64_i8 {v(QT[i],4)}, {v(AT,4)}, {v(MSK+4*j,4)}, 0")


def q_test(j):
    out = []
    if opt.get("xt"):
        return out
    for x in range(4):
        t = (NT0, NT1)[x & 1]
        out += [f"v_and_b32 {v(t)}, 0x800080, {v(MSK+4*j+x)}", f"v_mul_u32_u24 {v(t)}, 0x7f, {v(t)}",
                f"v_bitop3_b32 {v(NBA)}, {v(MSK+4*j+x)}, {v(t)}, {v(NBA)} bitop3:0xbe"]
    return out


def q_scan(i, step):
    dpp = "row_mask:0xf bank_mask:0xf bound_ctrl:0"
    if step == 0:
        return f"v_mov_b32_dpp {v(QE[i])}, {v(QT[i])} row_shr:1 {dpp}"
    return f"v_add_u32_dpp {v(QE[i])}, {v(QE[i])}, {v(QE[i])} row_shr:{1 << (step-1)} {dpp}"


def q_lanes(i):
    p(f"v_readlane_b32 {s(A0+4*i)}, {v(QE[i])}, 6")
    p(f"v_readlane_b32 {s(A0+4*i+1)}, {v(QT[i]+1)}, 6")
    p(f"v_readlane_b32 {s(A0+4*i+2)}, {v(QE[i])}, 15")


def q_ranks(i, j):
    a = A0 + 4 * i
    p(f"s_add_u32 {s(sT0)}, {s(a)}, {s(a+1)}")
    p(f"s_add_u32 {s(sT0)}, {s(sT0)}, {s(sBASE)}")
    p(f"s_add_u32 {s(sT1)}, {s(sT0)}, 15")
    p(f"s_and_b32 {s(sT1)}, {s(sT1)}, -16")
    p(f"s_add_u32 {s(sT2)}, {s(sBASE)}, 16")
    p(f"s_max_u32 {s(sT1)}, {s(sT1)}, {s(sT2)}")
    p(f"s_sub_u32 {s(sT0)}, {s(sT1)}, {s(sT0)}")
    p(f"v_mad_u32_u24 {v(QE[i])}, {v(QH)}, {s(sT0)}, {v(QE[i])}")
    p(f"s_sub_u32 {s(sT2)}, {s(sBASE)}, 2048")
    for r in range(4):
        p(f"v_add_u32 {v(QT[i]+r)}, {s(sT2)}, {v(QE[i])}")
    p(f"s_add_u32 {s(sBASE)}, {s(sBASE)}, {s(a+2)}")
    p(f"s_add_u32 {s(sBASE)}, {s(sBASE)}, {s(sT0)}")
    p(f"v_mfma_i32_16x16x64_i8 {v(QR[i],4)}, {v(AP+2,4)}, {v(MSK+4*j,4)}, {v(QT[i],4)}")
    p(f"v_mfma_i32_16x16x64_i8 {v(QR[i]+4,4)}, {v(AP,4)}, {v(MSK+4*j,4)}, {v(QT[i],4)}")
    p(f"s_add_u32 {s(sBASE)}, {s(sBASE)}, 15")
    p(f"s_and_b32 {s(sBASE)}, {s(sBASE)}, -16")
    p(f"s_add_u32 {s(sT2)}, {s(sT1)}, 16")
    p(f"s_max_u32 {s(sBASE)}, {s(sBASE)}, {s(sT2)}")
    pair_bits(j, sT1)


def pair_bits(j, mid):
    if opt["swap"] and j >= 2:
        p(f"s_mov_b32 {s((sM2, sM3)[j-2])}, {s(mid)}")
        p(f"s_mov_b32 {s((sB3, sE3)[j-2])}, {s(sBASE)}")
        return
    fbit(mid, 2 * j)
    fbit(sBASE, 2 * j + 1)
    if opt["swap"] and j == 1:
        p(f"s_mov_b32 {s(sCUR)}, {s(sBASE)}")


def q_write(i):
    if opt.get("xw"):
        return
    if opt["vx"]:
        p(f"s_mov_b64 exec, {s(EX50,2)}")
    for e in range(8):
        p(f"ds_write_b8{'_d16_hi' if e&1 else ''} {v(QR[i]+e)}, {v(QV+(e>>1))}")
    if opt["vx"]:
        p("s_mov_b64 exec, -1")


W44 = 1
DIAGMM = "v_mfma_f32_4x4x4_16b_bf16" if W44 else "v_mfma_f32_16x16x16_bf16"


def wbuild():
    for x in range(4):
        p(f"v_mul_u32_u24 {v(DG+2*x)}, {v(TR+x)}, {v(SEL0)}")
        p(f"v_mul_u32_u24 {v(DG+2*x+1)}, {v(TR+x)}, {v(SEL1)}")
    T = [ZA + 8, TX]
    pairs = [(hb, ks) for hb in range(4) for ks in range(2)]

    def mm(j, u):
        hb, ks = pairs[j]
        blk = (hb * 2 + ks) * 2 + u
        p(f"{DIAGMM} {v(T[j%2]+4*u,4)}, {v(DG+2*(2*ks+u),2)}, {v(CD+2*blk,2)}, {v(CA+4*blk,4)}")

    def cv(j, r):
        hb, ks = pairs[j]
        p(f"v_cvt_pk_bf16_f32 {v(W+(hb*2+ks)*4+r)}, {v(T[j%2]+2*r)}, {v(T[j%2]+2*r+1)}")
    mm(0, 0)
    p(f"v_add_u32 {v(TADR)}, 128, {v(TADR)}")
    for hb in range(2):
        p(f"ds_read_b128 {v(BIAS+4*hb,4)}, {v(BADR)} offset:{64*hb}")
    mm(0, 1)
    for hb in range(2, 4):
        p(f"ds_read_b128 {v(BIAS+4*hb,4)}, {v(BADR)} offset:{64*hb}")
    t_reads()
    for j in range(8):
        if j < 7:
            mm(j + 1, 0)
        cv(j, 0); cv(j, 1)
        if j < 7:
            mm(j + 1, 1)
        else:
            p(f"v_add_u32 {v(BADR)}, {BSTR}, {v(BADR)}")
        cv(j, 2); cv(j, 3)
    p("s_waitcnt lgkmcnt(0)")


def t_reads():
    for x in range(4):
        p(f"ds_read_u16 {v(TR+x)}, {v(TADR)} offset:{(x>>1)*64+(x&1)*8}")


def g1(j):
    hb, ks = j >> 1, j & 1
    c = v(BIAS + 4 * hb, 4) if ks == 0 else v(ZB + 4 * hb, 4)
    return f"v_mfma_f32_16x16x32_bf16 {v(ZB+4*hb,4)}, {v(W+(hb*2+ks)*4,4)}, {v(XB+4*ks,4)}, {c}"


def read_xb(slot, ks):
    p(f"ds_read_b128 {v(XB+4*ks,4)}, {v((RDB0, RDB1)[ks])} offset:{slot*SLOT}")


SCHED = {
    "e": "ia ib k1 ent EV mid P0 e0 e1 e2 e3 e4 e5 A0 s0 s1 L2 G0 e6 q0 t0 e7 G2 e8 q1 t1 A1 r0 q2 t2 e9 G1 r1 q3 t3 e10 G3 "
         "r2 e11 r3 c0 A2 e12 G4 r4 c1 E2 e13 r5 e14 r6 c2 e15 G6 L0 m0 r7 da A3 G5 m1 r8 db G7 P1 r9 c3 vm y0 y1 r10 c4 k0 r11 B r12 c5 "
         "r13 r14 r15 c6 c7",
    "f": "ia ib k1 ent EV mid P0 e0 e1 e2 e3 e4 e5 A0 s0 s1 L2 G0 e6 q0 t0 e7 G2 e8 q1 t1 A1 r0 q2 t2 e9 G1 r1 q3 t3 e10 G3 "
         "r2 e11 r3 c0 A2 e12 G4 r4 c1 E2 m0 L0 da e13 r5 e14 r6 c2 e15 G6 P1 r7 A3 G5 m1 r8 G7 r9 c3 db vm y0 y1 r10 c4 k0 r11 B r12 c5 "
         "r13 r14 r15 c6 c7",
    "g": "ia ib k1 ent EV mid P0 e0 e1 e2 e3 e4 e5 A0 s0 s1 L2 G0 e6 q0 t0 e7 G2 e8 q1 t1 A1 r0 q2 t2 e9 G1 r1 q3 t3 e10 G3 "
         "r2 e11 r3 c0 A2 e12 G4 r4 c1 E2 e13 r5 e14 m0 L0 da r6 c2 e15 G6 P1 r7 A3 G5 m1 r8 G7 r9 c3 db vm y0 y1 r10 c4 k0 r11 B r12 c5 "
         "r13 r14 r15 c6 c7",
    "h": "ia ib k1 ent EV mid P0 e0 e1 e2 e3 e4 e5 A0 s0 s1 L2 G0 e6 q0 t0 e7 G2 e8 q1 t1 A1 r0 q2 t2 e9 G1 r1 q3 t3 e10 G3 "
         "r2 e11 r3 c0 A2 e12 G4 r4 c1 E2 m0 L0 da m1 e13 db r5 e14 r6 c2 e15 G6 P1 r7 A3 G5 r8 G7 r9 c3 vm y0 y1 r10 c4 k0 r11 B r12 c5 "
         "r13 r14 r15 c6 c7",
    "l": "ia ib k1 ent EV mid P0 e0 e1 e2 e3 e4 e5 A0 s0 s1 L2 G0 e6 q0 t0 e7 e8 q1 t1 G2 A1 q2 t2 r0 e9 q3 t3 G1 r1 e10 G3 "
         "r2 e11 m0 L0 da m1 r3 db c0 A2 e12 G4 r4 c1 E2 e13 r5 e14 r6 c2 e15 G6 P1 r7 A3 G5 r8 G7 r9 c3 r10 c4 k0 r11 B r12 c5 "
         "r13 r14 r15 vm y0 y1 c6 c7",
    "m": "ia ib k1 ent EV mid P0 e0 e1 e2 e3 e4 e5 A0 s0 s1 e6 e7 q0 t0 e8 A1 q1 t1 e9 e10 q2 t2 e11 r0 q3 t3 vm x0 x1 A2 e12 r1 e13 r2 "
         "e14 r3 c0 e15 E2 m0 L2 da m1 c1 db A3 L0 G0 r4 G2 r5 P1 G1 r6 c2 G3 r7 r8 G4 c3 r9 G6 r10 c4 G5 r11 k0 r12 G7 c5 B r13 r14 r15 c6 c7",
    "n": "ia ib k1 ent EV mid P0 e0 e1 e2 e3 e4 e5 A0 s0 s1 vm x0 x1 e6 e7 q0 t0 e8 A1 q1 t1 e9 e10 q2 t2 e11 r0 q3 t3 A2 L4 G0 e12 r1 G2 e13 r2 "
         "e14 G1 r3 c0 e15 E2 m0 L0 da m1 c1 db A3 G3 r4 r5 P1 G4 r6 c2 r7 G6 r8 c3 r9 G5 r10 c4 r11 k0 r12 G7 c5 B r13 r14 r15 c6 c7",
    "r": "ent EV k1 mid e0 e1 e2 e3 e4 e5 A0 e6 e7 s0 s1 e8 e9 q0 A1 e10 q1 e11 e12 q2 e13 A2 q3 P0 ia ib t0 t1 t2 t3 vm x0 x1 m0 e14 e15 "
         "r0 r1 A3 r2 E2 c0 L2 da m1 db L0 G0 r3 G2 r4 c1 G1 r5 P1 G3 r6 c2 G4 r7 G6 r8 c3 G5 r9 G7 r10 c4 k0 r11 r12 c5 B r13 r14 r15 c6 c7",
    "s": "ia ib k1 ent EV mid P0 e0 e1 e2 e3 e4 e5 A0 s0 s1 L2 G0 e6 q0 t0 e7 G2 e8 q1 t1 A1 r0 q2 t2 e9 G1 r1 q3 t3 e10 G3 "
         "r2 e11 r3 c0 A2 e12 G4 r4 c1 E2 e13 r5 e14 r6 c2 e15 G6 r7 A3 G5 r8 G7 m0 L0 da P1 m1 r9 db c3 vm y0 y1 r10 c4 k0 r11 B r12 c5 "
         "r13 r14 r15 c6 c7",
}


if opt.get("toks"):
    SCHED["cli"] = opt["toks"].replace(".", " ")
    opt["sched"] = "cli"


def event_mask():
    p(f"s_lshr_b64 {s(P0,2)}, {s(F,2)}, 2")
    p(f"s_lshr_b64 {s(H,2)}, {s(F,2)}, {D+1}")
    p(f"s_or_b32 {s(H)}, {s(H)}, {s(P0)}")
    p(f"s_or_b32 {s(H)}, {s(H)}, {s(F)}")


PSTEP = {0: 1, 1: 4, 2: 2, 3: 8}[opt["prio"]]
assert U % PSTEP == 0


def mainloop(tag, slow, sched=None):
    toks = SCHED[sched or opt["sched"]].split()

    def scale(off):
        p(f"ds_read_b32 {v(TX)}, {v(RDM)} offset:{off}")
        p("s_waitcnt lgkmcnt(0)")
        for r in range(4):
            p(f"v_bfe_u32 {v(TX+1+r)}, {v(TX)}, {8*r}, 8")
            p(f"v_lshlrev_b32 {v(TX+1+r)}, 1, {v(TX+1+r)}")
        for r in range(4):
            p(f"buffer_load_ushort {v(TX+1+r)}, {v(TX+1+r)}, {s(SM,4)}, 0 offen")
        p("s_waitcnt vmcnt(0)")
        for r in range(4):
            p(f"v_lshlrev_b32 {v(TX+1+r)}, 16, {v(TX+1+r)}")
            p(f"v_mul_f32 {v(S+r)}, {v(S+r)}, {v(TX+1+r)}")

    def flush(last=False):
        p(f"v_cvt_pk_bf16_f32 {v(TX)}, {v(ACC)}, {v(ACC)}")
        if not last:
            p(f"v_mov_b32 {v(ACC)}, 0")
        if STAMP == 1:
            p("s_memrealtime s[96:97]")
            p("s_memtime s[98:99]")
            p(f"s_lshl_b32 {s(sT0)}, {s(sK)}, 1")
            p(f"s_sub_u32 {s(sT0)}, {16+2*(KB-1)}, {s(sT0)}")
            p("s_waitcnt lgkmcnt(0)")
            p(f"s_mov_b32 m0, {s(sT0)}")
            p("v_writelane_b32 v254, s96, m0")
            p(f"s_add_u32 m0, m0, 1")
            p("v_writelane_b32 v254, s98, m0")
            p(f"s_sub_u32 {s(sK)}, {s(sK)}, 1")
        if str(opt.get("probe", "")).startswith("fl"):
            nfl[0] += 1
            p("s_add_u32 s3, s3, 1")
            p(f"s_cmp_lg_u32 s3, {int(opt['probe'][2:])}")
            p(f"s_cbranch_scc1 L_nfl{nfl[0]}")
            p("s_memrealtime s[98:99]")
            p("s_waitcnt lgkmcnt(0)")
            p(f"L_nfl{nfl[0]}:")
        p(f"ds_write_b16 {v(OADR)}, {v(TX)}")
        if last:
            return
        p(f"v_add_u32 {v(OADR)}, 128, {v(OADR)}")
        if slow:
            p(f"s_add_u32 {s(SM)}, {s(SM)}, {s(sMDL)}")
            p(f"s_addc_u32 {s(SM+1)}, {s(SM+1)}, 0")
            p(f"s_xor_b32 {s(sMDL)}, {s(sMDL)}, {MDL0 ^ MDL1:#x}")

    def emit(u, toks, tail):
        ev = opt["prio"] and u % PSTEP == 0
        for t in toks:
            k, n = t[0], (int(t[1:]) if t[1:].isdigit() else None)
            if opt.get("nodma") and t in ("da", "db"):
                continue
            if opt.get("lite") and k == "r" and n >= 16 - opt["lite"]:
                continue
            if opt.get("nocomp") and k in "ercsAGqk" and n is not None:
                continue
            if t == "vm":
                p(f"s_waitcnt vmcnt({2*(D-2)})")
            elif k == "y":
                read_xb((u + 2) % D, n)
            elif k == "x":
                read_xb((u + 1) % D, n)
            elif t == "ent":
                if u == 0:
                    p(f"L{tag}_mid:")
            elif t in ("mid", "mi2"):
                if slow:
                    scale(u * 16 + (16 if t == "mi2" else 0))
            elif t == "ia" and opt.get("xv") and not tail:
                for j in range(opt["xv"]):
                    p(f"v_exp_f32 v255, {v(ZB+j)}")
                p(f"ds_read_u8 {v(VA)}, {v(RDL)} offset:{(u+D)*16}")
            elif t == "ia":
                p(f"ds_read_u8 {v(VA)}, {v(RDL)} offset:{(u+D)*16}")
            elif t == "ib":
                p(f"ds_read_u8 {v(VB)}, {v(RDL)} offset:{(u+D)*16+8}")
            elif t == "EV":
                p(f"s_bitcmp1_b32 {s(H)}, {u}")
                p(f"s_cbranch_scc1 L{tag}_ev{u}")
                p(f"L{tag}_evd{u}:")
            elif t == "E2":
                if tail:
                    p(f"s_bitcmp0_b64 {s(F,2)}, 1")
                    p(f"s_cbranch_scc1 L{tag}_tnf")
                    flush()
                    p(f"L{tag}_tnf:")
            elif t == "P0":
                if ev:
                    p(f"ds_add_rtn_u32 {v(PRV)}, {v(PADR)}, {v(PINC)}")
            elif t == "P1":
                if ev:
                    if opt["pv"]:
                        p(f"v_cmp_gt_i32 vcc, {v(PRV)}, {v(PTH)}")
                        p("s_setprio 0")
                        p(f"s_cbranch_vccz L{tag}_lo{u}")
                    else:
                        p(f"v_readfirstlane_b32 {s(sT0)}, {v(PRV)}")
                        p("s_setprio 0")
                        p(f"s_cmp_gt_i32 {s(sT0)}, 0")
                        p(f"s_cbranch_scc0 L{tag}_lo{u}")
                    p("s_setprio 1")
                    p(f"L{tag}_lo{u}:")
            elif t == "da":
                p(dma_half(0))
            elif t == "db":
                p(dma_half(1))
            elif t == "B":
                if u == U - 1:
                    p(f"s_lshr_b64 {s(F,2)}, {s(F,2)}, {U}")
                    if not opt["swap"]:
                        p(f"s_lshl_b64 {s(P0,2)}, {s(F+2,2)}, {64-U}")
                        p(f"s_or_b64 {s(F,2)}, {s(F,2)}, {s(P0,2)}")
                        p(f"s_lshr_b64 {s(F+2,2)}, {s(F+2,2)}, {U}")
                    event_mask()
                    p(f"v_add_u32 {v(RDL)}, {16*U}, {v(RDL)}")
                    if slow:
                        p(f"v_add_u32 {v(RDM)}, {16*U}, {v(RDM)}")
            elif k == "m":
                if not (opt["m1"] and n):
                    p(m0_half(u % D, n))
            elif k == "e":
                p(f"v_exp_f32 {v(ZA+n)}, {v(ZB+n)}")
            elif k == "r":
                p(f"v_rcp_f32 {v(ZA+n)}, {v(ZA+n)}")
            elif k == "c":
                p(f"v_cvt_pk_bf16_f32 {v(ZA+n)}, {v(ZA+2*n)}, {v(ZA+2*n+1)}")
            elif k == "s":
                p(f"v_cvt_pk_bf16_f32 {v(S+n)}, {v(S+2*n)}, {v(S+2*n+1)}")
            elif k == "A":
                p(f"v_mfma_f32_4x4x4_16b_bf16 {v(ZA+4*n,4)}, {v(ONE,2)}, {v(ONE,2)}, {v(ZA+4*n,4)}")
            elif k == "G":
                p(g1(n))
            elif k == "q":
                p(f"v_mfma_f32_4x4x4_16b_bf16 {v(ACC,4)}, {v(S,2)}, {v(XT+2*n,2)}, {v(ACC,4)} cbsz:4 abid:{4*n}")
            elif k == "t":
                p(f"ds_read_b64_tr_b16 {v(XT+2*n,2)}, {v(RDT)} offset:{u%D*SLOT+n*512+(n>>1)*32}")
            elif k == "k":
                p(f"v_mfma_f32_16x16x32_bf16 {v(S,4)}, {v(ZA+4*n,4)}, {v(W2+4*n,4)}, {v(B2,4) if n == 0 else v(S,4)}")
            elif k == "L":
                p(f"s_waitcnt lgkmcnt({n})")
            else:
                raise ValueError(t)

    if tag == "f" and opt.get("al") is not None:
        p(".p2align 6")
        for _ in range(opt["al"]):
            p("s_nop 0")
    p(f"L{tag}_loop:")
    for u in range(U):
        emit(u, toks, False)
    p(f"s_branch L{tag}_loop")
    for u in range(U):
        p(f"L{tag}_ev{u}:")
        jit()
        p(f"s_bitcmp0_b64 {s(F,2)}, {u}")
        p(f"s_cbranch_scc1 L{tag}_nf{u}")
        flush()
        p(f"L{tag}_nf{u}:")
        p(f"s_bitcmp0_b64 {s(F,2)}, {u+D+1}")
        p(f"s_cbranch_scc1 L{tag}_na{u}")
        if opt["swap"]:
            p(f"s_sub_u32 {s(sKA)}, {s(sKA)}, 1")
            p(f"s_cbranch_scc0 L{tag}_ns{u}")
            p(f"s_mov_b32 {s(sU)}, {u+D+1}")
            p(f"s_call_b64 {s(RET,2)}, L_swap")
            if toks.index("ia") < toks.index("EV"):
                p(f"ds_read_u8 {v(VA)}, {v(RDL)} offset:{(u+D)*16}")
                p(f"ds_read_u8 {v(VB)}, {v(RDL)} offset:{(u+D)*16+8}")
            adv_hist()
            p(f"s_bitcmp0_b64 {s(F,2)}, {u+2}")
            p(f"s_cbranch_scc1 L{tag}_evd{u}")
            p("s_waitcnt lgkmcnt(0)")
            p(f"s_branch L{tag}_e1{u}")
            p(f"L{tag}_ns{u}:")
        adv_hist()
        p(f"L{tag}_na{u}:")
        p(f"s_bitcmp0_b64 {s(F,2)}, {u+2}")
        p(f"s_cbranch_scc1 L{tag}_evd{u}")
        p(f"L{tag}_e1{u}:")
        p(f"s_sub_u32 {s(sKW)}, {s(sKW)}, 1")
        p(f"s_cbranch_scc1 L{tag}_last{u}")
        if opt["swap"]:
            p(f"s_bitcmp0_b32 {s(sPM)}, {s(sKW)}")
            p(f"s_cbranch_scc1 L{tag}_nw{u}")
            p(f"s_cmp_eq_u32 {s(sKW)}, 3")
            p(f"s_cselect_b32 {s(sT0)}, {s(sPD)}, {s(sPD+1)}")
            p(f"v_add_u32 {v(TADR)}, {s(sT0)}, {v(TADR)}")
            p(f"v_add_u32 {v(BADR)}, {s(sT0)}, {v(BADR)}")
            t_reads()
            p("s_waitcnt lgkmcnt(0)")
            p(f"L{tag}_nw{u}:")
        wbuild()
        p(f"s_branch L{tag}_evd{u}")
    for u in range(U):
        p(f"L{tag}_last{u}:")
        if u:
            if u % D:
                p(f"v_add_u32 {v(RDT)}, {u%D*SLOT}, {v(RDT)}")
            p(f"s_lshr_b64 {s(F,2)}, {s(F,2)}, {u}")
            if slow:
                p(f"v_add_u32 {v(RDM)}, {16*u}, {v(RDM)}")
        if u < U - 1:
            p(f"s_branch L{tag}_tail")
    p(f"L{tag}_tail:")
    i1 = toks.index("EV")
    drop = lambda t: t in ("vm", "ia", "ib", "EV", "ent", "P0", "P1", "da", "db", "B", "L2", "L4") or (t[0] in "Gxym" and t[1:].isdigit())
    last = ["k1"] if toks.index("k1") > i1 else []
    emit(0, [t for t in toks[i1:] + toks[:i1] if not drop(t)] + last + ["mi2", "s0", "s1", "q0", "q1", "q2", "q3"], True)
    flush(last=True)
    if tag != "f":
        p("s_branch L_store")


p(f"{NAME}:")
if opt.get("twice"):
    p("s_mov_b32 s3, 0")
    p("L_again:")
if opt.get("spin") or opt.get("endp"):
    p("s_memrealtime s[100:101]")
    p("s_mov_b32 s3, 0")
cst("entry")
if STAMP:
    if STAMP != 4:
        p("s_memrealtime s[98:99]")
        p("s_memtime s[96:97]")
    p("s_load_dwordx2 s[100:101], s[0:1], 72")
p("s_load_dwordx16 s[4:19], s[0:1], 0")
p(f"s_cmp_ge_u32 s2, {NWG}")
p("s_cbranch_scc1 L_end")
p("v_lshrrev_b32 v1, 6, v0")
p("v_and_b32 v0, 63, v0")
p(f"v_readfirstlane_b32 {s(sw)}, v1")
if opt["map"] & 2:
    p("s_and_b32 s3, s2, 7")
    p("s_lshl_b32 s3, s3, 5")
    p(f"s_lshr_b32 {s(sW)}, s2, 3")
    p(f"s_add_u32 {s(sW)}, {s(sW)}, s3")
    p(f"s_lshl_b32 {s(sW)}, {s(sW)}, {(WGSTR//2).bit_length()-1}")
else:
    p(f"s_lshl_b32 {s(sW)}, s2, {(WGSTR//2).bit_length()-1}")
p("v_lshlrev_b32 v2, 4, v0")
p("v_lshrrev_b32 v1, 4, v0")
p("v_and_b32 v3, 0xf0, v2")
p("v_lshlrev_b32 v3, 2, v3")
p(f"v_lshl_add_u32 {v(QH)}, v1, 4, v3")
p("v_bfrev_b32 v3, 1")
p(f"s_add_u32 {s(sW)}, {s(sW)}, {s(sw)}")
p(f"s_movk_i32 {s(sT0)}, 800")
p(f"v_cmp_gt_u32 vcc, {s(sT0)}, {v(QH)}")
p(f"s_mul_i32 {s(sOFF)}, {s(sW)}, 800")
p(f"s_mul_i32 {s(sLB)}, {s(sw)}, {REG}")
p(f"s_mov_b64 {s(EX50,2)}, vcc")
p(f"v_cndmask_b32 v3, v3, {v(QH)}, vcc")
p(f"v_and_b32 {v(TX+2)}, 16, v0")
p(f"v_lshlrev_b32 {v(TX)}, 1, {v(TX+2)}")
p(f"v_xor_b32 {v(TX)}, {v(TX)}, v2")
p(f"v_and_b32 {v(VOUT)}, 0xf0, v2")
p(f"v_lshl_add_u32 {v(VOUT)}, v1, {LGP+7}, {v(VOUT)}")
p(f"s_lshl_b32 {s(sT0)}, {s(sW)}, 8")
p(f"v_add_u32 {v(VOUT)}, {s(sT0)}, {v(VOUT)}")
p(f"s_lshl_b32 {s(sT1)}, {s(sw)}, 12")
p(f"s_add_u32 m0, {s(sLB)}, {TB}")
p(f"s_mov_b32 {s(SM+2)}, {16384*400}")
p(f"s_mov_b32 {s(SM+3)}, 0x20000")
p("s_waitcnt lgkmcnt(0)")
cst("kernarg")
if STAMP and STAMP != 4:
    p("v_mov_b32 v254, 0")
    p("v_writelane_b32 v254, s98, 0")
    p("v_writelane_b32 v254, s96, 32")
    nstamp[0] = 1
    stamp()
p(f"s_mov_b32 {s(SM)}, s8")
p(f"s_and_b32 {s(SM+1)}, s9, 0xffff")
if opt["ym"]:
    p(f"s_cmp_ge_u32 {s(sw)}, 4")
    p("s_cbranch_scc1 L_young0")
p(f"buffer_load_dwordx4 {v(MSK,4)}, v3, {s(SM,4)}, {s(sOFF)} offen {NTM}")
p("L_young0:")
if opt.get("xs"):
    for j in range(opt["xs"]):
        p("s_nop 15")
p(f"global_load_lds_dwordx4 {v(VOUT)}, s[4:5] {NTM}")
p(f"s_add_u32 m0, {s(sLB)}, {STG}")
p(f"s_add_u32 s10, s10, {s(sT1)}")
p("s_addc_u32 s11, s11, 0")
p(f"v_xor_b32 {v(TX+1)}, 64, {v(TX)}")
if opt.get("nsw"):
    p(f"v_mov_b32 {v(TX)}, v2")
    p(f"v_mov_b32 {v(TX+1)}, v2")
for j in range(4):
    p(f"global_load_lds_dwordx4 {v(TX+(j&1))}, s[10:11] offset:{j*1024}")
p(f"s_load_dword {s(sB2)}, s[16:17], 0")
p(f"s_and_b32 {s(sT1)}, {s(sw)}, 3")
B1R, W2R = CD + 28, DG


def load_b1():
    p(f"s_and_b32 {s(sT0)}, {s(sw)}, 3")
    p(f"s_lshl_b32 {s(sT0)}, {s(sT0)}, 5")
    p(f"v_lshl_add_u32 {v(TX+3)}, v1, 3, {s(sT0)}")
    p(f"global_load_dwordx2 {v(B1R,2)}, {v(TX+3)}, s[12:13]")


if not opt["ym"]:
    load_b1()
p(f"v_and_b32 {v(TX+4)}, 3, v0")
NVM = 11
if opt.get("arr"):
    cst("arr_issued")
    for n_out in (5, 4, 3, 2, 1, 0):
        p(f"s_waitcnt vmcnt({n_out})")
        cst(f"arr{n_out}")
stamp()
srd(SH, 6, 200, stride=128)
if opt["m1"]:
    p(f"s_sub_u32 {s(SH2)}, {s(SH)}, 1056")
    p(f"s_subb_u32 {s(SH2+1)}, {s(SH+1)}, 0")
    p(f"s_mov_b32 {s(SH2+2)}, 200")
    p(f"s_mov_b32 {s(SH2+3)}, 0x20000")


def list_reset():
    p(f"s_mul_i32 {s(sRO)}, {s(sW)}, 51200")
    p(f"s_movk_i32 {s(sDL)}, {DLT0}")
    if opt["swap"]:
        p(f"s_mov_b32 {s(sKA)}, {KB-5}")
    p(f"s_mov_b64 {s(F,2)}, 0")
    if not opt["swap"]:
        p(f"s_mov_b64 {s(F+2,2)}, 0")
    for j in range(4):
        p(f"v_mov_b32 {v(ZB+j)}, -1")
    p(f"s_add_u32 {s(sT0)}, {s(sLB)}, {LI}")
    p(f"v_add_u32 {v(ZB+4)}, {s(sT0)}, v2")
    p(f"ds_write_b128 {v(ZB+4)}, {v(ZB,4)}")
    p(f"ds_write_b128 {v(ZB+4)}, {v(ZB,4)} offset:1024")
    p(f"s_add_u32 {s(sBASE)}, {s(sLB)}, {L0}")


list_reset()
for j in range(5, 2 * D):
    p(f"v_mov_b32 {v(ZB+j)}, -1")
p(f"v_lshrrev_b32 {v(RDL)}, 3, v0")
p(f"v_add_u32 {v(RDL)}, {s(sBASE)}, {v(RDL)}")
p(f"v_lshl_add_u32 {v(RDM)}, v1, 2, {s(sT0)}")
p(f"v_and_b32 {v(VA+1)}, 0x70, v2")
p(f"v_lshlrev_b32 {v(TX+2)}, 2, {v(TX+2)}")
p(f"v_xor_b32 {v(VA+1)}, {v(VA+1)}, {v(TX+2)}")
p(f"v_mov_b32 {v(VB+1)}, {v(VA+1)}")
lane_mask = lambda f: sum(1 << i for i in range(64) if f(i & 15, i >> 4))


def smask(dst, m):
    p(f"s_mov_b32 {s(dst)}, {m & 0xffffffff:#x}")
    p(f"s_mov_b32 {s(dst+1)}, {m >> 32:#x}")


p(f"s_movk_i32 {s(sT0)}, 400")
p(f"v_cmp_le_u32 vcc, {s(sT0)}, {v(QH)}")
p(f"v_lshrrev_b32 {v(QV)}, 1, {v(QH)}")
p(f"s_movk_i32 {s(sT0)}, -200")
p(f"v_cndmask_b32 {v(QH)}, 0, 1, vcc")
p(f"v_mad_i32_i24 {v(QV)}, {v(QH)}, {s(sT0)}, {v(QV)}")
p(f"v_mul_u32_u24 {v(QV+1)}, 0x10001, {v(QV)}")
p(f"v_add_u32 {v(QV)}, 0x10000, {v(QV+1)}")
p(f"v_add_u32 {v(QV+2)}, 0x50004, {v(QV+1)}")
p(f"v_add_u32 {v(QV+3)}, 0x70006, {v(QV+1)}")
p(f"v_add_u32 {v(QV+1)}, 0x30002, {v(QV+1)}")
p(f"v_mov_b32 {v(NBA)}, {CNT:#x}")
smask(P0, lane_mask(lambda m, g: (m >> 2) >= g))
smask(P1, lane_mask(lambda m, g: (m >> 2) > g))
smask(P2, lane_mask(lambda m, g: (m >> 2) == g))
smask(NB, lane_mask(lambda m, g: (m & 3) == 0 or (m, g) == (1, 0)))
for x in range(2):
    p(f"v_cndmask_b32 {v(AP+x)}, 0, {v(NBA)}, {s(P0,2)}")
    p(f"v_cndmask_b32 {v(AP+4+x)}, 0, {v(NBA)}, {s(P1,2)}")
for x in range(4):
    p(f"v_cndmask_b32 {v(AT+x)}, 0, {v(NBA)}, {s(NB,2)}")
p(f"v_lshlrev_b32 {v(TX)}, 4, {v(TX+4)}")
p(f"v_sub_u32 {v(TX)}, 48, {v(TX)}")
smask(P0, 0x00F0BFE0BFE0BFE0)
p(f"v_lshrrev_b64 {v(AP+2,2)}, {v(TX)}, {s(P0,2)}")
p(f"v_mov_b32 {v(NBA)}, 0")
p(f"s_mov_b64 {s(NB,2)}, 0")
for x in range(2):
    p(f"v_cndmask_b32 {v(AP+2+x)}, {v(AP+4+x)}, {v(AP+2+x)}, {s(P2,2)}")
if STAMP:
    p(f"s_mov_b32 {s(sK)}, {KB-1}")
p(f"s_mov_b32 {s(sKW)}, {KB-1}")
p(f"s_mov_b32 {s(sC)}, {CNEG:#x}")
n_, r_, c_ = TX + 5, TX + 6, TX + 4
p(f"v_and_b32 {v(n_)}, 15, v0")
p(f"v_bfe_u32 {v(r_)}, v0, 2, 2")
X0 = TX + 7
SA, SC_, SB_, TBA, BWA = CA + 60, CA + 61, CA + 62, CA + 63, CD + 30
IDN, N0M = DG + 2, DG + 4
p(f"v_lshlrev_b32 {v(X0)}, 3, {v(c_)}")
p(f"v_lshl_add_u32 {v(X0)}, {v(r_)}, 7, {v(X0)}")
p(f"v_and_b32 {v(TX)}, 24, v0")
p(f"v_lshlrev_b32 {v(TX)}, 2, {v(TX)}")
p(f"v_xor_b32 {v(TX)}, {v(X0)}, {v(TX)}")
p(f"v_lshl_add_u32 {v(TX)}, v1, 10, {v(TX)}")
p(f"s_lshl_b32 {s(sT0)}, {s(sT1)}, 5")
p(f"v_xor_b32 {v(SB_)}, {s(sT0)}, {v(TX)}")
p(f"v_add_u32 {v(SB_)}, {STG+2*REG}, {v(SB_)}")
p(f"s_lshr_b32 {s(sT0)}, {s(sw)}, 1")
p(f"s_lshl_b32 {s(sT0)}, {s(sT0)}, 5")
p(f"v_xor_b32 {v(SA)}, {s(sT0)}, {v(TX)}")
p(f"s_and_b32 {s(sT0)}, {s(sw)}, 1")
p(f"s_mul_i32 {s(sT0)}, {s(sT0)}, {REG}")
p(f"s_add_u32 {s(sT0)}, {s(sT0)}, {STG}")
p(f"v_add_u32 {v(SA)}, {s(sT0)}, {v(SA)}")
p(f"v_add_u32 {v(SC_)}, {4*REG}, {v(SA)}")
p(f"s_and_b32 {s(sT0)}, {s(sw)}, 4")
p(f"v_lshrrev_b32 {v(TX)}, 3, {v(n_)}")
p(f"v_add_u32 {v(TX)}, {s(sT0)}, {v(TX)}")
p(f"v_mul_u32_u24 {v(TX)}, {REG}, {v(TX)}")
p(f"v_lshl_add_u32 {v(TX)}, v1, 4, {v(TX)}")
p(f"v_and_b32 {v(TX+1)}, 7, v0")
p(f"v_lshl_add_u32 {v(TBA)}, {v(TX+1)}, 7, {v(TX)}")


def gRDB():
    p(f"v_and_b32 {v(TX+1)}, 8, v0")
    p(f"v_lshlrev_b32 {v(TX+1)}, 2, {v(TX+1)}")
    p(f"v_lshl_add_u32 {v(TX+1)}, {v(n_)}, 7, {v(TX+1)}")
    p(f"v_add_u32 {v(TX+1)}, {s(sLB)}, {v(TX+1)}")
    p(f"v_and_b32 {v(TX+2)}, 2, v0")
    p(f"v_lshlrev_b32 {v(TX+2)}, 1, {v(TX+2)}")
    p(f"v_xor_b32 {v(TX+2)}, {v(TX+2)}, v1")
    p(f"v_lshl_add_u32 {v(RDB0)}, {v(TX+2)}, 4, {v(TX+1)}")
    p(f"v_xor_b32 {v(TX+2)}, 4, {v(TX+2)}")
    p(f"v_lshl_add_u32 {v(RDB1)}, {v(TX+2)}, 4, {v(TX+1)}")


def gRDT():
    p(f"v_and_b32 {v(TX+1)}, 8, v0")
    p(f"v_lshlrev_b32 {v(TX+1)}, 3, {v(TX+1)}")
    p(f"v_lshl_add_u32 {v(TX+2)}, v1, 5, {v(X0)}")
    p(f"v_xor_b32 {v(TX+2)}, {v(TX+2)}, {v(TX+1)}")
    p(f"v_add_u32 {v(RDT)}, {s(sLB)}, {v(TX+2)}")


def gTAD():
    p(f"s_add_u32 {s(sT0)}, {s(sLB)}, {TB}")
    p(f"v_lshl_add_u32 {v(TADR)}, {v(c_)}, 1, {s(sT0)}")
    p(f"v_lshl_add_u32 {v(TADR)}, {'v1' if W44 else v(r_)}, 4, {v(TADR)}")
    p(f"s_add_u32 {s(sT0)}, {s(sLB)}, {OUTS}")
    p(f"v_lshl_add_u32 {v(OADR)}, v0, 1, {s(sT0)}")
    p(f"s_add_u32 {s(sT0)}, {s(sLB)}, {BI}")
    p(f"v_lshl_add_u32 {v(BADR)}, v1, 4, {s(sT0)}")


def gBWA():
    p(f"s_and_b32 {s(sT0)}, {s(sw)}, 3")
    p(f"s_lshl_b32 {s(sT0)}, {s(sT0)}, 6")
    p(f"s_add_u32 {s(sT0)}, {s(sT0)}, {BI}")
    p(f"v_and_b32 {v(TX+1)}, 7, v0")
    p(f"v_mul_u32_u24 {v(TX+1)}, {BSTR-128}, {v(TX+1)}")
    p(f"v_add3_u32 {v(BWA)}, {v(TBA)}, {v(TX+1)}, {s(sT0)}")


def gSEL():
    if not W44:
        p(f"v_cmp_eq_u32 vcc, {v(r_)}, v1")
    p(f"v_and_b32 {v(TX+1)}, 1, v0")
    p(f"v_lshlrev_b32 {v(TX+1)}, 4, {v(TX+1)}")
    p(f"v_lshlrev_b32 {v(TX+1)}, {v(TX+1)}, 1")
    if not W44:
        p(f"v_cndmask_b32 {v(TX+1)}, 0, {v(TX+1)}, vcc")
    p(f"v_cmp_gt_u32 vcc, 2, {v(c_)}")
    p(f"v_mov_b32 {v(ONE+1)}, 0")
    p(f"v_mov_b32 {v(ONE)}, 0x3f80")
    p(f"v_cndmask_b32 {v(SEL0)}, 0, {v(TX+1)}, vcc")
    p(f"v_cmp_eq_u32 vcc, 0, {v(n_)}")
    p(f"v_sub_u32 {v(SEL1)}, {v(TX+1)}, {v(SEL0)}")
    p(f"v_mul_u32_u24 {v(IDN)}, 0x3f80, {v(SEL0)}")
    p(f"v_cndmask_b32 {v(N0M)}, 0, -1, vcc")
    p(f"v_mul_u32_u24 {v(IDN+1)}, 0x3f80, {v(SEL1)}")


def gZER():
    for j in range(8):
        p(f"v_mov_b32 {v(XT+j)}, 0")
    for j in range(4):
        p(f"v_mov_b32 {v(S+j)}, 0")
        p(f"v_mov_b32 {v(ACC+j)}, 0")


def gB2():
    p(f"s_lshl_b32 {s(sB2)}, {s(sB2)}, 16")
    for r in range(4):
        p(f"v_and_b32 {v(B2+r)}, {s(sB2)}, {v(N0M)}")


def gPRI():
    if opt["prio"]:
        p(f"s_add_u32 {s(sT0)}, {s(sLB)}, {PRG}")
        p(f"v_lshl_add_u32 {v(DG+5)}, v0, 2, {s(sT0)}")
        p(f"ds_write_b32 {v(DG+5)}, {v(ONE+1)}")
        p(f"s_xor_b32 {s(sT0)}, {s(sw)}, 4")
        p(f"s_mul_i32 {s(sT0)}, {s(sT0)}, {REG}")
        p(f"s_add_u32 {s(sT0)}, {s(sT0)}, {PRG}")
        p(f"v_writelane_b32 {v(DG+5)}, {s(sT0)}, 1")
    if opt["swap"]:
        p(f"v_add_u32 {v(DG+6)}, {s(sLB)}, v2")
        p("s_mov_b64 exec, 15")
        p(f"ds_write_b32 {v(DG+6)}, {v(ONE+1)} offset:{KEY}")
        p("s_mov_b64 exec, -1")


PLACE = dict(zip((gSEL, gBWA, gPRI, gB2, gRDB, gRDT, gTAD, gZER), (int(x) for x in str(opt["place"])[1:])))


def groups(k):
    for f, w_ in PLACE.items():
        if w_ == k:
            f()


groups(0)
if opt["ym"]:
    load_b1()
    p(f"s_cmp_ge_u32 {s(sw)}, 4")
    p("s_cbranch_scc0 L_old3z")
    p(f"buffer_load_dwordx4 {v(MSK,4)}, v3, {s(SM,4)}, {s(sOFF)} offen {NTM}")
    p("L_old3z:")


def late_loads():
    if opt["tlb"]:
        p(f"s_add_u32 {s(sT0)}, {s(sw)}, 1")
        p(f"s_and_b32 {s(sT0)}, {s(sT0)}, 6")
        p("s_cbranch_scc1 L_notouch")
        p(f"s_mov_b32 {s(sT0)}, {PSTR*25600}")
        p(f"v_mul_lo_u32 v255, v0, {s(sT0)}")
        p(f"s_mul_i32 {s(sT0)}, {s(sW)}, 51200")
        p(f"s_and_b32 {s(sT1)}, {s(sw)}, 1")
        p(f"s_mul_i32 {s(sT1)}, {s(sT1)}, {51200-128}")
        p(f"s_add_u32 {s(sT0)}, {s(sT0)}, {s(sT1)}")
        p(f"v_add_u32 v255, {s(sT0)}, v255")
        p("s_mov_b64 exec, 14")
        p(f"global_load_dword v255, v255, s[6:7] {NT}")
        p("s_mov_b64 exec, -1")
        p("L_notouch:")
    for j in range(1, 4):
        p(f"s_add_u32 {s(sOFF)}, {s(sOFF)}, {PSTR*400}")
        p(f"buffer_load_dwordx4 {v(MSK+4*j,4)}, v3, {s(SM,4)}, {s(sOFF)} offen {NTM}")
    p(f"v_lshlrev_b32 {v(TX+3)}, 3, v1")
    p(f"v_lshl_add_u32 {v(TX+3)}, {v(TX+4)}, 5, {v(TX+3)}")
    p(f"global_load_dwordx2 {v(W2R,2)}, {v(TX+3)}, s[14:15]")


G2 = opt["g2"]
if not G2:
    late_loads()
LL = 0 if G2 else 4
NE = D - 2
IDX = ZB


def idx_reads():
    for t in range(D):
        p(f"ds_read_u8 {v(IDX+2*t)}, {v(RDL)} offset:{t*16}")
        p(f"ds_read_u8 {v(IDX+2*t+1)}, {v(RDL)} offset:{t*16+8}")


def tiles(t0, t1, bits, tag):
    for t in range(t0, t1):
        if t > 0:
            p(f"s_bitcmp0_b64 {s(bits,2)}, {t+1}")
            p(f"s_cbranch_scc1 L_noadv{tag}{t}")
            adv_hist()
            if opt["swap"]:
                p(f"s_sub_u32 {s(sKA)}, {s(sKA)}, 1")
            p(f"L_noadv{tag}{t}:")
        p(m0_half(t, 0))
        p(f"v_mov_b32 {v(VA)}, {v(IDX+2*t)}")
        p(f"v_mov_b32 {v(VB)}, {v(IDX+2*t+1)}")
        p(dma_half(0))
        if not opt["m1"]:
            p(m0_half(t, 1))
            p("s_nop 0")
        p(dma_half(1))


issued = [0]


def early(n):
    if n == 0:
        return
    t0 = issued[0]
    p(f"s_cmp_eq_u32 {s(sEARLY)}, 0")
    p(f"s_cbranch_scc1 L_skip{t0}")
    tiles(t0, t0 + n, F, "e")
    p(f"L_skip{t0}:")
    issued[0] += n


def x5tile():
    p(f"ds_read_u8 {v(VA)}, {v(RDL)} offset:{D*16}")
    p(f"ds_read_u8 {v(VB)}, {v(RDL)} offset:{D*16+8}")
    p(f"s_add_u32 m0, {s(sLB)}, {LI-2176}")
    p("s_waitcnt lgkmcnt(0)")
    p(dma_half(0))
    p(dma_half(1))


def first_pair():
    q_total(0, 0)
    t = q_test(0)
    for x in t[:8]:
        p(x)
    for step in range(5):
        p(q_scan(0, step))
        for x in t[8 + step:9 + step]:
            p(x)
    p(f"v_cmp_ne_u32 vcc, 0, {v(NBA)}")
    q_lanes(0)
    p(f"s_mov_b32 {s(sEARLY)}, 0")
    p("s_cbranch_vccnz L_late")
    q_ranks(0, 0)
    p(f"s_add_u32 {s(sT0)}, {s(sLB)}, {L0+16*D}")
    p(f"s_cmp_ge_u32 {s(sBASE)}, {s(sT0)}")
    q_write(0)
    p("s_cbranch_scc0 L_late")
    p(f"s_mov_b32 {s(sEARLY)}, 1")
    idx_reads()
    p("s_waitcnt lgkmcnt(0)")
    tiles(0, NE, F, "e")
    if opt.get("x5") == 2:
        x5tile()
    p(f"s_setpc_b64 {s(RET,2)} ; ret=L_fp")
    p("L_late:")
    p("s_waitcnt vmcnt(0)")
    p(f"s_setpc_b64 {s(RET,2)} ; ret=L_fp")


stamp()
jit()
if not opt["yf"]:
    p(f"s_cmp_ge_u32 {s(sw)}, 4")
    p("s_cbranch_scc1 L_young1")
p(f"s_waitcnt vmcnt({6+LL}) lgkmcnt(0)")
p(f"s_call_b64 {s(RET,2)}, L_fp")
p(f"s_waitcnt vmcnt({1+LL+2*NE})")
p("s_branch L_old1")
p("L_young1:")
p(f"s_waitcnt vmcnt({1+LL+opt['ym']})")
p("L_old1:")
cst("preB1")
p(f"s_waitcnt lgkmcnt(0)")
p("s_barrier")
stamp()
cst("B1")
jit()
RWA, RWC, RWD, RBB, RBC, TP, DB, DA, DD = CA, CA + 4, CA + 8, CA + 12, CA + 20, CA + 28, CA + 44, CA + 52, CD
for (dst, base) in ((RBB, 0), (RBC, 2)):
    for ks in range(2):
        for u in range(2):
            p(f"ds_read_b64_tr_b16 {v(dst+4*ks+2*u,2)}, {v(SB_)} offset:{(base+ks)*REG+u*512}")
for j in range(2):
    for ks in range(2):
        p(f"ds_read_b128 {v(TP+8*j+4*ks,4)}, {v(TBA)} offset:{TB+j*2*REG+ks*64}")
for u in range(2):
    p(f"ds_read_b64_tr_b16 {v(RWA+2*u,2)}, {v(SA)} offset:{u*512}")
    p(f"ds_read_b64_tr_b16 {v(RWC+2*u,2)}, {v(SC_)} offset:{u*512}")
    p(f"ds_read_b64_tr_b16 {v(RWD+2*u,2)}, {v(SC_)} offset:{2*REG+u*512}")
if not opt["yf"]:
    p(f"s_cmp_ge_u32 {s(sw)}, 4")
    p("s_cbranch_scc1 L_young2")
p(f"s_waitcnt vmcnt({LL+2*NE})")
p("s_branch L_old2")
p("L_young2:")
p(f"s_waitcnt vmcnt({LL+opt['ym']})")
p("L_old2:")
if G2 == 1:
    late_loads()
for j in range(2):
    p(f"v_lshlrev_b32 {v(DB+2*j)}, 16, {v(B1R+j)}")
    p(f"v_and_b32 {v(DB+2*j+1)}, 0xffff0000, {v(B1R+j)}")
groups(1)
jit()
cst("firstpair")
p("s_waitcnt lgkmcnt(0)")
for j in range(8):
    p(f"v_xor_b32 {v(RBC+j)}, 0x80008000, {v(RBC+j)}")
for u in range(2):
    p(f"{DIAGMM} {v(DA+4*u,4)}, {v(IDN,2)}, {v(RWA+2*u,2)}, 0")
    p(f"{DIAGMM} {v(DD+4*u,4)}, {v(IDN,2)}, {v(RWD+2*u,2)}, 0")
for u in range(2):
    p(f"{DIAGMM} {v(DA+4*u,4)}, {v(IDN,2)}, {v(RWC+2*u,2)}, {v(DA+4*u,4)}")
if G2 == 3:
    late_loads()
for j in (1, 0):
    first = True
    for (src) in (RBB, RBC):
        for ks in range(2):
            c = v(DB, 4) if first else v(DB + 4 * j, 4)
            p(f"v_mfma_f32_16x16x32_bf16 {v(DB+4*j,4)}, {v(src+4*ks,4)}, {v(TP+8*j+4*ks,4)}, {c}")
            first = False
for j in range(8):
    p(f"v_mul_f32 {v(DA+j)}, {s(sC)}, {v(DA+j)}")
for j in range(8):
    p(f"v_mul_f32 {v(DD+j)}, {s(sC)}, {v(DD+j)}")
p(f"s_add_u32 {s(sT0)}, {s(sLB)}, {XCH}")
if G2 == 2:
    p(f"v_mov_b32 {v(TX+2)}, v3")
p(f"v_add_u32 v3, {s(sT0)}, v2")
for j in range(4):
    p(f"v_cvt_pk_bf16_f32 {v(DD+j)}, {v(DD+2*j)}, {v(DD+2*j+1)}")
for j in range(8):
    p(f"v_mul_f32 {v(DB+j)}, {s(sC)}, {v(DB+j)}")
p(f"ds_write_b128 v3, {v(DA,4)}")
p(f"ds_write_b128 v3, {v(DA+4,4)} offset:1024")
p(f"ds_write_b128 v3, {v(DD,4)} offset:2048")
p(f"ds_write_b128 {v(BWA)}, {v(DB,4)}")
p(f"ds_write_b128 {v(BWA)}, {v(DB+4,4)} offset:{2*REG}")
if G2 == 2:
    p(f"v_mov_b32 {v(TX+1)}, v3")
    p(f"v_mov_b32 v3, {v(TX+2)}")
    late_loads()
p(f"v_add_u32 v3, {XCH}, v2")
p(f"v_add_u32 {v(TX)}, {4*REG}, v3")
cst("preB3")
p("s_waitcnt lgkmcnt(0)")
p("s_barrier")
cst("B3")
jit()
stamp()
def const_reads(w0, w1):
    if opt.get("xc"):
        return
    for w_ in range(w0, w1):
        a = "v3" if w_ < 4 else v(TX)
        p(f"ds_read_b128 {v(CA+8*w_,4)}, {a} offset:{(w_&3)*REG}")
        p(f"ds_read_b128 {v(CA+8*w_+4,4)}, {a} offset:{(w_&3)*REG+1024}")
        p(f"ds_read_b128 {v(CD+4*w_,4)}, {a} offset:{(w_&3)*REG+2048}")


if opt["yf"]:
    assert not opt["ym"] and not opt["y2"]
    p("s_branch L_old3")
p(f"s_cmp_ge_u32 {s(sw)}, 4")
p("s_cbranch_scc0 L_old3")
if opt["yp"]:
    p("s_setprio 2")
if opt["ym"]:
    p("s_waitcnt vmcnt(4)")
p(f"s_call_b64 {s(RET,2)}, L_fp")
if opt["y2"]:
    p("s_branch L_yng3")
p("L_old3:")
p(f"s_call_b64 {s(RET,2)}, L_t23")
p("L_yng3:")
const_reads(0, 3)
groups(2)
p(f"s_waitcnt vmcnt({2*NE if opt['y2'] or G2 else 2*D})")
cst("tiles23")
for i in range(3):
    q_total(i, i + 1)
t = q_test(1) + q_test(2) + q_test(3)
for x in t[:9]:
    p(x)
for step in range(5):
    for i in range(3):
        p(q_scan(i, step))
const_reads(3, 5)
for x in t[9:]:
    p(x)
p(f"v_cmp_ne_u32 vcc, 0, {v(NBA)}")
for i in range(3):
    q_lanes(i)
p("s_cbranch_vccnz L_general")
q_ranks(0, 1)
q_ranks(1, 2)
q_write(0)
q_ranks(2, 3)
q_write(1)
const_reads(5, 8)
t_reads()
q_write(2)
if opt["y2"]:
    p(f"s_cmp_ge_u32 {s(sw)}, 4")
    p("s_cbranch_scc0 L_old3b")
    p(f"s_call_b64 {s(RET,2)}, L_t23")
    p("L_old3b:")
p("L_listed:")
stamp()
jit(True)
if opt["swap"]:
    p(f"s_and_b32 {s(sT2)}, {s(NB)}, 0x40000000")
    p(f"s_or_b32 {s(sT2)}, {s(sT2)}, {s(sw)}")
    p(f"s_bitset1_b32 {s(sT2)}, 31")
    for r, src in ((sT0, A0 + 6), (sT1, A0 + 10)):
        p(f"s_and_b32 {s(r)}, {s(src)}, 0x1ff")
        p(f"s_lshl_b32 {s(r)}, {s(r)}, 3")
        p(f"s_or_b32 {s(r)}, {s(r)}, {s(sT2)}")
    for x, r in enumerate((sT0, sCUR, sM2, sB3)):
        p(f"v_mov_b32 {v(ZA+x)}, {s(r)}")
    for x, r in enumerate((sT1, sB3, sM3, sE3)):
        p(f"v_writelane_b32 {v(ZA+x)}, {s(r)}, 1")
    p("s_mov_b64 exec, 3")
    p(f"ds_write_b128 {v(DG+6)}, {v(ZA,4)} offset:{KEY}")
    p("s_mov_b64 exec, -1")
    p(f"s_sub_u32 {s(sSZ)}, {s(sB3)}, {s(sCUR)}")
    p(f"s_sub_u32 {s(sSZ+1)}, {s(sE3)}, {s(sB3)}")
    p(f"s_lshl_b32 {s(sOW)}, {s(sw)}, 3")
    p(f"s_mov_b32 {s(sRND)}, 0")
    p(f"s_mov_b32 {s(sPM)}, 0")
if opt["prio"]:
    step = 2 * PSTEP
    p(f"s_sub_u32 {s(sT0)}, {s(sBASE)}, {s(sLB)}")
    p(f"s_sub_u32 {s(sT0)}, {s(sT0)}, {L0}")
    p(f"s_lshr_b32 {s(sT0)}, {s(sT0)}, 3")
    if opt["bias"]:
        p(f"s_lshr_b32 {s(sT1)}, {s(sw)}, 2")
        p(f"s_mul_i32 {s(sT1)}, {s(sT1)}, {2*opt['bias']}")
        p(f"s_add_u32 {s(sT0)}, {s(sT0)}, {s(sT1)}")
    p(f"s_sub_u32 {s(sT1)}, 0, {s(sT0)}")
    p(f"v_mov_b32 {v(PADR)}, {v(DG+5)}")
    p(f"v_mov_b32 {v(PRV)}, {s(sT0)}")
    p(f"v_mov_b32 {v(PINC)}, {-step}")
    p(f"v_writelane_b32 {v(PRV)}, {s(sT1)}, 1")
    p(f"v_writelane_b32 {v(PINC)}, {step}, 1")
    p(f"ds_add_u32 {v(PADR)}, {v(PRV)}")
    if opt["pv"]:
        p(f"v_bfrev_b32 {v(PTH)}, -2")
        p(f"v_writelane_b32 {v(PTH)}, 0, 0")
p(f"s_cmp_eq_u32 {s(sEARLY)}, 1")
p("s_cbranch_scc1 L_nolate")
idx_reads()
p("s_waitcnt lgkmcnt(0)")
tiles(0, D, F, "l")
p("L_nolate:")
for hb in range(4):
    for j in range(2):
        p(f"v_and_b32_dpp {v(W2+2*hb+j)}, {v(W2R+j)}, {v(N0M)} quad_perm:[{hb},{hb},{hb},{hb}] row_mask:0xf bank_mask:0xf")
if opt.get("xp"):
    for j in range(opt["xp"]):
        p("s_nop 15")
cst("precompactdone")
p(f"s_waitcnt vmcnt({2*(D-1)}) lgkmcnt(0)")
read_xb(0, 0)
read_xb(0, 1)
wbuild()
stamp()
stamp(33)
cst("wbuilt")
if STAMP == 4:
    p("s_waitcnt lgkmcnt(0)")
    p("v_mov_b32 v254, 0")
    for j, r in enumerate((38,80,82,96,98,44,46,48,50,16)):
        p(f"v_writelane_b32 v254, s{r}, {j}")
for j in range(8):
    p(g1(j))
if "y0" in SCHED[opt["sched"]]:
    p(f"s_waitcnt vmcnt({2*(D-2)})")
    read_xb(1, 0)
    read_xb(1, 1)
_t = SCHED[opt["sched"]].split()
if _t.index("ia") < _t.index("EV"):
    p(f"ds_read_u8 {v(VA)}, {v(RDL)} offset:{D*16}")
    p(f"ds_read_u8 {v(VB)}, {v(RDL)} offset:{D*16+8}")
if _t.index("k1") > _t.index("EV"):
    for j in range(4, 8):
        p(f"v_mov_b32 {v(ZA+j)}, 0")
if opt.get("x5"):
    p("s_waitcnt lgkmcnt(0)")
    p(f"v_mov_b32 {v(VA)}, 0xff")
    p(f"v_mov_b32 {v(VB)}, 0xff")
event_mask()
p(f"s_cmp_lg_u64 {s(NB,2)}, 0")
if opt.get("so"):
    p("s_cbranch_scc1 L_gen2")
    p(f"s_getreg_b32 {s(sT0)}, hwreg(HW_REG_XCC_ID, 0, 1)")
    p(f"s_cmp_eq_u32 {s(sT0)}, 0")
    p("s_cbranch_scc1 Lf_mid")
    p("s_branch Lo_mid")
    p("L_gen2:")
else:
    p("s_cbranch_scc0 Lf_mid")
p(f"s_mul_i32 {s(sT0)}, {s(sW)}, 800")
p(f"s_add_u32 s8, s8, {s(sT0)}")
p("s_addc_u32 s9, s9, 0")
srd(SM, 8, 400)
p(f"s_movk_i32 {s(sMDL)}, {MDL0}")
p("s_branch Ls_mid")
p("L_fp:")
first_pair()
if opt["swap"]:
    A_, B_, KB_, TK_, KA_ = ZA + 8, ZA + 9, ZA + 10, ZA + 11, ZA + 12
    p("L_swap:")
    p(f"v_lshrrev_b32 {v(A_)}, 3, v0")
    p(f"v_and_b32 {v(B_)}, 7, v0")
    p(f"v_mul_u32_u24 {v(A_)}, {REG}, {v(A_)}")
    p(f"v_mul_u32_u24 {v(B_)}, {REG}, {v(B_)}")
    p(f"v_add_u32 {v(A_)}, {s(sRND)}, {v(A_)}")
    p(f"v_add_u32 {v(B_)}, {s(sRND)}, {v(B_)}")
    p(f"v_mov_b32 {v(TK_)}, 1")
    p("s_mov_b64 exec, 1")
    p(f"ds_add_rtn_u32 {v(TK_)}, {v(A_)}, {v(TK_)} offset:{TKT}")
    p("s_mov_b64 exec, -1")
    p("L_swap_poll:")
    p(f"ds_read_b32 {v(KB_)}, {v(B_)} offset:{KEY}")
    p(f"ds_read_b128 {v(KA_,4)}, {v(A_)} offset:{KEY}")
    p(f"v_and_b32 {v(TX+2)}, 56, v0")
    p("s_waitcnt lgkmcnt(0)")
    p(f"v_cmp_le_i32 vcc, 0, {v(KB_)}")
    p(f"v_cmp_gt_u32 {s(P0,2)}, {v(KB_)}, {v(KA_)}")
    p(f"v_lshlrev_b32 {v(TX+3)}, 1, {v(KB_)}")
    p(f"v_readfirstlane_b32 {s(sT0)}, {v(TK_)}")
    p("s_cbranch_vccnz L_swap_poll")
    p(f"v_lshrrev_b64 {v(TX,2)}, {v(TX+2)}, {s(P0,2)}")
    p(f"v_cmp_gt_i32 {s(P1,2)}, 0, {v(TX+3)}")
    p(f"v_and_b32 {v(TX)}, 0xff, {v(TX)}")
    p(f"v_bcnt_u32_b32 {v(TX)}, {v(TX)}, 0")
    p(f"v_cmp_eq_u32 vcc, {s(sT0)}, {v(TX)}")
    p(f"s_lshl_b32 {s(sT1)}, {s(sw)}, 3")
    p(f"s_ff1_i32_b64 {s(sT0)}, vcc")
    p(f"s_cmp_lg_u64 {s(P1,2)}, 0")
    p(f"s_cselect_b32 {s(sT0)}, {s(sT1)}, {s(sT0)}")
    p(f"s_sub_u32 {s(sT3)}, {s(sT0)}, {s(sOW)}")
    p(f"s_mov_b32 {s(sOW)}, {s(sT0)}")
    p(f"s_sub_u32 {s(sDG+1)}, {s(sT0)}, {s(sT1)}")
    p(f"v_readlane_b32 {s(sT1)}, {v(KA_+2)}, {s(sT0)}")
    p(f"v_readlane_b32 {s(sT2)}, {v(KA_+3)}, {s(sT0)}")
    p(f"v_readlane_b32 {s(sT0)}, {v(KA_+1)}, {s(sT0)}")
    p(f"s_mul_i32 {s(sPD+1)}, {s(sT3)}, {REG // 8}")
    p(f"s_mul_i32 {s(sT3)}, {s(sT3)}, 6400")
    p(f"s_add_u32 {s(sRO)}, {s(sRO)}, {s(sT3)}")
    p(f"s_sub_u32 {s(sT3)}, {s(sT0)}, {s(sCUR)}")
    p(f"v_add_u32 {v(RDL)}, {s(sT3)}, {v(RDL)}")
    p(f"s_mov_b32 {s(sCUR)}, {s(sT2)}")
    for r in (sT1, sT2):
        p(f"s_sub_u32 {s(r)}, {s(r)}, {s(sT0)}")
    p(f"s_sub_u32 {s(sT3)}, {s(sT2)}, {s(sSZ)}")
    for r in (sT1, sT2):
        p(f"s_lshr_b32 {s(r)}, {s(r)}, 4")
        p(f"s_add_u32 {s(r)}, {s(r)}, {s(sU)}")
        p(f"s_bitset1_b64 {s(F,2)}, {s(r)}")
    event_mask()
    if opt["prio"]:
        p(f"s_ashr_i32 {s(sT3)}, {s(sT3)}, 3")
        p(f"v_mov_b32 {v(A_)}, {s(sT3)}")
        p(f"s_sub_u32 {s(sT3)}, 0, {s(sT3)}")
        p(f"v_writelane_b32 {v(A_)}, {s(sT3)}, 1")
        p(f"ds_add_u32 {v(PADR)}, {v(A_)}")
    p(f"s_cmp_eq_u32 {s(sRND)}, 0")
    p(f"s_cselect_b32 {s(sPD)}, {s(sPD+1)}, {s(sPD)}")
    p(f"s_cselect_b32 {s(sDG)}, {s(sDG+1)}, {s(sDG)}")
    p(f"s_cselect_b32 {s(sKA)}, 1, 8")
    p(f"s_cselect_b32 {s(sT0)}, 4, 2")
    p(f"s_mov_b32 {s(sSZ)}, {s(sSZ+1)}")
    p(f"s_mov_b32 {s(sRND)}, 16")
    p(f"s_cmp_eq_u32 {s(sKW)}, {s(sT0)}")
    p("s_cbranch_scc1 L_swap_now")
    p(f"s_sub_u32 {s(sT0)}, {s(sT0)}, 1")
    p(f"s_bitset1_b32 {s(sPM)}, {s(sT0)}")
    p(f"s_setpc_b64 {s(RET,2)} ; ret=L_swap")
    p("L_swap_now:")
    p(f"v_add_u32 {v(TADR)}, {s(sPD+1)}, {v(TADR)}")
    p(f"v_add_u32 {v(BADR)}, {s(sPD+1)}, {v(BADR)}")
    t_reads()
    p(f"s_setpc_b64 {s(RET,2)} ; ret=L_swap")
p("L_t23:")
p(f"s_cmp_eq_u32 {s(sEARLY)}, 0")
p("s_cbranch_scc1 L_skip23")
tiles(NE, D, F, "e")
if opt.get("x5") == 1:
    x5tile()
p(f"s_setpc_b64 {s(RET,2)} ; ret=L_t23")
p("L_skip23:")
p("s_waitcnt vmcnt(0)")
p(f"s_setpc_b64 {s(RET,2)} ; ret=L_t23")
mainloop("f", False)
p("L_store:")
p(f"s_add_u32 {s(sT0)}, {s(sLB)}, {OUTS}")
p(f"v_lshl_add_u32 {v(TX+1)}, v0, 4, {s(sT0)}")
if opt["swap"]:
    for j in range(2):
        p(f"s_lshl_b32 {s(sT0)}, {s(sDG+j)}, 5")
        p(f"s_bfm_b64 exec, 16, {32+16*j}")
        p(f"v_add_u32 {v(VOUT)}, {s(sT0)}, {v(VOUT)}")
    p("s_mov_b64 exec, -1")
p(f"ds_read_b128 {v(ZB,4)}, {v(TX+1)}")
p("s_waitcnt lgkmcnt(0)")
if opt.get("endp"):
    p("s_cmp_lg_u32 s2, 0")
    p("s_cbranch_scc1 L_endp")
    p("L_endq:")
    p("s_memrealtime s[38:39]")
    p("s_waitcnt lgkmcnt(0)")
    p("s_sub_u32 s38, s38, s100")
    p(f"s_cmp_lt_i32 s38, {opt['endp']*100}")
    p("s_cbranch_scc1 L_endq")
    p("L_endp:")
    if opt.get("fr"):
        p(f"s_and_b32 s38, s2, {opt['fr']}")
        p("s_cbranch_scc0 L_endr")
        p(f"global_store_dwordx4 {v(VOUT)}, {v(ZB,4)}, s[18:19] sc0 sc1")
        p("s_endpgm")
        p("L_endr:")
p(f"global_store_dwordx4 {v(VOUT)}, {v(ZB,4)}, s[18:19] {NTO}")
if STAMP:
    p("s_mov_b64 exec, -1")
    stamp(34)
    p(f"v_writelane_b32 v254, {s(sBASE)}, 15")
    p("s_getreg_b32 s96, hwreg(HW_REG_XCC_ID)")
    p("v_writelane_b32 v254, s96, 14")
    p("s_getreg_b32 s96, hwreg(HW_REG_HW_ID)")
    p("v_writelane_b32 v254, s96, 13")
    srd(SM, 100, 2048 * 256)
    p(f"s_lshl_b32 {s(sT0)}, s2, 3")
    p(f"s_add_u32 {s(sT0)}, {s(sT0)}, {s(sw)}")
    p(f"s_lshl_b32 {s(sT0)}, {s(sT0)}, 8")
    p(f"v_lshlrev_b32 v1, 2, v0")
    p(f"buffer_store_dword v254, v1, {s(SM,4)}, {s(sT0)} offen")
if opt.get("twice"):
    p("s_waitcnt vmcnt(0) lgkmcnt(0)")
    p("s_barrier")
    p("s_setprio 0")
    p(f"s_lshl_b32 {s(sT0)}, {s(sw)}, 6")
    p(f"v_add_u32 v0, {s(sT0)}, v0")
    p("s_add_u32 s3, s3, 1")
    p("s_cmp_eq_u32 s3, 1")
    p("s_cbranch_scc1 L_again")
if opt.get("spin"):
    if opt.get("probe"):
        if opt["probe"] == "end":
            p("s_memrealtime s[98:99]")
            p("s_waitcnt lgkmcnt(0)")
        p("s_sub_u32 s98, s98, s100")
        p(f"s_mul_i32 s98, s98, {opt.get('pk', 4)}")
        p("s_add_u32 s100, s100, s98")
    p("L_spin:")
    p("s_memrealtime s[38:39]")
    p("s_waitcnt lgkmcnt(0)")
    p("s_sub_u32 s38, s38, s100")
    p(f"s_cmp_lt_i32 s38, {opt['spin']*100}")
    p("s_cbranch_scc1 L_spin")
p("L_end:")
p("s_endpgm")
if opt.get("so"):
    mainloop("o", False, opt["so"])
p("L_general:")
p("s_waitcnt vmcnt(0)")
const_reads(5, 8)
t_reads()
list_reset()
p(f"s_bfm_b64 {s(EX50,2)}, 50, 0")
p(f"s_mul_i32 {s(sT0)}, {s(sW)}, 800")
p(f"v_add_u32 {v(TX+1)}, {s(sT0)}, v2")
p(f"s_mov_b64 exec, {s(EX50,2)}")
for j in range(4):
    p(f"global_load_dwordx4 {v(MSK+4*j,4)}, {v(TX+1)}, s[8:9]")
    p(f"v_add_u32 {v(TX+1)}, {PSTR*400}, {v(TX+1)}")
p("s_mov_b64 exec, -1")
p(f"v_cmp_lt_u32 vcc, 24, v0")
p(f"v_cndmask_b32 {v(HI)}, 0, 1, vcc")
p(f"v_mul_u32_u24 {v(CV+1)}, 25, {v(HI)}")
p(f"v_sub_u32 {v(CV+1)}, v0, {v(CV+1)}")
p(f"v_mul_u32_u24 {v(CV+1)}, 0x80008, {v(CV+1)}")
p(f"v_add_u32 {v(CV)}, 0x10000, {v(CV+1)}")
p(f"v_add_u32 {v(CV+2)}, 0x50004, {v(CV+1)}")
p(f"v_add_u32 {v(CV+3)}, 0x70006, {v(CV+1)}")
p(f"v_add_u32 {v(CV+1)}, 0x30002, {v(CV+1)}")
p("s_waitcnt vmcnt(0)")
for j in range(4):
    compact_body(j)
p(f"s_mov_b32 {s(sEARLY)}, 0")
p(f"s_mov_b64 {s(NB,2)}, -1")
p("s_branch L_listed")
mainloop("s", True)

nn = p.fix_hazards(verbose=opt["verbose"])
for early_, old_, gen_ in ((a_, b_, c_) for a_ in (True, False) for b_ in (True, False) for c_ in (True, False)):
    force = [("L_skip", not early_), ("L_nolate", early_ and not gen_), ("L_young", not old_), ("L_old3", old_), ("L_general", gen_)]
    for e in check_waits(p, force + ([("L_late", False)] if early_ else [])) if early_ else check_waits(p, force, cut="L_noadve"):
        if STAMP != 4 and not opt.get('x5'):
            sys.exit(f"WAIT-CHECK early={early_}: {e}")
hdr = open(__file__.rsplit("/", 1)[0] + "/../standalone__sequential_behavior_din__recsys.s.ref").read().split("\n")
head = [l for l in hdr if l.startswith(";") and "@launch" not in l and "Override" not in l and "grid=ceil" not in l]
out = "\n".join(head) + f"""
; @launch grid=({NWG},1,1) block=({WPB*64},1,1) lds={WPB*REG}
; generated by gen/gen.py {' '.join(sys.argv[1:])}
.amdgcn_target "amdgcn-amd-amdhsa--gfx950"
.text
.globl {NAME}
.p2align 8
.type {NAME},@function
""" + p.text() + f""".section .rodata,"a"
.p2align 6
.amdhsa_kernel {NAME}
  .amdhsa_next_free_vgpr 256
  .amdhsa_next_free_sgpr 102
  .amdhsa_accum_offset 256
  .amdhsa_group_segment_fixed_size 0
  .amdhsa_kernarg_size 80
  .amdhsa_user_sgpr_count 2
  .amdhsa_user_sgpr_kernarg_segment_ptr 1
  .amdhsa_system_sgpr_workgroup_id_x 1
.end_amdhsa_kernel
"""
sys.stdout.write(out)
```

```python
import sys
from asmlib import Prog, check_waits

opt = dict(LA=4, fg=0, pv=1, U=4, al=0, yf=0, tlb=0, g2=1, ym=1, swap=1, bias=1, y2=1, yp=0, vx=0, m1=1, map=0, place=900010000, D=4, nt="nt", ntm="nt", nto="sc0 sc1", verbose=0, prio=1, sched="r")
for a in sys.argv[1:]:
    k, v = a.split("=", 1)
    opt[k] = int(v) if v.lstrip("-").isdigit() else v.replace("+", " ")
D = opt["D"]
U = opt["U"]
assert U % D == 0
LA = opt["LA"]
NT, NTM, NTO = opt["nt"], opt["ntm"], opt["nto"]
STAMP = opt.get("stamp", 0)
assert not (STAMP == 4 and opt["swap"])

NAME = "standalone__sequential_behavior_din__recsys_kernel"
NWG, WPB = 256, 8
NWAVE = NWG * WPB
KB = 16384 // NWAVE
REG = opt.get('reg', 20480)
SLOT = 2080
TB = D * SLOT
BI = TB + 1024
BSTR = 272
XCH = BI + 8 * BSTR
PRG = XCH + 3072
KEY = PRG + 256
OUTS = PRG + 320
TKT = PRG + 288
LI = REG - 2048
L0 = LI + 16
assert OUTS + 1024 <= LI - 2048 and LI + 2048 <= REG and LI % 2048 == 0 and REG % 2048 == 0
STG = (D - 2) * SLOT
CNEG = 0xBFB8AA3B
PSTR, WGSTR = (16, 64) if opt["map"] & 1 else (4096, 16)
LGP = PSTR.bit_length() - 1
DLT0, DLT1 = 25600, (PSTR - 1) * 25600
MDL0, MDL1 = 400, (PSTR - 1) * 400

CA, CD, W, ZA, ZB, BIAS, XB, XT, W2, B2, S, ACC, DG, TR, ONE, VA, VB = \
    4, 68, 100, 132, 148, 164, 180, 188, 196, 204, 208, 212, 216, 224, 228, 230, 232
RDB0, RDB1, RDT, RDL, TADR, BADR, OADR, SEL0, SEL1, VOUT, RDM = range(234, 245)
TX = 246
PTH = 245
PRV, PADR, PINC = 1, 2, 3
MSK = W
SH, SM, SH2 = 20, 24, 40
EX50, sB2, sDL, sMDL = 28, 30, 31, 32
sLB, sW, sw = 52, 53, 54
F = 56
H = 36
sKA, sKW = 60, 61
sBASE, sK, sT0, sT1, sT2, sT3 = 64, 65, 66, 67, 55, 95
A0 = 68
NB, P0, P1, P2 = 84, 86, 88, 90
sC, sOFF, sEARLY, sRO = 92, 93, 94, 35
sCUR, sM2, sB3, sM3, sE3 = 44, 45, 46, 47, 48
sU, sOW, sRND, sPM = 49, 50, 51, 33
sPD, sDG, sSZ = 80, 82, 68
RET = 62


def v(a, n=1):
    return f"v{a}" if n == 1 else f"v[{a}:{a+n-1}]"


def s(a, n=1):
    return f"s{a}" if n == 1 else f"s[{a}:{a+n-1}]"


p = Prog()
nstamp = [0]


def stamp(cyc=None):
    if STAMP == 4:
        return
    if not STAMP or (STAMP == 3 and cyc is None):
        return
    p("s_memrealtime s[96:97]")
    p("s_waitcnt lgkmcnt(0)")
    p(f"v_writelane_b32 v254, s96, {nstamp[0]}")
    nstamp[0] += 1
    if cyc is not None:
        p("s_memtime s[96:97]")
        p("s_waitcnt lgkmcnt(0)")
        p(f"v_writelane_b32 v254, s96, {cyc}")


ncyc = [0]


def cst(name):
    if opt.get("probe") == name:
        p("s_memrealtime s[98:99]")
        p("s_waitcnt lgkmcnt(0)")
    if STAMP == 4 and (not opt.get("arr") or name in ("entry", "kernarg") or name.startswith("arr")):
        sys.stderr.write(f"cst{ncyc[0]} = {name}\n")
        p(f"s_memtime {s((38,80,82,96,98,44,46,48,50,16)[ncyc[0]],2)}")
        ncyc[0] += 1


nfl = [0]
njit = [0]


def jit(long=False):
    if not opt.get("jitter"):
        return
    njit[0] += 1
    k = njit[0]
    p(f"s_mul_i32 s3, {s(sW)}, {37 + 2 * k + opt['jitter'] * 16}")
    p(f"s_add_u32 s3, s3, {k * 5}")
    p(f"s_lshr_b32 s3, s3, 2")
    p(f"s_and_b32 s3, s3, {7 if long else 3}")
    p("s_cmp_lg_u32 s3, 0")
    p(f"s_cbranch_scc1 L_jit{k}")
    for _ in range(10 if long else 1):
        p(f"s_sleep {127 if long else 30}")
    p(f"L_jit{k}:")


def srd(dst, ptr, nrec, stride=0):
    p(f"s_mov_b32 {s(dst)}, {s(ptr)}")
    p(f"s_and_b32 {s(dst+1)}, {s(ptr+1)}, 0xffff")
    if stride:
        p(f"s_or_b32 {s(dst+1)}, {s(dst+1)}, {stride << 16:#x}")
    p(f"s_mov_b32 {s(dst+2)}, {nrec}")
    p(f"s_mov_b32 {s(dst+3)}, 0x20000")


def m0_half(slot, j):
    return f"s_add_u32 m0, {s(sLB)}, {slot*SLOT+j*1056}"


def dma_half(j):
    if opt["m1"] and j:
        return f"buffer_load_dwordx4 {v(VB,2)}, {s(SH2,4)}, {s(sRO)} idxen offen offset:1056 {NT} lds"
    return f"buffer_load_dwordx4 {v((VA, VB)[j],2)}, {s(SH,4)}, {s(sRO)} idxen offen {NT} lds"


def adv_hist():
    p(f"s_add_u32 {s(sRO)}, {s(sRO)}, {s(sDL)}")
    p(f"s_min_u32 {s(sRO)}, {s(sRO)}, {16383*25600}")
    p(f"s_xor_b32 {s(sDL)}, {s(sDL)}, {DLT0 ^ DLT1:#x}")


R, CV, HI = ZA, ZA + 9, ZA + 13
AP, AT, QV, QH, NBA = W + 16, W + 22, W + 26, W + 30, W + 31
QR, QT, QE = (ZA, ZA + 8, BIAS), (BIAS + 8, BIAS + 12, XB), (XB + 4, XB + 5, XB + 6)
NT0, NT1 = ZB + 12, ZB + 13
CNT = 0xBFE0BFE0


def fbit(reg, k):
    p(f"s_lshr_b32 {s(sT3)}, {s(reg)}, 4")
    if 13 * (k + 1) + 1 < 64:
        p(f"s_bitset1_b64 {s(F,2)}, {s(sT3)}")
    else:
        p(f"s_lshl_b64 {s(P0,2)}, 1, {s(sT3)}")
        p(f"s_bitcmp1_b32 {s(reg)}, 10")
        p(f"s_cselect_b64 {s(P1,2)}, 0, {s(P0,2)}")
        p(f"s_cselect_b64 {s(P2,2)}, {s(P0,2)}, 0")
        p(f"s_or_b64 {s(F,2)}, {s(F,2)}, {s(P1,2)}")
        p(f"s_or_b64 {s(F+2,2)}, {s(F+2,2)}, {s(P2,2)}")


def compact_body(j):
    m = [MSK + 4 * j + x for x in range(4)]
    p(f"s_mov_b64 exec, {s(EX50,2)}")
    for e in range(8):
        p(f"v_cmp_neq_f16_sdwa {s(A0+2*e,2)}, {v(m[e>>1])}, 0 src0_sel:WORD_{e&1} src1_sel:WORD_0")
    p("s_mov_b64 exec, -1")
    p(f"v_mov_b32 {v(R)}, {s(sBASE)}")
    for e in range(8):
        p(f"v_mbcnt_lo_u32_b32 {v(R)}, {s(A0+2*e)}, {v(R)}")
        p(f"v_mbcnt_hi_u32_b32 {v(R)}, {s(A0+2*e+1)}, {v(R)}")
    p(f"s_add_u32 {s(sT2)}, {s(sBASE)}, 16")
    p(f"v_readlane_b32 {s(sT0)}, {v(R)}, 25")
    p(f"v_readlane_b32 {s(sT1)}, {v(R)}, 63")
    p(f"s_add_u32 {s(sBASE)}, {s(sT0)}, 15")
    p(f"s_and_b32 {s(sBASE)}, {s(sBASE)}, -16")
    p(f"s_max_u32 {s(sBASE)}, {s(sBASE)}, {s(sT2)}")
    p(f"s_sub_u32 {s(sT0)}, {s(sBASE)}, {s(sT0)}")
    p(f"v_mad_u32_u24 {v(R)}, {v(HI)}, {s(sT0)}, {v(R)}")
    p(f"s_mov_b32 {s(sT2)}, {s(sBASE)}")
    for e in range(7):
        p(f"v_addc_co_u32 {v(R+e+1)}, vcc, 0, {v(R+e)}, {s(A0+2*e,2)}")
    p(f"s_add_u32 {s(sT1)}, {s(sT1)}, {s(sT0)}")
    p(f"s_add_u32 {s(sT1)}, {s(sT1)}, 15")
    p(f"s_and_b32 {s(sT1)}, {s(sT1)}, -16")
    p(f"s_add_u32 {s(sBASE)}, {s(sBASE)}, 16")
    p(f"s_max_u32 {s(sBASE)}, {s(sBASE)}, {s(sT1)}")
    for e in range(8):
        p(f"s_mov_b64 exec, {s(A0+2*e,2)}")
        p(f"ds_write_b8{'_d16_hi' if e&1 else ''} {v(R+e)}, {v(CV+(e>>1))}")
    p("s_mov_b64 exec, -1")
    pair_bits(j, sT2)


def q_total(i, j):
    p(f"v_mfma_i32_16x16x64_i8 {v(QT[i],4)}, {v(AT,4)}, {v(MSK+4*j,4)}, 0")


def q_test(j):
    out = []
    if opt.get("xt"):
        return out
    for x in range(4):
        t = (NT0, NT1)[x & 1]
        out += [f"v_and_b32 {v(t)}, 0x800080, {v(MSK+4*j+x)}", f"v_mul_u32_u24 {v(t)}, 0x7f, {v(t)}",
                f"v_bitop3_b32 {v(NBA)}, {v(MSK+4*j+x)}, {v(t)}, {v(NBA)} bitop3:0xbe"]
    return out


def q_scan(i, step):
    dpp = "row_mask:0xf bank_mask:0xf bound_ctrl:0"
    if step == 0:
        return f"v_mov_b32_dpp {v(QE[i])}, {v(QT[i])} row_shr:1 {dpp}"
    return f"v_add_u32_dpp {v(QE[i])}, {v(QE[i])}, {v(QE[i])} row_shr:{1 << (step-1)} {dpp}"


def q_lanes(i):
    p(f"v_readlane_b32 {s(A0+4*i)}, {v(QE[i])}, 6")
    p(f"v_readlane_b32 {s(A0+4*i+1)}, {v(QT[i]+1)}, 6")
    p(f"v_readlane_b32 {s(A0+4*i+2)}, {v(QE[i])}, 15")


def q_ranks(i, j):
    a = A0 + 4 * i
    p(f"s_add_u32 {s(sT0)}, {s(a)}, {s(a+1)}")
    p(f"s_add_u32 {s(sT0)}, {s(sT0)}, {s(sBASE)}")
    p(f"s_add_u32 {s(sT1)}, {s(sT0)}, 15")
    p(f"s_and_b32 {s(sT1)}, {s(sT1)}, -16")
    p(f"s_add_u32 {s(sT2)}, {s(sBASE)}, 16")
    p(f"s_max_u32 {s(sT1)}, {s(sT1)}, {s(sT2)}")
    p(f"s_sub_u32 {s(sT0)}, {s(sT1)}, {s(sT0)}")
    p(f"v_mad_u32_u24 {v(QE[i])}, {v(QH)}, {s(sT0)}, {v(QE[i])}")
    p(f"s_sub_u32 {s(sT2)}, {s(sBASE)}, 2048")
    for r in range(4):
        p(f"v_add_u32 {v(QT[i]+r)}, {s(sT2)}, {v(QE[i])}")
    p(f"s_add_u32 {s(sBASE)}, {s(sBASE)}, {s(a+2)}")
    p(f"s_add_u32 {s(sBASE)}, {s(sBASE)}, {s(sT0)}")
    p(f"v_mfma_i32_16x16x64_i8 {v(QR[i],4)}, {v(AP+2,4)}, {v(MSK+4*j,4)}, {v(QT[i],4)}")
    p(f"v_mfma_i32_16x16x64_i8 {v(QR[i]+4,4)}, {v(AP,4)}, {v(MSK+4*j,4)}, {v(QT[i],4)}")
    p(f"s_add_u32 {s(sBASE)}, {s(sBASE)}, 15")
    p(f"s_and_b32 {s(sBASE)}, {s(sBASE)}, -16")
    p(f"s_add_u32 {s(sT2)}, {s(sT1)}, 16")
    p(f"s_max_u32 {s(sBASE)}, {s(sBASE)}, {s(sT2)}")
    pair_bits(j, sT1)


def pair_bits(j, mid):
    if opt["swap"] and j >= 2:
        p(f"s_mov_b32 {s((sM2, sM3)[j-2])}, {s(mid)}")
        p(f"s_mov_b32 {s((sB3, sE3)[j-2])}, {s(sBASE)}")
        return
    fbit(mid, 2 * j)
    fbit(sBASE, 2 * j + 1)
    if opt["swap"] and j == 1:
        p(f"s_mov_b32 {s(sCUR)}, {s(sBASE)}")


def q_write(i):
    if opt.get("xw"):
        return
    if opt["vx"]:
        p(f"s_mov_b64 exec, {s(EX50,2)}")
    for e in range(8):
        p(f"ds_write_b8{'_d16_hi' if e&1 else ''} {v(QR[i]+e)}, {v(QV+(e>>1))}")
    if opt["vx"]:
        p("s_mov_b64 exec, -1")


W44 = 1
DIAGMM = "v_mfma_f32_4x4x4_16b_bf16" if W44 else "v_mfma_f32_16x16x16_bf16"


def wbuild(first=False):
    for x in range(4):
        p(f"v_mul_u32_u24 {v(DG+2*x)}, {v(TR+x)}, {v(SEL0)}")
        p(f"v_mul_u32_u24 {v(DG+2*x+1)}, {v(TR+x)}, {v(SEL1)}")
    T = [ZA + 8, TX]
    pairs = [(hb, ks) for hb in range(4) for ks in range(2)]

    def mm(j, u):
        hb, ks = pairs[j]
        blk = (hb * 2 + ks) * 2 + u
        p(f"{DIAGMM} {v(T[j%2]+4*u,4)}, {v(DG+2*(2*ks+u),2)}, {v(CD+2*blk,2)}, {v(CA+4*blk,4)}")

    def cv(j, r):
        hb, ks = pairs[j]
        p(f"v_cvt_pk_bf16_f32 {v(W+(hb*2+ks)*4+r)}, {v(T[j%2]+2*r)}, {v(T[j%2]+2*r+1)}")
    mm(0, 0)
    p(f"v_add_u32 {v(TADR)}, 128, {v(TADR)}")
    for hb in range(2):
        p(f"ds_read_b128 {v(BIAS+4*hb,4)}, {v(BADR)} offset:{64*hb}")
    mm(0, 1)
    for hb in range(2, 4):
        p(f"ds_read_b128 {v(BIAS+4*hb,4)}, {v(BADR)} offset:{64*hb}")
    t_reads()
    for j in range(8):
        if j < 7:
            mm(j + 1, 0)
        cv(j, 0); cv(j, 1)
        if j < 7:
            mm(j + 1, 1)
        else:
            p(f"v_add_u32 {v(BADR)}, {BSTR}, {v(BADR)}")
        if first and j:
            if j == 1:
                p("s_waitcnt lgkmcnt(4)")
            p(g1(j - 1))
        cv(j, 2); cv(j, 3)
    p("s_waitcnt lgkmcnt(0)")
    if first:
        p(g1(7))


def t_reads():
    for x in range(4):
        p(f"ds_read_u16 {v(TR+x)}, {v(TADR)} offset:{(x>>1)*64+(x&1)*8}")


def g1(j):
    hb, ks = j >> 1, j & 1
    c = v(BIAS + 4 * hb, 4) if ks == 0 else v(ZB + 4 * hb, 4)
    return f"v_mfma_f32_16x16x32_bf16 {v(ZB+4*hb,4)}, {v(W+(hb*2+ks)*4,4)}, {v(XB+4*ks,4)}, {c}"


def read_xb(slot, ks):
    p(f"ds_read_b128 {v(XB+4*ks,4)}, {v((RDB0, RDB1)[ks])} offset:{slot*SLOT}")


SCHED = {
    "e": "ia ib k1 ent EV mid P0 e0 e1 e2 e3 e4 e5 A0 s0 s1 L2 G0 e6 q0 t0 e7 G2 e8 q1 t1 A1 r0 q2 t2 e9 G1 r1 q3 t3 e10 G3 "
         "r2 e11 r3 c0 A2 e12 G4 r4 c1 E2 e13 r5 e14 r6 c2 e15 G6 L0 m0 r7 da A3 G5 m1 r8 db G7 P1 r9 c3 vm y0 y1 r10 c4 k0 r11 B r12 c5 "
         "r13 r14 r15 c6 c7",
    "f": "ia ib k1 ent EV mid P0 e0 e1 e2 e3 e4 e5 A0 s0 s1 L2 G0 e6 q0 t0 e7 G2 e8 q1 t1 A1 r0 q2 t2 e9 G1 r1 q3 t3 e10 G3 "
         "r2 e11 r3 c0 A2 e12 G4 r4 c1 E2 m0 L0 da e13 r5 e14 r6 c2 e15 G6 P1 r7 A3 G5 m1 r8 G7 r9 c3 db vm y0 y1 r10 c4 k0 r11 B r12 c5 "
         "r13 r14 r15 c6 c7",
    "g": "ia ib k1 ent EV mid P0 e0 e1 e2 e3 e4 e5 A0 s0 s1 L2 G0 e6 q0 t0 e7 G2 e8 q1 t1 A1 r0 q2 t2 e9 G1 r1 q3 t3 e10 G3 "
         "r2 e11 r3 c0 A2 e12 G4 r4 c1 E2 e13 r5 e14 m0 L0 da r6 c2 e15 G6 P1 r7 A3 G5 m1 r8 G7 r9 c3 db vm y0 y1 r10 c4 k0 r11 B r12 c5 "
         "r13 r14 r15 c6 c7",
    "h": "ia ib k1 ent EV mid P0 e0 e1 e2 e3 e4 e5 A0 s0 s1 L2 G0 e6 q0 t0 e7 G2 e8 q1 t1 A1 r0 q2 t2 e9 G1 r1 q3 t3 e10 G3 "
         "r2 e11 r3 c0 A2 e12 G4 r4 c1 E2 m0 L0 da m1 e13 db r5 e14 r6 c2 e15 G6 P1 r7 A3 G5 r8 G7 r9 c3 vm y0 y1 r10 c4 k0 r11 B r12 c5 "
         "r13 r14 r15 c6 c7",
    "l": "ia ib k1 ent EV mid P0 e0 e1 e2 e3 e4 e5 A0 s0 s1 L2 G0 e6 q0 t0 e7 e8 q1 t1 G2 A1 q2 t2 r0 e9 q3 t3 G1 r1 e10 G3 "
         "r2 e11 m0 L0 da m1 r3 db c0 A2 e12 G4 r4 c1 E2 e13 r5 e14 r6 c2 e15 G6 P1 r7 A3 G5 r8 G7 r9 c3 r10 c4 k0 r11 B r12 c5 "
         "r13 r14 r15 vm y0 y1 c6 c7",
    "m": "ia ib k1 ent EV mid P0 e0 e1 e2 e3 e4 e5 A0 s0 s1 e6 e7 q0 t0 e8 A1 q1 t1 e9 e10 q2 t2 e11 r0 q3 t3 vm x0 x1 A2 e12 r1 e13 r2 "
         "e14 r3 c0 e15 E2 m0 L2 da m1 c1 db A3 L0 G0 r4 G2 r5 P1 G1 r6 c2 G3 r7 r8 G4 c3 r9 G6 r10 c4 G5 r11 k0 r12 G7 c5 B r13 r14 r15 c6 c7",
    "n": "ia ib k1 ent EV mid P0 e0 e1 e2 e3 e4 e5 A0 s0 s1 vm x0 x1 e6 e7 q0 t0 e8 A1 q1 t1 e9 e10 q2 t2 e11 r0 q3 t3 A2 L4 G0 e12 r1 G2 e13 r2 "
         "e14 G1 r3 c0 e15 E2 m0 L0 da m1 c1 db A3 G3 r4 r5 P1 G4 r6 c2 r7 G6 r8 c3 r9 G5 r10 c4 r11 k0 r12 G7 c5 B r13 r14 r15 c6 c7",
    "r": "ent EV k1 mid e0 e1 e2 e3 e4 e5 A0 e6 e7 s0 s1 e8 e9 q0 A1 e10 q1 e11 e12 q2 e13 A2 q3 P0 ia ib t0 t1 t2 t3 vm x0 x1 m0 e14 e15 "
         "r0 r1 A3 r2 E2 c0 L2 da m1 db L0 G0 r3 G2 r4 c1 G1 r5 P1 G3 r6 c2 G4 r7 G6 r8 c3 G5 r9 G7 r10 c4 k0 r11 r12 c5 B r13 r14 r15 c6 c7",
    "t": "ent EV k1 mid e0 e1 e2 e3 e4 e5 A0 e6 e7 s0 s1 e8 e9 q0 A1 e10 q1 e11 e12 q2 e13 A2 q3 P0 ia ib t0 t1 t2 t3 vm x0 x1 m0 e14 e15 "
         "r0 r1 A3 r2 E2 c0 L0 G0 r3 G2 r4 c1 G1 r5 P1 G3 r6 c2 G4 r7 G6 r8 c3 G5 r9 G7 r10 c4 k0 r11 r12 c5 B r13 r14 r15 c6 c7 da m1 db",
    "u": "ent EV k1 mid ia ib m0 e0 e1 e2 e3 e4 e5 A0 e6 e7 s0 s1 L0 da m1 db e8 e9 q0 A1 e10 q1 e11 e12 q2 e13 A2 q3 P0 t0 t1 t2 t3 vm x0 x1 e14 e15 "
         "r0 r1 A3 r2 E2 c0 L0 G0 r3 G2 r4 c1 G1 r5 P1 G3 r6 c2 G4 r7 G6 r8 c3 G5 r9 G7 r10 c4 k0 r11 r12 c5 B r13 r14 r15 c6 c7",
    "v": "ent EV k1 mid ia ib m0 e0 e1 e2 e3 e4 e5 A0 e6 e7 s0 s1 e8 e9 q0 A1 e10 q1 e11 e12 q2 e13 A2 q3 L0 da m1 db P0 t0 t1 t2 t3 vm x0 x1 e14 e15 "
         "r0 r1 A3 r2 E2 c0 L0 G0 r3 G2 r4 c1 G1 r5 P1 G3 r6 c2 G4 r7 G6 r8 c3 G5 r9 G7 r10 c4 k0 r11 r12 c5 B r13 r14 r15 c6 c7",
    "w": "ent EV k1 mid e0 e1 e2 e3 e4 e5 A0 e6 e7 s0 s1 e8 e9 q0 A1 e10 q1 e11 e12 q2 e13 A2 q3 P0 ia ib t0 t1 t2 t3 vm x0 x1 m0 e14 e15 "
         "r0 r1 A3 r2 E2 c0 L6 da m1 db L0 G0 r3 G2 r4 c1 G1 r5 P1 G3 r6 c2 G4 r7 G6 r8 c3 G5 r9 G7 r10 c4 k0 r11 r12 c5 B r13 r14 r15 c6 c7",
    "x": "ent EV k1 mid ia ib m0 e0 e1 e2 e3 e4 e5 A0 e6 e7 s0 s1 e8 e9 q0 A1 e10 L0 da m1 db q1 e11 e12 q2 e13 A2 q3 P0 t0 t1 t2 t3 vm x0 x1 e14 e15 "
         "r0 r1 A3 r2 E2 c0 L0 G0 r3 G2 r4 c1 G1 r5 P1 G3 r6 c2 G4 r7 G6 r8 c3 G5 r9 G7 r10 c4 k0 r11 r12 c5 B r13 r14 r15 c6 c7",
    "w2": "ent EV k1 mid e0 e1 e2 e3 e4 e5 A0 e6 e7 s0 s1 e8 e9 q0 A1 e10 q1 e11 e12 q2 e13 A2 q3 P0 ia ib t0 t1 t2 t3 vm x0 x1 m0 e14 e15 r0 r1 A3 r2 E2 c0 L0 G0 r3 G2 r4 c1 G1 r5 P1 G3 r6 c2 G4 r7 G6 r8 c3 G5 r9 G7 da m1 db r10 c4 k0 r11 r12 c5 B r13 r14 r15 c6 c7",
    "w0": "ent EV k1 mid ia ib m0 e0 e1 e2 e3 e4 e5 A0 e6 e7 s0 s1 e8 e9 q0 A1 e10 q1 e11 e12 q2 e13 A2 q3 P0 t0 t1 t2 t3 vm x0 x1 L6 da m1 db e14 e15 "
          "r0 r1 A3 r2 E2 c0 L0 G0 r3 G2 r4 c1 G1 r5 P1 G3 r6 c2 G4 r7 G6 r8 c3 G5 r9 G7 r10 c4 k0 r11 r12 c5 B r13 r14 r15 c6 c7",
    "z": "ent EV k1 mid P0 ia ib e0 e1 e2 e3 e4 e5 A0 s0 s1 e6 e7 q0 e8 e9 q1 A1 e10 q2 e11 e12 q3 t0 t1 t2 t3 m0 e13 A2 e14 e15 L0 da m1 db r0 r1 A3 r2 c0 r3 "
         "vm x0 x1 E2 r4 c1 r5 r6 c2 L0 G0 r7 G2 r8 c3 G1 r9 P1 G3 r10 c4 G4 r11 G6 r12 c5 G5 r13 G7 r14 k0 B r15 c6 c7",
    "s": "ia ib k1 ent EV mid P0 e0 e1 e2 e3 e4 e5 A0 s0 s1 L2 G0 e6 q0 t0 e7 G2 e8 q1 t1 A1 r0 q2 t2 e9 G1 r1 q3 t3 e10 G3 "
         "r2 e11 r3 c0 A2 e12 G4 r4 c1 E2 e13 r5 e14 r6 c2 e15 G6 r7 A3 G5 r8 G7 m0 L0 da P1 m1 r9 db c3 vm y0 y1 r10 c4 k0 r11 B r12 c5 "
         "r13 r14 r15 c6 c7",
}


if opt.get("toks"):
    SCHED["cli"] = opt["toks"].replace(".", " ")
    opt["sched"] = "cli"


def event_mask():
    p(f"s_lshr_b64 {s(P0,2)}, {s(F,2)}, 2")
    p(f"s_lshr_b64 {s(H,2)}, {s(F,2)}, {LA+1}")
    p(f"s_or_b32 {s(H+1)}, {s(H)}, {s(P0)}")
    p(f"s_or_b32 {s(H)}, {s(H+1)}, {s(F)}")


PSTEP = {0: 1, 1: 4, 2: 2, 3: 8}[opt["prio"]]
assert U % PSTEP == 0


def mainloop(tag, slow, sched=None):
    toks = allt = SCHED[sched or opt["sched"]].split()

    def scale(off):
        p(f"ds_read_b32 {v(TX)}, {v(RDM)} offset:{off}")
        p("s_waitcnt lgkmcnt(0)")
        for r in range(4):
            p(f"v_bfe_u32 {v(TX+1+r)}, {v(TX)}, {8*r}, 8")
            p(f"v_lshlrev_b32 {v(TX+1+r)}, 1, {v(TX+1+r)}")
        for r in range(4):
            p(f"buffer_load_ushort {v(TX+1+r)}, {v(TX+1+r)}, {s(SM,4)}, 0 offen")
        p("s_waitcnt vmcnt(0)")
        for r in range(4):
            p(f"v_lshlrev_b32 {v(TX+1+r)}, 16, {v(TX+1+r)}")
            p(f"v_mul_f32 {v(S+r)}, {v(S+r)}, {v(TX+1+r)}")

    def flush(last=False):
        p(f"v_cvt_pk_bf16_f32 {v(TX)}, {v(ACC)}, {v(ACC)}")
        if not last:
            p(f"v_mov_b32 {v(ACC)}, 0")
        if STAMP == 1:
            p("s_memrealtime s[96:97]")
            p("s_memtime s[98:99]")
            p(f"s_lshl_b32 {s(sT0)}, {s(sK)}, 1")
            p(f"s_sub_u32 {s(sT0)}, {16+2*(KB-1)}, {s(sT0)}")
            p("s_waitcnt lgkmcnt(0)")
            p(f"s_mov_b32 m0, {s(sT0)}")
            p("v_writelane_b32 v254, s96, m0")
            p(f"s_add_u32 m0, m0, 1")
            p("v_writelane_b32 v254, s98, m0")
            p(f"s_sub_u32 {s(sK)}, {s(sK)}, 1")
        if str(opt.get("probe", "")).startswith("fl"):
            nfl[0] += 1
            p("s_add_u32 s3, s3, 1")
            p(f"s_cmp_lg_u32 s3, {int(opt['probe'][2:])}")
            p(f"s_cbranch_scc1 L_nfl{nfl[0]}")
            p("s_memrealtime s[98:99]")
            p("s_waitcnt lgkmcnt(0)")
            p(f"L_nfl{nfl[0]}:")
        p(f"ds_write_b16 {v(OADR)}, {v(TX)}")
        if last:
            return
        p(f"v_add_u32 {v(OADR)}, 128, {v(OADR)}")
        if slow:
            p(f"s_add_u32 {s(SM)}, {s(SM)}, {s(sMDL)}")
            p(f"s_addc_u32 {s(SM+1)}, {s(SM+1)}, 0")
            p(f"s_xor_b32 {s(sMDL)}, {s(sMDL)}, {MDL0 ^ MDL1:#x}")

    def emit(u, toks, tail):
        ev = opt["prio"] and u % PSTEP == 0
        for t in toks:
            k, n = t[0], (int(t[1:]) if t[1:].isdigit() else None)
            if opt.get("nodma") and t in ("da", "db"):
                continue
            if opt.get("lite") and k == "r" and n >= 16 - opt["lite"]:
                continue
            if opt.get("nocomp") and k in "ercsAGqk" and n is not None:
                continue
            if t == "vm":
                ahead = 2 if "y0" in allt else 1
                p(f"s_waitcnt vmcnt({2*(LA-ahead-(allt.index('vm') < allt.index('da')))})")
            elif k == "y":
                read_xb((u + 2) % D, n)
            elif k == "x":
                read_xb((u + 1) % D, n)
            elif t == "ent":
                if u == 0:
                    p(f"L{tag}_mid:")
            elif t in ("mid", "mi2"):
                if slow:
                    scale(u * 16 + (16 if t == "mi2" else 0))
            elif t == "ia" and opt.get("xv") and not tail:
                for j in range(opt["xv"]):
                    p(f"v_exp_f32 v255, {v(ZB+j)}")
                p(f"ds_read_u8 {v(VA)}, {v(RDL)} offset:{(u+LA)*16}")
            elif t == "ia":
                p(f"ds_read_u8 {v(VA)}, {v(RDL)} offset:{(u+LA)*16}")
            elif t == "ib":
                p(f"ds_read_u8 {v(VB)}, {v(RDL)} offset:{(u+LA)*16+8}")
            elif t == "EV":
                p(f"s_bitcmp1_b32 {s(H)}, {u}")
                p(f"s_cbranch_scc1 L{tag}_ev{u}")
                p(f"L{tag}_evd{u}:")
            elif t == "E2":
                if tail:
                    p(f"s_bitcmp0_b64 {s(F,2)}, 1")
                    p(f"s_cbranch_scc1 L{tag}_tnf")
                    flush()
                    p(f"L{tag}_tnf:")
            elif t == "P0":
                if ev:
                    p(f"ds_add_rtn_u32 {v(PRV)}, {v(PADR)}, {v(PINC)}")
            elif t == "P1":
                if ev:
                    if opt["pv"]:
                        p(f"v_cmp_gt_i32 vcc, {v(PRV)}, {v(PTH)}")
                        p("s_setprio 0")
                        p(f"s_cbranch_vccz L{tag}_lo{u}")
                    else:
                        p(f"v_readfirstlane_b32 {s(sT0)}, {v(PRV)}")
                        p("s_setprio 0")
                        p(f"s_cmp_gt_i32 {s(sT0)}, 0")
                        p(f"s_cbranch_scc0 L{tag}_lo{u}")
                    p("s_setprio 1")
                    p(f"L{tag}_lo{u}:")
            elif t == "da":
                p(dma_half(0))
            elif t == "db":
                p(dma_half(1))
            elif t == "B":
                if u == U - 1:
                    p(f"s_lshr_b64 {s(F,2)}, {s(F,2)}, {U}")
                    if not opt["swap"]:
                        p(f"s_lshl_b64 {s(P0,2)}, {s(F+2,2)}, {64-U}")
                        p(f"s_or_b64 {s(F,2)}, {s(F,2)}, {s(P0,2)}")
                        p(f"s_lshr_b64 {s(F+2,2)}, {s(F+2,2)}, {U}")
                    event_mask()
                    p(f"v_add_u32 {v(RDL)}, {16*U}, {v(RDL)}")
                    if slow:
                        p(f"v_add_u32 {v(RDM)}, {16*U}, {v(RDM)}")
            elif k == "m":
                if not (opt["m1"] and n):
                    p(m0_half((u + LA) % D, n))
            elif k == "e":
                p(f"v_exp_f32 {v(ZA+n)}, {v(ZB+n)}")
            elif k == "r":
                p(f"v_rcp_f32 {v(ZA+n)}, {v(ZA+n)}")
            elif k == "c":
                p(f"v_cvt_pk_bf16_f32 {v(ZA+n)}, {v(ZA+2*n)}, {v(ZA+2*n+1)}")
            elif k == "s":
                p(f"v_cvt_pk_bf16_f32 {v(S+n)}, {v(S+2*n)}, {v(S+2*n+1)}")
            elif k == "A":
                p(f"v_mfma_f32_4x4x4_16b_bf16 {v(ZA+4*n,4)}, {v(ONE,2)}, {v(ONE,2)}, {v(ZA+4*n,4)}")
            elif k == "G":
                p(g1(n))
            elif k == "q":
                p(f"v_mfma_f32_4x4x4_16b_bf16 {v(ACC,4)}, {v(S,2)}, {v(XT+2*n,2)}, {v(ACC,4)} cbsz:4 abid:{4*n}")
            elif k == "t":
                p(f"ds_read_b64_tr_b16 {v(XT+2*n,2)}, {v(RDT)} offset:{u%D*SLOT+n*512+(n>>1)*32}")
            elif k == "k":
                p(f"v_mfma_f32_16x16x32_bf16 {v(S,4)}, {v(ZA+4*n,4)}, {v(W2+4*n,4)}, {v(B2,4) if n == 0 else v(S,4)}")
            elif k == "L":
                p(f"s_waitcnt lgkmcnt({n})")
            else:
                raise ValueError(t)

    if tag == "f" and opt.get("al") is not None:
        p(".p2align 6")
        for _ in range(opt["al"]):
            p("s_nop 0")
    p(f"L{tag}_loop:")
    for u in range(U):
        emit(u, toks, False)
    p(f"s_branch L{tag}_loop")
    for u in range(U):
        def gather_row(lab, then_w):
            if opt["swap"]:
                p(f"s_sub_u32 {s(sKA)}, {s(sKA)}, 1")
                p(f"s_cbranch_scc0 L{tag}_ns{lab}{u}")
                p(f"s_mov_b32 {s(sU)}, {u+LA+1}")
                p(f"s_call_b64 {s(RET,2)}, L_swap")
                if toks.index("ia") < toks.index("EV"):
                    p(f"ds_read_u8 {v(VA)}, {v(RDL)} offset:{(u+LA)*16}")
                    p(f"ds_read_u8 {v(VB)}, {v(RDL)} offset:{(u+LA)*16+8}")
                if then_w:
                    p("s_waitcnt lgkmcnt(0)")
                p(f"L{tag}_ns{lab}{u}:")
            adv_hist()
        p(f"L{tag}_fl{u}:")
        flush()
        p(f"s_bitcmp0_b32 {s(H+1)}, {u}")
        p(f"s_cbranch_scc1 L{tag}_evd{u}")
        p(f"s_branch L{tag}_ev2{u}")
        p(f"L{tag}_ev{u}:")
        jit()
        p(f"s_bitcmp1_b64 {s(F,2)}, {u}")
        p(f"s_cbranch_scc1 L{tag}_fl{u}")
        p(f"L{tag}_ev2{u}:")
        p(f"s_bitcmp1_b64 {s(F,2)}, {u+2}")
        p(f"s_cbranch_scc1 L{tag}_w{u}")
        gather_row("a", False)
        p(f"s_branch L{tag}_evd{u}")
        p(f"L{tag}_w{u}:")
        p(f"s_bitcmp0_b64 {s(F,2)}, {u+LA+1}")
        p(f"s_cbranch_scc1 L{tag}_e1{u}")
        gather_row("b", True)
        p(f"L{tag}_e1{u}:")
        p(f"s_sub_u32 {s(sKW)}, {s(sKW)}, 1")
        p(f"s_cbranch_scc1 L{tag}_last{u}")
        if opt["swap"]:
            p(f"s_bitcmp0_b32 {s(sPM)}, {s(sKW)}")
            p(f"s_cbranch_scc1 L{tag}_nw{u}")
            p(f"s_cmp_eq_u32 {s(sKW)}, 3")
            p(f"s_cselect_b32 {s(sT0)}, {s(sPD)}, {s(sPD+1)}")
            p(f"v_add_u32 {v(TADR)}, {s(sT0)}, {v(TADR)}")
            p(f"v_add_u32 {v(BADR)}, {s(sT0)}, {v(BADR)}")
            t_reads()
            p("s_waitcnt lgkmcnt(0)")
            p(f"L{tag}_nw{u}:")
        wbuild()
        p(f"s_branch L{tag}_evd{u}")
    for u in range(U):
        p(f"L{tag}_last{u}:")
        if u:
            if u % D:
                p(f"v_add_u32 {v(RDT)}, {u%D*SLOT}, {v(RDT)}")
            p(f"s_lshr_b64 {s(F,2)}, {s(F,2)}, {u}")
            if slow:
                p(f"v_add_u32 {v(RDM)}, {16*u}, {v(RDM)}")
        if u < U - 1:
            p(f"s_branch L{tag}_tail")
    p(f"L{tag}_tail:")
    i1 = toks.index("EV")
    drop = lambda t: t in ("vm", "ia", "ib", "EV", "ent", "P0", "P1", "da", "db", "B", "L2", "L4", "L6", "L7") or (t[0] in "Gxym" and t[1:].isdigit())
    last = ["k1"] if toks.index("k1") > i1 else []
    emit(0, [t for t in toks[i1:] + toks[:i1] if not drop(t)] + last + ["mi2", "s0", "s1", "q0", "q1", "q2", "q3"], True)
    flush(last=True)
    if tag != "f":
        p("s_branch L_store")


p(f"{NAME}:")
if opt.get("twice"):
    p("s_mov_b32 s3, 0")
    p("L_again:")
if opt.get("spin") or opt.get("endp"):
    p("s_memrealtime s[100:101]")
    p("s_mov_b32 s3, 0")
cst("entry")
if STAMP:
    if STAMP != 4:
        p("s_memrealtime s[98:99]")
        p("s_memtime s[96:97]")
    p("s_load_dwordx2 s[100:101], s[0:1], 72")
p("s_load_dwordx16 s[4:19], s[0:1], 0")
p(f"s_cmp_ge_u32 s2, {NWG}")
p("s_cbranch_scc1 L_end")
p("v_lshrrev_b32 v1, 6, v0")
p("v_and_b32 v0, 63, v0")
p(f"v_readfirstlane_b32 {s(sw)}, v1")
if opt["map"] & 2:
    p("s_and_b32 s3, s2, 7")
    p("s_lshl_b32 s3, s3, 5")
    p(f"s_lshr_b32 {s(sW)}, s2, 3")
    p(f"s_add_u32 {s(sW)}, {s(sW)}, s3")
    p(f"s_lshl_b32 {s(sW)}, {s(sW)}, {(WGSTR//2).bit_length()-1}")
else:
    p(f"s_lshl_b32 {s(sW)}, s2, {(WGSTR//2).bit_length()-1}")
p("v_lshlrev_b32 v2, 4, v0")
p("v_lshrrev_b32 v1, 4, v0")
p("v_and_b32 v3, 0xf0, v2")
p("v_lshlrev_b32 v3, 2, v3")
p(f"v_lshl_add_u32 {v(QH)}, v1, 4, v3")
p("v_bfrev_b32 v3, 1")
p(f"s_add_u32 {s(sW)}, {s(sW)}, {s(sw)}")
p(f"s_movk_i32 {s(sT0)}, 800")
p(f"v_cmp_gt_u32 vcc, {s(sT0)}, {v(QH)}")
p(f"s_mul_i32 {s(sOFF)}, {s(sW)}, 800")
p(f"s_mul_i32 {s(sLB)}, {s(sw)}, {REG}")
p(f"s_mov_b64 {s(EX50,2)}, vcc")
p(f"v_cndmask_b32 v3, v3, {v(QH)}, vcc")
p(f"v_and_b32 {v(TX+2)}, 16, v0")
p(f"v_lshlrev_b32 {v(TX)}, 1, {v(TX+2)}")
p(f"v_xor_b32 {v(TX)}, {v(TX)}, v2")
p(f"v_and_b32 {v(VOUT)}, 0xf0, v2")
p(f"v_lshl_add_u32 {v(VOUT)}, v1, {LGP+7}, {v(VOUT)}")
p(f"s_lshl_b32 {s(sT0)}, {s(sW)}, 8")
p(f"v_add_u32 {v(VOUT)}, {s(sT0)}, {v(VOUT)}")
p(f"s_lshl_b32 {s(sT1)}, {s(sw)}, 12")
p(f"s_add_u32 m0, {s(sLB)}, {TB}")
p(f"s_mov_b32 {s(SM+2)}, {16384*400}")
p(f"s_mov_b32 {s(SM+3)}, 0x20000")
p("s_waitcnt lgkmcnt(0)")
cst("kernarg")
if STAMP and STAMP != 4:
    p("v_mov_b32 v254, 0")
    p("v_writelane_b32 v254, s98, 0")
    p("v_writelane_b32 v254, s96, 32")
    nstamp[0] = 1
    stamp()
p(f"s_mov_b32 {s(SM)}, s8")
p(f"s_and_b32 {s(SM+1)}, s9, 0xffff")
if opt["ym"]:
    p(f"s_cmp_ge_u32 {s(sw)}, 4")
    p("s_cbranch_scc1 L_young0")
p(f"buffer_load_dwordx4 {v(MSK,4)}, v3, {s(SM,4)}, {s(sOFF)} offen {NTM}")
p("L_young0:")
if opt.get("xs"):
    for j in range(opt["xs"]):
        p("s_nop 15")
p(f"global_load_lds_dwordx4 {v(VOUT)}, s[4:5] {NTM}")
p(f"s_add_u32 m0, {s(sLB)}, {STG}")
p(f"s_add_u32 s10, s10, {s(sT1)}")
p("s_addc_u32 s11, s11, 0")
p(f"v_xor_b32 {v(TX+1)}, 64, {v(TX)}")
if opt.get("nsw"):
    p(f"v_mov_b32 {v(TX)}, v2")
    p(f"v_mov_b32 {v(TX+1)}, v2")
for j in range(4):
    p(f"global_load_lds_dwordx4 {v(TX+(j&1))}, s[10:11] offset:{j*1024}")
p(f"s_load_dword {s(sB2)}, s[16:17], 0")
p(f"s_and_b32 {s(sT1)}, {s(sw)}, 3")
B1R, W2R = CD + 28, DG


def load_b1():
    p(f"s_and_b32 {s(sT0)}, {s(sw)}, 3")
    p(f"s_lshl_b32 {s(sT0)}, {s(sT0)}, 5")
    p(f"v_lshl_add_u32 {v(TX+3)}, v1, 3, {s(sT0)}")
    p(f"global_load_dwordx2 {v(B1R,2)}, {v(TX+3)}, s[12:13]")


if not opt["ym"]:
    load_b1()
p(f"v_and_b32 {v(TX+4)}, 3, v0")
NVM = 11
if opt.get("arr"):
    cst("arr_issued")
    for n_out in (5, 4, 3, 2, 1, 0):
        p(f"s_waitcnt vmcnt({n_out})")
        cst(f"arr{n_out}")
stamp()
srd(SH, 6, 200, stride=128)
if opt["m1"]:
    p(f"s_sub_u32 {s(SH2)}, {s(SH)}, 1056")
    p(f"s_subb_u32 {s(SH2+1)}, {s(SH+1)}, 0")
    p(f"s_mov_b32 {s(SH2+2)}, 200")
    p(f"s_mov_b32 {s(SH2+3)}, 0x20000")


def list_reset():
    p(f"s_mul_i32 {s(sRO)}, {s(sW)}, 51200")
    p(f"s_movk_i32 {s(sDL)}, {DLT0}")
    if opt["swap"]:
        p(f"s_mov_b32 {s(sKA)}, {KB-5}")
    p(f"s_mov_b64 {s(F,2)}, 0")
    if not opt["swap"]:
        p(f"s_mov_b64 {s(F+2,2)}, 0")
    for j in range(4):
        p(f"v_mov_b32 {v(ZB+j)}, -1")
    p(f"s_add_u32 {s(sT0)}, {s(sLB)}, {LI}")
    p(f"v_add_u32 {v(ZB+4)}, {s(sT0)}, v2")
    p(f"ds_write_b128 {v(ZB+4)}, {v(ZB,4)}")
    p(f"ds_write_b128 {v(ZB+4)}, {v(ZB,4)} offset:1024")
    p(f"s_add_u32 {s(sBASE)}, {s(sLB)}, {L0}")


list_reset()
for j in range(5, 2 * D):
    p(f"v_mov_b32 {v(ZB+j)}, -1")
p(f"v_lshrrev_b32 {v(RDL)}, 3, v0")
p(f"v_add_u32 {v(RDL)}, {s(sBASE)}, {v(RDL)}")
p(f"v_lshl_add_u32 {v(RDM)}, v1, 2, {s(sT0)}")
p(f"v_and_b32 {v(VA+1)}, 0x70, v2")
p(f"v_lshlrev_b32 {v(TX+2)}, 2, {v(TX+2)}")
p(f"v_xor_b32 {v(VA+1)}, {v(VA+1)}, {v(TX+2)}")
p(f"v_mov_b32 {v(VB+1)}, {v(VA+1)}")
lane_mask = lambda f: sum(1 << i for i in range(64) if f(i & 15, i >> 4))


def smask(dst, m):
    p(f"s_mov_b32 {s(dst)}, {m & 0xffffffff:#x}")
    p(f"s_mov_b32 {s(dst+1)}, {m >> 32:#x}")


p(f"s_movk_i32 {s(sT0)}, 400")
p(f"v_cmp_le_u32 vcc, {s(sT0)}, {v(QH)}")
p(f"v_lshrrev_b32 {v(QV)}, 1, {v(QH)}")
p(f"s_movk_i32 {s(sT0)}, -200")
p(f"v_cndmask_b32 {v(QH)}, 0, 1, vcc")
p(f"v_mad_i32_i24 {v(QV)}, {v(QH)}, {s(sT0)}, {v(QV)}")
p(f"v_mul_u32_u24 {v(QV+1)}, 0x10001, {v(QV)}")
p(f"v_add_u32 {v(QV)}, 0x10000, {v(QV+1)}")
p(f"v_add_u32 {v(QV+2)}, 0x50004, {v(QV+1)}")
p(f"v_add_u32 {v(QV+3)}, 0x70006, {v(QV+1)}")
p(f"v_add_u32 {v(QV+1)}, 0x30002, {v(QV+1)}")
p(f"v_mov_b32 {v(NBA)}, {CNT:#x}")
smask(P0, lane_mask(lambda m, g: (m >> 2) >= g))
smask(P1, lane_mask(lambda m, g: (m >> 2) > g))
smask(P2, lane_mask(lambda m, g: (m >> 2) == g))
smask(NB, lane_mask(lambda m, g: (m & 3) == 0 or (m, g) == (1, 0)))
for x in range(2):
    p(f"v_cndmask_b32 {v(AP+x)}, 0, {v(NBA)}, {s(P0,2)}")
    p(f"v_cndmask_b32 {v(AP+4+x)}, 0, {v(NBA)}, {s(P1,2)}")
for x in range(4):
    p(f"v_cndmask_b32 {v(AT+x)}, 0, {v(NBA)}, {s(NB,2)}")
p(f"v_lshlrev_b32 {v(TX)}, 4, {v(TX+4)}")
p(f"v_sub_u32 {v(TX)}, 48, {v(TX)}")
smask(P0, 0x00F0BFE0BFE0BFE0)
p(f"v_lshrrev_b64 {v(AP+2,2)}, {v(TX)}, {s(P0,2)}")
p(f"v_mov_b32 {v(NBA)}, 0")
p(f"s_mov_b64 {s(NB,2)}, 0")
for x in range(2):
    p(f"v_cndmask_b32 {v(AP+2+x)}, {v(AP+4+x)}, {v(AP+2+x)}, {s(P2,2)}")
if STAMP:
    p(f"s_mov_b32 {s(sK)}, {KB-1}")
p(f"s_mov_b32 {s(sKW)}, {KB-1}")
p(f"s_mov_b32 {s(sC)}, {CNEG:#x}")
n_, r_, c_ = TX + 5, TX + 6, TX + 4
p(f"v_and_b32 {v(n_)}, 15, v0")
p(f"v_bfe_u32 {v(r_)}, v0, 2, 2")
X0 = TX + 7
SA, SC_, SB_, TBA, BWA = CA + 60, CA + 61, CA + 62, CA + 63, CD + 30
IDN, N0M = DG + 2, DG + 4
p(f"v_lshlrev_b32 {v(X0)}, 3, {v(c_)}")
p(f"v_lshl_add_u32 {v(X0)}, {v(r_)}, 7, {v(X0)}")
p(f"v_and_b32 {v(TX)}, 24, v0")
p(f"v_lshlrev_b32 {v(TX)}, 2, {v(TX)}")
p(f"v_xor_b32 {v(TX)}, {v(X0)}, {v(TX)}")
p(f"v_lshl_add_u32 {v(TX)}, v1, 10, {v(TX)}")
p(f"s_lshl_b32 {s(sT0)}, {s(sT1)}, 5")
p(f"v_xor_b32 {v(SB_)}, {s(sT0)}, {v(TX)}")
p(f"v_add_u32 {v(SB_)}, {STG+2*REG}, {v(SB_)}")
p(f"s_lshr_b32 {s(sT0)}, {s(sw)}, 1")
p(f"s_lshl_b32 {s(sT0)}, {s(sT0)}, 5")
p(f"v_xor_b32 {v(SA)}, {s(sT0)}, {v(TX)}")
p(f"s_and_b32 {s(sT0)}, {s(sw)}, 1")
p(f"s_mul_i32 {s(sT0)}, {s(sT0)}, {REG}")
p(f"s_add_u32 {s(sT0)}, {s(sT0)}, {STG}")
p(f"v_add_u32 {v(SA)}, {s(sT0)}, {v(SA)}")
p(f"v_add_u32 {v(SC_)}, {4*REG}, {v(SA)}")
p(f"s_and_b32 {s(sT0)}, {s(sw)}, 4")
p(f"v_lshrrev_b32 {v(TX)}, 3, {v(n_)}")
p(f"v_add_u32 {v(TX)}, {s(sT0)}, {v(TX)}")
p(f"v_mul_u32_u24 {v(TX)}, {REG}, {v(TX)}")
p(f"v_lshl_add_u32 {v(TX)}, v1, 4, {v(TX)}")
p(f"v_and_b32 {v(TX+1)}, 7, v0")
p(f"v_lshl_add_u32 {v(TBA)}, {v(TX+1)}, 7, {v(TX)}")


def gRDB():
    p(f"v_and_b32 {v(TX+1)}, 8, v0")
    p(f"v_lshlrev_b32 {v(TX+1)}, 2, {v(TX+1)}")
    p(f"v_lshl_add_u32 {v(TX+1)}, {v(n_)}, 7, {v(TX+1)}")
    p(f"v_add_u32 {v(TX+1)}, {s(sLB)}, {v(TX+1)}")
    p(f"v_and_b32 {v(TX+2)}, 2, v0")
    p(f"v_lshlrev_b32 {v(TX+2)}, 1, {v(TX+2)}")
    p(f"v_xor_b32 {v(TX+2)}, {v(TX+2)}, v1")
    p(f"v_lshl_add_u32 {v(RDB0)}, {v(TX+2)}, 4, {v(TX+1)}")
    p(f"v_xor_b32 {v(TX+2)}, 4, {v(TX+2)}")
    p(f"v_lshl_add_u32 {v(RDB1)}, {v(TX+2)}, 4, {v(TX+1)}")


def gRDT():
    p(f"v_and_b32 {v(TX+1)}, 8, v0")
    p(f"v_lshlrev_b32 {v(TX+1)}, 3, {v(TX+1)}")
    p(f"v_lshl_add_u32 {v(TX+2)}, v1, 5, {v(X0)}")
    p(f"v_xor_b32 {v(TX+2)}, {v(TX+2)}, {v(TX+1)}")
    p(f"v_add_u32 {v(RDT)}, {s(sLB)}, {v(TX+2)}")


def gTAD():
    p(f"s_add_u32 {s(sT0)}, {s(sLB)}, {TB}")
    p(f"v_lshl_add_u32 {v(TADR)}, {v(c_)}, 1, {s(sT0)}")
    p(f"v_lshl_add_u32 {v(TADR)}, {'v1' if W44 else v(r_)}, 4, {v(TADR)}")
    p(f"s_add_u32 {s(sT0)}, {s(sLB)}, {OUTS}")
    p(f"v_lshl_add_u32 {v(OADR)}, v0, 1, {s(sT0)}")
    p(f"s_add_u32 {s(sT0)}, {s(sLB)}, {BI}")
    p(f"v_lshl_add_u32 {v(BADR)}, v1, 4, {s(sT0)}")


def gBWA():
    p(f"s_and_b32 {s(sT0)}, {s(sw)}, 3")
    p(f"s_lshl_b32 {s(sT0)}, {s(sT0)}, 6")
    p(f"s_add_u32 {s(sT0)}, {s(sT0)}, {BI}")
    p(f"v_and_b32 {v(TX+1)}, 7, v0")
    p(f"v_mul_u32_u24 {v(TX+1)}, {BSTR-128}, {v(TX+1)}")
    p(f"v_add3_u32 {v(BWA)}, {v(TBA)}, {v(TX+1)}, {s(sT0)}")


def gSEL():
    if not W44:
        p(f"v_cmp_eq_u32 vcc, {v(r_)}, v1")
    p(f"v_and_b32 {v(TX+1)}, 1, v0")
    p(f"v_lshlrev_b32 {v(TX+1)}, 4, {v(TX+1)}")
    p(f"v_lshlrev_b32 {v(TX+1)}, {v(TX+1)}, 1")
    if not W44:
        p(f"v_cndmask_b32 {v(TX+1)}, 0, {v(TX+1)}, vcc")
    p(f"v_cmp_gt_u32 vcc, 2, {v(c_)}")
    p(f"v_mov_b32 {v(ONE+1)}, 0")
    p(f"v_mov_b32 {v(ONE)}, 0x3f80")
    p(f"v_cndmask_b32 {v(SEL0)}, 0, {v(TX+1)}, vcc")
    p(f"v_cmp_eq_u32 vcc, 0, {v(n_)}")
    p(f"v_sub_u32 {v(SEL1)}, {v(TX+1)}, {v(SEL0)}")
    p(f"v_mul_u32_u24 {v(IDN)}, 0x3f80, {v(SEL0)}")
    p(f"v_cndmask_b32 {v(N0M)}, 0, -1, vcc")
    p(f"v_mul_u32_u24 {v(IDN+1)}, 0x3f80, {v(SEL1)}")


def gZER():
    for j in range(8):
        p(f"v_mov_b32 {v(XT+j)}, 0")
    for j in range(4):
        p(f"v_mov_b32 {v(S+j)}, 0")
        p(f"v_mov_b32 {v(ACC+j)}, 0")


def gB2():
    p(f"s_lshl_b32 {s(sB2)}, {s(sB2)}, 16")
    for r in range(4):
        p(f"v_and_b32 {v(B2+r)}, {s(sB2)}, {v(N0M)}")


def gPRI():
    if opt["prio"]:
        p(f"s_add_u32 {s(sT0)}, {s(sLB)}, {PRG}")
        p(f"v_lshl_add_u32 {v(DG+5)}, v0, 2, {s(sT0)}")
        p(f"ds_write_b32 {v(DG+5)}, {v(ONE+1)}")
        p(f"s_xor_b32 {s(sT0)}, {s(sw)}, 4")
        p(f"s_mul_i32 {s(sT0)}, {s(sT0)}, {REG}")
        p(f"s_add_u32 {s(sT0)}, {s(sT0)}, {PRG}")
        p(f"v_writelane_b32 {v(DG+5)}, {s(sT0)}, 1")
    if opt["swap"]:
        p(f"v_add_u32 {v(DG+6)}, {s(sLB)}, v2")
        p("s_mov_b64 exec, 15")
        p(f"ds_write_b32 {v(DG+6)}, {v(ONE+1)} offset:{KEY}")
        p("s_mov_b64 exec, -1")


PLACE = dict(zip((gSEL, gBWA, gPRI, gB2, gRDB, gRDT, gTAD, gZER), (int(x) for x in str(opt["place"])[1:])))


def groups(k):
    for f, w_ in PLACE.items():
        if w_ == k:
            f()


groups(0)
if opt["ym"]:
    load_b1()
    p(f"s_cmp_ge_u32 {s(sw)}, 4")
    p("s_cbranch_scc0 L_old3z")
    p(f"buffer_load_dwordx4 {v(MSK,4)}, v3, {s(SM,4)}, {s(sOFF)} offen {NTM}")
    p("L_old3z:")


def late_loads():
    if opt["tlb"]:
        p(f"s_add_u32 {s(sT0)}, {s(sw)}, 1")
        p(f"s_and_b32 {s(sT0)}, {s(sT0)}, 6")
        p("s_cbranch_scc1 L_notouch")
        p(f"s_mov_b32 {s(sT0)}, {PSTR*25600}")
        p(f"v_mul_lo_u32 v255, v0, {s(sT0)}")
        p(f"s_mul_i32 {s(sT0)}, {s(sW)}, 51200")
        p(f"s_and_b32 {s(sT1)}, {s(sw)}, 1")
        p(f"s_mul_i32 {s(sT1)}, {s(sT1)}, {51200-128}")
        p(f"s_add_u32 {s(sT0)}, {s(sT0)}, {s(sT1)}")
        p(f"v_add_u32 v255, {s(sT0)}, v255")
        p("s_mov_b64 exec, 14")
        p(f"global_load_dword v255, v255, s[6:7] {NT}")
        p("s_mov_b64 exec, -1")
        p("L_notouch:")
    for j in range(1, 4):
        p(f"s_add_u32 {s(sOFF)}, {s(sOFF)}, {PSTR*400}")
        p(f"buffer_load_dwordx4 {v(MSK+4*j,4)}, v3, {s(SM,4)}, {s(sOFF)} offen {NTM}")
    p(f"v_lshlrev_b32 {v(TX+3)}, 3, v1")
    p(f"v_lshl_add_u32 {v(TX+3)}, {v(TX+4)}, 5, {v(TX+3)}")
    p(f"global_load_dwordx2 {v(W2R,2)}, {v(TX+3)}, s[14:15]")


G2 = opt["g2"]
if not G2:
    late_loads()
LL = 0 if G2 else 4
NE = D - 2
IDX = ZB


def idx_reads():
    for t in range(LA):
        p(f"ds_read_u8 {v(IDX+2*t)}, {v(RDL)} offset:{t*16}")
        p(f"ds_read_u8 {v(IDX+2*t+1)}, {v(RDL)} offset:{t*16+8}")


def tiles(t0, t1, bits, tag):
    for t in range(t0, t1):
        if t > 0:
            p(f"s_bitcmp0_b64 {s(bits,2)}, {t+1}")
            p(f"s_cbranch_scc1 L_noadv{tag}{t}")
            adv_hist()
            if opt["swap"]:
                p(f"s_sub_u32 {s(sKA)}, {s(sKA)}, 1")
            p(f"L_noadv{tag}{t}:")
        p(m0_half(t, 0))
        p(f"v_mov_b32 {v(VA)}, {v(IDX+2*t)}")
        p(f"v_mov_b32 {v(VB)}, {v(IDX+2*t+1)}")
        p(dma_half(0))
        if not opt["m1"]:
            p(m0_half(t, 1))
            p("s_nop 0")
        p(dma_half(1))


issued = [0]


def early(n):
    if n == 0:
        return
    t0 = issued[0]
    p(f"s_cmp_eq_u32 {s(sEARLY)}, 0")
    p(f"s_cbranch_scc1 L_skip{t0}")
    tiles(t0, t0 + n, F, "e")
    p(f"L_skip{t0}:")
    issued[0] += n


def x5tile():
    p(f"ds_read_u8 {v(VA)}, {v(RDL)} offset:{D*16}")
    p(f"ds_read_u8 {v(VB)}, {v(RDL)} offset:{D*16+8}")
    p(f"s_add_u32 m0, {s(sLB)}, {LI-2176}")
    p("s_waitcnt lgkmcnt(0)")
    p(dma_half(0))
    p(dma_half(1))


def first_pair():
    q_total(0, 0)
    t = q_test(0)
    for x in t[:8]:
        p(x)
    for step in range(5):
        p(q_scan(0, step))
        for x in t[8 + step:9 + step]:
            p(x)
    p(f"v_cmp_ne_u32 vcc, 0, {v(NBA)}")
    q_lanes(0)
    p(f"s_mov_b32 {s(sEARLY)}, 0")
    p("s_cbranch_vccnz L_late")
    q_ranks(0, 0)
    p(f"s_add_u32 {s(sT0)}, {s(sLB)}, {L0+16*LA}")
    p(f"s_cmp_ge_u32 {s(sBASE)}, {s(sT0)}")
    q_write(0)
    p("s_cbranch_scc0 L_late")
    p(f"s_mov_b32 {s(sEARLY)}, 1")
    idx_reads()
    p("s_waitcnt lgkmcnt(0)")
    tiles(0, NE, F, "e")
    if opt.get("x5") == 2:
        x5tile()
    p(f"s_setpc_b64 {s(RET,2)} ; ret=L_fp")
    p("L_late:")
    p("s_waitcnt vmcnt(0)")
    p(f"s_setpc_b64 {s(RET,2)} ; ret=L_fp")


stamp()
jit()
if not opt["yf"]:
    p(f"s_cmp_ge_u32 {s(sw)}, 4")
    p("s_cbranch_scc1 L_young1")
p(f"s_waitcnt vmcnt({6+LL}) lgkmcnt(0)")
p(f"s_call_b64 {s(RET,2)}, L_fp")
p(f"s_waitcnt vmcnt({1+LL+2*NE})")
p("s_branch L_old1")
p("L_young1:")
p(f"s_waitcnt vmcnt({1+LL+opt['ym']})")
p("L_old1:")
cst("preB1")
p(f"s_waitcnt lgkmcnt(0)")
p("s_barrier")
stamp()
cst("B1")
jit()
RWA, RWC, RWD, RBB, RBC, TP, DB, DA, DD = CA, CA + 4, CA + 8, CA + 12, CA + 20, CA + 28, CA + 44, CA + 52, CD
for (dst, base) in ((RBB, 0), (RBC, 2)):
    for ks in range(2):
        for u in range(2):
            p(f"ds_read_b64_tr_b16 {v(dst+4*ks+2*u,2)}, {v(SB_)} offset:{(base+ks)*REG+u*512}")
for j in range(2):
    for ks in range(2):
        p(f"ds_read_b128 {v(TP+8*j+4*ks,4)}, {v(TBA)} offset:{TB+j*2*REG+ks*64}")
for u in range(2):
    p(f"ds_read_b64_tr_b16 {v(RWA+2*u,2)}, {v(SA)} offset:{u*512}")
    p(f"ds_read_b64_tr_b16 {v(RWC+2*u,2)}, {v(SC_)} offset:{u*512}")
    p(f"ds_read_b64_tr_b16 {v(RWD+2*u,2)}, {v(SC_)} offset:{2*REG+u*512}")
if not opt["yf"]:
    p(f"s_cmp_ge_u32 {s(sw)}, 4")
    p("s_cbranch_scc1 L_young2")
p(f"s_waitcnt vmcnt({LL+2*NE})")
p("s_branch L_old2")
p("L_young2:")
p(f"s_waitcnt vmcnt({LL+opt['ym']})")
p("L_old2:")
if G2 == 1:
    late_loads()
for j in range(2):
    p(f"v_lshlrev_b32 {v(DB+2*j)}, 16, {v(B1R+j)}")
    p(f"v_and_b32 {v(DB+2*j+1)}, 0xffff0000, {v(B1R+j)}")
groups(1)
jit()
cst("firstpair")
p("s_waitcnt lgkmcnt(0)")
for j in range(8):
    p(f"v_xor_b32 {v(RBC+j)}, 0x80008000, {v(RBC+j)}")
for u in range(2):
    p(f"{DIAGMM} {v(DA+4*u,4)}, {v(IDN,2)}, {v(RWA+2*u,2)}, 0")
    p(f"{DIAGMM} {v(DD+4*u,4)}, {v(IDN,2)}, {v(RWD+2*u,2)}, 0")
for u in range(2):
    p(f"{DIAGMM} {v(DA+4*u,4)}, {v(IDN,2)}, {v(RWC+2*u,2)}, {v(DA+4*u,4)}")
if G2 == 3:
    late_loads()
for j in (1, 0):
    first = True
    for (src) in (RBB, RBC):
        for ks in range(2):
            c = v(DB, 4) if first else v(DB + 4 * j, 4)
            p(f"v_mfma_f32_16x16x32_bf16 {v(DB+4*j,4)}, {v(src+4*ks,4)}, {v(TP+8*j+4*ks,4)}, {c}")
            first = False
for j in range(8):
    p(f"v_mul_f32 {v(DA+j)}, {s(sC)}, {v(DA+j)}")
for j in range(8):
    p(f"v_mul_f32 {v(DD+j)}, {s(sC)}, {v(DD+j)}")
p(f"s_add_u32 {s(sT0)}, {s(sLB)}, {XCH}")
if G2 == 2:
    p(f"v_mov_b32 {v(TX+2)}, v3")
p(f"v_add_u32 v3, {s(sT0)}, v2")
for j in range(4):
    p(f"v_cvt_pk_bf16_f32 {v(DD+j)}, {v(DD+2*j)}, {v(DD+2*j+1)}")
for j in range(8):
    p(f"v_mul_f32 {v(DB+j)}, {s(sC)}, {v(DB+j)}")
p(f"ds_write_b128 v3, {v(DA,4)}")
p(f"ds_write_b128 v3, {v(DA+4,4)} offset:1024")
p(f"ds_write_b128 v3, {v(DD,4)} offset:2048")
p(f"ds_write_b128 {v(BWA)}, {v(DB,4)}")
p(f"ds_write_b128 {v(BWA)}, {v(DB+4,4)} offset:{2*REG}")
if G2 == 2:
    p(f"v_mov_b32 {v(TX+1)}, v3")
    p(f"v_mov_b32 v3, {v(TX+2)}")
    late_loads()
p(f"v_add_u32 v3, {XCH}, v2")
p(f"v_add_u32 {v(TX)}, {4*REG}, v3")
cst("preB3")
p("s_waitcnt lgkmcnt(0)")
p("s_barrier")
cst("B3")
jit()
stamp()
def const_reads(w0, w1):
    if opt.get("xc"):
        return
    for w_ in range(w0, w1):
        a = "v3" if w_ < 4 else v(TX)
        p(f"ds_read_b128 {v(CA+8*w_,4)}, {a} offset:{(w_&3)*REG}")
        p(f"ds_read_b128 {v(CA+8*w_+4,4)}, {a} offset:{(w_&3)*REG+1024}")
        p(f"ds_read_b128 {v(CD+4*w_,4)}, {a} offset:{(w_&3)*REG+2048}")


if opt["yf"]:
    assert not opt["ym"] and not opt["y2"]
    p("s_branch L_old3")
p(f"s_cmp_ge_u32 {s(sw)}, 4")
p("s_cbranch_scc0 L_old3")
if opt["yp"]:
    p("s_setprio 2")
if opt["ym"]:
    p("s_waitcnt vmcnt(4)")
p(f"s_call_b64 {s(RET,2)}, L_fp")
if opt["y2"]:
    p("s_branch L_yng3")
p("L_old3:")
p(f"s_call_b64 {s(RET,2)}, L_t23")
p("L_yng3:")
const_reads(0, 3)
groups(2)
p(f"s_waitcnt vmcnt({2*min(NE, LA-NE) if opt['y2'] or G2 else 2*LA})")
cst("tiles23")
for i in range(3):
    q_total(i, i + 1)
t = q_test(1) + q_test(2) + q_test(3)
for x in t[:9]:
    p(x)
for step in range(5):
    for i in range(3):
        p(q_scan(i, step))
const_reads(3, 5)
for x in t[9:]:
    p(x)
p(f"v_cmp_ne_u32 vcc, 0, {v(NBA)}")
for i in range(3):
    q_lanes(i)
p("s_cbranch_vccnz L_general")
q_ranks(0, 1)
q_ranks(1, 2)
q_write(0)
q_ranks(2, 3)
q_write(1)
const_reads(5, 8)
t_reads()
q_write(2)
if opt["y2"]:
    p(f"s_cmp_ge_u32 {s(sw)}, 4")
    p("s_cbranch_scc0 L_old3b")
    p(f"s_call_b64 {s(RET,2)}, L_t23")
    p("L_old3b:")
p("L_listed:")
stamp()
jit(True)
if opt["swap"]:
    p(f"s_and_b32 {s(sT2)}, {s(NB)}, 0x40000000")
    p(f"s_or_b32 {s(sT2)}, {s(sT2)}, {s(sw)}")
    p(f"s_bitset1_b32 {s(sT2)}, 31")
    for r, src in ((sT0, A0 + 6), (sT1, A0 + 10)):
        p(f"s_and_b32 {s(r)}, {s(src)}, 0x1ff")
        p(f"s_lshl_b32 {s(r)}, {s(r)}, 3")
        p(f"s_or_b32 {s(r)}, {s(r)}, {s(sT2)}")
    for x, r in enumerate((sT0, sCUR, sM2, sB3)):
        p(f"v_mov_b32 {v(ZA+x)}, {s(r)}")
    for x, r in enumerate((sT1, sB3, sM3, sE3)):
        p(f"v_writelane_b32 {v(ZA+x)}, {s(r)}, 1")
    p("s_mov_b64 exec, 3")
    p(f"ds_write_b128 {v(DG+6)}, {v(ZA,4)} offset:{KEY}")
    p("s_mov_b64 exec, -1")
    p(f"s_sub_u32 {s(sSZ)}, {s(sB3)}, {s(sCUR)}")
    p(f"s_sub_u32 {s(sSZ+1)}, {s(sE3)}, {s(sB3)}")
    p(f"s_lshl_b32 {s(sOW)}, {s(sw)}, 3")
    p(f"s_mov_b32 {s(sRND)}, 0")
    p(f"s_mov_b32 {s(sPM)}, 0")
if opt["prio"]:
    step = 2 * PSTEP
    p(f"s_sub_u32 {s(sT0)}, {s(sBASE)}, {s(sLB)}")
    p(f"s_sub_u32 {s(sT0)}, {s(sT0)}, {L0}")
    p(f"s_lshr_b32 {s(sT0)}, {s(sT0)}, 3")
    if opt["bias"]:
        p(f"s_lshr_b32 {s(sT1)}, {s(sw)}, 2")
        p(f"s_mul_i32 {s(sT1)}, {s(sT1)}, {2*opt['bias']}")
        p(f"s_add_u32 {s(sT0)}, {s(sT0)}, {s(sT1)}")
    p(f"s_sub_u32 {s(sT1)}, 0, {s(sT0)}")
    p(f"v_mov_b32 {v(PADR)}, {v(DG+5)}")
    p(f"v_mov_b32 {v(PRV)}, {s(sT0)}")
    p(f"v_mov_b32 {v(PINC)}, {-step}")
    p(f"v_writelane_b32 {v(PRV)}, {s(sT1)}, 1")
    p(f"v_writelane_b32 {v(PINC)}, {step}, 1")
    p(f"ds_add_u32 {v(PADR)}, {v(PRV)}")
    if opt["pv"]:
        p(f"v_bfrev_b32 {v(PTH)}, -2")
        p(f"v_writelane_b32 {v(PTH)}, 0, 0")
p(f"s_cmp_eq_u32 {s(sEARLY)}, 1")
p("s_cbranch_scc1 L_nolate")
idx_reads()
p("s_waitcnt lgkmcnt(0)")
tiles(0, LA, F, "l")
p("L_nolate:")
for hb in range(4):
    for j in range(2):
        p(f"v_and_b32_dpp {v(W2+2*hb+j)}, {v(W2R+j)}, {v(N0M)} quad_perm:[{hb},{hb},{hb},{hb}] row_mask:0xf bank_mask:0xf")
if opt.get("xp"):
    for j in range(opt["xp"]):
        p("s_nop 15")
cst("precompactdone")
p(f"s_waitcnt vmcnt({2*(LA-1)}) lgkmcnt(0)")
read_xb(0, 0)
read_xb(0, 1)
wbuild(opt["fg"])
stamp()
stamp(33)
cst("wbuilt")
if STAMP == 4:
    p("s_waitcnt lgkmcnt(0)")
    p("v_mov_b32 v254, 0")
    for j, r in enumerate((38,80,82,96,98,44,46,48,50,16)):
        p(f"v_writelane_b32 v254, s{r}, {j}")
if not opt["fg"]:
    for j in range(8):
        p(g1(j))
if "y0" in SCHED[opt["sched"]]:
    p(f"s_waitcnt vmcnt({2*(LA-2)})")
    read_xb(1, 0)
    read_xb(1, 1)
_t = SCHED[opt["sched"]].split()
if _t.index("ia") < _t.index("EV"):
    p(f"ds_read_u8 {v(VA)}, {v(RDL)} offset:{LA*16}")
    p(f"ds_read_u8 {v(VB)}, {v(RDL)} offset:{LA*16+8}")
if _t.index("k1") > _t.index("EV"):
    for j in range(4, 8):
        p(f"v_mov_b32 {v(ZA+j)}, 0")
if opt.get("x5"):
    p("s_waitcnt lgkmcnt(0)")
    p(f"v_mov_b32 {v(VA)}, 0xff")
    p(f"v_mov_b32 {v(VB)}, 0xff")
event_mask()
p(f"s_cmp_lg_u64 {s(NB,2)}, 0")
if opt.get("so"):
    p("s_cbranch_scc1 L_gen2")
    p(f"s_getreg_b32 {s(sT0)}, hwreg(HW_REG_XCC_ID, 0, 1)")
    p(f"s_cmp_eq_u32 {s(sT0)}, 0")
    p("s_cbranch_scc1 Lf_mid")
    p("s_branch Lo_mid")
    p("L_gen2:")
else:
    p("s_cbranch_scc0 Lf_mid")
p(f"s_mul_i32 {s(sT0)}, {s(sW)}, 800")
p(f"s_add_u32 s8, s8, {s(sT0)}")
p("s_addc_u32 s9, s9, 0")
srd(SM, 8, 400)
p(f"s_movk_i32 {s(sMDL)}, {MDL0}")
p("s_branch Ls_mid")
p("L_fp:")
first_pair()
if opt["swap"]:
    A_, B_, KB_, TK_, KA_ = ZA + 8, ZA + 9, ZA + 10, ZA + 11, ZA + 12
    p("L_swap:")
    p(f"v_lshrrev_b32 {v(A_)}, 3, v0")
    p(f"v_and_b32 {v(B_)}, 7, v0")
    p(f"v_mul_u32_u24 {v(A_)}, {REG}, {v(A_)}")
    p(f"v_mul_u32_u24 {v(B_)}, {REG}, {v(B_)}")
    p(f"v_add_u32 {v(A_)}, {s(sRND)}, {v(A_)}")
    p(f"v_add_u32 {v(B_)}, {s(sRND)}, {v(B_)}")
    p(f"v_mov_b32 {v(TK_)}, 1")
    p("s_mov_b64 exec, 1")
    p(f"ds_add_rtn_u32 {v(TK_)}, {v(A_)}, {v(TK_)} offset:{TKT}")
    p("s_mov_b64 exec, -1")
    p("L_swap_poll:")
    p(f"ds_read_b32 {v(KB_)}, {v(B_)} offset:{KEY}")
    p(f"ds_read_b128 {v(KA_,4)}, {v(A_)} offset:{KEY}")
    p(f"v_and_b32 {v(TX+2)}, 56, v0")
    p("s_waitcnt lgkmcnt(0)")
    p(f"v_cmp_le_i32 vcc, 0, {v(KB_)}")
    p(f"v_cmp_gt_u32 {s(P0,2)}, {v(KB_)}, {v(KA_)}")
    p(f"v_lshlrev_b32 {v(TX+3)}, 1, {v(KB_)}")
    p(f"v_readfirstlane_b32 {s(sT0)}, {v(TK_)}")
    p("s_cbranch_vccnz L_swap_poll")
    p(f"v_lshrrev_b64 {v(TX,2)}, {v(TX+2)}, {s(P0,2)}")
    p(f"v_cmp_gt_i32 {s(P1,2)}, 0, {v(TX+3)}")
    p(f"v_and_b32 {v(TX)}, 0xff, {v(TX)}")
    p(f"v_bcnt_u32_b32 {v(TX)}, {v(TX)}, 0")
    p(f"v_cmp_eq_u32 vcc, {s(sT0)}, {v(TX)}")
    p(f"s_lshl_b32 {s(sT1)}, {s(sw)}, 3")
    p(f"s_ff1_i32_b64 {s(sT0)}, vcc")
    p(f"s_cmp_lg_u64 {s(P1,2)}, 0")
    p(f"s_cselect_b32 {s(sT0)}, {s(sT1)}, {s(sT0)}")
    p(f"s_sub_u32 {s(sT3)}, {s(sT0)}, {s(sOW)}")
    p(f"s_mov_b32 {s(sOW)}, {s(sT0)}")
    p(f"s_sub_u32 {s(sDG+1)}, {s(sT0)}, {s(sT1)}")
    p(f"v_readlane_b32 {s(sT1)}, {v(KA_+2)}, {s(sT0)}")
    p(f"v_readlane_b32 {s(sT2)}, {v(KA_+3)}, {s(sT0)}")
    p(f"v_readlane_b32 {s(sT0)}, {v(KA_+1)}, {s(sT0)}")
    p(f"s_mul_i32 {s(sPD+1)}, {s(sT3)}, {REG // 8}")
    p(f"s_mul_i32 {s(sT3)}, {s(sT3)}, 6400")
    p(f"s_add_u32 {s(sRO)}, {s(sRO)}, {s(sT3)}")
    p(f"s_sub_u32 {s(sT3)}, {s(sT0)}, {s(sCUR)}")
    p(f"v_add_u32 {v(RDL)}, {s(sT3)}, {v(RDL)}")
    p(f"s_mov_b32 {s(sCUR)}, {s(sT2)}")
    for r in (sT1, sT2):
        p(f"s_sub_u32 {s(r)}, {s(r)}, {s(sT0)}")
    p(f"s_sub_u32 {s(sT3)}, {s(sT2)}, {s(sSZ)}")
    for r in (sT1, sT2):
        p(f"s_lshr_b32 {s(r)}, {s(r)}, 4")
        p(f"s_add_u32 {s(r)}, {s(r)}, {s(sU)}")
        p(f"s_bitset1_b64 {s(F,2)}, {s(r)}")
    event_mask()
    if opt["prio"]:
        p(f"s_ashr_i32 {s(sT3)}, {s(sT3)}, 3")
        p(f"v_mov_b32 {v(A_)}, {s(sT3)}")
        p(f"s_sub_u32 {s(sT3)}, 0, {s(sT3)}")
        p(f"v_writelane_b32 {v(A_)}, {s(sT3)}, 1")
        p(f"ds_add_u32 {v(PADR)}, {v(A_)}")
    p(f"s_cmp_eq_u32 {s(sRND)}, 0")
    p(f"s_cselect_b32 {s(sPD)}, {s(sPD+1)}, {s(sPD)}")
    p(f"s_cselect_b32 {s(sDG)}, {s(sDG+1)}, {s(sDG)}")
    p(f"s_cselect_b32 {s(sKA)}, 1, 8")
    p(f"s_cselect_b32 {s(sT0)}, 4, 2")
    p(f"s_mov_b32 {s(sSZ)}, {s(sSZ+1)}")
    p(f"s_mov_b32 {s(sRND)}, 16")
    p(f"s_cmp_eq_u32 {s(sKW)}, {s(sT0)}")
    p("s_cbranch_scc1 L_swap_now")
    p(f"s_sub_u32 {s(sT0)}, {s(sT0)}, 1")
    p(f"s_bitset1_b32 {s(sPM)}, {s(sT0)}")
    p(f"s_setpc_b64 {s(RET,2)} ; ret=L_swap")
    p("L_swap_now:")
    p(f"v_add_u32 {v(TADR)}, {s(sPD+1)}, {v(TADR)}")
    p(f"v_add_u32 {v(BADR)}, {s(sPD+1)}, {v(BADR)}")
    t_reads()
    p(f"s_setpc_b64 {s(RET,2)} ; ret=L_swap")
p("L_t23:")
p(f"s_cmp_eq_u32 {s(sEARLY)}, 0")
p("s_cbranch_scc1 L_skip23")
tiles(NE, LA, F, "e")
if opt.get("x5") == 1:
    x5tile()
p(f"s_setpc_b64 {s(RET,2)} ; ret=L_t23")
p("L_skip23:")
p("s_waitcnt vmcnt(0)")
p(f"s_setpc_b64 {s(RET,2)} ; ret=L_t23")
mainloop("f", False)
p("L_store:")
p(f"s_add_u32 {s(sT0)}, {s(sLB)}, {OUTS}")
p(f"v_lshl_add_u32 {v(TX+1)}, v0, 4, {s(sT0)}")
if opt["swap"]:
    for j in range(2):
        p(f"s_lshl_b32 {s(sT0)}, {s(sDG+j)}, 5")
        p(f"s_bfm_b64 exec, 16, {32+16*j}")
        p(f"v_add_u32 {v(VOUT)}, {s(sT0)}, {v(VOUT)}")
    p("s_mov_b64 exec, -1")
p(f"ds_read_b128 {v(ZB,4)}, {v(TX+1)}")
p("s_waitcnt lgkmcnt(0)")
if opt.get("endp"):
    p("s_cmp_lg_u32 s2, 0")
    p("s_cbranch_scc1 L_endp")
    p("L_endq:")
    p("s_memrealtime s[38:39]")
    p("s_waitcnt lgkmcnt(0)")
    p("s_sub_u32 s38, s38, s100")
    p(f"s_cmp_lt_i32 s38, {opt['endp']*100}")
    p("s_cbranch_scc1 L_endq")
    p("L_endp:")
    if opt.get("fr"):
        p(f"s_and_b32 s38, s2, {opt['fr']}")
        p("s_cbranch_scc0 L_endr")
        p(f"global_store_dwordx4 {v(VOUT)}, {v(ZB,4)}, s[18:19] sc0 sc1")
        p("s_endpgm")
        p("L_endr:")
p(f"global_store_dwordx4 {v(VOUT)}, {v(ZB,4)}, s[18:19] {NTO}")
if STAMP:
    p("s_mov_b64 exec, -1")
    stamp(34)
    p(f"v_writelane_b32 v254, {s(sBASE)}, 15")
    p("s_getreg_b32 s96, hwreg(HW_REG_XCC_ID)")
    p("v_writelane_b32 v254, s96, 14")
    p("s_getreg_b32 s96, hwreg(HW_REG_HW_ID)")
    p("v_writelane_b32 v254, s96, 13")
    srd(SM, 100, 2048 * 256)
    p(f"s_lshl_b32 {s(sT0)}, s2, 3")
    p(f"s_add_u32 {s(sT0)}, {s(sT0)}, {s(sw)}")
    p(f"s_lshl_b32 {s(sT0)}, {s(sT0)}, 8")
    p(f"v_lshlrev_b32 v1, 2, v0")
    p(f"buffer_store_dword v254, v1, {s(SM,4)}, {s(sT0)} offen")
if opt.get("twice"):
    p("s_waitcnt vmcnt(0) lgkmcnt(0)")
    p("s_barrier")
    p("s_setprio 0")
    p(f"s_lshl_b32 {s(sT0)}, {s(sw)}, 6")
    p(f"v_add_u32 v0, {s(sT0)}, v0")
    p("s_add_u32 s3, s3, 1")
    p("s_cmp_eq_u32 s3, 1")
    p("s_cbranch_scc1 L_again")
if opt.get("spin"):
    if opt.get("probe"):
        if opt["probe"] == "end":
            p("s_memrealtime s[98:99]")
            p("s_waitcnt lgkmcnt(0)")
        p("s_sub_u32 s98, s98, s100")
        p(f"s_mul_i32 s98, s98, {opt.get('pk', 4)}")
        p("s_add_u32 s100, s100, s98")
    p("L_spin:")
    p("s_memrealtime s[38:39]")
    p("s_waitcnt lgkmcnt(0)")
    p("s_sub_u32 s38, s38, s100")
    p(f"s_cmp_lt_i32 s38, {opt['spin']*100}")
    p("s_cbranch_scc1 L_spin")
p("L_end:")
p("s_endpgm")
if opt.get("so"):
    mainloop("o", False, opt["so"])
p("L_general:")
p("s_waitcnt vmcnt(0)")
const_reads(5, 8)
t_reads()
list_reset()
p(f"s_bfm_b64 {s(EX50,2)}, 50, 0")
p(f"s_mul_i32 {s(sT0)}, {s(sW)}, 800")
p(f"v_add_u32 {v(TX+1)}, {s(sT0)}, v2")
p(f"s_mov_b64 exec, {s(EX50,2)}")
for j in range(4):
    p(f"global_load_dwordx4 {v(MSK+4*j,4)}, {v(TX+1)}, s[8:9]")
    p(f"v_add_u32 {v(TX+1)}, {PSTR*400}, {v(TX+1)}")
p("s_mov_b64 exec, -1")
p(f"v_cmp_lt_u32 vcc, 24, v0")
p(f"v_cndmask_b32 {v(HI)}, 0, 1, vcc")
p(f"v_mul_u32_u24 {v(CV+1)}, 25, {v(HI)}")
p(f"v_sub_u32 {v(CV+1)}, v0, {v(CV+1)}")
p(f"v_mul_u32_u24 {v(CV+1)}, 0x80008, {v(CV+1)}")
p(f"v_add_u32 {v(CV)}, 0x10000, {v(CV+1)}")
p(f"v_add_u32 {v(CV+2)}, 0x50004, {v(CV+1)}")
p(f"v_add_u32 {v(CV+3)}, 0x70006, {v(CV+1)}")
p(f"v_add_u32 {v(CV+1)}, 0x30002, {v(CV+1)}")
p("s_waitcnt vmcnt(0)")
for j in range(4):
    compact_body(j)
p(f"s_mov_b32 {s(sEARLY)}, 0")
p(f"s_mov_b64 {s(NB,2)}, -1")
p("s_branch L_listed")
mainloop("s", True)

nn = p.fix_hazards(verbose=opt["verbose"])
for early_, old_, gen_ in ((a_, b_, c_) for a_ in (True, False) for b_ in (True, False) for c_ in (True, False)):
    force = [("L_skip", not early_), ("L_nolate", early_ and not gen_), ("L_young", not old_), ("L_old3", old_), ("L_general", gen_)]
    for e in check_waits(p, force + ([("L_late", False)] if early_ else [])) if early_ else check_waits(p, force, cut="L_noadve"):
        if STAMP != 4 and not opt.get('x5'):
            sys.exit(f"WAIT-CHECK early={early_}: {e}")
hdr = open(__file__.rsplit("/", 1)[0] + "/../standalone__sequential_behavior_din__recsys.s.ref").read().split("\n")
head = [l for l in hdr if l.startswith(";") and "@launch" not in l and "Override" not in l and "grid=ceil" not in l]
out = "\n".join(head) + f"""
; @launch grid=({NWG},1,1) block=({WPB*64},1,1) lds={WPB*REG}
; generated by gen/gen.py {' '.join(sys.argv[1:])}
.amdgcn_target "amdgcn-amd-amdhsa--gfx950"
.text
.globl {NAME}
.p2align 8
.type {NAME},@function
""" + p.text() + f""".section .rodata,"a"
.p2align 6
.amdhsa_kernel {NAME}
  .amdhsa_next_free_vgpr 256
  .amdhsa_next_free_sgpr 102
  .amdhsa_accum_offset 256
  .amdhsa_group_segment_fixed_size 0
  .amdhsa_kernarg_size 80
  .amdhsa_user_sgpr_count 2
  .amdhsa_user_sgpr_kernarg_segment_ptr 1
  .amdhsa_system_sgpr_workgroup_id_x 1
.end_amdhsa_kernel
"""
sys.stdout.write(out)
```

```python
import sys
from asmlib import Prog, check_waits

opt = dict(LA=4, fg=0, pv=1, U=4, al=0, yf=0, tlb=0, g2=1, ym=1, swap=1, bias=1, y2=1, yp=0, vx=0, m1=1, map=0, place=900010000, D=4, nt="nt", ntm="nt", nto="sc0 sc1", verbose=0, prio=1, sched="r")
for a in sys.argv[1:]:
    k, v = a.split("=", 1)
    opt[k] = int(v) if v.lstrip("-").isdigit() else v.replace("+", " ")
D = opt["D"]
U = opt["U"]
assert U % D == 0
LA = opt["LA"]
NT, NTM, NTO = opt["nt"], opt["ntm"], opt["nto"]
STAMP = opt.get("stamp", 0)
assert not (STAMP == 4 and opt["swap"])

NAME = "standalone__sequential_behavior_din__recsys_kernel"
NWG, WPB = 256, 8
NWAVE = NWG * WPB
KB = 16384 // NWAVE
REG = opt.get('reg', 20480)
SLOT = 2080
TB = D * SLOT
BI = TB + 1024
BSTR = 272
XCH = BI + 8 * BSTR
PRG = XCH + 3072
KEY = PRG + 256
OUTS = PRG + 320
TKT = PRG + 288
LI = REG - 2048
L0 = LI + 16
assert OUTS + 1024 <= LI - 2048 and LI + 2048 <= REG and LI % 2048 == 0 and REG % 2048 == 0
STG = (D - 2) * SLOT
CNEG = 0xBFB8AA3B
PSTR, WGSTR = (16, 64) if opt["map"] & 1 else (4096, 16)
LGP = PSTR.bit_length() - 1
DLT0, DLT1 = 25600, (PSTR - 1) * 25600
MDL0, MDL1 = 400, (PSTR - 1) * 400

CA, CD, W, ZA, ZB, BIAS, XB, XT, W2, B2, S, ACC, DG, TR, ONE, VA, VB = \
    4, 68, 100, 132, 148, 164, 180, 188, 196, 204, 208, 212, 216, 224, 228, 230, 232
RDB0, RDB1, RDT, RDL, TADR, BADR, OADR, SEL0, SEL1, VOUT, RDM = range(234, 245)
TX = 246
PTH = 245
PRV, PADR, PINC = 1, 2, 3
MSK = W
SH, SM, SH2 = 20, 24, 40
EX50, sB2, sDL, sMDL = 28, 30, 31, 32
sLB, sW, sw = 52, 53, 54
F = 56
H = 36
sKA, sKW = 60, 61
sBASE, sK, sT0, sT1, sT2, sT3 = 64, 65, 66, 67, 55, 95
A0 = 68
NB, P0, P1, P2 = 84, 86, 88, 90
sC, sOFF, sEARLY, sRO = 92, 93, 94, 35
sCUR, sM2, sB3, sM3, sE3 = 44, 45, 46, 47, 48
sU, sOW, sRND, sPM = 49, 50, 51, 33
sPD, sDG, sSZ = 80, 82, 68
RET = 62


def v(a, n=1):
    return f"v{a}" if n == 1 else f"v[{a}:{a+n-1}]"


def s(a, n=1):
    return f"s{a}" if n == 1 else f"s[{a}:{a+n-1}]"


p = Prog()
nstamp = [0]


def stamp(cyc=None):
    if STAMP == 4:
        return
    if not STAMP or (STAMP == 3 and cyc is None):
        return
    p("s_memrealtime s[96:97]")
    p("s_waitcnt lgkmcnt(0)")
    p(f"v_writelane_b32 v254, s96, {nstamp[0]}")
    nstamp[0] += 1
    if cyc is not None:
        p("s_memtime s[96:97]")
        p("s_waitcnt lgkmcnt(0)")
        p(f"v_writelane_b32 v254, s96, {cyc}")


ncyc = [0]


def cst(name):
    if opt.get("probe") == name:
        p("s_memrealtime s[98:99]")
        p("s_waitcnt lgkmcnt(0)")
    if STAMP == 4 and (not opt.get("arr") or name in ("entry", "kernarg") or name.startswith("arr")):
        sys.stderr.write(f"cst{ncyc[0]} = {name}\n")
        p(f"s_memtime {s((38,80,82,96,98,44,46,48,50,16)[ncyc[0]],2)}")
        ncyc[0] += 1


nfl = [0]
njit = [0]


def jit(long=False):
    if not opt.get("jitter"):
        return
    njit[0] += 1
    k = njit[0]
    p(f"s_mul_i32 s3, {s(sW)}, {37 + 2 * k + opt['jitter'] * 16}")
    p(f"s_add_u32 s3, s3, {k * 5}")
    p(f"s_lshr_b32 s3, s3, 2")
    p(f"s_and_b32 s3, s3, {7 if long else 3}")
    p("s_cmp_lg_u32 s3, 0")
    p(f"s_cbranch_scc1 L_jit{k}")
    for _ in range(10 if long else 1):
        p(f"s_sleep {127 if long else 30}")
    p(f"L_jit{k}:")


def srd(dst, ptr, nrec, stride=0):
    p(f"s_mov_b32 {s(dst)}, {s(ptr)}")
    p(f"s_and_b32 {s(dst+1)}, {s(ptr+1)}, 0xffff")
    if stride:
        p(f"s_or_b32 {s(dst+1)}, {s(dst+1)}, {stride << 16:#x}")
    p(f"s_mov_b32 {s(dst+2)}, {nrec}")
    p(f"s_mov_b32 {s(dst+3)}, 0x20000")


def m0_half(slot, j):
    return f"s_add_u32 m0, {s(sLB)}, {slot*SLOT+j*1056}"


def dma_half(j):
    if opt["m1"] and j:
        return f"buffer_load_dwordx4 {v(VB,2)}, {s(SH2,4)}, {s(sRO)} idxen offen offset:1056 {NT} lds"
    return f"buffer_load_dwordx4 {v((VA, VB)[j],2)}, {s(SH,4)}, {s(sRO)} idxen offen {NT} lds"


def adv_hist():
    p(f"s_add_u32 {s(sRO)}, {s(sRO)}, {s(sDL)}")
    p(f"s_min_u32 {s(sRO)}, {s(sRO)}, {16383*25600}")
    p(f"s_xor_b32 {s(sDL)}, {s(sDL)}, {DLT0 ^ DLT1:#x}")


R, CV, HI = ZA, ZA + 9, ZA + 13
AP, AT, QV, QH, NBA = W + 16, W + 22, W + 26, W + 30, W + 31
QR, QT, QE = (ZA, ZA + 8, BIAS), (BIAS + 8, BIAS + 12, XB), (XB + 4, XB + 5, XB + 6)
NT0, NT1 = ZB + 12, ZB + 13
CNT = 0xBFE0BFE0


def fbit(reg, k):
    p(f"s_lshr_b32 {s(sT3)}, {s(reg)}, 4")
    if 13 * (k + 1) + 1 < 64:
        p(f"s_bitset1_b64 {s(F,2)}, {s(sT3)}")
    else:
        p(f"s_lshl_b64 {s(P0,2)}, 1, {s(sT3)}")
        p(f"s_bitcmp1_b32 {s(reg)}, 10")
        p(f"s_cselect_b64 {s(P1,2)}, 0, {s(P0,2)}")
        p(f"s_cselect_b64 {s(P2,2)}, {s(P0,2)}, 0")
        p(f"s_or_b64 {s(F,2)}, {s(F,2)}, {s(P1,2)}")
        p(f"s_or_b64 {s(F+2,2)}, {s(F+2,2)}, {s(P2,2)}")


def compact_body(j):
    m = [MSK + 4 * j + x for x in range(4)]
    p(f"s_mov_b64 exec, {s(EX50,2)}")
    for e in range(8):
        p(f"v_cmp_neq_f16_sdwa {s(A0+2*e,2)}, {v(m[e>>1])}, 0 src0_sel:WORD_{e&1} src1_sel:WORD_0")
    p("s_mov_b64 exec, -1")
    p(f"v_mov_b32 {v(R)}, {s(sBASE)}")
    for e in range(8):
        p(f"v_mbcnt_lo_u32_b32 {v(R)}, {s(A0+2*e)}, {v(R)}")
        p(f"v_mbcnt_hi_u32_b32 {v(R)}, {s(A0+2*e+1)}, {v(R)}")
    p(f"s_add_u32 {s(sT2)}, {s(sBASE)}, 16")
    p(f"v_readlane_b32 {s(sT0)}, {v(R)}, 25")
    p(f"v_readlane_b32 {s(sT1)}, {v(R)}, 63")
    p(f"s_add_u32 {s(sBASE)}, {s(sT0)}, 15")
    p(f"s_and_b32 {s(sBASE)}, {s(sBASE)}, -16")
    p(f"s_max_u32 {s(sBASE)}, {s(sBASE)}, {s(sT2)}")
    p(f"s_sub_u32 {s(sT0)}, {s(sBASE)}, {s(sT0)}")
    p(f"v_mad_u32_u24 {v(R)}, {v(HI)}, {s(sT0)}, {v(R)}")
    p(f"s_mov_b32 {s(sT2)}, {s(sBASE)}")
    for e in range(7):
        p(f"v_addc_co_u32 {v(R+e+1)}, vcc, 0, {v(R+e)}, {s(A0+2*e,2)}")
    p(f"s_add_u32 {s(sT1)}, {s(sT1)}, {s(sT0)}")
    p(f"s_add_u32 {s(sT1)}, {s(sT1)}, 15")
    p(f"s_and_b32 {s(sT1)}, {s(sT1)}, -16")
    p(f"s_add_u32 {s(sBASE)}, {s(sBASE)}, 16")
    p(f"s_max_u32 {s(sBASE)}, {s(sBASE)}, {s(sT1)}")
    for e in range(8):
        p(f"s_mov_b64 exec, {s(A0+2*e,2)}")
        p(f"ds_write_b8{'_d16_hi' if e&1 else ''} {v(R+e)}, {v(CV+(e>>1))}")
    p("s_mov_b64 exec, -1")
    pair_bits(j, sT2)


def q_total(i, j):
    p(f"v_mfma_i32_16x16x64_i8 {v(QT[i],4)}, {v(AT,4)}, {v(MSK+4*j,4)}, 0")


def q_test(j):
    out = []
    if opt.get("xt"):
        return out
    for x in range(4):
        t = (NT0, NT1)[x & 1]
        out += [f"v_and_b32 {v(t)}, 0x800080, {v(MSK+4*j+x)}", f"v_mul_u32_u24 {v(t)}, 0x7f, {v(t)}",
                f"v_bitop3_b32 {v(NBA)}, {v(MSK+4*j+x)}, {v(t)}, {v(NBA)} bitop3:0xbe"]
    return out


def q_scan(i, step):
    dpp = "row_mask:0xf bank_mask:0xf bound_ctrl:0"
    if step == 0:
        return f"v_mov_b32_dpp {v(QE[i])}, {v(QT[i])} row_shr:1 {dpp}"
    return f"v_add_u32_dpp {v(QE[i])}, {v(QE[i])}, {v(QE[i])} row_shr:{1 << (step-1)} {dpp}"


def q_lanes(i):
    p(f"v_readlane_b32 {s(A0+4*i)}, {v(QE[i])}, 6")
    p(f"v_readlane_b32 {s(A0+4*i+1)}, {v(QT[i]+1)}, 6")
    p(f"v_readlane_b32 {s(A0+4*i+2)}, {v(QE[i])}, 15")


def q_ranks(i, j):
    a = A0 + 4 * i
    p(f"s_add_u32 {s(sT0)}, {s(a)}, {s(a+1)}")
    p(f"s_add_u32 {s(sT0)}, {s(sT0)}, {s(sBASE)}")
    p(f"s_add_u32 {s(sT1)}, {s(sT0)}, 15")
    p(f"s_and_b32 {s(sT1)}, {s(sT1)}, -16")
    p(f"s_add_u32 {s(sT2)}, {s(sBASE)}, 16")
    p(f"s_max_u32 {s(sT1)}, {s(sT1)}, {s(sT2)}")
    p(f"s_sub_u32 {s(sT0)}, {s(sT1)}, {s(sT0)}")
    p(f"v_mad_u32_u24 {v(QE[i])}, {v(QH)}, {s(sT0)}, {v(QE[i])}")
    p(f"s_sub_u32 {s(sT2)}, {s(sBASE)}, 2048")
    for r in range(4):
        p(f"v_add_u32 {v(QT[i]+r)}, {s(sT2)}, {v(QE[i])}")
    p(f"s_add_u32 {s(sBASE)}, {s(sBASE)}, {s(a+2)}")
    p(f"s_add_u32 {s(sBASE)}, {s(sBASE)}, {s(sT0)}")
    p(f"v_mfma_i32_16x16x64_i8 {v(QR[i],4)}, {v(AP+2,4)}, {v(MSK+4*j,4)}, {v(QT[i],4)}")
    p(f"v_mfma_i32_16x16x64_i8 {v(QR[i]+4,4)}, {v(AP,4)}, {v(MSK+4*j,4)}, {v(QT[i],4)}")
    p(f"s_add_u32 {s(sBASE)}, {s(sBASE)}, 15")
    p(f"s_and_b32 {s(sBASE)}, {s(sBASE)}, -16")
    p(f"s_add_u32 {s(sT2)}, {s(sT1)}, 16")
    p(f"s_max_u32 {s(sBASE)}, {s(sBASE)}, {s(sT2)}")
    pair_bits(j, sT1)


def pair_bits(j, mid):
    if opt["swap"] and j >= 2:
        p(f"s_mov_b32 {s((sM2, sM3)[j-2])}, {s(mid)}")
        p(f"s_mov_b32 {s((sB3, sE3)[j-2])}, {s(sBASE)}")
        return
    fbit(mid, 2 * j)
    fbit(sBASE, 2 * j + 1)
    if opt["swap"] and j == 1:
        p(f"s_mov_b32 {s(sCUR)}, {s(sBASE)}")


def q_write(i):
    if opt.get("xw"):
        return
    if opt["vx"]:
        p(f"s_mov_b64 exec, {s(EX50,2)}")
    for e in range(8):
        p(f"ds_write_b8{'_d16_hi' if e&1 else ''} {v(QR[i]+e)}, {v(QV+(e>>1))}")
    if opt["vx"]:
        p("s_mov_b64 exec, -1")


W44 = 1
DIAGMM = "v_mfma_f32_4x4x4_16b_bf16" if W44 else "v_mfma_f32_16x16x16_bf16"


def wbuild(first=False):
    for x in range(4):
        p(f"v_mul_u32_u24 {v(DG+2*x)}, {v(TR+x)}, {v(SEL0)}")
        p(f"v_mul_u32_u24 {v(DG+2*x+1)}, {v(TR+x)}, {v(SEL1)}")
    T = [ZA + 8, TX]
    pairs = [(hb, ks) for hb in range(4) for ks in range(2)]

    def mm(j, u):
        hb, ks = pairs[j]
        blk = (hb * 2 + ks) * 2 + u
        p(f"{DIAGMM} {v(T[j%2]+4*u,4)}, {v(DG+2*(2*ks+u),2)}, {v(CD+2*blk,2)}, {v(CA+4*blk,4)}")

    def cv(j, r):
        hb, ks = pairs[j]
        p(f"v_cvt_pk_bf16_f32 {v(W+(hb*2+ks)*4+r)}, {v(T[j%2]+2*r)}, {v(T[j%2]+2*r+1)}")
    mm(0, 0)
    p(f"v_add_u32 {v(TADR)}, 128, {v(TADR)}")
    for hb in range(2):
        p(f"ds_read_b128 {v(BIAS+4*hb,4)}, {v(BADR)} offset:{64*hb}")
    mm(0, 1)
    for hb in range(2, 4):
        p(f"ds_read_b128 {v(BIAS+4*hb,4)}, {v(BADR)} offset:{64*hb}")
    t_reads()
    for j in range(8):
        if j < 7:
            mm(j + 1, 0)
        cv(j, 0); cv(j, 1)
        if j < 7:
            mm(j + 1, 1)
        else:
            p(f"v_add_u32 {v(BADR)}, {BSTR}, {v(BADR)}")
        if first and j:
            if j == 1:
                p("s_waitcnt lgkmcnt(4)")
            p(g1(j - 1))
        cv(j, 2); cv(j, 3)
    p("s_waitcnt lgkmcnt(0)")
    if first:
        p(g1(7))


def t_reads():
    for x in range(4):
        p(f"ds_read_u16 {v(TR+x)}, {v(TADR)} offset:{(x>>1)*64+(x&1)*8}")


def g1(j):
    hb, ks = j >> 1, j & 1
    c = v(BIAS + 4 * hb, 4) if ks == 0 else v(ZB + 4 * hb, 4)
    return f"v_mfma_f32_16x16x32_bf16 {v(ZB+4*hb,4)}, {v(W+(hb*2+ks)*4,4)}, {v(XB+4*ks,4)}, {c}"


def read_xb(slot, ks):
    p(f"ds_read_b128 {v(XB+4*ks,4)}, {v((RDB0, RDB1)[ks])} offset:{slot*SLOT}")


SCHED = {
    "e": "ia ib k1 ent EV mid P0 e0 e1 e2 e3 e4 e5 A0 s0 s1 L2 G0 e6 q0 t0 e7 G2 e8 q1 t1 A1 r0 q2 t2 e9 G1 r1 q3 t3 e10 G3 "
         "r2 e11 r3 c0 A2 e12 G4 r4 c1 E2 e13 r5 e14 r6 c2 e15 G6 L0 m0 r7 da A3 G5 m1 r8 db G7 P1 r9 c3 vm y0 y1 r10 c4 k0 r11 B r12 c5 "
         "r13 r14 r15 c6 c7",
    "f": "ia ib k1 ent EV mid P0 e0 e1 e2 e3 e4 e5 A0 s0 s1 L2 G0 e6 q0 t0 e7 G2 e8 q1 t1 A1 r0 q2 t2 e9 G1 r1 q3 t3 e10 G3 "
         "r2 e11 r3 c0 A2 e12 G4 r4 c1 E2 m0 L0 da e13 r5 e14 r6 c2 e15 G6 P1 r7 A3 G5 m1 r8 G7 r9 c3 db vm y0 y1 r10 c4 k0 r11 B r12 c5 "
         "r13 r14 r15 c6 c7",
    "g": "ia ib k1 ent EV mid P0 e0 e1 e2 e3 e4 e5 A0 s0 s1 L2 G0 e6 q0 t0 e7 G2 e8 q1 t1 A1 r0 q2 t2 e9 G1 r1 q3 t3 e10 G3 "
         "r2 e11 r3 c0 A2 e12 G4 r4 c1 E2 e13 r5 e14 m0 L0 da r6 c2 e15 G6 P1 r7 A3 G5 m1 r8 G7 r9 c3 db vm y0 y1 r10 c4 k0 r11 B r12 c5 "
         "r13 r14 r15 c6 c7",
    "h": "ia ib k1 ent EV mid P0 e0 e1 e2 e3 e4 e5 A0 s0 s1 L2 G0 e6 q0 t0 e7 G2 e8 q1 t1 A1 r0 q2 t2 e9 G1 r1 q3 t3 e10 G3 "
         "r2 e11 r3 c0 A2 e12 G4 r4 c1 E2 m0 L0 da m1 e13 db r5 e14 r6 c2 e15 G6 P1 r7 A3 G5 r8 G7 r9 c3 vm y0 y1 r10 c4 k0 r11 B r12 c5 "
         "r13 r14 r15 c6 c7",
    "l": "ia ib k1 ent EV mid P0 e0 e1 e2 e3 e4 e5 A0 s0 s1 L2 G0 e6 q0 t0 e7 e8 q1 t1 G2 A1 q2 t2 r0 e9 q3 t3 G1 r1 e10 G3 "
         "r2 e11 m0 L0 da m1 r3 db c0 A2 e12 G4 r4 c1 E2 e13 r5 e14 r6 c2 e15 G6 P1 r7 A3 G5 r8 G7 r9 c3 r10 c4 k0 r11 B r12 c5 "
         "r13 r14 r15 vm y0 y1 c6 c7",
    "m": "ia ib k1 ent EV mid P0 e0 e1 e2 e3 e4 e5 A0 s0 s1 e6 e7 q0 t0 e8 A1 q1 t1 e9 e10 q2 t2 e11 r0 q3 t3 vm x0 x1 A2 e12 r1 e13 r2 "
         "e14 r3 c0 e15 E2 m0 L2 da m1 c1 db A3 L0 G0 r4 G2 r5 P1 G1 r6 c2 G3 r7 r8 G4 c3 r9 G6 r10 c4 G5 r11 k0 r12 G7 c5 B r13 r14 r15 c6 c7",
    "n": "ia ib k1 ent EV mid P0 e0 e1 e2 e3 e4 e5 A0 s0 s1 vm x0 x1 e6 e7 q0 t0 e8 A1 q1 t1 e9 e10 q2 t2 e11 r0 q3 t3 A2 L4 G0 e12 r1 G2 e13 r2 "
         "e14 G1 r3 c0 e15 E2 m0 L0 da m1 c1 db A3 G3 r4 r5 P1 G4 r6 c2 r7 G6 r8 c3 r9 G5 r10 c4 r11 k0 r12 G7 c5 B r13 r14 r15 c6 c7",
    "r": "ent EV k1 mid e0 e1 e2 e3 e4 e5 A0 e6 e7 s0 s1 e8 e9 q0 A1 e10 q1 e11 e12 q2 e13 A2 q3 P0 ia ib t0 t1 t2 t3 vm x0 x1 m0 e14 e15 "
         "r0 r1 A3 r2 E2 c0 L2 da m1 db L0 G0 r3 G2 r4 c1 G1 r5 P1 G3 r6 c2 G4 r7 G6 r8 c3 G5 r9 G7 r10 c4 k0 r11 r12 c5 B r13 r14 r15 c6 c7",
    "t": "ent EV k1 mid e0 e1 e2 e3 e4 e5 A0 e6 e7 s0 s1 e8 e9 q0 A1 e10 q1 e11 e12 q2 e13 A2 q3 P0 ia ib t0 t1 t2 t3 vm x0 x1 m0 e14 e15 "
         "r0 r1 A3 r2 E2 c0 L0 G0 r3 G2 r4 c1 G1 r5 P1 G3 r6 c2 G4 r7 G6 r8 c3 G5 r9 G7 r10 c4 k0 r11 r12 c5 B r13 r14 r15 c6 c7 da m1 db",
    "u": "ent EV k1 mid ia ib m0 e0 e1 e2 e3 e4 e5 A0 e6 e7 s0 s1 L0 da m1 db e8 e9 q0 A1 e10 q1 e11 e12 q2 e13 A2 q3 P0 t0 t1 t2 t3 vm x0 x1 e14 e15 "
         "r0 r1 A3 r2 E2 c0 L0 G0 r3 G2 r4 c1 G1 r5 P1 G3 r6 c2 G4 r7 G6 r8 c3 G5 r9 G7 r10 c4 k0 r11 r12 c5 B r13 r14 r15 c6 c7",
    "v": "ent EV k1 mid ia ib m0 e0 e1 e2 e3 e4 e5 A0 e6 e7 s0 s1 e8 e9 q0 A1 e10 q1 e11 e12 q2 e13 A2 q3 L0 da m1 db P0 t0 t1 t2 t3 vm x0 x1 e14 e15 "
         "r0 r1 A3 r2 E2 c0 L0 G0 r3 G2 r4 c1 G1 r5 P1 G3 r6 c2 G4 r7 G6 r8 c3 G5 r9 G7 r10 c4 k0 r11 r12 c5 B r13 r14 r15 c6 c7",
    "w": "ent EV k1 mid e0 e1 e2 e3 e4 e5 A0 e6 e7 s0 s1 e8 e9 q0 A1 e10 q1 e11 e12 q2 e13 A2 q3 P0 ia ib t0 t1 t2 t3 vm x0 x1 m0 e14 e15 "
         "r0 r1 A3 r2 E2 c0 L6 da m1 db L0 G0 r3 G2 r4 c1 G1 r5 P1 G3 r6 c2 G4 r7 G6 r8 c3 G5 r9 G7 r10 c4 k0 r11 r12 c5 B r13 r14 r15 c6 c7",
    "x": "ent EV k1 mid ia ib m0 e0 e1 e2 e3 e4 e5 A0 e6 e7 s0 s1 e8 e9 q0 A1 e10 L0 da m1 db q1 e11 e12 q2 e13 A2 q3 P0 t0 t1 t2 t3 vm x0 x1 e14 e15 "
         "r0 r1 A3 r2 E2 c0 L0 G0 r3 G2 r4 c1 G1 r5 P1 G3 r6 c2 G4 r7 G6 r8 c3 G5 r9 G7 r10 c4 k0 r11 r12 c5 B r13 r14 r15 c6 c7",
    "w2": "ent EV k1 mid e0 e1 e2 e3 e4 e5 A0 e6 e7 s0 s1 e8 e9 q0 A1 e10 q1 e11 e12 q2 e13 A2 q3 P0 ia ib t0 t1 t2 t3 vm x0 x1 m0 e14 e15 r0 r1 A3 r2 E2 c0 L0 G0 r3 G2 r4 c1 G1 r5 P1 G3 r6 c2 G4 r7 G6 r8 c3 G5 r9 G7 da m1 db r10 c4 k0 r11 r12 c5 B r13 r14 r15 c6 c7",
    "w0": "ent EV k1 mid ia ib m0 e0 e1 e2 e3 e4 e5 A0 e6 e7 s0 s1 e8 e9 q0 A1 e10 q1 e11 e12 q2 e13 A2 q3 P0 t0 t1 t2 t3 vm x0 x1 L6 da m1 db e14 e15 "
          "r0 r1 A3 r2 E2 c0 L0 G0 r3 G2 r4 c1 G1 r5 P1 G3 r6 c2 G4 r7 G6 r8 c3 G5 r9 G7 r10 c4 k0 r11 r12 c5 B r13 r14 r15 c6 c7",
    "z": "ent EV k1 mid P0 ia ib e0 e1 e2 e3 e4 e5 A0 s0 s1 e6 e7 q0 e8 e9 q1 A1 e10 q2 e11 e12 q3 t0 t1 t2 t3 m0 e13 A2 e14 e15 L0 da m1 db r0 r1 A3 r2 c0 r3 "
         "vm x0 x1 E2 r4 c1 r5 r6 c2 L0 G0 r7 G2 r8 c3 G1 r9 P1 G3 r10 c4 G4 r11 G6 r12 c5 G5 r13 G7 r14 k0 B r15 c6 c7",
    "s": "ia ib k1 ent EV mid P0 e0 e1 e2 e3 e4 e5 A0 s0 s1 L2 G0 e6 q0 t0 e7 G2 e8 q1 t1 A1 r0 q2 t2 e9 G1 r1 q3 t3 e10 G3 "
         "r2 e11 r3 c0 A2 e12 G4 r4 c1 E2 e13 r5 e14 r6 c2 e15 G6 r7 A3 G5 r8 G7 m0 L0 da P1 m1 r9 db c3 vm y0 y1 r10 c4 k0 r11 B r12 c5 "
         "r13 r14 r15 c6 c7",
}


if opt.get("toks"):
    SCHED["cli"] = opt["toks"].replace(".", " ")
    opt["sched"] = "cli"


def event_mask():
    p(f"s_lshr_b64 {s(P0,2)}, {s(F,2)}, 2")
    p(f"s_lshr_b64 {s(H,2)}, {s(F,2)}, {LA+1}")
    p(f"s_or_b32 {s(H+1)}, {s(H)}, {s(P0)}")
    p(f"s_or_b32 {s(H)}, {s(H+1)}, {s(F)}")


PSTEP = {0: 1, 1: 4, 2: 2, 3: 8}[opt["prio"]]
assert U % PSTEP == 0


def mainloop(tag, slow, sched=None):
    toks = allt = SCHED[sched or opt["sched"]].split()

    def scale(off):
        p(f"ds_read_b32 {v(TX)}, {v(RDM)} offset:{off}")
        p("s_waitcnt lgkmcnt(0)")
        for r in range(4):
            p(f"v_bfe_u32 {v(TX+1+r)}, {v(TX)}, {8*r}, 8")
            p(f"v_lshlrev_b32 {v(TX+1+r)}, 1, {v(TX+1+r)}")
        for r in range(4):
            p(f"buffer_load_ushort {v(TX+1+r)}, {v(TX+1+r)}, {s(SM,4)}, 0 offen")
        p("s_waitcnt vmcnt(0)")
        for r in range(4):
            p(f"v_lshlrev_b32 {v(TX+1+r)}, 16, {v(TX+1+r)}")
            p(f"v_mul_f32 {v(S+r)}, {v(S+r)}, {v(TX+1+r)}")

    def flush(last=False):
        p(f"v_cvt_pk_bf16_f32 {v(TX)}, {v(ACC)}, {v(ACC)}")
        if not last:
            p(f"v_mov_b32 {v(ACC)}, 0")
        if STAMP == 1:
            p("s_memrealtime s[96:97]")
            p("s_memtime s[98:99]")
            p(f"s_lshl_b32 {s(sT0)}, {s(sK)}, 1")
            p(f"s_sub_u32 {s(sT0)}, {16+2*(KB-1)}, {s(sT0)}")
            p("s_waitcnt lgkmcnt(0)")
            p(f"s_mov_b32 m0, {s(sT0)}")
            p("v_writelane_b32 v254, s96, m0")
            p(f"s_add_u32 m0, m0, 1")
            p("v_writelane_b32 v254, s98, m0")
            p(f"s_sub_u32 {s(sK)}, {s(sK)}, 1")
        if str(opt.get("probe", "")).startswith("fl"):
            nfl[0] += 1
            p("s_add_u32 s3, s3, 1")
            p(f"s_cmp_lg_u32 s3, {int(opt['probe'][2:])}")
            p(f"s_cbranch_scc1 L_nfl{nfl[0]}")
            p("s_memrealtime s[98:99]")
            p("s_waitcnt lgkmcnt(0)")
            p(f"L_nfl{nfl[0]}:")
        p(f"ds_write_b16 {v(OADR)}, {v(TX)}")
        if last:
            return
        p(f"v_add_u32 {v(OADR)}, 128, {v(OADR)}")
        if slow:
            p(f"s_add_u32 {s(SM)}, {s(SM)}, {s(sMDL)}")
            p(f"s_addc_u32 {s(SM+1)}, {s(SM+1)}, 0")
            p(f"s_xor_b32 {s(sMDL)}, {s(sMDL)}, {MDL0 ^ MDL1:#x}")

    def emit(u, toks, tail):
        ev = opt["prio"] and u % PSTEP == 0
        for t in toks:
            k, n = t[0], (int(t[1:]) if t[1:].isdigit() else None)
            if opt.get("nodma") and t in ("da", "db"):
                continue
            if opt.get("lite") and k == "r" and n >= 16 - opt["lite"]:
                continue
            if opt.get("nocomp") and k in "ercsAGqk" and n is not None:
                continue
            if t == "vm":
                ahead = 2 if "y0" in allt else 1
                p(f"s_waitcnt vmcnt({2*(LA-ahead-(allt.index('vm') < allt.index('da')))})")
            elif k == "y":
                read_xb((u + 2) % D, n)
            elif k == "x":
                read_xb((u + 1) % D, n)
            elif t == "ent":
                if u == 0:
                    p(f"L{tag}_mid:")
            elif t in ("mid", "mi2"):
                if slow:
                    scale(u * 16 + (16 if t == "mi2" else 0))
            elif t == "ia" and opt.get("xv") and not tail:
                for j in range(opt["xv"]):
                    p(f"v_exp_f32 v255, {v(ZB+j)}")
                p(f"ds_read_u8 {v(VA)}, {v(RDL)} offset:{(u+LA)*16}")
            elif t == "ia":
                p(f"ds_read_u8 {v(VA)}, {v(RDL)} offset:{(u+LA)*16}")
            elif t == "ib":
                p(f"ds_read_u8 {v(VB)}, {v(RDL)} offset:{(u+LA)*16+8}")
            elif t == "EV":
                p(f"s_bitcmp1_b32 {s(H)}, {u}")
                p(f"s_cbranch_scc1 L{tag}_ev{u}")
                p(f"L{tag}_evd{u}:")
            elif t == "E2":
                if tail:
                    p(f"s_bitcmp0_b64 {s(F,2)}, 1")
                    p(f"s_cbranch_scc1 L{tag}_tnf")
                    flush()
                    p(f"L{tag}_tnf:")
            elif t == "P0":
                if ev:
                    p(f"ds_add_rtn_u32 {v(PRV)}, {v(PADR)}, {v(PINC)}")
            elif t == "P1":
                if ev:
                    if opt["pv"]:
                        p(f"v_cmp_gt_i32 vcc, {v(PRV)}, {v(PTH)}")
                        p("s_setprio 0")
                        p(f"s_cbranch_vccz L{tag}_lo{u}")
                    else:
                        p(f"v_readfirstlane_b32 {s(sT0)}, {v(PRV)}")
                        p("s_setprio 0")
                        p(f"s_cmp_gt_i32 {s(sT0)}, 0")
                        p(f"s_cbranch_scc0 L{tag}_lo{u}")
                    p("s_setprio 1")
                    p(f"L{tag}_lo{u}:")
            elif t == "da":
                p(dma_half(0))
            elif t == "db":
                p(dma_half(1))
            elif t == "B":
                if u == U - 1:
                    p(f"s_lshr_b64 {s(F,2)}, {s(F,2)}, {U}")
                    if not opt["swap"]:
                        p(f"s_lshl_b64 {s(P0,2)}, {s(F+2,2)}, {64-U}")
                        p(f"s_or_b64 {s(F,2)}, {s(F,2)}, {s(P0,2)}")
                        p(f"s_lshr_b64 {s(F+2,2)}, {s(F+2,2)}, {U}")
                    event_mask()
                    p(f"v_add_u32 {v(RDL)}, {16*U}, {v(RDL)}")
                    if slow:
                        p(f"v_add_u32 {v(RDM)}, {16*U}, {v(RDM)}")
            elif k == "m":
                if not (opt["m1"] and n):
                    p(m0_half((u + LA) % D, n))
            elif k == "e":
                p(f"v_exp_f32 {v(ZA+n)}, {v(ZB+n)}")
            elif k == "r":
                p(f"v_rcp_f32 {v(ZA+n)}, {v(ZA+n)}")
            elif k == "c":
                p(f"v_cvt_pk_bf16_f32 {v(ZA+n)}, {v(ZA+2*n)}, {v(ZA+2*n+1)}")
            elif k == "s":
                p(f"v_cvt_pk_bf16_f32 {v(S+n)}, {v(S+2*n)}, {v(S+2*n+1)}")
            elif k == "A":
                p(f"v_mfma_f32_4x4x4_16b_bf16 {v(ZA+4*n,4)}, {v(ONE,2)}, {v(ONE,2)}, {v(ZA+4*n,4)}")
            elif k == "G":
                p(g1(n))
            elif k == "q":
                p(f"v_mfma_f32_4x4x4_16b_bf16 {v(ACC,4)}, {v(S,2)}, {v(XT+2*n,2)}, {v(ACC,4)} cbsz:4 abid:{4*n}")
            elif k == "t":
                p(f"ds_read_b64_tr_b16 {v(XT+2*n,2)}, {v(RDT)} offset:{u%D*SLOT+n*512+(n>>1)*32}")
            elif k == "k":
                p(f"v_mfma_f32_16x16x32_bf16 {v(S,4)}, {v(ZA+4*n,4)}, {v(W2+4*n,4)}, {v(B2,4) if n == 0 else v(S,4)}")
            elif k == "L":
                p(f"s_waitcnt lgkmcnt({n})")
            else:
                raise ValueError(t)

    if tag == "f" and opt.get("al") is not None:
        p(".p2align 6")
        for _ in range(opt["al"]):
            p("s_nop 0")
    p(f"L{tag}_loop:")
    for u in range(U):
        emit(u, toks, False)
    p(f"s_branch L{tag}_loop")
    for u in range(U):
        def gather_row(lab, then_w):
            if opt["swap"]:
                p(f"s_sub_u32 {s(sKA)}, {s(sKA)}, 1")
                p(f"s_cbranch_scc0 L{tag}_ns{lab}{u}")
                p(f"s_mov_b32 {s(sU)}, {u+LA+1}")
                p(f"s_call_b64 {s(RET,2)}, L_swap")
                if toks.index("ia") < toks.index("EV"):
                    p(f"ds_read_u8 {v(VA)}, {v(RDL)} offset:{(u+LA)*16}")
                    p(f"ds_read_u8 {v(VB)}, {v(RDL)} offset:{(u+LA)*16+8}")
                if then_w:
                    p("s_waitcnt lgkmcnt(0)")
                p(f"L{tag}_ns{lab}{u}:")
            adv_hist()
        p(f"L{tag}_fl{u}:")
        flush()
        p(f"s_bitcmp0_b32 {s(H+1)}, {u}")
        p(f"s_cbranch_scc1 L{tag}_evd{u}")
        p(f"s_branch L{tag}_ev2{u}")
        p(f"L{tag}_ev{u}:")
        jit()
        p(f"s_bitcmp1_b64 {s(F,2)}, {u}")
        p(f"s_cbranch_scc1 L{tag}_fl{u}")
        p(f"L{tag}_ev2{u}:")
        p(f"s_bitcmp1_b64 {s(F,2)}, {u+2}")
        p(f"s_cbranch_scc1 L{tag}_w{u}")
        gather_row("a", False)
        p(f"s_branch L{tag}_evd{u}")
        p(f"L{tag}_w{u}:")
        p(f"s_bitcmp0_b64 {s(F,2)}, {u+LA+1}")
        p(f"s_cbranch_scc1 L{tag}_e1{u}")
        gather_row("b", True)
        p(f"L{tag}_e1{u}:")
        p(f"s_sub_u32 {s(sKW)}, {s(sKW)}, 1")
        p(f"s_cbranch_scc1 L{tag}_last{u}")
        if opt["swap"]:
            p(f"s_bitcmp0_b32 {s(sPM)}, {s(sKW)}")
            p(f"s_cbranch_scc1 L{tag}_nw{u}")
            p(f"s_cmp_eq_u32 {s(sKW)}, 3")
            p(f"s_cselect_b32 {s(sT0)}, {s(sPD)}, {s(sPD+1)}")
            p(f"v_add_u32 {v(TADR)}, {s(sT0)}, {v(TADR)}")
            p(f"v_add_u32 {v(BADR)}, {s(sT0)}, {v(BADR)}")
            t_reads()
            p("s_waitcnt lgkmcnt(0)")
            p(f"L{tag}_nw{u}:")
        wbuild()
        p(f"s_branch L{tag}_evd{u}")
    for u in range(U):
        p(f"L{tag}_last{u}:")
        if u:
            if u % D:
                p(f"v_add_u32 {v(RDT)}, {u%D*SLOT}, {v(RDT)}")
            p(f"s_lshr_b64 {s(F,2)}, {s(F,2)}, {u}")
            if slow:
                p(f"v_add_u32 {v(RDM)}, {16*u}, {v(RDM)}")
        if u < U - 1:
            p(f"s_branch L{tag}_tail")
    p(f"L{tag}_tail:")
    i1 = toks.index("EV")
    drop = lambda t: t in ("vm", "ia", "ib", "EV", "ent", "P0", "P1", "da", "db", "B", "L2", "L4", "L6", "L7") or (t[0] in "Gxym" and t[1:].isdigit())
    last = ["k1"] if toks.index("k1") > i1 else []
    emit(0, [t for t in toks[i1:] + toks[:i1] if not drop(t)] + last + ["mi2", "s0", "s1", "q0", "q1", "q2", "q3"], True)
    flush(last=True)
    if tag != "f":
        p("s_branch L_store")


p(f"{NAME}:")
if opt.get("twice"):
    p("s_mov_b32 s3, 0")
    p("L_again:")
if opt.get("spin") or opt.get("endp"):
    p("s_memrealtime s[100:101]")
    p("s_mov_b32 s3, 0")
cst("entry")
if STAMP:
    if STAMP != 4:
        p("s_memrealtime s[98:99]")
        p("s_memtime s[96:97]")
    p("s_load_dwordx2 s[100:101], s[0:1], 72")
p("s_load_dwordx16 s[4:19], s[0:1], 0")
p(f"s_cmp_ge_u32 s2, {NWG}")
p("s_cbranch_scc1 L_end")
p("v_lshrrev_b32 v1, 6, v0")
p("v_and_b32 v0, 63, v0")
p(f"v_readfirstlane_b32 {s(sw)}, v1")
if opt["map"] & 2:
    p("s_and_b32 s3, s2, 7")
    p("s_lshl_b32 s3, s3, 5")
    p(f"s_lshr_b32 {s(sW)}, s2, 3")
    p(f"s_add_u32 {s(sW)}, {s(sW)}, s3")
    p(f"s_lshl_b32 {s(sW)}, {s(sW)}, {(WGSTR//2).bit_length()-1}")
else:
    p(f"s_lshl_b32 {s(sW)}, s2, {(WGSTR//2).bit_length()-1}")
p("v_lshlrev_b32 v2, 4, v0")
p("v_lshrrev_b32 v1, 4, v0")
p("v_and_b32 v3, 0xf0, v2")
p("v_lshlrev_b32 v3, 2, v3")
p(f"v_lshl_add_u32 {v(QH)}, v1, 4, v3")
p("v_bfrev_b32 v3, 1")
p(f"s_add_u32 {s(sW)}, {s(sW)}, {s(sw)}")
p(f"s_movk_i32 {s(sT0)}, 800")
p(f"v_cmp_gt_u32 vcc, {s(sT0)}, {v(QH)}")
p(f"s_mul_i32 {s(sOFF)}, {s(sW)}, 800")
p(f"s_mul_i32 {s(sLB)}, {s(sw)}, {REG}")
p(f"s_mov_b64 {s(EX50,2)}, vcc")
p(f"v_cndmask_b32 v3, v3, {v(QH)}, vcc")
p(f"v_and_b32 {v(TX+2)}, 16, v0")
p(f"v_lshlrev_b32 {v(TX)}, 1, {v(TX+2)}")
p(f"v_xor_b32 {v(TX)}, {v(TX)}, v2")
p(f"v_and_b32 {v(VOUT)}, 0xf0, v2")
p(f"v_lshl_add_u32 {v(VOUT)}, v1, {LGP+7}, {v(VOUT)}")
p(f"s_lshl_b32 {s(sT0)}, {s(sW)}, 8")
p(f"v_add_u32 {v(VOUT)}, {s(sT0)}, {v(VOUT)}")
p(f"s_lshl_b32 {s(sT1)}, {s(sw)}, 12")
p(f"s_add_u32 m0, {s(sLB)}, {TB}")
p(f"s_mov_b32 {s(SM+2)}, {16384*400}")
p(f"s_mov_b32 {s(SM+3)}, 0x20000")
p("s_waitcnt lgkmcnt(0)")
cst("kernarg")
if STAMP and STAMP != 4:
    p("v_mov_b32 v254, 0")
    p("v_writelane_b32 v254, s98, 0")
    p("v_writelane_b32 v254, s96, 32")
    nstamp[0] = 1
    stamp()
p(f"s_mov_b32 {s(SM)}, s8")
p(f"s_and_b32 {s(SM+1)}, s9, 0xffff")
if opt["ym"]:
    p(f"s_cmp_ge_u32 {s(sw)}, 4")
    p("s_cbranch_scc1 L_young0")
p(f"buffer_load_dwordx4 {v(MSK,4)}, v3, {s(SM,4)}, {s(sOFF)} offen {NTM}")
p("L_young0:")
if opt.get("xs"):
    for j in range(opt["xs"]):
        p("s_nop 15")
p(f"global_load_lds_dwordx4 {v(VOUT)}, s[4:5] {NTM}")
p(f"s_add_u32 m0, {s(sLB)}, {STG}")
p(f"s_add_u32 s10, s10, {s(sT1)}")
p("s_addc_u32 s11, s11, 0")
p(f"v_xor_b32 {v(TX+1)}, 64, {v(TX)}")
if opt.get("nsw"):
    p(f"v_mov_b32 {v(TX)}, v2")
    p(f"v_mov_b32 {v(TX+1)}, v2")
for j in range(4):
    p(f"global_load_lds_dwordx4 {v(TX+(j&1))}, s[10:11] offset:{j*1024}")
p(f"s_load_dword {s(sB2)}, s[16:17], 0")
p(f"s_and_b32 {s(sT1)}, {s(sw)}, 3")
B1R, W2R = CD + 28, DG


def load_b1():
    p(f"s_and_b32 {s(sT0)}, {s(sw)}, 3")
    p(f"s_lshl_b32 {s(sT0)}, {s(sT0)}, 5")
    p(f"v_lshl_add_u32 {v(TX+3)}, v1, 3, {s(sT0)}")
    p(f"global_load_dwordx2 {v(B1R,2)}, {v(TX+3)}, s[12:13]")


if not opt["ym"]:
    load_b1()
p(f"v_and_b32 {v(TX+4)}, 3, v0")
NVM = 11
if opt.get("arr"):
    cst("arr_issued")
    for n_out in (5, 4, 3, 2, 1, 0):
        p(f"s_waitcnt vmcnt({n_out})")
        cst(f"arr{n_out}")
stamp()
srd(SH, 6, 200, stride=128)
if opt["m1"]:
    p(f"s_sub_u32 {s(SH2)}, {s(SH)}, 1056")
    p(f"s_subb_u32 {s(SH2+1)}, {s(SH+1)}, 0")
    p(f"s_mov_b32 {s(SH2+2)}, 200")
    p(f"s_mov_b32 {s(SH2+3)}, 0x20000")


def list_reset():
    p(f"s_mul_i32 {s(sRO)}, {s(sW)}, 51200")
    p(f"s_movk_i32 {s(sDL)}, {DLT0}")
    if opt["swap"]:
        p(f"s_mov_b32 {s(sKA)}, {KB-5}")
    p(f"s_mov_b64 {s(F,2)}, 0")
    if not opt["swap"]:
        p(f"s_mov_b64 {s(F+2,2)}, 0")
    for j in range(4):
        p(f"v_mov_b32 {v(ZB+j)}, -1")
    p(f"s_add_u32 {s(sT0)}, {s(sLB)}, {LI}")
    p(f"v_add_u32 {v(ZB+4)}, {s(sT0)}, v2")
    p(f"ds_write_b128 {v(ZB+4)}, {v(ZB,4)}")
    p(f"ds_write_b128 {v(ZB+4)}, {v(ZB,4)} offset:1024")
    p(f"s_add_u32 {s(sBASE)}, {s(sLB)}, {L0}")


list_reset()
for j in range(5, 2 * D):
    p(f"v_mov_b32 {v(ZB+j)}, -1")
p(f"v_lshrrev_b32 {v(RDL)}, 3, v0")
p(f"v_add_u32 {v(RDL)}, {s(sBASE)}, {v(RDL)}")
p(f"v_lshl_add_u32 {v(RDM)}, v1, 2, {s(sT0)}")
p(f"v_and_b32 {v(VA+1)}, 0x70, v2")
p(f"v_lshlrev_b32 {v(TX+2)}, 2, {v(TX+2)}")
p(f"v_xor_b32 {v(VA+1)}, {v(VA+1)}, {v(TX+2)}")
p(f"v_mov_b32 {v(VB+1)}, {v(VA+1)}")
lane_mask = lambda f: sum(1 << i for i in range(64) if f(i & 15, i >> 4))


def smask(dst, m):
    p(f"s_mov_b32 {s(dst)}, {m & 0xffffffff:#x}")
    p(f"s_mov_b32 {s(dst+1)}, {m >> 32:#x}")


p(f"s_movk_i32 {s(sT0)}, 400")
p(f"v_cmp_le_u32 vcc, {s(sT0)}, {v(QH)}")
p(f"v_lshrrev_b32 {v(QV)}, 1, {v(QH)}")
p(f"s_movk_i32 {s(sT0)}, -200")
p(f"v_cndmask_b32 {v(QH)}, 0, 1, vcc")
p(f"v_mad_i32_i24 {v(QV)}, {v(QH)}, {s(sT0)}, {v(QV)}")
p(f"v_mul_u32_u24 {v(QV+1)}, 0x10001, {v(QV)}")
p(f"v_add_u32 {v(QV)}, 0x10000, {v(QV+1)}")
p(f"v_add_u32 {v(QV+2)}, 0x50004, {v(QV+1)}")
p(f"v_add_u32 {v(QV+3)}, 0x70006, {v(QV+1)}")
p(f"v_add_u32 {v(QV+1)}, 0x30002, {v(QV+1)}")
p(f"v_mov_b32 {v(NBA)}, {CNT:#x}")
smask(P0, lane_mask(lambda m, g: (m >> 2) >= g))
smask(P1, lane_mask(lambda m, g: (m >> 2) > g))
smask(P2, lane_mask(lambda m, g: (m >> 2) == g))
smask(NB, lane_mask(lambda m, g: (m & 3) == 0 or (m, g) == (1, 0)))
for x in range(2):
    p(f"v_cndmask_b32 {v(AP+x)}, 0, {v(NBA)}, {s(P0,2)}")
    p(f"v_cndmask_b32 {v(AP+4+x)}, 0, {v(NBA)}, {s(P1,2)}")
for x in range(4):
    p(f"v_cndmask_b32 {v(AT+x)}, 0, {v(NBA)}, {s(NB,2)}")
p(f"v_lshlrev_b32 {v(TX)}, 4, {v(TX+4)}")
p(f"v_sub_u32 {v(TX)}, 48, {v(TX)}")
smask(P0, 0x00F0BFE0BFE0BFE0)
p(f"v_lshrrev_b64 {v(AP+2,2)}, {v(TX)}, {s(P0,2)}")
p(f"v_mov_b32 {v(NBA)}, 0")
p(f"s_mov_b64 {s(NB,2)}, 0")
for x in range(2):
    p(f"v_cndmask_b32 {v(AP+2+x)}, {v(AP+4+x)}, {v(AP+2+x)}, {s(P2,2)}")
if STAMP:
    p(f"s_mov_b32 {s(sK)}, {KB-1}")
p(f"s_mov_b32 {s(sKW)}, {KB-1}")
p(f"s_mov_b32 {s(sC)}, {CNEG:#x}")
n_, r_, c_ = TX + 5, TX + 6, TX + 4
p(f"v_and_b32 {v(n_)}, 15, v0")
p(f"v_bfe_u32 {v(r_)}, v0, 2, 2")
X0 = TX + 7
SA, SC_, SB_, TBA, BWA = CA + 60, CA + 61, CA + 62, CA + 63, CD + 30
IDN, N0M = DG + 2, DG + 4
p(f"v_lshlrev_b32 {v(X0)}, 3, {v(c_)}")
p(f"v_lshl_add_u32 {v(X0)}, {v(r_)}, 7, {v(X0)}")
p(f"v_and_b32 {v(TX)}, 24, v0")
p(f"v_lshlrev_b32 {v(TX)}, 2, {v(TX)}")
p(f"v_xor_b32 {v(TX)}, {v(X0)}, {v(TX)}")
p(f"v_lshl_add_u32 {v(TX)}, v1, 10, {v(TX)}")
p(f"s_lshl_b32 {s(sT0)}, {s(sT1)}, 5")
p(f"v_xor_b32 {v(SB_)}, {s(sT0)}, {v(TX)}")
p(f"v_add_u32 {v(SB_)}, {STG+2*REG}, {v(SB_)}")
p(f"s_lshr_b32 {s(sT0)}, {s(sw)}, 1")
p(f"s_lshl_b32 {s(sT0)}, {s(sT0)}, 5")
p(f"v_xor_b32 {v(SA)}, {s(sT0)}, {v(TX)}")
p(f"s_and_b32 {s(sT0)}, {s(sw)}, 1")
p(f"s_mul_i32 {s(sT0)}, {s(sT0)}, {REG}")
p(f"s_add_u32 {s(sT0)}, {s(sT0)}, {STG}")
p(f"v_add_u32 {v(SA)}, {s(sT0)}, {v(SA)}")
p(f"v_add_u32 {v(SC_)}, {4*REG}, {v(SA)}")
p(f"s_and_b32 {s(sT0)}, {s(sw)}, 4")
p(f"v_lshrrev_b32 {v(TX)}, 3, {v(n_)}")
p(f"v_add_u32 {v(TX)}, {s(sT0)}, {v(TX)}")
p(f"v_mul_u32_u24 {v(TX)}, {REG}, {v(TX)}")
p(f"v_lshl_add_u32 {v(TX)}, v1, 4, {v(TX)}")
p(f"v_and_b32 {v(TX+1)}, 7, v0")
p(f"v_lshl_add_u32 {v(TBA)}, {v(TX+1)}, 7, {v(TX)}")


def gRDB():
    p(f"v_and_b32 {v(TX+1)}, 8, v0")
    p(f"v_lshlrev_b32 {v(TX+1)}, 2, {v(TX+1)}")
    p(f"v_lshl_add_u32 {v(TX+1)}, {v(n_)}, 7, {v(TX+1)}")
    p(f"v_add_u32 {v(TX+1)}, {s(sLB)}, {v(TX+1)}")
    p(f"v_and_b32 {v(TX+2)}, 2, v0")
    p(f"v_lshlrev_b32 {v(TX+2)}, 1, {v(TX+2)}")
    p(f"v_xor_b32 {v(TX+2)}, {v(TX+2)}, v1")
    p(f"v_lshl_add_u32 {v(RDB0)}, {v(TX+2)}, 4, {v(TX+1)}")
    p(f"v_xor_b32 {v(TX+2)}, 4, {v(TX+2)}")
    p(f"v_lshl_add_u32 {v(RDB1)}, {v(TX+2)}, 4, {v(TX+1)}")


def gRDT():
    p(f"v_and_b32 {v(TX+1)}, 8, v0")
    p(f"v_lshlrev_b32 {v(TX+1)}, 3, {v(TX+1)}")
    p(f"v_lshl_add_u32 {v(TX+2)}, v1, 5, {v(X0)}")
    p(f"v_xor_b32 {v(TX+2)}, {v(TX+2)}, {v(TX+1)}")
    p(f"v_add_u32 {v(RDT)}, {s(sLB)}, {v(TX+2)}")


def gTAD():
    p(f"s_add_u32 {s(sT0)}, {s(sLB)}, {TB}")
    p(f"v_lshl_add_u32 {v(TADR)}, {v(c_)}, 1, {s(sT0)}")
    p(f"v_lshl_add_u32 {v(TADR)}, {'v1' if W44 else v(r_)}, 4, {v(TADR)}")
    p(f"s_add_u32 {s(sT0)}, {s(sLB)}, {OUTS}")
    p(f"v_lshl_add_u32 {v(OADR)}, v0, 1, {s(sT0)}")
    p(f"s_add_u32 {s(sT0)}, {s(sLB)}, {BI}")
    p(f"v_lshl_add_u32 {v(BADR)}, v1, 4, {s(sT0)}")


def gBWA():
    p(f"s_and_b32 {s(sT0)}, {s(sw)}, 3")
    p(f"s_lshl_b32 {s(sT0)}, {s(sT0)}, 6")
    p(f"s_add_u32 {s(sT0)}, {s(sT0)}, {BI}")
    p(f"v_and_b32 {v(TX+1)}, 7, v0")
    p(f"v_mul_u32_u24 {v(TX+1)}, {BSTR-128}, {v(TX+1)}")
    p(f"v_add3_u32 {v(BWA)}, {v(TBA)}, {v(TX+1)}, {s(sT0)}")


def gSEL():
    if not W44:
        p(f"v_cmp_eq_u32 vcc, {v(r_)}, v1")
    p(f"v_and_b32 {v(TX+1)}, 1, v0")
    p(f"v_lshlrev_b32 {v(TX+1)}, 4, {v(TX+1)}")
    p(f"v_lshlrev_b32 {v(TX+1)}, {v(TX+1)}, 1")
    if not W44:
        p(f"v_cndmask_b32 {v(TX+1)}, 0, {v(TX+1)}, vcc")
    p(f"v_cmp_gt_u32 vcc, 2, {v(c_)}")
    p(f"v_mov_b32 {v(ONE+1)}, 0")
    p(f"v_mov_b32 {v(ONE)}, 0x3f80")
    p(f"v_cndmask_b32 {v(SEL0)}, 0, {v(TX+1)}, vcc")
    p(f"v_cmp_eq_u32 vcc, 0, {v(n_)}")
    p(f"v_sub_u32 {v(SEL1)}, {v(TX+1)}, {v(SEL0)}")
    p(f"v_mul_u32_u24 {v(IDN)}, 0x3f80, {v(SEL0)}")
    p(f"v_cndmask_b32 {v(N0M)}, 0, -1, vcc")
    p(f"v_mul_u32_u24 {v(IDN+1)}, 0x3f80, {v(SEL1)}")


def gZER():
    for j in range(8):
        p(f"v_mov_b32 {v(XT+j)}, 0")
    for j in range(4):
        p(f"v_mov_b32 {v(S+j)}, 0")
        p(f"v_mov_b32 {v(ACC+j)}, 0")


def gB2():
    p(f"s_lshl_b32 {s(sB2)}, {s(sB2)}, 16")
    for r in range(4):
        p(f"v_and_b32 {v(B2+r)}, {s(sB2)}, {v(N0M)}")


def gPRI():
    if opt["prio"]:
        p(f"s_add_u32 {s(sT0)}, {s(sLB)}, {PRG}")
        p(f"v_lshl_add_u32 {v(DG+5)}, v0, 2, {s(sT0)}")
        p(f"ds_write_b32 {v(DG+5)}, {v(ONE+1)}")
        p(f"s_xor_b32 {s(sT0)}, {s(sw)}, 4")
        p(f"s_mul_i32 {s(sT0)}, {s(sT0)}, {REG}")
        p(f"s_add_u32 {s(sT0)}, {s(sT0)}, {PRG}")
        p(f"v_writelane_b32 {v(DG+5)}, {s(sT0)}, 1")
    if opt["swap"]:
        p(f"v_add_u32 {v(DG+6)}, {s(sLB)}, v2")
        p("s_mov_b64 exec, 15")
        p(f"ds_write_b32 {v(DG+6)}, {v(ONE+1)} offset:{KEY}")
        p("s_mov_b64 exec, -1")


PLACE = dict(zip((gSEL, gBWA, gPRI, gB2, gRDB, gRDT, gTAD, gZER), (int(x) for x in str(opt["place"])[1:])))


def groups(k):
    for f, w_ in PLACE.items():
        if w_ == k:
            f()


groups(0)
if opt["ym"]:
    load_b1()
    p(f"s_cmp_ge_u32 {s(sw)}, 4")
    p("s_cbranch_scc0 L_old3z")
    p(f"buffer_load_dwordx4 {v(MSK,4)}, v3, {s(SM,4)}, {s(sOFF)} offen {NTM}")
    p("L_old3z:")


def late_loads():
    if opt["tlb"]:
        p(f"s_add_u32 {s(sT0)}, {s(sw)}, 1")
        p(f"s_and_b32 {s(sT0)}, {s(sT0)}, 6")
        p("s_cbranch_scc1 L_notouch")
        p(f"s_mov_b32 {s(sT0)}, {PSTR*25600}")
        p(f"v_mul_lo_u32 v255, v0, {s(sT0)}")
        p(f"s_mul_i32 {s(sT0)}, {s(sW)}, 51200")
        p(f"s_and_b32 {s(sT1)}, {s(sw)}, 1")
        p(f"s_mul_i32 {s(sT1)}, {s(sT1)}, {51200-128}")
        p(f"s_add_u32 {s(sT0)}, {s(sT0)}, {s(sT1)}")
        p(f"v_add_u32 v255, {s(sT0)}, v255")
        p("s_mov_b64 exec, 14")
        p(f"global_load_dword v255, v255, s[6:7] {NT}")
        p("s_mov_b64 exec, -1")
        p("L_notouch:")
    for j in range(1, 4):
        p(f"s_add_u32 {s(sOFF)}, {s(sOFF)}, {PSTR*400}")
        p(f"buffer_load_dwordx4 {v(MSK+4*j,4)}, v3, {s(SM,4)}, {s(sOFF)} offen {NTM}")
    p(f"v_lshlrev_b32 {v(TX+3)}, 3, v1")
    p(f"v_lshl_add_u32 {v(TX+3)}, {v(TX+4)}, 5, {v(TX+3)}")
    p(f"global_load_dwordx2 {v(W2R,2)}, {v(TX+3)}, s[14:15]")


G2 = opt["g2"]
if not G2:
    late_loads()
LL = 0 if G2 else 4
NE = D - 2
IDX = ZB


def idx_reads():
    for t in range(LA):
        p(f"ds_read_u8 {v(IDX+2*t)}, {v(RDL)} offset:{t*16}")
        p(f"ds_read_u8 {v(IDX+2*t+1)}, {v(RDL)} offset:{t*16+8}")


def tiles(t0, t1, bits, tag):
    for t in range(t0, t1):
        if t > 0:
            p(f"s_bitcmp0_b64 {s(bits,2)}, {t+1}")
            p(f"s_cbranch_scc1 L_noadv{tag}{t}")
            adv_hist()
            if opt["swap"]:
                p(f"s_sub_u32 {s(sKA)}, {s(sKA)}, 1")
            p(f"L_noadv{tag}{t}:")
        p(m0_half(t, 0))
        p(f"v_mov_b32 {v(VA)}, {v(IDX+2*t)}")
        p(f"v_mov_b32 {v(VB)}, {v(IDX+2*t+1)}")
        p(dma_half(0))
        if not opt["m1"]:
            p(m0_half(t, 1))
            p("s_nop 0")
        p(dma_half(1))


issued = [0]


def early(n):
    if n == 0:
        return
    t0 = issued[0]
    p(f"s_cmp_eq_u32 {s(sEARLY)}, 0")
    p(f"s_cbranch_scc1 L_skip{t0}")
    tiles(t0, t0 + n, F, "e")
    p(f"L_skip{t0}:")
    issued[0] += n


def x5tile():
    p(f"ds_read_u8 {v(VA)}, {v(RDL)} offset:{D*16}")
    p(f"ds_read_u8 {v(VB)}, {v(RDL)} offset:{D*16+8}")
    p(f"s_add_u32 m0, {s(sLB)}, {LI-2176}")
    p("s_waitcnt lgkmcnt(0)")
    p(dma_half(0))
    p(dma_half(1))


def first_pair():
    q_total(0, 0)
    t = q_test(0)
    for x in t[:8]:
        p(x)
    for step in range(5):
        p(q_scan(0, step))
        for x in t[8 + step:9 + step]:
            p(x)
    p(f"v_cmp_ne_u32 vcc, 0, {v(NBA)}")
    q_lanes(0)
    p(f"s_mov_b32 {s(sEARLY)}, 0")
    p("s_cbranch_vccnz L_late")
    q_ranks(0, 0)
    p(f"s_add_u32 {s(sT0)}, {s(sLB)}, {L0+16*LA}")
    p(f"s_cmp_ge_u32 {s(sBASE)}, {s(sT0)}")
    q_write(0)
    p("s_cbranch_scc0 L_late")
    p(f"s_mov_b32 {s(sEARLY)}, 1")
    idx_reads()
    p("s_waitcnt lgkmcnt(0)")
    tiles(0, NE, F, "e")
    if opt.get("x5") == 2:
        x5tile()
    p(f"s_setpc_b64 {s(RET,2)} ; ret=L_fp")
    p("L_late:")
    p("s_waitcnt vmcnt(0)")
    p(f"s_setpc_b64 {s(RET,2)} ; ret=L_fp")


stamp()
jit()
if not opt["yf"]:
    p(f"s_cmp_ge_u32 {s(sw)}, 4")
    p("s_cbranch_scc1 L_young1")
p(f"s_waitcnt vmcnt({6+LL}) lgkmcnt(0)")
p(f"s_call_b64 {s(RET,2)}, L_fp")
p(f"s_waitcnt vmcnt({1+LL+2*NE})")
p("s_branch L_old1")
p("L_young1:")
p(f"s_waitcnt vmcnt({1+LL+opt['ym']})")
p("L_old1:")
cst("preB1")
p(f"s_waitcnt lgkmcnt(0)")
p("s_barrier")
stamp()
cst("B1")
jit()
RWA, RWC, RWD, RBB, RBC, TP, DB, DA, DD = CA, CA + 4, CA + 8, CA + 12, CA + 20, CA + 28, CA + 44, CA + 52, CD
for (dst, base) in ((RBB, 0), (RBC, 2)):
    for ks in range(2):
        for u in range(2):
            p(f"ds_read_b64_tr_b16 {v(dst+4*ks+2*u,2)}, {v(SB_)} offset:{(base+ks)*REG+u*512}")
for j in range(2):
    for ks in range(2):
        p(f"ds_read_b128 {v(TP+8*j+4*ks,4)}, {v(TBA)} offset:{TB+j*2*REG+ks*64}")
for u in range(2):
    p(f"ds_read_b64_tr_b16 {v(RWA+2*u,2)}, {v(SA)} offset:{u*512}")
    p(f"ds_read_b64_tr_b16 {v(RWC+2*u,2)}, {v(SC_)} offset:{u*512}")
    p(f"ds_read_b64_tr_b16 {v(RWD+2*u,2)}, {v(SC_)} offset:{2*REG+u*512}")
if not opt["yf"]:
    p(f"s_cmp_ge_u32 {s(sw)}, 4")
    p("s_cbranch_scc1 L_young2")
p(f"s_waitcnt vmcnt({LL+2*NE})")
p("s_branch L_old2")
p("L_young2:")
p(f"s_waitcnt vmcnt({LL+opt['ym']})")
p("L_old2:")
if G2 == 1:
    late_loads()
for j in range(2):
    p(f"v_lshlrev_b32 {v(DB+2*j)}, 16, {v(B1R+j)}")
    p(f"v_and_b32 {v(DB+2*j+1)}, 0xffff0000, {v(B1R+j)}")
groups(1)
jit()
cst("firstpair")
p("s_waitcnt lgkmcnt(0)")
for j in range(8):
    p(f"v_xor_b32 {v(RBC+j)}, 0x80008000, {v(RBC+j)}")
for u in range(2):
    p(f"{DIAGMM} {v(DA+4*u,4)}, {v(IDN,2)}, {v(RWA+2*u,2)}, 0")
    p(f"{DIAGMM} {v(DD+4*u,4)}, {v(IDN,2)}, {v(RWD+2*u,2)}, 0")
for u in range(2):
    p(f"{DIAGMM} {v(DA+4*u,4)}, {v(IDN,2)}, {v(RWC+2*u,2)}, {v(DA+4*u,4)}")
if G2 == 3:
    late_loads()
for j in (1, 0):
    first = True
    for (src) in (RBB, RBC):
        for ks in range(2):
            c = v(DB, 4) if first else v(DB + 4 * j, 4)
            p(f"v_mfma_f32_16x16x32_bf16 {v(DB+4*j,4)}, {v(src+4*ks,4)}, {v(TP+8*j+4*ks,4)}, {c}")
            first = False
for j in range(8):
    p(f"v_mul_f32 {v(DA+j)}, {s(sC)}, {v(DA+j)}")
for j in range(8):
    p(f"v_mul_f32 {v(DD+j)}, {s(sC)}, {v(DD+j)}")
p(f"s_add_u32 {s(sT0)}, {s(sLB)}, {XCH}")
if G2 == 2:
    p(f"v_mov_b32 {v(TX+2)}, v3")
p(f"v_add_u32 v3, {s(sT0)}, v2")
for j in range(4):
    p(f"v_cvt_pk_bf16_f32 {v(DD+j)}, {v(DD+2*j)}, {v(DD+2*j+1)}")
for j in range(8):
    p(f"v_mul_f32 {v(DB+j)}, {s(sC)}, {v(DB+j)}")
p(f"ds_write_b128 v3, {v(DA,4)}")
p(f"ds_write_b128 v3, {v(DA+4,4)} offset:1024")
p(f"ds_write_b128 v3, {v(DD,4)} offset:2048")
p(f"ds_write_b128 {v(BWA)}, {v(DB,4)}")
p(f"ds_write_b128 {v(BWA)}, {v(DB+4,4)} offset:{2*REG}")
if G2 == 2:
    p(f"v_mov_b32 {v(TX+1)}, v3")
    p(f"v_mov_b32 v3, {v(TX+2)}")
    late_loads()
p(f"v_add_u32 v3, {XCH}, v2")
p(f"v_add_u32 {v(TX)}, {4*REG}, v3")
cst("preB3")
p("s_waitcnt lgkmcnt(0)")
p("s_barrier")
cst("B3")
jit()
stamp()
def const_reads(w0, w1):
    if opt.get("xc"):
        return
    for w_ in range(w0, w1):
        a = "v3" if w_ < 4 else v(TX)
        p(f"ds_read_b128 {v(CA+8*w_,4)}, {a} offset:{(w_&3)*REG}")
        p(f"ds_read_b128 {v(CA+8*w_+4,4)}, {a} offset:{(w_&3)*REG+1024}")
        p(f"ds_read_b128 {v(CD+4*w_,4)}, {a} offset:{(w_&3)*REG+2048}")


if opt["yf"]:
    assert not opt["ym"] and not opt["y2"]
    p("s_branch L_old3")
p(f"s_cmp_ge_u32 {s(sw)}, 4")
p("s_cbranch_scc0 L_old3")
if opt["yp"]:
    p("s_setprio 2")
if opt["ym"]:
    p("s_waitcnt vmcnt(4)")
p(f"s_call_b64 {s(RET,2)}, L_fp")
if opt["y2"]:
    p("s_branch L_yng3")
p("L_old3:")
p(f"s_call_b64 {s(RET,2)}, L_t23")
p("L_yng3:")
const_reads(0, 3)
groups(2)
p(f"s_waitcnt vmcnt({2*min(NE, LA-NE) if opt['y2'] or G2 else 2*LA})")
cst("tiles23")
for i in range(3):
    q_total(i, i + 1)
t = q_test(1) + q_test(2) + q_test(3)
for x in t[:9]:
    p(x)
for step in range(5):
    for i in range(3):
        p(q_scan(i, step))
const_reads(3, 5)
for x in t[9:]:
    p(x)
p(f"v_cmp_ne_u32 vcc, 0, {v(NBA)}")
for i in range(3):
    q_lanes(i)
p("s_cbranch_vccnz L_general")
q_ranks(0, 1)
q_ranks(1, 2)
q_write(0)
q_ranks(2, 3)
q_write(1)
const_reads(5, 8)
t_reads()
q_write(2)
if opt["y2"]:
    p(f"s_cmp_ge_u32 {s(sw)}, 4")
    p("s_cbranch_scc0 L_old3b")
    p(f"s_call_b64 {s(RET,2)}, L_t23")
    p("L_old3b:")
p("L_listed:")
stamp()
jit(True)
if opt["swap"]:
    p(f"s_and_b32 {s(sT2)}, {s(NB)}, 0x40000000")
    p(f"s_or_b32 {s(sT2)}, {s(sT2)}, {s(sw)}")
    p(f"s_bitset1_b32 {s(sT2)}, 31")
    for r, src in ((sT0, A0 + 6), (sT1, A0 + 10)):
        p(f"s_and_b32 {s(r)}, {s(src)}, 0x1ff")
        p(f"s_lshl_b32 {s(r)}, {s(r)}, 3")
        p(f"s_or_b32 {s(r)}, {s(r)}, {s(sT2)}")
    for x, r in enumerate((sT0, sCUR, sM2, sB3)):
        p(f"v_mov_b32 {v(ZA+x)}, {s(r)}")
    for x, r in enumerate((sT1, sB3, sM3, sE3)):
        p(f"v_writelane_b32 {v(ZA+x)}, {s(r)}, 1")
    p("s_mov_b64 exec, 3")
    p(f"ds_write_b128 {v(DG+6)}, {v(ZA,4)} offset:{KEY}")
    p("s_mov_b64 exec, -1")
    p(f"s_sub_u32 {s(sSZ)}, {s(sB3)}, {s(sCUR)}")
    p(f"s_sub_u32 {s(sSZ+1)}, {s(sE3)}, {s(sB3)}")
    p(f"s_lshl_b32 {s(sOW)}, {s(sw)}, 3")
    p(f"s_mov_b32 {s(sRND)}, 0")
    p(f"s_mov_b32 {s(sPM)}, 0")
if opt["prio"]:
    step = 2 * PSTEP
    p(f"s_sub_u32 {s(sT0)}, {s(sBASE)}, {s(sLB)}")
    p(f"s_sub_u32 {s(sT0)}, {s(sT0)}, {L0}")
    p(f"s_lshr_b32 {s(sT0)}, {s(sT0)}, 3")
    if opt["bias"]:
        p(f"s_lshr_b32 {s(sT1)}, {s(sw)}, 2")
        p(f"s_mul_i32 {s(sT1)}, {s(sT1)}, {2*opt['bias']}")
        p(f"s_add_u32 {s(sT0)}, {s(sT0)}, {s(sT1)}")
    p(f"s_sub_u32 {s(sT1)}, 0, {s(sT0)}")
    p(f"v_mov_b32 {v(PADR)}, {v(DG+5)}")
    p(f"v_mov_b32 {v(PRV)}, {s(sT0)}")
    p(f"v_mov_b32 {v(PINC)}, {-step}")
    p(f"v_writelane_b32 {v(PRV)}, {s(sT1)}, 1")
    p(f"v_writelane_b32 {v(PINC)}, {step}, 1")
    p(f"ds_add_u32 {v(PADR)}, {v(PRV)}")
    if opt["pv"]:
        p(f"v_bfrev_b32 {v(PTH)}, -2")
        p(f"v_writelane_b32 {v(PTH)}, 0, 0")
p(f"s_cmp_eq_u32 {s(sEARLY)}, 1")
p("s_cbranch_scc1 L_nolate")
idx_reads()
p("s_waitcnt lgkmcnt(0)")
tiles(0, LA, F, "l")
p("L_nolate:")
for hb in range(4):
    for j in range(2):
        p(f"v_and_b32_dpp {v(W2+2*hb+j)}, {v(W2R+j)}, {v(N0M)} quad_perm:[{hb},{hb},{hb},{hb}] row_mask:0xf bank_mask:0xf")
if opt.get("xp"):
    for j in range(opt["xp"]):
        p("s_nop 15")
cst("precompactdone")
p(f"s_waitcnt vmcnt({2*(LA-1)}) lgkmcnt(0)")
read_xb(0, 0)
read_xb(0, 1)
wbuild(opt["fg"])
stamp()
stamp(33)
cst("wbuilt")
if STAMP == 4:
    p("s_waitcnt lgkmcnt(0)")
    p("v_mov_b32 v254, 0")
    for j, r in enumerate((38,80,82,96,98,44,46,48,50,16)):
        p(f"v_writelane_b32 v254, s{r}, {j}")
if not opt["fg"]:
    for j in range(8):
        p(g1(j))
if "y0" in SCHED[opt["sched"]]:
    p(f"s_waitcnt vmcnt({2*(LA-2)})")
    read_xb(1, 0)
    read_xb(1, 1)
_t = SCHED[opt["sched"]].split()
if _t.index("ia") < _t.index("EV"):
    p(f"ds_read_u8 {v(VA)}, {v(RDL)} offset:{LA*16}")
    p(f"ds_read_u8 {v(VB)}, {v(RDL)} offset:{LA*16+8}")
if _t.index("k1") > _t.index("EV"):
    for j in range(4, 8):
        p(f"v_mov_b32 {v(ZA+j)}, 0")
if opt.get("x5"):
    p("s_waitcnt lgkmcnt(0)")
    p(f"v_mov_b32 {v(VA)}, 0xff")
    p(f"v_mov_b32 {v(VB)}, 0xff")
event_mask()
p(f"s_cmp_lg_u64 {s(NB,2)}, 0")
if opt.get("so"):
    p("s_cbranch_scc1 L_gen2")
    p(f"s_getreg_b32 {s(sT0)}, hwreg(HW_REG_XCC_ID, 0, 1)")
    p(f"s_cmp_eq_u32 {s(sT0)}, 0")
    p("s_cbranch_scc1 Lf_mid")
    p("s_branch Lo_mid")
    p("L_gen2:")
else:
    p("s_cbranch_scc0 Lf_mid")
p(f"s_mul_i32 {s(sT0)}, {s(sW)}, 800")
p(f"s_add_u32 s8, s8, {s(sT0)}")
p("s_addc_u32 s9, s9, 0")
srd(SM, 8, 400)
p(f"s_movk_i32 {s(sMDL)}, {MDL0}")
p("s_branch Ls_mid")
p("L_fp:")
first_pair()
if opt["swap"]:
    A_, B_, KB_, TK_, KA_ = ZA + 8, ZA + 9, ZA + 10, ZA + 11, ZA + 12
    p("L_swap:")
    p(f"v_lshrrev_b32 {v(A_)}, 3, v0")
    p(f"v_and_b32 {v(B_)}, 7, v0")
    p(f"v_mul_u32_u24 {v(A_)}, {REG}, {v(A_)}")
    p(f"v_mul_u32_u24 {v(B_)}, {REG}, {v(B_)}")
    p(f"v_add_u32 {v(A_)}, {s(sRND)}, {v(A_)}")
    p(f"v_add_u32 {v(B_)}, {s(sRND)}, {v(B_)}")
    p(f"v_mov_b32 {v(TK_)}, 1")
    p("s_mov_b64 exec, 1")
    p(f"ds_add_rtn_u32 {v(TK_)}, {v(A_)}, {v(TK_)} offset:{TKT}")
    p("s_mov_b64 exec, -1")
    p("L_swap_poll:")
    p(f"ds_read_b32 {v(KB_)}, {v(B_)} offset:{KEY}")
    p(f"ds_read_b128 {v(KA_,4)}, {v(A_)} offset:{KEY}")
    p(f"v_and_b32 {v(TX+2)}, 56, v0")
    p("s_waitcnt lgkmcnt(0)")
    p(f"v_cmp_le_i32 vcc, 0, {v(KB_)}")
    p(f"v_cmp_gt_u32 {s(P0,2)}, {v(KB_)}, {v(KA_)}")
    p(f"v_lshlrev_b32 {v(TX+3)}, 1, {v(KB_)}")
    p(f"v_readfirstlane_b32 {s(sT0)}, {v(TK_)}")
    p("s_cbranch_vccnz L_swap_poll")
    p(f"v_lshrrev_b64 {v(TX,2)}, {v(TX+2)}, {s(P0,2)}")
    p(f"v_cmp_gt_i32 {s(P1,2)}, 0, {v(TX+3)}")
    p(f"v_and_b32 {v(TX)}, 0xff, {v(TX)}")
    p(f"v_bcnt_u32_b32 {v(TX)}, {v(TX)}, 0")
    p(f"v_cmp_eq_u32 vcc, {s(sT0)}, {v(TX)}")
    p(f"s_lshl_b32 {s(sT1)}, {s(sw)}, 3")
    p(f"s_ff1_i32_b64 {s(sT0)}, vcc")
    p(f"s_cmp_lg_u64 {s(P1,2)}, 0")
    p(f"s_cselect_b32 {s(sT0)}, {s(sT1)}, {s(sT0)}")
    p(f"s_sub_u32 {s(sT3)}, {s(sT0)}, {s(sOW)}")
    p(f"s_mov_b32 {s(sOW)}, {s(sT0)}")
    p(f"s_sub_u32 {s(sDG+1)}, {s(sT0)}, {s(sT1)}")
    p(f"v_readlane_b32 {s(sT1)}, {v(KA_+2)}, {s(sT0)}")
    p(f"v_readlane_b32 {s(sT2)}, {v(KA_+3)}, {s(sT0)}")
    p(f"v_readlane_b32 {s(sT0)}, {v(KA_+1)}, {s(sT0)}")
    p(f"s_mul_i32 {s(sPD+1)}, {s(sT3)}, {REG // 8}")
    p(f"s_mul_i32 {s(sT3)}, {s(sT3)}, 6400")
    p(f"s_add_u32 {s(sRO)}, {s(sRO)}, {s(sT3)}")
    p(f"s_sub_u32 {s(sT3)}, {s(sT0)}, {s(sCUR)}")
    p(f"v_add_u32 {v(RDL)}, {s(sT3)}, {v(RDL)}")
    p(f"s_mov_b32 {s(sCUR)}, {s(sT2)}")
    for r in (sT1, sT2):
        p(f"s_sub_u32 {s(r)}, {s(r)}, {s(sT0)}")
    p(f"s_sub_u32 {s(sT3)}, {s(sT2)}, {s(sSZ)}")
    for r in (sT1, sT2):
        p(f"s_lshr_b32 {s(r)}, {s(r)}, 4")
        p(f"s_add_u32 {s(r)}, {s(r)}, {s(sU)}")
        p(f"s_bitset1_b64 {s(F,2)}, {s(r)}")
    event_mask()
    if opt["prio"]:
        p(f"s_ashr_i32 {s(sT3)}, {s(sT3)}, 3")
        p(f"v_mov_b32 {v(A_)}, {s(sT3)}")
        p(f"s_sub_u32 {s(sT3)}, 0, {s(sT3)}")
        p(f"v_writelane_b32 {v(A_)}, {s(sT3)}, 1")
        p(f"ds_add_u32 {v(PADR)}, {v(A_)}")
    p(f"s_cmp_eq_u32 {s(sRND)}, 0")
    p(f"s_cselect_b32 {s(sPD)}, {s(sPD+1)}, {s(sPD)}")
    p(f"s_cselect_b32 {s(sDG)}, {s(sDG+1)}, {s(sDG)}")
    p(f"s_cselect_b32 {s(sKA)}, 1, 8")
    p(f"s_cselect_b32 {s(sT0)}, 4, 2")
    p(f"s_mov_b32 {s(sSZ)}, {s(sSZ+1)}")
    p(f"s_mov_b32 {s(sRND)}, 16")
    p(f"s_cmp_eq_u32 {s(sKW)}, {s(sT0)}")
    p("s_cbranch_scc1 L_swap_now")
    p(f"s_sub_u32 {s(sT0)}, {s(sT0)}, 1")
    p(f"s_bitset1_b32 {s(sPM)}, {s(sT0)}")
    p(f"s_setpc_b64 {s(RET,2)} ; ret=L_swap")
    p("L_swap_now:")
    p(f"v_add_u32 {v(TADR)}, {s(sPD+1)}, {v(TADR)}")
    p(f"v_add_u32 {v(BADR)}, {s(sPD+1)}, {v(BADR)}")
    t_reads()
    p(f"s_setpc_b64 {s(RET,2)} ; ret=L_swap")
p("L_t23:")
p(f"s_cmp_eq_u32 {s(sEARLY)}, 0")
p("s_cbranch_scc1 L_skip23")
tiles(NE, LA, F, "e")
if opt.get("x5") == 1:
    x5tile()
p(f"s_setpc_b64 {s(RET,2)} ; ret=L_t23")
p("L_skip23:")
p("s_waitcnt vmcnt(0)")
p(f"s_setpc_b64 {s(RET,2)} ; ret=L_t23")
mainloop("f", False)
p("L_store:")
p(f"s_add_u32 {s(sT0)}, {s(sLB)}, {OUTS}")
p(f"v_lshl_add_u32 {v(TX+1)}, v0, 4, {s(sT0)}")
if opt["swap"]:
    for j in range(2):
        p(f"s_lshl_b32 {s(sT0)}, {s(sDG+j)}, 5")
        p(f"s_bfm_b64 exec, 16, {32+16*j}")
        p(f"v_add_u32 {v(VOUT)}, {s(sT0)}, {v(VOUT)}")
    p("s_mov_b64 exec, -1")
p(f"ds_read_b128 {v(ZB,4)}, {v(TX+1)}")
p("s_waitcnt lgkmcnt(0)")
if opt.get("endp"):
    p("s_cmp_lg_u32 s2, 0")
    p("s_cbranch_scc1 L_endp")
    p("L_endq:")
    p("s_memrealtime s[38:39]")
    p("s_waitcnt lgkmcnt(0)")
    p("s_sub_u32 s38, s38, s100")
    p(f"s_cmp_lt_i32 s38, {opt['endp']*100}")
    p("s_cbranch_scc1 L_endq")
    p("L_endp:")
    if opt.get("fr"):
        p(f"s_and_b32 s38, s2, {opt['fr']}")
        p("s_cbranch_scc0 L_endr")
        p(f"global_store_dwordx4 {v(VOUT)}, {v(ZB,4)}, s[18:19] sc0 sc1")
        p("s_endpgm")
        p("L_endr:")
p(f"global_store_dwordx4 {v(VOUT)}, {v(ZB,4)}, s[18:19] {NTO}")
if STAMP:
    p("s_mov_b64 exec, -1")
    stamp(34)
    p(f"v_writelane_b32 v254, {s(sBASE)}, 15")
    p("s_getreg_b32 s96, hwreg(HW_REG_XCC_ID)")
    p("v_writelane_b32 v254, s96, 14")
    p("s_getreg_b32 s96, hwreg(HW_REG_HW_ID)")
    p("v_writelane_b32 v254, s96, 13")
    srd(SM, 100, 2048 * 256)
    p(f"s_lshl_b32 {s(sT0)}, s2, 3")
    p(f"s_add_u32 {s(sT0)}, {s(sT0)}, {s(sw)}")
    p(f"s_lshl_b32 {s(sT0)}, {s(sT0)}, 8")
    p(f"v_lshlrev_b32 v1, 2, v0")
    p(f"buffer_store_dword v254, v1, {s(SM,4)}, {s(sT0)} offen")
if opt.get("twice"):
    p("s_waitcnt vmcnt(0) lgkmcnt(0)")
    p("s_barrier")
    p("s_setprio 0")
    p(f"s_lshl_b32 {s(sT0)}, {s(sw)}, 6")
    p(f"v_add_u32 v0, {s(sT0)}, v0")
    p("s_add_u32 s3, s3, 1")
    p("s_cmp_eq_u32 s3, 1")
    p("s_cbranch_scc1 L_again")
if opt.get("spin"):
    if opt.get("probe"):
        if opt["probe"] == "end":
            p("s_memrealtime s[98:99]")
            p("s_waitcnt lgkmcnt(0)")
        p("s_sub_u32 s98, s98, s100")
        p(f"s_mul_i32 s98, s98, {opt.get('pk', 4)}")
        p("s_add_u32 s100, s100, s98")
    p("L_spin:")
    p("s_memrealtime s[38:39]")
    p("s_waitcnt lgkmcnt(0)")
    p("s_sub_u32 s38, s38, s100")
    p(f"s_cmp_lt_i32 s38, {opt['spin']*100}")
    p("s_cbranch_scc1 L_spin")
p("L_end:")
p("s_endpgm")
if opt.get("so"):
    mainloop("o", False, opt["so"])
p("L_general:")
p("s_waitcnt vmcnt(0)")
const_reads(5, 8)
t_reads()
list_reset()
p(f"s_bfm_b64 {s(EX50,2)}, 50, 0")
p(f"s_mul_i32 {s(sT0)}, {s(sW)}, 800")
p(f"v_add_u32 {v(TX+1)}, {s(sT0)}, v2")
p(f"s_mov_b64 exec, {s(EX50,2)}")
for j in range(4):
    p(f"global_load_dwordx4 {v(MSK+4*j,4)}, {v(TX+1)}, s[8:9]")
    p(f"v_add_u32 {v(TX+1)}, {PSTR*400}, {v(TX+1)}")
p("s_mov_b64 exec, -1")
p(f"v_cmp_lt_u32 vcc, 24, v0")
p(f"v_cndmask_b32 {v(HI)}, 0, 1, vcc")
p(f"v_mul_u32_u24 {v(CV+1)}, 25, {v(HI)}")
p(f"v_sub_u32 {v(CV+1)}, v0, {v(CV+1)}")
p(f"v_mul_u32_u24 {v(CV+1)}, 0x80008, {v(CV+1)}")
p(f"v_add_u32 {v(CV)}, 0x10000, {v(CV+1)}")
p(f"v_add_u32 {v(CV+2)}, 0x50004, {v(CV+1)}")
p(f"v_add_u32 {v(CV+3)}, 0x70006, {v(CV+1)}")
p(f"v_add_u32 {v(CV+1)}, 0x30002, {v(CV+1)}")
p("s_waitcnt vmcnt(0)")
for j in range(4):
    compact_body(j)
p(f"s_mov_b32 {s(sEARLY)}, 0")
p(f"s_mov_b64 {s(NB,2)}, -1")
p("s_branch L_listed")
mainloop("s", True)

nn = p.fix_hazards(verbose=opt["verbose"])
for early_, old_, gen_ in ((a_, b_, c_) for a_ in (True, False) for b_ in (True, False) for c_ in (True, False)):
    force = [("L_skip", not early_), ("L_nolate", early_ and not gen_), ("L_young", not old_), ("L_old3", old_), ("L_general", gen_)]
    for e in check_waits(p, force + ([("L_late", False)] if early_ else [])) if early_ else check_waits(p, force, cut="L_noadve"):
        if STAMP != 4 and not opt.get('x5'):
            sys.exit(f"WAIT-CHECK early={early_}: {e}")
hdr = open(__file__.rsplit("/", 1)[0] + "/../standalone__sequential_behavior_din__recsys.s.ref").read().split("\n")
head = [l for l in hdr if l.startswith(";") and "@launch" not in l and "Override" not in l and "grid=ceil" not in l]
out = "\n".join(head) + f"""
; @launch grid=({NWG},1,1) block=({WPB*64},1,1) lds={WPB*REG}
; generated by gen/gen.py {' '.join(sys.argv[1:])}
;
; out[b] = sum_l mask[b,l] * (sigmoid([h, t, h-t, h*t] w1 + b1) w2 + b2) * h,   h = hist[b,l], t = target[b]
; With w1 = [Wa; Wb; Wc; Wd] and c = -log2(e):  Z = h W_eff + bias,  W_eff = c (Wa + Wc + diag(t) Wd),  bias = c (b1 + t (Wb - Wc)),
; sigmoid = 1 / (1 + 2^Z).  History rows whose mask is zero contribute nothing and are not loaded.
; One workgroup per CU, 8 waves, 8 batch rows per wave.  Prologue: shared constants (weights staged in LDS, one slice per wave),
; bias for the workgroup's 64 rows, and per wave a list of the active history rows (prefix sums by int8 MFMA for 0/1 masks;
; any other mask value selects the general path: comparison-based lists and a loop copy that scales the scores by the mask).
; Loop: 16-row tiles gathered into a 4-slot LDS ring (LDS-DMA, index 255 = out of range = zeros); GEMM1 (16x16x32), exp, +1 (4x4x4
; MFMA), rcp, score (16x16x32), weighted sum (4x4x4 with A broadcast on transposed reads).  The two waves of a SIMD keep level through
; an LDS counter and s_setprio; row pairs 2 and 3 are handed out inside the workgroup in arrival order, largest first.
.amdgcn_target "amdgcn-amd-amdhsa--gfx950"
.text
.globl {NAME}
.p2align 8
.type {NAME},@function
""" + p.text() + f""".section .rodata,"a"
.p2align 6
.amdhsa_kernel {NAME}
  .amdhsa_next_free_vgpr 256
  .amdhsa_next_free_sgpr 102
  .amdhsa_accum_offset 256
  .amdhsa_group_segment_fixed_size 0
  .amdhsa_kernarg_size 80
  .amdhsa_user_sgpr_count 2
  .amdhsa_user_sgpr_kernarg_segment_ptr 1
  .amdhsa_system_sgpr_workgroup_id_x 1
.end_amdhsa_kernel
"""
sys.stdout.write(out)
```

```python
import sys
from asmlib import Prog, check_waits

opt = dict(LA=4, fg=0, pv=1, U=4, al=0, yf=0, tlb=0, g2=1, ym=1, swap=1, bias=1, y2=1, yp=0, vx=0, m1=1, map=0, place=900010000, D=4, nt="nt", ntm="nt", nto="sc0 sc1", verbose=0, prio=1, sched="r")
for a in sys.argv[1:]:
    k, v = a.split("=", 1)
    opt[k] = int(v) if v.lstrip("-").isdigit() else v.replace("+", " ")
D = opt["D"]
U = opt["U"]
assert U % D == 0
LA = opt["LA"]
NT, NTM, NTO = opt["nt"], opt["ntm"], opt["nto"]
STAMP = opt.get("stamp", 0)
assert not (STAMP == 4 and opt["swap"])

NAME = "standalone__sequential_behavior_din__recsys_kernel"
NWG, WPB = 256, 8
NWAVE = NWG * WPB
KB = 16384 // NWAVE
REG = opt.get('reg', 20480)
SLOT = 2080
TB = D * SLOT
BI = TB + 1024
BSTR = 272
XCH = BI + 8 * BSTR
PRG = XCH + 3072
KEY = PRG + 256
OUTS = PRG + 320
TKT = PRG + 288
LI = REG - 2048
L0 = LI + 16
assert OUTS + 1024 <= LI - 2048 and LI + 2048 <= REG and LI % 2048 == 0 and REG % 2048 == 0
STG = (D - 2) * SLOT
CNEG = 0xBFB8AA3B
PSTR, WGSTR = (16, 64) if opt["map"] & 1 else (4096, 16)
LGP = PSTR.bit_length() - 1
DLT0, DLT1 = 25600, (PSTR - 1) * 25600
MDL0, MDL1 = 400, (PSTR - 1) * 400

CA, CD, W, ZA, ZB, BIAS, XB, XT, W2, B2, S, ACC, DG, TR, ONE, VA, VB = \
    4, 68, 100, 132, 148, 164, 180, 188, 196, 204, 208, 212, 216, 224, 228, 230, 232
RDB0, RDB1, RDT, RDL, TADR, BADR, OADR, SEL0, SEL1, VOUT, RDM = range(234, 245)
TX = 246
PTH = 245
PRV, PADR, PINC = 1, 2, 3
MSK = W
SH, SM, SH2 = 20, 24, 40
EX50, sB2, sDL, sMDL = 28, 30, 31, 32
sLB, sW, sw = 52, 53, 54
F = 56
H = 36
sKA, sKW = 60, 61
sBASE, sK, sT0, sT1, sT2, sT3 = 64, 65, 66, 67, 55, 95
A0 = 68
NB, P0, P1, P2 = 84, 86, 88, 90
sC, sOFF, sEARLY, sRO = 92, 93, 94, 35
sCUR, sM2, sB3, sM3, sE3 = 44, 45, 46, 47, 48
sU, sOW, sRND, sPM = 49, 50, 51, 33
sPD, sDG, sSZ = 80, 82, 68
RET = 62


def v(a, n=1):
    return f"v{a}" if n == 1 else f"v[{a}:{a+n-1}]"


def s(a, n=1):
    return f"s{a}" if n == 1 else f"s[{a}:{a+n-1}]"


p = Prog()
nstamp = [0]


def stamp(cyc=None):
    if STAMP == 4:
        return
    if not STAMP or (STAMP == 3 and cyc is None):
        return
    p("s_memrealtime s[96:97]")
    p("s_waitcnt lgkmcnt(0)")
    p(f"v_writelane_b32 v254, s96, {nstamp[0]}")
    nstamp[0] += 1
    if cyc is not None:
        p("s_memtime s[96:97]")
        p("s_waitcnt lgkmcnt(0)")
        p(f"v_writelane_b32 v254, s96, {cyc}")


ncyc = [0]


def cst(name):
    if opt.get("probe") == name:
        p("s_memrealtime s[98:99]")
        p("s_waitcnt lgkmcnt(0)")
    if STAMP == 4 and (not opt.get("arr") or name in ("entry", "kernarg") or name.startswith("arr")):
        sys.stderr.write(f"cst{ncyc[0]} = {name}\n")
        p(f"s_memtime {s((38,80,82,96,98,44,46,48,50,16)[ncyc[0]],2)}")
        ncyc[0] += 1


nfl = [0]
njit = [0]


def jit(long=False):
    if not opt.get("jitter"):
        return
    njit[0] += 1
    k = njit[0]
    p(f"s_mul_i32 s3, {s(sW)}, {37 + 2 * k + opt['jitter'] * 16}")
    p(f"s_add_u32 s3, s3, {k * 5}")
    p(f"s_lshr_b32 s3, s3, 2")
    p(f"s_and_b32 s3, s3, {7 if long else 3}")
    p("s_cmp_lg_u32 s3, 0")
    p(f"s_cbranch_scc1 L_jit{k}")
    for _ in range(10 if long else 1):
        p(f"s_sleep {127 if long else 30}")
    p(f"L_jit{k}:")


def srd(dst, ptr, nrec, stride=0):
    p(f"s_mov_b32 {s(dst)}, {s(ptr)}")
    p(f"s_and_b32 {s(dst+1)}, {s(ptr+1)}, 0xffff")
    if stride:
        p(f"s_or_b32 {s(dst+1)}, {s(dst+1)}, {stride << 16:#x}")
    p(f"s_mov_b32 {s(dst+2)}, {nrec}")
    p(f"s_mov_b32 {s(dst+3)}, 0x20000")


def m0_half(slot, j):
    return f"s_add_u32 m0, {s(sLB)}, {slot*SLOT+j*1056}"


def dma_half(j):
    if opt["m1"] and j:
        return f"buffer_load_dwordx4 {v(VB,2)}, {s(SH2,4)}, {s(sRO)} idxen offen offset:1056 {NT} lds"
    return f"buffer_load_dwordx4 {v((VA, VB)[j],2)}, {s(SH,4)}, {s(sRO)} idxen offen {NT} lds"


def adv_hist():
    p(f"s_add_u32 {s(sRO)}, {s(sRO)}, {s(sDL)}")
    p(f"s_min_u32 {s(sRO)}, {s(sRO)}, {16383*25600}")
    p(f"s_xor_b32 {s(sDL)}, {s(sDL)}, {DLT0 ^ DLT1:#x}")


R, CV, HI = ZA, ZA + 9, ZA + 13
AP, AT, QV, QH, NBA = W + 16, W + 22, W + 26, W + 30, W + 31
QR, QT, QE = (ZA, ZA + 8, BIAS), (BIAS + 8, BIAS + 12, XB), (XB + 4, XB + 5, XB + 6)
NT0, NT1 = ZB + 12, ZB + 13
CNT = 0xBFE0BFE0


def fbit(reg, k):
    p(f"s_lshr_b32 {s(sT3)}, {s(reg)}, 4")
    if 13 * (k + 1) + 1 < 64:
        p(f"s_bitset1_b64 {s(F,2)}, {s(sT3)}")
    else:
        p(f"s_lshl_b64 {s(P0,2)}, 1, {s(sT3)}")
        p(f"s_bitcmp1_b32 {s(reg)}, 10")
        p(f"s_cselect_b64 {s(P1,2)}, 0, {s(P0,2)}")
        p(f"s_cselect_b64 {s(P2,2)}, {s(P0,2)}, 0")
        p(f"s_or_b64 {s(F,2)}, {s(F,2)}, {s(P1,2)}")
        p(f"s_or_b64 {s(F+2,2)}, {s(F+2,2)}, {s(P2,2)}")


def compact_body(j):
    m = [MSK + 4 * j + x for x in range(4)]
    p(f"s_mov_b64 exec, {s(EX50,2)}")
    for e in range(8):
        p(f"v_cmp_neq_f16_sdwa {s(A0+2*e,2)}, {v(m[e>>1])}, 0 src0_sel:WORD_{e&1} src1_sel:WORD_0")
    p("s_mov_b64 exec, -1")
    p(f"v_mov_b32 {v(R)}, {s(sBASE)}")
    for e in range(8):
        p(f"v_mbcnt_lo_u32_b32 {v(R)}, {s(A0+2*e)}, {v(R)}")
        p(f"v_mbcnt_hi_u32_b32 {v(R)}, {s(A0+2*e+1)}, {v(R)}")
    p(f"s_add_u32 {s(sT2)}, {s(sBASE)}, 16")
    p(f"v_readlane_b32 {s(sT0)}, {v(R)}, 25")
    p(f"v_readlane_b32 {s(sT1)}, {v(R)}, 63")
    p(f"s_add_u32 {s(sBASE)}, {s(sT0)}, 15")
    p(f"s_and_b32 {s(sBASE)}, {s(sBASE)}, -16")
    p(f"s_max_u32 {s(sBASE)}, {s(sBASE)}, {s(sT2)}")
    p(f"s_sub_u32 {s(sT0)}, {s(sBASE)}, {s(sT0)}")
    p(f"v_mad_u32_u24 {v(R)}, {v(HI)}, {s(sT0)}, {v(R)}")
    p(f"s_mov_b32 {s(sT2)}, {s(sBASE)}")
    for e in range(7):
        p(f"v_addc_co_u32 {v(R+e+1)}, vcc, 0, {v(R+e)}, {s(A0+2*e,2)}")
    p(f"s_add_u32 {s(sT1)}, {s(sT1)}, {s(sT0)}")
    p(f"s_add_u32 {s(sT1)}, {s(sT1)}, 15")
    p(f"s_and_b32 {s(sT1)}, {s(sT1)}, -16")
    p(f"s_add_u32 {s(sBASE)}, {s(sBASE)}, 16")
    p(f"s_max_u32 {s(sBASE)}, {s(sBASE)}, {s(sT1)}")
    for e in range(8):
        p(f"s_mov_b64 exec, {s(A0+2*e,2)}")
        p(f"ds_write_b8{'_d16_hi' if e&1 else ''} {v(R+e)}, {v(CV+(e>>1))}")
    p("s_mov_b64 exec, -1")
    pair_bits(j, sT2)


def q_total(i, j):
    p(f"v_mfma_i32_16x16x64_i8 {v(QT[i],4)}, {v(AT,4)}, {v(MSK+4*j,4)}, 0")


def q_test(j):
    out = []
    if opt.get("xt"):
        return out
    for x in range(4):
        t = (NT0, NT1)[x & 1]
        out += [f"v_and_b32 {v(t)}, 0x800080, {v(MSK+4*j+x)}", f"v_mul_u32_u24 {v(t)}, 0x7f, {v(t)}",
                f"v_bitop3_b32 {v(NBA)}, {v(MSK+4*j+x)}, {v(t)}, {v(NBA)} bitop3:0xbe"]
    return out


def q_scan(i, step):
    dpp = "row_mask:0xf bank_mask:0xf bound_ctrl:0"
    if step == 0:
        return f"v_mov_b32_dpp {v(QE[i])}, {v(QT[i])} row_shr:1 {dpp}"
    return f"v_add_u32_dpp {v(QE[i])}, {v(QE[i])}, {v(QE[i])} row_shr:{1 << (step-1)} {dpp}"


def q_lanes(i):
    p(f"v_readlane_b32 {s(A0+4*i)}, {v(QE[i])}, 6")
    p(f"v_readlane_b32 {s(A0+4*i+1)}, {v(QT[i]+1)}, 6")
    p(f"v_readlane_b32 {s(A0+4*i+2)}, {v(QE[i])}, 15")


def q_ranks(i, j):
    a = A0 + 4 * i
    p(f"s_add_u32 {s(sT0)}, {s(a)}, {s(a+1)}")
    p(f"s_add_u32 {s(sT0)}, {s(sT0)}, {s(sBASE)}")
    p(f"s_add_u32 {s(sT1)}, {s(sT0)}, 15")
    p(f"s_and_b32 {s(sT1)}, {s(sT1)}, -16")
    p(f"s_add_u32 {s(sT2)}, {s(sBASE)}, 16")
    p(f"s_max_u32 {s(sT1)}, {s(sT1)}, {s(sT2)}")
    p(f"s_sub_u32 {s(sT0)}, {s(sT1)}, {s(sT0)}")
    p(f"v_mad_u32_u24 {v(QE[i])}, {v(QH)}, {s(sT0)}, {v(QE[i])}")
    p(f"s_sub_u32 {s(sT2)}, {s(sBASE)}, 2048")
    for r in range(4):
        p(f"v_add_u32 {v(QT[i]+r)}, {s(sT2)}, {v(QE[i])}")
    p(f"s_add_u32 {s(sBASE)}, {s(sBASE)}, {s(a+2)}")
    p(f"s_add_u32 {s(sBASE)}, {s(sBASE)}, {s(sT0)}")
    p(f"v_mfma_i32_16x16x64_i8 {v(QR[i],4)}, {v(AP+2,4)}, {v(MSK+4*j,4)}, {v(QT[i],4)}")
    p(f"v_mfma_i32_16x16x64_i8 {v(QR[i]+4,4)}, {v(AP,4)}, {v(MSK+4*j,4)}, {v(QT[i],4)}")
    p(f"s_add_u32 {s(sBASE)}, {s(sBASE)}, 15")
    p(f"s_and_b32 {s(sBASE)}, {s(sBASE)}, -16")
    p(f"s_add_u32 {s(sT2)}, {s(sT1)}, 16")
    p(f"s_max_u32 {s(sBASE)}, {s(sBASE)}, {s(sT2)}")
    pair_bits(j, sT1)


def pair_bits(j, mid):
    if opt["swap"] and j >= 2:
        p(f"s_mov_b32 {s((sM2, sM3)[j-2])}, {s(mid)}")
        p(f"s_mov_b32 {s((sB3, sE3)[j-2])}, {s(sBASE)}")
        return
    fbit(mid, 2 * j)
    fbit(sBASE, 2 * j + 1)
    if opt["swap"] and j == 1:
        p(f"s_mov_b32 {s(sCUR)}, {s(sBASE)}")


def q_write(i):
    if opt.get("xw"):
        return
    if opt["vx"]:
        p(f"s_mov_b64 exec, {s(EX50,2)}")
    for e in range(8):
        p(f"ds_write_b8{'_d16_hi' if e&1 else ''} {v(QR[i]+e)}, {v(QV+(e>>1))}")
    if opt["vx"]:
        p("s_mov_b64 exec, -1")


W44 = 1
DIAGMM = "v_mfma_f32_4x4x4_16b_bf16" if W44 else "v_mfma_f32_16x16x16_bf16"


def wbuild(first=False):
    for x in range(4):
        p(f"v_mul_u32_u24 {v(DG+2*x)}, {v(TR+x)}, {v(SEL0)}")
        p(f"v_mul_u32_u24 {v(DG+2*x+1)}, {v(TR+x)}, {v(SEL1)}")
    T = [ZA + 8, TX]
    pairs = [(hb, ks) for hb in range(4) for ks in range(2)]

    def mm(j, u):
        hb, ks = pairs[j]
        blk = (hb * 2 + ks) * 2 + u
        p(f"{DIAGMM} {v(T[j%2]+4*u,4)}, {v(DG+2*(2*ks+u),2)}, {v(CD+2*blk,2)}, {v(CA+4*blk,4)}")

    def cv(j, r):
        hb, ks = pairs[j]
        p(f"v_cvt_pk_bf16_f32 {v(W+(hb*2+ks)*4+r)}, {v(T[j%2]+2*r)}, {v(T[j%2]+2*r+1)}")
    mm(0, 0)
    p(f"v_add_u32 {v(TADR)}, 128, {v(TADR)}")
    for hb in range(2):
        p(f"ds_read_b128 {v(BIAS+4*hb,4)}, {v(BADR)} offset:{64*hb}")
    mm(0, 1)
    for hb in range(2, 4):
        p(f"ds_read_b128 {v(BIAS+4*hb,4)}, {v(BADR)} offset:{64*hb}")
    t_reads()
    for j in range(8):
        if j < 7:
            mm(j + 1, 0)
        cv(j, 0); cv(j, 1)
        if j < 7:
            mm(j + 1, 1)
        else:
            p(f"v_add_u32 {v(BADR)}, {BSTR}, {v(BADR)}")
        if first and j:
            if j == 1:
                p("s_waitcnt lgkmcnt(4)")
            p(g1(j - 1))
        cv(j, 2); cv(j, 3)
    p("s_waitcnt lgkmcnt(0)")
    if first:
        p(g1(7))


def t_reads():
    for x in range(4):
        p(f"ds_read_u16 {v(TR+x)}, {v(TADR)} offset:{(x>>1)*64+(x&1)*8}")


def g1(j):
    hb, ks = j >> 1, j & 1
    c = v(BIAS + 4 * hb, 4) if ks == 0 else v(ZB + 4 * hb, 4)
    return f"v_mfma_f32_16x16x32_bf16 {v(ZB+4*hb,4)}, {v(W+(hb*2+ks)*4,4)}, {v(XB+4*ks,4)}, {c}"


def read_xb(slot, ks):
    p(f"ds_read_b128 {v(XB+4*ks,4)}, {v((RDB0, RDB1)[ks])} offset:{slot*SLOT}")


SCHED = {
    "e": "ia ib k1 ent EV mid P0 e0 e1 e2 e3 e4 e5 A0 s0 s1 L2 G0 e6 q0 t0 e7 G2 e8 q1 t1 A1 r0 q2 t2 e9 G1 r1 q3 t3 e10 G3 "
         "r2 e11 r3 c0 A2 e12 G4 r4 c1 E2 e13 r5 e14 r6 c2 e15 G6 L0 m0 r7 da A3 G5 m1 r8 db G7 P1 r9 c3 vm y0 y1 r10 c4 k0 r11 B r12 c5 "
         "r13 r14 r15 c6 c7",
    "f": "ia ib k1 ent EV mid P0 e0 e1 e2 e3 e4 e5 A0 s0 s1 L2 G0 e6 q0 t0 e7 G2 e8 q1 t1 A1 r0 q2 t2 e9 G1 r1 q3 t3 e10 G3 "
         "r2 e11 r3 c0 A2 e12 G4 r4 c1 E2 m0 L0 da e13 r5 e14 r6 c2 e15 G6 P1 r7 A3 G5 m1 r8 G7 r9 c3 db vm y0 y1 r10 c4 k0 r11 B r12 c5 "
         "r13 r14 r15 c6 c7",
    "g": "ia ib k1 ent EV mid P0 e0 e1 e2 e3 e4 e5 A0 s0 s1 L2 G0 e6 q0 t0 e7 G2 e8 q1 t1 A1 r0 q2 t2 e9 G1 r1 q3 t3 e10 G3 "
         "r2 e11 r3 c0 A2 e12 G4 r4 c1 E2 e13 r5 e14 m0 L0 da r6 c2 e15 G6 P1 r7 A3 G5 m1 r8 G7 r9 c3 db vm y0 y1 r10 c4 k0 r11 B r12 c5 "
         "r13 r14 r15 c6 c7",
    "h": "ia ib k1 ent EV mid P0 e0 e1 e2 e3 e4 e5 A0 s0 s1 L2 G0 e6 q0 t0 e7 G2 e8 q1 t1 A1 r0 q2 t2 e9 G1 r1 q3 t3 e10 G3 "
         "r2 e11 r3 c0 A2 e12 G4 r4 c1 E2 m0 L0 da m1 e13 db r5 e14 r6 c2 e15 G6 P1 r7 A3 G5 r8 G7 r9 c3 vm y0 y1 r10 c4 k0 r11 B r12 c5 "
         "r13 r14 r15 c6 c7",
    "l": "ia ib k1 ent EV mid P0 e0 e1 e2 e3 e4 e5 A0 s0 s1 L2 G0 e6 q0 t0 e7 e8 q1 t1 G2 A1 q2 t2 r0 e9 q3 t3 G1 r1 e10 G3 "
         "r2 e11 m0 L0 da m1 r3 db c0 A2 e12 G4 r4 c1 E2 e13 r5 e14 r6 c2 e15 G6 P1 r7 A3 G5 r8 G7 r9 c3 r10 c4 k0 r11 B r12 c5 "
         "r13 r14 r15 vm y0 y1 c6 c7",
    "m": "ia ib k1 ent EV mid P0 e0 e1 e2 e3 e4 e5 A0 s0 s1 e6 e7 q0 t0 e8 A1 q1 t1 e9 e10 q2 t2 e11 r0 q3 t3 vm x0 x1 A2 e12 r1 e13 r2 "
         "e14 r3 c0 e15 E2 m0 L2 da m1 c1 db A3 L0 G0 r4 G2 r5 P1 G1 r6 c2 G3 r7 r8 G4 c3 r9 G6 r10 c4 G5 r11 k0 r12 G7 c5 B r13 r14 r15 c6 c7",
    "n": "ia ib k1 ent EV mid P0 e0 e1 e2 e3 e4 e5 A0 s0 s1 vm x0 x1 e6 e7 q0 t0 e8 A1 q1 t1 e9 e10 q2 t2 e11 r0 q3 t3 A2 L4 G0 e12 r1 G2 e13 r2 "
         "e14 G1 r3 c0 e15 E2 m0 L0 da m1 c1 db A3 G3 r4 r5 P1 G4 r6 c2 r7 G6 r8 c3 r9 G5 r10 c4 r11 k0 r12 G7 c5 B r13 r14 r15 c6 c7",
    "r": "ent EV k1 mid e0 e1 e2 e3 e4 e5 A0 e6 e7 s0 s1 e8 e9 q0 A1 e10 q1 e11 e12 q2 e13 A2 q3 P0 ia ib t0 t1 t2 t3 vm x0 x1 m0 e14 e15 "
         "r0 r1 A3 r2 E2 c0 L2 da m1 db L0 G0 r3 G2 r4 c1 G1 r5 P1 G3 r6 c2 G4 r7 G6 r8 c3 G5 r9 G7 r10 c4 k0 r11 r12 c5 B r13 r14 r15 c6 c7",
    "t": "ent EV k1 mid e0 e1 e2 e3 e4 e5 A0 e6 e7 s0 s1 e8 e9 q0 A1 e10 q1 e11 e12 q2 e13 A2 q3 P0 ia ib t0 t1 t2 t3 vm x0 x1 m0 e14 e15 "
         "r0 r1 A3 r2 E2 c0 L0 G0 r3 G2 r4 c1 G1 r5 P1 G3 r6 c2 G4 r7 G6 r8 c3 G5 r9 G7 r10 c4 k0 r11 r12 c5 B r13 r14 r15 c6 c7 da m1 db",
    "u": "ent EV k1 mid ia ib m0 e0 e1 e2 e3 e4 e5 A0 e6 e7 s0 s1 L0 da m1 db e8 e9 q0 A1 e10 q1 e11 e12 q2 e13 A2 q3 P0 t0 t1 t2 t3 vm x0 x1 e14 e15 "
         "r0 r1 A3 r2 E2 c0 L0 G0 r3 G2 r4 c1 G1 r5 P1 G3 r6 c2 G4 r7 G6 r8 c3 G5 r9 G7 r10 c4 k0 r11 r12 c5 B r13 r14 r15 c6 c7",
    "v": "ent EV k1 mid ia ib m0 e0 e1 e2 e3 e4 e5 A0 e6 e7 s0 s1 e8 e9 q0 A1 e10 q1 e11 e12 q2 e13 A2 q3 L0 da m1 db P0 t0 t1 t2 t3 vm x0 x1 e14 e15 "
         "r0 r1 A3 r2 E2 c0 L0 G0 r3 G2 r4 c1 G1 r5 P1 G3 r6 c2 G4 r7 G6 r8 c3 G5 r9 G7 r10 c4 k0 r11 r12 c5 B r13 r14 r15 c6 c7",
    "w": "ent EV k1 mid e0 e1 e2 e3 e4 e5 A0 e6 e7 s0 s1 e8 e9 q0 A1 e10 q1 e11 e12 q2 e13 A2 q3 P0 ia ib t0 t1 t2 t3 vm x0 x1 m0 e14 e15 "
         "r0 r1 A3 r2 E2 c0 L6 da m1 db L0 G0 r3 G2 r4 c1 G1 r5 P1 G3 r6 c2 G4 r7 G6 r8 c3 G5 r9 G7 r10 c4 k0 r11 r12 c5 B r13 r14 r15 c6 c7",
    "x": "ent EV k1 mid ia ib m0 e0 e1 e2 e3 e4 e5 A0 e6 e7 s0 s1 e8 e9 q0 A1 e10 L0 da m1 db q1 e11 e12 q2 e13 A2 q3 P0 t0 t1 t2 t3 vm x0 x1 e14 e15 "
         "r0 r1 A3 r2 E2 c0 L0 G0 r3 G2 r4 c1 G1 r5 P1 G3 r6 c2 G4 r7 G6 r8 c3 G5 r9 G7 r10 c4 k0 r11 r12 c5 B r13 r14 r15 c6 c7",
    "w2": "ent EV k1 mid e0 e1 e2 e3 e4 e5 A0 e6 e7 s0 s1 e8 e9 q0 A1 e10 q1 e11 e12 q2 e13 A2 q3 P0 ia ib t0 t1 t2 t3 vm x0 x1 m0 e14 e15 r0 r1 A3 r2 E2 c0 L0 G0 r3 G2 r4 c1 G1 r5 P1 G3 r6 c2 G4 r7 G6 r8 c3 G5 r9 G7 da m1 db r10 c4 k0 r11 r12 c5 B r13 r14 r15 c6 c7",
    "w0": "ent EV k1 mid ia ib m0 e0 e1 e2 e3 e4 e5 A0 e6 e7 s0 s1 e8 e9 q0 A1 e10 q1 e11 e12 q2 e13 A2 q3 P0 t0 t1 t2 t3 vm x0 x1 L6 da m1 db e14 e15 "
          "r0 r1 A3 r2 E2 c0 L0 G0 r3 G2 r4 c1 G1 r5 P1 G3 r6 c2 G4 r7 G6 r8 c3 G5 r9 G7 r10 c4 k0 r11 r12 c5 B r13 r14 r15 c6 c7",
    "z": "ent EV k1 mid P0 ia ib e0 e1 e2 e3 e4 e5 A0 s0 s1 e6 e7 q0 e8 e9 q1 A1 e10 q2 e11 e12 q3 t0 t1 t2 t3 m0 e13 A2 e14 e15 L0 da m1 db r0 r1 A3 r2 c0 r3 "
         "vm x0 x1 E2 r4 c1 r5 r6 c2 L0 G0 r7 G2 r8 c3 G1 r9 P1 G3 r10 c4 G4 r11 G6 r12 c5 G5 r13 G7 r14 k0 B r15 c6 c7",
    "aa": "ent EV k1 mid e0 e1 e2 e3 e4 e5 e6 e7 s0 s1 e8 e9 q0 e10 e11 q1 e12 e13 q2 e14 e15 q3 ia AA P0 ib t0 t1 t2 t3 vm x0 x1 m0 E2 L2 da m1 db "
          "r0 r1 r2 c0 L0 G0 r3 G2 r4 c1 G1 r5 P1 G3 r6 c2 G4 r7 G6 r8 c3 G5 r9 G7 r10 c4 k0 r11 r12 c5 B r13 r14 r15 c6 c7",
    "ab": "ent EV k1 mid e0 e1 e2 e3 e4 e5 e6 e7 s0 s1 e8 e9 q0 e10 e11 q1 e12 e13 q2 e14 e15 q3 ia AA P0 ib t0 t1 t2 t3 vm x0 x1 m0 E2 "
          "r0 r1 r2 c0 L2 da m1 db L0 G0 r3 G2 r4 c1 G1 r5 P1 G3 r6 c2 G4 r7 G6 r8 c3 G5 r9 G7 r10 c4 k0 r11 r12 c5 B r13 r14 r15 c6 c7",
    "ac": "ent EV k1 mid e0 e1 e2 e3 e4 e5 e6 e7 e8 e9 e10 e11 e12 e13 e14 e15 vm x0 AA x1 s0 s1 m0 P0 q0 t0 ia q1 t1 ib q2 t2 r0 q3 t3 r1 L6 G0 r2 c0 G2 r3 E2 G1 r4 c1 L0 da m1 db G3 r5 P1 G4 r6 c2 G6 r7 "
          "G5 r8 c3 G7 r9 r10 c4 k0 r11 r12 c5 B r13 r14 r15 c6 c7",
    "ad": "ent EV k1 mid e0 e1 e2 e3 e4 e5 e6 e7 e8 e9 e10 e11 e12 e13 e14 e15 vm x0 AA x1 s0 s1 m0 P0 q0 t0 ia q1 t1 ib q2 t2 r0 q3 t3 r1 r2 c0 r3 E2 r4 c1 L0 da m1 db G0 r5 G2 r6 c2 G1 r7 P1 G3 r8 c3 G4 r9 G6 r10 c4 "
          "G5 r11 G7 r12 k0 c5 B r13 r14 r15 c6 c7",
    "s": "ia ib k1 ent EV mid P0 e0 e1 e2 e3 e4 e5 A0 s0 s1 L2 G0 e6 q0 t0 e7 G2 e8 q1 t1 A1 r0 q2 t2 e9 G1 r1 q3 t3 e10 G3 "
         "r2 e11 r3 c0 A2 e12 G4 r4 c1 E2 e13 r5 e14 r6 c2 e15 G6 r7 A3 G5 r8 G7 m0 L0 da P1 m1 r9 db c3 vm y0 y1 r10 c4 k0 r11 B r12 c5 "
         "r13 r14 r15 c6 c7",
}


if opt.get("toks"):
    SCHED["cli"] = opt["toks"].replace(".", " ")
    opt["sched"] = "cli"


def event_mask():
    p(f"s_lshr_b64 {s(P0,2)}, {s(F,2)}, 2")
    p(f"s_lshr_b64 {s(H,2)}, {s(F,2)}, {LA+1}")
    p(f"s_or_b32 {s(H+1)}, {s(H)}, {s(P0)}")
    p(f"s_or_b32 {s(H)}, {s(H+1)}, {s(F)}")


PSTEP = {0: 1, 1: 4, 2: 2, 3: 8}[opt["prio"]]
assert U % PSTEP == 0


def mainloop(tag, slow, sched=None):
    toks = allt = SCHED[sched or opt["sched"]].split()

    def scale(off):
        p(f"ds_read_b32 {v(TX)}, {v(RDM)} offset:{off}")
        p("s_waitcnt lgkmcnt(0)")
        for r in range(4):
            p(f"v_bfe_u32 {v(TX+1+r)}, {v(TX)}, {8*r}, 8")
            p(f"v_lshlrev_b32 {v(TX+1+r)}, 1, {v(TX+1+r)}")
        for r in range(4):
            p(f"buffer_load_ushort {v(TX+1+r)}, {v(TX+1+r)}, {s(SM,4)}, 0 offen")
        p("s_waitcnt vmcnt(0)")
        for r in range(4):
            p(f"v_lshlrev_b32 {v(TX+1+r)}, 16, {v(TX+1+r)}")
            p(f"v_mul_f32 {v(S+r)}, {v(S+r)}, {v(TX+1+r)}")

    def flush(last=False):
        p(f"v_cvt_pk_bf16_f32 {v(TX)}, {v(ACC)}, {v(ACC)}")
        if not last:
            p(f"v_mov_b32 {v(ACC)}, 0")
        if STAMP == 1:
            p("s_memrealtime s[96:97]")
            p("s_memtime s[98:99]")
            p(f"s_lshl_b32 {s(sT0)}, {s(sK)}, 1")
            p(f"s_sub_u32 {s(sT0)}, {16+2*(KB-1)}, {s(sT0)}")
            p("s_waitcnt lgkmcnt(0)")
            p(f"s_mov_b32 m0, {s(sT0)}")
            p("v_writelane_b32 v254, s96, m0")
            p(f"s_add_u32 m0, m0, 1")
            p("v_writelane_b32 v254, s98, m0")
            p(f"s_sub_u32 {s(sK)}, {s(sK)}, 1")
        if str(opt.get("probe", "")).startswith("fl"):
            nfl[0] += 1
            p("s_add_u32 s3, s3, 1")
            p(f"s_cmp_lg_u32 s3, {int(opt['probe'][2:])}")
            p(f"s_cbranch_scc1 L_nfl{nfl[0]}")
            p("s_memrealtime s[98:99]")
            p("s_waitcnt lgkmcnt(0)")
            p(f"L_nfl{nfl[0]}:")
        p(f"ds_write_b16 {v(OADR)}, {v(TX)}")
        if last:
            return
        p(f"v_add_u32 {v(OADR)}, 128, {v(OADR)}")
        if slow:
            p(f"s_add_u32 {s(SM)}, {s(SM)}, {s(sMDL)}")
            p(f"s_addc_u32 {s(SM+1)}, {s(SM+1)}, 0")
            p(f"s_xor_b32 {s(sMDL)}, {s(sMDL)}, {MDL0 ^ MDL1:#x}")

    def emit(u, toks, tail):
        ev = opt["prio"] and u % PSTEP == 0
        for t in toks:
            k, n = t[0], (int(t[1:]) if t[1:].isdigit() else None)
            if opt.get("nodma") and t in ("da", "db"):
                continue
            if opt.get("lite") and k == "r" and n >= 16 - opt["lite"]:
                continue
            if opt.get("nocomp") and k in "ercsAGqk" and n is not None:
                continue
            if t == "vm":
                ahead = 2 if "y0" in allt else 1
                p(f"s_waitcnt vmcnt({2*(LA-ahead-(allt.index('vm') < allt.index('da')))})")
            elif k == "y":
                read_xb((u + 2) % D, n)
            elif k == "x":
                read_xb((u + 1) % D, n)
            elif t == "ent":
                if u == 0:
                    p(f"L{tag}_mid:")
            elif t in ("mid", "mi2"):
                if slow:
                    scale(u * 16 + (16 if t == "mi2" else 0))
            elif t == "ia" and opt.get("xv") and not tail:
                for j in range(opt["xv"]):
                    p(f"v_exp_f32 v255, {v(ZB+j)}")
                p(f"ds_read_u8 {v(VA)}, {v(RDL)} offset:{(u+LA)*16}")
            elif t == "ia":
                p(f"ds_read_u8 {v(VA)}, {v(RDL)} offset:{(u+LA)*16}")
            elif t == "ib":
                p(f"ds_read_u8 {v(VB)}, {v(RDL)} offset:{(u+LA)*16+8}")
            elif t == "EV":
                p(f"s_bitcmp1_b32 {s(H)}, {u}")
                p(f"s_cbranch_scc1 L{tag}_ev{u}")
                p(f"L{tag}_evd{u}:")
            elif t == "E2":
                if tail:
                    p(f"s_bitcmp0_b64 {s(F,2)}, 1")
                    p(f"s_cbranch_scc1 L{tag}_tnf")
                    flush()
                    p(f"L{tag}_tnf:")
            elif t == "P0":
                if ev:
                    p(f"ds_add_rtn_u32 {v(PRV)}, {v(PADR)}, {v(PINC)}")
            elif t == "P1":
                if ev:
                    if opt["pv"]:
                        p(f"v_cmp_gt_i32 vcc, {v(PRV)}, {v(PTH)}")
                        p("s_setprio 0")
                        p(f"s_cbranch_vccz L{tag}_lo{u}")
                    else:
                        p(f"v_readfirstlane_b32 {s(sT0)}, {v(PRV)}")
                        p("s_setprio 0")
                        p(f"s_cmp_gt_i32 {s(sT0)}, 0")
                        p(f"s_cbranch_scc0 L{tag}_lo{u}")
                    p("s_setprio 1")
                    p(f"L{tag}_lo{u}:")
            elif t == "AA":
                p(f"v_mfma_f32_32x32x8_bf16 {v(ZA,16)}, {v(ONE,2)}, {v(ONE,2)}, {v(ZA,16)}")
            elif t == "da":
                p(dma_half(0))
            elif t == "db":
                p(dma_half(1))
            elif t == "B":
                if u == U - 1:
                    p(f"s_lshr_b64 {s(F,2)}, {s(F,2)}, {U}")
                    if not opt["swap"]:
                        p(f"s_lshl_b64 {s(P0,2)}, {s(F+2,2)}, {64-U}")
                        p(f"s_or_b64 {s(F,2)}, {s(F,2)}, {s(P0,2)}")
                        p(f"s_lshr_b64 {s(F+2,2)}, {s(F+2,2)}, {U}")
                    event_mask()
                    p(f"v_add_u32 {v(RDL)}, {16*U}, {v(RDL)}")
                    if slow:
                        p(f"v_add_u32 {v(RDM)}, {16*U}, {v(RDM)}")
            elif k == "m":
                if not (opt["m1"] and n):
                    p(m0_half((u + LA) % D, n))
            elif k == "e":
                p(f"v_exp_f32 {v(ZA+n)}, {v(ZB+n)}")
            elif k == "r":
                p(f"v_rcp_f32 {v(ZA+n)}, {v(ZA+n)}")
            elif k == "c":
                p(f"v_cvt_pk_bf16_f32 {v(ZA+n)}, {v(ZA+2*n)}, {v(ZA+2*n+1)}")
            elif k == "s":
                p(f"v_cvt_pk_bf16_f32 {v(S+n)}, {v(S+2*n)}, {v(S+2*n+1)}")
            elif k == "A":
                p(f"v_mfma_f32_4x4x4_16b_bf16 {v(ZA+4*n,4)}, {v(ONE,2)}, {v(ONE,2)}, {v(ZA+4*n,4)}")
            elif k == "G":
                p(g1(n))
            elif k == "q":
                p(f"v_mfma_f32_4x4x4_16b_bf16 {v(ACC,4)}, {v(S,2)}, {v(XT+2*n,2)}, {v(ACC,4)} cbsz:4 abid:{4*n}")
            elif k == "t":
                p(f"ds_read_b64_tr_b16 {v(XT+2*n,2)}, {v(RDT)} offset:{u%D*SLOT+n*512+(n>>1)*32}")
            elif k == "k":
                p(f"v_mfma_f32_16x16x32_bf16 {v(S,4)}, {v(ZA+4*n,4)}, {v(W2+4*n,4)}, {v(B2,4) if n == 0 else v(S,4)}")
            elif k == "L":
                p(f"s_waitcnt lgkmcnt({n})")
            else:
                raise ValueError(t)

    if tag == "f" and opt.get("al") is not None:
        p(".p2align 6")
        for _ in range(opt["al"]):
            p("s_nop 0")
    p(f"L{tag}_loop:")
    for u in range(U):
        emit(u, toks, False)
    p(f"s_branch L{tag}_loop")
    for u in range(U):
        def gather_row(lab, then_w):
            if opt["swap"]:
                p(f"s_sub_u32 {s(sKA)}, {s(sKA)}, 1")
                p(f"s_cbranch_scc0 L{tag}_ns{lab}{u}")
                p(f"s_mov_b32 {s(sU)}, {u+LA+1}")
                p(f"s_call_b64 {s(RET,2)}, L_swap")
                if toks.index("ia") < toks.index("EV"):
                    p(f"ds_read_u8 {v(VA)}, {v(RDL)} offset:{(u+LA)*16}")
                    p(f"ds_read_u8 {v(VB)}, {v(RDL)} offset:{(u+LA)*16+8}")
                if then_w:
                    p("s_waitcnt lgkmcnt(0)")
                p(f"L{tag}_ns{lab}{u}:")
            adv_hist()
        p(f"L{tag}_fl{u}:")
        flush()
        p(f"s_bitcmp0_b32 {s(H+1)}, {u}")
        p(f"s_cbranch_scc1 L{tag}_evd{u}")
        p(f"s_branch L{tag}_ev2{u}")
        p(f"L{tag}_ev{u}:")
        jit()
        p(f"s_bitcmp1_b64 {s(F,2)}, {u}")
        p(f"s_cbranch_scc1 L{tag}_fl{u}")
        p(f"L{tag}_ev2{u}:")
        p(f"s_bitcmp1_b64 {s(F,2)}, {u+2}")
        p(f"s_cbranch_scc1 L{tag}_w{u}")
        gather_row("a", False)
        p(f"s_branch L{tag}_evd{u}")
        p(f"L{tag}_w{u}:")
        p(f"s_bitcmp0_b64 {s(F,2)}, {u+LA+1}")
        p(f"s_cbranch_scc1 L{tag}_e1{u}")
        gather_row("b", True)
        p(f"L{tag}_e1{u}:")
        p(f"s_sub_u32 {s(sKW)}, {s(sKW)}, 1")
        p(f"s_cbranch_scc1 L{tag}_last{u}")
        if opt["swap"]:
            p(f"s_bitcmp0_b32 {s(sPM)}, {s(sKW)}")
            p(f"s_cbranch_scc1 L{tag}_nw{u}")
            p(f"s_cmp_eq_u32 {s(sKW)}, 3")
            p(f"s_cselect_b32 {s(sT0)}, {s(sPD)}, {s(sPD+1)}")
            p(f"v_add_u32 {v(TADR)}, {s(sT0)}, {v(TADR)}")
            p(f"v_add_u32 {v(BADR)}, {s(sT0)}, {v(BADR)}")
            t_reads()
            p("s_waitcnt lgkmcnt(0)")
            p(f"L{tag}_nw{u}:")
        wbuild()
        p(f"s_branch L{tag}_evd{u}")
    for u in range(U):
        p(f"L{tag}_last{u}:")
        if u:
            if u % D:
                p(f"v_add_u32 {v(RDT)}, {u%D*SLOT}, {v(RDT)}")
            p(f"s_lshr_b64 {s(F,2)}, {s(F,2)}, {u}")
            if slow:
                p(f"v_add_u32 {v(RDM)}, {16*u}, {v(RDM)}")
        if u < U - 1:
            p(f"s_branch L{tag}_tail")
    p(f"L{tag}_tail:")
    i1 = toks.index("EV")
    drop = lambda t: t in ("vm", "ia", "ib", "EV", "ent", "P0", "P1", "da", "db", "B", "L2", "L4", "L6", "L7") or (t[0] in "Gxym" and t[1:].isdigit())
    last = ["k1"] if toks.index("k1") > i1 else []
    emit(0, [t for t in toks[i1:] + toks[:i1] if not drop(t)] + last + ["mi2", "s0", "s1", "q0", "q1", "q2", "q3"], True)
    flush(last=True)
    if tag != "f":
        p("s_branch L_store")


p(f"{NAME}:")
if opt.get("twice"):
    p("s_mov_b32 s3, 0")
    p("L_again:")
if opt.get("spin") or opt.get("endp"):
    p("s_memrealtime s[100:101]")
    p("s_mov_b32 s3, 0")
cst("entry")
if STAMP:
    if STAMP != 4:
        p("s_memrealtime s[98:99]")
        p("s_memtime s[96:97]")
    p("s_load_dwordx2 s[100:101], s[0:1], 72")
p("s_load_dwordx16 s[4:19], s[0:1], 0")
p(f"s_cmp_ge_u32 s2, {NWG}")
p("s_cbranch_scc1 L_end")
p("v_lshrrev_b32 v1, 6, v0")
p("v_and_b32 v0, 63, v0")
p(f"v_readfirstlane_b32 {s(sw)}, v1")
if opt["map"] & 2:
    p("s_and_b32 s3, s2, 7")
    p("s_lshl_b32 s3, s3, 5")
    p(f"s_lshr_b32 {s(sW)}, s2, 3")
    p(f"s_add_u32 {s(sW)}, {s(sW)}, s3")
    p(f"s_lshl_b32 {s(sW)}, {s(sW)}, {(WGSTR//2).bit_length()-1}")
else:
    p(f"s_lshl_b32 {s(sW)}, s2, {(WGSTR//2).bit_length()-1}")
p("v_lshlrev_b32 v2, 4, v0")
p("v_lshrrev_b32 v1, 4, v0")
p("v_and_b32 v3, 0xf0, v2")
p("v_lshlrev_b32 v3, 2, v3")
p(f"v_lshl_add_u32 {v(QH)}, v1, 4, v3")
p("v_bfrev_b32 v3, 1")
p(f"s_add_u32 {s(sW)}, {s(sW)}, {s(sw)}")
p(f"s_movk_i32 {s(sT0)}, 800")
p(f"v_cmp_gt_u32 vcc, {s(sT0)}, {v(QH)}")
p(f"s_mul_i32 {s(sOFF)}, {s(sW)}, 800")
p(f"s_mul_i32 {s(sLB)}, {s(sw)}, {REG}")
p(f"s_mov_b64 {s(EX50,2)}, vcc")
p(f"v_cndmask_b32 v3, v3, {v(QH)}, vcc")
p(f"v_and_b32 {v(TX+2)}, 16, v0")
p(f"v_lshlrev_b32 {v(TX)}, 1, {v(TX+2)}")
p(f"v_xor_b32 {v(TX)}, {v(TX)}, v2")
p(f"v_and_b32 {v(VOUT)}, 0xf0, v2")
p(f"v_lshl_add_u32 {v(VOUT)}, v1, {LGP+7}, {v(VOUT)}")
p(f"s_lshl_b32 {s(sT0)}, {s(sW)}, 8")
p(f"v_add_u32 {v(VOUT)}, {s(sT0)}, {v(VOUT)}")
p(f"s_lshl_b32 {s(sT1)}, {s(sw)}, 12")
p(f"s_add_u32 m0, {s(sLB)}, {TB}")
p(f"s_mov_b32 {s(SM+2)}, {16384*400}")
p(f"s_mov_b32 {s(SM+3)}, 0x20000")
p("s_waitcnt lgkmcnt(0)")
cst("kernarg")
if STAMP and STAMP != 4:
    p("v_mov_b32 v254, 0")
    p("v_writelane_b32 v254, s98, 0")
    p("v_writelane_b32 v254, s96, 32")
    nstamp[0] = 1
    stamp()
p(f"s_mov_b32 {s(SM)}, s8")
p(f"s_and_b32 {s(SM+1)}, s9, 0xffff")
if opt["ym"]:
    p(f"s_cmp_ge_u32 {s(sw)}, 4")
    p("s_cbranch_scc1 L_young0")
p(f"buffer_load_dwordx4 {v(MSK,4)}, v3, {s(SM,4)}, {s(sOFF)} offen {NTM}")
p("L_young0:")
if opt.get("xs"):
    for j in range(opt["xs"]):
        p("s_nop 15")
p(f"global_load_lds_dwordx4 {v(VOUT)}, s[4:5] {NTM}")
p(f"s_add_u32 m0, {s(sLB)}, {STG}")
p(f"s_add_u32 s10, s10, {s(sT1)}")
p("s_addc_u32 s11, s11, 0")
p(f"v_xor_b32 {v(TX+1)}, 64, {v(TX)}")
if opt.get("nsw"):
    p(f"v_mov_b32 {v(TX)}, v2")
    p(f"v_mov_b32 {v(TX+1)}, v2")
for j in range(4):
    p(f"global_load_lds_dwordx4 {v(TX+(j&1))}, s[10:11] offset:{j*1024}")
p(f"s_load_dword {s(sB2)}, s[16:17], 0")
p(f"s_and_b32 {s(sT1)}, {s(sw)}, 3")
B1R, W2R = CD + 28, DG


def load_b1():
    p(f"s_and_b32 {s(sT0)}, {s(sw)}, 3")
    p(f"s_lshl_b32 {s(sT0)}, {s(sT0)}, 5")
    p(f"v_lshl_add_u32 {v(TX+3)}, v1, 3, {s(sT0)}")
    p(f"global_load_dwordx2 {v(B1R,2)}, {v(TX+3)}, s[12:13]")


if not opt["ym"]:
    load_b1()
p(f"v_and_b32 {v(TX+4)}, 3, v0")
NVM = 11
if opt.get("arr"):
    cst("arr_issued")
    for n_out in (5, 4, 3, 2, 1, 0):
        p(f"s_waitcnt vmcnt({n_out})")
        cst(f"arr{n_out}")
stamp()
srd(SH, 6, 200, stride=128)
if opt["m1"]:
    p(f"s_sub_u32 {s(SH2)}, {s(SH)}, 1056")
    p(f"s_subb_u32 {s(SH2+1)}, {s(SH+1)}, 0")
    p(f"s_mov_b32 {s(SH2+2)}, 200")
    p(f"s_mov_b32 {s(SH2+3)}, 0x20000")


def list_reset():
    p(f"s_mul_i32 {s(sRO)}, {s(sW)}, 51200")
    p(f"s_movk_i32 {s(sDL)}, {DLT0}")
    if opt["swap"]:
        p(f"s_mov_b32 {s(sKA)}, {KB-5}")
    p(f"s_mov_b64 {s(F,2)}, 0")
    if not opt["swap"]:
        p(f"s_mov_b64 {s(F+2,2)}, 0")
    for j in range(4):
        p(f"v_mov_b32 {v(ZB+j)}, -1")
    p(f"s_add_u32 {s(sT0)}, {s(sLB)}, {LI}")
    p(f"v_add_u32 {v(ZB+4)}, {s(sT0)}, v2")
    p(f"ds_write_b128 {v(ZB+4)}, {v(ZB,4)}")
    p(f"ds_write_b128 {v(ZB+4)}, {v(ZB,4)} offset:1024")
    p(f"s_add_u32 {s(sBASE)}, {s(sLB)}, {L0}")


list_reset()
for j in range(5, 2 * D):
    p(f"v_mov_b32 {v(ZB+j)}, -1")
p(f"v_lshrrev_b32 {v(RDL)}, 3, v0")
p(f"v_add_u32 {v(RDL)}, {s(sBASE)}, {v(RDL)}")
p(f"v_lshl_add_u32 {v(RDM)}, v1, 2, {s(sT0)}")
p(f"v_and_b32 {v(VA+1)}, 0x70, v2")
p(f"v_lshlrev_b32 {v(TX+2)}, 2, {v(TX+2)}")
p(f"v_xor_b32 {v(VA+1)}, {v(VA+1)}, {v(TX+2)}")
p(f"v_mov_b32 {v(VB+1)}, {v(VA+1)}")
lane_mask = lambda f: sum(1 << i for i in range(64) if f(i & 15, i >> 4))


def smask(dst, m):
    p(f"s_mov_b32 {s(dst)}, {m & 0xffffffff:#x}")
    p(f"s_mov_b32 {s(dst+1)}, {m >> 32:#x}")


p(f"s_movk_i32 {s(sT0)}, 400")
p(f"v_cmp_le_u32 vcc, {s(sT0)}, {v(QH)}")
p(f"v_lshrrev_b32 {v(QV)}, 1, {v(QH)}")
p(f"s_movk_i32 {s(sT0)}, -200")
p(f"v_cndmask_b32 {v(QH)}, 0, 1, vcc")
p(f"v_mad_i32_i24 {v(QV)}, {v(QH)}, {s(sT0)}, {v(QV)}")
p(f"v_mul_u32_u24 {v(QV+1)}, 0x10001, {v(QV)}")
p(f"v_add_u32 {v(QV)}, 0x10000, {v(QV+1)}")
p(f"v_add_u32 {v(QV+2)}, 0x50004, {v(QV+1)}")
p(f"v_add_u32 {v(QV+3)}, 0x70006, {v(QV+1)}")
p(f"v_add_u32 {v(QV+1)}, 0x30002, {v(QV+1)}")
p(f"v_mov_b32 {v(NBA)}, {CNT:#x}")
smask(P0, lane_mask(lambda m, g: (m >> 2) >= g))
smask(P1, lane_mask(lambda m, g: (m >> 2) > g))
smask(P2, lane_mask(lambda m, g: (m >> 2) == g))
smask(NB, lane_mask(lambda m, g: (m & 3) == 0 or (m, g) == (1, 0)))
for x in range(2):
    p(f"v_cndmask_b32 {v(AP+x)}, 0, {v(NBA)}, {s(P0,2)}")
    p(f"v_cndmask_b32 {v(AP+4+x)}, 0, {v(NBA)}, {s(P1,2)}")
for x in range(4):
    p(f"v_cndmask_b32 {v(AT+x)}, 0, {v(NBA)}, {s(NB,2)}")
p(f"v_lshlrev_b32 {v(TX)}, 4, {v(TX+4)}")
p(f"v_sub_u32 {v(TX)}, 48, {v(TX)}")
smask(P0, 0x00F0BFE0BFE0BFE0)
p(f"v_lshrrev_b64 {v(AP+2,2)}, {v(TX)}, {s(P0,2)}")
p(f"v_mov_b32 {v(NBA)}, 0")
p(f"s_mov_b64 {s(NB,2)}, 0")
for x in range(2):
    p(f"v_cndmask_b32 {v(AP+2+x)}, {v(AP+4+x)}, {v(AP+2+x)}, {s(P2,2)}")
if STAMP:
    p(f"s_mov_b32 {s(sK)}, {KB-1}")
p(f"s_mov_b32 {s(sKW)}, {KB-1}")
p(f"s_mov_b32 {s(sC)}, {CNEG:#x}")
n_, r_, c_ = TX + 5, TX + 6, TX + 4
p(f"v_and_b32 {v(n_)}, 15, v0")
p(f"v_bfe_u32 {v(r_)}, v0, 2, 2")
X0 = TX + 7
SA, SC_, SB_, TBA, BWA = CA + 60, CA + 61, CA + 62, CA + 63, CD + 30
IDN, N0M = DG + 2, DG + 4
p(f"v_lshlrev_b32 {v(X0)}, 3, {v(c_)}")
p(f"v_lshl_add_u32 {v(X0)}, {v(r_)}, 7, {v(X0)}")
p(f"v_and_b32 {v(TX)}, 24, v0")
p(f"v_lshlrev_b32 {v(TX)}, 2, {v(TX)}")
p(f"v_xor_b32 {v(TX)}, {v(X0)}, {v(TX)}")
p(f"v_lshl_add_u32 {v(TX)}, v1, 10, {v(TX)}")
p(f"s_lshl_b32 {s(sT0)}, {s(sT1)}, 5")
p(f"v_xor_b32 {v(SB_)}, {s(sT0)}, {v(TX)}")
p(f"v_add_u32 {v(SB_)}, {STG+2*REG}, {v(SB_)}")
p(f"s_lshr_b32 {s(sT0)}, {s(sw)}, 1")
p(f"s_lshl_b32 {s(sT0)}, {s(sT0)}, 5")
p(f"v_xor_b32 {v(SA)}, {s(sT0)}, {v(TX)}")
p(f"s_and_b32 {s(sT0)}, {s(sw)}, 1")
p(f"s_mul_i32 {s(sT0)}, {s(sT0)}, {REG}")
p(f"s_add_u32 {s(sT0)}, {s(sT0)}, {STG}")
p(f"v_add_u32 {v(SA)}, {s(sT0)}, {v(SA)}")
p(f"v_add_u32 {v(SC_)}, {4*REG}, {v(SA)}")
p(f"s_and_b32 {s(sT0)}, {s(sw)}, 4")
p(f"v_lshrrev_b32 {v(TX)}, 3, {v(n_)}")
p(f"v_add_u32 {v(TX)}, {s(sT0)}, {v(TX)}")
p(f"v_mul_u32_u24 {v(TX)}, {REG}, {v(TX)}")
p(f"v_lshl_add_u32 {v(TX)}, v1, 4, {v(TX)}")
p(f"v_and_b32 {v(TX+1)}, 7, v0")
p(f"v_lshl_add_u32 {v(TBA)}, {v(TX+1)}, 7, {v(TX)}")


def gRDB():
    p(f"v_and_b32 {v(TX+1)}, 8, v0")
    p(f"v_lshlrev_b32 {v(TX+1)}, 2, {v(TX+1)}")
    p(f"v_lshl_add_u32 {v(TX+1)}, {v(n_)}, 7, {v(TX+1)}")
    p(f"v_add_u32 {v(TX+1)}, {s(sLB)}, {v(TX+1)}")
    p(f"v_and_b32 {v(TX+2)}, 2, v0")
    p(f"v_lshlrev_b32 {v(TX+2)}, 1, {v(TX+2)}")
    p(f"v_xor_b32 {v(TX+2)}, {v(TX+2)}, v1")
    p(f"v_lshl_add_u32 {v(RDB0)}, {v(TX+2)}, 4, {v(TX+1)}")
    p(f"v_xor_b32 {v(TX+2)}, 4, {v(TX+2)}")
    p(f"v_lshl_add_u32 {v(RDB1)}, {v(TX+2)}, 4, {v(TX+1)}")


def gRDT():
    p(f"v_and_b32 {v(TX+1)}, 8, v0")
    p(f"v_lshlrev_b32 {v(TX+1)}, 3, {v(TX+1)}")
    p(f"v_lshl_add_u32 {v(TX+2)}, v1, 5, {v(X0)}")
    p(f"v_xor_b32 {v(TX+2)}, {v(TX+2)}, {v(TX+1)}")
    p(f"v_add_u32 {v(RDT)}, {s(sLB)}, {v(TX+2)}")


def gTAD():
    p(f"s_add_u32 {s(sT0)}, {s(sLB)}, {TB}")
    p(f"v_lshl_add_u32 {v(TADR)}, {v(c_)}, 1, {s(sT0)}")
    p(f"v_lshl_add_u32 {v(TADR)}, {'v1' if W44 else v(r_)}, 4, {v(TADR)}")
    p(f"s_add_u32 {s(sT0)}, {s(sLB)}, {OUTS}")
    p(f"v_lshl_add_u32 {v(OADR)}, v0, 1, {s(sT0)}")
    p(f"s_add_u32 {s(sT0)}, {s(sLB)}, {BI}")
    p(f"v_lshl_add_u32 {v(BADR)}, v1, 4, {s(sT0)}")


def gBWA():
    p(f"s_and_b32 {s(sT0)}, {s(sw)}, 3")
    p(f"s_lshl_b32 {s(sT0)}, {s(sT0)}, 6")
    p(f"s_add_u32 {s(sT0)}, {s(sT0)}, {BI}")
    p(f"v_and_b32 {v(TX+1)}, 7, v0")
    p(f"v_mul_u32_u24 {v(TX+1)}, {BSTR-128}, {v(TX+1)}")
    p(f"v_add3_u32 {v(BWA)}, {v(TBA)}, {v(TX+1)}, {s(sT0)}")


def gSEL():
    if not W44:
        p(f"v_cmp_eq_u32 vcc, {v(r_)}, v1")
    p(f"v_and_b32 {v(TX+1)}, 1, v0")
    p(f"v_lshlrev_b32 {v(TX+1)}, 4, {v(TX+1)}")
    p(f"v_lshlrev_b32 {v(TX+1)}, {v(TX+1)}, 1")
    if not W44:
        p(f"v_cndmask_b32 {v(TX+1)}, 0, {v(TX+1)}, vcc")
    p(f"v_cmp_gt_u32 vcc, 2, {v(c_)}")
    p(f"v_mov_b32 {v(ONE+1)}, 0")
    p(f"v_mov_b32 {v(ONE)}, 0x3f80")
    p(f"v_cndmask_b32 {v(SEL0)}, 0, {v(TX+1)}, vcc")
    p(f"v_cmp_eq_u32 vcc, 0, {v(n_)}")
    p(f"v_sub_u32 {v(SEL1)}, {v(TX+1)}, {v(SEL0)}")
    p(f"v_mul_u32_u24 {v(IDN)}, 0x3f80, {v(SEL0)}")
    p(f"v_cndmask_b32 {v(N0M)}, 0, -1, vcc")
    p(f"v_mul_u32_u24 {v(IDN+1)}, 0x3f80, {v(SEL1)}")


def gZER():
    for j in range(8):
        p(f"v_mov_b32 {v(XT+j)}, 0")
    for j in range(4):
        p(f"v_mov_b32 {v(S+j)}, 0")
        p(f"v_mov_b32 {v(ACC+j)}, 0")


def gB2():
    p(f"s_lshl_b32 {s(sB2)}, {s(sB2)}, 16")
    for r in range(4):
        p(f"v_and_b32 {v(B2+r)}, {s(sB2)}, {v(N0M)}")


def gPRI():
    if opt["prio"]:
        p(f"s_add_u32 {s(sT0)}, {s(sLB)}, {PRG}")
        p(f"v_lshl_add_u32 {v(DG+5)}, v0, 2, {s(sT0)}")
        p(f"ds_write_b32 {v(DG+5)}, {v(ONE+1)}")
        p(f"s_xor_b32 {s(sT0)}, {s(sw)}, 4")
        p(f"s_mul_i32 {s(sT0)}, {s(sT0)}, {REG}")
        p(f"s_add_u32 {s(sT0)}, {s(sT0)}, {PRG}")
        p(f"v_writelane_b32 {v(DG+5)}, {s(sT0)}, 1")
    if opt["swap"]:
        p(f"v_add_u32 {v(DG+6)}, {s(sLB)}, v2")
        p("s_mov_b64 exec, 15")
        p(f"ds_write_b32 {v(DG+6)}, {v(ONE+1)} offset:{KEY}")
        p("s_mov_b64 exec, -1")


PLACE = dict(zip((gSEL, gBWA, gPRI, gB2, gRDB, gRDT, gTAD, gZER), (int(x) for x in str(opt["place"])[1:])))


def groups(k):
    for f, w_ in PLACE.items():
        if w_ == k:
            f()


groups(0)
if opt["ym"]:
    load_b1()
    p(f"s_cmp_ge_u32 {s(sw)}, 4")
    p("s_cbranch_scc0 L_old3z")
    p(f"buffer_load_dwordx4 {v(MSK,4)}, v3, {s(SM,4)}, {s(sOFF)} offen {NTM}")
    p("L_old3z:")


def late_loads():
    if opt["tlb"]:
        p(f"s_add_u32 {s(sT0)}, {s(sw)}, 1")
        p(f"s_and_b32 {s(sT0)}, {s(sT0)}, 6")
        p("s_cbranch_scc1 L_notouch")
        p(f"s_mov_b32 {s(sT0)}, {PSTR*25600}")
        p(f"v_mul_lo_u32 v255, v0, {s(sT0)}")
        p(f"s_mul_i32 {s(sT0)}, {s(sW)}, 51200")
        p(f"s_and_b32 {s(sT1)}, {s(sw)}, 1")
        p(f"s_mul_i32 {s(sT1)}, {s(sT1)}, {51200-128}")
        p(f"s_add_u32 {s(sT0)}, {s(sT0)}, {s(sT1)}")
        p(f"v_add_u32 v255, {s(sT0)}, v255")
        p("s_mov_b64 exec, 14")
        p(f"global_load_dword v255, v255, s[6:7] {NT}")
        p("s_mov_b64 exec, -1")
        p("L_notouch:")
    for j in range(1, 4):
        p(f"s_add_u32 {s(sOFF)}, {s(sOFF)}, {PSTR*400}")
        p(f"buffer_load_dwordx4 {v(MSK+4*j,4)}, v3, {s(SM,4)}, {s(sOFF)} offen {NTM}")
    p(f"v_lshlrev_b32 {v(TX+3)}, 3, v1")
    p(f"v_lshl_add_u32 {v(TX+3)}, {v(TX+4)}, 5, {v(TX+3)}")
    p(f"global_load_dwordx2 {v(W2R,2)}, {v(TX+3)}, s[14:15]")


G2 = opt["g2"]
if not G2:
    late_loads()
LL = 0 if G2 else 4
NE = D - 2
IDX = ZB


def idx_reads():
    for t in range(LA):
        p(f"ds_read_u8 {v(IDX+2*t)}, {v(RDL)} offset:{t*16}")
        p(f"ds_read_u8 {v(IDX+2*t+1)}, {v(RDL)} offset:{t*16+8}")


def tiles(t0, t1, bits, tag):
    for t in range(t0, t1):
        if t > 0:
            p(f"s_bitcmp0_b64 {s(bits,2)}, {t+1}")
            p(f"s_cbranch_scc1 L_noadv{tag}{t}")
            adv_hist()
            if opt["swap"]:
                p(f"s_sub_u32 {s(sKA)}, {s(sKA)}, 1")
            p(f"L_noadv{tag}{t}:")
        p(m0_half(t, 0))
        p(f"v_mov_b32 {v(VA)}, {v(IDX+2*t)}")
        p(f"v_mov_b32 {v(VB)}, {v(IDX+2*t+1)}")
        p(dma_half(0))
        if not opt["m1"]:
            p(m0_half(t, 1))
            p("s_nop 0")
        p(dma_half(1))


issued = [0]


def early(n):
    if n == 0:
        return
    t0 = issued[0]
    p(f"s_cmp_eq_u32 {s(sEARLY)}, 0")
    p(f"s_cbranch_scc1 L_skip{t0}")
    tiles(t0, t0 + n, F, "e")
    p(f"L_skip{t0}:")
    issued[0] += n


def x5tile():
    p(f"ds_read_u8 {v(VA)}, {v(RDL)} offset:{D*16}")
    p(f"ds_read_u8 {v(VB)}, {v(RDL)} offset:{D*16+8}")
    p(f"s_add_u32 m0, {s(sLB)}, {LI-2176}")
    p("s_waitcnt lgkmcnt(0)")
    p(dma_half(0))
    p(dma_half(1))


def first_pair():
    q_total(0, 0)
    t = q_test(0)
    for x in t[:8]:
        p(x)
    for step in range(5):
        p(q_scan(0, step))
        for x in t[8 + step:9 + step]:
            p(x)
    p(f"v_cmp_ne_u32 vcc, 0, {v(NBA)}")
    q_lanes(0)
    p(f"s_mov_b32 {s(sEARLY)}, 0")
    p("s_cbranch_vccnz L_late")
    q_ranks(0, 0)
    p(f"s_add_u32 {s(sT0)}, {s(sLB)}, {L0+16*LA}")
    p(f"s_cmp_ge_u32 {s(sBASE)}, {s(sT0)}")
    q_write(0)
    p("s_cbranch_scc0 L_late")
    p(f"s_mov_b32 {s(sEARLY)}, 1")
    idx_reads()
    p("s_waitcnt lgkmcnt(0)")
    tiles(0, NE, F, "e")
    if opt.get("x5") == 2:
        x5tile()
    p(f"s_setpc_b64 {s(RET,2)} ; ret=L_fp")
    p("L_late:")
    p("s_waitcnt vmcnt(0)")
    p(f"s_setpc_b64 {s(RET,2)} ; ret=L_fp")


stamp()
jit()
if not opt["yf"]:
    p(f"s_cmp_ge_u32 {s(sw)}, 4")
    p("s_cbranch_scc1 L_young1")
p(f"s_waitcnt vmcnt({6+LL}) lgkmcnt(0)")
p(f"s_call_b64 {s(RET,2)}, L_fp")
p(f"s_waitcnt vmcnt({1+LL+2*NE})")
p("s_branch L_old1")
p("L_young1:")
p(f"s_waitcnt vmcnt({1+LL+opt['ym']})")
p("L_old1:")
cst("preB1")
p(f"s_waitcnt lgkmcnt(0)")
p("s_barrier")
stamp()
cst("B1")
jit()
RWA, RWC, RWD, RBB, RBC, TP, DB, DA, DD = CA, CA + 4, CA + 8, CA + 12, CA + 20, CA + 28, CA + 44, CA + 52, CD
for (dst, base) in ((RBB, 0), (RBC, 2)):
    for ks in range(2):
        for u in range(2):
            p(f"ds_read_b64_tr_b16 {v(dst+4*ks+2*u,2)}, {v(SB_)} offset:{(base+ks)*REG+u*512}")
for j in range(2):
    for ks in range(2):
        p(f"ds_read_b128 {v(TP+8*j+4*ks,4)}, {v(TBA)} offset:{TB+j*2*REG+ks*64}")
for u in range(2):
    p(f"ds_read_b64_tr_b16 {v(RWA+2*u,2)}, {v(SA)} offset:{u*512}")
    p(f"ds_read_b64_tr_b16 {v(RWC+2*u,2)}, {v(SC_)} offset:{u*512}")
    p(f"ds_read_b64_tr_b16 {v(RWD+2*u,2)}, {v(SC_)} offset:{2*REG+u*512}")
if not opt["yf"]:
    p(f"s_cmp_ge_u32 {s(sw)}, 4")
    p("s_cbranch_scc1 L_young2")
p(f"s_waitcnt vmcnt({LL+2*NE})")
p("s_branch L_old2")
p("L_young2:")
p(f"s_waitcnt vmcnt({LL+opt['ym']})")
p("L_old2:")
if G2 == 1:
    late_loads()
for j in range(2):
    p(f"v_lshlrev_b32 {v(DB+2*j)}, 16, {v(B1R+j)}")
    p(f"v_and_b32 {v(DB+2*j+1)}, 0xffff0000, {v(B1R+j)}")
groups(1)
jit()
cst("firstpair")
p("s_waitcnt lgkmcnt(0)")
for j in range(8):
    p(f"v_xor_b32 {v(RBC+j)}, 0x80008000, {v(RBC+j)}")
for u in range(2):
    p(f"{DIAGMM} {v(DA+4*u,4)}, {v(IDN,2)}, {v(RWA+2*u,2)}, 0")
    p(f"{DIAGMM} {v(DD+4*u,4)}, {v(IDN,2)}, {v(RWD+2*u,2)}, 0")
for u in range(2):
    p(f"{DIAGMM} {v(DA+4*u,4)}, {v(IDN,2)}, {v(RWC+2*u,2)}, {v(DA+4*u,4)}")
if G2 == 3:
    late_loads()
for j in (1, 0):
    first = True
    for (src) in (RBB, RBC):
        for ks in range(2):
            c = v(DB, 4) if first else v(DB + 4 * j, 4)
            p(f"v_mfma_f32_16x16x32_bf16 {v(DB+4*j,4)}, {v(src+4*ks,4)}, {v(TP+8*j+4*ks,4)}, {c}")
            first = False
for j in range(8):
    p(f"v_mul_f32 {v(DA+j)}, {s(sC)}, {v(DA+j)}")
for j in range(8):
    p(f"v_mul_f32 {v(DD+j)}, {s(sC)}, {v(DD+j)}")
p(f"s_add_u32 {s(sT0)}, {s(sLB)}, {XCH}")
if G2 == 2:
    p(f"v_mov_b32 {v(TX+2)}, v3")
p(f"v_add_u32 v3, {s(sT0)}, v2")
for j in range(4):
    p(f"v_cvt_pk_bf16_f32 {v(DD+j)}, {v(DD+2*j)}, {v(DD+2*j+1)}")
for j in range(8):
    p(f"v_mul_f32 {v(DB+j)}, {s(sC)}, {v(DB+j)}")
p(f"ds_write_b128 v3, {v(DA,4)}")
p(f"ds_write_b128 v3, {v(DA+4,4)} offset:1024")
p(f"ds_write_b128 v3, {v(DD,4)} offset:2048")
p(f"ds_write_b128 {v(BWA)}, {v(DB,4)}")
p(f"ds_write_b128 {v(BWA)}, {v(DB+4,4)} offset:{2*REG}")
if G2 == 2:
    p(f"v_mov_b32 {v(TX+1)}, v3")
    p(f"v_mov_b32 v3, {v(TX+2)}")
    late_loads()
p(f"v_add_u32 v3, {XCH}, v2")
p(f"v_add_u32 {v(TX)}, {4*REG}, v3")
cst("preB3")
p("s_waitcnt lgkmcnt(0)")
p("s_barrier")
cst("B3")
jit()
stamp()
def const_reads(w0, w1):
    if opt.get("xc"):
        return
    for w_ in range(w0, w1):
        a = "v3" if w_ < 4 else v(TX)
        p(f"ds_read_b128 {v(CA+8*w_,4)}, {a} offset:{(w_&3)*REG}")
        p(f"ds_read_b128 {v(CA+8*w_+4,4)}, {a} offset:{(w_&3)*REG+1024}")
        p(f"ds_read_b128 {v(CD+4*w_,4)}, {a} offset:{(w_&3)*REG+2048}")


if opt["yf"]:
    assert not opt["ym"] and not opt["y2"]
    p("s_branch L_old3")
p(f"s_cmp_ge_u32 {s(sw)}, 4")
p("s_cbranch_scc0 L_old3")
if opt["yp"]:
    p("s_setprio 2")
if opt["ym"]:
    p("s_waitcnt vmcnt(4)")
p(f"s_call_b64 {s(RET,2)}, L_fp")
if opt["y2"]:
    p("s_branch L_yng3")
p("L_old3:")
p(f"s_call_b64 {s(RET,2)}, L_t23")
p("L_yng3:")
const_reads(0, 3)
groups(2)
p(f"s_waitcnt vmcnt({2*min(NE, LA-NE) if opt['y2'] or G2 else 2*LA})")
cst("tiles23")
for i in range(3):
    q_total(i, i + 1)
t = q_test(1) + q_test(2) + q_test(3)
for x in t[:9]:
    p(x)
for step in range(5):
    for i in range(3):
        p(q_scan(i, step))
const_reads(3, 5)
for x in t[9:]:
    p(x)
p(f"v_cmp_ne_u32 vcc, 0, {v(NBA)}")
for i in range(3):
    q_lanes(i)
p("s_cbranch_vccnz L_general")
q_ranks(0, 1)
q_ranks(1, 2)
q_write(0)
q_ranks(2, 3)
q_write(1)
const_reads(5, 8)
t_reads()
q_write(2)
if opt["y2"]:
    p(f"s_cmp_ge_u32 {s(sw)}, 4")
    p("s_cbranch_scc0 L_old3b")
    p(f"s_call_b64 {s(RET,2)}, L_t23")
    p("L_old3b:")
p("L_listed:")
stamp()
jit(True)
if opt["swap"]:
    p(f"s_and_b32 {s(sT2)}, {s(NB)}, 0x40000000")
    p(f"s_or_b32 {s(sT2)}, {s(sT2)}, {s(sw)}")
    p(f"s_bitset1_b32 {s(sT2)}, 31")
    for r, src in ((sT0, A0 + 6), (sT1, A0 + 10)):
        p(f"s_and_b32 {s(r)}, {s(src)}, 0x1ff")
        p(f"s_lshl_b32 {s(r)}, {s(r)}, 3")
        p(f"s_or_b32 {s(r)}, {s(r)}, {s(sT2)}")
    for x, r in enumerate((sT0, sCUR, sM2, sB3)):
        p(f"v_mov_b32 {v(ZA+x)}, {s(r)}")
    for x, r in enumerate((sT1, sB3, sM3, sE3)):
        p(f"v_writelane_b32 {v(ZA+x)}, {s(r)}, 1")
    p("s_mov_b64 exec, 3")
    p(f"ds_write_b128 {v(DG+6)}, {v(ZA,4)} offset:{KEY}")
    p("s_mov_b64 exec, -1")
    p(f"s_sub_u32 {s(sSZ)}, {s(sB3)}, {s(sCUR)}")
    p(f"s_sub_u32 {s(sSZ+1)}, {s(sE3)}, {s(sB3)}")
    p(f"s_lshl_b32 {s(sOW)}, {s(sw)}, 3")
    p(f"s_mov_b32 {s(sRND)}, 0")
    p(f"s_mov_b32 {s(sPM)}, 0")
if opt["prio"]:
    step = 2 * PSTEP
    p(f"s_sub_u32 {s(sT0)}, {s(sBASE)}, {s(sLB)}")
    p(f"s_sub_u32 {s(sT0)}, {s(sT0)}, {L0}")
    p(f"s_lshr_b32 {s(sT0)}, {s(sT0)}, 3")
    if opt["bias"]:
        p(f"s_lshr_b32 {s(sT1)}, {s(sw)}, 2")
        p(f"s_mul_i32 {s(sT1)}, {s(sT1)}, {2*opt['bias']}")
        p(f"s_add_u32 {s(sT0)}, {s(sT0)}, {s(sT1)}")
    p(f"s_sub_u32 {s(sT1)}, 0, {s(sT0)}")
    p(f"v_mov_b32 {v(PADR)}, {v(DG+5)}")
    p(f"v_mov_b32 {v(PRV)}, {s(sT0)}")
    p(f"v_mov_b32 {v(PINC)}, {-step}")
    p(f"v_writelane_b32 {v(PRV)}, {s(sT1)}, 1")
    p(f"v_writelane_b32 {v(PINC)}, {step}, 1")
    p(f"ds_add_u32 {v(PADR)}, {v(PRV)}")
    if opt["pv"]:
        p(f"v_bfrev_b32 {v(PTH)}, -2")
        p(f"v_writelane_b32 {v(PTH)}, 0, 0")
p(f"s_cmp_eq_u32 {s(sEARLY)}, 1")
p("s_cbranch_scc1 L_nolate")
idx_reads()
p("s_waitcnt lgkmcnt(0)")
tiles(0, LA, F, "l")
p("L_nolate:")
for hb in range(4):
    for j in range(2):
        p(f"v_and_b32_dpp {v(W2+2*hb+j)}, {v(W2R+j)}, {v(N0M)} quad_perm:[{hb},{hb},{hb},{hb}] row_mask:0xf bank_mask:0xf")
if opt.get("xp"):
    for j in range(opt["xp"]):
        p("s_nop 15")
cst("precompactdone")
p(f"s_waitcnt vmcnt({2*(LA-1)}) lgkmcnt(0)")
read_xb(0, 0)
read_xb(0, 1)
wbuild(opt["fg"])
stamp()
stamp(33)
cst("wbuilt")
if STAMP == 4:
    p("s_waitcnt lgkmcnt(0)")
    p("v_mov_b32 v254, 0")
    for j, r in enumerate((38,80,82,96,98,44,46,48,50,16)):
        p(f"v_writelane_b32 v254, s{r}, {j}")
if not opt["fg"]:
    for j in range(8):
        p(g1(j))
if "y0" in SCHED[opt["sched"]]:
    p(f"s_waitcnt vmcnt({2*(LA-2)})")
    read_xb(1, 0)
    read_xb(1, 1)
_t = SCHED[opt["sched"]].split()
if "AA" in _t:
    p("v_cmp_gt_u32 vcc, 32, v0")
    p(f"v_cndmask_b32 {v(ONE)}, 0, {v(ONE)}, vcc")
if _t.index("ia") < _t.index("EV"):
    p(f"ds_read_u8 {v(VA)}, {v(RDL)} offset:{LA*16}")
    p(f"ds_read_u8 {v(VB)}, {v(RDL)} offset:{LA*16+8}")
if _t.index("k1") > _t.index("EV"):
    for j in range(4, 8):
        p(f"v_mov_b32 {v(ZA+j)}, 0")
if opt.get("x5"):
    p("s_waitcnt lgkmcnt(0)")
    p(f"v_mov_b32 {v(VA)}, 0xff")
    p(f"v_mov_b32 {v(VB)}, 0xff")
event_mask()
p(f"s_cmp_lg_u64 {s(NB,2)}, 0")
if opt.get("so"):
    p("s_cbranch_scc1 L_gen2")
    p(f"s_getreg_b32 {s(sT0)}, hwreg(HW_REG_XCC_ID, 0, 1)")
    p(f"s_cmp_eq_u32 {s(sT0)}, 0")
    p("s_cbranch_scc1 Lf_mid")
    p("s_branch Lo_mid")
    p("L_gen2:")
else:
    p("s_cbranch_scc0 Lf_mid")
p(f"s_mul_i32 {s(sT0)}, {s(sW)}, 800")
p(f"s_add_u32 s8, s8, {s(sT0)}")
p("s_addc_u32 s9, s9, 0")
srd(SM, 8, 400)
p(f"s_movk_i32 {s(sMDL)}, {MDL0}")
p("s_branch Ls_mid")
p("L_fp:")
first_pair()
if opt["swap"]:
    A_, B_, KB_, TK_, KA_ = ZA + 8, ZA + 9, ZA + 10, ZA + 11, ZA + 12
    p("L_swap:")
    p(f"v_lshrrev_b32 {v(A_)}, 3, v0")
    p(f"v_and_b32 {v(B_)}, 7, v0")
    p(f"v_mul_u32_u24 {v(A_)}, {REG}, {v(A_)}")
    p(f"v_mul_u32_u24 {v(B_)}, {REG}, {v(B_)}")
    p(f"v_add_u32 {v(A_)}, {s(sRND)}, {v(A_)}")
    p(f"v_add_u32 {v(B_)}, {s(sRND)}, {v(B_)}")
    p(f"v_mov_b32 {v(TK_)}, 1")
    p("s_mov_b64 exec, 1")
    p(f"ds_add_rtn_u32 {v(TK_)}, {v(A_)}, {v(TK_)} offset:{TKT}")
    p("s_mov_b64 exec, -1")
    p("L_swap_poll:")
    p(f"ds_read_b32 {v(KB_)}, {v(B_)} offset:{KEY}")
    p(f"ds_read_b128 {v(KA_,4)}, {v(A_)} offset:{KEY}")
    p(f"v_and_b32 {v(TX+2)}, 56, v0")
    p("s_waitcnt lgkmcnt(0)")
    p(f"v_cmp_le_i32 vcc, 0, {v(KB_)}")
    p(f"v_cmp_gt_u32 {s(P0,2)}, {v(KB_)}, {v(KA_)}")
    p(f"v_lshlrev_b32 {v(TX+3)}, 1, {v(KB_)}")
    p(f"v_readfirstlane_b32 {s(sT0)}, {v(TK_)}")
    p("s_cbranch_vccnz L_swap_poll")
    p(f"v_lshrrev_b64 {v(TX,2)}, {v(TX+2)}, {s(P0,2)}")
    p(f"v_cmp_gt_i32 {s(P1,2)}, 0, {v(TX+3)}")
    p(f"v_and_b32 {v(TX)}, 0xff, {v(TX)}")
    p(f"v_bcnt_u32_b32 {v(TX)}, {v(TX)}, 0")
    p(f"v_cmp_eq_u32 vcc, {s(sT0)}, {v(TX)}")
    p(f"s_lshl_b32 {s(sT1)}, {s(sw)}, 3")
    p(f"s_ff1_i32_b64 {s(sT0)}, vcc")
    p(f"s_cmp_lg_u64 {s(P1,2)}, 0")
    p(f"s_cselect_b32 {s(sT0)}, {s(sT1)}, {s(sT0)}")
    p(f"s_sub_u32 {s(sT3)}, {s(sT0)}, {s(sOW)}")
    p(f"s_mov_b32 {s(sOW)}, {s(sT0)}")
    p(f"s_sub_u32 {s(sDG+1)}, {s(sT0)}, {s(sT1)}")
    p(f"v_readlane_b32 {s(sT1)}, {v(KA_+2)}, {s(sT0)}")
    p(f"v_readlane_b32 {s(sT2)}, {v(KA_+3)}, {s(sT0)}")
    p(f"v_readlane_b32 {s(sT0)}, {v(KA_+1)}, {s(sT0)}")
    p(f"s_mul_i32 {s(sPD+1)}, {s(sT3)}, {REG // 8}")
    p(f"s_mul_i32 {s(sT3)}, {s(sT3)}, 6400")
    p(f"s_add_u32 {s(sRO)}, {s(sRO)}, {s(sT3)}")
    p(f"s_sub_u32 {s(sT3)}, {s(sT0)}, {s(sCUR)}")
    p(f"v_add_u32 {v(RDL)}, {s(sT3)}, {v(RDL)}")
    p(f"s_mov_b32 {s(sCUR)}, {s(sT2)}")
    for r in (sT1, sT2):
        p(f"s_sub_u32 {s(r)}, {s(r)}, {s(sT0)}")
    p(f"s_sub_u32 {s(sT3)}, {s(sT2)}, {s(sSZ)}")
    for r in (sT1, sT2):
        p(f"s_lshr_b32 {s(r)}, {s(r)}, 4")
        p(f"s_add_u32 {s(r)}, {s(r)}, {s(sU)}")
        p(f"s_bitset1_b64 {s(F,2)}, {s(r)}")
    event_mask()
    if opt["prio"]:
        p(f"s_ashr_i32 {s(sT3)}, {s(sT3)}, 3")
        p(f"v_mov_b32 {v(A_)}, {s(sT3)}")
        p(f"s_sub_u32 {s(sT3)}, 0, {s(sT3)}")
        p(f"v_writelane_b32 {v(A_)}, {s(sT3)}, 1")
        p(f"ds_add_u32 {v(PADR)}, {v(A_)}")
    p(f"s_cmp_eq_u32 {s(sRND)}, 0")
    p(f"s_cselect_b32 {s(sPD)}, {s(sPD+1)}, {s(sPD)}")
    p(f"s_cselect_b32 {s(sDG)}, {s(sDG+1)}, {s(sDG)}")
    p(f"s_cselect_b32 {s(sKA)}, 1, 8")
    p(f"s_cselect_b32 {s(sT0)}, 4, 2")
    p(f"s_mov_b32 {s(sSZ)}, {s(sSZ+1)}")
    p(f"s_mov_b32 {s(sRND)}, 16")
    p(f"s_cmp_eq_u32 {s(sKW)}, {s(sT0)}")
    p("s_cbranch_scc1 L_swap_now")
    p(f"s_sub_u32 {s(sT0)}, {s(sT0)}, 1")
    p(f"s_bitset1_b32 {s(sPM)}, {s(sT0)}")
    p(f"s_setpc_b64 {s(RET,2)} ; ret=L_swap")
    p("L_swap_now:")
    p(f"v_add_u32 {v(TADR)}, {s(sPD+1)}, {v(TADR)}")
    p(f"v_add_u32 {v(BADR)}, {s(sPD+1)}, {v(BADR)}")
    t_reads()
    p(f"s_setpc_b64 {s(RET,2)} ; ret=L_swap")
p("L_t23:")
p(f"s_cmp_eq_u32 {s(sEARLY)}, 0")
p("s_cbranch_scc1 L_skip23")
tiles(NE, LA, F, "e")
if opt.get("x5") == 1:
    x5tile()
p(f"s_setpc_b64 {s(RET,2)} ; ret=L_t23")
p("L_skip23:")
p("s_waitcnt vmcnt(0)")
p(f"s_setpc_b64 {s(RET,2)} ; ret=L_t23")
mainloop("f", False)
p("L_store:")
p(f"s_add_u32 {s(sT0)}, {s(sLB)}, {OUTS}")
p(f"v_lshl_add_u32 {v(TX+1)}, v0, 4, {s(sT0)}")
if opt["swap"]:
    for j in range(2):
        p(f"s_lshl_b32 {s(sT0)}, {s(sDG+j)}, 5")
        p(f"s_bfm_b64 exec, 16, {32+16*j}")
        p(f"v_add_u32 {v(VOUT)}, {s(sT0)}, {v(VOUT)}")
    p("s_mov_b64 exec, -1")
p(f"ds_read_b128 {v(ZB,4)}, {v(TX+1)}")
p("s_waitcnt lgkmcnt(0)")
if opt.get("endp"):
    p("s_cmp_lg_u32 s2, 0")
    p("s_cbranch_scc1 L_endp")
    p("L_endq:")
    p("s_memrealtime s[38:39]")
    p("s_waitcnt lgkmcnt(0)")
    p("s_sub_u32 s38, s38, s100")
    p(f"s_cmp_lt_i32 s38, {opt['endp']*100}")
    p("s_cbranch_scc1 L_endq")
    p("L_endp:")
    if opt.get("fr"):
        p(f"s_and_b32 s38, s2, {opt['fr']}")
        p("s_cbranch_scc0 L_endr")
        p(f"global_store_dwordx4 {v(VOUT)}, {v(ZB,4)}, s[18:19] sc0 sc1")
        p("s_endpgm")
        p("L_endr:")
p(f"global_store_dwordx4 {v(VOUT)}, {v(ZB,4)}, s[18:19] {NTO}")
if STAMP:
    p("s_mov_b64 exec, -1")
    stamp(34)
    p(f"v_writelane_b32 v254, {s(sBASE)}, 15")
    p("s_getreg_b32 s96, hwreg(HW_REG_XCC_ID)")
    p("v_writelane_b32 v254, s96, 14")
    p("s_getreg_b32 s96, hwreg(HW_REG_HW_ID)")
    p("v_writelane_b32 v254, s96, 13")
    srd(SM, 100, 2048 * 256)
    p(f"s_lshl_b32 {s(sT0)}, s2, 3")
    p(f"s_add_u32 {s(sT0)}, {s(sT0)}, {s(sw)}")
    p(f"s_lshl_b32 {s(sT0)}, {s(sT0)}, 8")
    p(f"v_lshlrev_b32 v1, 2, v0")
    p(f"buffer_store_dword v254, v1, {s(SM,4)}, {s(sT0)} offen")
if opt.get("twice"):
    p("s_waitcnt vmcnt(0) lgkmcnt(0)")
    p("s_barrier")
    p("s_setprio 0")
    p(f"s_lshl_b32 {s(sT0)}, {s(sw)}, 6")
    p(f"v_add_u32 v0, {s(sT0)}, v0")
    p("s_add_u32 s3, s3, 1")
    p("s_cmp_eq_u32 s3, 1")
    p("s_cbranch_scc1 L_again")
if opt.get("spin"):
    if opt.get("probe"):
        if opt["probe"] == "end":
            p("s_memrealtime s[98:99]")
            p("s_waitcnt lgkmcnt(0)")
        p("s_sub_u32 s98, s98, s100")
        p(f"s_mul_i32 s98, s98, {opt.get('pk', 4)}")
        p("s_add_u32 s100, s100, s98")
    p("L_spin:")
    p("s_memrealtime s[38:39]")
    p("s_waitcnt lgkmcnt(0)")
    p("s_sub_u32 s38, s38, s100")
    p(f"s_cmp_lt_i32 s38, {opt['spin']*100}")
    p("s_cbranch_scc1 L_spin")
p("L_end:")
p("s_endpgm")
if opt.get("so"):
    mainloop("o", False, opt["so"])
p("L_general:")
p("s_waitcnt vmcnt(0)")
const_reads(5, 8)
t_reads()
list_reset()
p(f"s_bfm_b64 {s(EX50,2)}, 50, 0")
p(f"s_mul_i32 {s(sT0)}, {s(sW)}, 800")
p(f"v_add_u32 {v(TX+1)}, {s(sT0)}, v2")
p(f"s_mov_b64 exec, {s(EX50,2)}")
for j in range(4):
    p(f"global_load_dwordx4 {v(MSK+4*j,4)}, {v(TX+1)}, s[8:9]")
    p(f"v_add_u32 {v(TX+1)}, {PSTR*400}, {v(TX+1)}")
p("s_mov_b64 exec, -1")
p(f"v_cmp_lt_u32 vcc, 24, v0")
p(f"v_cndmask_b32 {v(HI)}, 0, 1, vcc")
p(f"v_mul_u32_u24 {v(CV+1)}, 25, {v(HI)}")
p(f"v_sub_u32 {v(CV+1)}, v0, {v(CV+1)}")
p(f"v_mul_u32_u24 {v(CV+1)}, 0x80008, {v(CV+1)}")
p(f"v_add_u32 {v(CV)}, 0x10000, {v(CV+1)}")
p(f"v_add_u32 {v(CV+2)}, 0x50004, {v(CV+1)}")
p(f"v_add_u32 {v(CV+3)}, 0x70006, {v(CV+1)}")
p(f"v_add_u32 {v(CV+1)}, 0x30002, {v(CV+1)}")
p("s_waitcnt vmcnt(0)")
for j in range(4):
    compact_body(j)
p(f"s_mov_b32 {s(sEARLY)}, 0")
p(f"s_mov_b64 {s(NB,2)}, -1")
p("s_branch L_listed")
mainloop("s", True)

nn = p.fix_hazards(verbose=opt["verbose"])
for early_, old_, gen_ in ((a_, b_, c_) for a_ in (True, False) for b_ in (True, False) for c_ in (True, False)):
    force = [("L_skip", not early_), ("L_nolate", early_ and not gen_), ("L_young", not old_), ("L_old3", old_), ("L_general", gen_)]
    for e in check_waits(p, force + ([("L_late", False)] if early_ else [])) if early_ else check_waits(p, force, cut="L_noadve"):
        if STAMP != 4 and not opt.get('x5'):
            sys.exit(f"WAIT-CHECK early={early_}: {e}")
hdr = open(__file__.rsplit("/", 1)[0] + "/../standalone__sequential_behavior_din__recsys.s.ref").read().split("\n")
head = [l for l in hdr if l.startswith(";") and "@launch" not in l and "Override" not in l and "grid=ceil" not in l]
out = "\n".join(head) + f"""
; @launch grid=({NWG},1,1) block=({WPB*64},1,1) lds={WPB*REG}
; generated by gen/gen.py {' '.join(sys.argv[1:])}
;
; out[b] = sum_l mask[b,l] * (sigmoid([h, t, h-t, h*t] w1 + b1) w2 + b2) * h,   h = hist[b,l], t = target[b]
; With w1 = [Wa; Wb; Wc; Wd] and c = -log2(e):  Z = h W_eff + bias,  W_eff = c (Wa + Wc + diag(t) Wd),  bias = c (b1 + t (Wb - Wc)),
; sigmoid = 1 / (1 + 2^Z).  History rows whose mask is zero contribute nothing and are not loaded.
; One workgroup per CU, 8 waves, 8 batch rows per wave.  Prologue: shared constants (weights staged in LDS, one slice per wave),
; bias for the workgroup's 64 rows, and per wave a list of the active history rows (prefix sums by int8 MFMA for 0/1 masks;
; any other mask value selects the general path: comparison-based lists and a loop copy that scales the scores by the mask).
; Loop: 16-row tiles gathered into a 4-slot LDS ring (LDS-DMA, index 255 = out of range = zeros); GEMM1 (16x16x32), exp, +1 (4x4x4
; MFMA), rcp, score (16x16x32), weighted sum (4x4x4 with A broadcast on transposed reads).  The two waves of a SIMD keep level through
; an LDS counter and s_setprio; row pairs 2 and 3 are handed out inside the workgroup in arrival order, largest first.
.amdgcn_target "amdgcn-amd-amdhsa--gfx950"
.text
.globl {NAME}
.p2align 8
.type {NAME},@function
""" + p.text() + f""".section .rodata,"a"
.p2align 6
.amdhsa_kernel {NAME}
  .amdhsa_next_free_vgpr 256
  .amdhsa_next_free_sgpr 102
  .amdhsa_accum_offset 256
  .amdhsa_group_segment_fixed_size 0
  .amdhsa_kernarg_size 80
  .amdhsa_user_sgpr_count 2
  .amdhsa_user_sgpr_kernarg_segment_ptr 1
  .amdhsa_system_sgpr_workgroup_id_x 1
.end_amdhsa_kernel
"""
sys.stdout.write(out)
```

```python
import sys
from asmlib import Prog, check_waits

opt = dict(oc=0, LA=4, fg=0, pv=1, U=4, al=0, yf=0, tlb=0, g2=1, ym=1, swap=1, bias=1, y2=1, yp=0, vx=0, m1=1, map=0, place=900010000, D=4, nt="sc1 nt", ntm="nt", nto="sc0 sc1", verbose=0, prio=1, sched="r")
for a in sys.argv[1:]:
    k, v = a.split("=", 1)
    opt[k] = int(v) if v.lstrip("-").isdigit() else v.replace("+", " ")
D = opt["D"]
U = opt["U"]
assert U % D == 0
LA = opt["LA"]
NT, NTM, NTO = opt["nt"], opt["ntm"], opt["nto"]
STAMP = opt.get("stamp", 0)
assert not (STAMP == 4 and opt["swap"])

NAME = "standalone__sequential_behavior_din__recsys_kernel"
NWG, WPB = 256, 8
NWAVE = NWG * WPB
KB = 16384 // NWAVE
REG = opt.get('reg', 20480)
SLOT = 2080
TB = D * SLOT
BI = TB + 1024
BSTR = 272
XCH = BI + 8 * BSTR
PRG = XCH + 3072
KEY = PRG + 256
OUTS = PRG + 320
TKT = PRG + 288
LI = REG - 2048
L0 = LI + 16
assert OUTS + 1024 <= LI - 2048 and LI + 2048 <= REG and LI % 2048 == 0 and REG % 2048 == 0
STG = (D - 2) * SLOT
CNEG = 0xBFB8AA3B
PSTR, WGSTR = (16, 64) if opt["map"] & 1 else (4096, 16)
LGP = PSTR.bit_length() - 1
DLT0, DLT1 = 25600, (PSTR - 1) * 25600
MDL0, MDL1 = 400, (PSTR - 1) * 400

CA, CD, W, ZA, ZB, BIAS, XB, XT, W2, B2, S, ACC, DG, TR, ONE, VA, VB = \
    4, 68, 100, 132, 148, 164, 180, 188, 196, 204, 208, 212, 216, 224, 228, 230, 232
RDB0, RDB1, RDT, RDL, TADR, BADR, OADR, SEL0, SEL1, VOUT, RDM = range(234, 245)
TX = 246
PTH = 245
PRV, PADR, PINC = 1, 2, 3
MSK = W
SH, SM, SH2 = 20, 24, 40
EX50, sB2, sDL, sMDL = 28, 30, 31, 32
sLB, sW, sw = 52, 53, 54
F = 56
H = 36
sKA, sKW = 60, 61
sBASE, sK, sT0, sT1, sT2, sT3 = 64, 65, 66, 67, 55, 95
A0 = 68
NB, P0, P1, P2 = 84, 86, 88, 90
sC, sOFF, sEARLY, sRO = 92, 93, 94, 35
sCUR, sM2, sB3, sM3, sE3 = 44, 45, 46, 47, 48
sU, sOW, sRND, sPM = 49, 50, 51, 33
sPD, sDG, sSZ = 80, 82, 68
RET = 62


def v(a, n=1):
    return f"v{a}" if n == 1 else f"v[{a}:{a+n-1}]"


def s(a, n=1):
    return f"s{a}" if n == 1 else f"s[{a}:{a+n-1}]"


p = Prog()
nstamp = [0]


def stamp(cyc=None):
    if STAMP == 4:
        return
    if not STAMP or (STAMP == 3 and cyc is None):
        return
    p("s_memrealtime s[96:97]")
    p("s_waitcnt lgkmcnt(0)")
    p(f"v_writelane_b32 v254, s96, {nstamp[0]}")
    nstamp[0] += 1
    if cyc is not None:
        p("s_memtime s[96:97]")
        p("s_waitcnt lgkmcnt(0)")
        p(f"v_writelane_b32 v254, s96, {cyc}")


ncyc = [0]


def cst(name):
    if opt.get("probe") == name:
        p("s_memrealtime s[98:99]")
        p("s_waitcnt lgkmcnt(0)")
    if STAMP == 4 and ncyc[0] < 10 and (not opt.get("arr") or name in ("entry", "kernarg") or name.startswith("arr")):
        sys.stderr.write(f"cst{ncyc[0]} = {name}\n")
        p(f"s_memtime {s((38,80,82,96,98,44,46,48,50,16)[ncyc[0]],2)}")
        ncyc[0] += 1


nfl = [0]
njit = [0]


def jit(long=False):
    if not opt.get("jitter"):
        return
    njit[0] += 1
    k = njit[0]
    p(f"s_mul_i32 s3, {s(sW)}, {37 + 2 * k + opt['jitter'] * 16}")
    p(f"s_add_u32 s3, s3, {k * 5}")
    p(f"s_lshr_b32 s3, s3, 2")
    p(f"s_and_b32 s3, s3, {7 if long else 3}")
    p("s_cmp_lg_u32 s3, 0")
    p(f"s_cbranch_scc1 L_jit{k}")
    for _ in range(10 if long else 1):
        p(f"s_sleep {127 if long else 30}")
    p(f"L_jit{k}:")


def srd(dst, ptr, nrec, stride=0):
    p(f"s_mov_b32 {s(dst)}, {s(ptr)}")
    p(f"s_and_b32 {s(dst+1)}, {s(ptr+1)}, 0xffff")
    if stride:
        p(f"s_or_b32 {s(dst+1)}, {s(dst+1)}, {stride << 16:#x}")
    p(f"s_mov_b32 {s(dst+2)}, {nrec}")
    p(f"s_mov_b32 {s(dst+3)}, 0x20000")


def m0_half(slot, j):
    return f"s_add_u32 m0, {s(sLB)}, {slot*SLOT+j*1056}"


def dma_half(j):
    if opt["m1"] and j:
        return f"buffer_load_dwordx4 {v(VB,2)}, {s(SH2,4)}, {s(sRO)} idxen offen offset:1056 {NT} lds"
    return f"buffer_load_dwordx4 {v((VA, VB)[j],2)}, {s(SH,4)}, {s(sRO)} idxen offen {NT} lds"


def adv_hist():
    p(f"s_add_u32 {s(sRO)}, {s(sRO)}, {s(sDL)}")
    p(f"s_min_u32 {s(sRO)}, {s(sRO)}, {16383*25600}")
    p(f"s_xor_b32 {s(sDL)}, {s(sDL)}, {DLT0 ^ DLT1:#x}")


R, CV, HI = ZA, ZA + 9, ZA + 13
AP, AT, QV, QH, NBA = W + 16, W + 22, W + 26, W + 30, W + 31
QR, QT, QE = (ZA, ZA + 8, BIAS), (BIAS + 8, BIAS + 12, XB), (XB + 4, XB + 5, XB + 6)
NT0, NT1 = ZB + 12, ZB + 13
CNT = 0xBFE0BFE0


def fbit(reg, k):
    p(f"s_lshr_b32 {s(sT3)}, {s(reg)}, 4")
    if 13 * (k + 1) + 1 < 64:
        p(f"s_bitset1_b64 {s(F,2)}, {s(sT3)}")
    else:
        p(f"s_lshl_b64 {s(P0,2)}, 1, {s(sT3)}")
        p(f"s_bitcmp1_b32 {s(reg)}, 10")
        p(f"s_cselect_b64 {s(P1,2)}, 0, {s(P0,2)}")
        p(f"s_cselect_b64 {s(P2,2)}, {s(P0,2)}, 0")
        p(f"s_or_b64 {s(F,2)}, {s(F,2)}, {s(P1,2)}")
        p(f"s_or_b64 {s(F+2,2)}, {s(F+2,2)}, {s(P2,2)}")


def compact_body(j):
    m = [MSK + 4 * j + x for x in range(4)]
    p(f"s_mov_b64 exec, {s(EX50,2)}")
    for e in range(8):
        p(f"v_cmp_neq_f16_sdwa {s(A0+2*e,2)}, {v(m[e>>1])}, 0 src0_sel:WORD_{e&1} src1_sel:WORD_0")
    p("s_mov_b64 exec, -1")
    p(f"v_mov_b32 {v(R)}, {s(sBASE)}")
    for e in range(8):
        p(f"v_mbcnt_lo_u32_b32 {v(R)}, {s(A0+2*e)}, {v(R)}")
        p(f"v_mbcnt_hi_u32_b32 {v(R)}, {s(A0+2*e+1)}, {v(R)}")
    p(f"s_add_u32 {s(sT2)}, {s(sBASE)}, 16")
    p(f"v_readlane_b32 {s(sT0)}, {v(R)}, 25")
    p(f"v_readlane_b32 {s(sT1)}, {v(R)}, 63")
    p(f"s_add_u32 {s(sBASE)}, {s(sT0)}, 15")
    p(f"s_and_b32 {s(sBASE)}, {s(sBASE)}, -16")
    p(f"s_max_u32 {s(sBASE)}, {s(sBASE)}, {s(sT2)}")
    p(f"s_sub_u32 {s(sT0)}, {s(sBASE)}, {s(sT0)}")
    p(f"v_mad_u32_u24 {v(R)}, {v(HI)}, {s(sT0)}, {v(R)}")
    p(f"s_mov_b32 {s(sT2)}, {s(sBASE)}")
    for e in range(7):
        p(f"v_addc_co_u32 {v(R+e+1)}, vcc, 0, {v(R+e)}, {s(A0+2*e,2)}")
    p(f"s_add_u32 {s(sT1)}, {s(sT1)}, {s(sT0)}")
    p(f"s_add_u32 {s(sT1)}, {s(sT1)}, 15")
    p(f"s_and_b32 {s(sT1)}, {s(sT1)}, -16")
    p(f"s_add_u32 {s(sBASE)}, {s(sBASE)}, 16")
    p(f"s_max_u32 {s(sBASE)}, {s(sBASE)}, {s(sT1)}")
    for e in range(8):
        p(f"s_mov_b64 exec, {s(A0+2*e,2)}")
        p(f"ds_write_b8{'_d16_hi' if e&1 else ''} {v(R+e)}, {v(CV+(e>>1))}")
    p("s_mov_b64 exec, -1")
    pair_bits(j, sT2)


def q_total(i, j):
    p(f"v_mfma_i32_16x16x64_i8 {v(QT[i],4)}, {v(AT,4)}, {v(MSK+4*j,4)}, 0")


def q_test(j):
    out = []
    if opt.get("xt"):
        return out
    for x in range(4):
        t = (NT0, NT1)[x & 1]
        out += [f"v_and_b32 {v(t)}, 0x800080, {v(MSK+4*j+x)}", f"v_mul_u32_u24 {v(t)}, 0x7f, {v(t)}",
                f"v_bitop3_b32 {v(NBA)}, {v(MSK+4*j+x)}, {v(t)}, {v(NBA)} bitop3:0xbe"]
    return out


def q_scan(i, step):
    dpp = "row_mask:0xf bank_mask:0xf bound_ctrl:0"
    if step == 0:
        return f"v_mov_b32_dpp {v(QE[i])}, {v(QT[i])} row_shr:1 {dpp}"
    return f"v_add_u32_dpp {v(QE[i])}, {v(QE[i])}, {v(QE[i])} row_shr:{1 << (step-1)} {dpp}"


def q_lanes(i):
    p(f"v_readlane_b32 {s(A0+4*i)}, {v(QE[i])}, 6")
    p(f"v_readlane_b32 {s(A0+4*i+1)}, {v(QT[i]+1)}, 6")
    p(f"v_readlane_b32 {s(A0+4*i+2)}, {v(QE[i])}, 15")


def q_ranks(i, j):
    a = A0 + 4 * i
    p(f"s_add_u32 {s(sT0)}, {s(a)}, {s(a+1)}")
    p(f"s_add_u32 {s(sT0)}, {s(sT0)}, {s(sBASE)}")
    p(f"s_add_u32 {s(sT1)}, {s(sT0)}, 15")
    p(f"s_and_b32 {s(sT1)}, {s(sT1)}, -16")
    p(f"s_add_u32 {s(sT2)}, {s(sBASE)}, 16")
    p(f"s_max_u32 {s(sT1)}, {s(sT1)}, {s(sT2)}")
    p(f"s_sub_u32 {s(sT0)}, {s(sT1)}, {s(sT0)}")
    p(f"v_mad_u32_u24 {v(QE[i])}, {v(QH)}, {s(sT0)}, {v(QE[i])}")
    p(f"s_sub_u32 {s(sT2)}, {s(sBASE)}, 2048")
    for r in range(4):
        p(f"v_add_u32 {v(QT[i]+r)}, {s(sT2)}, {v(QE[i])}")
    p(f"s_add_u32 {s(sBASE)}, {s(sBASE)}, {s(a+2)}")
    p(f"s_add_u32 {s(sBASE)}, {s(sBASE)}, {s(sT0)}")
    p(f"v_mfma_i32_16x16x64_i8 {v(QR[i],4)}, {v(AP+2,4)}, {v(MSK+4*j,4)}, {v(QT[i],4)}")
    p(f"v_mfma_i32_16x16x64_i8 {v(QR[i]+4,4)}, {v(AP,4)}, {v(MSK+4*j,4)}, {v(QT[i],4)}")
    p(f"s_add_u32 {s(sBASE)}, {s(sBASE)}, 15")
    p(f"s_and_b32 {s(sBASE)}, {s(sBASE)}, -16")
    p(f"s_add_u32 {s(sT2)}, {s(sT1)}, 16")
    p(f"s_max_u32 {s(sBASE)}, {s(sBASE)}, {s(sT2)}")
    pair_bits(j, sT1)


def pair_bits(j, mid):
    if opt["swap"] and j >= 2:
        p(f"s_mov_b32 {s((sM2, sM3)[j-2])}, {s(mid)}")
        p(f"s_mov_b32 {s((sB3, sE3)[j-2])}, {s(sBASE)}")
        return
    fbit(mid, 2 * j)
    fbit(sBASE, 2 * j + 1)
    if opt["swap"] and j == 1:
        p(f"s_mov_b32 {s(sCUR)}, {s(sBASE)}")


def q_write(i):
    if opt.get("xw"):
        return
    if opt["vx"]:
        p(f"s_mov_b64 exec, {s(EX50,2)}")
    for e in range(8):
        p(f"ds_write_b8{'_d16_hi' if e&1 else ''} {v(QR[i]+e)}, {v(QV+(e>>1))}")
    if opt["vx"]:
        p("s_mov_b64 exec, -1")


W44 = 1
DIAGMM = "v_mfma_f32_4x4x4_16b_bf16" if W44 else "v_mfma_f32_16x16x16_bf16"


def wbuild(first=False):
    for x in range(4):
        p(f"v_mul_u32_u24 {v(DG+2*x)}, {v(TR+x)}, {v(SEL0)}")
        p(f"v_mul_u32_u24 {v(DG+2*x+1)}, {v(TR+x)}, {v(SEL1)}")
    T = [ZA + 8, TX]
    pairs = [(hb, ks) for hb in range(4) for ks in range(2)]

    def mm(j, u):
        hb, ks = pairs[j]
        blk = (hb * 2 + ks) * 2 + u
        p(f"{DIAGMM} {v(T[j%2]+4*u,4)}, {v(DG+2*(2*ks+u),2)}, {v(CD+2*blk,2)}, {v(CA+4*blk,4)}")

    def cv(j, r):
        hb, ks = pairs[j]
        p(f"v_cvt_pk_bf16_f32 {v(W+(hb*2+ks)*4+r)}, {v(T[j%2]+2*r)}, {v(T[j%2]+2*r+1)}")
    mm(0, 0)
    p(f"v_add_u32 {v(TADR)}, 128, {v(TADR)}")
    for hb in range(2):
        p(f"ds_read_b128 {v(BIAS+4*hb,4)}, {v(BADR)} offset:{64*hb}")
    mm(0, 1)
    for hb in range(2, 4):
        p(f"ds_read_b128 {v(BIAS+4*hb,4)}, {v(BADR)} offset:{64*hb}")
    t_reads()
    for j in range(8):
        if j < 7:
            mm(j + 1, 0)
        cv(j, 0); cv(j, 1)
        if j < 7:
            mm(j + 1, 1)
        else:
            p(f"v_add_u32 {v(BADR)}, {BSTR}, {v(BADR)}")
        if first and j:
            if j == 1:
                p("s_waitcnt lgkmcnt(4)")
            p(g1(j - 1))
        cv(j, 2); cv(j, 3)
    p("s_waitcnt lgkmcnt(0)")
    if first:
        p(g1(7))


def t_reads():
    for x in range(4):
        p(f"ds_read_u16 {v(TR+x)}, {v(TADR)} offset:{(x>>1)*64+(x&1)*8}")


def g1(j):
    hb, ks = j >> 1, j & 1
    c = v(BIAS + 4 * hb, 4) if ks == 0 else v(ZB + 4 * hb, 4)
    return f"v_mfma_f32_16x16x32_bf16 {v(ZB+4*hb,4)}, {v(W+(hb*2+ks)*4,4)}, {v(XB+4*ks,4)}, {c}"


def read_xb(slot, ks):
    p(f"ds_read_b128 {v(XB+4*ks,4)}, {v((RDB0, RDB1)[ks])} offset:{slot*SLOT}")


SCHED = {
    "e": "ia ib k1 ent EV mid P0 e0 e1 e2 e3 e4 e5 A0 s0 s1 L2 G0 e6 q0 t0 e7 G2 e8 q1 t1 A1 r0 q2 t2 e9 G1 r1 q3 t3 e10 G3 "
         "r2 e11 r3 c0 A2 e12 G4 r4 c1 E2 e13 r5 e14 r6 c2 e15 G6 L0 m0 r7 da A3 G5 m1 r8 db G7 P1 r9 c3 vm y0 y1 r10 c4 k0 r11 B r12 c5 "
         "r13 r14 r15 c6 c7",
    "f": "ia ib k1 ent EV mid P0 e0 e1 e2 e3 e4 e5 A0 s0 s1 L2 G0 e6 q0 t0 e7 G2 e8 q1 t1 A1 r0 q2 t2 e9 G1 r1 q3 t3 e10 G3 "
         "r2 e11 r3 c0 A2 e12 G4 r4 c1 E2 m0 L0 da e13 r5 e14 r6 c2 e15 G6 P1 r7 A3 G5 m1 r8 G7 r9 c3 db vm y0 y1 r10 c4 k0 r11 B r12 c5 "
         "r13 r14 r15 c6 c7",
    "g": "ia ib k1 ent EV mid P0 e0 e1 e2 e3 e4 e5 A0 s0 s1 L2 G0 e6 q0 t0 e7 G2 e8 q1 t1 A1 r0 q2 t2 e9 G1 r1 q3 t3 e10 G3 "
         "r2 e11 r3 c0 A2 e12 G4 r4 c1 E2 e13 r5 e14 m0 L0 da r6 c2 e15 G6 P1 r7 A3 G5 m1 r8 G7 r9 c3 db vm y0 y1 r10 c4 k0 r11 B r12 c5 "
         "r13 r14 r15 c6 c7",
    "h": "ia ib k1 ent EV mid P0 e0 e1 e2 e3 e4 e5 A0 s0 s1 L2 G0 e6 q0 t0 e7 G2 e8 q1 t1 A1 r0 q2 t2 e9 G1 r1 q3 t3 e10 G3 "
         "r2 e11 r3 c0 A2 e12 G4 r4 c1 E2 m0 L0 da m1 e13 db r5 e14 r6 c2 e15 G6 P1 r7 A3 G5 r8 G7 r9 c3 vm y0 y1 r10 c4 k0 r11 B r12 c5 "
         "r13 r14 r15 c6 c7",
    "l": "ia ib k1 ent EV mid P0 e0 e1 e2 e3 e4 e5 A0 s0 s1 L2 G0 e6 q0 t0 e7 e8 q1 t1 G2 A1 q2 t2 r0 e9 q3 t3 G1 r1 e10 G3 "
         "r2 e11 m0 L0 da m1 r3 db c0 A2 e12 G4 r4 c1 E2 e13 r5 e14 r6 c2 e15 G6 P1 r7 A3 G5 r8 G7 r9 c3 r10 c4 k0 r11 B r12 c5 "
         "r13 r14 r15 vm y0 y1 c6 c7",
    "m": "ia ib k1 ent EV mid P0 e0 e1 e2 e3 e4 e5 A0 s0 s1 e6 e7 q0 t0 e8 A1 q1 t1 e9 e10 q2 t2 e11 r0 q3 t3 vm x0 x1 A2 e12 r1 e13 r2 "
         "e14 r3 c0 e15 E2 m0 L2 da m1 c1 db A3 L0 G0 r4 G2 r5 P1 G1 r6 c2 G3 r7 r8 G4 c3 r9 G6 r10 c4 G5 r11 k0 r12 G7 c5 B r13 r14 r15 c6 c7",
    "n": "ia ib k1 ent EV mid P0 e0 e1 e2 e3 e4 e5 A0 s0 s1 vm x0 x1 e6 e7 q0 t0 e8 A1 q1 t1 e9 e10 q2 t2 e11 r0 q3 t3 A2 L4 G0 e12 r1 G2 e13 r2 "
         "e14 G1 r3 c0 e15 E2 m0 L0 da m1 c1 db A3 G3 r4 r5 P1 G4 r6 c2 r7 G6 r8 c3 r9 G5 r10 c4 r11 k0 r12 G7 c5 B r13 r14 r15 c6 c7",
    "r": "ent EV k1 mid e0 e1 e2 e3 e4 e5 A0 e6 e7 s0 s1 e8 e9 q0 A1 e10 q1 e11 e12 q2 e13 A2 q3 P0 ia ib t0 t1 t2 t3 vm x0 x1 m0 e14 e15 "
         "r0 r1 A3 r2 E2 c0 L2 da m1 db L0 G0 r3 G2 r4 c1 G1 r5 P1 G3 r6 c2 G4 r7 G6 r8 c3 G5 r9 G7 r10 c4 k0 r11 r12 c5 B r13 r14 r15 c6 c7",
    "t": "ent EV k1 mid e0 e1 e2 e3 e4 e5 A0 e6 e7 s0 s1 e8 e9 q0 A1 e10 q1 e11 e12 q2 e13 A2 q3 P0 ia ib t0 t1 t2 t3 vm x0 x1 m0 e14 e15 "
         "r0 r1 A3 r2 E2 c0 L0 G0 r3 G2 r4 c1 G1 r5 P1 G3 r6 c2 G4 r7 G6 r8 c3 G5 r9 G7 r10 c4 k0 r11 r12 c5 B r13 r14 r15 c6 c7 da m1 db",
    "u": "ent EV k1 mid ia ib m0 e0 e1 e2 e3 e4 e5 A0 e6 e7 s0 s1 L0 da m1 db e8 e9 q0 A1 e10 q1 e11 e12 q2 e13 A2 q3 P0 t0 t1 t2 t3 vm x0 x1 e14 e15 "
         "r0 r1 A3 r2 E2 c0 L0 G0 r3 G2 r4 c1 G1 r5 P1 G3 r6 c2 G4 r7 G6 r8 c3 G5 r9 G7 r10 c4 k0 r11 r12 c5 B r13 r14 r15 c6 c7",
    "v": "ent EV k1 mid ia ib m0 e0 e1 e2 e3 e4 e5 A0 e6 e7 s0 s1 e8 e9 q0 A1 e10 q1 e11 e12 q2 e13 A2 q3 L0 da m1 db P0 t0 t1 t2 t3 vm x0 x1 e14 e15 "
         "r0 r1 A3 r2 E2 c0 L0 G0 r3 G2 r4 c1 G1 r5 P1 G3 r6 c2 G4 r7 G6 r8 c3 G5 r9 G7 r10 c4 k0 r11 r12 c5 B r13 r14 r15 c6 c7",
    "w": "ent EV k1 mid e0 e1 e2 e3 e4 e5 A0 e6 e7 s0 s1 e8 e9 q0 A1 e10 q1 e11 e12 q2 e13 A2 q3 P0 ia ib t0 t1 t2 t3 vm x0 x1 m0 e14 e15 "
         "r0 r1 A3 r2 E2 c0 L6 da m1 db L0 G0 r3 G2 r4 c1 G1 r5 P1 G3 r6 c2 G4 r7 G6 r8 c3 G5 r9 G7 r10 c4 k0 r11 r12 c5 B r13 r14 r15 c6 c7",
    "x": "ent EV k1 mid ia ib m0 e0 e1 e2 e3 e4 e5 A0 e6 e7 s0 s1 e8 e9 q0 A1 e10 L0 da m1 db q1 e11 e12 q2 e13 A2 q3 P0 t0 t1 t2 t3 vm x0 x1 e14 e15 "
         "r0 r1 A3 r2 E2 c0 L0 G0 r3 G2 r4 c1 G1 r5 P1 G3 r6 c2 G4 r7 G6 r8 c3 G5 r9 G7 r10 c4 k0 r11 r12 c5 B r13 r14 r15 c6 c7",
    "w2": "ent EV k1 mid e0 e1 e2 e3 e4 e5 A0 e6 e7 s0 s1 e8 e9 q0 A1 e10 q1 e11 e12 q2 e13 A2 q3 P0 ia ib t0 t1 t2 t3 vm x0 x1 m0 e14 e15 r0 r1 A3 r2 E2 c0 L0 G0 r3 G2 r4 c1 G1 r5 P1 G3 r6 c2 G4 r7 G6 r8 c3 G5 r9 G7 da m1 db r10 c4 k0 r11 r12 c5 B r13 r14 r15 c6 c7",
    "w0": "ent EV k1 mid ia ib m0 e0 e1 e2 e3 e4 e5 A0 e6 e7 s0 s1 e8 e9 q0 A1 e10 q1 e11 e12 q2 e13 A2 q3 P0 t0 t1 t2 t3 vm x0 x1 L6 da m1 db e14 e15 "
          "r0 r1 A3 r2 E2 c0 L0 G0 r3 G2 r4 c1 G1 r5 P1 G3 r6 c2 G4 r7 G6 r8 c3 G5 r9 G7 r10 c4 k0 r11 r12 c5 B r13 r14 r15 c6 c7",
    "z": "ent EV k1 mid P0 ia ib e0 e1 e2 e3 e4 e5 A0 s0 s1 e6 e7 q0 e8 e9 q1 A1 e10 q2 e11 e12 q3 t0 t1 t2 t3 m0 e13 A2 e14 e15 L0 da m1 db r0 r1 A3 r2 c0 r3 "
         "vm x0 x1 E2 r4 c1 r5 r6 c2 L0 G0 r7 G2 r8 c3 G1 r9 P1 G3 r10 c4 G4 r11 G6 r12 c5 G5 r13 G7 r14 k0 B r15 c6 c7",
    "aa": "ent EV k1 mid e0 e1 e2 e3 e4 e5 e6 e7 s0 s1 e8 e9 q0 e10 e11 q1 e12 e13 q2 e14 e15 q3 ia AA P0 ib t0 t1 t2 t3 vm x0 x1 m0 E2 L2 da m1 db "
          "r0 r1 r2 c0 L0 G0 r3 G2 r4 c1 G1 r5 P1 G3 r6 c2 G4 r7 G6 r8 c3 G5 r9 G7 r10 c4 k0 r11 r12 c5 B r13 r14 r15 c6 c7",
    "ab": "ent EV k1 mid e0 e1 e2 e3 e4 e5 e6 e7 s0 s1 e8 e9 q0 e10 e11 q1 e12 e13 q2 e14 e15 q3 ia AA P0 ib t0 t1 t2 t3 vm x0 x1 m0 E2 "
          "r0 r1 r2 c0 L2 da m1 db L0 G0 r3 G2 r4 c1 G1 r5 P1 G3 r6 c2 G4 r7 G6 r8 c3 G5 r9 G7 r10 c4 k0 r11 r12 c5 B r13 r14 r15 c6 c7",
    "ac": "ent EV k1 mid e0 e1 e2 e3 e4 e5 e6 e7 e8 e9 e10 e11 e12 e13 e14 e15 vm x0 AA x1 s0 s1 m0 P0 q0 t0 ia q1 t1 ib q2 t2 r0 q3 t3 r1 L6 G0 r2 c0 G2 r3 E2 G1 r4 c1 L0 da m1 db G3 r5 P1 G4 r6 c2 G6 r7 "
          "G5 r8 c3 G7 r9 r10 c4 k0 r11 r12 c5 B r13 r14 r15 c6 c7",
    "ad": "ent EV k1 mid e0 e1 e2 e3 e4 e5 e6 e7 e8 e9 e10 e11 e12 e13 e14 e15 vm x0 AA x1 s0 s1 m0 P0 q0 t0 ia q1 t1 ib q2 t2 r0 q3 t3 r1 r2 c0 r3 E2 r4 c1 L0 da m1 db G0 r5 G2 r6 c2 G1 r7 P1 G3 r8 c3 G4 r9 G6 r10 c4 "
          "G5 r11 G7 r12 k0 c5 B r13 r14 r15 c6 c7",
    "s": "ia ib k1 ent EV mid P0 e0 e1 e2 e3 e4 e5 A0 s0 s1 L2 G0 e6 q0 t0 e7 G2 e8 q1 t1 A1 r0 q2 t2 e9 G1 r1 q3 t3 e10 G3 "
         "r2 e11 r3 c0 A2 e12 G4 r4 c1 E2 e13 r5 e14 r6 c2 e15 G6 r7 A3 G5 r8 G7 m0 L0 da P1 m1 r9 db c3 vm y0 y1 r10 c4 k0 r11 B r12 c5 "
         "r13 r14 r15 c6 c7",
}


if opt.get("toks"):
    SCHED["cli"] = opt["toks"].replace(".", " ")
    opt["sched"] = "cli"


def event_mask():
    p(f"s_lshr_b64 {s(P0,2)}, {s(F,2)}, 2")
    p(f"s_lshr_b64 {s(H,2)}, {s(F,2)}, {LA+1}")
    p(f"s_or_b32 {s(H+1)}, {s(H)}, {s(P0)}")
    p(f"s_or_b32 {s(H)}, {s(H+1)}, {s(F)}")


PSTEP = {0: 1, 1: 4, 2: 2, 3: 8}[opt["prio"]]
assert U % PSTEP == 0


def mainloop(tag, slow, sched=None):
    toks = allt = SCHED[sched or opt["sched"]].split()

    def scale(off):
        p(f"ds_read_b32 {v(TX)}, {v(RDM)} offset:{off}")
        p("s_waitcnt lgkmcnt(0)")
        for r in range(4):
            p(f"v_bfe_u32 {v(TX+1+r)}, {v(TX)}, {8*r}, 8")
            p(f"v_lshlrev_b32 {v(TX+1+r)}, 1, {v(TX+1+r)}")
        for r in range(4):
            p(f"buffer_load_ushort {v(TX+1+r)}, {v(TX+1+r)}, {s(SM,4)}, 0 offen")
        p("s_waitcnt vmcnt(0)")
        for r in range(4):
            p(f"v_lshlrev_b32 {v(TX+1+r)}, 16, {v(TX+1+r)}")
            p(f"v_mul_f32 {v(S+r)}, {v(S+r)}, {v(TX+1+r)}")

    def flush(last=False):
        p(f"v_cvt_pk_bf16_f32 {v(TX)}, {v(ACC)}, {v(ACC)}")
        if not last:
            p(f"v_mov_b32 {v(ACC)}, 0")
        if STAMP == 1:
            p("s_memrealtime s[96:97]")
            p("s_memtime s[98:99]")
            p(f"s_lshl_b32 {s(sT0)}, {s(sK)}, 1")
            p(f"s_sub_u32 {s(sT0)}, {16+2*(KB-1)}, {s(sT0)}")
            p("s_waitcnt lgkmcnt(0)")
            p(f"s_mov_b32 m0, {s(sT0)}")
            p("v_writelane_b32 v254, s96, m0")
            p(f"s_add_u32 m0, m0, 1")
            p("v_writelane_b32 v254, s98, m0")
            p(f"s_sub_u32 {s(sK)}, {s(sK)}, 1")
        if str(opt.get("probe", "")).startswith("fl"):
            nfl[0] += 1
            p("s_add_u32 s3, s3, 1")
            p(f"s_cmp_lg_u32 s3, {int(opt['probe'][2:])}")
            p(f"s_cbranch_scc1 L_nfl{nfl[0]}")
            p("s_memrealtime s[98:99]")
            p("s_waitcnt lgkmcnt(0)")
            p(f"L_nfl{nfl[0]}:")
        p(f"ds_write_b16 {v(OADR)}, {v(TX)}")
        if last:
            return
        p(f"v_add_u32 {v(OADR)}, 128, {v(OADR)}")
        if slow:
            p(f"s_add_u32 {s(SM)}, {s(SM)}, {s(sMDL)}")
            p(f"s_addc_u32 {s(SM+1)}, {s(SM+1)}, 0")
            p(f"s_xor_b32 {s(sMDL)}, {s(sMDL)}, {MDL0 ^ MDL1:#x}")

    def emit(u, toks, tail):
        ev = opt["prio"] and u % PSTEP == 0
        for t in toks:
            k, n = t[0], (int(t[1:]) if t[1:].isdigit() else None)
            if opt.get("nodma") and t in ("da", "db"):
                continue
            if opt.get("lite") and k == "r" and n >= 16 - opt["lite"]:
                continue
            if opt.get("nocomp") and k in "ercsAGqk" and n is not None:
                continue
            if t == "vm":
                ahead = 2 if "y0" in allt else 1
                p(f"s_waitcnt vmcnt({2*(LA-ahead-(allt.index('vm') < allt.index('da')))})")
            elif k == "y":
                read_xb((u + 2) % D, n)
            elif k == "x":
                read_xb((u + 1) % D, n)
            elif t == "ent":
                if u == 0:
                    p(f"L{tag}_mid:")
            elif t in ("mid", "mi2"):
                if slow:
                    scale(u * 16 + (16 if t == "mi2" else 0))
            elif t == "ia" and opt.get("xv") and not tail:
                for j in range(opt["xv"]):
                    p(f"v_exp_f32 v255, {v(ZB+j)}")
                p(f"ds_read_u8 {v(VA)}, {v(RDL)} offset:{(u+LA)*16}")
            elif t == "ia":
                p(f"ds_read_u8 {v(VA)}, {v(RDL)} offset:{(u+LA)*16}")
            elif t == "ib":
                p(f"ds_read_u8 {v(VB)}, {v(RDL)} offset:{(u+LA)*16+8}")
            elif t == "EV":
                p(f"s_bitcmp1_b32 {s(H)}, {u}")
                p(f"s_cbranch_scc1 L{tag}_ev{u}")
                p(f"L{tag}_evd{u}:")
            elif t == "E2":
                if tail:
                    p(f"s_bitcmp0_b64 {s(F,2)}, 1")
                    p(f"s_cbranch_scc1 L{tag}_tnf")
                    flush()
                    p(f"L{tag}_tnf:")
            elif t == "P0":
                if ev:
                    p(f"ds_add_rtn_u32 {v(PRV)}, {v(PADR)}, {v(PINC)}")
            elif t == "P1":
                if ev:
                    if opt["pv"]:
                        p(f"v_cmp_gt_i32 vcc, {v(PRV)}, {v(PTH)}")
                        p("s_setprio 0")
                        p(f"s_cbranch_vccz L{tag}_lo{u}")
                    else:
                        p(f"v_readfirstlane_b32 {s(sT0)}, {v(PRV)}")
                        p("s_setprio 0")
                        p(f"s_cmp_gt_i32 {s(sT0)}, 0")
                        p(f"s_cbranch_scc0 L{tag}_lo{u}")
                    p("s_setprio 1")
                    p(f"L{tag}_lo{u}:")
            elif t == "AA":
                p(f"v_mfma_f32_32x32x8_bf16 {v(ZA,16)}, {v(ONE,2)}, {v(ONE,2)}, {v(ZA,16)}")
            elif t == "da":
                p(dma_half(0))
            elif t == "db":
                p(dma_half(1))
            elif t == "B":
                if u == U - 1:
                    p(f"s_lshr_b64 {s(F,2)}, {s(F,2)}, {U}")
                    if not opt["swap"]:
                        p(f"s_lshl_b64 {s(P0,2)}, {s(F+2,2)}, {64-U}")
                        p(f"s_or_b64 {s(F,2)}, {s(F,2)}, {s(P0,2)}")
                        p(f"s_lshr_b64 {s(F+2,2)}, {s(F+2,2)}, {U}")
                    event_mask()
                    p(f"v_add_u32 {v(RDL)}, {16*U}, {v(RDL)}")
                    if slow:
                        p(f"v_add_u32 {v(RDM)}, {16*U}, {v(RDM)}")
            elif k == "m":
                if not (opt["m1"] and n):
                    p(m0_half((u + LA) % D, n))
            elif k == "e":
                p(f"v_exp_f32 {v(ZA+n)}, {v(ZB+n)}")
            elif k == "r":
                p(f"v_rcp_f32 {v(ZA+n)}, {v(ZA+n)}")
            elif k == "c":
                p(f"v_cvt_pk_bf16_f32 {v(ZA+n)}, {v(ZA+2*n)}, {v(ZA+2*n+1)}")
            elif k == "s":
                p(f"v_cvt_pk_bf16_f32 {v(S+n)}, {v(S+2*n)}, {v(S+2*n+1)}")
            elif k == "A":
                p(f"v_mfma_f32_4x4x4_16b_bf16 {v(ZA+4*n,4)}, {v(ONE,2)}, {v(ONE,2)}, {v(ZA+4*n,4)}")
            elif k == "G":
                p(g1(n))
            elif k == "q":
                p(f"v_mfma_f32_4x4x4_16b_bf16 {v(ACC,4)}, {v(S,2)}, {v(XT+2*n,2)}, {v(ACC,4)} cbsz:4 abid:{4*n}")
            elif k == "t":
                p(f"ds_read_b64_tr_b16 {v(XT+2*n,2)}, {v(RDT)} offset:{u%D*SLOT+n*512+(n>>1)*32}")
            elif k == "k":
                p(f"v_mfma_f32_16x16x32_bf16 {v(S,4)}, {v(ZA+4*n,4)}, {v(W2+4*n,4)}, {v(B2,4) if n == 0 else v(S,4)}")
            elif k == "L":
                p(f"s_waitcnt lgkmcnt({n})")
            else:
                raise ValueError(t)

    if tag == "f" and opt.get("al") is not None:
        p(".p2align 6")
        for _ in range(opt["al"]):
            p("s_nop 0")
    p(f"L{tag}_loop:")
    for u in range(U):
        emit(u, toks, False)
    p(f"s_branch L{tag}_loop")
    for u in range(U):
        def gather_row(lab, then_w):
            if opt["swap"]:
                p(f"s_sub_u32 {s(sKA)}, {s(sKA)}, 1")
                p(f"s_cbranch_scc0 L{tag}_ns{lab}{u}")
                p(f"s_mov_b32 {s(sU)}, {u+LA+1}")
                p(f"s_call_b64 {s(RET,2)}, L_swap")
                if toks.index("ia") < toks.index("EV"):
                    p(f"ds_read_u8 {v(VA)}, {v(RDL)} offset:{(u+LA)*16}")
                    p(f"ds_read_u8 {v(VB)}, {v(RDL)} offset:{(u+LA)*16+8}")
                if then_w:
                    p("s_waitcnt lgkmcnt(0)")
                p(f"L{tag}_ns{lab}{u}:")
            adv_hist()
        p(f"L{tag}_fl{u}:")
        flush()
        p(f"s_bitcmp0_b32 {s(H+1)}, {u}")
        p(f"s_cbranch_scc1 L{tag}_evd{u}")
        p(f"s_branch L{tag}_ev2{u}")
        p(f"L{tag}_ev{u}:")
        jit()
        p(f"s_bitcmp1_b64 {s(F,2)}, {u}")
        p(f"s_cbranch_scc1 L{tag}_fl{u}")
        p(f"L{tag}_ev2{u}:")
        p(f"s_bitcmp1_b64 {s(F,2)}, {u+2}")
        p(f"s_cbranch_scc1 L{tag}_w{u}")
        gather_row("a", False)
        p(f"s_branch L{tag}_evd{u}")
        p(f"L{tag}_w{u}:")
        p(f"s_bitcmp0_b64 {s(F,2)}, {u+LA+1}")
        p(f"s_cbranch_scc1 L{tag}_e1{u}")
        gather_row("b", True)
        p(f"L{tag}_e1{u}:")
        p(f"s_sub_u32 {s(sKW)}, {s(sKW)}, 1")
        p(f"s_cbranch_scc1 L{tag}_last{u}")
        if opt["swap"]:
            p(f"s_bitcmp0_b32 {s(sPM)}, {s(sKW)}")
            p(f"s_cbranch_scc1 L{tag}_nw{u}")
            p(f"s_cmp_eq_u32 {s(sKW)}, 3")
            p(f"s_cselect_b32 {s(sT0)}, {s(sPD)}, {s(sPD+1)}")
            p(f"v_add_u32 {v(TADR)}, {s(sT0)}, {v(TADR)}")
            p(f"v_add_u32 {v(BADR)}, {s(sT0)}, {v(BADR)}")
            t_reads()
            p("s_waitcnt lgkmcnt(0)")
            p(f"L{tag}_nw{u}:")
        wbuild()
        p(f"s_branch L{tag}_evd{u}")
    for u in range(U):
        p(f"L{tag}_last{u}:")
        if u:
            if u % D:
                p(f"v_add_u32 {v(RDT)}, {u%D*SLOT}, {v(RDT)}")
            p(f"s_lshr_b64 {s(F,2)}, {s(F,2)}, {u}")
            if slow:
                p(f"v_add_u32 {v(RDM)}, {16*u}, {v(RDM)}")
        if u < U - 1:
            p(f"s_branch L{tag}_tail")
    p(f"L{tag}_tail:")
    i1 = toks.index("EV")
    drop = lambda t: t in ("vm", "ia", "ib", "EV", "ent", "P0", "P1", "da", "db", "B", "L2", "L4", "L6", "L7") or (t[0] in "Gxym" and t[1:].isdigit())
    last = ["k1"] if toks.index("k1") > i1 else []
    emit(0, [t for t in toks[i1:] + toks[:i1] if not drop(t)] + last + ["mi2", "s0", "s1", "q0", "q1", "q2", "q3"], True)
    flush(last=True)
    if tag != "f":
        p("s_branch L_store")


p(f"{NAME}:")
if opt.get("twice"):
    p("s_mov_b32 s3, 0")
    p("L_again:")
if opt.get("spin") or opt.get("endp"):
    p("s_memrealtime s[100:101]")
    p("s_mov_b32 s3, 0")
cst("entry")
if STAMP:
    if STAMP != 4:
        p("s_memrealtime s[98:99]")
        p("s_memtime s[96:97]")
    p("s_load_dwordx2 s[100:101], s[0:1], 72")
p("s_load_dwordx16 s[4:19], s[0:1], 0")
p(f"s_cmp_ge_u32 s2, {NWG}")
p("s_cbranch_scc1 L_end")
p("v_lshrrev_b32 v1, 6, v0")
p("v_and_b32 v0, 63, v0")
p(f"v_readfirstlane_b32 {s(sw)}, v1")
if opt["map"] & 2:
    p("s_and_b32 s3, s2, 7")
    p("s_lshl_b32 s3, s3, 5")
    p(f"s_lshr_b32 {s(sW)}, s2, 3")
    p(f"s_add_u32 {s(sW)}, {s(sW)}, s3")
    p(f"s_lshl_b32 {s(sW)}, {s(sW)}, {(WGSTR//2).bit_length()-1}")
elif opt["map"] & 4:
    p(f"s_mul_i32 {s(sW)}, {s(sw)}, 255")
    p(f"s_add_u32 {s(sW)}, {s(sW)}, s2")
else:
    p(f"s_lshl_b32 {s(sW)}, s2, {(WGSTR//2).bit_length()-1}")
p("v_lshlrev_b32 v2, 4, v0")
p("v_lshrrev_b32 v1, 4, v0")
p("v_and_b32 v3, 0xf0, v2")
p("v_lshlrev_b32 v3, 2, v3")
p(f"v_lshl_add_u32 {v(QH)}, v1, 4, v3")
p("v_bfrev_b32 v3, 1")
p(f"s_add_u32 {s(sW)}, {s(sW)}, {s(sw)}")
p(f"s_movk_i32 {s(sT0)}, 800")
p(f"v_cmp_gt_u32 vcc, {s(sT0)}, {v(QH)}")
p(f"s_mul_i32 {s(sOFF)}, {s(sW)}, 800")
p(f"s_mul_i32 {s(sLB)}, {s(sw)}, {REG}")
p(f"s_mov_b64 {s(EX50,2)}, vcc")
p(f"v_cndmask_b32 v3, v3, {v(QH)}, vcc")
p(f"v_and_b32 {v(TX+2)}, 16, v0")
p(f"v_lshlrev_b32 {v(TX)}, 1, {v(TX+2)}")
p(f"v_xor_b32 {v(TX)}, {v(TX)}, v2")
p(f"v_and_b32 {v(VOUT)}, 0xf0, v2")
p(f"v_lshl_add_u32 {v(VOUT)}, v1, {LGP+7}, {v(VOUT)}")
p(f"s_lshl_b32 {s(sT0)}, {s(sW)}, 8")
p(f"v_add_u32 {v(VOUT)}, {s(sT0)}, {v(VOUT)}")
p(f"s_lshl_b32 {s(sT1)}, {s(sw)}, 12")
p(f"s_add_u32 m0, {s(sLB)}, {TB}")
p(f"s_mov_b32 {s(SM+2)}, {16384*400}")
p(f"s_mov_b32 {s(SM+3)}, 0x20000")
p("s_waitcnt lgkmcnt(0)")
cst("kernarg")
if STAMP and STAMP != 4:
    p("v_mov_b32 v254, 0")
    p("v_writelane_b32 v254, s98, 0")
    p("v_writelane_b32 v254, s96, 32")
    nstamp[0] = 1
    stamp()
p(f"s_mov_b32 {s(SM)}, s8")
p(f"s_and_b32 {s(SM+1)}, s9, 0xffff")
if opt["ym"]:
    p(f"s_cmp_ge_u32 {s(sw)}, 4")
    p("s_cbranch_scc1 L_young0")
p(f"buffer_load_dwordx4 {v(MSK,4)}, v3, {s(SM,4)}, {s(sOFF)} offen {NTM}")
p("L_young0:")
if opt.get("xs"):
    for j in range(opt["xs"]):
        p("s_nop 15")
p(f"global_load_lds_dwordx4 {v(VOUT)}, s[4:5] {NTM}")
p(f"s_add_u32 m0, {s(sLB)}, {STG}")
p(f"s_add_u32 s10, s10, {s(sT1)}")
p("s_addc_u32 s11, s11, 0")
p(f"v_xor_b32 {v(TX+1)}, 64, {v(TX)}")
if opt.get("nsw"):
    p(f"v_mov_b32 {v(TX)}, v2")
    p(f"v_mov_b32 {v(TX+1)}, v2")
for j in range(4):
    p(f"global_load_lds_dwordx4 {v(TX+(j&1))}, s[10:11] offset:{j*1024}")
p(f"s_load_dword {s(sB2)}, s[16:17], 0")
p(f"s_and_b32 {s(sT1)}, {s(sw)}, 3")
B1R, W2R = CD + 28, DG


def load_b1():
    p(f"s_and_b32 {s(sT0)}, {s(sw)}, 3")
    p(f"s_lshl_b32 {s(sT0)}, {s(sT0)}, 5")
    p(f"v_lshl_add_u32 {v(TX+3)}, v1, 3, {s(sT0)}")
    p(f"global_load_dwordx2 {v(B1R,2)}, {v(TX+3)}, s[12:13]")


if not opt["ym"]:
    load_b1()
p(f"v_and_b32 {v(TX+4)}, 3, v0")
NVM = 11
if opt.get("arr"):
    cst("arr_issued")
    for n_out in (5, 4, 3, 2, 1, 0):
        p(f"s_waitcnt vmcnt({n_out})")
        cst(f"arr{n_out}")
stamp()
srd(SH, 6, 200, stride=128)
if opt["m1"]:
    p(f"s_sub_u32 {s(SH2)}, {s(SH)}, 1056")
    p(f"s_subb_u32 {s(SH2+1)}, {s(SH+1)}, 0")
    p(f"s_mov_b32 {s(SH2+2)}, 200")
    p(f"s_mov_b32 {s(SH2+3)}, 0x20000")


def list_reset():
    p(f"s_mul_i32 {s(sRO)}, {s(sW)}, 51200")
    p(f"s_movk_i32 {s(sDL)}, {DLT0}")
    if opt["swap"]:
        p(f"s_mov_b32 {s(sKA)}, {KB-5}")
    p(f"s_mov_b64 {s(F,2)}, 0")
    if not opt["swap"]:
        p(f"s_mov_b64 {s(F+2,2)}, 0")
    for j in range(4):
        p(f"v_mov_b32 {v(ZB+j)}, -1")
    p(f"s_add_u32 {s(sT0)}, {s(sLB)}, {LI}")
    p(f"v_add_u32 {v(ZB+4)}, {s(sT0)}, v2")
    p(f"ds_write_b128 {v(ZB+4)}, {v(ZB,4)}")
    p(f"ds_write_b128 {v(ZB+4)}, {v(ZB,4)} offset:1024")
    p(f"s_add_u32 {s(sBASE)}, {s(sLB)}, {L0}")


list_reset()
for j in range(5, 2 * D):
    p(f"v_mov_b32 {v(ZB+j)}, -1")
p(f"v_lshrrev_b32 {v(RDL)}, 3, v0")
p(f"v_add_u32 {v(RDL)}, {s(sBASE)}, {v(RDL)}")
p(f"v_lshl_add_u32 {v(RDM)}, v1, 2, {s(sT0)}")
p(f"v_and_b32 {v(VA+1)}, 0x70, v2")
p(f"v_lshlrev_b32 {v(TX+2)}, 2, {v(TX+2)}")
p(f"v_xor_b32 {v(VA+1)}, {v(VA+1)}, {v(TX+2)}")
p(f"v_mov_b32 {v(VB+1)}, {v(VA+1)}")
lane_mask = lambda f: sum(1 << i for i in range(64) if f(i & 15, i >> 4))


def smask(dst, m):
    p(f"s_mov_b32 {s(dst)}, {m & 0xffffffff:#x}")
    p(f"s_mov_b32 {s(dst+1)}, {m >> 32:#x}")


p(f"s_movk_i32 {s(sT0)}, 400")
p(f"v_cmp_le_u32 vcc, {s(sT0)}, {v(QH)}")
p(f"v_lshrrev_b32 {v(QV)}, 1, {v(QH)}")
p(f"s_movk_i32 {s(sT0)}, -200")
p(f"v_cndmask_b32 {v(QH)}, 0, 1, vcc")
p(f"v_mad_i32_i24 {v(QV)}, {v(QH)}, {s(sT0)}, {v(QV)}")
p(f"v_mul_u32_u24 {v(QV+1)}, 0x10001, {v(QV)}")
p(f"v_add_u32 {v(QV)}, 0x10000, {v(QV+1)}")
p(f"v_add_u32 {v(QV+2)}, 0x50004, {v(QV+1)}")
p(f"v_add_u32 {v(QV+3)}, 0x70006, {v(QV+1)}")
p(f"v_add_u32 {v(QV+1)}, 0x30002, {v(QV+1)}")
p(f"v_mov_b32 {v(NBA)}, {CNT:#x}")
smask(P0, lane_mask(lambda m, g: (m >> 2) >= g))
smask(P1, lane_mask(lambda m, g: (m >> 2) > g))
smask(P2, lane_mask(lambda m, g: (m >> 2) == g))
smask(NB, lane_mask(lambda m, g: (m & 3) == 0 or (m, g) == (1, 0)))
for x in range(2):
    p(f"v_cndmask_b32 {v(AP+x)}, 0, {v(NBA)}, {s(P0,2)}")
    p(f"v_cndmask_b32 {v(AP+4+x)}, 0, {v(NBA)}, {s(P1,2)}")
for x in range(4):
    p(f"v_cndmask_b32 {v(AT+x)}, 0, {v(NBA)}, {s(NB,2)}")
p(f"v_lshlrev_b32 {v(TX)}, 4, {v(TX+4)}")
p(f"v_sub_u32 {v(TX)}, 48, {v(TX)}")
smask(P0, 0x00F0BFE0BFE0BFE0)
p(f"v_lshrrev_b64 {v(AP+2,2)}, {v(TX)}, {s(P0,2)}")
p(f"v_mov_b32 {v(NBA)}, 0")
p(f"s_mov_b64 {s(NB,2)}, 0")
for x in range(2):
    p(f"v_cndmask_b32 {v(AP+2+x)}, {v(AP+4+x)}, {v(AP+2+x)}, {s(P2,2)}")
if STAMP:
    p(f"s_mov_b32 {s(sK)}, {KB-1}")
p(f"s_mov_b32 {s(sKW)}, {KB-1}")
p(f"s_mov_b32 {s(sC)}, {CNEG:#x}")
n_, r_, c_ = TX + 5, TX + 6, TX + 4
p(f"v_and_b32 {v(n_)}, 15, v0")
p(f"v_bfe_u32 {v(r_)}, v0, 2, 2")
X0 = TX + 7
SA, SC_, SB_, TBA, BWA = CA + 60, CA + 61, CA + 62, CA + 63, CD + 30
IDN, N0M = DG + 2, DG + 4
p(f"v_lshlrev_b32 {v(X0)}, 3, {v(c_)}")
p(f"v_lshl_add_u32 {v(X0)}, {v(r_)}, 7, {v(X0)}")
p(f"v_and_b32 {v(TX)}, 24, v0")
p(f"v_lshlrev_b32 {v(TX)}, 2, {v(TX)}")
p(f"v_xor_b32 {v(TX)}, {v(X0)}, {v(TX)}")
p(f"v_lshl_add_u32 {v(TX)}, v1, 10, {v(TX)}")
p(f"s_lshl_b32 {s(sT0)}, {s(sT1)}, 5")
p(f"v_xor_b32 {v(SB_)}, {s(sT0)}, {v(TX)}")
p(f"v_add_u32 {v(SB_)}, {STG+2*REG}, {v(SB_)}")
p(f"s_lshr_b32 {s(sT0)}, {s(sw)}, 1")
p(f"s_lshl_b32 {s(sT0)}, {s(sT0)}, 5")
p(f"v_xor_b32 {v(SA)}, {s(sT0)}, {v(TX)}")
p(f"s_and_b32 {s(sT0)}, {s(sw)}, 1")
p(f"s_mul_i32 {s(sT0)}, {s(sT0)}, {REG}")
p(f"s_add_u32 {s(sT0)}, {s(sT0)}, {STG}")
p(f"v_add_u32 {v(SA)}, {s(sT0)}, {v(SA)}")
p(f"v_add_u32 {v(SC_)}, {4*REG}, {v(SA)}")
p(f"s_and_b32 {s(sT0)}, {s(sw)}, 4")
p(f"v_lshrrev_b32 {v(TX)}, 3, {v(n_)}")
p(f"v_add_u32 {v(TX)}, {s(sT0)}, {v(TX)}")
p(f"v_mul_u32_u24 {v(TX)}, {REG}, {v(TX)}")
p(f"v_lshl_add_u32 {v(TX)}, v1, 4, {v(TX)}")
p(f"v_and_b32 {v(TX+1)}, 7, v0")
p(f"v_lshl_add_u32 {v(TBA)}, {v(TX+1)}, 7, {v(TX)}")


def gRDB():
    p(f"v_and_b32 {v(TX+1)}, 8, v0")
    p(f"v_lshlrev_b32 {v(TX+1)}, 2, {v(TX+1)}")
    p(f"v_lshl_add_u32 {v(TX+1)}, {v(n_)}, 7, {v(TX+1)}")
    p(f"v_add_u32 {v(TX+1)}, {s(sLB)}, {v(TX+1)}")
    p(f"v_and_b32 {v(TX+2)}, 2, v0")
    p(f"v_lshlrev_b32 {v(TX+2)}, 1, {v(TX+2)}")
    p(f"v_xor_b32 {v(TX+2)}, {v(TX+2)}, v1")
    p(f"v_lshl_add_u32 {v(RDB0)}, {v(TX+2)}, 4, {v(TX+1)}")
    p(f"v_xor_b32 {v(TX+2)}, 4, {v(TX+2)}")
    p(f"v_lshl_add_u32 {v(RDB1)}, {v(TX+2)}, 4, {v(TX+1)}")


def gRDT():
    p(f"v_and_b32 {v(TX+1)}, 8, v0")
    p(f"v_lshlrev_b32 {v(TX+1)}, 3, {v(TX+1)}")
    p(f"v_lshl_add_u32 {v(TX+2)}, v1, 5, {v(X0)}")
    p(f"v_xor_b32 {v(TX+2)}, {v(TX+2)}, {v(TX+1)}")
    p(f"v_add_u32 {v(RDT)}, {s(sLB)}, {v(TX+2)}")


def gTAD():
    p(f"s_add_u32 {s(sT0)}, {s(sLB)}, {TB}")
    p(f"v_lshl_add_u32 {v(TADR)}, {v(c_)}, 1, {s(sT0)}")
    p(f"v_lshl_add_u32 {v(TADR)}, {'v1' if W44 else v(r_)}, 4, {v(TADR)}")
    p(f"s_add_u32 {s(sT0)}, {s(sLB)}, {OUTS}")
    p(f"v_lshl_add_u32 {v(OADR)}, v0, 1, {s(sT0)}")
    p(f"s_add_u32 {s(sT0)}, {s(sLB)}, {BI}")
    p(f"v_lshl_add_u32 {v(BADR)}, v1, 4, {s(sT0)}")


def gBWA():
    p(f"s_and_b32 {s(sT0)}, {s(sw)}, 3")
    p(f"s_lshl_b32 {s(sT0)}, {s(sT0)}, 6")
    p(f"s_add_u32 {s(sT0)}, {s(sT0)}, {BI}")
    p(f"v_and_b32 {v(TX+1)}, 7, v0")
    p(f"v_mul_u32_u24 {v(TX+1)}, {BSTR-128}, {v(TX+1)}")
    p(f"v_add3_u32 {v(BWA)}, {v(TBA)}, {v(TX+1)}, {s(sT0)}")


def gSEL():
    if not W44:
        p(f"v_cmp_eq_u32 vcc, {v(r_)}, v1")
    p(f"v_and_b32 {v(TX+1)}, 1, v0")
    p(f"v_lshlrev_b32 {v(TX+1)}, 4, {v(TX+1)}")
    p(f"v_lshlrev_b32 {v(TX+1)}, {v(TX+1)}, 1")
    if not W44:
        p(f"v_cndmask_b32 {v(TX+1)}, 0, {v(TX+1)}, vcc")
    p(f"v_cmp_gt_u32 vcc, 2, {v(c_)}")
    p(f"v_mov_b32 {v(ONE+1)}, 0")
    p(f"v_mov_b32 {v(ONE)}, 0x3f80")
    p(f"v_cndmask_b32 {v(SEL0)}, 0, {v(TX+1)}, vcc")
    p(f"v_cmp_eq_u32 vcc, 0, {v(n_)}")
    p(f"v_sub_u32 {v(SEL1)}, {v(TX+1)}, {v(SEL0)}")
    p(f"v_mul_u32_u24 {v(IDN)}, 0x3f80, {v(SEL0)}")
    p(f"v_cndmask_b32 {v(N0M)}, 0, -1, vcc")
    p(f"v_mul_u32_u24 {v(IDN+1)}, 0x3f80, {v(SEL1)}")


def gZER():
    for j in range(8):
        p(f"v_mov_b32 {v(XT+j)}, 0")
    for j in range(4):
        p(f"v_mov_b32 {v(S+j)}, 0")
        p(f"v_mov_b32 {v(ACC+j)}, 0")


def gB2():
    p(f"s_lshl_b32 {s(sB2)}, {s(sB2)}, 16")
    for r in range(4):
        p(f"v_and_b32 {v(B2+r)}, {s(sB2)}, {v(N0M)}")


def gPRI():
    if opt["prio"]:
        p(f"s_add_u32 {s(sT0)}, {s(sLB)}, {PRG}")
        p(f"v_lshl_add_u32 {v(DG+5)}, v0, 2, {s(sT0)}")
        p(f"ds_write_b32 {v(DG+5)}, {v(ONE+1)}")
        p(f"s_xor_b32 {s(sT0)}, {s(sw)}, 4")
        p(f"s_mul_i32 {s(sT0)}, {s(sT0)}, {REG}")
        p(f"s_add_u32 {s(sT0)}, {s(sT0)}, {PRG}")
        p(f"v_writelane_b32 {v(DG+5)}, {s(sT0)}, 1")
    if opt["swap"]:
        p(f"v_add_u32 {v(DG+6)}, {s(sLB)}, v2")
        p("s_mov_b64 exec, 15")
        p(f"ds_write_b32 {v(DG+6)}, {v(ONE+1)} offset:{KEY}")
        p("s_mov_b64 exec, -1")


PLACE = dict(zip((gSEL, gBWA, gPRI, gB2, gRDB, gRDT, gTAD, gZER), (int(x) for x in str(opt["place"])[1:])))


def groups(k):
    for f, w_ in PLACE.items():
        if w_ == k:
            f()


def mask_loads():
    for j in range(1, 4):
        p(f"s_add_u32 {s(sOFF)}, {s(sOFF)}, {PSTR*400}")
        p(f"buffer_load_dwordx4 {v(MSK+4*j,4)}, v3, {s(SM,4)}, {s(sOFF)} offen {NTM}")


OC = opt["oc"]
groups(0)
if opt["ym"]:
    load_b1()
    p(f"s_cmp_ge_u32 {s(sw)}, 4")
    p("s_cbranch_scc0 L_old3z")
    p(f"buffer_load_dwordx4 {v(MSK,4)}, v3, {s(SM,4)}, {s(sOFF)} offen {NTM}")
    if OC:
        p("s_branch L_yng0z")
    p("L_old3z:")
    if OC:
        mask_loads()
        p("L_yng0z:")


def late_loads():
    if opt["tlb"]:
        p(f"s_add_u32 {s(sT0)}, {s(sw)}, 1")
        p(f"s_and_b32 {s(sT0)}, {s(sT0)}, 6")
        p("s_cbranch_scc1 L_notouch")
        p(f"s_mov_b32 {s(sT0)}, {PSTR*25600}")
        p(f"v_mul_lo_u32 v255, v0, {s(sT0)}")
        p(f"s_mul_i32 {s(sT0)}, {s(sW)}, 51200")
        p(f"s_and_b32 {s(sT1)}, {s(sw)}, 1")
        p(f"s_mul_i32 {s(sT1)}, {s(sT1)}, {51200-128}")
        p(f"s_add_u32 {s(sT0)}, {s(sT0)}, {s(sT1)}")
        p(f"v_add_u32 v255, {s(sT0)}, v255")
        p("s_mov_b64 exec, 14")
        p(f"global_load_dword v255, v255, s[6:7] {NT}")
        p("s_mov_b64 exec, -1")
        p("L_notouch:")
    if OC:
        p(f"s_cmp_ge_u32 {s(sw)}, 4")
        p("s_cbranch_scc0 L_old3y")
    mask_loads()
    p("L_old3y:")
    p(f"v_lshlrev_b32 {v(TX+3)}, 3, v1")
    p(f"v_lshl_add_u32 {v(TX+3)}, {v(TX+4)}, 5, {v(TX+3)}")
    p(f"global_load_dwordx2 {v(W2R,2)}, {v(TX+3)}, s[14:15]")


G2 = opt["g2"]
if not G2:
    late_loads()
LL = 0 if G2 else 4
NE = D - 2
IDX = ZB


def idx_reads():
    for t in range(LA):
        p(f"ds_read_u8 {v(IDX+2*t)}, {v(RDL)} offset:{t*16}")
        p(f"ds_read_u8 {v(IDX+2*t+1)}, {v(RDL)} offset:{t*16+8}")


def tiles(t0, t1, bits, tag):
    for t in range(t0, t1):
        if t > 0:
            p(f"s_bitcmp0_b64 {s(bits,2)}, {t+1}")
            p(f"s_cbranch_scc1 L_noadv{tag}{t}")
            adv_hist()
            if opt["swap"]:
                p(f"s_sub_u32 {s(sKA)}, {s(sKA)}, 1")
            p(f"L_noadv{tag}{t}:")
        p(m0_half(t, 0))
        p(f"v_mov_b32 {v(VA)}, {v(IDX+2*t)}")
        p(f"v_mov_b32 {v(VB)}, {v(IDX+2*t+1)}")
        p(dma_half(0))
        if not opt["m1"]:
            p(m0_half(t, 1))
            p("s_nop 0")
        p(dma_half(1))


issued = [0]


def early(n):
    if n == 0:
        return
    t0 = issued[0]
    p(f"s_cmp_eq_u32 {s(sEARLY)}, 0")
    p(f"s_cbranch_scc1 L_skip{t0}")
    tiles(t0, t0 + n, F, "e")
    p(f"L_skip{t0}:")
    issued[0] += n


def x5tile():
    p(f"ds_read_u8 {v(VA)}, {v(RDL)} offset:{D*16}")
    p(f"ds_read_u8 {v(VB)}, {v(RDL)} offset:{D*16+8}")
    p(f"s_add_u32 m0, {s(sLB)}, {LI-2176}")
    p("s_waitcnt lgkmcnt(0)")
    p(dma_half(0))
    p(dma_half(1))


def first_pair():
    q_total(0, 0)
    t = q_test(0)
    for x in t[:8]:
        p(x)
    for step in range(5):
        p(q_scan(0, step))
        for x in t[8 + step:9 + step]:
            p(x)
    p(f"v_cmp_ne_u32 vcc, 0, {v(NBA)}")
    q_lanes(0)
    p(f"s_mov_b32 {s(sEARLY)}, 0")
    p("s_cbranch_vccnz L_late")
    q_ranks(0, 0)
    p(f"s_add_u32 {s(sT0)}, {s(sLB)}, {L0+16*LA}")
    p(f"s_cmp_ge_u32 {s(sBASE)}, {s(sT0)}")
    q_write(0)
    p("s_cbranch_scc0 L_late")
    p(f"s_mov_b32 {s(sEARLY)}, 1")
    idx_reads()
    p("s_waitcnt lgkmcnt(0)")
    tiles(0, NE, F, "e")
    if opt.get("x5") == 2:
        x5tile()
    p(f"s_setpc_b64 {s(RET,2)} ; ret=L_fp")
    p("L_late:")
    p("s_waitcnt vmcnt(0)")
    p(f"s_setpc_b64 {s(RET,2)} ; ret=L_fp")


stamp()
jit()
if not opt["yf"]:
    p(f"s_cmp_ge_u32 {s(sw)}, 4")
    p("s_cbranch_scc1 L_young1")


def rank_front(mid=None):
    for i in range(3):
        q_total(i, i + 1)
    t = q_test(1) + q_test(2) + q_test(3)
    for x in t[:9]:
        p(x)
    for step in range(5):
        for i in range(3):
            p(q_scan(i, step))
    if mid:
        mid()
    for x in t[9:]:
        p(x)
    p(f"v_cmp_ne_u32 vcc, 0, {v(NBA)}")
    for i in range(3):
        q_lanes(i)


p(f"s_waitcnt vmcnt({6+LL+3*OC}) lgkmcnt(0)")
p(f"s_call_b64 {s(RET,2)}, L_fp")
if OC:
    assert G2 == 1 and opt["ym"] and opt["y2"]
    p(f"s_waitcnt vmcnt({2*NE})")
    rank_front()
    p("s_cbranch_vccnz L_old1")
    for i in range(3):
        q_ranks(i, i + 1)
else:
    p(f"s_waitcnt vmcnt({1+LL+2*NE})")
p("s_branch L_old1")
p("L_young1:")
p(f"s_waitcnt vmcnt({1+LL+opt['ym']})")
p("L_old1:")
cst("preB1")
p(f"s_waitcnt lgkmcnt(0)")
p("s_barrier")
stamp()
cst("B1")
jit()
RWA, RWC, RWD, RBB, RBC, TP, DB, DA, DD = CA, CA + 4, CA + 8, CA + 12, CA + 20, CA + 28, CA + 44, CA + 52, CD
for (dst, base) in ((RBB, 0), (RBC, 2)):
    for ks in range(2):
        for u in range(2):
            p(f"ds_read_b64_tr_b16 {v(dst+4*ks+2*u,2)}, {v(SB_)} offset:{(base+ks)*REG+u*512}")
for j in range(2):
    for ks in range(2):
        p(f"ds_read_b128 {v(TP+8*j+4*ks,4)}, {v(TBA)} offset:{TB+j*2*REG+ks*64}")
for u in range(2):
    p(f"ds_read_b64_tr_b16 {v(RWA+2*u,2)}, {v(SA)} offset:{u*512}")
    p(f"ds_read_b64_tr_b16 {v(RWC+2*u,2)}, {v(SC_)} offset:{u*512}")
    p(f"ds_read_b64_tr_b16 {v(RWD+2*u,2)}, {v(SC_)} offset:{2*REG+u*512}")
if not opt["yf"]:
    p(f"s_cmp_ge_u32 {s(sw)}, 4")
    p("s_cbranch_scc1 L_young2")
p(f"s_waitcnt vmcnt({LL+2*NE})")
p("s_branch L_old2")
p("L_young2:")
p(f"s_waitcnt vmcnt({LL+opt['ym']})")
p("L_old2:")
if G2 == 1:
    late_loads()
for j in range(2):
    p(f"v_lshlrev_b32 {v(DB+2*j)}, 16, {v(B1R+j)}")
    p(f"v_and_b32 {v(DB+2*j+1)}, 0xffff0000, {v(B1R+j)}")
groups(1)
jit()
cst("firstpair")
p("s_waitcnt lgkmcnt(0)")
for j in range(8):
    p(f"v_xor_b32 {v(RBC+j)}, 0x80008000, {v(RBC+j)}")
for u in range(2):
    p(f"{DIAGMM} {v(DA+4*u,4)}, {v(IDN,2)}, {v(RWA+2*u,2)}, 0")
    p(f"{DIAGMM} {v(DD+4*u,4)}, {v(IDN,2)}, {v(RWD+2*u,2)}, 0")
for u in range(2):
    p(f"{DIAGMM} {v(DA+4*u,4)}, {v(IDN,2)}, {v(RWC+2*u,2)}, {v(DA+4*u,4)}")
if G2 == 3:
    late_loads()
for j in (1, 0):
    first = True
    for (src) in (RBB, RBC):
        for ks in range(2):
            c = v(DB, 4) if first else v(DB + 4 * j, 4)
            p(f"v_mfma_f32_16x16x32_bf16 {v(DB+4*j,4)}, {v(src+4*ks,4)}, {v(TP+8*j+4*ks,4)}, {c}")
            first = False
for j in range(8):
    p(f"v_mul_f32 {v(DA+j)}, {s(sC)}, {v(DA+j)}")
for j in range(8):
    p(f"v_mul_f32 {v(DD+j)}, {s(sC)}, {v(DD+j)}")
p(f"s_add_u32 {s(sT0)}, {s(sLB)}, {XCH}")
if G2 == 2:
    p(f"v_mov_b32 {v(TX+2)}, v3")
p(f"v_add_u32 v3, {s(sT0)}, v2")
for j in range(4):
    p(f"v_cvt_pk_bf16_f32 {v(DD+j)}, {v(DD+2*j)}, {v(DD+2*j+1)}")
for j in range(8):
    p(f"v_mul_f32 {v(DB+j)}, {s(sC)}, {v(DB+j)}")
p(f"ds_write_b128 v3, {v(DA,4)}")
p(f"ds_write_b128 v3, {v(DA+4,4)} offset:1024")
p(f"ds_write_b128 v3, {v(DD,4)} offset:2048")
p(f"ds_write_b128 {v(BWA)}, {v(DB,4)}")
p(f"ds_write_b128 {v(BWA)}, {v(DB+4,4)} offset:{2*REG}")
if G2 == 2:
    p(f"v_mov_b32 {v(TX+1)}, v3")
    p(f"v_mov_b32 v3, {v(TX+2)}")
    late_loads()
if OC:
    p(f"v_cmp_ne_u32 vcc, 0, {v(NBA)}")
    p(f"s_cmp_ge_u32 {s(sw)}, 4")
    p("s_cbranch_scc1 L_youngw")
    p("s_cbranch_vccnz L_youngw")
    for i in range(3):
        q_write(i)
    p("L_youngw:")
p(f"v_add_u32 v3, {XCH}, v2")
p(f"v_add_u32 {v(TX)}, {4*REG}, v3")
cst("preB3")
p("s_waitcnt lgkmcnt(0)")
p("s_barrier")
cst("B3")
jit()
stamp()
def const_reads(w0, w1):
    if opt.get("xc"):
        return
    for w_ in range(w0, w1):
        a = "v3" if w_ < 4 else v(TX)
        p(f"ds_read_b128 {v(CA+8*w_,4)}, {a} offset:{(w_&3)*REG}")
        p(f"ds_read_b128 {v(CA+8*w_+4,4)}, {a} offset:{(w_&3)*REG+1024}")
        p(f"ds_read_b128 {v(CD+4*w_,4)}, {a} offset:{(w_&3)*REG+2048}")


if opt["yf"]:
    assert not opt["ym"] and not opt["y2"]
    p("s_branch L_old3")
p(f"s_cmp_ge_u32 {s(sw)}, 4")
p("s_cbranch_scc0 L_old3")
if opt["yp"]:
    p("s_setprio 2")
if opt["ym"]:
    p("s_waitcnt vmcnt(4)")
p(f"s_call_b64 {s(RET,2)}, L_fp")
if opt["y2"]:
    p("s_branch L_yng3")
p("L_old3:")
p(f"s_call_b64 {s(RET,2)}, L_t23")
if OC:
    const_reads(0, 5)
    groups(2)
    p(f"v_cmp_ne_u32 vcc, 0, {v(NBA)}")
    p(f"s_waitcnt vmcnt({2*(LA-NE)})")
    p("s_cbranch_vccnz L_general")
    const_reads(5, 8)
    t_reads()
    p("s_branch L_listed")
p("L_yng3:")
const_reads(0, 3)
groups(2)
p(f"s_waitcnt vmcnt({2*min(NE, LA-NE) if opt['y2'] or G2 else 2*LA})")
cst("tiles23")
rank_front(lambda: const_reads(3, 5))
p("s_cbranch_vccnz L_general")
q_ranks(0, 1)
q_ranks(1, 2)
q_write(0)
q_ranks(2, 3)
q_write(1)
const_reads(5, 8)
t_reads()
q_write(2)
if opt["y2"]:
    p(f"s_cmp_ge_u32 {s(sw)}, 4")
    p("s_cbranch_scc0 L_old3b")
    p(f"s_call_b64 {s(RET,2)}, L_t23")
    p("L_old3b:")
p("L_listed:")
stamp()
jit(True)
if opt["swap"]:
    p(f"s_and_b32 {s(sT2)}, {s(NB)}, 0x40000000")
    p(f"s_or_b32 {s(sT2)}, {s(sT2)}, {s(sw)}")
    p(f"s_bitset1_b32 {s(sT2)}, 31")
    for r, src in ((sT0, A0 + 6), (sT1, A0 + 10)):
        p(f"s_and_b32 {s(r)}, {s(src)}, 0x1ff")
        p(f"s_lshl_b32 {s(r)}, {s(r)}, 3")
        p(f"s_or_b32 {s(r)}, {s(r)}, {s(sT2)}")
    for x, r in enumerate((sT0, sCUR, sM2, sB3)):
        p(f"v_mov_b32 {v(ZA+x)}, {s(r)}")
    for x, r in enumerate((sT1, sB3, sM3, sE3)):
        p(f"v_writelane_b32 {v(ZA+x)}, {s(r)}, 1")
    p("s_mov_b64 exec, 3")
    p(f"ds_write_b128 {v(DG+6)}, {v(ZA,4)} offset:{KEY}")
    p("s_mov_b64 exec, -1")
    p(f"s_sub_u32 {s(sSZ)}, {s(sB3)}, {s(sCUR)}")
    p(f"s_sub_u32 {s(sSZ+1)}, {s(sE3)}, {s(sB3)}")
    p(f"s_lshl_b32 {s(sOW)}, {s(sw)}, 3")
    p(f"s_mov_b32 {s(sRND)}, 0")
    p(f"s_mov_b32 {s(sPM)}, 0")
if opt["prio"]:
    step = 2 * PSTEP
    p(f"s_sub_u32 {s(sT0)}, {s(sBASE)}, {s(sLB)}")
    p(f"s_sub_u32 {s(sT0)}, {s(sT0)}, {L0}")
    p(f"s_lshr_b32 {s(sT0)}, {s(sT0)}, 3")
    if opt["bias"]:
        p(f"s_lshr_b32 {s(sT1)}, {s(sw)}, 2")
        p(f"s_mul_i32 {s(sT1)}, {s(sT1)}, {2*opt['bias']}")
        p(f"s_add_u32 {s(sT0)}, {s(sT0)}, {s(sT1)}")
    p(f"s_sub_u32 {s(sT1)}, 0, {s(sT0)}")
    p(f"v_mov_b32 {v(PADR)}, {v(DG+5)}")
    p(f"v_mov_b32 {v(PRV)}, {s(sT0)}")
    p(f"v_mov_b32 {v(PINC)}, {-step}")
    p(f"v_writelane_b32 {v(PRV)}, {s(sT1)}, 1")
    p(f"v_writelane_b32 {v(PINC)}, {step}, 1")
    p(f"ds_add_u32 {v(PADR)}, {v(PRV)}")
    if opt["pv"]:
        p(f"v_bfrev_b32 {v(PTH)}, -2")
        p(f"v_writelane_b32 {v(PTH)}, 0, 0")
p(f"s_cmp_eq_u32 {s(sEARLY)}, 1")
p("s_cbranch_scc1 L_nolate")
idx_reads()
p("s_waitcnt lgkmcnt(0)")
tiles(0, LA, F, "l")
p("L_nolate:")
for hb in range(4):
    for j in range(2):
        p(f"v_and_b32_dpp {v(W2+2*hb+j)}, {v(W2R+j)}, {v(N0M)} quad_perm:[{hb},{hb},{hb},{hb}] row_mask:0xf bank_mask:0xf")
if opt.get("xp"):
    for j in range(opt["xp"]):
        p("s_nop 15")
cst("precompactdone")
p(f"s_waitcnt vmcnt({2*(LA-1)}) lgkmcnt(0)")
read_xb(0, 0)
read_xb(0, 1)
wbuild(opt["fg"])
stamp()
stamp(33)
cst("wbuilt")
if STAMP == 4:
    p("s_waitcnt lgkmcnt(0)")
    p("v_mov_b32 v254, 0")
    for j, r in enumerate((38,80,82,96,98,44,46,48,50,16)):
        p(f"v_writelane_b32 v254, s{r}, {j}")
if not opt["fg"]:
    for j in range(8):
        p(g1(j))
if "y0" in SCHED[opt["sched"]]:
    p(f"s_waitcnt vmcnt({2*(LA-2)})")
    read_xb(1, 0)
    read_xb(1, 1)
_t = SCHED[opt["sched"]].split()
if "AA" in _t:
    p("v_cmp_gt_u32 vcc, 32, v0")
    p(f"v_cndmask_b32 {v(ONE)}, 0, {v(ONE)}, vcc")
if _t.index("ia") < _t.index("EV"):
    p(f"ds_read_u8 {v(VA)}, {v(RDL)} offset:{LA*16}")
    p(f"ds_read_u8 {v(VB)}, {v(RDL)} offset:{LA*16+8}")
if _t.index("k1") > _t.index("EV"):
    for j in range(4, 8):
        p(f"v_mov_b32 {v(ZA+j)}, 0")
if opt.get("x5"):
    p("s_waitcnt lgkmcnt(0)")
    p(f"v_mov_b32 {v(VA)}, 0xff")
    p(f"v_mov_b32 {v(VB)}, 0xff")
event_mask()
p(f"s_cmp_lg_u64 {s(NB,2)}, 0")
if opt.get("so"):
    p("s_cbranch_scc1 L_gen2")
    p(f"s_getreg_b32 {s(sT0)}, hwreg(HW_REG_XCC_ID, 0, 1)")
    p(f"s_cmp_eq_u32 {s(sT0)}, 0")
    p("s_cbranch_scc1 Lf_mid")
    p("s_branch Lo_mid")
    p("L_gen2:")
else:
    p("s_cbranch_scc0 Lf_mid")
p(f"s_mul_i32 {s(sT0)}, {s(sW)}, 800")
p(f"s_add_u32 s8, s8, {s(sT0)}")
p("s_addc_u32 s9, s9, 0")
srd(SM, 8, 400)
p(f"s_movk_i32 {s(sMDL)}, {MDL0}")
p("s_branch Ls_mid")
p("L_fp:")
first_pair()
if opt["swap"]:
    A_, B_, KB_, TK_, KA_ = ZA + 8, ZA + 9, ZA + 10, ZA + 11, ZA + 12
    p("L_swap:")
    p(f"v_lshrrev_b32 {v(A_)}, 3, v0")
    p(f"v_and_b32 {v(B_)}, 7, v0")
    p(f"v_mul_u32_u24 {v(A_)}, {REG}, {v(A_)}")
    p(f"v_mul_u32_u24 {v(B_)}, {REG}, {v(B_)}")
    p(f"v_add_u32 {v(A_)}, {s(sRND)}, {v(A_)}")
    p(f"v_add_u32 {v(B_)}, {s(sRND)}, {v(B_)}")
    p(f"v_mov_b32 {v(TK_)}, 1")
    p("s_mov_b64 exec, 1")
    p(f"ds_add_rtn_u32 {v(TK_)}, {v(A_)}, {v(TK_)} offset:{TKT}")
    p("s_mov_b64 exec, -1")
    p("L_swap_poll:")
    p(f"ds_read_b32 {v(KB_)}, {v(B_)} offset:{KEY}")
    p(f"ds_read_b128 {v(KA_,4)}, {v(A_)} offset:{KEY}")
    p(f"v_and_b32 {v(TX+2)}, 56, v0")
    p("s_waitcnt lgkmcnt(0)")
    p(f"v_cmp_le_i32 vcc, 0, {v(KB_)}")
    p(f"v_cmp_gt_u32 {s(P0,2)}, {v(KB_)}, {v(KA_)}")
    p(f"v_lshlrev_b32 {v(TX+3)}, 1, {v(KB_)}")
    p(f"v_readfirstlane_b32 {s(sT0)}, {v(TK_)}")
    p("s_cbranch_vccnz L_swap_poll")
    p(f"v_lshrrev_b64 {v(TX,2)}, {v(TX+2)}, {s(P0,2)}")
    p(f"v_cmp_gt_i32 {s(P1,2)}, 0, {v(TX+3)}")
    p(f"v_and_b32 {v(TX)}, 0xff, {v(TX)}")
    p(f"v_bcnt_u32_b32 {v(TX)}, {v(TX)}, 0")
    p(f"v_cmp_eq_u32 vcc, {s(sT0)}, {v(TX)}")
    p(f"s_lshl_b32 {s(sT1)}, {s(sw)}, 3")
    p(f"s_ff1_i32_b64 {s(sT0)}, vcc")
    p(f"s_cmp_lg_u64 {s(P1,2)}, 0")
    p(f"s_cselect_b32 {s(sT0)}, {s(sT1)}, {s(sT0)}")
    p(f"s_sub_u32 {s(sT3)}, {s(sT0)}, {s(sOW)}")
    p(f"s_mov_b32 {s(sOW)}, {s(sT0)}")
    p(f"s_sub_u32 {s(sDG+1)}, {s(sT0)}, {s(sT1)}")
    p(f"v_readlane_b32 {s(sT1)}, {v(KA_+2)}, {s(sT0)}")
    p(f"v_readlane_b32 {s(sT2)}, {v(KA_+3)}, {s(sT0)}")
    p(f"v_readlane_b32 {s(sT0)}, {v(KA_+1)}, {s(sT0)}")
    p(f"s_mul_i32 {s(sPD+1)}, {s(sT3)}, {REG // 8}")
    p(f"s_mul_i32 {s(sT3)}, {s(sT3)}, {6400 * (256 if opt['map'] & 4 else 1)}")
    p(f"s_add_u32 {s(sRO)}, {s(sRO)}, {s(sT3)}")
    p(f"s_sub_u32 {s(sT3)}, {s(sT0)}, {s(sCUR)}")
    p(f"v_add_u32 {v(RDL)}, {s(sT3)}, {v(RDL)}")
    p(f"s_mov_b32 {s(sCUR)}, {s(sT2)}")
    for r in (sT1, sT2):
        p(f"s_sub_u32 {s(r)}, {s(r)}, {s(sT0)}")
    p(f"s_sub_u32 {s(sT3)}, {s(sT2)}, {s(sSZ)}")
    for r in (sT1, sT2):
        p(f"s_lshr_b32 {s(r)}, {s(r)}, 4")
        p(f"s_add_u32 {s(r)}, {s(r)}, {s(sU)}")
        p(f"s_bitset1_b64 {s(F,2)}, {s(r)}")
    event_mask()
    if opt["prio"]:
        p(f"s_ashr_i32 {s(sT3)}, {s(sT3)}, 3")
        p(f"v_mov_b32 {v(A_)}, {s(sT3)}")
        p(f"s_sub_u32 {s(sT3)}, 0, {s(sT3)}")
        p(f"v_writelane_b32 {v(A_)}, {s(sT3)}, 1")
        p(f"ds_add_u32 {v(PADR)}, {v(A_)}")
    p(f"s_cmp_eq_u32 {s(sRND)}, 0")
    p(f"s_cselect_b32 {s(sPD)}, {s(sPD+1)}, {s(sPD)}")
    p(f"s_cselect_b32 {s(sDG)}, {s(sDG+1)}, {s(sDG)}")
    p(f"s_cselect_b32 {s(sKA)}, 1, 8")
    p(f"s_cselect_b32 {s(sT0)}, 4, 2")
    p(f"s_mov_b32 {s(sSZ)}, {s(sSZ+1)}")
    p(f"s_mov_b32 {s(sRND)}, 16")
    p(f"s_cmp_eq_u32 {s(sKW)}, {s(sT0)}")
    p("s_cbranch_scc1 L_swap_now")
    p(f"s_sub_u32 {s(sT0)}, {s(sT0)}, 1")
    p(f"s_bitset1_b32 {s(sPM)}, {s(sT0)}")
    p(f"s_setpc_b64 {s(RET,2)} ; ret=L_swap")
    p("L_swap_now:")
    p(f"v_add_u32 {v(TADR)}, {s(sPD+1)}, {v(TADR)}")
    p(f"v_add_u32 {v(BADR)}, {s(sPD+1)}, {v(BADR)}")
    t_reads()
    p(f"s_setpc_b64 {s(RET,2)} ; ret=L_swap")
p("L_t23:")
p(f"s_cmp_eq_u32 {s(sEARLY)}, 0")
p("s_cbranch_scc1 L_skip23")
tiles(NE, LA, F, "e")
if opt.get("x5") == 1:
    x5tile()
p(f"s_setpc_b64 {s(RET,2)} ; ret=L_t23")
p("L_skip23:")
p("s_waitcnt vmcnt(0)")
p(f"s_setpc_b64 {s(RET,2)} ; ret=L_t23")
mainloop("f", False)
p("L_store:")
p(f"s_add_u32 {s(sT0)}, {s(sLB)}, {OUTS}")
p(f"v_lshl_add_u32 {v(TX+1)}, v0, 4, {s(sT0)}")
if opt["swap"]:
    for j in range(2):
        p(f"s_lshl_b32 {s(sT0)}, {s(sDG+j)}, {13 if opt['map'] & 4 else 5}")
        p(f"s_bfm_b64 exec, 16, {32+16*j}")
        p(f"v_add_u32 {v(VOUT)}, {s(sT0)}, {v(VOUT)}")
    p("s_mov_b64 exec, -1")
p(f"ds_read_b128 {v(ZB,4)}, {v(TX+1)}")
p("s_waitcnt lgkmcnt(0)")
if opt.get("endp"):
    p("s_cmp_lg_u32 s2, 0")
    p("s_cbranch_scc1 L_endp")
    p("L_endq:")
    p("s_memrealtime s[38:39]")
    p("s_waitcnt lgkmcnt(0)")
    p("s_sub_u32 s38, s38, s100")
    p(f"s_cmp_lt_i32 s38, {opt['endp']*100}")
    p("s_cbranch_scc1 L_endq")
    p("L_endp:")
    if opt.get("fr"):
        p(f"s_and_b32 s38, s2, {opt['fr']}")
        p("s_cbranch_scc0 L_endr")
        p(f"global_store_dwordx4 {v(VOUT)}, {v(ZB,4)}, s[18:19] sc0 sc1")
        p("s_endpgm")
        p("L_endr:")
p(f"global_store_dwordx4 {v(VOUT)}, {v(ZB,4)}, s[18:19] {NTO}")
if STAMP:
    p("s_mov_b64 exec, -1")
    stamp(34)
    p(f"v_writelane_b32 v254, {s(sBASE)}, 15")
    p("s_getreg_b32 s96, hwreg(HW_REG_XCC_ID)")
    p("v_writelane_b32 v254, s96, 14")
    p("s_getreg_b32 s96, hwreg(HW_REG_HW_ID)")
    p("v_writelane_b32 v254, s96, 13")
    srd(SM, 100, 2048 * 256)
    p(f"s_lshl_b32 {s(sT0)}, s2, 3")
    p(f"s_add_u32 {s(sT0)}, {s(sT0)}, {s(sw)}")
    p(f"s_lshl_b32 {s(sT0)}, {s(sT0)}, 8")
    p(f"v_lshlrev_b32 v1, 2, v0")
    p(f"buffer_store_dword v254, v1, {s(SM,4)}, {s(sT0)} offen")
if opt.get("twice"):
    p("s_waitcnt vmcnt(0) lgkmcnt(0)")
    p("s_barrier")
    p("s_setprio 0")
    p(f"s_lshl_b32 {s(sT0)}, {s(sw)}, 6")
    p(f"v_add_u32 v0, {s(sT0)}, v0")
    p("s_add_u32 s3, s3, 1")
    p("s_cmp_eq_u32 s3, 1")
    p("s_cbranch_scc1 L_again")
if opt.get("spin"):
    if opt.get("probe"):
        if opt["probe"] == "end":
            p("s_memrealtime s[98:99]")
            p("s_waitcnt lgkmcnt(0)")
        p("s_sub_u32 s98, s98, s100")
        p(f"s_mul_i32 s98, s98, {opt.get('pk', 4)}")
        p("s_add_u32 s100, s100, s98")
    p("L_spin:")
    p("s_memrealtime s[38:39]")
    p("s_waitcnt lgkmcnt(0)")
    p("s_sub_u32 s38, s38, s100")
    p(f"s_cmp_lt_i32 s38, {opt['spin']*100}")
    p("s_cbranch_scc1 L_spin")
p("L_end:")
p("s_endpgm")
if opt.get("so"):
    mainloop("o", False, opt["so"])
p("L_general:")
p("s_waitcnt vmcnt(0)")
const_reads(5, 8)
t_reads()
list_reset()
p(f"s_bfm_b64 {s(EX50,2)}, 50, 0")
p(f"s_mul_i32 {s(sT0)}, {s(sW)}, 800")
p(f"v_add_u32 {v(TX+1)}, {s(sT0)}, v2")
p(f"s_mov_b64 exec, {s(EX50,2)}")
for j in range(4):
    p(f"global_load_dwordx4 {v(MSK+4*j,4)}, {v(TX+1)}, s[8:9]")
    p(f"v_add_u32 {v(TX+1)}, {PSTR*400}, {v(TX+1)}")
p("s_mov_b64 exec, -1")
p(f"v_cmp_lt_u32 vcc, 24, v0")
p(f"v_cndmask_b32 {v(HI)}, 0, 1, vcc")
p(f"v_mul_u32_u24 {v(CV+1)}, 25, {v(HI)}")
p(f"v_sub_u32 {v(CV+1)}, v0, {v(CV+1)}")
p(f"v_mul_u32_u24 {v(CV+1)}, 0x80008, {v(CV+1)}")
p(f"v_add_u32 {v(CV)}, 0x10000, {v(CV+1)}")
p(f"v_add_u32 {v(CV+2)}, 0x50004, {v(CV+1)}")
p(f"v_add_u32 {v(CV+3)}, 0x70006, {v(CV+1)}")
p(f"v_add_u32 {v(CV+1)}, 0x30002, {v(CV+1)}")
p("s_waitcnt vmcnt(0)")
for j in range(4):
    compact_body(j)
p(f"s_mov_b32 {s(sEARLY)}, 0")
p(f"s_mov_b64 {s(NB,2)}, -1")
p("s_branch L_listed")
mainloop("s", True)

nn = p.fix_hazards(verbose=opt["verbose"])
for early_, old_, gen_ in ((a_, b_, c_) for a_ in (True, False) for b_ in (True, False) for c_ in (True, False)):
    force = [("L_skip", not early_), ("L_nolate", early_ and not gen_), ("L_young", not old_), ("L_old3", old_), ("L_general", gen_)]
    for e in check_waits(p, force + ([("L_late", False)] if early_ else [])) if early_ else check_waits(p, force, cut="L_noadve"):
        if STAMP != 4 and not opt.get('x5'):
            sys.exit(f"WAIT-CHECK early={early_}: {e}")
hdr = open(__file__.rsplit("/", 1)[0] + "/../standalone__sequential_behavior_din__recsys.s.ref").read().split("\n")
head = [l for l in hdr if l.startswith(";") and "@launch" not in l and "Override" not in l and "grid=ceil" not in l]
out = "\n".join(head) + f"""
; @launch grid=({NWG},1,1) block=({WPB*64},1,1) lds={WPB*REG}
; generated by gen/gen.py {' '.join(sys.argv[1:])}
;
; out[b] = sum_l mask[b,l] * (sigmoid([h, t, h-t, h*t] w1 + b1) w2 + b2) * h,   h = hist[b,l], t = target[b]
; With w1 = [Wa; Wb; Wc; Wd] and c = -log2(e):  Z = h W_eff + bias,  W_eff = c (Wa + Wc + diag(t) Wd),  bias = c (b1 + t (Wb - Wc)),
; sigmoid = 1 / (1 + 2^Z).  History rows whose mask is zero contribute nothing and are not loaded.
; One workgroup per CU, 8 waves, 8 batch rows per wave.  Prologue: shared constants (weights staged in LDS, one slice per wave),
; bias for the workgroup's 64 rows, and per wave a list of the active history rows (prefix sums by int8 MFMA for 0/1 masks;
; any other mask value selects the general path: comparison-based lists and a loop copy that scales the scores by the mask).
; Loop: 16-row tiles gathered into a 4-slot LDS ring (LDS-DMA, index 255 = out of range = zeros); GEMM1 (16x16x32), exp, +1 (4x4x4
; MFMA), rcp, score (16x16x32), weighted sum (4x4x4 with A broadcast on transposed reads).  The two waves of a SIMD keep level through
; an LDS counter and s_setprio; row pairs 2 and 3 are handed out inside the workgroup in arrival order, largest first.
.amdgcn_target "amdgcn-amd-amdhsa--gfx950"
.text
.globl {NAME}
.p2align 8
.type {NAME},@function
""" + p.text() + f""".section .rodata,"a"
.p2align 6
.amdhsa_kernel {NAME}
  .amdhsa_next_free_vgpr 256
  .amdhsa_next_free_sgpr 102
  .amdhsa_accum_offset 256
  .amdhsa_group_segment_fixed_size 0
  .amdhsa_kernarg_size 80
  .amdhsa_user_sgpr_count 2
  .amdhsa_user_sgpr_kernarg_segment_ptr 1
  .amdhsa_system_sgpr_workgroup_id_x 1
.end_amdhsa_kernel
"""
sys.stdout.write(out)
```
